```python
import torch

def _softmax(x, axis=-1):
    return torch.softmax(x, dim=axis)
def _gelu(x):
    return torch.nn.functional.gelu(x, approximate="tanh")
def _silu(x):
    return torch.nn.functional.silu(x)
def _sigmoid(x):
    return torch.sigmoid(x)
def _layernorm(x, axis=-1, eps=1e-5):
    m = x.mean(dim=axis, keepdim=True)
    v = x.var(dim=axis, keepdim=True, unbiased=False)
    return (x - m) / torch.sqrt(v + eps)
def _scatter_add(tgt, idx, src, axis=0):
    return tgt.clone().index_add_(axis, idx, src)
def _segment_sum(src, seg, n):
    out = torch.zeros((n,) + src.shape[1:], dtype=src.dtype)
    return out.index_add_(0, seg, src)
def _pad(x, pw):
    flat = tuple(v for pair in reversed(pw) for v in pair)
    return torch.nn.functional.pad(x, flat)

kernel_name = 'sequential_preLN__sliding_block__moe_arch_mod__prompt'

def setup_inputs():

    _w = (lambda a: (lambda t: t.to(torch.bfloat16) if t.is_floating_point() else t)(torch.as_tensor(a)))
    def _A_setup():
        B, S, D = 1, 2048, 640
        return {
            "x": _w((lambda *s: torch.randn(*s, dtype=torch.bfloat16) * 0.05)(B, S, D)),
            "wqkv": _w((lambda *s: torch.randn(*s, dtype=torch.bfloat16) * 0.05)(D, 3 * D)),
            "wo": _w((lambda *s: torch.randn(*s, dtype=torch.bfloat16) * 0.05)(D, D)),
        }
    _A_in = _A_setup()

    def _B_setup():
        B, S, D, F, C = 1, 2048, 640, 1728, 8
        return {
            "x": _w((lambda *s: torch.randn(*s, dtype=torch.bfloat16) * 0.05)(B, S, D)),
            "w_r": _w((lambda *s: torch.randn(*s, dtype=torch.bfloat16) * 0.05)(D)),
            "w_gate": _w((lambda *s: torch.randn(*s, dtype=torch.bfloat16) * 0.05)(D, F)),
            "w_up": _w((lambda *s: torch.randn(*s, dtype=torch.bfloat16) * 0.05)(D, F)),
            "w_down": _w((lambda *s: torch.randn(*s, dtype=torch.bfloat16) * 0.05)(F, D)),
        }
    _B_in = _B_setup()

    return {
        "A_x": _A_in["x"],
        "A_wqkv": _A_in["wqkv"],
        "A_wo": _A_in["wo"],
        "B_x": _B_in["x"],
        "B_w_r": _B_in["w_r"],
        "B_w_gate": _B_in["w_gate"],
        "B_w_up": _B_in["w_up"],
        "B_w_down": _B_in["w_down"],
    }

def reference(A_x, A_wqkv, A_wo, B_x, B_w_r, B_w_gate, B_w_up, B_w_down):
    def _A_ref(x, wqkv, wo):
        B, S, D = x.shape
        H = 32; Dh = D // H; W = 256
        qkv = (lambda x, *d: x.permute(*d))((x @ wqkv).reshape(B, S, 3, H, Dh), 2, 0, 3, 1, 4)
        q, k, v = qkv[0], qkv[1], qkv[2]
        scores = torch.einsum("bhqd,bhkd->bhqk", q, k) * (Dh ** -0.5)
        idx = torch.arange(S)
        mask = (idx[:, None] - idx[None, :] >= 0) & (idx[:, None] - idx[None, :] < W)
        scores = torch.where(mask[None, None], scores, -1e9)
        p = _softmax(scores, axis=-1)
        o = torch.einsum("bhqk,bhkd->bhqd", p, v)
        return (lambda x, *d: x.permute(*d))(o, 0, 2, 1, 3).reshape(B, S, D) @ wo

    def _B_ref(x, w_r, w_gate, w_up, w_down):
        B, S, D = x.shape
        C = 8
        r = x @ w_r
        idx = torch.argsort(-r, axis=-1)[:, :C]
        idx_e = (lambda x, n, axis: torch.repeat_interleave(x, n, dim=axis))(idx.reshape(B, C, 1), D, axis=2)
        x_sel = (lambda x, i, axis: torch.take_along_dim(x, i, dim=axis))(x, idx_e, axis=1)
        g = _silu(x_sel @ w_gate)
        u = x_sel @ w_up
        y = (g * u) @ w_down
        r_sel = _sigmoid((lambda x, i, axis: torch.take_along_dim(x, i, dim=axis))(r, idx, axis=1))
        y = y * r_sel.reshape(B, C, 1)
        b_off = (torch.arange(B) * S).reshape(B, 1)
        flat_idx = (idx + b_off).reshape(B * C)
        zero = (x * 0.0).reshape(B * S, D)
        upd = _scatter_add(zero, flat_idx, y.reshape(B * C, D), axis=0)
        return x + upd.reshape(B, S, D)

    x = A_x
    h = x + _A_ref(_layernorm(x, axis=-1), A_wqkv, A_wo)
    h2 = h + _B_ref(_layernorm(h, axis=-1), B_w_r, B_w_gate, B_w_up, B_w_down)
    return h2
```

```python
import re

TRANS = ("v_exp_", "v_log_", "v_rcp_", "v_rsq_", "v_sqrt_", "v_sin_", "v_cos_")

def _regs(tok):
    tok = tok.strip()
    neg = tok.lstrip("-")
    if neg.startswith("abs(") and neg.endswith(")"): neg = neg[4:-1]
    if neg.startswith("|") and neg.endswith("|"): neg = neg[1:-1]
    m = re.fullmatch(r"([vas])(\d+)", neg)
    if m: return {(m.group(1), int(m.group(2)))}
    m = re.fullmatch(r"([vas])\[(\d+):(\d+)\]", neg)
    if m: return {(m.group(1), i) for i in range(int(m.group(2)), int(m.group(3)) + 1)}
    if neg in ("vcc", "vcc_lo", "vcc_hi"): return {("s", "vcc")}
    if neg in ("exec", "exec_lo", "exec_hi"): return {("s", "exec")}
    if neg == "m0": return {("s", "m0")}
    return set()

class Ins:
    def __init__(self, text):
        self.text = text
        t = text.split(";")[0].strip()
        parts = t.split(None, 1)
        self.op = parts[0]
        rest = parts[1] if len(parts) > 1 else ""
        ops, depth, cur = [], 0, ""
        for ch in rest:
            if ch == "[": depth += 1
            if ch == "]": depth -= 1
            if ch == "," and depth == 0:
                ops.append(cur); cur = ""
            else: cur += ch
        if cur.strip(): ops.append(cur)
        self.mods = ""
        if ops:
            last = ops[-1].strip().split(None, 1)
            ops[-1] = last[0]
            self.mods = last[1] if len(last) > 1 else ""
        self.ops = [o.strip() for o in ops]
        op = self.op
        self.mfma = op.startswith("v_mfma")
        self.valu = op.startswith("v_") and not self.mfma
        self.trans = op.startswith(TRANS)
        self.vmem = op.startswith(("buffer_", "global_"))
        self.ds = op.startswith("ds_")
        self.salu = op.startswith("s_")
        self.dpp = "_dpp" in op
        self.perml = op.startswith("v_permlane")
        self.rdlane = op.startswith(("v_readlane", "v_readfirstlane"))
        self.w = set(); self.r = set()
        R = [_regs(o) for o in self.ops]
        self.states = 1
        if op == "s_nop": self.states = int(self.ops[0], 0) + 1
        if self.mfma:
            self.passes = 8 if "32x32" in op else 4
            if "4x4x4" in op: self.passes = 2
            self.D, self.A, self.B, self.C = R[0], R[1], R[2], R[3]
            self.w = set(R[0]); self.r = R[1] | R[2] | R[3]
        elif self.valu:
            if op == "v_nop": pass
            elif self.perml:
                self.w = R[0] | R[1]; self.r = R[0] | R[1]
            else:
                self.w = set(R[0])
                nsrc = 1
                if re.match(r"v_(add|sub|subrev|addc|subb|subbrev)_co_u32|v_div_scale|v_mad_u64_u32", op):
                    self.w |= R[1]; nsrc = 2
                for x in R[nsrc:]: self.r |= x
                if op.startswith(("v_fmac", "v_dot2c", "v_writelane", "v_pk_fmac")) or self.dpp or "_sdwa" in op:
                    self.r |= R[0]
                if op.startswith("v_cmpx"): self.w.add(("s", "exec"))
        elif self.vmem:
            islds = (" lds" in " " + self.mods) or "load_lds" in op
            self.lds = islds
            if op in ("buffer_wbl2", "buffer_inv"): pass
            elif "_load" in op and not islds:
                self.w = set(R[0])
                for x in R[1:]: self.r |= x
            else:
                for x in R: self.r |= x
                if "atomic" in op and "sc0" in self.mods.split():
                    self.w = set(R[0])
                if islds: self.r.add(("s", "m0"))
            self.wide_store = ("store" in op) and ("x3" in op or "x4" in op)
            if self.wide_store:
                self.sdata = R[0] if op.startswith("buffer_") else R[1]
        elif self.ds:
            if op.startswith(("ds_read", "ds_bpermute", "ds_permute", "ds_swizzle")) or "_rtn" in op:
                self.w = set(R[0])
                for x in R[1:]: self.r |= x
            else:
                for x in R: self.r |= x
        elif self.salu:
            if op.startswith(("s_cmp", "s_cbranch", "s_branch", "s_waitcnt", "s_barrier", "s_nop", "s_endpgm", "s_sleep", "s_setprio", "s_bitcmp")):
                for x in R: self.r |= x
            else:
                if R: self.w = set(R[0])
                for x in R[1:]: self.r |= x
                if "saveexec" in op: self.w.add(("s", "exec"))

def vec(s): return {x for x in s if x[0] in "va"}
def sc(s): return {x for x in s if x[0] == "s"}

def need(p, c):
    n = 0
    if p.valu:
        pw = vec(p.w); ps = sc(p.w)
        if c.mfma and pw & c.r: n = max(n, 2)
        if c.valu:
            if p.trans and pw & c.r: n = max(n, 1)
            if (c.perml or c.dpp) and pw & c.r: n = max(n, 2)
            if c.rdlane and pw & c.r: n = max(n, 1)
            if ps & c.r:
                n = max(n, 4 if c.op.startswith(("v_readlane", "v_writelane")) else 2)
            if ("s", "vcc") in ps and c.op.startswith("v_div_fmas"): n = max(n, 4)
            if ("s", "exec") in ps: n = max(n, 5 if c.dpp else 4)
            if ("_sdwa" in p.op or "op_sel:" in p.mods) and pw & (c.r | c.w): n = max(n, 1)
        if c.mfma and ("s", "exec") in ps: n = max(n, 4)
        if c.vmem and ps & c.r: n = max(n, 5)
        if c.salu and ps & c.r: n = max(n, 1)
    if p.mfma:
        big = {2: 5, 4: 8, 8: 12}[p.passes]
        if c.mfma:
            if p.D & c.C:
                if p.D == c.C and p.passes == c.passes: n = max(n, 2 if p.passes == 2 else 0)
                else: n = max(n, p.passes + 2)
            if p.D & (c.A | c.B): n = max(n, big)
            if p.D & c.D and p.passes != c.passes: n = max(n, big)
        elif c.valu or c.vmem or c.ds:
            if p.D & (c.r | c.w): n = max(n, big)
            if c.valu and p.C & c.w: n = max(n, p.passes - 1)
    if p.salu and ("s", "m0") in p.w and c.vmem and getattr(c, "lds", False): n = max(n, 1)
    if p.vmem and getattr(p, "wide_store", False):
        if p.sdata & c.w: n = max(n, 2 if c.valu else 1)
    return n

class Asm:
    def __init__(self):
        self.items = []
    def __call__(self, text):
        for ln in text.split("\n"):
            s = ln.strip()
            if not s or s.startswith(";"): continue
            if s.endswith(":"): self.items.append(("l", s[:-1]))
            elif s.startswith("."): self.items.append(("r", s))
            else: self.items.append(("i", s))
    def label(self, l): self.items.append(("l", l))
    def raw(self, t): self.items.append(("r", t))
    def render(self):
        W = 14
        snaps = {}
        out = None
        for it in range(3):
            out = []
            hist = []
            newsn = {}
            for kind, t in self.items:
                if kind == "r":
                    out.append(t); continue
                if kind == "l":
                    for src in (snaps, newsn):
                        for (p, a) in src.get(t, []):
                            hist.append((p, a))
                    out.append(t + ":"); continue
                ins = Ins(t)
                req = 0
                for (p, a) in hist:
                    req = max(req, need(p, ins) - a)
                if req > 0:
                    out.append(f"    s_nop {req-1}")
                    hist = [(p, a + req) for (p, a) in hist]
                out.append("    " + t)
                hist = [(p, a + ins.states) for (p, a) in hist if a + ins.states < W]
                hist.append((ins, 0))
                if ins.op.startswith(("s_cbranch", "s_branch")):
                    newsn.setdefault(ins.ops[0], []).extend(hist)
                if ins.op in ("s_branch", "s_endpgm"):
                    hist = []
            snaps = newsn
        return "\n".join(out) + "\n"
```

```python
import sys, struct
from asmlib import Asm

NAME = "sequential_preLN__sliding_block__moe_arch_mod__prompt"

Q_OFF   = 0
KV_OFF  = 0x280000
O_OFF   = 0x7A0000
H_OFF   = 0xA20000
ST_OFF  = 0xCA0000
ACT_OFF = 0xCA8000
SEL_OFF = 0xCB0000
WS_SIZE = 0x1000000
QT = 2560; KVT = 5248

def f2u(x): return struct.unpack("<I", struct.pack("<f", x))[0]
QSCALE = f2u((20 ** -0.5) * 1.4426950408889634)
EPS = f2u(1e-5)
INV640 = f2u(1.0 / 640)

def srd(a, d, lo, size):
    a(f"""s_mov_b32 s{d}, s{lo}
    s_and_b32 s{d+1}, s{lo+1}, 0xffff
    s_mov_b32 s{d+2}, {size}
    s_mov_b32 s{d+3}, 0x00020000""")

def rb16(a, v):
    a(f"v_cvt_pk_bf16_f32 v{v}, v{v}, v{v}\n v_lshlrev_b32 v{v}, 16, v{v}")

def ln_scalars(a, s1, s2, tmp):
    a(f"""v_mul_f32 v{s1}, {INV640:#x}, v{s1}
    v_mul_f32 v{s2}, {INV640:#x}, v{s2}
    v_fma_f32 v{s2}, -v{s1}, v{s1}, v{s2}
    v_max_f32 v{s2}, 0, v{s2}""")
    rb16(a, s1); rb16(a, s2)
    a(f"v_add_f32 v{s2}, {EPS:#x}, v{s2}")
    rb16(a, s2)
    a(f"v_sqrt_f32 v{s2}, v{s2}")
    rb16(a, s2)
    a(f"v_rcp_f32 v{s2}, v{s2}")

def k1(a):
    a("""s_load_dwordx4 s[4:7], s[0:1], 0
    s_load_dwordx2 s[8:9], s[0:1], 80
    s_cmp_ge_u32 s2, 256
    s_cbranch_scc1 K1_END
    v_and_b32 v1, 63, v0
    v_lshrrev_b32 v4, 6, v0
    v_and_b32 v2, 15, v0
    v_readfirstlane_b32 s20, v4
    v_lshrrev_b32 v3, 4, v1
    s_and_b32 s21, s2, 7
    s_lshr_b32 s22, s2, 3
    s_cmp_ge_u32 s22, 30
    s_cbranch_scc1 K1_SPARE
    s_lshl_b32 s21, s21, 1
    s_cmp_ge_u32 s22, 15
    s_cselect_b32 s23, 1, 0
    s_add_u32 s21, s21, s23          ; rb
    s_mul_i32 s23, s23, 15
    s_sub_u32 s22, s22, s23          ; ct
    s_lshr_b32 s24, s20, 2           ; wr
    s_and_b32 s25, s20, 3            ; wc
    """)
    a("""s_lshl_b32 s26, s21, 7
    s_lshl_b32 s27, s20, 3
    s_add_u32 s26, s26, s27
    v_lshrrev_b32 v4, 3, v1
    v_add_u32 v4, s26, v4
    v_mul_u32_u24 v4, 1280, v4
    s_and_b32 s27, s20, 1
    s_lshl_b32 s27, s27, 2
    v_or_b32 v5, s27, v3
    v_and_b32 v6, 7, v1
    v_xor_b32 v5, v5, v6
    v_lshl_add_u32 v10, v5, 4, v4     ; A voffset
    s_lshl_b32 s27, s20, 2
    v_add_u32 v4, s27, v3
    v_mul_u32_u24 v4, 3840, v4
    s_lshl_b32 s27, s20, 1
    s_and_b32 s27, s27, 4
    v_or_b32 v5, s27, v3
    v_lshlrev_b32 v5, 1, v5
    v_xor_b32 v5, v5, v2
    v_lshl_add_u32 v11, v5, 4, v4
    s_lshl_b32 s27, s22, 8
    v_add_u32 v11, s27, v11           ; B voffset
    s_lshl_b32 s28, s20, 10
    s_waitcnt lgkmcnt(0)""")
    srd(a, 12, 4, 2621440)
    srd(a, 16, 6, 2457600)
    srd(a, 32, 8, WS_SIZE)
    def dma(c):
        slot = (c % 5) * 32768
        for h in range(2):
            a(f"""s_add_u32 m0, s28, {slot + h*8192}
            s_mov_b32 s29, {128*c + h*81920}
            buffer_load_dwordx4 v10, s[12:15], s29 offen lds""")
            a(f"""s_add_u32 m0, s28, {slot + 16384 + h*8192}
            s_mov_b32 s29, {245760*c + h*122880}
            buffer_load_dwordx4 v11, s[16:19], s29 offen lds""")
    for c in range(5): dma(c)
    a("""v_lshrrev_b32 v4, 1, v2
    v_xor_b32 v4, v4, v3
    v_lshlrev_b32 v4, 4, v4
    v_lshl_add_u32 v4, v2, 7, v4      ; j*128 + ((g^f)*16)
    s_lshl_b32 s26, s24, 13""")
    for t in range(4):
        a(f"""s_xor_b32 s27, s25, {t}
        s_lshl_b32 s27, s27, 11
        s_add_u32 s27, s27, s26
        v_add_u32 v{12+2*t}, s27, v4
        v_xor_b32 v{13+2*t}, 64, v{12+2*t}""")
    a("""v_bfe_u32 v4, v1, 2, 2           ; r
    v_and_b32 v5, 1, v3
    v_lshl_or_b32 v5, v5, 2, v4       ; f2
    v_lshl_add_u32 v4, v3, 3, v4      ; 8g+r
    v_lshlrev_b32 v4, 8, v4
    v_and_b32 v6, 3, v1
    v_lshl_add_u32 v4, v6, 3, v4
    v_add_u32 v4, 16384, v4""")
    for c in range(2):
        a(f"""s_xor_b32 s27, s24, {c}
        s_lshl_b32 s26, s25, 1
        s_add_u32 s27, s27, s26
        v_xor_b32 v6, s27, v5
        v_lshl_add_u32 v{20+c}, v6, 5, v4""")
    for s in (1, 2):
        for i in range(10):
            a(f"v_add_u32 v{12+10*s+i}, {65536*s}, v{12+i}")
    for i in range(4): a(f"v_mov_b32 v{44+i}, 0x3f803f80")

    def FA(b, t): return 48 + 24*b + 4*t
    def FB(b, c): return 48 + 24*b + 16 + 4*c
    def reads(n):
        c, ks, b = n >> 1, n & 1, n & 1
        slot = c % 5
        st, off = slot // 2, (slot % 2) * 32768
        L = []
        for cc in range(2):
            for h in range(2):
                r = FB(b, cc) + 2*h
                L.append(f"ds_read_b64_tr_b16 v[{r}:{r+1}], v{12+10*st+8+cc} offset:{off + 8192*ks + 1024*h}")
        for t in range(4):
            r = FA(b, t)
            L.append(f"ds_read_b128 v[{r}:{r+3}], v{12+10*st+2*t+ks} offset:{off}")
        return [L[4], L[0], L[1], L[2], L[3], L[5], L[6], L[7]]
    def q4(r): return f"v[{r}:{r+3}]"
    def mfmas(n, isv):
        b = n & 1
        L = []
        def mm(d, x, y):
            c = "0" if n == 0 else q4(d)
            L.append(f"v_mfma_f32_16x16x32_bf16 {q4(d)}, {q4(x)}, {q4(y)}, {c}")
        for t in range(4):
            for c in range(2):
                d = 96 + 4*(2*t + c)
                if isv: mm(d, FA(b, t), FB(b, c))
                else:   mm(d, FB(b, c), FA(b, t))
        mm(128, FA(b, 0), FA(b, 0))
        mm(132, 44, FA(b, 0))
        mm(136, 44, FB(b, 0))
        return L
    a("""s_waitcnt vmcnt(16)
    s_barrier""")
    for r in reads(0): a(r)
    a("""s_cmp_ge_u32 s22, 10
    s_cbranch_scc1 K1_VLOOP""")
    def loop(isv):
        for n in range(20):
            a("s_waitcnt lgkmcnt(0)")
            c = n >> 1
            if n & 1 and c < 9:
                vm = 12 if c <= 5 else 4 * (8 - c)
                a(f"s_waitcnt vmcnt({vm})\n s_barrier")
            R = reads(n + 1) if n < 19 else []
            M = mfmas(n, isv)
            D = []
            for i, m in enumerate(M):
                if i < len(R): a(R[i])
                a(m)
                if i == 8 and n & 1 and c + 5 < 10: dma(c + 5)
    def stats():
        a("""v_and_b32 v5, 3, v2
        v_cmp_eq_u32 vcc, 1, v5
        v_cndmask_b32 v4, v128, v129, vcc
        v_cmp_eq_u32 vcc, 2, v5
        v_cndmask_b32 v4, v4, v130, vcc
        v_cmp_eq_u32 vcc, 3, v5
        v_cndmask_b32 v7, v4, v131, vcc
        v_mov_b32 v6, v132""")
        ln_scalars(a, 6, 7, 8)
        a("""s_lshl_b32 s26, s24, 2
        s_add_u32 s26, s26, s25
        s_lshl_b32 s26, s26, 7
        v_lshl_add_u32 v4, v2, 3, s26
        v_lshrrev_b32 v5, 2, v2
        v_cmp_eq_u32 vcc, v5, v3
        s_and_saveexec_b64 s[30:31], vcc
        ds_write_b64 v4, v[6:7]
        s_mov_b64 exec, s[30:31]
        s_lshl_b32 s26, s25, 1
        s_add_u32 s26, s26, s24
        s_lshl_b32 s26, s26, 6
        v_lshl_add_u32 v4, v2, 2, s26
        ds_write_b32 v4, v136 offset:1024
        s_waitcnt lgkmcnt(0)
        s_barrier""")
    loop(False)
    stats()
    a("s_lshl_b32 s26, s24, 9")
    for t in range(4):
        a(f"""s_xor_b32 s27, s25, {t}
        s_lshl_b32 s27, s27, 7
        s_add_u32 s27, s27, s26
        v_lshl_add_u32 v4, v2, 3, s27
        ds_read_b64 v[{48+2*t}:{49+2*t}], v4""")
    for c in range(2):
        a(f"""s_xor_b32 s27, s24, {c}
        s_lshl_b32 s26, s25, 1
        s_add_u32 s27, s27, s26
        s_lshl_b32 s27, s27, 6
        v_lshl_add_u32 v4, v3, 4, s27
        ds_read_b128 v[{56+4*c}:{59+4*c}], v4 offset:1024""")
    a(f"""s_cmp_ge_u32 s22, 5
    s_cselect_b32 s36, 1.0, {QSCALE:#x}
    s_mov_b32 s37, {QT}
    s_cselect_b32 s37, {KVT}, s37
    s_cselect_b32 s38, {KV_OFF}, {Q_OFF}
    s_cselect_b32 s39, 5, 0
    s_sub_u32 s39, s22, s39
    s_lshl_b32 s39, s39, 4
    s_lshl_b32 s26, s25, 2
    s_add_u32 s39, s39, s26           ; 16*(ct%5)+4wc
    v_and_b32 v4, 1, v3
    v_xor_b32 v4, s24, v4
    v_lshrrev_b32 v5, 1, v3
    v_lshl_add_u32 v4, v4, 1, v5
    v_add_u32 v4, s39, v4             ; O
    v_mul_u32_u24 v5, 13108, v4
    v_lshrrev_b32 v5, 16, v5          ; hp
    v_mul_u32_u24 v6, 5, v5
    v_sub_u32 v4, v4, v6              ; i
    s_lshl_b32 s26, s37, 6
    v_mul_lo_u32 v5, v5, s26
    v_lshl_add_u32 v5, v4, 9, v5
    v_lshl_add_u32 v5, v2, 4, v5
    v_add_u32 v9, s38, v5
    s_lshl_b32 s40, s21, 2
    s_lshl_b32 s26, s24, 1
    s_add_u32 s40, s40, s26           ; 4rb+2wr
    s_waitcnt lgkmcnt(0)""")
    for t in range(4):
        m, rs = 48 + 2*t, 49 + 2*t
        a(f"v_mul_f32 v{rs}, s36, v{rs}")
        for c in range(2):
            d = 96 + 4*(2*t + c)
            for r in range(4):
                a(f"v_fma_f32 v{d+r}, -v{m}, v{56+4*c+r}, v{d+r}")
            for r in range(4):
                a(f"v_mul_f32 v{d+r}, v{rs}, v{d+r}")
            a(f"v_cvt_pk_bf16_f32 v{64+4*t+2*c}, v{d}, v{d+1}\n v_cvt_pk_bf16_f32 v{65+4*t+2*c}, v{d+2}, v{d+3}")
        a(f"""s_xor_b32 s27, s25, {t}
        s_lshr_b32 s26, s27, 1
        s_add_u32 s26, s26, s40
        s_mul_i32 s26, s26, s37
        s_and_b32 s27, s27, 1
        s_lshl_b32 s27, s27, 8
        s_add_u32 s26, s26, s27
        v_permlane16_swap_b32 v{64+4*t}, v{66+4*t}
        v_permlane16_swap_b32 v{65+4*t}, v{67+4*t}
        buffer_store_dwordx4 v[{64+4*t}:{67+4*t}], v9, s[32:35], s26 offen""")
    a("s_endpgm")
    a("K1_VLOOP:")
    loop(True)
    stats()
    a("s_lshl_b32 s26, s24, 9")
    for t in range(4):
        a(f"""s_xor_b32 s27, s25, {t}
        s_lshl_b32 s27, s27, 7
        s_add_u32 s27, s27, s26
        v_lshl_add_u32 v4, v3, 5, s27
        ds_read_b128 v[{48+8*t}:{51+8*t}], v4
        ds_read_b128 v[{52+8*t}:{55+8*t}], v4 offset:16""")
    a("""s_sub_u32 s39, s22, 10
    s_lshl_b32 s39, s39, 7
    v_and_b32 v7, 1, v3
    s_and_b32 s26, s25, 1
    v_xor_b32 v7, s26, v7
    v_lshrrev_b32 v8, 1, v3
    v_lshl_add_u32 v7, v7, 1, v8      ; o
    v_mul_u32_u24 v7, 336, v7""")
    for c in range(2):
        a(f"""s_xor_b32 s27, s24, {c}
        s_lshl_b32 s26, s25, 1
        s_add_u32 s27, s27, s26
        s_lshl_b32 s26, s27, 6
        v_lshl_add_u32 v4, v2, 2, s26
        ds_read_b32 v{80+c}, v4 offset:1024
        s_lshl_b32 s27, s27, 4
        s_add_u32 s27, s27, s39
        v_add_u32 v4, s27, v2             ; col
        v_mul_u32_u24 v5, 3277, v4
        v_lshrrev_b32 v5, 16, v5          ; head
        v_mul_u32_u24 v6, 20, v5
        v_sub_u32 v{84+c}, v4, v6         ; d
        v_and_b32 v6, 1, v5
        v_lshrrev_b32 v5, 1, v5
        s_mov_b32 s26, {64*KVT}
        v_mul_lo_u32 v5, v5, s26
        v_mul_u32_u24 v6, 1344, v6
        v_add3_u32 v5, v5, v6, v7
        v_lshl_add_u32 v5, v{84+c}, 4, v5
        v_add_u32 v{82+c}, {KV_OFF + 2560}, v5""")
    a("""s_lshl_b32 s40, s21, 2
    s_lshl_b32 s26, s24, 1
    s_add_u32 s40, s40, s26
    s_lshr_b32 s41, s25, 1
    s_waitcnt lgkmcnt(0)""")
    for p in range(2):
        a(f"""s_xor_b32 s26, s41, {p}
        s_add_u32 s26, s26, s40
        s_mul_i32 s{42+p}, s26, {KVT}""")
        for c in range(2):
            o = 140 + 4*(2*p + c)
            for tt in range(2):
                t = 2*p + tt
                d = 96 + 4*(2*t + c)
                for r in range(4):
                    a(f"v_fma_f32 v{d+r}, -v{48+8*t+2*r}, v{80+c}, v{d+r}")
                for r in range(4):
                    a(f"v_mul_f32 v{d+r}, v{49+8*t+2*r}, v{d+r}")
                a(f"v_cvt_pk_bf16_f32 v{o+2*tt}, v{d}, v{d+1}\n v_cvt_pk_bf16_f32 v{o+2*tt+1}, v{d+2}, v{d+3}")
            a(f"""v_permlane16_swap_b32 v{o}, v{o+2}
            v_permlane16_swap_b32 v{o+1}, v{o+3}
            buffer_store_dwordx4 v[{o}:{o+3}], v{82+c}, s[32:35], s{42+p} offen""")
    for c in range(2):
        a(f"""v_cmp_eq_u32 vcc, 19, v{84+c}
        s_and_saveexec_b64 s[30:31], vcc
        s_cbranch_execz K1_NO1_{c}
        buffer_store_dwordx4 v[44:47], v{82+c}, s[32:35], s42 offen offset:16
        buffer_store_dwordx4 v[44:47], v{82+c}, s[32:35], s43 offen offset:16
        K1_NO1_{c}:
        s_mov_b64 exec, s[30:31]""")
    a("s_endpgm")
    a(f"""K1_SPARE:
    s_waitcnt lgkmcnt(0)""")
    srd(a, 32, 8, WS_SIZE)
    a(f"""s_sub_u32 s22, s2, 240
    s_mul_i32 s22, s22, 1536
    s_add_u32 s22, s22, {ST_OFF}
    v_lshlrev_b32 v4, 2, v0
    v_mov_b32 v5, 0
    v_cmp_gt_u32 vcc, 384, v0
    s_and_saveexec_b64 s[30:31], vcc
    s_cbranch_execz K1_END
    buffer_store_dword v5, v4, s[32:35], s22 offen
    K1_END:
    s_endpgm""")
    return dict(vgpr=160, lds=163840, grid=256, block=512)

def k2(a):
    S0 = 112
    def S(i): return S0 + 16*i
    O = 96
    a(f"""s_load_dwordx2 s[8:9], s[0:1], 80
    s_cmp_ge_u32 s2, 256
    s_cbranch_scc1 K2_END
    v_and_b32 v1, 63, v0
    v_lshrrev_b32 v4, 6, v0
    v_and_b32 v2, 31, v0
    v_readfirstlane_b32 s20, v4
    v_lshrrev_b32 v3, 5, v1           ; hi
    s_and_b32 s21, s2, 7
    s_lshr_b32 s22, s2, 3
    s_lshl_b32 s21, s21, 1
    s_lshr_b32 s23, s22, 4
    s_add_u32 s21, s21, s23           ; rb
    s_and_b32 s22, s22, 15            ; hp
    s_and_b32 s24, s20, 3             ; qt
    s_lshr_b32 s25, s20, 2            ; hd
    s_lshl_b32 s26, s21, 2
    s_sub_u32 s27, s26, 8
    s_mul_i32 s27, s27, {KVT}
    s_lshl_b32 s28, s20, 10
    s_add_u32 s27, s27, s28
    v_lshl_add_u32 v10, v1, 4, s27
    s_mul_i32 s29, s22, {64*KVT}
    s_add_u32 s29, s29, {KV_OFF}
    ; Q address
    s_mul_i32 s30, s22, {64*QT}
    s_add_u32 s26, s26, s24
    s_mul_i32 s31, s26, {QT}
    s_add_u32 s30, s30, s31
    s_mul_i32 s31, s25, 1536
    v_lshlrev_b32 v4, 4, v2
    v_lshl_add_u32 v5, v3, 9, v4
    v_add_u32 v5, s31, v5
    s_lshl_b32 s31, s25, 3
    v_add_u32 v6, s31, v4
    s_waitcnt lgkmcnt(0)
    s_add_u32 s10, s8, s29
    s_addc_u32 s11, s9, 0""")
    srd(a, 12, 10, 64*KVT)
    srd(a, 32, 8, WS_SIZE)
    a("""buffer_load_dwordx4 v[16:19], v5, s[32:35], s30 offen
    buffer_load_dwordx2 v[20:21], v6, s[32:35], s30 offen offset:1024""")
    for i in range(8):
        a(f"""s_add_u32 m0, s28, {8192*i}
        s_nop 0
        buffer_load_dwordx4 v10, s[12:15], 0 offen lds
        v_add_u32 v10, 8192, v10""")
    a(f"""v_and_b32 v4, 0x13, v2
    v_and_b32 v5, 4, v2
    v_lshl_or_b32 v4, v5, 1, v4
    v_and_b32 v5, 8, v2
    v_lshrrev_b32 v5, 1, v5
    v_or_b32 v4, v4, v5               ; kappa
    s_mul_i32 s26, s24, {KVT}
    s_mul_i32 s31, s25, 1536
    s_add_u32 s31, s31, s26
    v_lshlrev_b32 v5, 4, v4
    v_lshl_add_u32 v11, v3, 9, v5
    v_add_u32 v11, s31, v11
    s_lshl_b32 s31, s25, 3
    s_add_u32 s31, s31, s26
    s_add_u32 s31, s31, 1024
    v_add_u32 v12, s31, v5
    s_lshl_b32 s31, s25, 2
    v_add_u32 v5, s31, v4
    s_lshl_b32 s31, s25, 4
    v_subrev_u32 v6, s31, v4
    v_cmp_gt_u32 vcc, 16, v4
    v_cndmask_b32 v5, v6, v5, vcc
    v_cmp_gt_u32 vcc, 20, v4
    v_cndmask_b32 v5, 20, v5, vcc
    v_mul_u32_u24 v6, 336, v3
    v_lshl_add_u32 v5, v5, 4, v6
    s_mul_i32 s31, s25, 1344
    s_add_u32 s31, s31, s26
    s_add_u32 s31, s31, 2560
    v_add_u32 v13, s31, v5
    v_lshlrev_b32 v4, 3, v3
    v_sub_u32 v4, v2, v4              ; u = q - 8hi
    v_mov_b32 v5, 0xffff
    v_mov_b32 v6, 0xffff0000""")
    for r in range(16):
        a(f"v_cmp_gt_i32 s[{40+2*r}:{41+2*r}], {(r&7) + 16*(r>>3)}, v4")
    MK = 88
    for i in range(8):
        a(f"""v_cndmask_b32 v7, 0, v5, s[{40+4*i}:{41+4*i}]
        v_cndmask_b32 v8, 0, v6, s[{42+4*i}:{43+4*i}]
        v_or_b32 v{MK+i}, v7, v8""")
    a(f"""s_lshl_b32 s26, s21, 2
    s_add_u32 s26, s26, s24
    s_mul_i32 s26, s26, {80*512}
    s_mul_i32 s27, s22, 2560
    s_add_u32 s36, s26, s27
    s_add_u32 s36, s36, {O_OFF}
    s_mul_i32 s31, s25, 1536
    v_lshlrev_b32 v4, 4, v2
    v_lshl_add_u32 v14, v3, 9, v4
    v_add_u32 v14, s31, v14
    s_lshl_b32 s31, s25, 3
    v_add_u32 v15, s31, v4
    s_lshl_b32 s26, s21, 2
    s_add_u32 s26, s26, s24
    s_sub_i32 s37, 8, s26             ; n_invalid
    v_cmp_eq_u32 vcc, 0, v3
    s_waitcnt vmcnt(8)
    v_cndmask_b32 v20, 0, v20, vcc
    v_cndmask_b32 v21, 0, v21, vcc
    s_waitcnt vmcnt(0)
    s_barrier""")
    KF = 24
    order = [0, 8, 1, 2, 3, 4, 5, 6, 7]
    def kread(n):
        i = order[n]
        a(f"""ds_read_b128 v[{KF+6*n}:{KF+6*n+3}], v11 offset:{KVT*i}
        ds_read_b64 v[{KF+6*n+4}:{KF+6*n+5}], v12 offset:{KVT*i}""")
    for n in range(7): kread(n)
    def r16(x): return f"v[{x}:{x+15}]"
    for n in range(9):
        i = order[n]
        if n + 7 < 9: kread(n + 7)
        out = 2 * (min(n + 7, 8) - n)
        a(f"""s_waitcnt lgkmcnt({out})
        v_mfma_f32_32x32x16_bf16 {r16(S(i))}, v[{KF+6*n}:{KF+6*n+3}], v[16:19], 0
        v_mfma_f32_32x32x8_bf16 {r16(S(i))}, v[{KF+6*n+4}:{KF+6*n+5}], v[20:21], {r16(S(i))}""")
    vorder = [1, 2, 3, 4, 5, 6, 7, 0, 8]
    def VF(n): return 24 + 8*(n % 8)
    def vread(n):
        i = vorder[n]
        a(f"""ds_read_b128 v[{VF(n)}:{VF(n)+3}], v13 offset:{KVT*i}
        ds_read_b128 v[{VF(n)+4}:{VF(n)+7}], v13 offset:{KVT*i+672}""")
    for n in range(5): vread(n)
    a("""s_cmp_gt_i32 s37, 0
    s_cbranch_scc0 K2_VALID
    s_nop 7
    s_nop 7""")
    for i in range(8):
        if i: a(f"s_cmp_gt_i32 s37, {i}\n s_cbranch_scc0 K2_VALID")
        for r in range(16): a(f"v_mov_b32 v{S(i)+r}, 0xff800000")
    a("K2_VALID:")
    for r in range(16):
        a(f"v_cndmask_b32 v{S(0)+r}, v{S(8)+r}, v{S(0)+r}, s[{40+2*r}:{41+2*r}]")
    a(f"v_max_f32 v4, v{S(0)}, v{S(0)+1}\n v_max_f32 v5, v{S(0)+2}, v{S(0)+3}")
    for k in range(2, 64):
        x = 4 + (k & 1)
        a(f"v_max3_f32 v{x}, v{S0+2*k}, v{S0+2*k+1}, v{x}")
    a("""v_max_f32 v4, v4, v5
    v_mov_b32 v5, v4
    v_permlane32_swap_b32 v4, v5
    v_max_f32 v4, v4, v5
    v_mov_b32 v5, v4""")
    for n in range(5, 8): vread(n)
    def softmax_tile(i):
        s = S(i)
        for k in range(8):
            a(f"v_pk_add_f32 v[{s+2*k}:{s+2*k+1}], v[{s+2*k}:{s+2*k+1}], v[4:5] neg_lo:[0,1] neg_hi:[0,1]")
        for r in range(16): a(f"v_exp_f32 v{s+r}, v{s+r}")
        for k in range(8): a(f"v_cvt_pk_bf16_f32 v{s+k}, v{s+2*k}, v{s+2*k+1}")
    def pv(n, p, first=False):
        c = "0" if first else r16(O)
        a(f"""v_mfma_f32_32x32x16_bf16 {r16(O)}, v[{VF(n)}:{VF(n)+3}], v[{p}:{p+3}], {c}
        v_mfma_f32_32x32x16_bf16 {r16(O)}, v[{VF(n)+4}:{VF(n)+7}], v[{p+4}:{p+7}], {r16(O)}""")
    for n in range(7):
        softmax_tile(vorder[n])
        if n == 0: a("s_waitcnt lgkmcnt(0)")
        pv(n, S(vorder[n]), n == 0)
        if n == 1: vread(8)
    softmax_tile(0)
    s = S(0)
    for k in range(8):
        a(f"v_and_b32 v{s+8+k}, v{MK+k}, v{s+k}")
    for k in range(8):
        a(f"v_xor_b32 v{s+k}, v{s+8+k}, v{s+k}")
    a("s_waitcnt lgkmcnt(0)")
    pv(7, s + 8)
    pv(8, s)
    a(f"v_rcp_f32 v4, v{O+12}")
    for r in range(12): a(f"v_mul_f32 v{O+r}, v4, v{O+r}")
    for k in range(6): a(f"v_cvt_pk_bf16_f32 v{24+k}, v{O+2*k}, v{O+2*k+1}")
    a("""buffer_store_dwordx4 v[24:27], v14, s[32:35], s36 offen
    v_cmp_eq_u32 vcc, 0, v3
    s_and_saveexec_b64 s[30:31], vcc
    buffer_store_dwordx2 v[28:29], v15, s[32:35], s36 offen offset:1024
    K2_END:
    s_endpgm""")
    return dict(vgpr=256, lds=65536, grid=256, block=512)

def k3(a):
    a(f"""s_load_dwordx2 s[4:5], s[0:1], 0
    s_load_dwordx2 s[6:7], s[0:1], 16
    s_load_dwordx2 s[10:11], s[0:1], 32
    s_load_dwordx2 s[8:9], s[0:1], 80
    s_cmp_ge_u32 s2, 256
    s_cbranch_scc1 K3_END
    v_and_b32 v1, 63, v0
    v_lshrrev_b32 v4, 6, v0
    v_and_b32 v2, 15, v0
    v_readfirstlane_b32 s20, v4
    v_lshrrev_b32 v3, 4, v1
    s_and_b32 s21, s2, 7
    s_lshr_b32 s22, s2, 3
    s_lshl_b32 s21, s21, 2
    s_lshr_b32 s23, s22, 3
    s_add_u32 s21, s21, s23           ; rb2
    s_and_b32 s22, s22, 7             ; cs
    s_and_b32 s24, s20, 3             ; rt
    s_lshr_b32 s25, s20, 2            ; kh
    s_mul_i32 s26, s22, 160""")
    for i in range(5):
        a(f"""v_add_u32 v4, {64*i}, v1
        v_mul_u32_u24 v5, 6554, v4
        v_lshrrev_b32 v5, 16, v5
        v_mul_u32_u24 v6, 10, v5
        v_sub_u32 v4, v4, v6
        v_and_b32 v6, 0x13, v5
        v_and_b32 v7, 4, v5
        v_lshl_or_b32 v6, v7, 1, v6
        v_and_b32 v7, 8, v5
        v_lshrrev_b32 v7, 1, v7
        v_or_b32 v6, v6, v7
        v_mul_u32_u24 v6, 1280, v6
        v_lshl_add_u32 v4, v4, 4, v6
        v_add_u32 v{10+i}, s26, v4""")
    a(f"""s_lshl_b32 s27, s21, 1
    s_lshr_b32 s28, s24, 1
    s_add_u32 s27, s27, s28
    s_mul_i32 s27, s27, {80*512}
    s_mul_i32 s28, s25, {40*512}
    s_add_u32 s27, s27, s28
    s_and_b32 s28, s24, 1
    s_lshl_b32 s28, s28, 8
    s_add_u32 s27, s27, s28
    s_add_u32 s27, s27, {O_OFF}
    v_lshlrev_b32 v4, 4, v2
    v_lshl_add_u32 v15, v3, 9, v4
    s_lshl_b32 s28, s21, 6
    s_lshl_b32 s29, s24, 4
    s_add_u32 s28, s28, s29
    v_add_u32 v9, s28, v2             ; row
    v_mul_u32_u24 v4, 1280, v9
    v_lshl_add_u32 v17, v3, 3, s26
    v_add_u32 v16, v17, v4
    s_waitcnt lgkmcnt(0)""")
    srd(a, 12, 4, 2621440)
    srd(a, 16, 6, 819200)
    srd(a, 36, 10, 1280)
    srd(a, 32, 8, WS_SIZE)
    a("""s_mul_i32 s28, s20, 5120
    s_mul_i32 s29, s20, 40960""")
    def dma_step(j):
        for i in range(5):
            a(f"""s_add_u32 m0, s28, {j*8*5120 + i*1024}
            s_add_u32 s30, s29, {j*8*40960}
            buffer_load_dwordx4 v{10+i}, s[16:19], s30 offen lds""")
    dma_step(0)
    OF = 40
    for ks in range(10):
        a(f"""s_add_u32 s30, s27, {ks*2048}
        buffer_load_dwordx4 v[{OF+4*ks}:{OF+4*ks+3}], v15, s[32:35], s30 offen""")
    dma_step(1)
    a("""s_cmp_ge_u32 s20, 4
    s_cbranch_scc1 K3_NODMA""")
    dma_step(2)
    for t in range(5):
        a(f"buffer_load_dwordx2 v[{20+2*t}:{21+2*t}], v16, s[12:15], 0 offen offset:{32*t}")
        a(f"buffer_load_dwordx2 v[{30+2*t}:{31+2*t}], v17, s[36:39], 0 offen offset:{32*t}")
    a("K3_NODMA:")
    a("""v_bfe_u32 v4, v1, 2, 2
    v_and_b32 v5, 1, v3
    v_lshl_or_b32 v4, v5, 2, v4
    v_lshrrev_b32 v5, 1, v3
    v_lshl_or_b32 v4, v5, 4, v4
    v_mul_u32_u24 v4, 160, v4
    v_and_b32 v5, 3, v1
    v_lshl_add_u32 v4, v5, 3, v4
    s_mul_i32 s30, s25, 51200
    v_add_u32 v18, s30, v4
    s_waitcnt vmcnt(0)
    s_barrier""")
    WF = 80; ACC = 120
    def rd(ks):
        b = ks & 1
        L = []
        for t in range(5):
            for h in range(2):
                r = WF + 20*b + 4*t + 2*h
                L.append(f"ds_read_b64_tr_b16 v[{r}:{r+1}], v18 offset:{ks*5120 + h*1280 + 32*t}")
        return L
    for r in rd(0): a(r)
    for ks in range(10):
        a("s_waitcnt lgkmcnt(0)")
        R = rd(ks + 1) if ks < 9 else []
        for t in range(5):
            for x in R[2*t:2*t+2]: a(x)
            d = ACC + 4*t; w = WF + 20*(ks & 1) + 4*t
            c = "0" if ks == 0 else f"v[{d}:{d+3}]"
            a(f"v_mfma_f32_16x16x32_bf16 v[{d}:{d+3}], v[{w}:{w+3}], v[{OF+4*ks}:{OF+4*ks+3}], {c}")
    a("""s_mul_i32 s30, s24, 5120
    s_add_u32 s30, s30, 102400
    v_lshl_add_u32 v4, v1, 4, s30
    s_cmp_ge_u32 s20, 4
    s_cbranch_scc0 K3_LO""")
    for t in range(5):
        a(f"ds_write_b128 v4, v[{ACC+4*t}:{ACC+4*t+3}] offset:{1024*t}")
    a("""s_waitcnt lgkmcnt(0)
    s_barrier
    s_endpgm
    K3_LO:
    s_barrier""")
    for t in range(5):
        a(f"ds_read_b128 v[{WF+4*t}:{WF+4*t+3}], v4 offset:{1024*t}")
    a("""v_mov_b32 v5, 0
    v_mov_b32 v6, 0
    v_mov_b32 v7, 0
    s_waitcnt lgkmcnt(0)""")
    for t in range(5):
        d = ACC + 4*t
        for r in range(4): a(f"v_add_f32 v{d+r}, v{d+r}, v{WF+4*t+r}")
        for k in range(2):
            x = 20 + 2*t + k; w = 30 + 2*t + k
            lo, hi = d + 2*k, d + 2*k + 1
            a(f"""v_cvt_pk_bf16_f32 v8, v{lo}, v{hi}
            v_lshlrev_b32 v{lo}, 16, v8
            v_and_b32 v{hi}, 0xffff0000, v8
            v_lshlrev_b32 v8, 16, v{x}
            v_and_b32 v{x}, 0xffff0000, v{x}
            v_add_f32 v{lo}, v{lo}, v8
            v_add_f32 v{hi}, v{hi}, v{x}
            v_cvt_pk_bf16_f32 v{x}, v{lo}, v{hi}
            v_lshlrev_b32 v{lo}, 16, v{x}
            v_and_b32 v{hi}, 0xffff0000, v{x}
            v_lshlrev_b32 v8, 16, v{w}
            v_and_b32 v{w}, 0xffff0000, v{w}
            v_add_f32 v5, v5, v{lo}
            v_fmac_f32 v6, v{lo}, v{lo}
            v_fmac_f32 v7, v{lo}, v8
            v_add_f32 v5, v5, v{hi}
            v_fmac_f32 v6, v{hi}, v{hi}
            v_fmac_f32 v7, v{hi}, v{w}""")
        a(f"s_mov_b32 s30, {H_OFF}\n buffer_store_dwordx2 v[{20+2*t}:{21+2*t}], v16, s[32:35], s30 offen offset:{32*t}")
    for x in (5, 6, 7):
        a(f"""v_mov_b32 v{x+5}, v{x}""")
    for x in (5, 6, 7):
        a(f"v_permlane16_swap_b32 v{x}, v{x+5}")
    for x in (5, 6, 7):
        a(f"v_add_f32 v{x}, v{x}, v{x+5}\n v_mov_b32 v{x+5}, v{x}")
    for x in (5, 6, 7):
        a(f"v_permlane32_swap_b32 v{x}, v{x+5}")
    for x in (5, 6, 7):
        a(f"v_add_f32 v{x}, v{x}, v{x+5}")
    a(f"""v_cmp_eq_u32 vcc, 1, v3
    v_cndmask_b32 v5, v5, v6, vcc
    v_cmp_eq_u32 vcc, 2, v3
    v_cndmask_b32 v5, v5, v7, vcc
    v_lshlrev_b32 v4, 13, v3
    v_lshl_add_u32 v4, v9, 2, v4
    s_mov_b32 s30, {ST_OFF}
    v_cmp_gt_u32 vcc, 3, v3
    s_and_saveexec_b64 s[40:41], vcc
    buffer_atomic_add_f32 v5, v4, s[32:35], s30 offen
    K3_END:
    s_endpgm""")
    return dict(vgpr=144, lds=102400 + 20480, grid=256, block=512)

def wave_max_u32(a, v):
    for sh in (1, 2, 4, 8):
        a(f"v_max_u32_dpp v{v}, v{v}, v{v} row_shr:{sh} row_mask:0xf bank_mask:0xf")
    a(f"v_max_u32_dpp v{v}, v{v}, v{v} row_bcast:15 row_mask:0xa bank_mask:0xf")
    a(f"v_max_u32_dpp v{v}, v{v}, v{v} row_bcast:31 row_mask:0xc bank_mask:0xf")

def wave_sum_f32(a, v):
    for sh in (1, 2, 4, 8):
        a(f"v_add_f32_dpp v{v}, v{v}, v{v} row_shr:{sh} row_mask:0xf bank_mask:0xf bound_ctrl:0")
    a(f"v_add_f32_dpp v{v}, v{v}, v{v} row_bcast:15 row_mask:0xa bank_mask:0xf")
    a(f"v_add_f32_dpp v{v}, v{v}, v{v} row_bcast:31 row_mask:0xc bank_mask:0xf")

def norm_pair(a, x, m, rs, t0, t1, t2=None, addh=False):
    a(f"""v_lshlrev_b32 v{t0}, 16, v{x}
    v_and_b32 v{t1}, 0xffff0000, v{x}""")
    if addh:
        a(f"""v_subrev_f32 v{t2}, {m}, v{t0}
        v_subrev_f32 v{x}, {m}, v{t1}
        v_cvt_pk_bf16_f32 v{x}, v{t2}, v{x}
        v_lshlrev_b32 v{t2}, 16, v{x}
        v_and_b32 v{x}, 0xffff0000, v{x}
        v_mul_f32 v{t2}, {rs}, v{t2}
        v_mul_f32 v{x}, {rs}, v{x}
        v_cvt_pk_bf16_f32 v{x}, v{t2}, v{x}
        v_lshlrev_b32 v{t2}, 16, v{x}
        v_and_b32 v{x}, 0xffff0000, v{x}
        v_add_f32 v{t0}, v{t0}, v{t2}
        v_add_f32 v{t1}, v{t1}, v{x}
        v_cvt_pk_bf16_f32 v{x}, v{t0}, v{t1}""")
    else:
        a(f"""v_subrev_f32 v{t0}, {m}, v{t0}
        v_subrev_f32 v{t1}, {m}, v{t1}
        v_cvt_pk_bf16_f32 v{x}, v{t0}, v{t1}
        v_lshlrev_b32 v{t0}, 16, v{x}
        v_and_b32 v{t1}, 0xffff0000, v{x}
        v_mul_f32 v{t0}, {rs}, v{t0}
        v_mul_f32 v{t1}, {rs}, v{t1}
        v_cvt_pk_bf16_f32 v{x}, v{t0}, v{t1}""")

def k4(a):
    SURV = 20480; WMAX = 28672; CNT = 28704; SELL = 28736; TM = 28800; XS = 53376; XST = 1296
    a(f"""s_load_dwordx2 s[4:5], s[0:1], 32
    s_load_dwordx4 s[44:47], s[0:1], 40
    s_load_dwordx2 s[6:7], s[0:1], 64
    s_load_dwordx2 s[8:9], s[0:1], 80
    s_cmp_ge_u32 s2, 256
    s_cbranch_scc1 K4_END
    v_and_b32 v1, 63, v0
    v_lshrrev_b32 v4, 6, v0
    v_and_b32 v2, 15, v0
    v_readfirstlane_b32 s20, v4
    v_lshrrev_b32 v3, 4, v1
    s_and_b32 s21, s2, 7
    s_lshr_b32 s22, s2, 3
    s_mul_i32 s23, s21, 27
    s_add_u32 s23, s23, s22
    v_mov_b32 v8, 0
    v_mov_b32 v9, 0
    v_mov_b32 v10, 0
    v_mov_b32 v11, 0
    v_lshlrev_b32 v12, 4, v0
    ds_write_b128 v12, v[8:11] offset:{SURV}
    v_mov_b32 v13, {CNT}
    ds_write_b32 v13, v8
    s_waitcnt lgkmcnt(0)""")
    srd(a, 12, 4, 1280)
    srd(a, 16, 6, 2621440)
    srd(a, 32, 8, WS_SIZE)
    srd(a, 36, 44, 2211840)
    srd(a, 40, 46, 2211840)
    a(f"""s_mov_b32 s30, {ST_OFF}
    buffer_load_dwordx4 v[16:19], v12, s[32:35], s30 offen
    s_mov_b32 s30, {ST_OFF + 8192}
    buffer_load_dwordx4 v[20:23], v12, s[32:35], s30 offen
    s_mov_b32 s30, {ST_OFF + 16384}
    buffer_load_dwordx4 v[24:27], v12, s[32:35], s30 offen
    v_lshlrev_b32 v14, 2, v1""")
    for i in range(5):
        a(f"buffer_load_dword v{28+i}, v14, s[12:15], 0 offen offset:{256*i}")
    a(f"""s_lshl_b32 s24, s21, 8
    s_lshl_b32 s25, s22, 3
    s_add_u32 s24, s24, s25
    s_add_u32 s24, s24, s20           ; row
    s_mul_i32 s25, s24, 1280
    s_add_u32 s26, s25, {H_OFF}""")
    for i in range(5):
        a(f"buffer_load_dword v{33+i}, v14, s[32:35], s26 offen offset:{256*i}")
    a(f"""s_cmp_ge_u32 s22, 27
    s_cbranch_scc1 K4_NOW
    v_lshrrev_b32 v5, 1, v1
    v_and_b32 v6, 0x13, v5
    v_and_b32 v7, 4, v5
    v_lshl_or_b32 v6, v7, 1, v6
    v_and_b32 v7, 8, v5
    v_lshrrev_b32 v7, 1, v7
    v_or_b32 v6, v6, v7
    v_mul_u32_u24 v6, 3456, v6
    s_lshl_b32 s27, s23, 4
    v_add_u32 v6, s27, v6
    s_lshl_b32 s28, s20, 10
    s_mul_i32 s29, s20, {32*3456}
    s_mov_b32 s48, 0x55555555
    s_mov_b32 s49, 0x55555555""")
    for j in range(3):
        if j == 2: a("s_cmp_ge_u32 s20, 4\n s_cbranch_scc1 K4_NOW")
        a(f"""s_add_u32 m0, s28, {8192*j}
        s_add_u32 s30, s29, {8*32*3456*j}
        s_mov_b64 exec, s[48:49]
        buffer_load_dwordx4 v6, s[36:39], s30 offen lds
        s_not_b64 exec, s[48:49]
        buffer_load_dwordx4 v6, s[40:43], s30 offen lds
        s_mov_b64 exec, -1""")
    a("K4_NOW:")
    a("s_waitcnt vmcnt(0)")
    a("v_mov_b32 v4, 0")
    for i in range(5):
        a(f"""v_lshlrev_b32 v5, 16, v{28+i}
        v_and_b32 v6, 0xffff0000, v{28+i}
        v_add_f32 v4, v4, v5
        v_add_f32 v4, v4, v6""")
    wave_sum_f32(a, 4)
    a("v_readlane_b32 s50, v4, 63")
    for i in range(4):
        ln_scalars(a, 16 + i, 20 + i, 4)
        a(f"""v_fma_f32 v{24+i}, -v{16+i}, s50, v{24+i}
        v_mul_f32 v{24+i}, v{24+i}, v{20+i}
        v_ashrrev_i32 v4, 31, v{24+i}
        v_or_b32 v4, 0x80000000, v4
        v_xor_b32 v4, v4, v{24+i}
        v_and_b32 v4, 0xfffff800, v4
        v_lshlrev_b32 v5, 2, v0
        v_sub_u32 v5, {2047 - i}, v5
        v_or_b32 v{40+i}, v4, v5""")
    a(f"""ds_write_b128 v12, v[16:19] offset:{TM}
    ds_write_b128 v12, v[20:23] offset:{TM+8192}
    ds_write_b128 v12, v[24:27] offset:{TM+16384}
    v_max_u32 v4, v40, v41
    v_max3_u32 v4, v4, v42, v43""")
    wave_max_u32(a, 4)
    a(f"""s_lshl_b32 s30, s20, 2
    s_add_u32 s30, s30, {WMAX}
    v_mov_b32 v5, s30
    v_cmp_eq_u32 vcc, 63, v1
    s_and_saveexec_b64 s[52:53], vcc
    ds_write_b32 v5, v4
    s_mov_b64 exec, -1
    s_waitcnt lgkmcnt(0)
    s_barrier
    v_mov_b32 v5, {WMAX}
    ds_read_b128 v[44:47], v5
    ds_read_b128 v[48:51], v5 offset:16
    s_lshl_b32 s30, s24, 2
    v_mov_b32 v5, s30
    ds_read_b32 v52, v5 offset:{TM}
    ds_read_b32 v53, v5 offset:{TM+8192}
    v_mov_b32 v6, 1
    s_waitcnt lgkmcnt(2)
    v_min3_u32 v44, v44, v45, v46
    v_min3_u32 v48, v48, v49, v50
    v_min3_u32 v44, v44, v47, v51
    v_min_u32 v44, v44, v48""")
    for i in range(4):
        a(f"""v_cmp_ge_u32 s[{54+2*i}:{55+2*i}], v{40+i}, v44
        s_mov_b64 exec, s[{54+2*i}:{55+2*i}]
        ds_add_rtn_u32 v{45+i}, v13, v6
        s_mov_b64 exec, -1""")
    a("s_waitcnt lgkmcnt(0)")
    for i in range(4):
        a(f"""v_lshlrev_b32 v{45+i}, 2, v{45+i}
        s_mov_b64 exec, s[{54+2*i}:{55+2*i}]
        ds_write_b32 v{45+i}, v{40+i} offset:{SURV}
        s_mov_b64 exec, -1""")
    a("s_waitcnt lgkmcnt(0)\n s_barrier")
    a(f"""ds_read_b32 v4, v13
    v_lshlrev_b32 v5, 2, v0
    s_waitcnt lgkmcnt(0)
    v_readfirstlane_b32 s51, v4       ; n
    s_lshl_b32 s62, s20, 6
    K4_OUTER:
    s_cmp_ge_u32 s62, s51
    s_cbranch_scc1 K4_RDONE
    ds_read_b32 v6, v5 offset:{SURV}
    v_mov_b32 v7, 0
    v_mov_b32 v8, {SURV}
    s_mov_b32 s63, 0
    K4_INNER:
    ds_read_b128 v[44:47], v8
    ds_read_b128 v[48:51], v8 offset:16
    v_add_u32 v8, 32, v8
    s_add_u32 s63, s63, 8
    s_waitcnt lgkmcnt(0)""")
    for i in range(8):
        a(f"v_cmp_gt_u32 vcc, v{44+i}, v6\n v_addc_co_u32 v7, vcc, 0, v7, vcc")
    a(f"""s_cmp_lt_u32 s63, s51
    s_cbranch_scc1 K4_INNER
    v_cmp_gt_u32 vcc, 8, v7
    v_and_b32 v6, 0x7ff, v6
    v_sub_u32 v6, 2047, v6
    v_lshlrev_b32 v7, 2, v7
    s_and_saveexec_b64 s[52:53], vcc
    ds_write_b32 v7, v6 offset:{SELL}
    s_mov_b64 exec, -1
    v_add_u32 v5, 2048, v5
    s_add_u32 s62, s62, 512
    s_branch K4_OUTER
    K4_RDONE:""")
    for i in range(5):
        norm_pair(a, 33 + i, "v52", "v53", 4, 5, 6, addh=True)
        a(f"buffer_store_dword v{33+i}, v14, s[16:19], s25 offen offset:{256*i}")
    a(f"""s_waitcnt lgkmcnt(0)
    s_barrier
    s_cmp_ge_u32 s22, 27
    s_cbranch_scc1 K4_END
    s_lshl_b32 s30, s20, 2
    v_mov_b32 v5, s30
    ds_read_b32 v4, v5 offset:{SELL}
    s_waitcnt lgkmcnt(0)
    v_readfirstlane_b32 s24, v4
    v_lshlrev_b32 v5, 2, v4
    ds_read_b32 v52, v5 offset:{TM}
    ds_read_b32 v53, v5 offset:{TM+8192}
    ds_read_b32 v54, v5 offset:{TM+16384}
    s_mul_i32 s25, s24, 1280
    s_add_u32 s26, s25, {H_OFF}""")
    for i in range(5):
        a(f"buffer_load_dword v{33+i}, v14, s[32:35], s26 offen offset:{256*i}")
    WF = 64
    a("""s_cmp_lg_u32 s20, 0
    s_cbranch_scc1 K4_NOWF
    v_bfe_u32 v6, v1, 2, 2
    v_and_b32 v7, 1, v3
    v_lshl_or_b32 v6, v7, 2, v6
    v_lshrrev_b32 v7, 1, v3
    v_lshl_or_b32 v6, v7, 4, v6
    v_lshlrev_b32 v6, 5, v6
    v_and_b32 v7, 3, v1
    v_lshl_add_u32 v6, v7, 3, v6""")
    for ks in range(20):
        for h in range(2):
            r = WF + 4*ks + 2*h
            a(f"ds_read_b64_tr_b16 v[{r}:{r+1}], v6 offset:{ks*1024 + h*256}")
    a("K4_NOWF:")
    a(f"""s_waitcnt lgkmcnt(0)
    s_cmp_lg_u32 s2, 0
    s_cbranch_scc1 K4_NOSEL""")
    rb16(a, 54)
    a(f"""v_mul_f32 v54, 0xbfb8aa3b, v54
    v_exp_f32 v54, v54
    v_add_f32 v54, 1.0, v54
    v_rcp_f32 v54, v54""")
    rb16(a, 54)
    a(f"""v_mov_b32 v56, v4
    v_mov_b32 v57, v52
    v_mov_b32 v58, v53
    v_mov_b32 v59, v54
    s_lshl_b32 s30, s20, 4
    s_add_u32 s30, s30, {SEL_OFF}
    v_mov_b32 v5, 0
    v_cmp_eq_u32 vcc, 0, v1
    s_and_saveexec_b64 s[52:53], vcc
    buffer_store_dwordx4 v[56:59], v5, s[32:35], s30 offen
    s_mov_b64 exec, -1
    K4_NOSEL:
    s_mul_i32 s30, s20, {XST}
    v_add_u32 v7, s30, v14
    s_waitcnt vmcnt(0)""")
    for i in range(5):
        norm_pair(a, 33 + i, "v52", "v53", 4, 5)
        a(f"ds_write_b32 v7, v{33+i} offset:{XS + 256*i}")
    a(f"""s_waitcnt lgkmcnt(0)
    s_barrier
    s_cmp_lg_u32 s20, 0
    s_cbranch_scc1 K4_END
    v_and_b32 v4, 7, v2
    v_mul_u32_u24 v4, {XST}, v4
    v_lshl_add_u32 v4, v3, 4, v4""")
    XF = 144
    for ks in range(20):
        a(f"ds_read_b128 v[{XF+4*ks}:{XF+4*ks+3}], v4 offset:{XS + 64*ks}")
    for ks in range(20):
        c = "0" if ks == 0 else "v[16:19]"
        a(f"s_waitcnt lgkmcnt({min(15, 19-ks)})")
        a(f"v_mfma_f32_16x16x32_bf16 v[16:19], v[{WF+4*ks}:{WF+4*ks+3}], v[{XF+4*ks}:{XF+4*ks+3}], {c}")
    for r in range(4):
        rb16(a, 16 + r)
        a(f"v_mov_b32 v{20+r}, v{16+r}")
    for r in range(4):
        a(f"v_permlane32_swap_b32 v{16+r}, v{20+r}")
    for r in range(4):
        a(f"""v_mul_f32 v24, 0xbfb8aa3b, v{16+r}
        v_exp_f32 v24, v24
        v_add_f32 v24, 1.0, v24
        v_rcp_f32 v24, v24
        v_mul_f32 v{16+r}, v{16+r}, v24""")
        rb16(a, 16 + r)
        a(f"v_mul_f32 v{16+r}, v{16+r}, v{20+r}")
    a(f"""v_cvt_pk_bf16_f32 v16, v16, v17
    v_cvt_pk_bf16_f32 v17, v18, v19
    v_lshlrev_b32 v4, 4, v2
    v_lshl_add_u32 v4, v3, 3, v4
    s_lshl_b32 s30, s23, 7
    s_add_u32 s30, s30, {ACT_OFF}
    s_mov_b32 exec_lo, 0x00ff00ff
    s_mov_b32 exec_hi, 0
    buffer_store_dwordx2 v[16:17], v4, s[32:35], s30 offen
    K4_END:
    s_endpgm""")
    return dict(vgpr=224, lds=65536, grid=256, block=512)

def k5(a):
    a(f"""s_load_dwordx4 s[4:7], s[0:1], 56
    s_load_dwordx2 s[8:9], s[0:1], 80
    s_cmp_ge_u32 s2, 40
    s_cbranch_scc1 K5_END
    v_and_b32 v1, 63, v0
    v_lshrrev_b32 v4, 6, v0
    v_and_b32 v2, 15, v0
    v_readfirstlane_b32 s20, v4
    v_lshrrev_b32 v3, 4, v1
    s_and_b32 s21, s2, 7
    s_lshr_b32 s22, s2, 3
    s_mul_i32 s23, s21, 5
    s_add_u32 s23, s23, s22
    v_lshrrev_b32 v5, 1, v1
    v_and_b32 v6, 0x13, v5
    v_and_b32 v7, 4, v5
    v_lshl_or_b32 v6, v7, 1, v6
    v_and_b32 v7, 8, v5
    v_lshrrev_b32 v7, 1, v7
    v_or_b32 v6, v6, v7
    v_mul_u32_u24 v6, 1280, v6
    v_and_b32 v7, 1, v1
    v_lshl_add_u32 v6, v7, 4, v6
    s_lshl_b32 s27, s23, 5
    v_add_u32 v10, s27, v6
    v_and_b32 v4, 7, v2
    v_lshlrev_b32 v12, 4, v4
    v_lshl_add_u32 v11, v3, 7, v12
    s_lshl_b32 s28, s20, 10
    s_mul_i32 s29, s20, {32*1280}
    s_lshl_b32 s31, s20, 9
    s_add_u32 s31, s31, {ACT_OFF}
    s_waitcnt lgkmcnt(0)""")
    srd(a, 12, 4, 2211840)
    srd(a, 16, 6, 2621440)
    srd(a, 32, 8, ACT_OFF + 27648)
    srd(a, 36, 8, WS_SIZE)
    a(f"""s_mov_b32 s30, {SEL_OFF}
    buffer_load_dwordx4 v[16:19], v12, s[36:39], s30 offen""")
    AF = 32; WF = 64
    for j in range(7):
        a(f"""s_add_u32 m0, s28, {8192*j}
        s_add_u32 s30, s29, {8*32*1280*j}
        buffer_load_dwordx4 v10, s[12:15], s30 offen lds
        s_add_u32 s30, s31, {4096*j}
        buffer_load_dwordx4 v[{AF+4*j}:{AF+4*j+3}], v11, s[32:35], s30 offen""")
    a(f"""v_bfe_u32 v6, v1, 2, 2
    v_and_b32 v7, 1, v3
    v_lshl_or_b32 v6, v7, 2, v6
    v_lshrrev_b32 v7, 1, v3
    v_lshl_or_b32 v6, v7, 4, v6
    v_lshlrev_b32 v6, 5, v6
    v_and_b32 v7, 3, v1
    v_lshl_add_u32 v6, v7, 3, v6
    v_add_u32 v6, s28, v6
    s_waitcnt vmcnt(14)
    v_mul_u32_u24 v13, 1280, v16
    v_lshl_add_u32 v13, v3, 3, v13
    v_add_u32 v13, s27, v13
    s_mov_b32 s30, {H_OFF}
    buffer_load_dwordx2 v[20:21], v13, s[36:39], s30 offen
    s_waitcnt vmcnt(1)""")
    for j in range(7):
        for h in range(2):
            r = WF + 4*j + 2*h
            a(f"ds_read_b64_tr_b16 v[{r}:{r+1}], v6 offset:{8192*j + h*256}")
    for j in range(7):
        c = "0" if j == 0 else "v[24:27]"
        a(f"s_waitcnt lgkmcnt({12-2*j})")
        a(f"v_mfma_f32_16x16x32_bf16 v[24:27], v[{WF+4*j}:{WF+4*j+3}], v[{AF+4*j}:{AF+4*j+3}], {c}")
    a(f"""v_lshl_add_u32 v4, v1, 4, s28
    ds_write_b128 v4, v[24:27] offset:57344
    s_waitcnt lgkmcnt(0)
    s_barrier
    s_cmp_lg_u32 s20, 0
    s_cbranch_scc1 K5_END""")
    for w in range(1, 8):
        a(f"ds_read_b128 v[{28+4*w}:{31+4*w}], v4 offset:{57344 + 1024*w}")
    a("s_waitcnt vmcnt(0) lgkmcnt(0)")
    for w in range(1, 8):
        for r in range(4): a(f"v_add_f32 v{24+r}, v{24+r}, v{28+4*w+r}")
    for r in range(4):
        rb16(a, 24 + r)
        a(f"v_mul_f32 v{24+r}, v{24+r}, v19")
        rb16(a, 24 + r)
    for k in range(2):
        x = 20 + k
        a(f"v_mov_b32 v{30+k}, v{x}")
        norm_pair(a, 30 + k, "v17", "v18", 4, 5)
        a(f"""v_lshlrev_b32 v4, 16, v{30+k}
        v_and_b32 v5, 0xffff0000, v{30+k}
        v_add_f32 v4, v4, v{24+2*k}
        v_add_f32 v5, v5, v{25+2*k}
        v_cvt_pk_bf16_f32 v6, v4, v5
        v_lshlrev_b32 v4, 16, v6
        v_and_b32 v5, 0xffff0000, v6
        v_lshlrev_b32 v6, 16, v{x}
        v_and_b32 v7, 0xffff0000, v{x}
        v_add_f32 v4, v4, v6
        v_add_f32 v5, v5, v7
        v_cvt_pk_bf16_f32 v{x}, v4, v5""")
    a("""s_mov_b32 exec_lo, 0x00ff00ff
    s_mov_b32 exec_hi, 0x00ff00ff
    buffer_store_dwordx2 v[20:21], v13, s[16:19], 0 offen
    K5_END:
    s_endpgm""")
    return dict(vgpr=96, lds=65536, grid=40, block=512)

def build(kernels):
    head = []
    body = ['.amdgcn_target "amdgcn-amd-amdhsa--gfx950"', ".text"]
    desc = ['.section .rodata,"a"']
    for name, fn in kernels:
        a = Asm()
        info = fn(a)
        head.append(f"; @launch kernel={name} grid=({info['grid']},1,1) block=({info['block']},1,1) lds={info['lds']}")
        body += [f".globl {name}", ".p2align 8", f".type {name},@function", f"{name}:", a.render()]
        vg = info["vgpr"]
        desc += [".p2align 6", f".amdhsa_kernel {name}", f"  .amdhsa_next_free_vgpr {vg}", "  .amdhsa_next_free_sgpr 96",
                 f"  .amdhsa_accum_offset {(vg+3)//4*4}", "  .amdhsa_group_segment_fixed_size 0", "  .amdhsa_kernarg_size 88",
                 "  .amdhsa_user_sgpr_count 2", "  .amdhsa_user_sgpr_kernarg_segment_ptr 1",
                 "  .amdhsa_system_sgpr_workgroup_id_x 1", ".end_amdhsa_kernel"]
    return "\n".join(head + body + desc) + "\n"

if __name__ == "__main__":
    out = sys.argv[1] if len(sys.argv) > 1 else f"cdna_kernels/{NAME}.s"
    txt = build([("k1_kernel", k1), ("k2_kernel", k2), ("k3_kernel", k3), ("k4_kernel", k4), ("k5_kernel", k5)])
    open(out, "w").write(txt)
    print("wrote", out, len(txt))
```

```python
import sys, struct
from asmlib import Asm

NAME = "sequential_preLN__sliding_block__moe_arch_mod__prompt"
K_OFF = 0; V_OFF = 0x280000; O_OFF = 0x500000; H_OFF = 0x780000
PART_OFF = 0xA00000; F1_OFF = 0xA40000; F2_OFF = 0xA48000; KEY_OFF = 0xA50000; ACT_OFF = 0xA52000
RP_OFF = 0xA60000
WS_SIZE = 0xA60000 + 27*8*20480
PROF_OFF = 0xF00000
T32 = 2560
PROF = False
TIMER = "s_memrealtime"
SPIN_MAX = 1 << 20

def f2u(x): return struct.unpack("<I", struct.pack("<f", x))[0]
QSCALE = f2u((20 ** -0.5) * 1.4426950408889634)
EPS = f2u(1e-5)
INV640 = f2u(1.0 / 640)
P_X, P_WQKV, P_WO, P_WR, P_G, P_U, P_D, P_OUT, P_DBG, P_WS = 64, 66, 68, 72, 74, 76, 78, 80, 82, 84
WSR = "s[16:19]"

class PAsm(Asm):
    def stamp(self, i):
        if PROF:
            assert i < 13
            self(f"{TIMER} s[86:87]\n s_waitcnt lgkmcnt(0)\n s_mov_b32 s{88+i}, s86")

def srd(a, d, lo, size):
    a(f"""s_mov_b32 s{d}, s{lo}
    s_and_b32 s{d+1}, s{lo+1}, 0xffff
    s_mov_b32 s{d+2}, {size}
    s_mov_b32 s{d+3}, 0x00020000""")

def rb16(a, v):
    a(f"v_cvt_pk_bf16_f32 v{v}, v{v}, v{v}\n v_lshlrev_b32 v{v}, 16, v{v}")

def ln_scalars(a, s1, s2):
    a(f"""v_mul_f32 v{s1}, {INV640:#x}, v{s1}
    v_mul_f32 v{s2}, {INV640:#x}, v{s2}
    v_fma_f32 v{s2}, -v{s1}, v{s1}, v{s2}
    v_max_f32 v{s2}, 0, v{s2}""")
    rb16(a, s1); rb16(a, s2)
    a(f"v_add_f32 v{s2}, {EPS:#x}, v{s2}")
    rb16(a, s2)
    a(f"v_sqrt_f32 v{s2}, v{s2}")
    rb16(a, s2)
    a(f"v_rcp_f32 v{s2}, v{s2}")

def dpp_reduce(a, op, regs):
    for sh in (1, 2, 4, 8):
        for v in regs: a(f"{op}_dpp v{v}, v{v}, v{v} row_shr:{sh} row_mask:0xf bank_mask:0xf")
    for v in regs: a(f"{op}_dpp v{v}, v{v}, v{v} row_bcast:15 row_mask:0xa bank_mask:0xf")
    for v in regs: a(f"{op}_dpp v{v}, v{v}, v{v} row_bcast:31 row_mask:0xc bank_mask:0xf")

def xg_sum(a, regs, tmps):
    for x, t in zip(regs, tmps): a(f"v_mov_b32 v{t}, v{x}")
    for x, t in zip(regs, tmps): a(f"v_permlane16_swap_b32 v{x}, v{t}")
    for x, t in zip(regs, tmps): a(f"v_add_f32 v{x}, v{x}, v{t}")
    for x, t in zip(regs, tmps): a(f"v_mov_b32 v{t}, v{x}")
    for x, t in zip(regs, tmps): a(f"v_permlane32_swap_b32 v{x}, v{t}")
    for x, t in zip(regs, tmps): a(f"v_add_f32 v{x}, v{x}, v{t}")

def norm_pair(a, d, x, m, rs, t0, t1):
    a(f"""v_lshlrev_b32 v{t0}, 16, v{x}
    v_and_b32 v{t1}, 0xffff0000, v{x}
    v_subrev_f32 v{t0}, {m}, v{t0}
    v_subrev_f32 v{t1}, {m}, v{t1}
    v_cvt_pk_bf16_f32 v{d}, v{t0}, v{t1}
    v_lshlrev_b32 v{t0}, 16, v{d}
    v_and_b32 v{t1}, 0xffff0000, v{d}
    v_mul_f32 v{t0}, {rs}, v{t0}
    v_mul_f32 v{t1}, {rs}, v{t1}
    v_cvt_pk_bf16_f32 v{d}, v{t0}, v{t1}""")

def add_pairs(a, d, x, y, t0, t1, t2):
    a(f"""v_lshlrev_b32 v{t0}, 16, v{x}
    v_lshlrev_b32 v{t1}, 16, v{y}
    v_add_f32 v{t0}, v{t0}, v{t1}
    v_and_b32 v{t1}, 0xffff0000, v{x}
    v_and_b32 v{t2}, 0xffff0000, v{y}
    v_add_f32 v{t1}, v{t1}, v{t2}
    v_cvt_pk_bf16_f32 v{d}, v{t0}, v{t1}""")

def q4(r): return f"v[{r}:{r+3}]"
def r16(x): return f"v[{x}:{x+15}]"
M40 = ("s_mov_b32 exec_lo, -1\n s_mov_b32 exec_hi, 0xff", "s_mov_b64 exec, -1")

def spin_head(a, L):
    a(f"s_mov_b32 s3, 0\n {L}:\n s_add_u32 s3, s3, 1\n s_cmp_gt_u32 s3, {SPIN_MAX}\n s_cbranch_scc1 L_END")

def spin_tail(a, L):
    a(f"s_cbranch_vccz {L}_OK\n s_sleep {SLEEP}\n s_branch {L}\n {L}_OK:")

def touch(a, n, voff_code, ptr, L, fl=""):
    a(voff_code)
    a(f"""s_and_saveexec_b64 s[6:7], vcc
    s_cbranch_execz {L}
    global_load_dword v{n}, v4, s[{ptr}:{ptr+1}] {fl}
    {L}:
    s_mov_b64 exec, -1""")

def div_lane(a, dst_q, dst_r, src, d):
    magic = (65536 + d - 1) // d
    a(f"""v_mul_u32_u24 v{dst_q}, {magic}, v{src}
    v_lshrrev_b32 v{dst_q}, 16, v{dst_q}
    v_mul_u32_u24 v{dst_r}, {d}, v{dst_q}
    v_sub_u32 v{dst_r}, v{src}, v{dst_r}""")

XST = 102400
SCR = 153600
WQL = 0
CS2 = 51200
QEX = 52224
GUL = 62464
KL = 102400; VL = 133120
WOL = 0
SLEEP = 2
F1STEP = 8

def kernel(a):
    if PROF:
        for i in range(13): a(f"s_mov_b32 s{88+i}, 0")
    a.stamp(0)
    a(f"""s_load_dwordx16 s[64:79], s[0:1], 0
    s_load_dwordx4 s[80:83], s[0:1], 64
    s_load_dwordx2 s[84:85], s[0:1], 80
    s_getpc_b64 s[4:5]
    CODE_START:
    s_cmp_ge_u32 s2, 256
    s_cbranch_scc1 L_EXIT
    s_lshr_b32 s25, s2, 3             ; idx
    s_lshl_b32 s3, s25, 7
    v_lshl_add_u32 v4, v0, 12, s3
    v_cmp_gt_u32 vcc, CODE_END-CODE_START, v4
    s_and_saveexec_b64 s[6:7], vcc
    s_cbranch_execz L_NOPF
    global_load_dword v250, v4, s[4:5]
    L_NOPF:
    s_mov_b64 exec, -1
    v_and_b32 v1, 63, v0
    v_lshrrev_b32 v4, 6, v0
    v_and_b32 v2, 15, v0
    v_readfirstlane_b32 s20, v4
    v_lshrrev_b32 v3, 4, v1
    s_and_b32 s26, s25, 3
    s_lshr_b32 s22, s25, 2           ; s local
    s_mul_i32 s27, s26, 5
    s_lshr_b32 s27, s27, 1
    s_add_u32 s27, s27, s22
    s_bfe_u32 s21, s2, 0x20001       ; xcd>>1
    s_add_u32 s27, s27, s21
    s_cmp_ge_u32 s27, 10
    s_cselect_b32 s28, 10, 0
    s_sub_u32 s27, s27, s28          ; rot
    s_lshl_b32 s21, s21, 2
    s_add_u32 s21, s21, s26          ; rb
    s_and_b32 s26, s2, 1
    s_lshl_b32 s26, s26, 3
    s_add_u32 s22, s22, s26          ; s / hp
    s_and_b32 s23, s2, 7
    s_lshl_b32 s23, s23, 2
    s_lshr_b32 s26, s25, 3
    s_add_u32 s23, s23, s26          ; rb2
    s_and_b32 s24, s25, 7            ; cs
    s_and_b32 s3, s2, 7
    s_min_u32 s4, s3, 5
    s_sub_u32 s25, s23, s4
    s_cmp_eq_u32 s26, 3
    s_cselect_b32 s4, s3, 7
    s_add_u32 s3, s3, 32
    s_cmp_lt_u32 s4, 5
    s_cselect_b32 s25, s3, s25       ; s25 = role
    s_lshl_b32 s28, s27, 7
    s_mul_i32 s29, s27, 245760
    s_mov_b32 s62, s29
    s_lshl_b32 s26, s21, 7
    s_lshl_b32 s3, s20, 4
    s_add_u32 s26, s26, s3
    v_lshrrev_b32 v4, 3, v1
    v_add_u32 v4, s26, v4
    v_mul_u32_u24 v4, 1280, v4
    v_and_b32 v5, 7, v1
    v_xor_b32 v5, v5, v3
    v_lshl_add_u32 v10, v5, 4, v4
    v_xor_b32 v180, 64, v10
    v_add_u32 v180, 10240, v180""")
    div_lane(a, 4, 5, 1, 10)
    a(f"""s_and_b32 s3, s20, 1
    s_lshl_b32 s3, s3, 2
    s_lshr_b32 s26, s20, 1
    s_lshl_b32 s26, s26, 4
    s_add_u32 s3, s3, s26
    s_lshr_b32 s4, s26, 2
    s_add_u32 s4, s4, s3              ; 20(w>>1)+4(w&1)
    v_add_u32 v181, s4, v4
    v_mul_u32_u24 v181, 1280, v181
    s_mul_i32 s4, s3, 5
    s_add_u32 s4, s4, 16              ; 20*((w&1)+4(w>>1)) + 16
    v_add_u32 v183, s4, v4
    v_mul_u32_u24 v183, 1280, v183
    v_add_u32 v4, s3, v4
    v_mul_u32_u24 v4, 3840, v4
    v_lshl_add_u32 v4, v5, 4, v4
    v_lshl_add_u32 v181, v5, 4, v181
    v_lshl_add_u32 v183, v5, 4, v183
    s_mul_i32 s3, s22, 160
    s_add_u32 s3, s3, 1280
    v_add_u32 v11, s3, v4
    s_mul_i32 s3, s24, 160
    v_add_u32 v181, s3, v181
    v_add_u32 v183, s3, v183
    s_mul_i32 s30, s20, 6144
    s_add_u32 s30, s30, {XST}
    s_mul_i32 s31, s20, 1280
    v_mov_b32 v24, -1
    v_mov_b32 v25, -1
    v_mov_b32 v26, -1
    v_mov_b32 v27, -1
    s_lshl_b32 s3, s23, 3
    s_add_u32 s3, s3, s24
    s_lshl_b32 s3, s3, 10
    s_add_u32 s3, s3, {PART_OFF}
    v_lshl_add_u32 v6, v1, 4, s3
    s_lshl_b32 s4, s22, 4
    s_add_u32 s4, s4, s21
    s_lshl_b32 s4, s4, 7
    s_add_u32 s60, s4, {F1_OFF}
    s_lshl_b32 s5, s21, 4
    s_add_u32 s5, s5, s22
    s_lshl_b32 s5, s5, 7
    s_add_u32 s61, s5, {F2_OFF}
    s_lshl_b32 s6, s2, 7
    s_add_u32 s6, s6, {ACT_OFF}
    s_lshl_b32 s7, s2, 5
    s_add_u32 s7, s7, {KEY_OFF}
    v_lshrrev_b32 v7, 3, v1
    v_mov_b32 v8, s60
    v_mov_b32 v9, s61
    v_cmp_eq_u32 vcc, 1, v7
    v_cndmask_b32 v8, v8, v9, vcc
    v_mov_b32 v9, s6
    v_cmp_eq_u32 vcc, 2, v7
    v_cndmask_b32 v8, v8, v9, vcc
    v_mov_b32 v9, s7
    v_cmp_eq_u32 vcc, 3, v7
    v_cndmask_b32 v8, v8, v9, vcc
    v_and_b32 v7, 7, v1
    v_lshl_add_u32 v8, v7, 4, v8
    s_waitcnt lgkmcnt(0)""")
    a.stamp(1)
    srd(a, 8, P_X, 2621440)
    srd(a, 12, P_WQKV, 2457600)
    srd(a, 16, P_WS, WS_SIZE)
    a(f"""s_cmp_lg_u32 s20, 0
    s_cbranch_scc1 L_NOCLR
    buffer_store_dwordx4 v[24:27], v6, {WSR}, 0 offen sc1
    s_mov_b64 exec, 0x3ffffff
    buffer_store_dwordx4 v[24:27], v8, {WSR}, 0 offen sc1
    s_mov_b64 exec, -1
    L_NOCLR:""")
    def dmaA(i):
        slot = i % 3
        a(f"""s_add_u32 m0, s30, {slot*2048}
        s_add_u32 s3, s29, 30720
        buffer_load_dwordx4 v10, s[8:11], s28 offen lds
        s_add_u32 m0, s30, {slot*2048 + 1024}
        s_nop 0
        buffer_load_dwordx4 v180, s[8:11], s28 offen lds
        s_add_u32 m0, s31, {i*10240}
        {M40[0]}
        buffer_load_dwordx4 v11, s[12:15], s29 offen lds
        s_add_u32 m0, s31, {i*10240 + 640}
        s_add_u32 s28, s28, 128
        buffer_load_dwordx4 v11, s[12:15], s3 offen lds
        {M40[1]}
        s_add_u32 s29, s29, 245760
        s_cmp_ge_u32 s28, 1280
        s_cselect_b32 s28, 0, s28
        s_cselect_b32 s29, 0, s29""")
    dmaA(0); a("s_barrier"); dmaA(1); a("s_barrier"); dmaA(2)
    a(f"""v_lshrrev_b32 v4, 1, v2
    v_xor_b32 v4, v4, v3
    v_lshlrev_b32 v4, 4, v4
    v_lshl_add_u32 v4, v2, 7, v4
    v_add_u32 v12, s30, v4
    v_xor_b32 v13, 64, v12
    v_bfe_u32 v4, v1, 2, 2
    v_and_b32 v5, 1, v3
    v_lshl_or_b32 v4, v5, 2, v4
    v_lshrrev_b32 v5, 1, v3
    v_lshl_or_b32 v4, v5, 4, v4
    v_mul_u32_u24 v182, 160, v4
    v_and_b32 v5, 3, v1
    v_lshl_add_u32 v4, v5, 3, v182""")
    for u in range(5):
        a(f"""s_add_u32 s{32+u}, s20, {u}
        s_cmp_ge_u32 s{32+u}, 5
        s_cselect_b32 s3, 5, 0
        s_sub_u32 s{32+u}, s{32+u}, s3
        s_cmp_ge_u32 s{32+u}, 5
        s_cselect_b32 s3, 5, 0
        s_sub_u32 s{32+u}, s{32+u}, s3
        s_lshl_b32 s3, s{32+u}, 5
        v_add_u32 v{14+u}, s3, v4
        v_add_u32 v{19+u}, 51200, v{14+u}""")
    for i in range(4): a(f"v_mov_b32 v{24+i}, 0x3f803f80")
    div_lane(a, 4, 5, 1, 5)
    a(f"""v_and_b32 v6, 1, v4
    v_lshrrev_b32 v4, 1, v4
    v_lshl_add_u32 v4, v6, 2, v4
    s_lshl_b32 s3, s20, 3
    v_add_u32 v4, s3, v4
    v_mul_u32_u24 v4, 3840, v4
    v_lshl_add_u32 v4, v5, 4, v4
    s_mul_i32 s3, s22, 80
    v_add_u32 v186, s3, v4
    s_mul_i32 s38, s20, 640""")
    def dmaQ(i):
        a(f"""s_add_u32 m0, s38, {WQL + i*5120}
        {M40[0]}
        buffer_load_dwordx4 v186, s[12:15], s62 offen lds
        {M40[1]}
        s_add_u32 s62, s62, 245760
        s_cmp_ge_u32 s62, 2457600
        s_cselect_b32 s62, 0, s62""")
    def touch_wq(L):
        touch(a, 251, f"""s_lshr_b32 s3, s2, 3
        s_mul_i32 s3, s3, 20
        v_mul_u32_u24 v4, 13108, v0
        v_lshrrev_b32 v4, 16, v4
        v_mul_u32_u24 v5, 5, v4
        v_sub_u32 v5, v0, v5
        v_add_u32 v4, s3, v4
        v_mul_u32_u24 v4, 3840, v4
        v_lshl_add_u32 v4, v5, 7, v4
        s_and_b32 s3, s2, 1
        s_mul_i32 s3, s3, 640
        v_add_u32 v4, s3, v4
        v_cmp_gt_u32 vcc, 100, v0""", P_WQKV, L)
    def touch_wo(L):
        touch(a, 252, f"""s_lshr_b32 s3, s2, 3
        s_mul_i32 s3, s3, 200
        v_subrev_u32 v5, 128, v0
        v_add_u32 v4, s3, v5
        v_lshlrev_b32 v4, 7, v4
        v_cmp_gt_u32 vcc, 200, v5""", P_WO, L)
    WF, ACC, XX, SX, CS, XF = 28, 68, 88, 92, 96, 100
    def a1_reads(n):
        b = n & 1; L = []
        if not (n & 1):
            slot = (n >> 1) % 3
            L.append(f"ds_read_b128 {q4(XF+4*n)}, v12 offset:{slot*2048}")
            L.append(f"ds_read_b128 {q4(XF+4*n+4)}, v13 offset:{slot*2048}")
        base, off = (14, n*5120) if n < 10 else (19, (n-10)*5120)
        for u in range(5):
            for h in range(2):
                r = WF + 20*b + 4*u + 2*h
                L.append(f"ds_read_b64_tr_b16 v[{r}:{r+1}], v{base+u} offset:{off + h*1280}")
        return L
    def a1_mfmas(n, isv):
        b = n & 1; L = []
        def mm(d, x, y): L.append(f"v_mfma_f32_16x16x32_bf16 {q4(d)}, {q4(x)}, {q4(y)}, {'0' if n == 0 else q4(d)}")
        x = XF + 4*n
        mm(XX, x, x); mm(SX, 24, x)
        for u in range(5):
            w = WF + 20*b + 4*u
            if isv: mm(ACC + 4*u, x, w)
            else: mm(ACC + 4*u, w, x)
        mm(CS, 24, WF + 20*b)
        return L
    a("s_waitcnt vmcnt(8)\n s_barrier")
    a.stamp(2)
    a(f"""s_cmp_lg_u32 s20, 0
    s_cbranch_scc1 L_NOSIG
    s_and_b32 s3, s2, 63
    s_lshl_b32 s3, s3, 2
    v_mov_b32 v4, s3
    v_mov_b32 v5, 1
    s_mov_b64 exec, 1
    global_atomic_add v4, v5, s[{P_DBG}:{P_DBG+1}] sc1
    s_mov_b64 exec, -1
    L_NOSIG:""")
    for r in a1_reads(0): a(r)
    a("s_cmp_ge_u32 s22, 8\n s_cbranch_scc1 L_A1V")
    def a1_loop(isv):
        for n in range(20):
            i = n >> 1
            a("s_waitcnt lgkmcnt(0)")
            if n & 1:
                vm = 8 if i <= 7 else 8
                if i < 9: a(f"s_waitcnt vmcnt({vm})\n s_barrier")
            elif i + 3 < 10:
                dmaA(i + 3)
            if 13 <= n <= 17:
                dmaQ(2*(n-13)); dmaQ(2*(n-13) + 1)
            if n == 4: touch_wq(f"L_TQ{int(isv)}")
            if n == 9: touch_wo(f"L_TO{int(isv)}")
            R = a1_reads(n + 1) if n < 19 else []
            M = a1_mfmas(n, isv)
            for k, m in enumerate(M):
                for x in R[2*k:2*k+2]: a(x)
                a(m)
    def a1_stats():
        a.stamp(3)
        a(f"""v_and_b32 v5, 3, v2
        v_cmp_eq_u32 vcc, 1, v5
        v_cndmask_b32 v4, v{XX}, v{XX+1}, vcc
        v_cmp_eq_u32 vcc, 2, v5
        v_cndmask_b32 v4, v4, v{XX+2}, vcc
        v_cmp_eq_u32 vcc, 3, v5
        v_cndmask_b32 v7, v4, v{XX+3}, vcc
        v_mov_b32 v6, v{SX}
        s_lshl_b32 s3, s32, 6
        s_add_u32 s3, s3, {SCR+1024}
        v_lshl_add_u32 v4, v2, 2, s3
        ds_write_b32 v4, v{CS}""")
        ln_scalars(a, 6, 7)
        a(f"""s_lshl_b32 s26, s20, 7
        s_add_u32 s26, s26, {SCR}
        v_lshl_add_u32 v4, v2, 3, s26
        v_lshrrev_b32 v5, 2, v2
        v_cmp_eq_u32 vcc, v5, v3
        s_and_saveexec_b64 s[4:5], vcc
        ds_write_b64 v4, v[6:7]
        s_mov_b64 exec, -1
        s_waitcnt lgkmcnt(0)
        s_barrier
        ds_read_b64 v[184:185], v4
        v_and_b32 v8, 1, v3
        v_cmp_eq_u32 s[6:7], 1, v8
        v_lshrrev_b32 v9, 1, v3
        s_lshl_b32 s4, s21, 2
        s_lshr_b32 s5, s20, 1
        s_add_u32 s4, s4, s5
        s_mul_i32 s4, s4, {T32}           ; tile32 * 2560""")
    def lane_tile(p, dst):
        if p < 2:
            a(f"v_mov_b32 v{dst}, s{32+2*p}\n v_mov_b32 v4, s{33+2*p}\n v_cndmask_b32 v{dst}, v{dst}, v4, s[6:7]")
        else:
            a(f"v_mov_b32 v{dst}, s36")
    def pack_store(P):
        a(f"v_mov_b32 v{P+10}, v{P+8}\n v_mov_b32 v{P+11}, v{P+9}")
        for p in range(3):
            a(f"v_permlane16_swap_b32 v{P+4*p}, v{P+4*p+2}\n v_permlane16_swap_b32 v{P+4*p+1}, v{P+4*p+3}")
        for p in range(3):
            if p == 2: a("s_mov_b32 exec_lo, 0xffff\n s_mov_b32 exec_hi, 0xffff")
            a(f"buffer_store_dwordx4 {q4(P+4*p)}, v{60+p}, {WSR}, s37 offen sc1")
        a("s_mov_b64 exec, -1")
    a1_loop(False)
    a1_stats()
    for u in range(5):
        a(f"s_lshl_b32 s3, s{32+u}, 6\n s_add_u32 s3, s3, {SCR+1024}\n v_lshl_add_u32 v4, v3, 4, s3\n ds_read_b128 {q4(28+4*u)}, v4")
    a(f"""s_mul_i32 s37, s22, {2*64*T32}
    s_add_u32 s37, s37, s4
    s_and_b32 s5, s20, 1
    s_lshl_b32 s5, s5, 8
    s_add_u32 s37, s37, s5""")
    for p in range(3):
        lane_tile(p, 5)
        a(f"""v_lshl_add_u32 v5, v5, 1, v9
        v_cmp_le_u32 vcc, 5, v5
        v_mov_b32 v4, {64*T32 - 5*512}
        v_cndmask_b32 v4, 0, v4, vcc
        v_lshl_add_u32 v4, v5, 9, v4
        v_lshl_add_u32 v{60+p}, v2, 4, v4""")
    a("s_waitcnt lgkmcnt(0)")
    for u in range(5):
        d = ACC + 4*u
        for r in range(4): a(f"v_fma_f32 v{d+r}, -v184, v{28+4*u+r}, v{d+r}")
        for r in range(4): a(f"v_mul_f32 v{d+r}, v185, v{d+r}")
        a(f"v_cvt_pk_bf16_f32 v{48+2*u}, v{d}, v{d+1}\n v_cvt_pk_bf16_f32 v{49+2*u}, v{d+2}, v{d+3}")
    pack_store(48)
    a("s_branch L_A2")
    a("L_A1V:")
    a1_loop(True)
    a1_stats()
    a(f"""v_lshl_add_u32 v4, v3, 5, s26
    ds_read_b128 v[28:31], v4
    ds_read_b128 v[32:35], v4 offset:16""")
    for u in range(5):
        a(f"s_lshl_b32 s3, s{32+u}, 6\n s_add_u32 s3, s3, {SCR+1024}\n v_lshl_add_u32 v4, v2, 2, s3\n ds_read_b32 v{36+u}, v4")
    a(f"""s_sub_u32 s37, s22, 8
    s_mul_i32 s37, s37, {2*64*T32}
    s_add_u32 s37, s37, s4
    s_and_b32 s5, s20, 1
    s_mul_i32 s5, s5, 1280
    s_add_u32 s37, s37, s5
    s_add_u32 s37, s37, {V_OFF}
    v_mul_u32_u24 v9, 640, v9""")
    for p in range(3):
        lane_tile(p, 5)
        a(f"""v_lshl_add_u32 v5, v5, 4, v2
        v_cmp_le_u32 vcc, 40, v5
        v_mov_b32 v4, {64*T32 - 640}
        v_cndmask_b32 v4, 0, v4, vcc
        v_lshl_add_u32 v4, v5, 4, v4
        v_add_u32 v{60+p}, v9, v4""")
    a("s_waitcnt lgkmcnt(0)")
    for u in range(5):
        d = ACC + 4*u
        for r in range(4): a(f"v_fma_f32 v{d+r}, -v{28+2*r}, v{36+u}, v{d+r}")
        for r in range(4): a(f"v_mul_f32 v{d+r}, v{29+2*r}, v{d+r}")
        a(f"v_cvt_pk_bf16_f32 v{48+2*u}, v{d}, v{d+1}\n v_cvt_pk_bf16_f32 v{49+2*u}, v{d+2}, v{d+3}")
    pack_store(48)

    a("L_A2:")
    srd(a, 8, P_G, 2211840)
    srd(a, 12, P_U, 2211840)
    a(f"""s_mul_i32 s3, s24, 80
    v_lshrrev_b32 v4, 3, v1
    v_add_u32 v4, s3, v4
    v_mul_u32_u24 v4, 3456, v4
    v_and_b32 v5, 7, v1
    v_lshl_add_u32 v4, v5, 4, v4
    s_lshl_b32 s3, s25, 7
    v_add_u32 v10, s3, v4
    s_mul_i32 s4, s20, {8*3456}
    s_lshl_b32 s39, s20, 10""")
    a(f"""v_bfe_u32 v4, v1, 2, 2
    v_lshlrev_b32 v4, 1, v4
    v_lshl_add_u32 v4, v3, 3, v4
    v_mul_u32_u24 v4, 80, v4
    v_and_b32 v5, 3, v1
    v_lshl_add_u32 v4, v5, 3, v4
    v_add_u32 v4, {WQL}, v4""")
    for u in range(3):
        a(f"""s_add_u32 s{32+u}, s20, {u}
        s_mul_i32 s3, s{32+u}, 86
        s_lshr_b32 s3, s3, 8
        s_mul_i32 s3, s3, 3
        s_sub_u32 s{32+u}, s{32+u}, s3
        s_lshl_b32 s3, s{32+u}, 5
        v_add_u32 v{14+u}, s3, v4""")
    a(f"""s_lshl_b32 s3, s20, 2
    s_add_u32 s3, s3, s60
    v_mov_b32 v4, s3
    v_mov_b32 v5, 1
    s_waitcnt vmcnt(3)
    s_barrier""")
    a.stamp(4)
    def a2_reads(n):
        b = n & 1; L = []
        for u in range(3):
            for h in range(2):
                r = WF + 12*b + 4*u + 2*h
                L.append(f"ds_read_b64_tr_b16 v[{r}:{r+1}], v{14+u} offset:{n*2560 + h*80}")
        return L
    for r in a2_reads(0): a(r)
    for n in range(20):
        a("s_waitcnt lgkmcnt(0)")
        if n == F1STEP:
            a(f"""s_waitcnt vmcnt(0)
            s_mov_b64 exec, 1
            buffer_store_dword v5, v4, {WSR}, 0 offen sc1
            s_mov_b64 exec, -1
            s_cmp_ge_u32 s25, 32
            s_cbranch_scc1 L_NOGU
            s_add_u32 m0, s39, {GUL}
            s_add_u32 s5, s4, {64*3456}
            buffer_load_dwordx4 v10, s[8:11], s4 offen nt lds
            s_add_u32 m0, s39, {GUL + 10240}
            s_cmp_ge_u32 s20, 2
            buffer_load_dwordx4 v10, s[12:15], s4 offen nt lds
            s_cbranch_scc1 L_NOGU
            s_add_u32 m0, s39, {GUL + 8192}
            s_nop 0
            buffer_load_dwordx4 v10, s[8:11], s5 offen nt lds
            s_add_u32 m0, s39, {GUL + 10240 + 8192}
            s_nop 0
            buffer_load_dwordx4 v10, s[12:15], s5 offen nt lds
            L_NOGU:""")
        R = a2_reads(n + 1) if n < 19 else []
        b = n & 1; x = XF + 4*n
        c = lambda d: '0' if n == 0 else q4(d)
        for u in range(3):
            for t in R[2*u:2*u+2]: a(t)
            a(f"v_mfma_f32_16x16x32_bf16 {q4(ACC+4*u)}, {q4(WF+12*b+4*u)}, {q4(x)}, {c(ACC+4*u)}")
        a(f"v_mfma_f32_16x16x32_bf16 {q4(CS)}, v[24:27], {q4(WF+12*b)}, {c(CS)}")
    a(f"""s_lshl_b32 s3, s32, 6
    s_add_u32 s3, s3, {CS2}
    v_lshl_add_u32 v4, v2, 2, s3
    ds_write_b32 v4, v{CS}
    v_mul_f32 v185, {QSCALE:#x}, v185
    s_waitcnt lgkmcnt(0)
    s_barrier""")
    for u in range(3):
        a(f"s_lshl_b32 s3, s{32+u}, 6\n s_add_u32 s3, s3, {CS2}\n v_lshl_add_u32 v4, v3, 4, s3\n ds_read_b128 {q4(28+4*u)}, v4")
    a(f"""s_lshl_b32 s3, s20, 8
    s_add_u32 s3, s3, {QEX}
    v_lshl_add_u32 v6, v2, 4, s3
    v_and_b32 v4, 1, v3
    v_lshl_add_u32 v6, v4, 3, v6
    v_lshrrev_b32 v7, 1, v3
    s_waitcnt lgkmcnt(0)""")
    for u in range(3):
        d = ACC + 4*u
        for r in range(4): a(f"v_fma_f32 v{d+r}, -v184, v{28+4*u+r}, v{d+r}")
        for r in range(4): a(f"v_mul_f32 v{d+r}, v185, v{d+r}")
        a(f"""v_cvt_pk_bf16_f32 v{48+2*u}, v{d}, v{d+1}
        v_cvt_pk_bf16_f32 v{49+2*u}, v{d+2}, v{d+3}
        s_lshl_b32 s3, s{32+u}, 1
        v_add_u32 v4, s3, v7
        v_cmp_gt_u32 vcc, 5, v4
        v_lshl_add_u32 v4, v4, 11, v6
        s_and_saveexec_b64 s[4:5], vcc
        ds_write_b64 v4, v[{48+2*u}:{49+2*u}]
        s_mov_b64 exec, -1""")
    a.stamp(5)
    a(f"""s_cmp_lg_u32 s20, 0
    s_cbranch_scc1 L_F1DONE
    v_lshlrev_b32 v4, 2, v1""")
    a(f"""v_subrev_u32 v5, 24, v1
    v_cmp_gt_u32 vcc, 24, v1
    v_cndmask_b32 v5, v5, v1, vcc
    v_mov_b32 v6, 128
    v_cndmask_b32 v6, v6, 0, vcc
    v_lshrrev_b32 v7, 3, v5
    s_sub_u32 s3, s21, 2
    v_add_u32 v7, s3, v7
    v_cmp_le_i32 s[4:5], 0, v7
    s_lshr_b32 s3, s22, 1
    s_lshl_b32 s3, s3, 4
    v_add3_u32 v6, v6, v7, s3
    v_lshlrev_b32 v6, 7, v6
    v_and_b32 v5, 7, v5
    v_lshl_add_u32 v6, v5, 2, v6
    v_add_u32 v6, {F1_OFF}, v6
    s_and_b32 s5, s5, 0xffff""")
    spin_head(a, "L_CLRPOLL")
    a(f"""global_load_dword v8, v4, s[{P_DBG}:{P_DBG+1}] sc1
    s_waitcnt vmcnt(0)
    v_cmp_ne_u32 vcc, 4, v8
    s_cbranch_vccz L_CLRPOLL_OK
    s_sleep {SLEEP}
    s_branch L_CLRPOLL
    L_CLRPOLL_OK:
    s_mov_b64 exec, s[4:5]""")
    spin_head(a, "L_F1POLL")
    a(f"""buffer_load_dword v8, v6, {WSR}, 0 offen sc1
    s_waitcnt vmcnt(0)
    v_cmp_ne_u32 vcc, 1, v8
    s_cbranch_vccz L_F1POLL_OK
    s_sleep {SLEEP}
    s_branch L_F1POLL
    L_F1POLL_OK:
    s_mov_b64 exec, -1
    L_F1DONE:
    s_waitcnt vmcnt(0) lgkmcnt(0)
    s_barrier""")
    a.stamp(6)

    S0 = 112
    def S(i): return S0 + 16*i
    O = 96; MK = 88
    a(f"""v_mov_b32 v22, v181
    v_mov_b32 v23, v183
    s_and_b32 s26, s20, 3             ; qt
    s_lshr_b32 s27, s20, 2            ; hd
    s_lshl_b32 s3, s21, 2
    s_sub_u32 s3, s3, 8
    s_mul_i32 s3, s3, {T32}
    s_lshl_b32 s28, s20, 10
    s_add_u32 s3, s3, s28
    v_lshl_add_u32 v10, v1, 4, s3
    s_mul_i32 s3, s22, {64*T32}
    s_add_u32 s4, s{P_WS}, s3
    s_addc_u32 s5, s{P_WS+1}, 0
    s_add_u32 s6, s4, {V_OFF}
    s_addc_u32 s7, s5, 0""")
    srd(a, 8, 4, 64*T32)
    srd(a, 12, 6, 64*T32)
    for kv in range(2):
        for i in range(4):
            if i == 3: a(f"s_cmp_ge_u32 s20, 6\n s_cbranch_scc1 L_KV{kv}")
            a(f"""s_add_u32 m0, s28, {KL + 30720*kv + 8192*i}
            v_add_u32 v4, {8192*i}, v10
            buffer_load_dwordx4 v4, s[{8+4*kv}:{11+4*kv}], 0 offen sc1 lds""")
        a(f"L_KV{kv}:")
    a(f"""v_and_b32 v2, 31, v0
    v_lshrrev_b32 v3, 5, v1
    s_lshl_b32 s3, s26, 9
    s_add_u32 s3, s3, {QEX}
    v_lshl_add_u32 v4, v2, 4, s3
    s_mul_i32 s4, s27, {3*2048}
    v_lshl_add_u32 v5, v3, 11, v4
    v_add_u32 v5, s4, v5
    ds_read_b128 v[16:19], v5
    s_lshl_b32 s4, s27, 3
    v_add_u32 v4, s4, v4
    ds_read_b64 v[20:21], v4 offset:4096
    v_and_b32 v4, 0x13, v2
    v_and_b32 v5, 4, v2
    v_lshl_or_b32 v4, v5, 1, v4
    v_and_b32 v5, 8, v2
    v_lshrrev_b32 v5, 1, v5
    v_or_b32 v4, v4, v5               ; kappa
    s_mul_i32 s3, s26, {T32}
    s_add_u32 s3, s3, {KL}
    s_mul_i32 s4, s27, 1536
    s_add_u32 s4, s4, s3
    v_lshlrev_b32 v5, 4, v4
    v_lshl_add_u32 v11, v3, 9, v5
    v_add_u32 v11, s4, v11
    s_lshl_b32 s4, s27, 3
    s_add_u32 s4, s4, s3
    s_add_u32 s4, s4, 1024
    v_add_u32 v12, s4, v5
    v_mul_u32_u24 v6, 640, v3
    v_add_u32 v5, v5, v6
    s_mul_i32 s4, s27, 320
    s_add_u32 s4, s4, s3
    s_add_u32 s4, s4, 30720
    v_add_u32 v13, s4, v5
    v_lshlrev_b32 v4, 3, v3
    v_sub_u32 v4, v2, v4
    v_mov_b32 v5, 0xffff
    v_mov_b32 v6, 0xffff0000""")
    a(f"""s_cmp_ge_u32 s25, 32
    s_cbranch_scc1 L_NORP
    v_lshrrev_b32 v7, 1, v1
    v_and_b32 v8, 0x13, v7
    v_and_b32 v9, 4, v7
    v_lshl_or_b32 v8, v9, 1, v8
    v_and_b32 v9, 8, v7
    v_lshrrev_b32 v9, 1, v9
    v_or_b32 v8, v8, v9
    v_lshlrev_b32 v8, 7, v8
    v_and_b32 v9, 1, v1
    v_mul_u32_u24 v9, 10240, v9
    s_lshl_b32 s3, s20, 4
    s_add_u32 s3, s3, {GUL}
    v_add3_u32 v8, v8, v9, s3
    ds_read_b128 v[112:115], v8
    ds_read_b128 v[116:119], v8 offset:4096
    ds_read_b128 v[120:123], v8 offset:8192
    s_lshl_b32 s3, s25, 3
    s_add_u32 s3, s3, s20
    s_mul_i32 s3, s3, 20480
    s_mul_i32 s4, s24, 2560
    s_add_u32 s3, s3, s4
    s_add_u32 s3, s3, {RP_OFF}
    v_lshlrev_b32 v8, 4, v1
    s_waitcnt lgkmcnt(0)
    buffer_store_dwordx4 v[112:115], v8, {WSR}, s3 offen sc1
    buffer_store_dwordx4 v[116:119], v8, {WSR}, s3 offen offset:1024 sc1
    s_mov_b32 exec_hi, 0
    buffer_store_dwordx4 v[120:123], v8, {WSR}, s3 offen offset:2048 sc1
    s_mov_b64 exec, -1
    s_branch L_RPD
    L_NORP:""")
    a(f"""v_lshrrev_b32 v7, 1, v0
    s_mul_i32 s3, s24, 216
    v_add_u32 v7, s3, v7
    v_mul_u32_u24 v7, 1280, v7
    v_and_b32 v8, 1, v0
    v_lshl_add_u32 v7, v8, 7, v7
    s_sub_u32 s3, s25, 32
    s_lshl_b32 s3, s3, 8
    v_add_u32 v7, s3, v7
    v_min_u32 v7, 2211836, v7
    global_load_dword v10, v7, s[{P_D}:{P_D+1}]
    global_load_dword v10, v7, s[{P_D}:{P_D+1}]
    global_load_dword v10, v7, s[{P_D}:{P_D+1}]
    L_RPD:""")
    a(f"""s_lshl_b32 s3, s23, 3
    s_add_u32 s3, s3, s24
    s_mul_i32 s3, s3, 10240
    s_mul_i32 s4, s20, 1280
    s_add_u32 s3, s3, s4
    s_add_u32 s3, s3, {H_OFF}
    v_lshlrev_b32 v7, 4, v1
    v_mov_b32 v124, -1
    v_mov_b32 v125, -1
    v_mov_b32 v126, -1
    v_mov_b32 v127, -1
    buffer_store_dwordx4 v[124:127], v7, {WSR}, s3 offen sc1
    s_mov_b64 exec, 0xffff
    buffer_store_dwordx4 v[124:127], v7, {WSR}, s3 offen offset:1024 sc1
    s_mov_b64 exec, -1""")
    MS = 32
    a("s_mov_b32 s31, s61")
    for r in range(16):
        a(f"v_cmp_gt_i32 s[{MS+2*r}:{MS+1+2*r}], {(r&7) + 16*(r>>3)}, v4")
    for i in range(8):
        a(f"""v_cndmask_b32 v7, 0, v5, s[{MS+4*i}:{MS+1+4*i}]
        v_cndmask_b32 v8, 0, v6, s[{MS+2+4*i}:{MS+3+4*i}]
        v_or_b32 v{MK+i}, v7, v8""")
    a(f"""s_lshl_b32 s3, s21, 2
    s_add_u32 s3, s3, s26
    s_sub_i32 s30, 8, s3              ; n_invalid
    s_mul_i32 s3, s3, {80*512}
    s_add_u32 s29, s3, {O_OFF}
    s_lshl_b32 s4, s22, 1
    s_add_u32 s4, s4, s27             ; head
    s_lshl_b32 s5, s4, 10
    v_lshl_add_u32 v14, v1, 4, s5
    s_lshl_b32 s5, s4, 8
    s_add_u32 s5, s5, 32768
    v_lshl_add_u32 v15, v1, 3, s5
    v_cmp_eq_u32 vcc, 0, v3
    s_waitcnt lgkmcnt(0)
    v_cndmask_b32 v20, 0, v20, vcc
    v_cndmask_b32 v21, 0, v21, vcc""")
    srd(a, 8, P_WO, 819200)
    a(f"""s_mul_i32 s28, s20, 1280
    s_add_u32 s28, s28, {WOL}
    s_waitcnt vmcnt(8)
    s_barrier""")
    a.stamp(7)
    wo_n = [0]
    def dma_wo():
        p = wo_n[0]; wo_n[0] += 1
        kh, q = p // 5, p % 5
        if q < 4: v, so, hs = 22, (4*kh + q) * 80 * 1280, 8 * 1280
        else:     v, so, hs = 23, kh * 320 * 1280, 40 * 1280
        a(f"""s_add_u32 m0, s28, {p*10240}
        s_mov_b32 s3, {so}
        {M40[0]}
        buffer_load_dwordx4 v{v}, s[8:11], s3 offen lds
        s_add_u32 m0, s28, {p*10240 + 640}
        s_mov_b32 s3, {so + hs}
        buffer_load_dwordx4 v{v}, s[8:11], s3 offen lds
        {M40[1]}""")
    KF = 24
    order = [0, 8, 1, 2, 3, 4, 5, 6, 7]
    def kread(n):
        i = order[n]
        a(f"""ds_read_b128 v[{KF+6*n}:{KF+6*n+3}], v11 offset:{T32*i}
        ds_read_b64 v[{KF+6*n+4}:{KF+6*n+5}], v12 offset:{T32*i}""")
    for n in range(7): kread(n)
    for n in range(9):
        i = order[n]
        if n + 7 < 9: kread(n + 7)
        out = 2 * (min(n + 7, 8) - n)
        a(f"""s_waitcnt lgkmcnt({out})
        v_mfma_f32_32x32x16_bf16 {r16(S(i))}, v[{KF+6*n}:{KF+6*n+3}], v[16:19], 0
        v_mfma_f32_32x32x8_bf16 {r16(S(i))}, v[{KF+6*n+4}:{KF+6*n+5}], v[20:21], {r16(S(i))}""")
    vorder = [1, 2, 3, 4, 5, 6, 7, 0, 8]
    NVB = 3
    def VF(n): return 24 + 8*(n % NVB)
    M20 = "s_mov_b32 exec_lo, 0xfffff\n s_mov_b32 exec_hi, 0xfffff"
    def vread(n):
        i = vorder[n]
        a(f"""{M20}
        ds_read_b128 v[{VF(n)}:{VF(n)+3}], v13 offset:{T32*i}
        ds_read_b128 v[{VF(n)+4}:{VF(n)+7}], v13 offset:{T32*i+1280}
        s_mov_b64 exec, -1""")
    for r in range(8*NVB): a(f"v_mov_b32 v{24+r}, 0x3f803f80")
    a("s_waitcnt vmcnt(5)\n s_barrier")
    for n in range(NVB): vread(n)
    dma_wo()
    a("""s_cmp_gt_i32 s30, 0
    s_cbranch_scc0 L_VALID""")
    for i in range(8):
        if i: a(f"s_cmp_gt_i32 s30, {i}\n s_cbranch_scc0 L_VALID")
        for r in range(16): a(f"v_mov_b32 v{S(i)+r}, 0xff800000")
    a("L_VALID:")
    for r in range(16):
        a(f"v_cndmask_b32 v{S(0)+r}, v{S(8)+r}, v{S(0)+r}, s[{MS+2*r}:{MS+1+2*r}]")
    a(f"v_max_f32 v4, v{S(0)}, v{S(0)+1}\n v_max_f32 v5, v{S(0)+2}, v{S(0)+3}")
    for k in range(2, 64):
        x = 4 + (k & 1)
        a(f"v_max3_f32 v{x}, v{S0+2*k}, v{S0+2*k+1}, v{x}")
    a("""v_max_f32 v4, v4, v5
    v_mov_b32 v5, v4
    v_permlane32_swap_b32 v4, v5
    v_max_f32 v4, v4, v5
    v_mov_b32 v5, v4""")
    dma_wo()
    def softmax_tile(i):
        s = S(i)
        for k in range(8):
            a(f"v_pk_add_f32 v[{s+2*k}:{s+2*k+1}], v[{s+2*k}:{s+2*k+1}], v[4:5] neg_lo:[0,1] neg_hi:[0,1]")
        for r in range(16): a(f"v_exp_f32 v{s+r}, v{s+r}")
        for k in range(8): a(f"v_cvt_pk_bf16_f32 v{s+k}, v{s+2*k}, v{s+2*k+1}")
    def pv(n, p, first=False):
        c = "0" if first else r16(O)
        a(f"""v_mfma_f32_32x32x16_bf16 {r16(O)}, v[{VF(n)}:{VF(n)+3}], v[{p}:{p+3}], {c}
        v_mfma_f32_32x32x16_bf16 {r16(O)}, v[{VF(n)+4}:{VF(n)+7}], v[{p+4}:{p+7}], {r16(O)}""")
    for n in range(7):
        softmax_tile(vorder[n])
        if n >= 1 and n - 1 + NVB < 9: vread(n - 1 + NVB)
        a(f"s_waitcnt lgkmcnt({4 if n < 7 else 0})")
        pv(n, S(vorder[n]), n == 0)
        dma_wo()
    softmax_tile(0)
    s = S(0)
    for k in range(8): a(f"v_and_b32 v{s+8+k}, v{MK+k}, v{s+k}")
    for k in range(8): a(f"v_xor_b32 v{s+k}, v{s+8+k}, v{s+k}")
    a("s_waitcnt lgkmcnt(0)")
    pv(7, s + 8)
    pv(8, s)
    dma_wo()
    a(f"v_rcp_f32 v4, v{O+12}")
    for r in range(12): a(f"v_mul_f32 v{O+r}, v4, v{O+r}")
    for k in range(6): a(f"v_cvt_pk_bf16_f32 v{24+k}, v{O+2*k}, v{O+2*k+1}")
    a(f"""buffer_store_dwordx4 v[24:27], v14, {WSR}, s29 offen sc1
    s_mov_b32 exec_hi, 0
    buffer_store_dwordx2 v[28:29], v15, {WSR}, s29 offen sc1
    s_mov_b64 exec, -1""")
    a.stamp(8)

    a(f"""v_and_b32 v2, 15, v0
    v_lshrrev_b32 v3, 4, v1
    s_and_b32 s26, s20, 3             ; rt
    s_lshr_b32 s27, s20, 2            ; kh
    s_lshl_b32 s3, s23, 6
    s_lshl_b32 s4, s26, 4
    s_add_u32 s3, s3, s4
    v_add_u32 v9, s3, v2
    v_mul_u32_u24 v4, 1280, v9
    v_mul_u32_u24 v17, 40, v3
    s_mul_i32 s3, s24, 160
    v_add_u32 v17, s3, v17
    v_add_u32 v16, v17, v4
    s_mov_b32 s28, {H_OFF}
    s_lshl_b32 s3, s20, 2
    s_add_u32 s3, s3, s31
    v_mov_b32 v4, s3
    v_mov_b32 v5, 1
    s_waitcnt vmcnt(0)
    s_mov_b64 exec, 1
    buffer_store_dword v5, v4, {WSR}, 0 offen sc1
    s_mov_b64 exec, -1""")
    srd(a, 8, P_X, 2621440)
    srd(a, 12, P_WR, 1280)
    XR, WR, WRS = 20, 30, 140
    a(f"""s_cmp_ge_u32 s20, 4
    s_cbranch_scc1 L_NOXLD
    buffer_load_dwordx4 v[{XR}:{XR+3}], v16, s[8:11], 0 offen
    buffer_load_dwordx4 v[{XR+4}:{XR+7}], v16, s[8:11], 0 offen offset:16
    buffer_load_dwordx2 v[{XR+8}:{XR+9}], v16, s[8:11], 0 offen offset:32
    buffer_load_dwordx4 v[{WR}:{WR+3}], v17, s[12:15], 0 offen
    buffer_load_dwordx4 v[{WR+4}:{WR+7}], v17, s[12:15], 0 offen offset:16
    buffer_load_dwordx2 v[{WR+8}:{WR+9}], v17, s[12:15], 0 offen offset:32
    v_lshlrev_b32 v4, 2, v1""")
    for i in range(5):
        a(f"buffer_load_dword v{WRS+i}, v4, s[12:15], 0 offen offset:{256*i}")
    a("L_NOXLD:")
    a(f"""v_bfe_u32 v4, v1, 2, 2
    v_and_b32 v5, 1, v3
    v_lshl_or_b32 v4, v5, 2, v4
    v_lshrrev_b32 v5, 1, v3
    v_lshl_or_b32 v4, v5, 4, v4
    v_mul_u32_u24 v4, 160, v4
    v_and_b32 v5, 3, v1
    v_mul_u32_u24 v5, 40, v5
    s_mul_i32 s3, s27, 51200
    s_add_u32 s3, s3, {WOL}
    v_add3_u32 v18, v4, v5, s3
    s_lshr_b32 s3, s23, 1
    s_lshl_b32 s3, s3, 4
    s_lshl_b32 s4, s27, 3
    s_add_u32 s3, s3, s4
    s_lshl_b32 s3, s3, 7
    s_and_b32 s4, s23, 1
    s_lshl_b32 s4, s4, 1
    s_lshr_b32 s5, s26, 1
    s_add_u32 s4, s4, s5              ; qt
    s_lshl_b32 s5, s4, 2
    s_add_u32 s3, s3, s5
    s_add_u32 s3, s3, {F2_OFF}
    v_lshrrev_b32 v4, 1, v1
    v_lshlrev_b32 v4, 7, v4
    v_and_b32 v5, 1, v1
    v_lshl_add_u32 v4, v5, 4, v4
    v_add_u32 v6, s3, v4
    s_lshl_b32 s3, s23, 1
    s_lshr_b32 s4, s26, 1
    s_add_u32 s3, s3, s4
    s_mul_i32 s3, s3, {80*512}
    s_add_u32 s3, s3, {O_OFF}
    s_lshl_b32 s4, s27, 14
    s_add_u32 s29, s3, s4
    s_lshl_b32 s4, s27, 12
    s_add_u32 s33, s3, s4
    s_add_u32 s33, s33, 32768
    s_and_b32 s4, s26, 1
    s_lshl_b32 s4, s4, 4
    v_add_u32 v4, s4, v2
    v_lshlrev_b32 v5, 9, v3
    v_lshl_add_u32 v15, v4, 4, v5
    v_lshl_add_u32 v14, v4, 3, v5
    s_mov_b64 exec, 0xffff""")
    spin_head(a, "L_F2POLL")
    a(f"""buffer_load_dword v8, v6, {WSR}, 0 offen sc1
    s_waitcnt vmcnt(0)
    v_cmp_ne_u32 vcc, 1, v8
    s_cbranch_vccz L_F2POLL_OK
    s_sleep {SLEEP}
    s_branch L_F2POLL
    L_F2POLL_OK:
    s_mov_b64 exec, -1""")
    OF, CWF, CAC = 40, 80, 120
    for ks in range(8):
        a(f"""s_add_u32 s3, s29, {ks*2048}
        buffer_load_dwordx4 {q4(OF+4*ks)}, v15, {WSR}, s3 offen sc1""")
    for ks in range(8, 10):
        for hh in range(2):
            r = OF + 4*ks + 2*hh
            a(f"buffer_load_dwordx2 v[{r}:{r+1}], v14, {WSR}, s33 offen offset:{(ks-8)*2048 + hh*256} sc1")
    a("s_barrier")
    a.stamp(9)
    a(f"""v_lshrrev_b32 v5, 1, v1
    v_and_b32 v6, 0x13, v5
    v_and_b32 v7, 4, v5
    v_lshl_or_b32 v6, v7, 1, v6
    v_and_b32 v7, 8, v5
    v_lshrrev_b32 v7, 1, v7
    v_or_b32 v19, v6, v7              ; kappa(lane>>1)
    s_lshl_b32 s30, s25, 3
    s_add_u32 s30, s30, s24           ; slice
    s_lshl_b32 s32, s20, 10""")
    def c_rd(ks):
        b = ks & 1; L = []
        for t in range(5):
            for h in range(2):
                r = CWF + 20*b + 4*t + 2*h
                L.append(f"ds_read_b64_tr_b16 v[{r}:{r+1}], v18 offset:{ks*5120 + h*1280 + 8*t}")
        return L
    for r in c_rd(0): a(r)
    for ks in range(10):
        a(f"s_waitcnt vmcnt({11-ks if ks < 8 else 2*(9-ks)}) lgkmcnt(0)")
        R = c_rd(ks + 1) if ks < 9 else []
        for t in range(5):
            for x in R[2*t:2*t+2]: a(x)
            d = CAC + 4*t; w = CWF + 20*(ks & 1) + 4*t
            a(f"v_mfma_f32_16x16x32_bf16 {q4(d)}, {q4(w)}, {q4(OF+4*ks)}, {'0' if ks == 0 else q4(d)}")
    GW = KL; RED = VL
    SB = 122880
    SURV = 0; WMAX = 8192; CNT = 8224; SELL = 8256
    RT = 153600 - SB
    XS = 57344; HR = 67712; XROW = 1296; ERED = 78080
    def gu_dma(L):
        a(f"""s_cmp_ge_u32 s25, 32
        s_cbranch_scc1 {L}
        s_mul_i32 s3, s30, 20480
        s_mul_i32 s4, s26, 5120
        s_add_u32 s3, s3, s4
        s_add_u32 s3, s3, {RP_OFF}
        s_add_u32 m0, s4, {GW}
        v_lshlrev_b32 v10, 4, v1""")
        for j in range(4): a(f"buffer_load_dwordx4 v10, {WSR}, s3 offen offset:{1024*j} sc1 lds")
        a(f"""s_add_u32 m0, s4, {GW + 4096}
        s_add_u32 s3, s3, 4096
        buffer_load_dwordx4 v10, {WSR}, s3 offen sc1 lds
        {L}:""")
    a(f"""s_mul_i32 s3, s26, 5120
    s_add_u32 s3, s3, {RED}
    v_lshl_add_u32 v4, v1, 4, s3
    s_cmp_ge_u32 s20, 4
    s_cbranch_scc0 L_CLO""")
    for t in range(5): a(f"ds_write_b128 v4, {q4(CAC+4*t)} offset:{1024*t}")
    a(f"""v_mov_b32 v20, 0
    v_mov_b32 v21, 0
    v_mov_b32 v22, 0
    v_mov_b32 v23, 0
    v_subrev_u32 v12, 256, v0
    v_lshlrev_b32 v12, 4, v12         ; t*16 (t=0..255)
    v_add_u32 v14, {SB}, v12
    ds_write_b128 v14, v[20:23] offset:{SURV}
    ds_write_b128 v14, v[20:23] offset:{SURV+4096}
    v_mov_b32 v13, {SB+CNT}
    ds_write_b32 v13, v20
    s_waitcnt lgkmcnt(0)
    s_barrier
    s_barrier""")
    gu_dma("L_GU1")
    a(f"s_mov_b32 s4, {KEY_OFF}\n s_mov_b32 s5, {KEY_OFF+4096}")
    spin_head(a, "L_KPOLL")
    a(f"""buffer_load_dwordx4 v[24:27], v12, {WSR}, s4 offen sc1
    buffer_load_dwordx4 v[28:31], v12, {WSR}, s5 offen sc1
    s_waitcnt vmcnt(0)
    v_max3_u32 v4, v24, v25, v26
    v_max3_u32 v5, v27, v28, v29
    v_max3_u32 v4, v4, v30, v31
    v_max_u32 v4, v4, v5
    v_cmp_eq_u32 vcc, -1, v4
    s_cbranch_vccz L_KPOLL_OK
    s_sleep {SLEEP}
    s_branch L_KPOLL
    L_KPOLL_OK:
    ds_write_b128 v14, v[24:27] offset:{RT}
    ds_write_b128 v14, v[28:31] offset:{RT+4096}
    v_lshrrev_b32 v6, 2, v12""")
    for i in range(8):
        off = 2047 - (i & 3) - 1024*(i >> 2)
        a(f"""v_ashrrev_i32 v4, 31, v{24+i}
        v_or_b32 v4, 0x80000000, v4
        v_xor_b32 v4, v4, v{24+i}
        v_and_b32 v4, 0xfffff800, v4
        v_sub_u32 v5, {off}, v6
        v_or_b32 v{40+i}, v4, v5""")
    a("""v_max_u32 v4, v40, v41
    v_max_u32 v5, v44, v45
    v_max3_u32 v4, v4, v42, v43
    v_max3_u32 v5, v5, v46, v47""")
    dpp_reduce(a, "v_max_u32", [4, 5])
    a(f"""s_lshl_b32 s3, s26, 3
    s_add_u32 s3, s3, {SB+WMAX}
    v_mov_b32 v6, s3
    s_mov_b32 exec_lo, 0
    s_mov_b32 exec_hi, 0x80000000
    ds_write_b64 v6, v[4:5]
    s_mov_b64 exec, -1
    s_waitcnt lgkmcnt(0)
    s_barrier
    v_mov_b32 v5, {SB+WMAX}
    ds_read_b128 v[48:51], v5
    ds_read_b128 v[52:55], v5 offset:16
    v_mov_b32 v6, 1
    s_waitcnt lgkmcnt(0)
    v_min3_u32 v48, v48, v49, v50
    v_min3_u32 v52, v52, v53, v54
    v_min3_u32 v48, v48, v51, v55
    v_min_u32 v48, v48, v52""")
    for i in range(8):
        a(f"""v_cmp_ge_u32 s[{40+2*i}:{41+2*i}], v{40+i}, v48
        s_mov_b64 exec, s[{40+2*i}:{41+2*i}]
        ds_add_rtn_u32 v{50+i}, v13, v6
        s_mov_b64 exec, -1""")
    a(f"s_mov_b32 s3, {SB}\n s_waitcnt lgkmcnt(0)")
    for i in range(8):
        a(f"""v_lshl_add_u32 v{50+i}, v{50+i}, 2, s3
        s_mov_b64 exec, s[{40+2*i}:{41+2*i}]
        ds_write_b32 v{50+i}, v{40+i} offset:{SURV}
        s_mov_b64 exec, -1""")
    a(f"""s_waitcnt lgkmcnt(0)
    s_barrier
    ds_read_b32 v4, v13
    v_lshrrev_b32 v5, 2, v12
    v_add_u32 v5, {SB}, v5
    s_waitcnt lgkmcnt(0)
    v_readfirstlane_b32 s4, v4
    s_lshl_b32 s5, s26, 6
    L_OUTER:
    s_cmp_ge_u32 s5, s4
    s_cbranch_scc1 L_SELDONE
    ds_read_b32 v6, v5 offset:{SURV}
    v_mov_b32 v7, 0
    v_mov_b32 v8, {SB+SURV}
    s_mov_b32 s6, 0
    L_INNER:
    ds_read_b128 v[44:47], v8
    ds_read_b128 v[48:51], v8 offset:16
    v_add_u32 v8, 32, v8
    s_add_u32 s6, s6, 8
    s_waitcnt lgkmcnt(0)""")
    for i in range(8):
        a(f"v_cmp_gt_u32 vcc, v{44+i}, v6\n v_addc_co_u32 v7, vcc, 0, v7, vcc")
    a(f"""s_cmp_lt_u32 s6, s4
    s_cbranch_scc1 L_INNER
    v_cmp_gt_u32 vcc, 8, v7
    v_and_b32 v6, 0x7ff, v6
    v_sub_u32 v6, 2047, v6
    v_lshl_add_u32 v7, v7, 2, s3
    s_and_saveexec_b64 s[6:7], vcc
    ds_write_b32 v7, v6 offset:{SELL}
    s_mov_b64 exec, -1
    v_add_u32 v5, 1024, v5
    s_add_u32 s5, s5, 256
    s_branch L_OUTER""")
    a("L_CLO:")
    a("v_mov_b32 v8, 0")
    for i in range(5):
        a(f"""v_lshlrev_b32 v5, 16, v{WRS+i}
        v_and_b32 v6, 0xffff0000, v{WRS+i}
        v_add_f32 v8, v8, v5
        v_add_f32 v8, v8, v6""")
    dpp_reduce(a, "v_add_f32", [8])
    a("v_readlane_b32 s36, v8, 63\n s_barrier")
    for t in range(5): a(f"ds_read_b128 {q4(CWF+4*t)}, v4 offset:{1024*t}")
    a("""v_mov_b32 v40, 0
    v_mov_b32 v41, 0
    v_mov_b32 v42, 0
    v_mov_b32 v43, 0
    s_waitcnt lgkmcnt(0)""")
    for t in range(5):
        d = CAC + 4*t
        for r in range(4): a(f"v_add_f32 v{d+r}, v{d+r}, v{CWF+4*t+r}")
        for k in range(2):
            x = XR + 2*t + k; w = WR + 2*t + k
            lo, hi = d + 2*k, d + 2*k + 1
            a(f"""v_cvt_pk_bf16_f32 v8, v{lo}, v{hi}
            v_lshlrev_b32 v{lo}, 16, v8
            v_and_b32 v{hi}, 0xffff0000, v8
            v_lshlrev_b32 v8, 16, v{x}
            v_and_b32 v{x}, 0xffff0000, v{x}
            v_add_f32 v{lo}, v{lo}, v8
            v_add_f32 v{hi}, v{hi}, v{x}
            v_cvt_pk_bf16_f32 v{x}, v{lo}, v{hi}
            v_min_u32 v{x}, -2, v{x}
            v_lshlrev_b32 v{lo}, 16, v{x}
            v_and_b32 v{hi}, 0xffff0000, v{x}
            v_lshlrev_b32 v8, 16, v{w}
            v_and_b32 v{w}, 0xffff0000, v{w}
            v_add_f32 v40, v40, v{lo}
            v_fmac_f32 v41, v{lo}, v{lo}
            v_fmac_f32 v42, v{lo}, v8
            v_add_f32 v40, v40, v{hi}
            v_fmac_f32 v41, v{hi}, v{hi}
            v_fmac_f32 v42, v{hi}, v{w}""")
    xg_sum(a, [40, 41, 42], [44, 45, 46])
    a(f"""v_min_u32 v40, -2, v40
    v_min_u32 v41, -2, v41
    v_min_u32 v42, -2, v42
    s_lshl_b32 s3, s23, 13
    s_lshl_b32 s4, s26, 8
    s_add_u32 s3, s3, s4
    s_add_u32 s37, s3, {PART_OFF}
    s_lshl_b32 s4, s24, 10
    s_add_u32 s4, s4, s37
    s_add_u32 s38, s37, 4096
    v_lshlrev_b32 v4, 4, v2
    s_mov_b64 exec, 0xffff
    buffer_store_dwordx4 v[40:43], v4, {WSR}, s4 offen sc1
    s_mov_b64 exec, -1
    v_lshl_add_u32 v4, v3, 10, v4
    s_mul_i32 s3, s26, 5120
    s_add_u32 s3, s3, {RED}
    v_mul_u32_u24 v5, 160, v2
    v_mul_u32_u24 v6, 40, v3
    v_add3_u32 v12, v5, v6, s3
    v_lshl_add_u32 v13, v1, 4, s3""")
    for k in range(5): a(f"ds_write_b64 v12, v[{XR+2*k}:{XR+2*k+1}] offset:{8*k}")
    a(f"""s_lshl_b32 s3, s23, 3
    s_add_u32 s3, s3, s24
    s_mul_i32 s3, s3, 10240
    s_mul_i32 s5, s26, 2560
    s_add_u32 s3, s3, s5
    s_add_u32 s28, s3, {H_OFF}
    v_lshlrev_b32 v7, 4, v1
    s_waitcnt lgkmcnt(0)
    ds_read_b128 v[52:55], v13
    ds_read_b128 v[56:59], v13 offset:1024
    ds_read_b128 v[60:63], v13 offset:2048
    s_waitcnt lgkmcnt(0)
    buffer_store_dwordx4 v[52:55], v7, {WSR}, s28 offen sc1
    buffer_store_dwordx4 v[56:59], v7, {WSR}, s28 offen offset:1024 sc1
    s_mov_b32 exec_hi, 0
    buffer_store_dwordx4 v[60:63], v7, {WSR}, s28 offen offset:2048 sc1
    s_mov_b64 exec, -1""")
    a.stamp(10)
    spin_head(a, "L_PPOLL")
    a(f"""buffer_load_dwordx4 v[44:47], v4, {WSR}, s37 offen sc1
    buffer_load_dwordx4 v[48:51], v4, {WSR}, s38 offen sc1
    s_waitcnt vmcnt(0)
    v_max3_u32 v5, v44, v45, v46
    v_max3_u32 v6, v48, v49, v50
    v_max_u32 v5, v5, v6
    v_cmp_eq_u32 vcc, -1, v5
    s_cbranch_vccz L_PPOLL_OK
    s_sleep {SLEEP}
    s_branch L_PPOLL
    L_PPOLL_OK:
    v_add_f32 v40, v44, v48
    v_add_f32 v41, v45, v49
    v_add_f32 v42, v46, v50""")
    xg_sum(a, [40, 41, 42], [44, 45, 46])
    ln_scalars(a, 40, 41)
    a(f"""v_fma_f32 v42, -v40, s36, v42
    v_mul_f32 v42, v42, v41
    v_min_u32 v42, -2, v42
    v_lshlrev_b32 v4, 2, v9
    s_mov_b32 s4, {KEY_OFF}
    s_cmp_lg_u32 s24, 0
    s_cbranch_scc1 L_NOKEY
    s_mov_b64 exec, 0xffff
    buffer_store_dword v42, v4, {WSR}, s4 offen sc1
    s_mov_b64 exec, -1
    L_NOKEY:""")
    a("s_barrier")
    for i in range(10):
        norm_pair(a, WR + i, XR + i, "v40", "v41", 4, 5)
        add_pairs(a, WR + i, WR + i, XR + i, 4, 5, 6)
    a("s_barrier\n s_barrier")
    a("L_SELDONE:")
    for i in range(5):
        a(f"""v_add_u32 v4, {64*i}, v1
        v_mul_u32_u24 v5, 1639, v4
        v_lshrrev_b32 v5, 16, v5
        v_mul_u32_u24 v5, {10240 - 160}, v5
        v_lshl_add_u32 v{64+i}, v4, 2, v5""")
    a(f"""s_waitcnt vmcnt(0) lgkmcnt(0)
    s_barrier""")
    a.stamp(11)
    a(f"""v_mov_b32 v5, {SB+SELL}
    ds_read_b128 v[44:47], v5
    ds_read_b128 v[48:51], v5 offset:16
    s_lshl_b32 s3, s20, 2
    s_add_u32 s3, s3, {SB}
    v_mov_b32 v5, s3
    ds_read_b32 v4, v5 offset:{SELL}
    v_lshlrev_b32 v14, 2, v1
    s_waitcnt lgkmcnt(0)
    v_readfirstlane_b32 s4, v4
    s_lshr_b32 s5, s4, 6
    s_mul_i32 s5, s5, 81920
    s_and_b32 s4, s4, 63
    s_mul_i32 s4, s4, 160
    s_add_u32 s4, s4, s5
    s_add_u32 s4, s4, {H_OFF}""")
    spin_head(a, "L_RPOLL")
    for i in range(5): a(f"buffer_load_dword v{52+i}, v{64+i}, {WSR}, s4 offen sc1")
    a(f"""s_waitcnt vmcnt(0)
    v_max3_u32 v5, v52, v53, v54
    v_max3_u32 v5, v5, v55, v56
    v_cmp_eq_u32 vcc, -1, v5
    s_cbranch_vccz L_RPOLL_OK
    s_sleep {SLEEP}
    s_branch L_RPOLL
    L_RPOLL_OK:
    v_mov_b32 v6, 0
    v_mov_b32 v7, 0""")
    for i in range(5):
        a(f"""v_lshlrev_b32 v4, 16, v{52+i}
        v_and_b32 v5, 0xffff0000, v{52+i}
        v_add_f32 v6, v6, v4
        v_fmac_f32 v7, v4, v4
        v_add_f32 v6, v6, v5
        v_fmac_f32 v7, v5, v5""")
    dpp_reduce(a, "v_add_f32", [6, 7])
    ln_scalars(a, 6, 7)
    a(f"""v_readlane_b32 s5, v6, 63
    v_readlane_b32 s6, v7, 63
    s_mul_i32 s3, s20, {XROW}
    s_add_u32 s3, s3, {XS}
    v_add_u32 v8, s3, v14""")
    for i in range(5):
        norm_pair(a, 57 + i, 52 + i, "s5", "s6", 4, 5)
        a(f"ds_write_b32 v8, v{57+i} offset:{256*i}\n ds_write_b32 v8, v{52+i} offset:{HR - XS + 256*i}")
    a(f"""v_bfe_u32 v6, v1, 2, 2
    v_and_b32 v7, 1, v3
    v_lshl_or_b32 v6, v7, 2, v6
    v_lshrrev_b32 v7, 1, v3
    v_lshl_or_b32 v6, v7, 4, v6
    v_lshlrev_b32 v6, 5, v6
    v_and_b32 v7, 3, v1
    v_lshl_add_u32 v11, v7, 3, v6
    s_waitcnt lgkmcnt(0)
    s_barrier""")
    srd(a, 8, P_OUT, 2621440)
    a("s_cmp_ge_u32 s20, 4\n s_cbranch_scc1 L_NOOUT")
    for i in range(8):
        a(f"v_cmp_ne_u32 vcc, v{44+i}, v9\n s_and_b64 exec, exec, vcc")
    a(f"""s_cbranch_execz L_OUTD
    buffer_store_dwordx4 v[{WR}:{WR+3}], v16, s[8:11], 0 offen
    buffer_store_dwordx4 v[{WR+4}:{WR+7}], v16, s[8:11], 0 offen offset:16
    buffer_store_dwordx2 v[{WR+8}:{WR+9}], v16, s[8:11], 0 offen offset:32
    L_OUTD:
    s_mov_b64 exec, -1
    L_NOOUT:
    s_cmp_ge_u32 s25, 32
    s_cbranch_scc1 L_E
    s_cmp_lg_u32 s20, 7
    s_cbranch_scc1 L_END""")
    DW, DX = 64, 144
    a(f"""v_and_b32 v4, 7, v2
    v_mul_u32_u24 v4, {XROW}, v4
    v_lshl_add_u32 v4, v3, 4, v4
    v_add_u32 v4, {XS}, v4
    v_add_u32 v11, {GW}, v11""")
    for ks in range(20):
        for h in range(2):
            r = DW + 4*ks + 2*h
            a(f"ds_read_b64_tr_b16 v[{r}:{r+1}], v11 offset:{ks*1024 + h*256}")
        a(f"ds_read_b128 {q4(DX+4*ks)}, v4 offset:{64*ks}")
    for ks in range(20):
        a(f"s_waitcnt lgkmcnt({min(15, 3*(19-ks))})")
        a(f"v_mfma_f32_16x16x32_bf16 v[16:19], {q4(DW+4*ks)}, {q4(DX+4*ks)}, {'0' if ks == 0 else 'v[16:19]'}")
    for r in range(4):
        rb16(a, 16 + r)
        a(f"v_mov_b32 v{20+r}, v{16+r}")
    for r in range(4): a(f"v_permlane32_swap_b32 v{16+r}, v{20+r}")
    for r in range(4):
        a(f"""v_mul_f32 v24, 0xbfb8aa3b, v{16+r}
        v_exp_f32 v24, v24
        v_add_f32 v24, 1.0, v24
        v_rcp_f32 v24, v24
        v_mul_f32 v{16+r}, v{16+r}, v24""")
        rb16(a, 16 + r)
        a(f"v_mul_f32 v{16+r}, v{16+r}, v{20+r}")
    a(f"""v_cvt_pk_bf16_f32 v16, v16, v17
    v_cvt_pk_bf16_f32 v17, v18, v19
    v_min_u32 v16, -2, v16
    v_min_u32 v17, -2, v17
    v_mov_b32 v18, v16
    v_mov_b32 v19, v17
    v_lshlrev_b32 v4, 4, v2
    v_permlane16_swap_b32 v16, v18
    v_permlane16_swap_b32 v17, v19
    s_lshl_b32 s3, s30, 7
    s_add_u32 s3, s3, {ACT_OFF}
    s_mov_b64 exec, 0xff
    buffer_store_dwordx4 v[16:19], v4, {WSR}, s3 offen sc1
    s_branch L_END""")
    a(f"""L_E:
    s_sub_u32 s30, s30, 256
    s_lshl_b32 s30, s30, 5
    v_mul_u32_u24 v6, 1280, v19
    v_and_b32 v7, 1, v1
    v_lshl_add_u32 v6, v7, 4, v6
    v_add_u32 v10, s30, v6
    s_add_u32 s32, s32, {WOL}
    s_mul_i32 s33, s20, {32*1280}""")
    srd(a, 12, P_D, 2211840)
    for j in range(7):
        a(f"""s_add_u32 m0, s32, {8192*j}
        s_add_u32 s3, s33, {8*32*1280*j}
        buffer_load_dwordx4 v10, s[12:15], s3 offen lds""")
    srd(a, 12, P_WS, ACT_OFF + 27648)
    AF, EW = 64, 96
    a(f"""v_and_b32 v4, 7, v2
    v_lshlrev_b32 v12, 4, v4
    v_lshl_add_u32 v12, v3, 7, v12
    s_lshl_b32 s4, s20, 9
    s_add_u32 s4, s4, {ACT_OFF}
    v_add_u32 v11, s32, v11
    s_waitcnt vmcnt(0)""")
    for j in range(7):
        for h in range(2):
            r = EW + 4*j + 2*h
            a(f"ds_read_b64_tr_b16 v[{r}:{r+1}], v11 offset:{8192*j + h*256}")
    a(f"""s_mov_b32 s6, {SB}
    v_lshl_add_u32 v5, v4, 2, s6
    ds_read_b32 v13, v5 offset:{SELL}
    v_mul_u32_u24 v5, {XROW}, v4
    v_lshl_add_u32 v5, v3, 3, v5
    s_add_u32 s3, s30, {XS}
    v_add_u32 v5, s3, v5
    ds_read_b64 v[20:21], v5
    ds_read_b64 v[22:23], v5 offset:{HR - XS}
    s_waitcnt lgkmcnt(0)
    v_lshl_add_u32 v5, v13, 2, s6
    ds_read_b32 v15, v5 offset:{RT}
    v_mul_u32_u24 v13, 1280, v13
    v_lshl_add_u32 v13, v3, 3, v13
    v_add_u32 v13, s30, v13
    s_waitcnt lgkmcnt(0)""")
    rb16(a, 15)
    a("""v_mul_f32 v15, 0xbfb8aa3b, v15
    v_exp_f32 v15, v15
    v_add_f32 v15, 1.0, v15
    v_rcp_f32 v15, v15""")
    rb16(a, 15)
    spin_head(a, "L_APOLL")
    for j in range(7):
        a(f"s_add_u32 s5, s4, {4096*j}\n buffer_load_dwordx4 {q4(AF+4*j)}, v12, s[12:15], s5 offen sc1")
    a(f"s_waitcnt vmcnt(0)\n v_max_u32 v5, v{AF}, v{AF+1}")
    for k in range(1, 14): a(f"v_max3_u32 v5, v5, v{AF+2*k}, v{AF+2*k+1}")
    a("v_cmp_eq_u32 vcc, -1, v5"); spin_tail(a, "L_APOLL")
    for j in range(7):
        a(f"v_mfma_f32_16x16x32_bf16 v[24:27], {q4(EW+4*j)}, {q4(AF+4*j)}, {'0' if j == 0 else 'v[24:27]'}")
    a(f"""s_lshl_b32 s3, s20, 10
    s_add_u32 s3, s3, {ERED}
    v_lshl_add_u32 v4, v1, 4, s3
    ds_write_b128 v4, v[24:27]
    s_waitcnt lgkmcnt(0)
    s_barrier
    s_cmp_lg_u32 s20, 0
    s_cbranch_scc1 L_END""")
    for w in range(1, 8): a(f"ds_read_b128 {q4(28+4*w)}, v4 offset:{1024*w}")
    a("s_waitcnt lgkmcnt(0)")
    for w in range(1, 8):
        for r in range(4): a(f"v_add_f32 v{24+r}, v{24+r}, v{28+4*w+r}")
    for r in range(4):
        rb16(a, 24 + r)
        a(f"v_mul_f32 v{24+r}, v{24+r}, v15")
    a("v_cvt_pk_bf16_f32 v24, v24, v25\n v_cvt_pk_bf16_f32 v25, v26, v27")
    for k in range(2):
        add_pairs(a, 24 + k, 24 + k, 20 + k, 4, 5, 6)
        add_pairs(a, 24 + k, 24 + k, 22 + k, 4, 5, 6)
    a("""s_mov_b32 exec_lo, 0x00ff00ff
    s_mov_b32 exec_hi, 0x00ff00ff
    buffer_store_dwordx2 v[24:25], v13, s[8:11], 0 offen
    L_END:""")
    if PROF:
        a("s_mov_b64 exec, -1\n s_waitcnt vmcnt(0)")
        a.stamp(12)
        for i in range(16): a(f"v_mov_b32 v{8+i}, s{88+i}" if i < 13 else f"v_mov_b32 v{8+i}, 0")
        a(f"""s_lshl_b32 s3, s2, 9
        s_add_u32 s3, s3, {PROF_OFF}
        s_lshl_b32 s4, s20, 6
        s_add_u32 s3, s3, s4
        v_mov_b32 v4, s3
        s_mov_b64 exec, 1""")
        for i in range(4): a(f"global_store_dwordx4 v4, {q4(8+4*i)}, s[{P_WS}:{P_WS+1}] offset:{16*i}")
    a("L_EXIT:\n s_endpgm")

def build():
    a = PAsm()
    kernel(a)
    name = NAME + "_kernel"
    L = ["; @launch grid=(256,1,1) block=(512,1,1) lds=163840",
         '.amdgcn_target "amdgcn-amd-amdhsa--gfx950"', ".text", f".globl {name}", ".p2align 8",
         f".type {name},@function", f"{name}:", a.render(), "CODE_END:", "s_endpgm",
         '.section .rodata,"a"', ".p2align 6", f".amdhsa_kernel {name}", "  .amdhsa_next_free_vgpr 256",
         "  .amdhsa_next_free_sgpr 102", "  .amdhsa_accum_offset 256", "  .amdhsa_group_segment_fixed_size 0",
         "  .amdhsa_kernarg_size 88", "  .amdhsa_user_sgpr_count 2", "  .amdhsa_user_sgpr_kernarg_segment_ptr 1",
         "  .amdhsa_system_sgpr_workgroup_id_x 1", ".end_amdhsa_kernel"]
    return "\n".join(L) + "\n"

def check_ws(w, im, cmp, tof):
    import numpy as np
    qkv = im["qkv"]
    k = tof(w[K_OFF:K_OFF + 16*64*T32].view(np.uint16)).reshape(16, 64, 5, 32, 8).transpose(1, 3, 0, 2, 4).reshape(2048, 640)
    cmp("k", k, qkv[:, 640:1280])
    v = tof(w[V_OFF:V_OFF + 16*64*T32].view(np.uint16)).reshape(16, 256, 40, 8).transpose(1, 3, 0, 2).reshape(2048, 640)
    cmp("v", v, qkv[:, 1280:])
    ob = w[O_OFF:O_OFF + 64*40960].reshape(64, 40960)
    om = tof(np.ascontiguousarray(ob[:, :32768]).view(np.uint16)).reshape(64, 32, 2, 32, 8).transpose(0, 3, 1, 2, 4).reshape(2048, 32, 16)
    oq = tof(np.ascontiguousarray(ob[:, 32768:]).view(np.uint16)).reshape(64, 32, 32, 4).transpose(0, 2, 1, 3).reshape(2048, 32, 4)
    o = np.concatenate([om, oq], axis=2).reshape(2048, 640)
    cmp("o", o, im["o"])
    h = tof(w[H_OFF:H_OFF + 2048*1280].view(np.uint16)).reshape(32, 8, 64, 80).transpose(0, 2, 1, 3).reshape(2048, 640)
    cmp("h", h, im["h"])
    r = w[KEY_OFF:KEY_OFF + 8192].view(np.float32)
    cmp("r", r, im["r"])

if __name__ == "__main__":
    PROF = "prof" in sys.argv
    if "cyc" in sys.argv: TIMER = "s_memtime"
    out = sys.argv[1] if len(sys.argv) > 1 else f"cdna_kernels/{NAME}.s"
    txt = build()
    open(out, "w").write(txt)
    print("wrote", out, len(txt))
```

```python
import sys, struct
from asmlib import Asm

NAME = "sequential_preLN__sliding_block__moe_arch_mod__prompt"
K_OFF = 0; V_OFF = 0x280000; O_OFF = 0x500000; H_OFF = 0x780000
PART_OFF = 0xA00000; F1_OFF = 0xA40000; F2_OFF = 0xA48000; KEY_OFF = 0xA50000; ACT_OFF = 0xA52000
RP_OFF = 0xA60000
WS_SIZE = 0xA60000 + 27*8*20480
PROF_OFF = 0xF00000
T32 = 2560
PROF = False
TIMER = "s_memrealtime"
SPIN_MAX = 1 << 20

def f2u(x): return struct.unpack("<I", struct.pack("<f", x))[0]
QSCALE = f2u((20 ** -0.5) * 1.4426950408889634)
EPS = f2u(1e-5)
INV640 = f2u(1.0 / 640)
P_X, P_WQKV, P_WO, P_WR, P_G, P_U, P_D, P_OUT, P_DBG, P_WS = 64, 66, 68, 72, 74, 76, 78, 80, 82, 84
WSR = "s[16:19]"

class PAsm(Asm):
    def stamp(self, i):
        if PROF:
            assert i < 13
            self(f"{TIMER} s[86:87]\n s_waitcnt lgkmcnt(0)\n s_mov_b32 s{88+i}, s86")

def srd(a, d, lo, size):
    a(f"""s_mov_b32 s{d}, s{lo}
    s_and_b32 s{d+1}, s{lo+1}, 0xffff
    s_mov_b32 s{d+2}, {size}
    s_mov_b32 s{d+3}, 0x00020000""")

def rb16(a, v):
    a(f"v_cvt_pk_bf16_f32 v{v}, v{v}, v{v}\n v_lshlrev_b32 v{v}, 16, v{v}")

def ln_scalars(a, s1, s2):
    a(f"""v_mul_f32 v{s1}, {INV640:#x}, v{s1}
    v_mul_f32 v{s2}, {INV640:#x}, v{s2}
    v_fma_f32 v{s2}, -v{s1}, v{s1}, v{s2}
    v_max_f32 v{s2}, 0, v{s2}""")
    rb16(a, s1); rb16(a, s2)
    a(f"v_add_f32 v{s2}, {EPS:#x}, v{s2}")
    rb16(a, s2)
    a(f"v_sqrt_f32 v{s2}, v{s2}")
    rb16(a, s2)
    a(f"v_rcp_f32 v{s2}, v{s2}")

def dpp_reduce(a, op, regs):
    for sh in (1, 2, 4, 8):
        for v in regs: a(f"{op}_dpp v{v}, v{v}, v{v} row_shr:{sh} row_mask:0xf bank_mask:0xf")
    for v in regs: a(f"{op}_dpp v{v}, v{v}, v{v} row_bcast:15 row_mask:0xa bank_mask:0xf")
    for v in regs: a(f"{op}_dpp v{v}, v{v}, v{v} row_bcast:31 row_mask:0xc bank_mask:0xf")

def xg_sum(a, regs, tmps):
    for x, t in zip(regs, tmps): a(f"v_mov_b32 v{t}, v{x}")
    for x, t in zip(regs, tmps): a(f"v_permlane16_swap_b32 v{x}, v{t}")
    for x, t in zip(regs, tmps): a(f"v_add_f32 v{x}, v{x}, v{t}")
    for x, t in zip(regs, tmps): a(f"v_mov_b32 v{t}, v{x}")
    for x, t in zip(regs, tmps): a(f"v_permlane32_swap_b32 v{x}, v{t}")
    for x, t in zip(regs, tmps): a(f"v_add_f32 v{x}, v{x}, v{t}")

def norm_pair(a, d, x, m, rs, t0, t1):
    a(f"""v_lshlrev_b32 v{t0}, 16, v{x}
    v_and_b32 v{t1}, 0xffff0000, v{x}
    v_subrev_f32 v{t0}, {m}, v{t0}
    v_subrev_f32 v{t1}, {m}, v{t1}
    v_cvt_pk_bf16_f32 v{d}, v{t0}, v{t1}
    v_lshlrev_b32 v{t0}, 16, v{d}
    v_and_b32 v{t1}, 0xffff0000, v{d}
    v_mul_f32 v{t0}, {rs}, v{t0}
    v_mul_f32 v{t1}, {rs}, v{t1}
    v_cvt_pk_bf16_f32 v{d}, v{t0}, v{t1}""")

def add_pairs(a, d, x, y, t0, t1, t2):
    a(f"""v_lshlrev_b32 v{t0}, 16, v{x}
    v_lshlrev_b32 v{t1}, 16, v{y}
    v_add_f32 v{t0}, v{t0}, v{t1}
    v_and_b32 v{t1}, 0xffff0000, v{x}
    v_and_b32 v{t2}, 0xffff0000, v{y}
    v_add_f32 v{t1}, v{t1}, v{t2}
    v_cvt_pk_bf16_f32 v{d}, v{t0}, v{t1}""")

def q4(r): return f"v[{r}:{r+3}]"
def r16(x): return f"v[{x}:{x+15}]"
M40 = ("s_mov_b32 exec_lo, -1\n s_mov_b32 exec_hi, 0xff", "s_mov_b64 exec, -1")

def spin_head(a, L):
    a(f"s_mov_b32 s3, 0\n {L}:\n s_add_u32 s3, s3, 1\n s_cmp_gt_u32 s3, {SPIN_MAX}\n s_cbranch_scc1 L_END")

def spin_tail(a, L):
    a(f"s_cbranch_vccz {L}_OK\n s_sleep {SLEEP}\n s_branch {L}\n {L}_OK:")

def touch(a, n, voff_code, ptr, L, fl=""):
    a(voff_code)
    a(f"""s_and_saveexec_b64 s[6:7], vcc
    s_cbranch_execz {L}
    global_load_dword v{n}, v4, s[{ptr}:{ptr+1}] {fl}
    {L}:
    s_mov_b64 exec, -1""")

def div_lane(a, dst_q, dst_r, src, d):
    magic = (65536 + d - 1) // d
    a(f"""v_mul_u32_u24 v{dst_q}, {magic}, v{src}
    v_lshrrev_b32 v{dst_q}, 16, v{dst_q}
    v_mul_u32_u24 v{dst_r}, {d}, v{dst_q}
    v_sub_u32 v{dst_r}, v{src}, v{dst_r}""")

XST = 102400
SCR = 153600
WQL = 0
CS2 = 51200
QEX = 52224
GUL = 62464
KL = 102400; VL = 133120
WOL = 0
SLEEP = 2
F1STEP = 8

def kernel(a):
    if PROF:
        for i in range(13): a(f"s_mov_b32 s{88+i}, 0")
    a.stamp(0)
    a(f"""s_load_dwordx16 s[64:79], s[0:1], 0
    s_load_dwordx4 s[80:83], s[0:1], 64
    s_load_dwordx2 s[84:85], s[0:1], 80
    s_getpc_b64 s[4:5]
    CODE_START:
    s_cmp_ge_u32 s2, 256
    s_cbranch_scc1 L_EXIT
    s_lshr_b32 s25, s2, 3             ; idx
    s_lshl_b32 s3, s25, 7
    v_lshl_add_u32 v4, v0, 12, s3
    v_cmp_gt_u32 vcc, CODE_END-CODE_START, v4
    s_and_saveexec_b64 s[6:7], vcc
    s_cbranch_execz L_NOPF
    global_load_dword v250, v4, s[4:5]
    L_NOPF:
    s_mov_b64 exec, -1
    v_and_b32 v1, 63, v0
    v_lshrrev_b32 v4, 6, v0
    v_and_b32 v2, 15, v0
    v_readfirstlane_b32 s20, v4
    v_lshrrev_b32 v3, 4, v1
    s_and_b32 s26, s25, 3
    s_lshr_b32 s22, s25, 2           ; s local
    s_mul_i32 s27, s26, 5
    s_lshr_b32 s27, s27, 1
    s_add_u32 s27, s27, s22
    s_bfe_u32 s21, s2, 0x20001       ; xcd>>1
    s_add_u32 s27, s27, s21
    s_cmp_ge_u32 s27, 10
    s_cselect_b32 s28, 10, 0
    s_sub_u32 s27, s27, s28          ; rot
    s_lshl_b32 s21, s21, 2
    s_add_u32 s21, s21, s26          ; rb
    s_and_b32 s26, s2, 1
    s_lshl_b32 s26, s26, 3
    s_add_u32 s22, s22, s26          ; s / hp
    s_and_b32 s23, s2, 7
    s_lshl_b32 s23, s23, 2
    s_lshr_b32 s26, s25, 3
    s_add_u32 s23, s23, s26          ; rb2
    s_and_b32 s24, s25, 7            ; cs
    s_and_b32 s3, s2, 7
    s_min_u32 s4, s3, 5
    s_sub_u32 s25, s23, s4
    s_cmp_eq_u32 s26, 3
    s_cselect_b32 s4, s3, 7
    s_add_u32 s3, s3, 32
    s_cmp_lt_u32 s4, 5
    s_cselect_b32 s25, s3, s25       ; s25 = role
    s_lshl_b32 s28, s27, 7
    s_mul_i32 s29, s27, 245760
    s_mov_b32 s62, s29
    s_lshl_b32 s26, s21, 7
    s_lshl_b32 s3, s20, 4
    s_add_u32 s26, s26, s3
    v_lshrrev_b32 v4, 3, v1
    v_add_u32 v4, s26, v4
    v_mul_u32_u24 v4, 1280, v4
    v_and_b32 v5, 7, v1
    v_xor_b32 v5, v5, v3
    v_lshl_add_u32 v10, v5, 4, v4
    v_xor_b32 v180, 64, v10
    v_add_u32 v180, 10240, v180""")
    div_lane(a, 4, 5, 1, 10)
    a(f"""s_and_b32 s3, s20, 1
    s_lshl_b32 s3, s3, 2
    s_lshr_b32 s26, s20, 1
    s_lshl_b32 s26, s26, 4
    s_add_u32 s3, s3, s26
    s_lshr_b32 s4, s26, 2
    s_add_u32 s4, s4, s3              ; 20(w>>1)+4(w&1)
    v_add_u32 v181, s4, v4
    v_mul_u32_u24 v181, 1280, v181
    s_mul_i32 s4, s3, 5
    s_add_u32 s4, s4, 16              ; 20*((w&1)+4(w>>1)) + 16
    v_add_u32 v183, s4, v4
    v_mul_u32_u24 v183, 1280, v183
    v_add_u32 v4, s3, v4
    v_mul_u32_u24 v4, 3840, v4
    v_lshl_add_u32 v4, v5, 4, v4
    v_lshl_add_u32 v181, v5, 4, v181
    v_lshl_add_u32 v183, v5, 4, v183
    s_mul_i32 s3, s22, 160
    s_add_u32 s3, s3, 1280
    v_add_u32 v11, s3, v4
    s_mul_i32 s3, s24, 160
    v_add_u32 v181, s3, v181
    v_add_u32 v183, s3, v183
    s_mul_i32 s30, s20, 6144
    s_add_u32 s30, s30, {XST}
    s_mul_i32 s31, s20, 1280
    v_mov_b32 v24, -1
    v_mov_b32 v25, -1
    v_mov_b32 v26, -1
    v_mov_b32 v27, -1
    s_lshl_b32 s3, s23, 3
    s_add_u32 s3, s3, s24
    s_lshl_b32 s3, s3, 10
    s_add_u32 s3, s3, {PART_OFF}
    v_lshl_add_u32 v6, v1, 4, s3
    s_lshl_b32 s4, s22, 4
    s_add_u32 s4, s4, s21
    s_lshl_b32 s4, s4, 7
    s_add_u32 s60, s4, {F1_OFF}
    s_lshl_b32 s5, s21, 4
    s_add_u32 s5, s5, s22
    s_lshl_b32 s5, s5, 7
    s_add_u32 s61, s5, {F2_OFF}
    s_lshl_b32 s6, s2, 7
    s_add_u32 s6, s6, {ACT_OFF}
    s_lshl_b32 s7, s2, 5
    s_add_u32 s7, s7, {KEY_OFF}
    v_lshrrev_b32 v7, 3, v1
    v_mov_b32 v8, s60
    v_mov_b32 v9, s61
    v_cmp_eq_u32 vcc, 1, v7
    v_cndmask_b32 v8, v8, v9, vcc
    v_mov_b32 v9, s6
    v_cmp_eq_u32 vcc, 2, v7
    v_cndmask_b32 v8, v8, v9, vcc
    v_mov_b32 v9, s7
    v_cmp_eq_u32 vcc, 3, v7
    v_cndmask_b32 v8, v8, v9, vcc
    v_and_b32 v7, 7, v1
    v_lshl_add_u32 v8, v7, 4, v8
    s_waitcnt lgkmcnt(0)""")
    a.stamp(1)
    srd(a, 8, P_X, 2621440)
    srd(a, 12, P_WQKV, 2457600)
    srd(a, 16, P_WS, WS_SIZE)
    a(f"""s_cmp_lg_u32 s20, 0
    s_cbranch_scc1 L_NOCLR
    buffer_store_dwordx4 v[24:27], v6, {WSR}, 0 offen sc1
    s_mov_b64 exec, 0x3ffffff
    buffer_store_dwordx4 v[24:27], v8, {WSR}, 0 offen sc1
    s_mov_b64 exec, -1
    L_NOCLR:""")
    def dmaA(i):
        slot = i % 3
        a(f"""s_add_u32 m0, s30, {slot*2048}
        s_add_u32 s3, s29, 30720
        buffer_load_dwordx4 v10, s[8:11], s28 offen lds
        s_add_u32 m0, s30, {slot*2048 + 1024}
        s_nop 0
        buffer_load_dwordx4 v180, s[8:11], s28 offen lds
        s_add_u32 m0, s31, {i*10240}
        {M40[0]}
        buffer_load_dwordx4 v11, s[12:15], s29 offen lds
        s_add_u32 m0, s31, {i*10240 + 640}
        s_add_u32 s28, s28, 128
        buffer_load_dwordx4 v11, s[12:15], s3 offen lds
        {M40[1]}
        s_add_u32 s29, s29, 245760
        s_cmp_ge_u32 s28, 1280
        s_cselect_b32 s28, 0, s28
        s_cselect_b32 s29, 0, s29""")
    dmaA(0); a("s_barrier"); dmaA(1); a("s_barrier"); dmaA(2)
    a(f"""v_lshrrev_b32 v4, 1, v2
    v_xor_b32 v4, v4, v3
    v_lshlrev_b32 v4, 4, v4
    v_lshl_add_u32 v4, v2, 7, v4
    v_add_u32 v12, s30, v4
    v_xor_b32 v13, 64, v12
    v_bfe_u32 v4, v1, 2, 2
    v_and_b32 v5, 1, v3
    v_lshl_or_b32 v4, v5, 2, v4
    v_lshrrev_b32 v5, 1, v3
    v_lshl_or_b32 v4, v5, 4, v4
    v_mul_u32_u24 v182, 160, v4
    v_and_b32 v5, 3, v1
    v_lshl_add_u32 v4, v5, 3, v182""")
    for u in range(5):
        a(f"""s_add_u32 s{32+u}, s20, {u}
        s_cmp_ge_u32 s{32+u}, 5
        s_cselect_b32 s3, 5, 0
        s_sub_u32 s{32+u}, s{32+u}, s3
        s_cmp_ge_u32 s{32+u}, 5
        s_cselect_b32 s3, 5, 0
        s_sub_u32 s{32+u}, s{32+u}, s3
        s_lshl_b32 s3, s{32+u}, 5
        v_add_u32 v{14+u}, s3, v4
        v_add_u32 v{19+u}, 51200, v{14+u}""")
    for i in range(4): a(f"v_mov_b32 v{24+i}, 0x3f803f80")
    div_lane(a, 4, 5, 1, 5)
    a(f"""v_and_b32 v6, 1, v4
    v_lshrrev_b32 v4, 1, v4
    v_lshl_add_u32 v4, v6, 2, v4
    s_lshl_b32 s3, s20, 3
    v_add_u32 v4, s3, v4
    v_mul_u32_u24 v4, 3840, v4
    v_lshl_add_u32 v4, v5, 4, v4
    s_mul_i32 s3, s22, 80
    v_add_u32 v186, s3, v4
    s_mul_i32 s38, s20, 640""")
    def dmaQ(i):
        a(f"""s_add_u32 m0, s38, {WQL + i*5120}
        {M40[0]}
        buffer_load_dwordx4 v186, s[12:15], s62 offen lds
        {M40[1]}
        s_add_u32 s62, s62, 245760
        s_cmp_ge_u32 s62, 2457600
        s_cselect_b32 s62, 0, s62""")
    def touch_wq(L):
        touch(a, 251, f"""s_lshr_b32 s3, s2, 3
        s_mul_i32 s3, s3, 20
        v_mul_u32_u24 v4, 13108, v0
        v_lshrrev_b32 v4, 16, v4
        v_mul_u32_u24 v5, 5, v4
        v_sub_u32 v5, v0, v5
        v_add_u32 v4, s3, v4
        v_mul_u32_u24 v4, 3840, v4
        v_lshl_add_u32 v4, v5, 7, v4
        s_and_b32 s3, s2, 1
        s_mul_i32 s3, s3, 640
        v_add_u32 v4, s3, v4
        v_cmp_gt_u32 vcc, 100, v0""", P_WQKV, L)
    def touch_wo(L):
        touch(a, 252, f"""s_lshr_b32 s3, s2, 3
        s_mul_i32 s3, s3, 200
        v_subrev_u32 v5, 128, v0
        v_add_u32 v4, s3, v5
        v_lshlrev_b32 v4, 7, v4
        v_cmp_gt_u32 vcc, 200, v5""", P_WO, L)
    WF, ACC, XX, SX, CS, XF = 28, 68, 88, 92, 96, 100
    def a1_reads(n):
        b = n & 1; L = []
        if not (n & 1):
            slot = (n >> 1) % 3
            L.append(f"ds_read_b128 {q4(XF+4*n)}, v12 offset:{slot*2048}")
            L.append(f"ds_read_b128 {q4(XF+4*n+4)}, v13 offset:{slot*2048}")
        base, off = (14, n*5120) if n < 10 else (19, (n-10)*5120)
        for u in range(5):
            for h in range(2):
                r = WF + 20*b + 4*u + 2*h
                L.append(f"ds_read_b64_tr_b16 v[{r}:{r+1}], v{base+u} offset:{off + h*1280}")
        return L
    def a1_mfmas(n, isv):
        b = n & 1; L = []
        def mm(d, x, y): L.append(f"v_mfma_f32_16x16x32_bf16 {q4(d)}, {q4(x)}, {q4(y)}, {'0' if n == 0 else q4(d)}")
        x = XF + 4*n
        mm(XX, x, x); mm(SX, 24, x)
        for u in range(5):
            w = WF + 20*b + 4*u
            if isv: mm(ACC + 4*u, x, w)
            else: mm(ACC + 4*u, w, x)
        mm(CS, 24, WF + 20*b)
        return L
    a("s_waitcnt vmcnt(8)\n s_barrier")
    a.stamp(2)
    a(f"""s_cmp_lg_u32 s20, 0
    s_cbranch_scc1 L_NOSIG
    s_and_b32 s3, s2, 31
    s_lshl_b32 s3, s3, 2
    s_add_u32 s3, s3, 128
    v_mov_b32 v4, s3
    v_mov_b32 v5, 1
    s_mov_b64 exec, 1
    global_atomic_add v4, v5, s[{P_DBG}:{P_DBG+1}] sc1
    s_mov_b64 exec, -1
    L_NOSIG:""")
    for r in a1_reads(0): a(r)
    a("s_cmp_ge_u32 s22, 8\n s_cbranch_scc1 L_A1V")
    def a1_loop(isv):
        for n in range(20):
            i = n >> 1
            a("s_waitcnt lgkmcnt(0)")
            if n & 1:
                vm = 8 if i <= 7 else 8
                if i < 9: a(f"s_waitcnt vmcnt({vm})\n s_barrier")
            elif i + 3 < 10:
                dmaA(i + 3)
            if 13 <= n <= 17:
                dmaQ(2*(n-13)); dmaQ(2*(n-13) + 1)
            if n == 4: touch_wq(f"L_TQ{int(isv)}")
            if n == 9: touch_wo(f"L_TO{int(isv)}")
            R = a1_reads(n + 1) if n < 19 else []
            M = a1_mfmas(n, isv)
            for k, m in enumerate(M):
                for x in R[2*k:2*k+2]: a(x)
                a(m)
    def a1_stats():
        a.stamp(3)
        a(f"""v_and_b32 v5, 3, v2
        v_cmp_eq_u32 vcc, 1, v5
        v_cndmask_b32 v4, v{XX}, v{XX+1}, vcc
        v_cmp_eq_u32 vcc, 2, v5
        v_cndmask_b32 v4, v4, v{XX+2}, vcc
        v_cmp_eq_u32 vcc, 3, v5
        v_cndmask_b32 v7, v4, v{XX+3}, vcc
        v_mov_b32 v6, v{SX}
        s_lshl_b32 s3, s32, 6
        s_add_u32 s3, s3, {SCR+1024}
        v_lshl_add_u32 v4, v2, 2, s3
        ds_write_b32 v4, v{CS}""")
        ln_scalars(a, 6, 7)
        a(f"""s_lshl_b32 s26, s20, 7
        s_add_u32 s26, s26, {SCR}
        v_lshl_add_u32 v4, v2, 3, s26
        v_lshrrev_b32 v5, 2, v2
        v_cmp_eq_u32 vcc, v5, v3
        s_and_saveexec_b64 s[4:5], vcc
        ds_write_b64 v4, v[6:7]
        s_mov_b64 exec, -1
        s_waitcnt lgkmcnt(0)
        s_barrier
        ds_read_b64 v[184:185], v4
        v_and_b32 v8, 1, v3
        v_cmp_eq_u32 s[6:7], 1, v8
        v_lshrrev_b32 v9, 1, v3
        s_lshl_b32 s4, s21, 2
        s_lshr_b32 s5, s20, 1
        s_add_u32 s4, s4, s5
        s_mul_i32 s4, s4, {T32}           ; tile32 * 2560""")
    def lane_tile(p, dst):
        if p < 2:
            a(f"v_mov_b32 v{dst}, s{32+2*p}\n v_mov_b32 v4, s{33+2*p}\n v_cndmask_b32 v{dst}, v{dst}, v4, s[6:7]")
        else:
            a(f"v_mov_b32 v{dst}, s36")
    def pack_store(P):
        a(f"v_mov_b32 v{P+10}, v{P+8}\n v_mov_b32 v{P+11}, v{P+9}")
        for p in range(3):
            a(f"v_permlane16_swap_b32 v{P+4*p}, v{P+4*p+2}\n v_permlane16_swap_b32 v{P+4*p+1}, v{P+4*p+3}")
        for p in range(3):
            if p == 2: a("s_mov_b32 exec_lo, 0xffff\n s_mov_b32 exec_hi, 0xffff")
            a(f"buffer_store_dwordx4 {q4(P+4*p)}, v{60+p}, {WSR}, s37 offen sc1")
        a("s_mov_b64 exec, -1")
    a1_loop(False)
    a1_stats()
    for u in range(5):
        a(f"s_lshl_b32 s3, s{32+u}, 6\n s_add_u32 s3, s3, {SCR+1024}\n v_lshl_add_u32 v4, v3, 4, s3\n ds_read_b128 {q4(28+4*u)}, v4")
    a(f"""s_mul_i32 s37, s22, {2*64*T32}
    s_add_u32 s37, s37, s4
    s_and_b32 s5, s20, 1
    s_lshl_b32 s5, s5, 8
    s_add_u32 s37, s37, s5""")
    for p in range(3):
        lane_tile(p, 5)
        a(f"""v_lshl_add_u32 v5, v5, 1, v9
        v_cmp_le_u32 vcc, 5, v5
        v_mov_b32 v4, {64*T32 - 5*512}
        v_cndmask_b32 v4, 0, v4, vcc
        v_lshl_add_u32 v4, v5, 9, v4
        v_lshl_add_u32 v{60+p}, v2, 4, v4""")
    a("s_waitcnt lgkmcnt(0)")
    for u in range(5):
        d = ACC + 4*u
        for r in range(4): a(f"v_fma_f32 v{d+r}, -v184, v{28+4*u+r}, v{d+r}")
        for r in range(4): a(f"v_mul_f32 v{d+r}, v185, v{d+r}")
        a(f"v_cvt_pk_bf16_f32 v{48+2*u}, v{d}, v{d+1}\n v_cvt_pk_bf16_f32 v{49+2*u}, v{d+2}, v{d+3}")
    pack_store(48)
    a("s_branch L_A2")
    a("L_A1V:")
    a1_loop(True)
    a1_stats()
    a(f"""v_lshl_add_u32 v4, v3, 5, s26
    ds_read_b128 v[28:31], v4
    ds_read_b128 v[32:35], v4 offset:16""")
    for u in range(5):
        a(f"s_lshl_b32 s3, s{32+u}, 6\n s_add_u32 s3, s3, {SCR+1024}\n v_lshl_add_u32 v4, v2, 2, s3\n ds_read_b32 v{36+u}, v4")
    a(f"""s_sub_u32 s37, s22, 8
    s_mul_i32 s37, s37, {2*64*T32}
    s_add_u32 s37, s37, s4
    s_and_b32 s5, s20, 1
    s_mul_i32 s5, s5, 1280
    s_add_u32 s37, s37, s5
    s_add_u32 s37, s37, {V_OFF}
    v_mul_u32_u24 v9, 640, v9""")
    for p in range(3):
        lane_tile(p, 5)
        a(f"""v_lshl_add_u32 v5, v5, 4, v2
        v_cmp_le_u32 vcc, 40, v5
        v_mov_b32 v4, {64*T32 - 640}
        v_cndmask_b32 v4, 0, v4, vcc
        v_lshl_add_u32 v4, v5, 4, v4
        v_add_u32 v{60+p}, v9, v4""")
    a("s_waitcnt lgkmcnt(0)")
    for u in range(5):
        d = ACC + 4*u
        for r in range(4): a(f"v_fma_f32 v{d+r}, -v{28+2*r}, v{36+u}, v{d+r}")
        for r in range(4): a(f"v_mul_f32 v{d+r}, v{29+2*r}, v{d+r}")
        a(f"v_cvt_pk_bf16_f32 v{48+2*u}, v{d}, v{d+1}\n v_cvt_pk_bf16_f32 v{49+2*u}, v{d+2}, v{d+3}")
    pack_store(48)

    a("L_A2:")
    srd(a, 8, P_G, 2211840)
    srd(a, 12, P_U, 2211840)
    a(f"""s_mul_i32 s3, s24, 80
    v_lshrrev_b32 v4, 3, v1
    v_add_u32 v4, s3, v4
    v_mul_u32_u24 v4, 3456, v4
    v_and_b32 v5, 7, v1
    v_lshl_add_u32 v4, v5, 4, v4
    s_lshl_b32 s3, s25, 7
    v_add_u32 v10, s3, v4
    s_mul_i32 s4, s20, {8*3456}
    s_lshl_b32 s39, s20, 10""")
    a(f"""v_bfe_u32 v4, v1, 2, 2
    v_lshlrev_b32 v4, 1, v4
    v_lshl_add_u32 v4, v3, 3, v4
    v_mul_u32_u24 v4, 80, v4
    v_and_b32 v5, 3, v1
    v_lshl_add_u32 v4, v5, 3, v4
    v_add_u32 v4, {WQL}, v4""")
    for u in range(3):
        a(f"""s_add_u32 s{32+u}, s20, {u}
        s_mul_i32 s3, s{32+u}, 86
        s_lshr_b32 s3, s3, 8
        s_mul_i32 s3, s3, 3
        s_sub_u32 s{32+u}, s{32+u}, s3
        s_lshl_b32 s3, s{32+u}, 5
        v_add_u32 v{14+u}, s3, v4""")
    a(f"""s_lshl_b32 s3, s20, 2
    s_add_u32 s3, s3, s60
    v_mov_b32 v4, s3
    v_mov_b32 v5, 1
    s_waitcnt vmcnt(3)
    s_barrier""")
    a.stamp(4)
    def a2_reads(n):
        b = n & 1; L = []
        for u in range(3):
            for h in range(2):
                r = WF + 12*b + 4*u + 2*h
                L.append(f"ds_read_b64_tr_b16 v[{r}:{r+1}], v{14+u} offset:{n*2560 + h*80}")
        return L
    for r in a2_reads(0): a(r)
    for n in range(20):
        a("s_waitcnt lgkmcnt(0)")
        if n == F1STEP:
            a(f"""s_waitcnt vmcnt(0)
            s_mov_b64 exec, 1
            buffer_store_dword v5, v4, {WSR}, 0 offen sc1
            s_mov_b64 exec, -1
            s_cmp_ge_u32 s25, 32
            s_cbranch_scc1 L_NOGU
            s_add_u32 m0, s39, {GUL}
            s_add_u32 s5, s4, {64*3456}
            buffer_load_dwordx4 v10, s[8:11], s4 offen nt lds
            s_add_u32 m0, s39, {GUL + 10240}
            s_cmp_ge_u32 s20, 2
            buffer_load_dwordx4 v10, s[12:15], s4 offen nt lds
            s_cbranch_scc1 L_NOGU
            s_add_u32 m0, s39, {GUL + 8192}
            s_nop 0
            buffer_load_dwordx4 v10, s[8:11], s5 offen nt lds
            s_add_u32 m0, s39, {GUL + 10240 + 8192}
            s_nop 0
            buffer_load_dwordx4 v10, s[12:15], s5 offen nt lds
            L_NOGU:""")
        R = a2_reads(n + 1) if n < 19 else []
        b = n & 1; x = XF + 4*n
        c = lambda d: '0' if n == 0 else q4(d)
        for u in range(3):
            for t in R[2*u:2*u+2]: a(t)
            a(f"v_mfma_f32_16x16x32_bf16 {q4(ACC+4*u)}, {q4(WF+12*b+4*u)}, {q4(x)}, {c(ACC+4*u)}")
        a(f"v_mfma_f32_16x16x32_bf16 {q4(CS)}, v[24:27], {q4(WF+12*b)}, {c(CS)}")
    a(f"""s_lshl_b32 s3, s32, 6
    s_add_u32 s3, s3, {CS2}
    v_lshl_add_u32 v4, v2, 2, s3
    ds_write_b32 v4, v{CS}
    v_mul_f32 v185, {QSCALE:#x}, v185
    s_waitcnt lgkmcnt(0)
    s_barrier""")
    for u in range(3):
        a(f"s_lshl_b32 s3, s{32+u}, 6\n s_add_u32 s3, s3, {CS2}\n v_lshl_add_u32 v4, v3, 4, s3\n ds_read_b128 {q4(28+4*u)}, v4")
    a(f"""s_lshl_b32 s3, s20, 8
    s_add_u32 s3, s3, {QEX}
    v_lshl_add_u32 v6, v2, 4, s3
    v_and_b32 v4, 1, v3
    v_lshl_add_u32 v6, v4, 3, v6
    v_lshrrev_b32 v7, 1, v3
    s_waitcnt lgkmcnt(0)""")
    for u in range(3):
        d = ACC + 4*u
        for r in range(4): a(f"v_fma_f32 v{d+r}, -v184, v{28+4*u+r}, v{d+r}")
        for r in range(4): a(f"v_mul_f32 v{d+r}, v185, v{d+r}")
        a(f"""v_cvt_pk_bf16_f32 v{48+2*u}, v{d}, v{d+1}
        v_cvt_pk_bf16_f32 v{49+2*u}, v{d+2}, v{d+3}
        s_lshl_b32 s3, s{32+u}, 1
        v_add_u32 v4, s3, v7
        v_cmp_gt_u32 vcc, 5, v4
        v_lshl_add_u32 v4, v4, 11, v6
        s_and_saveexec_b64 s[4:5], vcc
        ds_write_b64 v4, v[{48+2*u}:{49+2*u}]
        s_mov_b64 exec, -1""")
    a.stamp(5)
    a(f"""s_cmp_lg_u32 s20, 0
    s_cbranch_scc1 L_F1DONE
    v_or_b32 v4, 32, v1
    v_lshlrev_b32 v4, 2, v4""")
    a(f"""v_subrev_u32 v5, 24, v1
    v_cmp_gt_u32 vcc, 24, v1
    v_cndmask_b32 v5, v5, v1, vcc
    v_mov_b32 v6, 128
    v_cndmask_b32 v6, v6, 0, vcc
    v_lshrrev_b32 v7, 3, v5
    s_sub_u32 s3, s21, 2
    v_add_u32 v7, s3, v7
    v_cmp_le_i32 s[4:5], 0, v7
    s_lshr_b32 s3, s22, 1
    s_lshl_b32 s3, s3, 4
    v_add3_u32 v6, v6, v7, s3
    v_lshlrev_b32 v6, 7, v6
    v_and_b32 v5, 7, v5
    v_lshl_add_u32 v6, v5, 2, v6
    v_add_u32 v6, {F1_OFF}, v6
    s_and_b32 s5, s5, 0xffff""")
    spin_head(a, "L_CLRPOLL")
    a(f"""global_load_dword v8, v4, s[{P_DBG}:{P_DBG+1}] sc1
    s_waitcnt vmcnt(0)
    v_cmp_gt_u32 vcc, 8, v8
    s_cbranch_vccz L_CLRPOLL_OK
    s_sleep {SLEEP}
    s_branch L_CLRPOLL
    L_CLRPOLL_OK:
    s_mov_b64 exec, s[4:5]""")
    spin_head(a, "L_F1POLL")
    a(f"""buffer_load_dword v8, v6, {WSR}, 0 offen sc1
    s_waitcnt vmcnt(0)
    v_cmp_ne_u32 vcc, 1, v8
    s_cbranch_vccz L_F1POLL_OK
    s_sleep {SLEEP}
    s_branch L_F1POLL
    L_F1POLL_OK:
    s_mov_b64 exec, -1
    L_F1DONE:
    s_waitcnt vmcnt(0) lgkmcnt(0)
    s_barrier""")
    a.stamp(6)

    S0 = 112
    def S(i): return S0 + 16*i
    O = 96; MK = 88
    a(f"""v_mov_b32 v22, v181
    v_mov_b32 v23, v183
    s_and_b32 s26, s20, 3             ; qt
    s_lshr_b32 s27, s20, 2            ; hd
    s_lshl_b32 s3, s21, 2
    s_sub_u32 s3, s3, 8
    s_mul_i32 s3, s3, {T32}
    s_lshl_b32 s28, s20, 10
    s_add_u32 s3, s3, s28
    v_lshl_add_u32 v10, v1, 4, s3
    s_mul_i32 s3, s22, {64*T32}
    s_add_u32 s4, s{P_WS}, s3
    s_addc_u32 s5, s{P_WS+1}, 0
    s_add_u32 s6, s4, {V_OFF}
    s_addc_u32 s7, s5, 0""")
    srd(a, 8, 4, 64*T32)
    srd(a, 12, 6, 64*T32)
    for kv in range(2):
        for i in range(4):
            if i == 3: a(f"s_cmp_ge_u32 s20, 6\n s_cbranch_scc1 L_KV{kv}")
            a(f"""s_add_u32 m0, s28, {KL + 30720*kv + 8192*i}
            v_add_u32 v4, {8192*i}, v10
            buffer_load_dwordx4 v4, s[{8+4*kv}:{11+4*kv}], 0 offen sc1 lds""")
        a(f"L_KV{kv}:")
    a(f"""v_and_b32 v2, 31, v0
    v_lshrrev_b32 v3, 5, v1
    s_lshl_b32 s3, s26, 9
    s_add_u32 s3, s3, {QEX}
    v_lshl_add_u32 v4, v2, 4, s3
    s_mul_i32 s4, s27, {3*2048}
    v_lshl_add_u32 v5, v3, 11, v4
    v_add_u32 v5, s4, v5
    ds_read_b128 v[16:19], v5
    s_lshl_b32 s4, s27, 3
    v_add_u32 v4, s4, v4
    ds_read_b64 v[20:21], v4 offset:4096
    v_and_b32 v4, 0x13, v2
    v_and_b32 v5, 4, v2
    v_lshl_or_b32 v4, v5, 1, v4
    v_and_b32 v5, 8, v2
    v_lshrrev_b32 v5, 1, v5
    v_or_b32 v4, v4, v5               ; kappa
    s_mul_i32 s3, s26, {T32}
    s_add_u32 s3, s3, {KL}
    s_mul_i32 s4, s27, 1536
    s_add_u32 s4, s4, s3
    v_lshlrev_b32 v5, 4, v4
    v_lshl_add_u32 v11, v3, 9, v5
    v_add_u32 v11, s4, v11
    s_lshl_b32 s4, s27, 3
    s_add_u32 s4, s4, s3
    s_add_u32 s4, s4, 1024
    v_add_u32 v12, s4, v5
    v_mul_u32_u24 v6, 640, v3
    v_add_u32 v5, v5, v6
    s_mul_i32 s4, s27, 320
    s_add_u32 s4, s4, s3
    s_add_u32 s4, s4, 30720
    v_add_u32 v13, s4, v5
    v_lshlrev_b32 v4, 3, v3
    v_sub_u32 v4, v2, v4
    v_mov_b32 v5, 0xffff
    v_mov_b32 v6, 0xffff0000""")
    a(f"""s_cmp_ge_u32 s25, 32
    s_cbranch_scc1 L_NORP
    v_lshrrev_b32 v7, 1, v1
    v_and_b32 v8, 0x13, v7
    v_and_b32 v9, 4, v7
    v_lshl_or_b32 v8, v9, 1, v8
    v_and_b32 v9, 8, v7
    v_lshrrev_b32 v9, 1, v9
    v_or_b32 v8, v8, v9
    v_lshlrev_b32 v8, 7, v8
    v_and_b32 v9, 1, v1
    v_mul_u32_u24 v9, 10240, v9
    s_lshl_b32 s3, s20, 4
    s_add_u32 s3, s3, {GUL}
    v_add3_u32 v8, v8, v9, s3
    ds_read_b128 v[112:115], v8
    ds_read_b128 v[116:119], v8 offset:4096
    ds_read_b128 v[120:123], v8 offset:8192
    s_lshl_b32 s3, s25, 3
    s_add_u32 s3, s3, s20
    s_mul_i32 s3, s3, 20480
    s_mul_i32 s4, s24, 2560
    s_add_u32 s3, s3, s4
    s_add_u32 s3, s3, {RP_OFF}
    v_lshlrev_b32 v8, 4, v1
    s_waitcnt lgkmcnt(0)
    buffer_store_dwordx4 v[112:115], v8, {WSR}, s3 offen sc1
    buffer_store_dwordx4 v[116:119], v8, {WSR}, s3 offen offset:1024 sc1
    s_mov_b32 exec_hi, 0
    buffer_store_dwordx4 v[120:123], v8, {WSR}, s3 offen offset:2048 sc1
    s_mov_b64 exec, -1
    s_branch L_RPD
    L_NORP:""")
    a(f"""v_lshrrev_b32 v7, 1, v0
    s_mul_i32 s3, s24, 216
    v_add_u32 v7, s3, v7
    v_mul_u32_u24 v7, 1280, v7
    v_and_b32 v8, 1, v0
    v_lshl_add_u32 v7, v8, 7, v7
    s_sub_u32 s3, s25, 32
    s_lshl_b32 s3, s3, 8
    v_add_u32 v7, s3, v7
    v_min_u32 v7, 2211836, v7
    global_load_dword v10, v7, s[{P_D}:{P_D+1}]
    global_load_dword v10, v7, s[{P_D}:{P_D+1}]
    global_load_dword v10, v7, s[{P_D}:{P_D+1}]
    L_RPD:""")
    a(f"""s_lshl_b32 s3, s23, 3
    s_add_u32 s3, s3, s24
    s_mul_i32 s3, s3, 10240
    s_mul_i32 s4, s20, 1280
    s_add_u32 s3, s3, s4
    s_add_u32 s3, s3, {H_OFF}
    v_lshlrev_b32 v7, 4, v1
    v_mov_b32 v124, -1
    v_mov_b32 v125, -1
    v_mov_b32 v126, -1
    v_mov_b32 v127, -1
    buffer_store_dwordx4 v[124:127], v7, {WSR}, s3 offen sc1
    s_mov_b64 exec, 0xffff
    buffer_store_dwordx4 v[124:127], v7, {WSR}, s3 offen offset:1024 sc1
    s_mov_b64 exec, -1""")
    MS = 32
    a("s_mov_b32 s31, s61")
    for r in range(16):
        a(f"v_cmp_gt_i32 s[{MS+2*r}:{MS+1+2*r}], {(r&7) + 16*(r>>3)}, v4")
    for i in range(8):
        a(f"""v_cndmask_b32 v7, 0, v5, s[{MS+4*i}:{MS+1+4*i}]
        v_cndmask_b32 v8, 0, v6, s[{MS+2+4*i}:{MS+3+4*i}]
        v_or_b32 v{MK+i}, v7, v8""")
    a(f"""s_lshl_b32 s3, s21, 2
    s_add_u32 s3, s3, s26
    s_sub_i32 s30, 8, s3              ; n_invalid
    s_mul_i32 s3, s3, {80*512}
    s_add_u32 s29, s3, {O_OFF}
    s_lshl_b32 s4, s22, 1
    s_add_u32 s4, s4, s27             ; head
    s_lshl_b32 s5, s4, 10
    v_lshl_add_u32 v14, v1, 4, s5
    s_lshl_b32 s5, s4, 8
    s_add_u32 s5, s5, 32768
    v_lshl_add_u32 v15, v1, 3, s5
    v_cmp_eq_u32 vcc, 0, v3
    s_waitcnt lgkmcnt(0)
    v_cndmask_b32 v20, 0, v20, vcc
    v_cndmask_b32 v21, 0, v21, vcc""")
    srd(a, 8, P_WO, 819200)
    a(f"""s_mul_i32 s28, s20, 1280
    s_add_u32 s28, s28, {WOL}
    s_waitcnt vmcnt(8)
    s_barrier""")
    a.stamp(7)
    wo_n = [0]
    def dma_wo():
        p = wo_n[0]; wo_n[0] += 1
        kh, q = p // 5, p % 5
        if q < 4: v, so, hs = 22, (4*kh + q) * 80 * 1280, 8 * 1280
        else:     v, so, hs = 23, kh * 320 * 1280, 40 * 1280
        a(f"""s_add_u32 m0, s28, {p*10240}
        s_mov_b32 s3, {so}
        {M40[0]}
        buffer_load_dwordx4 v{v}, s[8:11], s3 offen lds
        s_add_u32 m0, s28, {p*10240 + 640}
        s_mov_b32 s3, {so + hs}
        buffer_load_dwordx4 v{v}, s[8:11], s3 offen lds
        {M40[1]}""")
    KF = 24
    order = [0, 8, 1, 2, 3, 4, 5, 6, 7]
    def kread(n):
        i = order[n]
        a(f"""ds_read_b128 v[{KF+6*n}:{KF+6*n+3}], v11 offset:{T32*i}
        ds_read_b64 v[{KF+6*n+4}:{KF+6*n+5}], v12 offset:{T32*i}""")
    for n in range(7): kread(n)
    for n in range(9):
        i = order[n]
        if n + 7 < 9: kread(n + 7)
        out = 2 * (min(n + 7, 8) - n)
        a(f"""s_waitcnt lgkmcnt({out})
        v_mfma_f32_32x32x16_bf16 {r16(S(i))}, v[{KF+6*n}:{KF+6*n+3}], v[16:19], 0
        v_mfma_f32_32x32x8_bf16 {r16(S(i))}, v[{KF+6*n+4}:{KF+6*n+5}], v[20:21], {r16(S(i))}""")
    vorder = [1, 2, 3, 4, 5, 6, 7, 0, 8]
    NVB = 3
    def VF(n): return 24 + 8*(n % NVB)
    M20 = "s_mov_b32 exec_lo, 0xfffff\n s_mov_b32 exec_hi, 0xfffff"
    def vread(n):
        i = vorder[n]
        a(f"""{M20}
        ds_read_b128 v[{VF(n)}:{VF(n)+3}], v13 offset:{T32*i}
        ds_read_b128 v[{VF(n)+4}:{VF(n)+7}], v13 offset:{T32*i+1280}
        s_mov_b64 exec, -1""")
    for r in range(8*NVB): a(f"v_mov_b32 v{24+r}, 0x3f803f80")
    a("s_waitcnt vmcnt(5)\n s_barrier")
    for n in range(NVB): vread(n)
    dma_wo()
    a("""s_cmp_gt_i32 s30, 0
    s_cbranch_scc0 L_VALID""")
    for i in range(8):
        if i: a(f"s_cmp_gt_i32 s30, {i}\n s_cbranch_scc0 L_VALID")
        for r in range(16): a(f"v_mov_b32 v{S(i)+r}, 0xff800000")
    a("L_VALID:")
    for r in range(16):
        a(f"v_cndmask_b32 v{S(0)+r}, v{S(8)+r}, v{S(0)+r}, s[{MS+2*r}:{MS+1+2*r}]")
    a(f"v_max_f32 v4, v{S(0)}, v{S(0)+1}\n v_max_f32 v5, v{S(0)+2}, v{S(0)+3}")
    for k in range(2, 64):
        x = 4 + (k & 1)
        a(f"v_max3_f32 v{x}, v{S0+2*k}, v{S0+2*k+1}, v{x}")
    a("""v_max_f32 v4, v4, v5
    v_mov_b32 v5, v4
    v_permlane32_swap_b32 v4, v5
    v_max_f32 v4, v4, v5
    v_mov_b32 v5, v4""")
    dma_wo()
    def softmax_tile(i):
        s = S(i)
        for k in range(8):
            a(f"v_pk_add_f32 v[{s+2*k}:{s+2*k+1}], v[{s+2*k}:{s+2*k+1}], v[4:5] neg_lo:[0,1] neg_hi:[0,1]")
        for r in range(16): a(f"v_exp_f32 v{s+r}, v{s+r}")
        for k in range(8): a(f"v_cvt_pk_bf16_f32 v{s+k}, v{s+2*k}, v{s+2*k+1}")
    def pv(n, p, first=False):
        c = "0" if first else r16(O)
        a(f"""v_mfma_f32_32x32x16_bf16 {r16(O)}, v[{VF(n)}:{VF(n)+3}], v[{p}:{p+3}], {c}
        v_mfma_f32_32x32x16_bf16 {r16(O)}, v[{VF(n)+4}:{VF(n)+7}], v[{p+4}:{p+7}], {r16(O)}""")
    for n in range(7):
        softmax_tile(vorder[n])
        if n >= 1 and n - 1 + NVB < 9: vread(n - 1 + NVB)
        a(f"s_waitcnt lgkmcnt({4 if n < 7 else 0})")
        pv(n, S(vorder[n]), n == 0)
        dma_wo()
    softmax_tile(0)
    s = S(0)
    for k in range(8): a(f"v_and_b32 v{s+8+k}, v{MK+k}, v{s+k}")
    for k in range(8): a(f"v_xor_b32 v{s+k}, v{s+8+k}, v{s+k}")
    a("s_waitcnt lgkmcnt(0)")
    pv(7, s + 8)
    pv(8, s)
    dma_wo()
    a(f"v_rcp_f32 v4, v{O+12}")
    for r in range(12): a(f"v_mul_f32 v{O+r}, v4, v{O+r}")
    for k in range(6): a(f"v_cvt_pk_bf16_f32 v{24+k}, v{O+2*k}, v{O+2*k+1}")
    a(f"""buffer_store_dwordx4 v[24:27], v14, {WSR}, s29 offen sc1
    s_mov_b32 exec_hi, 0
    buffer_store_dwordx2 v[28:29], v15, {WSR}, s29 offen sc1
    s_mov_b64 exec, -1""")
    a.stamp(8)

    a(f"""v_and_b32 v2, 15, v0
    v_lshrrev_b32 v3, 4, v1
    s_and_b32 s26, s20, 3             ; rt
    s_lshr_b32 s27, s20, 2            ; kh
    s_lshl_b32 s3, s23, 6
    s_lshl_b32 s4, s26, 4
    s_add_u32 s3, s3, s4
    v_add_u32 v9, s3, v2
    v_mul_u32_u24 v4, 1280, v9
    v_mul_u32_u24 v17, 40, v3
    s_mul_i32 s3, s24, 160
    v_add_u32 v17, s3, v17
    v_add_u32 v16, v17, v4
    s_mov_b32 s28, {H_OFF}
    s_lshl_b32 s3, s20, 2
    s_add_u32 s3, s3, s31
    v_mov_b32 v4, s3
    v_mov_b32 v5, 1
    s_waitcnt vmcnt(0)
    s_mov_b64 exec, 1
    buffer_store_dword v5, v4, {WSR}, 0 offen sc1
    s_mov_b64 exec, -1""")
    srd(a, 8, P_X, 2621440)
    srd(a, 12, P_WR, 1280)
    XR, WR, WRS = 20, 30, 140
    a(f"""s_cmp_ge_u32 s20, 4
    s_cbranch_scc1 L_NOXLD
    buffer_load_dwordx4 v[{XR}:{XR+3}], v16, s[8:11], 0 offen
    buffer_load_dwordx4 v[{XR+4}:{XR+7}], v16, s[8:11], 0 offen offset:16
    buffer_load_dwordx2 v[{XR+8}:{XR+9}], v16, s[8:11], 0 offen offset:32
    buffer_load_dwordx4 v[{WR}:{WR+3}], v17, s[12:15], 0 offen
    buffer_load_dwordx4 v[{WR+4}:{WR+7}], v17, s[12:15], 0 offen offset:16
    buffer_load_dwordx2 v[{WR+8}:{WR+9}], v17, s[12:15], 0 offen offset:32
    v_lshlrev_b32 v4, 2, v1""")
    for i in range(5):
        a(f"buffer_load_dword v{WRS+i}, v4, s[12:15], 0 offen offset:{256*i}")
    a("L_NOXLD:")
    a(f"""v_bfe_u32 v4, v1, 2, 2
    v_and_b32 v5, 1, v3
    v_lshl_or_b32 v4, v5, 2, v4
    v_lshrrev_b32 v5, 1, v3
    v_lshl_or_b32 v4, v5, 4, v4
    v_mul_u32_u24 v4, 160, v4
    v_and_b32 v5, 3, v1
    v_mul_u32_u24 v5, 40, v5
    s_mul_i32 s3, s27, 51200
    s_add_u32 s3, s3, {WOL}
    v_add3_u32 v18, v4, v5, s3
    s_lshr_b32 s3, s23, 1
    s_lshl_b32 s3, s3, 4
    s_lshl_b32 s4, s27, 3
    s_add_u32 s3, s3, s4
    s_lshl_b32 s3, s3, 7
    s_and_b32 s4, s23, 1
    s_lshl_b32 s4, s4, 1
    s_lshr_b32 s5, s26, 1
    s_add_u32 s4, s4, s5              ; qt
    s_lshl_b32 s5, s4, 2
    s_add_u32 s3, s3, s5
    s_add_u32 s3, s3, {F2_OFF}
    v_lshrrev_b32 v4, 1, v1
    v_lshlrev_b32 v4, 7, v4
    v_and_b32 v5, 1, v1
    v_lshl_add_u32 v4, v5, 4, v4
    v_add_u32 v6, s3, v4
    s_lshl_b32 s3, s23, 1
    s_lshr_b32 s4, s26, 1
    s_add_u32 s3, s3, s4
    s_mul_i32 s3, s3, {80*512}
    s_add_u32 s3, s3, {O_OFF}
    s_lshl_b32 s4, s27, 14
    s_add_u32 s29, s3, s4
    s_lshl_b32 s4, s27, 12
    s_add_u32 s33, s3, s4
    s_add_u32 s33, s33, 32768
    s_and_b32 s4, s26, 1
    s_lshl_b32 s4, s4, 4
    v_add_u32 v4, s4, v2
    v_lshlrev_b32 v5, 9, v3
    v_lshl_add_u32 v15, v4, 4, v5
    v_lshl_add_u32 v14, v4, 3, v5
    s_mov_b64 exec, 0xffff""")
    spin_head(a, "L_F2POLL")
    a(f"""buffer_load_dword v8, v6, {WSR}, 0 offen sc1
    s_waitcnt vmcnt(0)
    v_cmp_ne_u32 vcc, 1, v8
    s_cbranch_vccz L_F2POLL_OK
    s_sleep {SLEEP}
    s_branch L_F2POLL
    L_F2POLL_OK:
    s_mov_b64 exec, -1""")
    OF, CWF, CAC = 40, 80, 120
    for ks in range(8):
        a(f"""s_add_u32 s3, s29, {ks*2048}
        buffer_load_dwordx4 {q4(OF+4*ks)}, v15, {WSR}, s3 offen sc1""")
    for ks in range(8, 10):
        for hh in range(2):
            r = OF + 4*ks + 2*hh
            a(f"buffer_load_dwordx2 v[{r}:{r+1}], v14, {WSR}, s33 offen offset:{(ks-8)*2048 + hh*256} sc1")
    a("s_barrier")
    a.stamp(9)
    a(f"""v_lshrrev_b32 v5, 1, v1
    v_and_b32 v6, 0x13, v5
    v_and_b32 v7, 4, v5
    v_lshl_or_b32 v6, v7, 1, v6
    v_and_b32 v7, 8, v5
    v_lshrrev_b32 v7, 1, v7
    v_or_b32 v19, v6, v7              ; kappa(lane>>1)
    s_lshl_b32 s30, s25, 3
    s_add_u32 s30, s30, s24           ; slice
    s_lshl_b32 s32, s20, 10""")
    def c_rd(ks):
        b = ks & 1; L = []
        for t in range(5):
            for h in range(2):
                r = CWF + 20*b + 4*t + 2*h
                L.append(f"ds_read_b64_tr_b16 v[{r}:{r+1}], v18 offset:{ks*5120 + h*1280 + 8*t}")
        return L
    for r in c_rd(0): a(r)
    for ks in range(10):
        a(f"s_waitcnt vmcnt({11-ks if ks < 8 else 2*(9-ks)}) lgkmcnt(0)")
        R = c_rd(ks + 1) if ks < 9 else []
        for t in range(5):
            for x in R[2*t:2*t+2]: a(x)
            d = CAC + 4*t; w = CWF + 20*(ks & 1) + 4*t
            a(f"v_mfma_f32_16x16x32_bf16 {q4(d)}, {q4(w)}, {q4(OF+4*ks)}, {'0' if ks == 0 else q4(d)}")
    GW = KL; RED = VL
    SB = 122880
    SURV = 0; WMAX = 8192; CNT = 8224; SELL = 8256
    RT = 153600 - SB
    XS = 57344; HR = 67712; XROW = 1296; ERED = 78080
    def gu_dma(L):
        a(f"""s_cmp_ge_u32 s25, 32
        s_cbranch_scc1 {L}
        s_mul_i32 s3, s30, 20480
        s_mul_i32 s4, s26, 5120
        s_add_u32 s3, s3, s4
        s_add_u32 s3, s3, {RP_OFF}
        s_add_u32 m0, s4, {GW}
        v_lshlrev_b32 v10, 4, v1""")
        for j in range(4): a(f"buffer_load_dwordx4 v10, {WSR}, s3 offen offset:{1024*j} sc1 lds")
        a(f"""s_add_u32 m0, s4, {GW + 4096}
        s_add_u32 s3, s3, 4096
        buffer_load_dwordx4 v10, {WSR}, s3 offen sc1 lds
        {L}:""")
    a(f"""s_mul_i32 s3, s26, 5120
    s_add_u32 s3, s3, {RED}
    v_lshl_add_u32 v4, v1, 4, s3
    s_cmp_ge_u32 s20, 4
    s_cbranch_scc0 L_CLO""")
    for t in range(5): a(f"ds_write_b128 v4, {q4(CAC+4*t)} offset:{1024*t}")
    a(f"""v_mov_b32 v20, 0
    v_mov_b32 v21, 0
    v_mov_b32 v22, 0
    v_mov_b32 v23, 0
    v_subrev_u32 v12, 256, v0
    v_lshlrev_b32 v12, 4, v12         ; t*16 (t=0..255)
    v_add_u32 v14, {SB}, v12
    ds_write_b128 v14, v[20:23] offset:{SURV}
    ds_write_b128 v14, v[20:23] offset:{SURV+4096}
    v_mov_b32 v13, {SB+CNT}
    ds_write_b32 v13, v20
    s_waitcnt lgkmcnt(0)
    s_barrier
    s_barrier""")
    gu_dma("L_GU1")
    a(f"s_mov_b32 s4, {KEY_OFF}\n s_mov_b32 s5, {KEY_OFF+4096}")
    spin_head(a, "L_KPOLL")
    a(f"""buffer_load_dwordx4 v[24:27], v12, {WSR}, s4 offen sc1
    buffer_load_dwordx4 v[28:31], v12, {WSR}, s5 offen sc1
    s_waitcnt vmcnt(0)
    v_max3_u32 v4, v24, v25, v26
    v_max3_u32 v5, v27, v28, v29
    v_max3_u32 v4, v4, v30, v31
    v_max_u32 v4, v4, v5
    v_cmp_eq_u32 vcc, -1, v4
    s_cbranch_vccz L_KPOLL_OK
    s_sleep {SLEEP}
    s_branch L_KPOLL
    L_KPOLL_OK:
    ds_write_b128 v14, v[24:27] offset:{RT}
    ds_write_b128 v14, v[28:31] offset:{RT+4096}
    v_lshrrev_b32 v6, 2, v12""")
    for i in range(8):
        off = 2047 - (i & 3) - 1024*(i >> 2)
        a(f"""v_ashrrev_i32 v4, 31, v{24+i}
        v_or_b32 v4, 0x80000000, v4
        v_xor_b32 v4, v4, v{24+i}
        v_and_b32 v4, 0xfffff800, v4
        v_sub_u32 v5, {off}, v6
        v_or_b32 v{40+i}, v4, v5""")
    a("""v_max_u32 v4, v40, v41
    v_max_u32 v5, v44, v45
    v_max3_u32 v4, v4, v42, v43
    v_max3_u32 v5, v5, v46, v47""")
    dpp_reduce(a, "v_max_u32", [4, 5])
    a(f"""s_lshl_b32 s3, s26, 3
    s_add_u32 s3, s3, {SB+WMAX}
    v_mov_b32 v6, s3
    s_mov_b32 exec_lo, 0
    s_mov_b32 exec_hi, 0x80000000
    ds_write_b64 v6, v[4:5]
    s_mov_b64 exec, -1
    s_waitcnt lgkmcnt(0)
    s_barrier
    v_mov_b32 v5, {SB+WMAX}
    ds_read_b128 v[48:51], v5
    ds_read_b128 v[52:55], v5 offset:16
    v_mov_b32 v6, 1
    s_waitcnt lgkmcnt(0)
    v_min3_u32 v48, v48, v49, v50
    v_min3_u32 v52, v52, v53, v54
    v_min3_u32 v48, v48, v51, v55
    v_min_u32 v48, v48, v52""")
    for i in range(8):
        a(f"""v_cmp_ge_u32 s[{40+2*i}:{41+2*i}], v{40+i}, v48
        s_mov_b64 exec, s[{40+2*i}:{41+2*i}]
        ds_add_rtn_u32 v{50+i}, v13, v6
        s_mov_b64 exec, -1""")
    a(f"s_mov_b32 s3, {SB}\n s_waitcnt lgkmcnt(0)")
    for i in range(8):
        a(f"""v_lshl_add_u32 v{50+i}, v{50+i}, 2, s3
        s_mov_b64 exec, s[{40+2*i}:{41+2*i}]
        ds_write_b32 v{50+i}, v{40+i} offset:{SURV}
        s_mov_b64 exec, -1""")
    a(f"""s_waitcnt lgkmcnt(0)
    s_barrier
    ds_read_b32 v4, v13
    v_lshrrev_b32 v5, 2, v12
    v_add_u32 v5, {SB}, v5
    s_waitcnt lgkmcnt(0)
    v_readfirstlane_b32 s4, v4
    s_lshl_b32 s5, s26, 6
    L_OUTER:
    s_cmp_ge_u32 s5, s4
    s_cbranch_scc1 L_SELDONE
    ds_read_b32 v6, v5 offset:{SURV}
    v_mov_b32 v7, 0
    v_mov_b32 v8, {SB+SURV}
    s_mov_b32 s6, 0
    L_INNER:
    ds_read_b128 v[44:47], v8
    ds_read_b128 v[48:51], v8 offset:16
    v_add_u32 v8, 32, v8
    s_add_u32 s6, s6, 8
    s_waitcnt lgkmcnt(0)""")
    for i in range(8):
        a(f"v_cmp_gt_u32 vcc, v{44+i}, v6\n v_addc_co_u32 v7, vcc, 0, v7, vcc")
    a(f"""s_cmp_lt_u32 s6, s4
    s_cbranch_scc1 L_INNER
    v_cmp_gt_u32 vcc, 8, v7
    v_and_b32 v6, 0x7ff, v6
    v_sub_u32 v6, 2047, v6
    v_lshl_add_u32 v7, v7, 2, s3
    s_and_saveexec_b64 s[6:7], vcc
    ds_write_b32 v7, v6 offset:{SELL}
    s_mov_b64 exec, -1
    v_add_u32 v5, 1024, v5
    s_add_u32 s5, s5, 256
    s_branch L_OUTER""")
    a("L_CLO:")
    a("v_mov_b32 v8, 0")
    for i in range(5):
        a(f"""v_lshlrev_b32 v5, 16, v{WRS+i}
        v_and_b32 v6, 0xffff0000, v{WRS+i}
        v_add_f32 v8, v8, v5
        v_add_f32 v8, v8, v6""")
    dpp_reduce(a, "v_add_f32", [8])
    a("v_readlane_b32 s36, v8, 63\n s_barrier")
    for t in range(5): a(f"ds_read_b128 {q4(CWF+4*t)}, v4 offset:{1024*t}")
    a("""v_mov_b32 v40, 0
    v_mov_b32 v41, 0
    v_mov_b32 v42, 0
    v_mov_b32 v43, 0
    s_waitcnt lgkmcnt(0)""")
    for t in range(5):
        d = CAC + 4*t
        for r in range(4): a(f"v_add_f32 v{d+r}, v{d+r}, v{CWF+4*t+r}")
        for k in range(2):
            x = XR + 2*t + k; w = WR + 2*t + k
            lo, hi = d + 2*k, d + 2*k + 1
            a(f"""v_cvt_pk_bf16_f32 v8, v{lo}, v{hi}
            v_lshlrev_b32 v{lo}, 16, v8
            v_and_b32 v{hi}, 0xffff0000, v8
            v_lshlrev_b32 v8, 16, v{x}
            v_and_b32 v{x}, 0xffff0000, v{x}
            v_add_f32 v{lo}, v{lo}, v8
            v_add_f32 v{hi}, v{hi}, v{x}
            v_cvt_pk_bf16_f32 v{x}, v{lo}, v{hi}
            v_min_u32 v{x}, -2, v{x}
            v_lshlrev_b32 v{lo}, 16, v{x}
            v_and_b32 v{hi}, 0xffff0000, v{x}
            v_lshlrev_b32 v8, 16, v{w}
            v_and_b32 v{w}, 0xffff0000, v{w}
            v_add_f32 v40, v40, v{lo}
            v_fmac_f32 v41, v{lo}, v{lo}
            v_fmac_f32 v42, v{lo}, v8
            v_add_f32 v40, v40, v{hi}
            v_fmac_f32 v41, v{hi}, v{hi}
            v_fmac_f32 v42, v{hi}, v{w}""")
    xg_sum(a, [40, 41, 42], [44, 45, 46])
    a(f"""v_min_u32 v40, -2, v40
    v_min_u32 v41, -2, v41
    v_min_u32 v42, -2, v42
    s_lshl_b32 s3, s23, 13
    s_lshl_b32 s4, s26, 8
    s_add_u32 s3, s3, s4
    s_add_u32 s37, s3, {PART_OFF}
    s_lshl_b32 s4, s24, 10
    s_add_u32 s4, s4, s37
    s_add_u32 s38, s37, 4096
    v_lshlrev_b32 v4, 4, v2
    s_mov_b64 exec, 0xffff
    buffer_store_dwordx4 v[40:43], v4, {WSR}, s4 offen sc1
    s_mov_b64 exec, -1
    v_lshl_add_u32 v4, v3, 10, v4
    s_mul_i32 s3, s26, 5120
    s_add_u32 s3, s3, {RED}
    v_mul_u32_u24 v5, 160, v2
    v_mul_u32_u24 v6, 40, v3
    v_add3_u32 v12, v5, v6, s3
    v_lshl_add_u32 v13, v1, 4, s3""")
    for k in range(5): a(f"ds_write_b64 v12, v[{XR+2*k}:{XR+2*k+1}] offset:{8*k}")
    a(f"""s_lshl_b32 s3, s23, 3
    s_add_u32 s3, s3, s24
    s_mul_i32 s3, s3, 10240
    s_mul_i32 s5, s26, 2560
    s_add_u32 s3, s3, s5
    s_add_u32 s28, s3, {H_OFF}
    v_lshlrev_b32 v7, 4, v1
    s_waitcnt lgkmcnt(0)
    ds_read_b128 v[52:55], v13
    ds_read_b128 v[56:59], v13 offset:1024
    ds_read_b128 v[60:63], v13 offset:2048
    s_waitcnt lgkmcnt(0)
    buffer_store_dwordx4 v[52:55], v7, {WSR}, s28 offen sc1
    buffer_store_dwordx4 v[56:59], v7, {WSR}, s28 offen offset:1024 sc1
    s_mov_b32 exec_hi, 0
    buffer_store_dwordx4 v[60:63], v7, {WSR}, s28 offen offset:2048 sc1
    s_mov_b64 exec, -1""")
    a.stamp(10)
    spin_head(a, "L_PPOLL")
    a(f"""buffer_load_dwordx4 v[44:47], v4, {WSR}, s37 offen sc1
    buffer_load_dwordx4 v[48:51], v4, {WSR}, s38 offen sc1
    s_waitcnt vmcnt(0)
    v_max3_u32 v5, v44, v45, v46
    v_max3_u32 v6, v48, v49, v50
    v_max_u32 v5, v5, v6
    v_cmp_eq_u32 vcc, -1, v5
    s_cbranch_vccz L_PPOLL_OK
    s_sleep {SLEEP}
    s_branch L_PPOLL
    L_PPOLL_OK:
    v_add_f32 v40, v44, v48
    v_add_f32 v41, v45, v49
    v_add_f32 v42, v46, v50""")
    xg_sum(a, [40, 41, 42], [44, 45, 46])
    ln_scalars(a, 40, 41)
    a(f"""v_fma_f32 v42, -v40, s36, v42
    v_mul_f32 v42, v42, v41
    v_min_u32 v42, -2, v42
    v_lshlrev_b32 v4, 2, v9
    s_mov_b32 s4, {KEY_OFF}
    s_cmp_lg_u32 s24, 0
    s_cbranch_scc1 L_NOKEY
    s_mov_b64 exec, 0xffff
    buffer_store_dword v42, v4, {WSR}, s4 offen sc1
    s_mov_b64 exec, -1
    L_NOKEY:""")
    a("s_barrier")
    for i in range(10):
        norm_pair(a, WR + i, XR + i, "v40", "v41", 4, 5)
        add_pairs(a, WR + i, WR + i, XR + i, 4, 5, 6)
    a("s_barrier\n s_barrier")
    a("L_SELDONE:")
    for i in range(5):
        a(f"""v_add_u32 v4, {64*i}, v1
        v_mul_u32_u24 v5, 1639, v4
        v_lshrrev_b32 v5, 16, v5
        v_mul_u32_u24 v5, {10240 - 160}, v5
        v_lshl_add_u32 v{64+i}, v4, 2, v5""")
    a(f"""s_waitcnt vmcnt(0) lgkmcnt(0)
    s_barrier""")
    a.stamp(11)
    a(f"""v_mov_b32 v5, {SB+SELL}
    ds_read_b128 v[44:47], v5
    ds_read_b128 v[48:51], v5 offset:16
    s_lshl_b32 s3, s20, 2
    s_add_u32 s3, s3, {SB}
    v_mov_b32 v5, s3
    ds_read_b32 v4, v5 offset:{SELL}
    v_lshlrev_b32 v14, 2, v1
    s_waitcnt lgkmcnt(0)
    v_readfirstlane_b32 s4, v4
    s_lshr_b32 s5, s4, 6
    s_mul_i32 s5, s5, 81920
    s_and_b32 s4, s4, 63
    s_mul_i32 s4, s4, 160
    s_add_u32 s4, s4, s5
    s_add_u32 s4, s4, {H_OFF}""")
    spin_head(a, "L_RPOLL")
    for i in range(5): a(f"buffer_load_dword v{52+i}, v{64+i}, {WSR}, s4 offen sc1")
    a(f"""s_waitcnt vmcnt(0)
    v_max3_u32 v5, v52, v53, v54
    v_max3_u32 v5, v5, v55, v56
    v_cmp_eq_u32 vcc, -1, v5
    s_cbranch_vccz L_RPOLL_OK
    s_sleep {SLEEP}
    s_branch L_RPOLL
    L_RPOLL_OK:
    v_mov_b32 v6, 0
    v_mov_b32 v7, 0""")
    for i in range(5):
        a(f"""v_lshlrev_b32 v4, 16, v{52+i}
        v_and_b32 v5, 0xffff0000, v{52+i}
        v_add_f32 v6, v6, v4
        v_fmac_f32 v7, v4, v4
        v_add_f32 v6, v6, v5
        v_fmac_f32 v7, v5, v5""")
    dpp_reduce(a, "v_add_f32", [6, 7])
    ln_scalars(a, 6, 7)
    a(f"""v_readlane_b32 s5, v6, 63
    v_readlane_b32 s6, v7, 63
    s_mul_i32 s3, s20, {XROW}
    s_add_u32 s3, s3, {XS}
    v_add_u32 v8, s3, v14""")
    for i in range(5):
        norm_pair(a, 57 + i, 52 + i, "s5", "s6", 4, 5)
        a(f"ds_write_b32 v8, v{57+i} offset:{256*i}\n ds_write_b32 v8, v{52+i} offset:{HR - XS + 256*i}")
    a(f"""v_bfe_u32 v6, v1, 2, 2
    v_and_b32 v7, 1, v3
    v_lshl_or_b32 v6, v7, 2, v6
    v_lshrrev_b32 v7, 1, v3
    v_lshl_or_b32 v6, v7, 4, v6
    v_lshlrev_b32 v6, 5, v6
    v_and_b32 v7, 3, v1
    v_lshl_add_u32 v11, v7, 3, v6
    s_waitcnt lgkmcnt(0)
    s_barrier""")
    srd(a, 8, P_OUT, 2621440)
    a("s_cmp_ge_u32 s20, 4\n s_cbranch_scc1 L_NOOUT")
    for i in range(8):
        a(f"v_cmp_ne_u32 vcc, v{44+i}, v9\n s_and_b64 exec, exec, vcc")
    a(f"""s_cbranch_execz L_OUTD
    buffer_store_dwordx4 v[{WR}:{WR+3}], v16, s[8:11], 0 offen
    buffer_store_dwordx4 v[{WR+4}:{WR+7}], v16, s[8:11], 0 offen offset:16
    buffer_store_dwordx2 v[{WR+8}:{WR+9}], v16, s[8:11], 0 offen offset:32
    L_OUTD:
    s_mov_b64 exec, -1
    L_NOOUT:
    s_cmp_ge_u32 s25, 32
    s_cbranch_scc1 L_E
    s_cmp_lg_u32 s20, 7
    s_cbranch_scc1 L_END""")
    DW, DX = 64, 144
    a(f"""v_and_b32 v4, 7, v2
    v_mul_u32_u24 v4, {XROW}, v4
    v_lshl_add_u32 v4, v3, 4, v4
    v_add_u32 v4, {XS}, v4
    v_add_u32 v11, {GW}, v11""")
    for ks in range(20):
        for h in range(2):
            r = DW + 4*ks + 2*h
            a(f"ds_read_b64_tr_b16 v[{r}:{r+1}], v11 offset:{ks*1024 + h*256}")
        a(f"ds_read_b128 {q4(DX+4*ks)}, v4 offset:{64*ks}")
    for ks in range(20):
        a(f"s_waitcnt lgkmcnt({min(15, 3*(19-ks))})")
        a(f"v_mfma_f32_16x16x32_bf16 v[16:19], {q4(DW+4*ks)}, {q4(DX+4*ks)}, {'0' if ks == 0 else 'v[16:19]'}")
    for r in range(4):
        rb16(a, 16 + r)
        a(f"v_mov_b32 v{20+r}, v{16+r}")
    for r in range(4): a(f"v_permlane32_swap_b32 v{16+r}, v{20+r}")
    for r in range(4):
        a(f"""v_mul_f32 v24, 0xbfb8aa3b, v{16+r}
        v_exp_f32 v24, v24
        v_add_f32 v24, 1.0, v24
        v_rcp_f32 v24, v24
        v_mul_f32 v{16+r}, v{16+r}, v24""")
        rb16(a, 16 + r)
        a(f"v_mul_f32 v{16+r}, v{16+r}, v{20+r}")
    a(f"""v_cvt_pk_bf16_f32 v16, v16, v17
    v_cvt_pk_bf16_f32 v17, v18, v19
    v_min_u32 v16, -2, v16
    v_min_u32 v17, -2, v17
    v_mov_b32 v18, v16
    v_mov_b32 v19, v17
    v_lshlrev_b32 v4, 4, v2
    v_permlane16_swap_b32 v16, v18
    v_permlane16_swap_b32 v17, v19
    s_lshl_b32 s3, s30, 7
    s_add_u32 s3, s3, {ACT_OFF}
    s_mov_b64 exec, 0xff
    buffer_store_dwordx4 v[16:19], v4, {WSR}, s3 offen sc1
    s_branch L_END""")
    a(f"""L_E:
    s_sub_u32 s30, s30, 256
    s_lshl_b32 s30, s30, 5
    v_mul_u32_u24 v6, 1280, v19
    v_and_b32 v7, 1, v1
    v_lshl_add_u32 v6, v7, 4, v6
    v_add_u32 v10, s30, v6
    s_add_u32 s32, s32, {WOL}
    s_mul_i32 s33, s20, {32*1280}""")
    srd(a, 12, P_D, 2211840)
    for j in range(7):
        a(f"""s_add_u32 m0, s32, {8192*j}
        s_add_u32 s3, s33, {8*32*1280*j}
        buffer_load_dwordx4 v10, s[12:15], s3 offen lds""")
    srd(a, 12, P_WS, ACT_OFF + 27648)
    AF, EW = 64, 96
    a(f"""v_and_b32 v4, 7, v2
    v_lshlrev_b32 v12, 4, v4
    v_lshl_add_u32 v12, v3, 7, v12
    s_lshl_b32 s4, s20, 9
    s_add_u32 s4, s4, {ACT_OFF}
    v_add_u32 v11, s32, v11
    s_waitcnt vmcnt(0)""")
    for j in range(7):
        for h in range(2):
            r = EW + 4*j + 2*h
            a(f"ds_read_b64_tr_b16 v[{r}:{r+1}], v11 offset:{8192*j + h*256}")
    a(f"""s_mov_b32 s6, {SB}
    v_lshl_add_u32 v5, v4, 2, s6
    ds_read_b32 v13, v5 offset:{SELL}
    v_mul_u32_u24 v5, {XROW}, v4
    v_lshl_add_u32 v5, v3, 3, v5
    s_add_u32 s3, s30, {XS}
    v_add_u32 v5, s3, v5
    ds_read_b64 v[20:21], v5
    ds_read_b64 v[22:23], v5 offset:{HR - XS}
    s_waitcnt lgkmcnt(0)
    v_lshl_add_u32 v5, v13, 2, s6
    ds_read_b32 v15, v5 offset:{RT}
    v_mul_u32_u24 v13, 1280, v13
    v_lshl_add_u32 v13, v3, 3, v13
    v_add_u32 v13, s30, v13
    s_waitcnt lgkmcnt(0)""")
    rb16(a, 15)
    a("""v_mul_f32 v15, 0xbfb8aa3b, v15
    v_exp_f32 v15, v15
    v_add_f32 v15, 1.0, v15
    v_rcp_f32 v15, v15""")
    rb16(a, 15)
    spin_head(a, "L_APOLL")
    for j in range(7):
        a(f"s_add_u32 s5, s4, {4096*j}\n buffer_load_dwordx4 {q4(AF+4*j)}, v12, s[12:15], s5 offen sc1")
    a(f"s_waitcnt vmcnt(0)\n v_max_u32 v5, v{AF}, v{AF+1}")
    for k in range(1, 14): a(f"v_max3_u32 v5, v5, v{AF+2*k}, v{AF+2*k+1}")
    a("v_cmp_eq_u32 vcc, -1, v5"); spin_tail(a, "L_APOLL")
    for j in range(7):
        a(f"v_mfma_f32_16x16x32_bf16 v[24:27], {q4(EW+4*j)}, {q4(AF+4*j)}, {'0' if j == 0 else 'v[24:27]'}")
    a(f"""s_lshl_b32 s3, s20, 10
    s_add_u32 s3, s3, {ERED}
    v_lshl_add_u32 v4, v1, 4, s3
    ds_write_b128 v4, v[24:27]
    s_waitcnt lgkmcnt(0)
    s_barrier
    s_cmp_lg_u32 s20, 0
    s_cbranch_scc1 L_END""")
    for w in range(1, 8): a(f"ds_read_b128 {q4(28+4*w)}, v4 offset:{1024*w}")
    a("s_waitcnt lgkmcnt(0)")
    for w in range(1, 8):
        for r in range(4): a(f"v_add_f32 v{24+r}, v{24+r}, v{28+4*w+r}")
    for r in range(4):
        rb16(a, 24 + r)
        a(f"v_mul_f32 v{24+r}, v{24+r}, v15")
    a("v_cvt_pk_bf16_f32 v24, v24, v25\n v_cvt_pk_bf16_f32 v25, v26, v27")
    for k in range(2):
        add_pairs(a, 24 + k, 24 + k, 20 + k, 4, 5, 6)
        add_pairs(a, 24 + k, 24 + k, 22 + k, 4, 5, 6)
    a("""s_mov_b32 exec_lo, 0x00ff00ff
    s_mov_b32 exec_hi, 0x00ff00ff
    buffer_store_dwordx2 v[24:25], v13, s[8:11], 0 offen
    L_END:""")
    if PROF:
        a("s_mov_b64 exec, -1\n s_waitcnt vmcnt(0)")
        a.stamp(12)
        for i in range(16): a(f"v_mov_b32 v{8+i}, s{88+i}" if i < 13 else f"v_mov_b32 v{8+i}, 0")
        a(f"""s_lshl_b32 s3, s2, 9
        s_add_u32 s3, s3, {PROF_OFF}
        s_lshl_b32 s4, s20, 6
        s_add_u32 s3, s3, s4
        v_mov_b32 v4, s3
        s_mov_b64 exec, 1""")
        for i in range(4): a(f"global_store_dwordx4 v4, {q4(8+4*i)}, s[{P_WS}:{P_WS+1}] offset:{16*i}")
        if "dbg" in sys.argv:
            a("v_not_b32 v21, v8\n v_mov_b32 v4, 0")
            for i in range(14): a(f"global_atomic_umax v4, v{8+i}, s[{P_DBG}:{P_DBG+1}] offset:{4*i}")
    a("L_EXIT:\n s_endpgm")

def build():
    a = PAsm()
    kernel(a)
    name = NAME + "_kernel"
    L = ["; @launch grid=(256,1,1) block=(512,1,1) lds=163840",
         '.amdgcn_target "amdgcn-amd-amdhsa--gfx950"', ".text", f".globl {name}", ".p2align 8",
         f".type {name},@function", f"{name}:", a.render(), "CODE_END:", "s_endpgm",
         '.section .rodata,"a"', ".p2align 6", f".amdhsa_kernel {name}", "  .amdhsa_next_free_vgpr 256",
         "  .amdhsa_next_free_sgpr 102", "  .amdhsa_accum_offset 256", "  .amdhsa_group_segment_fixed_size 0",
         "  .amdhsa_kernarg_size 88", "  .amdhsa_user_sgpr_count 2", "  .amdhsa_user_sgpr_kernarg_segment_ptr 1",
         "  .amdhsa_system_sgpr_workgroup_id_x 1", ".end_amdhsa_kernel"]
    return "\n".join(L) + "\n"

def check_ws(w, im, cmp, tof):
    import numpy as np
    qkv = im["qkv"]
    k = tof(w[K_OFF:K_OFF + 16*64*T32].view(np.uint16)).reshape(16, 64, 5, 32, 8).transpose(1, 3, 0, 2, 4).reshape(2048, 640)
    cmp("k", k, qkv[:, 640:1280])
    v = tof(w[V_OFF:V_OFF + 16*64*T32].view(np.uint16)).reshape(16, 256, 40, 8).transpose(1, 3, 0, 2).reshape(2048, 640)
    cmp("v", v, qkv[:, 1280:])
    ob = w[O_OFF:O_OFF + 64*40960].reshape(64, 40960)
    om = tof(np.ascontiguousarray(ob[:, :32768]).view(np.uint16)).reshape(64, 32, 2, 32, 8).transpose(0, 3, 1, 2, 4).reshape(2048, 32, 16)
    oq = tof(np.ascontiguousarray(ob[:, 32768:]).view(np.uint16)).reshape(64, 32, 32, 4).transpose(0, 2, 1, 3).reshape(2048, 32, 4)
    o = np.concatenate([om, oq], axis=2).reshape(2048, 640)
    cmp("o", o, im["o"])
    h = tof(w[H_OFF:H_OFF + 2048*1280].view(np.uint16)).reshape(32, 8, 64, 80).transpose(0, 2, 1, 3).reshape(2048, 640)
    cmp("h", h, im["h"])
    r = w[KEY_OFF:KEY_OFF + 8192].view(np.float32)
    cmp("r", r, im["r"])

if __name__ == "__main__":
    PROF = "prof" in sys.argv
    if "cyc" in sys.argv: TIMER = "s_memtime"
    out = sys.argv[1] if len(sys.argv) > 1 else f"cdna_kernels/{NAME}.s"
    txt = build()
    open(out, "w").write(txt)
    print("wrote", out, len(txt))
```

```python
import sys, struct
from asmlib import Asm

NAME = "sequential_preLN__sliding_block__moe_arch_mod__prompt"
K_OFF = 0; V_OFF = 0x280000; O_OFF = 0x500000; H_OFF = 0x780000
PART_OFF = 0xA00000; F1_OFF = 0xA40000; KEY_OFF = 0xA50000; ACT_OFF = 0xA52000
RP_OFF = 0xA60000
WS_SIZE = RP_OFF + 27*8*20480
PROF_OFF = 0xF00000
T32 = 2560
PROF = False
TIMER = "s_memrealtime"
SPIN_MAX = 1 << 18
SLEEP = 2
OPT = {}

def f2u(x): return struct.unpack("<I", struct.pack("<f", x))[0]
QSCALE = f2u((20 ** -0.5) * 1.4426950408889634)
EPS = f2u(1e-5); INV640 = f2u(1.0 / 640)
P_X, P_WQKV, P_WO, P_WR, P_G, P_U, P_D, P_OUT, P_DBG, P_WS = 64, 66, 68, 72, 74, 76, 78, 80, 82, 84
WSR = "s[16:19]"
sW, sRB, sHP, sRB2, sCS, sROLE, sLO, sHI = "s20", "s21", "s22", "s23", "s24", "s25", "s26", "s27"

SCR = 159744
WQL = 0; CS2 = 53248; QEX = 54272; GUL = 81920
KL = 102400; VL = 133120; WOL = 0
GW = KL; SB = 122880; RED = VL
SURV = 0; WMAX = 8192; CNT = 8224; SELL = 8256; RT = 153600 - SB
XS = 57344; HR = 67712; XROW = 1296; ERED = 78080

class PAsm(Asm):
    def stamp(self, i, grp=0):
        if i not in (0, 12) and grp != OPT.get("pg", 0): return
        if PROF:
            assert i < 13
            self(f"{TIMER} s[86:87]\n s_waitcnt lgkmcnt(0)\n s_mov_b32 s{88+i}, s86")

def srd(a, d, lo, size):
    a(f"""s_mov_b32 s{d}, s{lo}
    s_and_b32 s{d+1}, s{lo+1}, 0xffff
    s_mov_b32 s{d+2}, {size}
    s_mov_b32 s{d+3}, 0x00020000""")
def rb16(a, v): a(f"v_cvt_pk_bf16_f32 v{v}, v{v}, v{v}\n v_lshlrev_b32 v{v}, 16, v{v}")
def ln_scalars(a, s1, s2):
    a(f"""v_mul_f32 v{s1}, {INV640:#x}, v{s1}
    v_mul_f32 v{s2}, {INV640:#x}, v{s2}
    v_fma_f32 v{s2}, -v{s1}, v{s1}, v{s2}
    v_max_f32 v{s2}, 0, v{s2}
    v_cvt_pk_bf16_f32 v{s2}, v{s1}, v{s2}
    v_lshlrev_b32 v{s1}, 16, v{s2}
    v_and_b32 v{s2}, 0xffff0000, v{s2}
    v_add_f32 v{s2}, {EPS:#x}, v{s2}""")
    rb16(a, s2)
    a(f"v_sqrt_f32 v{s2}, v{s2}")
    rb16(a, s2)
    a(f"v_rcp_f32 v{s2}, v{s2}")
def dpp_reduce(a, op, regs):
    for sh in (1, 2, 4, 8):
        for v in regs: a(f"{op}_dpp v{v}, v{v}, v{v} row_shr:{sh} row_mask:0xf bank_mask:0xf")
    for v in regs: a(f"{op}_dpp v{v}, v{v}, v{v} row_bcast:15 row_mask:0xa bank_mask:0xf")
    for v in regs: a(f"{op}_dpp v{v}, v{v}, v{v} row_bcast:31 row_mask:0xc bank_mask:0xf")
def xg_sum(a, regs, tmps):
    for x, t in zip(regs, tmps): a(f"v_mov_b32 v{t}, v{x}")
    for x, t in zip(regs, tmps): a(f"v_permlane16_swap_b32 v{x}, v{t}")
    for x, t in zip(regs, tmps): a(f"v_add_f32 v{x}, v{x}, v{t}")
    for x, t in zip(regs, tmps): a(f"v_mov_b32 v{t}, v{x}")
    for x, t in zip(regs, tmps): a(f"v_permlane32_swap_b32 v{x}, v{t}")
    for x, t in zip(regs, tmps): a(f"v_add_f32 v{x}, v{x}, v{t}")
def norm_pair(a, d, x, m, rs, t0, t1):
    a(f"""v_lshlrev_b32 v{t0}, 16, v{x}
    v_and_b32 v{t1}, 0xffff0000, v{x}
    v_subrev_f32 v{t0}, {m}, v{t0}
    v_subrev_f32 v{t1}, {m}, v{t1}
    v_cvt_pk_bf16_f32 v{d}, v{t0}, v{t1}
    v_lshlrev_b32 v{t0}, 16, v{d}
    v_and_b32 v{t1}, 0xffff0000, v{d}
    v_mul_f32 v{t0}, {rs}, v{t0}
    v_mul_f32 v{t1}, {rs}, v{t1}
    v_cvt_pk_bf16_f32 v{d}, v{t0}, v{t1}""")
def add_pairs(a, d, x, y, t0, t1, t2):
    a(f"""v_lshlrev_b32 v{t0}, 16, v{x}
    v_lshlrev_b32 v{t1}, 16, v{y}
    v_add_f32 v{t0}, v{t0}, v{t1}
    v_and_b32 v{t1}, 0xffff0000, v{x}
    v_and_b32 v{t2}, 0xffff0000, v{y}
    v_add_f32 v{t1}, v{t1}, v{t2}
    v_cvt_pk_bf16_f32 v{d}, v{t0}, v{t1}""")
def q2(r): return f"v[{r}:{r+1}]"
def q4(r): return f"v[{r}:{r+3}]"
def r16(x): return f"v[{x}:{x+15}]"
M40 = "s_mov_b32 exec_hi, 0xff"
MALL = "s_mov_b64 exec, -1"
def spin_head(a, L):
    a(f"s_mov_b32 s3, 0\n {L}:\n s_add_u32 s3, s3, 1\n s_cmp_gt_u32 s3, {SPIN_MAX}\n s_cbranch_scc1 L_END")
def spin_tail(a, L, sl=None):
    a(f"s_cbranch_vccz {L}_OK\n s_sleep {SLEEP if sl is None else sl}\n s_branch {L}\n {L}_OK:")
def div_lane(a, q, r, src, d):
    magic = (65536 + d - 1) // d
    a(f"""v_mul_u32_u24 v{q}, {magic}, v{src}
    v_lshrrev_b32 v{q}, 16, v{q}
    v_mul_u32_u24 v{r}, {d}, v{q}
    v_sub_u32 v{r}, v{src}, v{r}""")
def kappa(a, d, s, t):
    a(f"""v_and_b32 v{d}, 0x13, v{s}
    v_and_b32 v{t}, 4, v{s}
    v_lshl_or_b32 v{d}, v{t}, 1, v{d}
    v_and_b32 v{t}, 8, v{s}
    v_lshrrev_b32 v{t}, 1, v{t}
    v_or_b32 v{d}, v{d}, v{t}""")
def rho(a, d, t):
    a(f"""v_bfe_u32 v{d}, v1, 2, 2
    v_and_b32 v{t}, 1, v3
    v_lshl_or_b32 v{d}, v{t}, 2, v{d}
    v_lshrrev_b32 v{t}, 1, v3
    v_lshl_or_b32 v{d}, v{t}, 4, v{d}""")
def masked_load(a, dst, voff, ptr, L, fl=""):
    a(f"""s_and_saveexec_b64 s[6:7], vcc
    s_cbranch_execz {L}
    global_load_dword v{dst}, v{voff}, s[{ptr}:{ptr+1}] {fl}
    {L}:
    {MALL}""")
def mm16(d, x, y, first): return f"v_mfma_f32_16x16x32_bf16 {q4(d)}, {q4(x)}, {q4(y)}, {'0' if first else q4(d)}"

def kernel(a):
    vXD0, vXD1, vWD, vQD = 10, 11, 12, 13
    NEG = 16
    ONES = 20
    WF = 24
    XP = 48
    ACC = 56
    XX, SX, CS = 80, 84, 88
    PK = 92
    TMP = 104
    XF = 136
    vWO0, vWO1 = 216, 217
    vST = 218
    vCSA = 221
    vPW, vPR0, vPR1, vCW = 224, 225, 226, 227
    vQA = 228
    vMR = 234
    vOC0, vOC1 = 238, 239
    vGU, vF1A, vF2A = 240, 241, 242
    vAS = 104
    SLOT = 26624
    def slot(c): return ((c + 2) % 6) * SLOT
    if PROF:
        for i in range(13): a(f"s_mov_b32 s{88+i}, 0")
    a.stamp(0)
    a(f"""s_load_dwordx16 s[64:79], s[0:1], 0
    s_load_dwordx4 s[80:83], s[0:1], 64
    s_load_dwordx2 s[84:85], s[0:1], 80
    s_getpc_b64 s[4:5]
    CODE_START:
    s_cmp_ge_u32 s2, 256
    s_cbranch_scc1 L_EXIT
    s_lshr_b32 s63, s2, 3             ; idx
    s_lshl_b32 s3, s63, 7
    v_lshl_add_u32 v4, v0, 12, s3
    v_cmp_gt_u32 vcc, CODE_END-CODE_START, v4""")
    masked_load(a, 250, 4, 4, "L_NOPF")
    a(f"""v_and_b32 v1, 63, v0
    v_lshrrev_b32 v4, 6, v0
    v_and_b32 v2, 15, v0
    v_readfirstlane_b32 {sW}, v4
    v_lshrrev_b32 v3, 4, v1
    s_and_b32 s3, s63, 3
    s_lshr_b32 {sHP}, s63, 2         ; s local
    s_bfe_u32 {sRB}, s2, 0x20001""")
    if OPT.get("rot", 1) == 1:
        a(f"""s_mul_i32 s4, s3, 5
        s_lshr_b32 s4, s4, 1
        s_add_u32 s4, s4, {sHP}
        s_add_u32 s4, s4, {sRB}
        s_cmp_ge_u32 s4, 10
        s_cselect_b32 s5, 10, 0
        s_sub_u32 s4, s4, s5""")
    else:
        a(f"""s_add_u32 s4, s3, {sHP}
        s_and_b32 s4, s4, 3
        s_mul_i32 s4, s4, 5
        s_lshr_b32 s4, s4, 1""")
    a(f"""s_lshl_b32 {sRB}, {sRB}, 2
    s_add_u32 {sRB}, {sRB}, s3
    s_and_b32 s3, s2, 1
    s_lshl_b32 s3, s3, 3
    s_add_u32 {sHP}, {sHP}, s3
    s_lshl_b32 s28, s4, 7
    s_mul_i32 s29, s4, 245760
    s_mov_b32 s62, s29
    s_lshl_b32 s3, {sRB}, 3
    s_add_u32 s3, s3, {sW}
    s_lshl_b32 s3, s3, 4
    v_lshrrev_b32 v4, 3, v1
    v_add_u32 v4, s3, v4
    v_mul_u32_u24 v4, 1280, v4
    v_and_b32 v5, 7, v1
    v_xor_b32 v5, v5, v3
    v_lshl_add_u32 v{vXD0}, v5, 4, v4
    v_xor_b32 v{vXD1}, 64, v{vXD0}
    v_add_u32 v{vXD1}, 10240, v{vXD1}""")
    div_lane(a, 8, 9, 1, 10)
    a(f"""s_and_b32 s3, {sW}, 1
    s_lshl_b32 s3, s3, 2
    s_lshr_b32 s4, {sW}, 1
    s_lshl_b32 s4, s4, 4
    s_add_u32 s60, s3, s4             ; 4(w&1)+16(w>>1)
    v_add_u32 v4, s60, v8
    v_mul_u32_u24 v4, 3840, v4
    v_lshl_add_u32 v4, v9, 4, v4
    s_mul_i32 s3, {sHP}, 160
    s_add_u32 s3, s3, 1280
    v_add_u32 v{vWD}, s3, v4
    s_lshl_b32 s30, {sW}, 11
    s_mul_i32 s31, {sW}, 1280
    s_add_u32 s31, s31, 16384
    s_waitcnt lgkmcnt(0)""")
    a.stamp(1)
    srd(a, 8, P_X, 2621440)
    srd(a, 12, P_WQKV, 2457600)
    XFL = 'nt' if OPT.get('xnt') else ''; WFL = 'nt' if OPT.get('wnt') else ''
    def dmaA(c):
        b = slot(c)
        return [f"""s_add_u32 m0, s30, {b}
        s_nop 0
        buffer_load_dwordx4 v{vXD0}, s[8:11], s28 offen {XFL} lds""",
        f"""s_add_u32 m0, s31, {b}
        {M40}
        buffer_load_dwordx4 v{vWD}, s[12:15], s29 offen {WFL} lds
        {MALL}""",
        f"""s_add_u32 m0, s30, {b + 1024}
        s_add_u32 s39, s29, 30720
        buffer_load_dwordx4 v{vXD1}, s[8:11], s28 offen {XFL} lds
        s_add_u32 s28, s28, 128
        s_add_u32 s29, s29, 245760""",
        f"""s_add_u32 m0, s31, {b + 640}
        {M40}
        buffer_load_dwordx4 v{vWD}, s[12:15], s39 offen {WFL} lds
        {MALL}
        s_cmp_ge_u32 s28, 1280
        s_cselect_b32 s28, 0, s28
        s_cselect_b32 s29, 0, s29"""]
    for x in dmaA(0): a(x)
    srd(a, 16, P_WS, WS_SIZE)
    a(f"""s_and_b32 {sLO}, {sW}, 3
    s_lshr_b32 {sHI}, {sW}, 2
    s_lshl_b32 s61, {sLO}, 1
    s_add_u32 s61, s61, {sHI}
    s_and_b32 s3, s2, 7
    s_lshl_b32 {sRB2}, s3, 2
    s_lshr_b32 s5, s63, 3
    s_add_u32 {sRB2}, {sRB2}, s5
    s_and_b32 {sCS}, s63, 7
    s_min_u32 s4, s3, 5
    s_sub_u32 {sROLE}, {sRB2}, s4
    s_cmp_eq_u32 s5, 3
    s_cselect_b32 s4, s3, 7
    s_add_u32 s3, s3, 32
    s_cmp_lt_u32 s4, 5
    s_cselect_b32 {sROLE}, s3, {sROLE}
    s_lshl_b32 s4, {sHP}, 4
    s_add_u32 s4, s4, {sRB}
    s_lshl_b32 s4, s4, 7
    s_add_u32 s59, s4, {F1_OFF}
    v_mov_b32 v{NEG}, -1
    v_mov_b32 v{NEG+1}, -1
    v_mov_b32 v{NEG+2}, -1
    v_mov_b32 v{NEG+3}, -1
    s_cmp_lg_u32 {sW}, 0
    s_cbranch_scc1 L_NOCLR
    s_lshl_b32 s3, s2, 10
    s_add_u32 s3, s3, {PART_OFF}
    v_lshl_add_u32 v6, v1, 4, s3
    buffer_store_dwordx4 {q4(NEG)}, v6, {WSR}, 0 offen sc1
    s_lshl_b32 s6, s2, 7
    s_add_u32 s6, s6, {ACT_OFF - 128}
    s_lshl_b32 s7, s2, 5
    s_add_u32 s7, s7, {KEY_OFF - 256}
    v_mov_b32 v6, s59
    v_mov_b32 v7, s6
    v_cmp_le_u32 vcc, 8, v1
    v_cndmask_b32 v6, v6, v7, vcc
    v_mov_b32 v7, s7
    v_cmp_le_u32 vcc, 16, v1
    v_cndmask_b32 v6, v6, v7, vcc
    v_lshl_add_u32 v6, v1, 4, v6
    s_mov_b64 exec, 0x3ffff
    buffer_store_dwordx4 {q4(NEG)}, v6, {WSR}, 0 offen sc1
    {MALL}
    L_NOCLR:""")
    div_lane(a, 4, 5, 0, 5)
    a(f"""s_mul_i32 s3, s63, 20
    v_add_u32 v4, s3, v4
    v_mul_u32_u24 v4, 3840, v4
    v_lshl_add_u32 v4, v5, 7, v4
    s_and_b32 s3, s2, 1
    s_mul_i32 s3, s3, 640
    v_add_u32 v244, s3, v4""")
    if OPT.get("tqs", -1) < 0:
        a("v_cmp_gt_u32 vcc, 100, v0"); masked_load(a, 251, 244, P_WQKV, "L_TQ")
    a.stamp(1, 1)
    a(f"""s_lshr_b32 s3, s60, 4
    s_lshl_b32 s3, s3, 2
    s_add_u32 s3, s3, s60             ; 20(w>>1)+4(w&1)
    v_add_u32 v4, s3, v8
    v_mul_u32_u24 v4, 1280, v4
    s_mul_i32 s3, s60, 5
    s_add_u32 s3, s3, 16
    v_add_u32 v5, s3, v8
    v_mul_u32_u24 v5, 1280, v5
    s_mul_i32 s3, {sCS}, 160
    v_lshl_add_u32 v6, v9, 4, s3
    v_add_u32 v{vWO0}, v4, v6
    v_add_u32 v{vWO1}, v5, v6
    v_lshrrev_b32 v4, 1, v2
    v_xor_b32 v4, v4, v3
    v_lshlrev_b32 v4, 4, v4
    v_lshl_add_u32 v4, v2, 7, v4
    s_lshl_b32 s3, s61, 11
    v_add_u32 v{vAS}, s3, v4
    v_xor_b32 v{vAS+1}, 64, v{vAS}
    v_xor_b32 v{vAS+2}, 0x800, v{vAS}
    v_xor_b32 v{vAS+3}, 0x840, v{vAS}""")
    rho(a, 4, 5)
    a(f"""v_mul_u32_u24 v4, 160, v4
    v_and_b32 v5, 3, v1
    v_lshl_add_u32 v4, v5, 3, v4
    v_add_u32 v4, 16384, v4
    s_cmp_ge_u32 {sHP}, 8
    s_cselect_b64 s[56:57], -1, 0
    v_lshlrev_b32 v6, 4, v3
    v_lshlrev_b32 v7, 2, v2
    v_cndmask_b32 v14, v6, v7, s[56:57]
    v_cndmask_b32 v15, v7, v6, s[56:57]
    v_and_b32 v5, 1, v3
    v_xor_b32 v5, {sHI}, v5           ; half
    v_lshrrev_b32 v9, 1, v3           ; g>>1
    v_lshlrev_b32 v6, 8, v5
    v_lshl_add_u32 v6, v2, 4, v6      ; K: half*256 + 16j
    v_lshl_add_u32 v7, v5, 1, v9
    v_mul_u32_u24 v7, 640, v7         ; V: octet*640
    s_sub_u32 s5, 3, {sHI}            ; ntiles
    s_mul_i32 s6, {sHI}, 3""")
    for u in range(3):
        a(f"""s_add_u32 s{32+u}, {sLO}, {u}
        s_cmp_ge_u32 s{32+u}, s5
        s_cselect_b32 s3, s5, 0
        s_sub_u32 s{32+u}, s{32+u}, s3
        s_cmp_ge_u32 s{32+u}, s5
        s_cselect_b32 s3, s5, 0
        s_sub_u32 s{32+u}, s{32+u}, s3
        s_add_u32 s{32+u}, s{32+u}, s6
        s_lshl_b32 s3, s{32+u}, 5
        v_add_u32 v{vAS+4+u}, s3, v4
        s_lshl_b32 s3, s{32+u}, 6
        s_add_u32 s3, s3, {SCR+1024}
        v_add_u32 v{vCSA+u}, s3, v14
        s_lshl_b32 s3, s{32+u}, 1
        v_add_u32 v5, s3, v9
        v_cmp_le_u32 vcc, 5, v5
        v_mov_b32 v8, {64*T32 - 5*512}
        v_cndmask_b32 v8, 0, v8, vcc
        v_lshl_add_u32 v8, v5, 9, v8
        v_add_u32 v{vST+u}, v8, v6
        s_lshl_b32 s3, s{32+u}, 4
        v_add_u32 v5, s3, v2
        v_cmp_le_u32 vcc, 40, v5
        v_mov_b32 v8, {64*T32 - 640}
        v_cndmask_b32 v8, 0, v8, vcc
        v_lshl_add_u32 v8, v5, 4, v8
        v_add_u32 v8, v8, v7
        v_cndmask_b32 v{vST+u}, v{vST+u}, v8, s[56:57]""")
    for q in (1, 2):
        for i in range(7): a(f"v_add_u32 v{vAS+7*q+i}, {2*SLOT*q}, v{vAS+i}")
    for i in range(4): a(f"v_mov_b32 v{ONES+i}, 0x3f803f80")
    for x in dmaA(1): a(x)
    a(f"""s_lshl_b32 s3, s61, 6
    s_add_u32 s3, s3, {SCR}
    v_lshl_add_u32 v{vPW}, v2, 2, s3
    v_add_u32 v{vPR0}, s3, v15
    v_xor_b32 v{vPR1}, 64, v{vPR0}
    s_lshl_b32 s3, s32, 6
    s_add_u32 s3, s3, {SCR+1024}
    v_lshl_add_u32 v{vCW}, v2, 2, s3
    v_lshrrev_b32 v4, 2, v2
    v_cmp_eq_u32 s[54:55], v4, v3
    v_and_b32 v4, 3, v2
    v_cmp_eq_u32 s[48:49], 1, v4
    v_cmp_eq_u32 s[50:51], 2, v4
    v_cmp_eq_u32 s[52:53], 3, v4
    s_lshl_b32 s4, {sRB}, 2
    s_add_u32 s4, s4, {sLO}
    s_mul_i32 s4, s4, {T32}
    s_mul_i32 s37, {sHP}, {2*64*T32}
    s_add_u32 s37, s37, s4""")
    assert V_OFF == 8*2*64*T32 and K_OFF == 0
    div_lane(a, 4, 5, 1, 5)
    a(f"""v_and_b32 v6, 1, v4
    v_lshrrev_b32 v4, 1, v4
    v_lshl_add_u32 v4, v6, 2, v4
    s_lshl_b32 s3, {sW}, 3
    v_add_u32 v4, s3, v4
    v_mul_u32_u24 v4, 3840, v4
    v_lshl_add_u32 v4, v5, 4, v4
    s_mul_i32 s3, {sHP}, 80
    v_add_u32 v{vQD}, s3, v4
    s_mul_i32 s38, {sW}, 640
    v_bfe_u32 v4, v1, 2, 2
    v_lshlrev_b32 v4, 1, v4
    v_lshl_add_u32 v4, v3, 3, v4
    v_mul_u32_u24 v4, 80, v4
    v_and_b32 v5, 3, v1
    v_lshl_add_u32 v4, v5, 3, v4
    s_mul_i32 s4, {sHI}, 2560
    s_sub_u32 s5, 2560, s4""")
    for u in range(3):
        a(f"""s_add_u32 s{40+u}, {sLO}, {u}
        s_cmp_ge_u32 s{40+u}, 3
        s_cselect_b32 s3, 3, 0
        s_sub_u32 s{40+u}, s{40+u}, s3
        s_lshl_b32 s3, s{40+u}, 5
        v_add_u32 v5, s3, v4
        v_add_u32 v{vQA+u}, s4, v5
        v_add_u32 v{vQA+3+u}, s5, v5""")
    a(f"""s_lshl_b32 s3, {sRB}, 2
    s_add_u32 s3, s3, {sLO}
    s_mul_i32 s3, s3, 40960
    s_add_u32 s3, s3, {O_OFF}
    s_lshl_b32 s4, {sHP}, 1
    s_add_u32 s4, s4, {sHI}
    s_lshl_b32 s5, s4, 10
    s_add_u32 s5, s5, s3
    v_lshl_add_u32 v{vOC0}, v1, 4, s5
    s_lshl_b32 s5, s4, 8
    s_add_u32 s5, s5, s3
    s_add_u32 s5, s5, 32768
    v_lshl_add_u32 v{vOC1}, v1, 3, s5
    s_mul_i32 s3, {sCS}, 80
    s_lshl_b32 s4, {sW}, 4
    s_add_u32 s3, s3, s4
    v_lshrrev_b32 v4, 3, v1
    v_add_u32 v4, s3, v4
    v_mul_u32_u24 v4, 3456, v4
    v_and_b32 v5, 7, v1
    v_lshl_add_u32 v4, v5, 4, v4
    s_lshl_b32 s3, {sROLE}, 7
    v_add_u32 v{vGU}, s3, v4
    v_subrev_u32 v5, 24, v1
    v_cmp_gt_u32 vcc, 24, v1
    v_cndmask_b32 v5, v5, v1, vcc
    v_mov_b32 v6, 128
    v_cndmask_b32 v6, v6, 0, vcc
    v_lshrrev_b32 v7, 3, v5
    s_sub_u32 s3, {sRB}, 2
    v_add_u32 v7, s3, v7
    v_cmp_le_i32 s[46:47], 0, v7
    s_lshr_b32 s3, {sHP}, 1
    s_lshl_b32 s3, s3, 4
    v_add3_u32 v6, v6, v7, s3
    v_lshlrev_b32 v6, 7, v6
    v_and_b32 v5, 7, v5
    v_lshl_add_u32 v6, v5, 2, v6
    v_add_u32 v{vF1A}, {F1_OFF}, v6
    s_and_b32 s47, s47, 0xffff
    v_lshrrev_b32 v4, 2, v1
    v_lshlrev_b32 v4, 11, v4
    v_and_b32 v5, 1, v1
    v_lshl_add_u32 v4, v5, 2, v4
    v_and_b32 v5, 2, v1
    v_lshl_add_u32 v4, v5, 3, v4
    s_lshr_b32 s3, {sRB2}, 1
    s_lshl_b32 s3, s3, 7
    s_and_b32 s4, {sRB2}, 1
    s_lshl_b32 s4, s4, 3
    s_add_u32 s3, s3, s4
    s_add_u32 s3, s3, {F1_OFF}
    v_add_u32 v{vF2A}, s3, v4
    s_lshl_b32 s3, {sRB2}, 3
    s_add_u32 s3, s3, {sCS}
    s_mul_i32 s3, s3, 10240
    s_mul_i32 s4, {sW}, 1280
    s_add_u32 s3, s3, s4
    s_add_u32 s3, s3, {H_OFF}
    v_lshl_add_u32 v243, v1, 4, s3""")
    a(f"""    s_mul_i32 s3, s63, 200
    s_max_u32 s4, {sW}, 5
    s_sub_u32 s4, s4, 5
    s_mul_i32 s4, s4, 68
    s_add_u32 s3, s3, s4
    v_add_u32 v4, s3, v1
    v_lshlrev_b32 v245, 7, v4
    v_subrev_u32 v4, 384, v0
    v_lshrrev_b32 v5, 1, v4
    s_mul_i32 s3, s63, 54
    v_add_u32 v5, s3, v5
    v_mul_u32_u24 v5, 1280, v5
    v_and_b32 v4, 1, v4
    v_lshl_add_u32 v5, v4, 7, v5
    s_and_b32 s3, s2, 7
    s_lshl_b32 s3, s3, 8
    v_add_u32 v246, s3, v5""")
    def dmaQ(i):
        return f"""s_add_u32 m0, s38, {WQL + i*5120}
        {M40}
        buffer_load_dwordx4 v{vQD}, s[12:15], s62 offen lds
        {MALL}
        s_add_u32 s62, s62, 245760
        s_cmp_ge_u32 s62, 2457600
        s_cselect_b32 s62, 0, s62"""
    def a1_reads(n, cg):
        c, ks, b = n >> 1, n & 1, n & 1
        sl = (c + 2) % 6
        base, off = vAS + 7*(sl // 2), (sl % 2) * SLOT
        L = [f"ds_read_b128 {q4(XF+4*(n ^ cg))}, v{base+ks} offset:{off}"]
        for u in range(3 - cg):
            for h in range(2):
                L.append(f"ds_read_b64_tr_b16 {q2(WF+12*b+4*u+2*h)}, v{base+4+u} offset:{off + ks*5120 + h*1280}")
        L.insert(3, f"ds_read_b128 {q4(XP+4*b)}, v{base+2+ks} offset:{off}")
        return L
    def a1_mfmas(n, isv, cg):
        b = n & 1; f = n == 0
        x = [XF + 4*(n ^ cg), XP + 4*b]
        L = [(mm16(XX, x[0], x[0], f), 0), (mm16(SX, ONES, x[0], f), 0), (mm16(CS, ONES, WF+12*b, f), 2)]
        for u in range(3 - cg):
            w = WF + 12*b + 4*u
            for t in range(2):
                d = ACC + 8*u + 4*t
                need = (2 if t == 0 else 3) if u == 0 else 2*u + 3
                L.append((mm16(d, x[t], w, f) if isv else mm16(d, w, x[t], f), need))
        return L
    a.stamp(2, 1)
    a("s_waitcnt vmcnt(4)\n s_barrier")
    a.stamp(2); a.stamp(3, 1)
    a(f"""s_cmp_lg_u32 {sW}, 0
    s_cbranch_scc1 L_NOSIG
    s_and_b32 s3, s2, 63
    s_lshl_b32 s3, s3, 2
    v_mov_b32 v4, s3
    v_mov_b32 v5, 1
    s_mov_b64 exec, 1
    global_atomic_add v4, v5, s[{P_DBG}:{P_DBG+1}] sc1
    {MALL}
    L_NOSIG:
    s_lshr_b32 s3, {sHP}, 3
    s_lshl_b32 s3, s3, 1
    s_add_u32 s3, s3, {sHI}
    s_cmp_eq_u32 s3, 1
    s_cbranch_scc1 L_A1_01
    s_cmp_eq_u32 s3, 2
    s_cbranch_scc1 L_A1_10
    s_cmp_eq_u32 s3, 3
    s_cbranch_scc1 L_A1_11""")
    D = OPT.get("dist", 3)
    TQS = OPT.get("tqs", -1); CLS = OPT.get("cls", 9)
    BAR2 = OPT.get("bar2", 0)
    def a1(isv, cg):
        tag = f"{int(isv)}{cg}"
        a(f"L_A1_{tag}:")
        vq = ["c1"] * 4
        side = {n: [] for n in range(20)}
        for c in range(2, 10):
            st = 2 * max(c - D, 0)
            if c - D < 0: st = 0
            for k, x in enumerate(dmaA(c)): side[st + (k >> 1) if c - D >= 0 else 0].append((x, f"c{c}"))
        q0 = max(2 * (10 - D), 13)
        for q in range(10): side[min(q0 + q // 2, 19)].append((dmaQ(q), "q"))
        side[CLS].append((f"""buffer_store_dwordx4 {q4(NEG)}, v{vOC0}, {WSR}, 0 offen sc1""", "x"))
        side[CLS].append((f"""s_mov_b32 exec_hi, 0
        buffer_store_dwordx2 {q2(NEG)}, v{vOC1}, {WSR}, 0 offen sc1
        {MALL}""", "x"))
        R = a1_reads(0, cg)
        for x in R: a(x)
        for n in range(20):
            c = n >> 1
            Rn = a1_reads(n + 1, cg) if n < 19 else []
            M = a1_mfmas(n, isv, cg)
            nr = len(R)
            barrier = (n & 1) and c < 9
            want = [f"c{c+1}"]
            if BAR2 and barrier and c >= BAR2:
                if (c - BAR2) & 1: barrier = False
                elif c + 2 <= 9: want.append(f"c{c+2}")
            issued = 0; done = -1
            if barrier:
                last = max(i for i, t in enumerate(vq) if t in want)
                a(f"s_waitcnt vmcnt({len(vq) - 1 - last})\n s_barrier")
                vq = vq[last + 1:]
                if c in (0, 1, 2, 3, 4, 5, 6, 8): a.stamp({0:4, 1:5, 2:6, 3:7, 4:8, 5:9, 6:10, 8:11}[c], 1)
            S = list(side[n])
            gap = max(1, len(M) // max(1, len(S)))
            for k, (m, need) in enumerate(M):
                if need > done:
                    a(f"s_waitcnt lgkmcnt({nr - 1 - need + issued})"); done = need
                a(m)
                if k < len(Rn): a(Rn[k]); issued += 1
                if S and (k % gap == gap - 1 or k == len(M) - 1):
                    while S:
                        x, t = S.pop(0); a(x); vq.append(t)
                        if k < len(M) - 1: break
            if n == TQS and cg == 0:
                a("v_cmp_gt_u32 vcc, 100, v0"); masked_load(a, 251, 244, P_WQKV, f"L_TQ{tag}")
            R = Rn
        a.stamp(3); a.stamp(1, 2)
        NT = 3 - cg
        if cg == 1:
            a(f"""v_lshlrev_b32 v8, 2, v1
            s_cmp_lg_u32 {sW}, 7
            s_cbranch_scc1 L_NOC1{tag}
            global_load_dword v9, v8, s[{P_DBG}:{P_DBG+1}] sc1
            L_NOC1{tag}:""")
        a(f"""ds_write_b32 v{vCW}, v{CS}
        v_cndmask_b32 v{XX}, v{XX}, v{XX+1}, s[48:49]
        v_cndmask_b32 v{XX}, v{XX}, v{XX+2}, s[50:51]
        v_cndmask_b32 v{SX+1}, v{XX}, v{XX+3}, s[52:53]""")
        ln_scalars(a, SX, SX + 1)
        a(f"""s_mov_b64 exec, s[54:55]
        ds_write2st64_b32 v{vPW}, v{SX}, v{SX+1} offset0:0 offset1:2
        {MALL}
        s_waitcnt lgkmcnt(0)
        s_barrier""")
        a.stamp(2, 2)
        a(f"ds_read2st64_b32 {q2(vMR)}, v{vPW} offset0:0 offset1:2")
        if not isv:
            a(f"ds_read2st64_b32 {q2(vMR+2)}, v{vPR1} offset0:0 offset1:2")
            for u in range(NT): a(f"ds_read_b128 {q4(TMP+4*u)}, v{vCSA+u}")
            a("s_waitcnt lgkmcnt(0)")
            for u in range(NT):
                for t in range(2):
                    for e in (0, 2):
                        d = ACC + 8*u + 4*t + e
                        a(f"v_pk_fma_f32 {q2(d)}, {q2(TMP+4*u+e)}, {q2(vMR+2*t)}, {q2(d)} op_sel_hi:[1,0,1] neg_lo:[1,0,0] neg_hi:[1,0,0]")
            for u in range(NT):
                for t in range(2):
                    for e in (0, 2):
                        d = ACC + 8*u + 4*t + e
                        a(f"v_pk_mul_f32 {q2(d)}, {q2(d)}, {q2(vMR+2*t)} op_sel:[0,1] op_sel_hi:[1,1]")
        else:
            for t in range(2):
                a(f"ds_read_b128 {q4(TMP+8*t)}, v{vPR0+t}\n ds_read_b128 {q4(TMP+8*t+4)}, v{vPR0+t} offset:512")
            for u in range(NT): a(f"ds_read_b32 v{TMP+16+2*u}, v{vCSA+u}")
            a("s_waitcnt lgkmcnt(0)")
            for u in range(NT):
                for t in range(2):
                    for e in (0, 2):
                        d = ACC + 8*u + 4*t + e
                        a(f"v_pk_fma_f32 {q2(d)}, {q2(TMP+8*t+e)}, {q2(TMP+16+2*u)}, {q2(d)} op_sel_hi:[1,0,1] neg_lo:[1,0,0] neg_hi:[1,0,0]")
            for u in range(NT):
                for t in range(2):
                    for e in (0, 2):
                        d = ACC + 8*u + 4*t + e
                        a(f"v_pk_mul_f32 {q2(d)}, {q2(d)}, {q2(TMP+8*t+4+e)}")
        for e in range(0, 8*NT, 2): a(f"v_cvt_pk_bf16_f32 v{PK+e//2}, v{ACC+e}, v{ACC+e+1}")
        for u in range(NT): a(f"v_permlane16_swap_b32 v{PK+4*u}, v{PK+4*u+2}\n v_permlane16_swap_b32 v{PK+4*u+1}, v{PK+4*u+3}")
        a.stamp(3, 2)
        for u in range(NT): a(f"buffer_store_dwordx4 {q4(PK+4*u)}, v{vST+u}, {WSR}, s37 offen sc1")
        a(f"s_waitcnt vmcnt({NT})")
        if tag != "11": a("s_branch L_A2")
    a1(False, 0); a1(False, 1); a1(True, 0); a1(True, 1)

    a("L_A2:")
    a.stamp(4, 2)
    a("s_barrier")
    a.stamp(4); a.stamp(5, 2)
    def a2_reads(n):
        b = n & 1
        return [f"ds_read_b64_tr_b16 {q2(WF+12*b+4*u+2*h)}, v{vQA+3*b+u} offset:{(n >> 1)*5120 + h*80}" for u in range(3) for h in range(2)]
    for r in a2_reads(0): a(r)
    srd(a, 8, P_G, 2211840)
    srd(a, 12, P_U, 2211840)
    srd(a, 48, P_WO, 819200)
    a(f"""s_lshl_b32 s3, {sW}, 2
    s_add_u32 s3, s3, s59
    v_mov_b32 v6, s3
    v_mov_b32 v7, 1
    s_lshl_b32 s39, {sW}, 12
    s_cmp_ge_u32 {sROLE}, 32
    s_cselect_b32 s58, 7, {sW}""")
    def batch(k):
        sr = 8 + 4*k
        a(f"""s_cmp_ge_u32 s58, 5
        s_cbranch_scc1 L_BT{k}
        s_add_u32 m0, s39, {GUL + 2048*k}
        s_mov_b32 s5, {8*3456}
        buffer_load_dwordx4 v{vGU}, s[{sr}:{sr+3}], 0 offen nt lds
        s_add_u32 m0, s39, {GUL + 2048*k + 1024}
        s_nop 0
        buffer_load_dwordx4 v{vGU}, s[{sr}:{sr+3}], s5 offen nt lds
        s_branch L_BD{k}
        L_BT{k}:
        s_mov_b64 exec, 0x1ffff
        s_mov_b32 s5, {34*128*k}
        buffer_load_dword v252, v245, s[48:51], s5 offen
        buffer_load_dword v253, v245, s[48:51], s5 offen offset:{17*128}
        {MALL}
        L_BD{k}:""")
    batch(0)
    F1S = OPT.get("f1s", 3); B2S = OPT.get("b2s", 8); PLS = OPT.get("pls", 15)
    for n in range(20):
        Rn = a2_reads(n + 1) if n < 19 else []
        b = n & 1; f = n == 0
        issued = 0
        for u in range(3):
            a(f"s_waitcnt lgkmcnt({4 - 2*u + issued})")
            a(mm16(ACC+4*u, WF+12*b+4*u, XF+4*n, f))
            if u == 0 and b == 0: a(mm16(CS, ONES, WF, f))
            for x in Rn[2*u:2*u+2]: a(x); issued += 1
        if n == F1S:
            a.stamp(6, 2)
            a("s_waitcnt vmcnt(2)")
            a.stamp(7, 2)
            a(f"""s_mov_b64 exec, 1
            buffer_store_dword v7, v6, {WSR}, 0 offen sc1
            {MALL}""")
        if n == B2S: batch(1)
        if n == PLS:
            a(f"""s_cmp_lg_u32 {sW}, 7
            s_cbranch_scc1 L_NOPL
            v_cmp_gt_u32 vcc, 4, v9
            s_cbranch_vccz L_CLRPOLL_OK""")
            spin_head(a, "L_CLRPOLL")
            a(f"""global_load_dword v9, v8, s[{P_DBG}:{P_DBG+1}] sc1
            s_waitcnt vmcnt(0)
            v_cmp_gt_u32 vcc, 4, v9""")
            spin_tail(a, "L_CLRPOLL")
            a(f"""s_mov_b64 exec, s[46:47]
            buffer_load_dword v8, v{vF1A}, {WSR}, 0 offen sc1
            {MALL}
            L_NOPL:""")
    a.stamp(8, 2)
    a(f"""s_lshl_b32 s3, s40, 6
    s_lshl_b32 s4, {sHI}, 8
    s_add_u32 s3, s3, s4
    s_add_u32 s3, s3, {CS2}
    v_lshl_add_u32 v6, v2, 2, s3
    v_mul_f32 v{vMR+1}, {QSCALE:#x}, v{vMR+1}
    ds_write_b32 v6, v{CS}
    s_lshl_b32 s39, {sW}, 10
    s_lshl_b32 s3, {sRB}, 2
    s_sub_u32 s3, s3, 8
    s_mul_i32 s3, s3, {T32}
    s_add_u32 s3, s3, s39
    v_lshl_add_u32 v10, v1, 4, s3
    s_mul_i32 s3, {sHP}, {64*T32}
    s_add_u32 s4, s{P_WS}, s3
    s_addc_u32 s5, s{P_WS+1}, 0
    s_add_u32 s6, s4, {V_OFF}
    s_addc_u32 s7, s5, 0""")
    srd(a, 8, 4, 64*T32)
    srd(a, 12, 6, 64*T32)
    a(f"""s_cmp_lg_u32 {sW}, 7
    s_cbranch_scc1 L_F1DONE
    s_mov_b64 exec, s[46:47]
    s_waitcnt vmcnt(0)
    v_cmp_ne_u32 vcc, 1, v8
    s_cbranch_vccz L_F1POLL_OK""")
    spin_head(a, "L_F1POLL")
    a(f"""buffer_load_dword v8, v{vF1A}, {WSR}, 0 offen sc1
    s_waitcnt vmcnt(0)
    v_cmp_ne_u32 vcc, 1, v8""")
    spin_tail(a, "L_F1POLL", 1)
    a(f"""{MALL}
    L_F1DONE:
    s_waitcnt lgkmcnt(0)
    s_barrier""")
    a.stamp(5); a.stamp(9, 2)
    for kv in range(2):
        for i in range(4):
            if i == 3: a(f"s_cmp_ge_u32 {sW}, 6\n s_cbranch_scc1 L_KV{kv}")
            a(f"""s_add_u32 m0, s39, {KL + 30720*kv + 8192*i}
            v_add_u32 v4, {8192*i}, v10
            buffer_load_dwordx4 v4, s[{8+4*kv}:{11+4*kv}], 0 offen sc1 lds""")
        a(f"L_KV{kv}:")
    a.stamp(10, 2)
    for u in range(3):
        a(f"""s_lshl_b32 s3, s{40+u}, 6
        s_add_u32 s3, s3, {CS2}
        v_lshl_add_u32 v4, v3, 4, s3
        ds_read_b128 {q4(WF+4*u)}, v4
        ds_read_b128 {q4(WF+12+4*u)}, v4 offset:256""")
    a(f"""s_lshl_b32 s3, s61, 8
    s_add_u32 s3, s3, {QEX}
    v_lshl_add_u32 v6, v2, 4, s3
    v_and_b32 v4, 1, v3
    v_lshl_add_u32 v6, v4, 3, v6
    v_lshrrev_b32 v7, 1, v3
    s_waitcnt lgkmcnt(0)""")
    for e in range(0, 12, 2): a(f"v_pk_add_f32 {q2(WF+e)}, {q2(WF+e)}, {q2(WF+12+e)}")
    for e in range(0, 12, 2):
        a(f"v_pk_fma_f32 {q2(ACC+e)}, {q2(WF+e)}, {q2(vMR)}, {q2(ACC+e)} op_sel_hi:[1,0,1] neg_lo:[1,0,0] neg_hi:[1,0,0]")
    for e in range(0, 12, 2):
        a(f"v_pk_mul_f32 {q2(ACC+e)}, {q2(ACC+e)}, {q2(vMR)} op_sel:[0,1] op_sel_hi:[1,1]")
    for e in range(0, 12, 2): a(f"v_cvt_pk_bf16_f32 v{PK+e//2}, v{ACC+e}, v{ACC+e+1}")
    for u in range(3):
        a(f"""s_lshl_b32 s3, s{40+u}, 1
        v_add_u32 v4, s3, v7
        v_cmp_gt_u32 vcc, 5, v4
        v_lshl_add_u32 v4, v4, 11, v6
        s_and_saveexec_b64 s[4:5], vcc
        ds_write_b64 v4, {q2(PK+2*u)}
        {MALL}""")
    a("s_waitcnt lgkmcnt(0)\n s_barrier")
    a.stamp(6); a.stamp(11, 2)

    a(f"""buffer_store_dwordx4 {q4(NEG)}, v243, {WSR}, 0 offen sc1
    s_mov_b64 exec, 0xffff
    buffer_store_dwordx4 {q4(NEG)}, v243, {WSR}, 0 offen offset:1024 sc1
    {MALL}""")
    vK0, vK1, vV = 11, 12, 13
    vO0, vO1 = 14, 15
    Q0, Q1 = 16, 20
    bWO0, bWO1 = 22, 23
    POOL = 24
    MK = 88; O = 96
    RPD = 112
    bF2A = 87
    TD = 10
    a(f"""v_mov_b32 v{bWO0}, v{vWO0}
    v_mov_b32 v{bWO1}, v{vWO1}
    v_mov_b32 v{vO0}, v{vOC0}
    v_mov_b32 v{vO1}, v{vOC1}
    v_mov_b32 v{TD}, v246
    v_mov_b32 v{bF2A}, v{vF2A}
    v_and_b32 v2, 31, v0
    v_lshrrev_b32 v3, 5, v1
    s_lshl_b32 s3, {sLO}, 9
    s_add_u32 s3, s3, {QEX}
    v_lshl_add_u32 v4, v2, 4, s3
    s_mul_i32 s4, {sHI}, {3*2048}
    v_lshl_add_u32 v5, v3, 11, v4
    v_add_u32 v5, s4, v5
    ds_read_b128 {q4(Q0)}, v5
    s_lshl_b32 s4, {sHI}, 3
    v_add_u32 v4, s4, v4
    ds_read_b64 {q2(Q1)}, v4 offset:4096
    v_bfe_u32 v7, v1, 1, 4""")
    kappa(a, 8, 7, 9)
    a(f"""v_lshlrev_b32 v8, 7, v8
    v_and_b32 v9, 1, v1
    v_lshl_add_u32 v8, v9, 11, v8
    v_lshl_add_u32 v8, v3, 4, v8
    s_lshl_b32 s3, {sW}, 12
    s_add_u32 s3, s3, {GUL}
    v_add_u32 v86, s3, v8""")
    kappa(a, 4, 2, 5)
    a(f"""s_mul_i32 s3, {sLO}, {T32}
    s_add_u32 s3, s3, {KL}
    s_mul_i32 s4, {sHI}, 1536
    s_add_u32 s4, s4, s3
    v_lshlrev_b32 v5, 4, v4
    v_lshl_add_u32 v{vK0}, v3, 9, v5
    v_add_u32 v{vK0}, s4, v{vK0}
    s_lshl_b32 s4, {sHI}, 3
    s_add_u32 s4, s4, s3
    s_add_u32 s4, s4, 1024
    v_add_u32 v{vK1}, s4, v5
    v_cmp_gt_u32 vcc, 20, v2
    v_cndmask_b32 v5, 0, v5, vcc
    v_mul_u32_u24 v6, 640, v3
    s_mul_i32 s4, {sHI}, 320
    s_add_u32 s4, s4, s3
    s_add_u32 s4, s4, 30720
    v_add3_u32 v{vV}, v5, v6, s4
    v_lshlrev_b32 v4, 3, v3
    v_sub_u32 v4, v2, v4
    v_mov_b32 v5, 0xffff
    v_mov_b32 v6, 0xffff0000""")
    MS = 32
    for r in range(16): a(f"v_cmp_gt_i32 s[{MS+2*r}:{MS+1+2*r}], {(r&7) + 16*(r>>3)}, v4")
    for i in range(8):
        a(f"""v_cndmask_b32 v7, 0, v5, s[{MS+4*i}:{MS+1+4*i}]
        v_cndmask_b32 v8, 0, v6, s[{MS+2+4*i}:{MS+3+4*i}]
        v_or_b32 v{MK+i}, v7, v8""")
    FS = [128, 144, 160]
    FK = [176, 182, 188]
    FV = [POOL, POOL+8, POOL+16]; FV0 = POOL + 24
    FP = [200, 208]
    for r in range(32): a(f"v_mov_b32 v{POOL+r}, 0x3f803f80")
    a(f"""s_lshl_b32 s3, {sRB}, 2
    s_add_u32 s3, s3, {sLO}
    s_sub_i32 s30, 8, s3              ; n_invalid
    s_mov_b32 s28, 0xfffff
    s_mov_b32 s29, 0xfffff
    s_mul_i32 s31, {sW}, 1280
    v_cmp_eq_u32 vcc, 0, v3
    s_waitcnt lgkmcnt(0)
    v_cndmask_b32 v{Q1}, 0, v{Q1}, vcc
    v_cndmask_b32 v{Q1+1}, 0, v{Q1+1}, vcc""")
    srd(a, 8, P_WO, 819200)
    a("s_waitcnt vmcnt(8)")
    for i in range(4): a(f"ds_read_b128 {q4(RPD+4*i)}, v86 offset:{32*i}")
    a("s_waitcnt vmcnt(2) lgkmcnt(0)\n s_barrier")
    a.stamp(7)
    def dma_wo(p):
        kh, q = p // 5, p % 5
        if q < 4: v, so, hs = bWO0, (4*kh + q) * 80 * 1280, 8 * 1280
        else:     v, so, hs = bWO1, kh * 320 * 1280, 40 * 1280
        return f"""s_add_u32 m0, s31, {WOL + p*10240}
        s_mov_b32 s3, {so}
        {M40}
        buffer_load_dwordx4 v{v}, s[8:11], s3 offen lds
        s_add_u32 m0, s31, {WOL + p*10240 + 640}
        s_mov_b32 s3, {so + hs}
        buffer_load_dwordx4 v{v}, s[8:11], s3 offen lds
        {MALL}"""
    def kread(r, t): return f"ds_read_b128 {q4(r)}, v{vK0} offset:{T32*t}\n ds_read_b64 {q2(r+4)}, v{vK1} offset:{T32*t}"
    def vread(r, t, chk=True):
        m = f"s_cmp_gt_i32 s30, {t}\n s_cselect_b64 exec, -1, s[28:29]" if chk else "s_mov_b64 exec, s[28:29]"
        return f"""{m}
        ds_read_b128 {q4(r)}, v{vV} offset:{T32*t}
        ds_read_b128 {q4(r+4)}, v{vV} offset:{T32*t+1280}
        {MALL}"""
    def s1(s, k): return f"v_mfma_f32_32x32x16_bf16 {r16(s)}, {q4(k)}, {q4(Q0)}, 0"
    def s2(s, k): return f"v_mfma_f32_32x32x8_bf16 {r16(s)}, {q2(k+4)}, {q2(Q1)}, {r16(s)}"
    def pvm(v, p, first=False): return f"v_mfma_f32_32x32x16_bf16 {r16(O)}, {q4(v)}, {q4(p)}, {'0' if first else r16(O)}"
    seq = [8, 0, 7, 6, 5, 4, 3, 2, 1]
    vseq = [8, 7, 6, 5, 4, 3, 2, 1]
    def vbuf(t): return FV0 if t == 0 else FV[vseq.index(t) % 3]
    for n in range(3): a(kread(FK[n], seq[n]))
    a(vread(vbuf(8), 8, False)); a(vread(FV0, 0)); a(vread(vbuf(7), 7))
    a(f"s_waitcnt lgkmcnt(10)\n {s1(FS[0], FK[0])}\n {s2(FS[0], FK[0])}")
    a(f"s_waitcnt lgkmcnt(8)\n {s1(FS[1], FK[1])}\n {s2(FS[1], FK[1])}")
    a(kread(FK[0], seq[3]))
    a(dma_wo(0))
    a(f"s_waitcnt lgkmcnt(8)\n {s1(FS[2], FK[2])}\n {s2(FS[2], FK[2])}")
    a(kread(FK[1], seq[4]))
    a(dma_wo(1))
    for r in range(16): a(f"v_cndmask_b32 v{FS[1]+r}, v{FS[0]+r}, v{FS[1]+r}, s[{MS+2*r}:{MS+1+2*r}]")
    def tile_body(s, p, extra):
        for gq in range(4):
            for r in range(4*gq, 4*gq + 4): a(f"v_exp_f32 v{s+r}, v{s+r}")
            if gq < len(extra) and extra[gq]: a(extra[gq])
            if gq > 0:
                for k in (2*gq - 2, 2*gq - 1): a(f"v_cvt_pk_bf16_f32 v{p+k}, v{s+2*k}, v{s+2*k+1}")
        for k in (6, 7): a(f"v_cvt_pk_bf16_f32 v{p+k}, v{s+2*k}, v{s+2*k+1}")
    tile_body(FS[1], FP[0], [f"s_waitcnt lgkmcnt(2)\n {s1(FS[0], FK[0])}", s2(FS[0], FK[0]), kread(FK[2], seq[5]) + "\n" + vread(vbuf(6), 6), None])
    for k in range(8): a(f"v_and_b32 v{216+k}, v{MK+k}, v{FP[0]+k}")
    for k in range(8): a(f"v_xor_b32 v{FP[0]+k}, v{216+k}, v{FP[0]+k}")
    a(pvm(FV0, 216, True)); a(dma_wo(2)); a(pvm(FV0+4, 220))
    prevP, prevT = FP[0], 8
    for n in range(2, 9):
        t = seq[n]; p = FP[(n - 1) % 2]
        ex = [None]*4
        ex[0] = f"s_waitcnt lgkmcnt(0)\n {pvm(vbuf(prevT), prevP)}"
        ex[1] = pvm(vbuf(prevT) + 4, prevP + 4)
        if n + 2 <= 8:
            nb = (n + 2) % 3
            ex[2] = s1(FS[nb], FK[nb])
            ex[3] = s2(FS[nb], FK[nb])
        tile_body(FS[n % 3], p, ex)
        post = []
        if n + 4 <= 8: post.append(kread(FK[(n + 4) % 3], seq[n + 4]))
        if t - 2 >= 1: post.append(vread(vbuf(t - 2), t - 2))
        post.append(dma_wo(n + 1))
        if n == 3:
            post.append(f"""s_cmp_ge_u32 {sROLE}, 32
            s_cbranch_scc1 L_NORP
            s_cmp_ge_u32 {sW}, 5
            s_cbranch_scc1 L_NORP
            s_mul_i32 s3, {sROLE}, {8*20480}
            s_mul_i32 s4, {sCS}, 2560
            s_add_u32 s3, s3, s4
            s_lshl_b32 s4, {sW}, 9
            s_add_u32 s3, s3, s4
            s_add_u32 s3, s3, {RP_OFF}
            v_mul_u32_u24 v8, 20480, v3
            v_lshl_add_u32 v8, v2, 4, v8
            buffer_store_dwordx4 {q4(RPD)}, v8, {WSR}, s3 offen sc1
            s_add_u32 s3, s3, 40960
            buffer_store_dwordx4 {q4(RPD+4)}, v8, {WSR}, s3 offen sc1
            s_add_u32 s3, s3, 40960
            buffer_store_dwordx4 {q4(RPD+8)}, v8, {WSR}, s3 offen sc1
            s_add_u32 s3, s3, 40960
            buffer_store_dwordx4 {q4(RPD+12)}, v8, {WSR}, s3 offen sc1
            L_NORP:""")
        for x in post: a(x)
        if n == 5:
            a(f"""s_and_b32 s3, s2, 7
            s_cmp_lt_u32 s3, 5
            s_cselect_b32 s3, 108, 0
            v_subrev_u32 v4, 384, v0
            v_cmp_gt_u32 vcc, s3, v4""")
            masked_load(a, 9, TD, P_D, "L_TD")
        prevP, prevT = p, t
    a(f"s_waitcnt lgkmcnt(0)\n {pvm(vbuf(prevT), prevP)}\n {pvm(vbuf(prevT)+4, prevP+4)}")
    a(f"""v_max3_f32 v4, abs(v{O}), abs(v{O+1}), abs(v{O+2})
    v_max3_f32 v5, abs(v{O+3}), abs(v{O+4}), abs(v{O+5})
    v_max3_f32 v4, abs(v{O+6}), abs(v{O+7}), v4
    v_max3_f32 v5, abs(v{O+8}), abs(v{O+9}), v5
    v_max3_f32 v4, abs(v{O+10}), abs(v{O+11}), v4
    v_max_f32 v4, v4, v5
    v_cmp_nlt_f32 vcc, {f2u(2.0**-60):#x}, v{O+12}
    s_mov_b64 s[4:5], vcc
    v_cmp_ngt_f32 vcc, {f2u(2.0**60):#x}, v{O+12}
    s_or_b64 s[4:5], s[4:5], vcc
    v_cmp_ngt_f32 vcc, {f2u(2.0**120):#x}, v4
    s_or_b64 vcc, s[4:5], vcc""")
    if OPT.get("forcefb"): a("s_branch L_FALLBACK")
    a(f"""s_cbranch_vccnz L_FALLBACK
    L_BDONE:
    v_rcp_f32 v4, v{O+12}""")
    for r in range(0, 12, 2): a(f"v_pk_mul_f32 {q2(O+r)}, {q2(O+r)}, v[4:5] op_sel_hi:[1,0]")
    for k in range(6): a(f"v_cvt_pk_bf16_f32 v{24+k}, v{O+2*k}, v{O+2*k+1}")
    for k in range(6): a(f"v_min_u32 v{24+k}, -2, v{24+k}")
    a(f"""buffer_store_dwordx4 v[24:27], v{vO0}, {WSR}, 0 offen sc1
    s_mov_b32 exec_hi, 0
    buffer_store_dwordx2 v[28:29], v{vO1}, {WSR}, 0 offen sc1
    {MALL}""")
    a.stamp(8)

    XR, WR, WRS = 150, 160, 170
    XU, WU = 180, 200
    OF, CWF, CAC = 40, 80, 120
    HP = 30
    OUTP = 220
    srd(a, 8, P_X, 2621440)
    srd(a, 12, P_WR, 1280)
    a(f"""v_and_b32 v2, 15, v0
    v_lshrrev_b32 v3, 4, v1
    s_lshl_b32 s3, {sRB2}, 6
    s_lshl_b32 s4, {sLO}, 4
    s_add_u32 s3, s3, s4
    v_add_u32 v20, s3, v2             ; row
    v_mul_u32_u24 v4, 1280, v20
    v_mul_u32_u24 v17, 40, v3
    s_mul_i32 s3, {sCS}, 160
    v_add_u32 v17, s3, v17
    v_add_u32 v16, v17, v4
    s_waitcnt vmcnt(2)
    s_cmp_ge_u32 {sW}, 4
    s_cbranch_scc1 L_NOXLD
    buffer_load_dwordx4 {q4(XR)}, v16, s[8:11], 0 offen
    buffer_load_dwordx4 {q4(XR+4)}, v16, s[8:11], 0 offen offset:16
    buffer_load_dwordx2 {q2(XR+8)}, v16, s[8:11], 0 offen offset:32
    buffer_load_dwordx4 {q4(WR)}, v17, s[12:15], 0 offen
    buffer_load_dwordx4 {q4(WR+4)}, v17, s[12:15], 0 offen offset:16
    buffer_load_dwordx2 {q2(WR+8)}, v17, s[12:15], 0 offen offset:32
    v_lshlrev_b32 v4, 2, v1""")
    for i in range(5): a(f"buffer_load_dword v{WRS+i}, v4, s[12:15], 0 offen offset:{256*i}")
    a(f"""s_cmp_lg_u32 {sW}, 0
    s_cbranch_scc1 L_NOCHK2""")
    spin_head(a, "L_CLR2POLL")
    a(f"""buffer_load_dword v5, v{bF2A}, {WSR}, 0 offen sc1
    s_waitcnt vmcnt(0)
    v_cmp_ne_u32 vcc, 1, v5""")
    spin_tail(a, "L_CLR2POLL")
    a("L_NOCHK2:\n s_waitcnt vmcnt(0)")
    for i in range(10):
        a(f"""v_lshlrev_b32 v{XU+2*i}, 16, v{XR+i}
        v_and_b32 v{XU+2*i+1}, 0xffff0000, v{XR+i}
        v_lshlrev_b32 v{WU+2*i}, 16, v{WR+i}
        v_and_b32 v{WU+2*i+1}, 0xffff0000, v{WR+i}""")
    a("v_mov_b32 v8, 0")
    for i in range(5):
        a(f"""v_lshlrev_b32 v5, 16, v{WRS+i}
        v_and_b32 v6, 0xffff0000, v{WRS+i}
        v_add_f32 v8, v8, v5
        v_add_f32 v8, v8, v6""")
    dpp_reduce(a, "v_add_f32", [8])
    a("v_readlane_b32 s36, v8, 63\n L_NOXLD:")
    rho(a, 21, 5)
    a(f"""v_mul_u32_u24 v4, 160, v21
    v_and_b32 v5, 3, v1
    v_lshlrev_b32 v21, 5, v21
    v_lshl_add_u32 v21, v5, 3, v21
    v_mul_u32_u24 v5, 40, v5
    s_mul_i32 s3, {sHI}, 51200
    v_add3_u32 v18, v4, v5, s3
    s_lshl_b32 s3, {sRB2}, 1
    s_lshr_b32 s4, {sLO}, 1
    s_add_u32 s3, s3, s4
    s_mul_i32 s3, s3, 40960
    s_add_u32 s3, s3, {O_OFF}
    s_lshl_b32 s4, {sHI}, 14
    s_add_u32 s29, s3, s4
    s_lshl_b32 s4, {sHI}, 12
    s_add_u32 s33, s3, s4
    s_add_u32 s33, s33, 32768
    s_and_b32 s4, {sLO}, 1
    s_lshl_b32 s4, s4, 4
    v_add_u32 v4, s4, v2
    v_lshlrev_b32 v5, 9, v3
    v_lshl_add_u32 v15, v4, 4, v5
    v_lshl_add_u32 v14, v4, 3, v5
    v_lshrrev_b32 v5, 1, v1""")
    kappa(a, 19, 5, 6)
    a(f"""s_lshl_b32 s30, {sROLE}, 3
    s_add_u32 s30, s30, {sCS}
    s_lshl_b32 s32, {sW}, 10
    s_mul_i32 s3, {sLO}, 5120
    s_add_u32 s34, s3, {RED}
    v_lshl_add_u32 v13, v1, 4, s34
    s_barrier""")
    if OPT.get("csleep", 4): a(f"s_sleep {OPT.get('csleep', 4)}")
    a.stamp(9)
    def c_rd(ks):
        b = ks & 1
        return [f"ds_read_b64_tr_b16 {q2(CWF+20*b+4*t+2*h)}, v18 offset:{ks*5120 + h*1280 + 8*t}" for t in range(5) for h in range(2)]
    spin_head(a, "L_CLOOP")
    for ks in range(8):
        a(f"s_add_u32 s4, s29, {ks*2048}\n buffer_load_dwordx4 {q4(OF+4*ks)}, v15, {WSR}, s4 offen sc1")
    for ks in range(8, 10):
        for hh in range(2):
            a(f"buffer_load_dwordx2 {q2(OF+4*ks+2*hh)}, v14, {WSR}, s33 offen offset:{(ks-8)*2048 + hh*256} sc1")
    for r in c_rd(0): a(r)
    a("v_mov_b32 v4, 0")
    for ks in range(10):
        a(f"s_waitcnt vmcnt({11-ks if ks < 8 else 2*(9-ks)}) lgkmcnt(0)")
        R = c_rd(ks + 1) if ks < 9 else []
        for t in range(5):
            for x in R[2*t:2*t+2]: a(x)
            a(mm16(CAC+4*t, CWF+20*(ks & 1)+4*t, OF+4*ks, ks == 0))
            if t < 2: a(f"v_max3_u32 v4, v4, v{OF+4*ks+2*t}, v{OF+4*ks+2*t+1}")
    a("v_cmp_eq_u32 vcc, -1, v4")
    spin_tail(a, "L_CLOOP", 4)
    a(f"s_cmp_ge_u32 {sW}, 4\n s_cbranch_scc0 L_CLO")
    for t in range(5): a(f"ds_write_b128 v13, {q4(CAC+4*t)} offset:{1024*t}")
    a(f"""v_mov_b32 v24, 0
    v_mov_b32 v25, 0
    v_mov_b32 v26, 0
    v_mov_b32 v27, 0
    s_waitcnt lgkmcnt(0)
    s_barrier
    v_subrev_u32 v12, 256, v0
    v_lshlrev_b32 v12, 4, v12
    v_add_u32 v14, {SB}, v12
    ds_write_b128 v14, v[24:27] offset:{SURV}
    ds_write_b128 v14, v[24:27] offset:{SURV+4096}
    v_mov_b32 v13, {SB+CNT}
    ds_write_b32 v13, v24
    v_lshrrev_b32 v6, 2, v12
    s_mov_b32 s4, {KEY_OFF}
    s_mov_b32 s5, {KEY_OFF+4096}
    s_barrier""")
    spin_head(a, "L_KPOLL")
    a(f"""buffer_load_dwordx4 v[24:27], v12, {WSR}, s4 offen sc1
    buffer_load_dwordx4 v[28:31], v12, {WSR}, s5 offen sc1
    s_waitcnt vmcnt(0)
    v_max3_u32 v4, v24, v25, v26
    v_max3_u32 v5, v27, v28, v29
    v_max3_u32 v4, v4, v30, v31
    v_max_u32 v4, v4, v5
    v_cmp_eq_u32 vcc, -1, v4""")
    spin_tail(a, "L_KPOLL")
    a(f"""ds_write_b128 v14, v[24:27] offset:{RT}
    ds_write_b128 v14, v[28:31] offset:{RT+4096}""")
    for i in range(8): a(f"v_ashrrev_i32 v{40+i}, 31, v{24+i}")
    for i in range(8): a(f"v_or_b32 v{40+i}, 0x80000000, v{40+i}")
    for i in range(8): a(f"v_xor_b32 v{40+i}, v{40+i}, v{24+i}")
    for i in range(8): a(f"v_sub_u32 v{48+i}, {2047 - (i & 3) - 1024*(i >> 2)}, v6")
    a("s_mov_b32 s6, 0xfffff800")
    for i in range(8): a(f"v_and_or_b32 v{40+i}, v{40+i}, s6, v{48+i}")
    a("""v_max_u32 v4, v40, v41
    v_max_u32 v5, v44, v45
    v_max3_u32 v4, v4, v42, v43
    v_max3_u32 v5, v5, v46, v47""")
    dpp_reduce(a, "v_max_u32", [4, 5])
    a(f"""s_lshl_b32 s3, {sLO}, 3
    s_add_u32 s3, s3, {SB+WMAX}
    v_mov_b32 v6, s3
    s_mov_b32 exec_lo, 0
    s_mov_b32 exec_hi, 0x80000000
    ds_write_b64 v6, v[4:5]
    {MALL}
    s_waitcnt lgkmcnt(0)
    s_barrier
    v_mov_b32 v5, {SB+WMAX}
    ds_read_b128 v[48:51], v5
    ds_read_b128 v[52:55], v5 offset:16
    v_mov_b32 v6, 1
    s_waitcnt lgkmcnt(0)
    v_min3_u32 v48, v48, v49, v50
    v_min3_u32 v52, v52, v53, v54
    v_min3_u32 v48, v48, v51, v55
    v_min_u32 v48, v48, v52""")
    for i in range(8): a(f"v_cmp_ge_u32 s[{40+2*i}:{41+2*i}], v{40+i}, v48")
    for i in range(8): a(f"s_mov_b64 exec, s[{40+2*i}:{41+2*i}]\n ds_add_rtn_u32 v{50+i}, v13, v6")
    a(f"{MALL}\n s_mov_b32 s3, {SB}\n s_waitcnt lgkmcnt(0)")
    for i in range(8): a(f"v_lshl_add_u32 v{50+i}, v{50+i}, 2, s3")
    for i in range(8): a(f"s_mov_b64 exec, s[{40+2*i}:{41+2*i}]\n ds_write_b32 v{50+i}, v{40+i} offset:{SURV}")
    a(f"""{MALL}
    s_waitcnt lgkmcnt(0)
    s_barrier
    ds_read_b32 v4, v13
    v_lshrrev_b32 v5, 2, v12
    v_add_u32 v5, {SB}, v5
    s_waitcnt lgkmcnt(0)
    v_readfirstlane_b32 s4, v4
    s_lshl_b32 s5, {sLO}, 6
    L_OUTER:
    s_cmp_ge_u32 s5, s4
    s_cbranch_scc1 L_SELDONE
    ds_read_b32 v6, v5 offset:{SURV}
    v_mov_b32 v7, 0
    v_mov_b32 v8, {SB+SURV}
    s_mov_b32 s6, 0
    L_INNER:
    ds_read_b128 v[44:47], v8
    ds_read_b128 v[48:51], v8 offset:16
    v_add_u32 v8, 32, v8
    s_add_u32 s6, s6, 8
    s_waitcnt lgkmcnt(0)""")
    for i in range(8): a(f"v_cmp_gt_u32 vcc, v{44+i}, v6\n v_addc_co_u32 v7, vcc, 0, v7, vcc")
    a(f"""s_cmp_lt_u32 s6, s4
    s_cbranch_scc1 L_INNER
    v_cmp_gt_u32 vcc, 8, v7
    v_and_b32 v6, 0x7ff, v6
    v_sub_u32 v6, 2047, v6
    v_lshl_add_u32 v7, v7, 2, s3
    s_and_saveexec_b64 s[6:7], vcc
    ds_write_b32 v7, v6 offset:{SELL}
    {MALL}
    v_add_u32 v5, 1024, v5
    s_add_u32 s5, s5, 256
    s_branch L_OUTER""")
    a(f"""L_CLO:
    s_lshl_b32 s3, {sRB2}, 13
    s_lshl_b32 s4, {sLO}, 8
    s_add_u32 s3, s3, s4
    s_add_u32 s37, s3, {PART_OFF}
    s_lshl_b32 s4, {sCS}, 10
    s_add_u32 s35, s4, s37
    s_add_u32 s38, s37, 4096
    v_lshlrev_b32 v10, 4, v2
    v_lshl_add_u32 v11, v3, 10, v10
    v_mul_u32_u24 v5, 160, v2
    v_mul_u32_u24 v6, 40, v3
    v_add3_u32 v12, v5, v6, s34
    s_lshl_b32 s3, {sRB2}, 3
    s_add_u32 s3, s3, {sCS}
    s_mul_i32 s3, s3, 10240
    s_mul_i32 s5, {sLO}, 2560
    s_add_u32 s3, s3, s5
    s_add_u32 s28, s3, {H_OFF}
    v_lshlrev_b32 v7, 4, v1
    v_mov_b32 v47, 0
    s_barrier""")
    for t in range(5): a(f"ds_read_b128 {q4(CWF+4*t)}, v13 offset:{1024*t}")
    a("s_waitcnt lgkmcnt(0)")
    E = range(0, 20, 2)
    for e in E: a(f"v_pk_add_f32 {q2(CAC+e)}, {q2(CAC+e)}, {q2(CWF+e)}")
    for e in E: a(f"v_cvt_pk_bf16_f32 v{HP+e//2}, v{CAC+e}, v{CAC+e+1}")
    for e in E: a(f"v_lshlrev_b32 v{CAC+e}, 16, v{HP+e//2}\n v_and_b32 v{CAC+e+1}, 0xffff0000, v{HP+e//2}")
    for e in E: a(f"v_pk_add_f32 {q2(CAC+e)}, {q2(CAC+e)}, {q2(XU+e)}")
    for e in E: a(f"v_cvt_pk_bf16_f32 v{HP+e//2}, v{CAC+e}, v{CAC+e+1}")
    for e in E: a(f"v_min_u32 v{HP+e//2}, -2, v{HP+e//2}")
    for e in E: a(f"v_lshlrev_b32 v{CAC+e}, 16, v{HP+e//2}\n v_and_b32 v{CAC+e+1}, 0xffff0000, v{HP+e//2}")
    for k in range(5): a(f"ds_write_b64 v12, {q2(HP+2*k)} offset:{8*k}")
    a(f"""v_pk_add_f32 v[40:41], {q2(CAC)}, {q2(CAC+2)}
    v_pk_mul_f32 v[42:43], {q2(CAC)}, {q2(CAC)}
    v_pk_mul_f32 v[48:49], {q2(CAC)}, {q2(WU)}""")
    for e in range(2, 20, 2):
        if e > 2: a(f"v_pk_add_f32 v[40:41], v[40:41], {q2(CAC+e)}")
        a(f"v_pk_fma_f32 v[42:43], {q2(CAC+e)}, {q2(CAC+e)}, v[42:43]\n v_pk_fma_f32 v[48:49], {q2(CAC+e)}, {q2(WU+e)}, v[48:49]")
    a("v_add_f32 v44, v40, v41\n v_add_f32 v45, v42, v43\n v_add_f32 v46, v48, v49")
    xg_sum(a, [44, 45, 46], [40, 41, 42])
    a(f"""v_min_u32 v44, -2, v44
    v_min_u32 v45, -2, v45
    v_min_u32 v46, -2, v46
    s_mov_b64 exec, 0xffff
    buffer_store_dwordx4 v[44:47], v10, {WSR}, s35 offen sc1
    {MALL}
    s_waitcnt lgkmcnt(0)
    ds_read_b128 v[52:55], v13
    ds_read_b128 v[56:59], v13 offset:1024
    ds_read_b128 v[60:63], v13 offset:2048
    s_waitcnt lgkmcnt(0)
    buffer_store_dwordx4 v[52:55], v7, {WSR}, s28 offen sc1
    buffer_store_dwordx4 v[56:59], v7, {WSR}, s28 offen offset:1024 sc1
    s_mov_b32 exec_hi, 0
    buffer_store_dwordx4 v[60:63], v7, {WSR}, s28 offen offset:2048 sc1
    {MALL}""")
    a.stamp(10)
    spin_head(a, "L_PPOLL")
    a(f"""buffer_load_dwordx4 v[64:67], v11, {WSR}, s37 offen sc1
    buffer_load_dwordx4 v[68:71], v11, {WSR}, s38 offen sc1
    s_waitcnt vmcnt(0)
    v_max3_u32 v5, v64, v65, v66
    v_max3_u32 v6, v68, v69, v70
    v_max_u32 v5, v5, v6
    v_cmp_eq_u32 vcc, -1, v5""")
    spin_tail(a, "L_PPOLL")
    a("v_add_f32 v40, v64, v68\n v_add_f32 v41, v65, v69\n v_add_f32 v42, v66, v70")
    xg_sum(a, [40, 41, 42], [44, 45, 46])
    ln_scalars(a, 40, 41)
    a(f"""v_fma_f32 v42, -v40, s36, v42
    v_mul_f32 v42, v42, v41
    v_min_u32 v42, -2, v42
    v_lshlrev_b32 v4, 2, v20
    s_mov_b32 s4, {KEY_OFF}
    s_cmp_lg_u32 {sCS}, 0
    s_cbranch_scc1 L_NOKEY
    s_mov_b64 exec, 0xffff
    buffer_store_dword v42, v4, {WSR}, s4 offen sc1
    {MALL}
    L_NOKEY:
    s_barrier
    s_cmp_ge_u32 {sROLE}, 32
    s_cbranch_scc1 L_WD
    s_mul_i32 s3, s30, 20480
    s_mul_i32 s4, {sLO}, 5120
    s_add_u32 s3, s3, s4
    s_add_u32 s3, s3, {RP_OFF}
    s_add_u32 m0, s4, {GW}
    s_nop 0""")
    for j in range(4): a(f"buffer_load_dwordx4 v7, {WSR}, s3 offen offset:{1024*j} sc1 lds")
    a(f"""s_add_u32 m0, s4, {GW + 4096}
    s_add_u32 s3, s3, 4096
    buffer_load_dwordx4 v7, {WSR}, s3 offen sc1 lds
    s_branch L_WDD
    L_WD:
    s_sub_u32 s3, s30, 256
    s_lshl_b32 s3, s3, 5
    v_mul_u32_u24 v6, 1280, v19
    v_and_b32 v4, 1, v1
    v_lshl_add_u32 v6, v4, 4, v6
    v_add_u32 v6, s3, v6
    s_mul_i32 s33, {sW}, {32*1280}""")
    srd(a, 12, P_D, 2211840)
    for j in range(14):
        a(f"""s_add_u32 m0, s32, {WOL + 4096*j}
        s_add_u32 s3, s33, {4*32*1280*j}
        buffer_load_dwordx4 v6, s[12:15], s3 offen lds""")
    a("L_WDD:")
    for e in E: a(f"v_pk_add_f32 {q2(XU+e)}, {q2(CAC+e)}, v[40:41] op_sel_hi:[1,0] neg_lo:[0,1] neg_hi:[0,1]")
    for e in E: a(f"v_cvt_pk_bf16_f32 v{OUTP+e//2}, v{XU+e}, v{XU+e+1}")
    for e in E: a(f"v_lshlrev_b32 v{XU+e}, 16, v{OUTP+e//2}\n v_and_b32 v{XU+e+1}, 0xffff0000, v{OUTP+e//2}")
    for e in E: a(f"v_pk_mul_f32 {q2(XU+e)}, {q2(XU+e)}, v[40:41] op_sel:[0,1] op_sel_hi:[1,1]")
    for e in E: a(f"v_cvt_pk_bf16_f32 v{OUTP+e//2}, v{XU+e}, v{XU+e+1}")
    for e in E: a(f"v_lshlrev_b32 v{XU+e}, 16, v{OUTP+e//2}\n v_and_b32 v{XU+e+1}, 0xffff0000, v{OUTP+e//2}")
    for e in E: a(f"v_pk_add_f32 {q2(XU+e)}, {q2(XU+e)}, {q2(CAC+e)}")
    for e in E: a(f"v_cvt_pk_bf16_f32 v{OUTP+e//2}, v{XU+e}, v{XU+e+1}")
    a("s_barrier\n s_barrier")
    a("L_SELDONE:")
    for i in range(5):
        a(f"""v_add_u32 v4, {64*i}, v1
        v_mul_u32_u24 v5, 1639, v4
        v_lshrrev_b32 v5, 16, v5
        v_mul_u32_u24 v5, {10240 - 160}, v5
        v_lshl_add_u32 v{64+i}, v4, 2, v5""")
    a("s_waitcnt vmcnt(0) lgkmcnt(0)\n s_barrier")
    a.stamp(11)
    a(f"""v_mov_b32 v5, {SB+SELL}
    ds_read_b128 v[44:47], v5
    ds_read_b128 v[48:51], v5 offset:16
    s_lshl_b32 s3, {sW}, 2
    s_add_u32 s3, s3, {SB}
    v_mov_b32 v5, s3
    ds_read_b32 v4, v5 offset:{SELL}
    v_lshlrev_b32 v14, 2, v1
    s_waitcnt lgkmcnt(0)
    v_readfirstlane_b32 s4, v4
    s_lshr_b32 s5, s4, 6
    s_mul_i32 s5, s5, 81920
    s_and_b32 s4, s4, 63
    s_mul_i32 s4, s4, 160
    s_add_u32 s4, s4, s5
    s_add_u32 s4, s4, {H_OFF}""")
    spin_head(a, "L_RPOLL")
    for i in range(5): a(f"buffer_load_dword v{52+i}, v{64+i}, {WSR}, s4 offen sc1")
    a(f"""s_waitcnt vmcnt(0)
    v_max3_u32 v5, v52, v53, v54
    v_max3_u32 v5, v5, v55, v56
    v_cmp_eq_u32 vcc, -1, v5""")
    spin_tail(a, "L_RPOLL")
    a("v_mov_b32 v6, 0\n v_mov_b32 v7, 0")
    for i in range(5):
        a(f"""v_lshlrev_b32 v4, 16, v{52+i}
        v_and_b32 v5, 0xffff0000, v{52+i}
        v_add_f32 v6, v6, v4
        v_fmac_f32 v7, v4, v4
        v_add_f32 v6, v6, v5
        v_fmac_f32 v7, v5, v5""")
    dpp_reduce(a, "v_add_f32", [6, 7])
    ln_scalars(a, 6, 7)
    a(f"""v_readlane_b32 s5, v6, 63
    v_readlane_b32 s6, v7, 63
    s_mul_i32 s3, {sW}, {XROW}
    s_add_u32 s3, s3, {XS}
    v_add_u32 v8, s3, v14""")
    for i in range(5):
        norm_pair(a, 57 + i, 52 + i, "s5", "s6", 4, 5)
        a(f"ds_write_b32 v8, v{57+i} offset:{256*i}\n ds_write_b32 v8, v{52+i} offset:{HR - XS + 256*i}")
    a("s_waitcnt lgkmcnt(0)\n s_barrier")
    srd(a, 8, P_OUT, 2621440)
    a(f"s_cmp_ge_u32 {sW}, 4\n s_cbranch_scc1 L_NOOUT")
    for i in range(8): a(f"v_cmp_ne_u32 vcc, v{44+i}, v20\n s_and_b64 exec, exec, vcc")
    a(f"""s_cbranch_execz L_OUTD
    buffer_store_dwordx4 {q4(OUTP)}, v16, s[8:11], 0 offen
    buffer_store_dwordx4 {q4(OUTP+4)}, v16, s[8:11], 0 offen offset:16
    buffer_store_dwordx2 {q2(OUTP+8)}, v16, s[8:11], 0 offen offset:32
    L_OUTD:
    {MALL}
    L_NOOUT:
    s_cmp_ge_u32 {sROLE}, 32
    s_cbranch_scc1 L_E
    s_cmp_lg_u32 {sW}, 7
    s_cbranch_scc1 L_END""")
    DW, DX = 64, 144
    a(f"""v_and_b32 v4, 7, v2
    v_mul_u32_u24 v4, {XROW}, v4
    v_lshl_add_u32 v4, v3, 4, v4
    v_add_u32 v4, {XS}, v4
    v_add_u32 v11, {GW}, v21""")
    for ks in range(20):
        for h in range(2): a(f"ds_read_b64_tr_b16 {q2(DW+4*ks+2*h)}, v11 offset:{ks*1024 + h*256}")
        a(f"ds_read_b128 {q4(DX+4*ks)}, v4 offset:{64*ks}")
    for ks in range(20):
        a(f"s_waitcnt lgkmcnt({min(15, 3*(19-ks))})")
        a(mm16(16, DW+4*ks, DX+4*ks, ks == 0))
    for r in range(4):
        rb16(a, 16 + r)
        a(f"v_mov_b32 v{20+r}, v{16+r}")
    for r in range(4): a(f"v_permlane32_swap_b32 v{16+r}, v{20+r}")
    for r in range(4): a(f"v_mul_f32 v{24+r}, 0xbfb8aa3b, v{16+r}")
    for r in range(4): a(f"v_exp_f32 v{24+r}, v{24+r}")
    for r in range(4): a(f"v_add_f32 v{24+r}, 1.0, v{24+r}")
    for r in range(4): a(f"v_rcp_f32 v{24+r}, v{24+r}")
    for r in range(4): a(f"v_mul_f32 v{16+r}, v{16+r}, v{24+r}")
    for r in range(4): rb16(a, 16 + r)
    for r in range(4): a(f"v_mul_f32 v{16+r}, v{16+r}, v{20+r}")
    a(f"""v_cvt_pk_bf16_f32 v16, v16, v17
    v_cvt_pk_bf16_f32 v17, v18, v19
    v_min_u32 v16, -2, v16
    v_min_u32 v17, -2, v17
    v_mov_b32 v18, v16
    v_mov_b32 v19, v17
    v_lshlrev_b32 v4, 4, v2
    v_permlane16_swap_b32 v16, v18
    v_permlane16_swap_b32 v17, v19
    s_lshl_b32 s3, s30, 7
    s_add_u32 s3, s3, {ACT_OFF}
    s_mov_b64 exec, 0xff
    buffer_store_dwordx4 v[16:19], v4, {WSR}, s3 offen sc1
    s_branch L_END""")
    AF, EW = 64, 96
    a(f"""L_E:
    s_sub_u32 s30, s30, 256
    s_lshl_b32 s30, s30, 5""")
    srd(a, 12, P_WS, ACT_OFF + 27648)
    a(f"""v_and_b32 v4, 7, v2
    v_lshlrev_b32 v12, 4, v4
    v_lshl_add_u32 v12, v3, 7, v12
    s_lshl_b32 s4, {sW}, 9
    s_add_u32 s4, s4, {ACT_OFF}
    v_add_u32 v11, s32, v21""")
    for j in range(7):
        for h in range(2): a(f"ds_read_b64_tr_b16 {q2(EW+4*j+2*h)}, v11 offset:{WOL + 8192*j + h*256}")
    a(f"""s_mov_b32 s6, {SB}
    v_lshl_add_u32 v5, v4, 2, s6
    ds_read_b32 v13, v5 offset:{SELL}
    v_mul_u32_u24 v5, {XROW}, v4
    v_lshl_add_u32 v5, v3, 3, v5
    s_add_u32 s3, s30, {XS}
    v_add_u32 v5, s3, v5
    s_waitcnt lgkmcnt(0)
    ds_read_b64 v[22:23], v5
    ds_read_b64 v[130:131], v5 offset:{HR - XS}
    v_lshl_add_u32 v5, v13, 2, s6
    ds_read_b32 v15, v5 offset:{RT}
    v_mul_u32_u24 v13, 1280, v13
    v_lshl_add_u32 v13, v3, 3, v13
    v_add_u32 v13, s30, v13
    s_waitcnt lgkmcnt(0)""")
    rb16(a, 15)
    a("v_mul_f32 v15, 0xbfb8aa3b, v15\n v_exp_f32 v15, v15\n v_add_f32 v15, 1.0, v15\n v_rcp_f32 v15, v15")
    rb16(a, 15)
    spin_head(a, "L_APOLL")
    for j in range(7): a(f"s_add_u32 s5, s4, {4096*j}\n buffer_load_dwordx4 {q4(AF+4*j)}, v12, s[12:15], s5 offen sc1")
    a(f"s_waitcnt vmcnt(0)\n v_max_u32 v5, v{AF}, v{AF+1}")
    for k in range(1, 14): a(f"v_max3_u32 v5, v5, v{AF+2*k}, v{AF+2*k+1}")
    a("v_cmp_eq_u32 vcc, -1, v5")
    spin_tail(a, "L_APOLL")
    for j in range(7): a(mm16(24, EW+4*j, AF+4*j, j == 0))
    a(f"""s_add_u32 s3, s32, {ERED}
    v_lshl_add_u32 v4, v1, 4, s3
    ds_write_b128 v4, v[24:27]
    s_waitcnt lgkmcnt(0)
    s_barrier
    s_cmp_lg_u32 {sW}, 0
    s_cbranch_scc1 L_END""")
    for w in range(1, 8): a(f"ds_read_b128 {q4(28+4*w)}, v4 offset:{1024*w}")
    a("s_waitcnt lgkmcnt(0)")
    for w in range(1, 8):
        for r in range(0, 4, 2): a(f"v_pk_add_f32 {q2(24+r)}, {q2(24+r)}, {q2(28+4*w+r)}")
    for r in range(4):
        rb16(a, 24 + r)
        a(f"v_mul_f32 v{24+r}, v{24+r}, v15")
    a("v_cvt_pk_bf16_f32 v24, v24, v25\n v_cvt_pk_bf16_f32 v25, v26, v27")
    for k in range(2):
        add_pairs(a, 24 + k, 24 + k, 22 + k, 4, 5, 6)
        add_pairs(a, 24 + k, 24 + k, 130 + k, 4, 5, 6)
    a("""s_mov_b32 exec_lo, 0x00ff00ff
    s_mov_b32 exec_hi, 0x00ff00ff
    buffer_store_dwordx2 v[24:25], v13, s[8:11], 0 offen
    L_END:""")
    if PROF:
        a(f"{MALL}\n s_waitcnt vmcnt(0)")
        a.stamp(12)
        for i in range(16): a(f"v_mov_b32 v{8+i}, s{88+i}" if i < 13 else f"v_mov_b32 v{8+i}, 0")
        a(f"""s_lshl_b32 s3, s2, 9
        s_add_u32 s3, s3, {PROF_OFF}
        s_lshl_b32 s4, {sW}, 6
        s_add_u32 s3, s3, s4
        v_mov_b32 v4, s3
        s_mov_b64 exec, 1""")
        for i in range(4): a(f"global_store_dwordx4 v4, {q4(8+4*i)}, s[{P_WS}:{P_WS+1}] offset:{16*i}")
    a("L_EXIT:\n s_endpgm")

    a("L_FALLBACK:\n s_nop 7\n s_nop 7")
    S0 = 112
    def S(i): return S0 + 16*i
    KF = 24
    for n in range(9):
        a(kread(KF + 6*n, n))
        if n % 4 == 3: a("s_waitcnt lgkmcnt(0)")
    a("s_waitcnt lgkmcnt(0)")
    for n in range(9): a(f"{s1(S(n), KF+6*n)}\n {s2(S(n), KF+6*n)}")
    for r in range(8): a(f"v_mov_b32 v{78+r}, 0x3f803f80")
    a("s_nop 7\n s_nop 7")
    for i in range(8):
        a(f"s_cmp_gt_i32 s30, {i}\n s_cbranch_scc0 L_VALID")
        for r in range(16): a(f"v_mov_b32 v{S(i)+r}, 0xff800000")
    a("L_VALID:")
    for r in range(16): a(f"v_cndmask_b32 v{S(0)+r}, v{S(8)+r}, v{S(0)+r}, s[{MS+2*r}:{MS+1+2*r}]")
    a(f"v_max_f32 v4, v{S(0)}, v{S(0)+1}")
    for k in range(1, 64): a(f"v_max3_f32 v4, v{S0+2*k}, v{S0+2*k+1}, v4")
    a("""v_mov_b32 v5, v4
    v_permlane32_swap_b32 v4, v5
    v_max_f32 v4, v4, v5""")
    for i in range(8):
        s = S(i)
        for r in range(16): a(f"v_sub_f32 v{s+r}, v{s+r}, v4")
        for r in range(16): a(f"v_exp_f32 v{s+r}, v{s+r}")
        for k in range(8): a(f"v_cvt_pk_bf16_f32 v{s+k}, v{s+2*k}, v{s+2*k+1}")
    s = S(0)
    for k in range(8): a(f"v_and_b32 v{s+8+k}, v{MK+k}, v{s+k}")
    for k in range(8): a(f"v_xor_b32 v{S(8)+k}, v{s+8+k}, v{s+k}")
    for t in range(9):
        p = s + 8 if t == 0 else S(t)
        a(vread(78, t, False))
        a(f"s_waitcnt lgkmcnt(0)\n {pvm(78, p, t == 0)}\n {pvm(82, p + 4)}\n s_nop 7")
    a("s_nop 7\n s_branch L_BDONE")

def build():
    a = PAsm()
    kernel(a)
    name = NAME + "_kernel"
    L = ["; @launch grid=(256,1,1) block=(512,1,1) lds=163840",
         '.amdgcn_target "amdgcn-amd-amdhsa--gfx950"', ".text", f".globl {name}", ".p2align 8",
         f".type {name},@function", f"{name}:", a.render(), "CODE_END:", "s_endpgm",
         '.section .rodata,"a"', ".p2align 6", f".amdhsa_kernel {name}", "  .amdhsa_next_free_vgpr 256",
         "  .amdhsa_next_free_sgpr 102", "  .amdhsa_accum_offset 256", "  .amdhsa_group_segment_fixed_size 0",
         "  .amdhsa_kernarg_size 88", "  .amdhsa_user_sgpr_count 2", "  .amdhsa_user_sgpr_kernarg_segment_ptr 1",
         "  .amdhsa_system_sgpr_workgroup_id_x 1", ".end_amdhsa_kernel"]
    return "\n".join(L) + "\n"

def check_ws(w, im, cmp, tof):
    import numpy as np
    qkv = im["qkv"]
    k = tof(w[K_OFF:K_OFF + 16*64*T32].view(np.uint16)).reshape(16, 64, 5, 32, 8).transpose(1, 3, 0, 2, 4).reshape(2048, 640)
    cmp("k", k, qkv[:, 640:1280])
    v = tof(w[V_OFF:V_OFF + 16*64*T32].view(np.uint16)).reshape(16, 256, 40, 8).transpose(1, 3, 0, 2).reshape(2048, 640)
    cmp("v", v, qkv[:, 1280:])
    ob = w[O_OFF:O_OFF + 64*40960].reshape(64, 40960)
    om = tof(np.ascontiguousarray(ob[:, :32768]).view(np.uint16)).reshape(64, 32, 2, 32, 8).transpose(0, 3, 1, 2, 4).reshape(2048, 32, 16)
    oq = tof(np.ascontiguousarray(ob[:, 32768:]).view(np.uint16)).reshape(64, 32, 32, 4).transpose(0, 2, 1, 3).reshape(2048, 32, 4)
    o = np.concatenate([om, oq], axis=2).reshape(2048, 640)
    cmp("o", o, im["o"])
    h = tof(w[H_OFF:H_OFF + 2048*1280].view(np.uint16)).reshape(32, 8, 64, 80).transpose(0, 2, 1, 3).reshape(2048, 640)
    cmp("h", h, im["h"])
    r = w[KEY_OFF:KEY_OFF + 8192].view(np.float32)
    cmp("r", r, im["r"])

if __name__ == "__main__":
    PROF = "prof" in sys.argv
    if "cyc" in sys.argv: TIMER = "s_memtime"
    for x in sys.argv[2:]:
        if "=" in x:
            k, v = x.split("="); OPT[k] = int(v)
    out = sys.argv[1] if len(sys.argv) > 1 else f"cdna_kernels/{NAME}.s"
    txt = build()
    open(out, "w").write(txt)
    print("wrote", out, len(txt))
```

```python
import sys, struct
from asmlib import Asm

NAME = "sequential_preLN__sliding_block__moe_arch_mod__prompt"
K_OFF = 0; V_OFF = 0x280000; O_OFF = 0x500000; H_OFF = 0x780000
PART_OFF = 0xA00000; F1_OFF = 0xA40000; KEY_OFF = 0xA50000; ACT_OFF = 0xA52000
RP_OFF = 0xA60000
WS_SIZE = RP_OFF + 27*8*20480
PROF_OFF = 0xF00000
T32 = 2560
PROF = False
TIMER = "s_memrealtime"
SPIN_MAX = 1 << 18
SLEEP = 2
OPT = {}

def f2u(x): return struct.unpack("<I", struct.pack("<f", x))[0]
QSCALE = f2u((20 ** -0.5) * 1.4426950408889634)
EPS = f2u(1e-5); INV640 = f2u(1.0 / 640)
P_X, P_WQKV, P_WO, P_WR, P_G, P_U, P_D, P_OUT, P_DBG, P_WS = 64, 66, 68, 72, 74, 76, 78, 80, 82, 84
WSR = "s[16:19]"
sW, sRB, sHP, sRB2, sCS, sROLE, sLO, sHI = "s20", "s21", "s22", "s23", "s24", "s25", "s26", "s27"

SCR = 159744
WQL = 0; CS2 = 53248; QEX = 54272; GUL = 81920
KL = 102400; VL = 133120; WOL = 0
GW = KL; SB = 122880; RED = VL
SURV = 0; WMAX = 8192; CNT = 8224; SELL = 8256; RT = 153600 - SB
XS = 57344; HR = 67712; XROW = 1296; ERED = 78080

class PAsm(Asm):
    def stamp(self, i, grp=0):
        if i not in (0, 12) and grp != OPT.get("pg", 0): return
        if PROF:
            assert i < 13
            self(f"{TIMER} s[86:87]\n s_waitcnt lgkmcnt(0)\n s_mov_b32 s{88+i}, s86")

def srd(a, d, lo, size):
    a(f"""s_mov_b32 s{d}, s{lo}
    s_and_b32 s{d+1}, s{lo+1}, 0xffff
    s_mov_b32 s{d+2}, {size}
    s_mov_b32 s{d+3}, 0x00020000""")
def rb16(a, v): a(f"v_cvt_pk_bf16_f32 v{v}, v{v}, v{v}\n v_lshlrev_b32 v{v}, 16, v{v}")
def ln_scalars(a, s1, s2):
    a(f"""v_mul_f32 v{s1}, {INV640:#x}, v{s1}
    v_mul_f32 v{s2}, {INV640:#x}, v{s2}
    v_fma_f32 v{s2}, -v{s1}, v{s1}, v{s2}
    v_max_f32 v{s2}, 0, v{s2}
    v_cvt_pk_bf16_f32 v{s2}, v{s1}, v{s2}
    v_lshlrev_b32 v{s1}, 16, v{s2}
    v_and_b32 v{s2}, 0xffff0000, v{s2}
    v_add_f32 v{s2}, {EPS:#x}, v{s2}""")
    rb16(a, s2)
    a(f"v_sqrt_f32 v{s2}, v{s2}")
    rb16(a, s2)
    a(f"v_rcp_f32 v{s2}, v{s2}")
def dpp_reduce(a, op, regs):
    for sh in (1, 2, 4, 8):
        for v in regs: a(f"{op}_dpp v{v}, v{v}, v{v} row_shr:{sh} row_mask:0xf bank_mask:0xf")
    for v in regs: a(f"{op}_dpp v{v}, v{v}, v{v} row_bcast:15 row_mask:0xa bank_mask:0xf")
    for v in regs: a(f"{op}_dpp v{v}, v{v}, v{v} row_bcast:31 row_mask:0xc bank_mask:0xf")
def xg_sum(a, regs, tmps):
    for x, t in zip(regs, tmps): a(f"v_mov_b32 v{t}, v{x}")
    for x, t in zip(regs, tmps): a(f"v_permlane16_swap_b32 v{x}, v{t}")
    for x, t in zip(regs, tmps): a(f"v_add_f32 v{x}, v{x}, v{t}")
    for x, t in zip(regs, tmps): a(f"v_mov_b32 v{t}, v{x}")
    for x, t in zip(regs, tmps): a(f"v_permlane32_swap_b32 v{x}, v{t}")
    for x, t in zip(regs, tmps): a(f"v_add_f32 v{x}, v{x}, v{t}")
def norm_pair(a, d, x, m, rs, t0, t1):
    a(f"""v_lshlrev_b32 v{t0}, 16, v{x}
    v_and_b32 v{t1}, 0xffff0000, v{x}
    v_subrev_f32 v{t0}, {m}, v{t0}
    v_subrev_f32 v{t1}, {m}, v{t1}
    v_cvt_pk_bf16_f32 v{d}, v{t0}, v{t1}
    v_lshlrev_b32 v{t0}, 16, v{d}
    v_and_b32 v{t1}, 0xffff0000, v{d}
    v_mul_f32 v{t0}, {rs}, v{t0}
    v_mul_f32 v{t1}, {rs}, v{t1}
    v_cvt_pk_bf16_f32 v{d}, v{t0}, v{t1}""")
def add_pairs(a, d, x, y, t0, t1, t2):
    a(f"""v_lshlrev_b32 v{t0}, 16, v{x}
    v_lshlrev_b32 v{t1}, 16, v{y}
    v_add_f32 v{t0}, v{t0}, v{t1}
    v_and_b32 v{t1}, 0xffff0000, v{x}
    v_and_b32 v{t2}, 0xffff0000, v{y}
    v_add_f32 v{t1}, v{t1}, v{t2}
    v_cvt_pk_bf16_f32 v{d}, v{t0}, v{t1}""")
def q2(r): return f"v[{r}:{r+1}]"
def q4(r): return f"v[{r}:{r+3}]"
def r16(x): return f"v[{x}:{x+15}]"
M40 = "s_mov_b32 exec_hi, 0xff"
MALL = "s_mov_b64 exec, -1"
def spin_head(a, L):
    a(f"s_mov_b32 s3, 0\n {L}:\n s_add_u32 s3, s3, 1\n s_cmp_gt_u32 s3, {SPIN_MAX}\n s_cbranch_scc1 L_END")
def spin_tail(a, L, sl=None):
    a(f"s_cbranch_vccz {L}_OK\n s_sleep {SLEEP if sl is None else sl}\n s_branch {L}\n {L}_OK:")
def div_lane(a, q, r, src, d):
    magic = (65536 + d - 1) // d
    a(f"""v_mul_u32_u24 v{q}, {magic}, v{src}
    v_lshrrev_b32 v{q}, 16, v{q}
    v_mul_u32_u24 v{r}, {d}, v{q}
    v_sub_u32 v{r}, v{src}, v{r}""")
def kappa(a, d, s, t):
    a(f"""v_and_b32 v{d}, 0x13, v{s}
    v_and_b32 v{t}, 4, v{s}
    v_lshl_or_b32 v{d}, v{t}, 1, v{d}
    v_and_b32 v{t}, 8, v{s}
    v_lshrrev_b32 v{t}, 1, v{t}
    v_or_b32 v{d}, v{d}, v{t}""")
def rho(a, d, t):
    a(f"""v_bfe_u32 v{d}, v1, 2, 2
    v_and_b32 v{t}, 1, v3
    v_lshl_or_b32 v{d}, v{t}, 2, v{d}
    v_lshrrev_b32 v{t}, 1, v3
    v_lshl_or_b32 v{d}, v{t}, 4, v{d}""")
def masked_load(a, dst, voff, ptr, L, fl=""):
    a(f"""s_and_saveexec_b64 s[6:7], vcc
    s_cbranch_execz {L}
    global_load_dword v{dst}, v{voff}, s[{ptr}:{ptr+1}] {fl}
    {L}:
    {MALL}""")
def mm16(d, x, y, first): return f"v_mfma_f32_16x16x32_bf16 {q4(d)}, {q4(x)}, {q4(y)}, {'0' if first else q4(d)}"

def kernel(a):
    vXD0, vXD1, vWD, vQD = 10, 11, 12, 13
    NEG = 16
    ONES = 20
    WF = 24
    XP = 48
    ACC = 56
    XX, SX, CS = 80, 84, 88
    PK = 92
    TMP = 104
    XF = 136
    vWO0, vWO1 = 216, 217
    vST = 218
    vCSA = 221
    vPW, vPR0, vPR1, vCW = 224, 225, 226, 227
    vQA = 228
    vMR = 234
    vOC0, vOC1 = 238, 239
    vGU, vF1A, vF2A = 240, 241, 242
    vAS = 104
    SLOT = 26624
    def slot(c): return ((c + 2) % 6) * SLOT
    if PROF:
        for i in range(13): a(f"s_mov_b32 s{88+i}, 0")
    a.stamp(0)
    a(f"""s_load_dwordx16 s[64:79], s[0:1], 0
    s_load_dwordx4 s[80:83], s[0:1], 64
    s_load_dwordx2 s[84:85], s[0:1], 80
    s_getpc_b64 s[4:5]
    CODE_START:
    s_cmp_ge_u32 s2, 256
    s_cbranch_scc1 L_EXIT
    s_lshr_b32 s63, s2, 3             ; idx
    s_lshl_b32 s3, s63, 7
    v_lshl_add_u32 v4, v0, 12, s3
    v_cmp_gt_u32 vcc, CODE_END-CODE_START, v4""")
    masked_load(a, 250, 4, 4, "L_NOPF")
    a(f"""v_and_b32 v1, 63, v0
    v_lshrrev_b32 v4, 6, v0
    v_and_b32 v2, 15, v0
    v_readfirstlane_b32 {sW}, v4
    v_lshrrev_b32 v3, 4, v1
    s_and_b32 s3, s63, 3
    s_lshr_b32 {sHP}, s63, 2         ; s local
    s_bfe_u32 {sRB}, s2, 0x20001""")
    if OPT.get("rot", 1) == 1:
        a(f"""s_mul_i32 s4, s3, 5
        s_lshr_b32 s4, s4, 1
        s_add_u32 s4, s4, {sHP}
        s_add_u32 s4, s4, {sRB}
        s_cmp_ge_u32 s4, 10
        s_cselect_b32 s5, 10, 0
        s_sub_u32 s4, s4, s5""")
    else:
        a(f"""s_add_u32 s4, s3, {sHP}
        s_and_b32 s4, s4, 3
        s_mul_i32 s4, s4, 5
        s_lshr_b32 s4, s4, 1""")
    a(f"""s_lshl_b32 {sRB}, {sRB}, 2
    s_add_u32 {sRB}, {sRB}, s3
    s_and_b32 s3, s2, 1
    s_lshl_b32 s3, s3, 3
    s_add_u32 {sHP}, {sHP}, s3
    s_lshl_b32 s28, s4, 7
    s_mul_i32 s29, s4, 245760
    s_mov_b32 s62, s29
    s_lshl_b32 s3, {sRB}, 3
    s_add_u32 s3, s3, {sW}
    s_lshl_b32 s3, s3, 4
    v_lshrrev_b32 v4, 3, v1
    v_add_u32 v4, s3, v4
    v_mul_u32_u24 v4, 1280, v4
    v_and_b32 v5, 7, v1
    v_xor_b32 v5, v5, v3
    v_lshl_add_u32 v{vXD0}, v5, 4, v4
    v_xor_b32 v{vXD1}, 64, v{vXD0}
    v_add_u32 v{vXD1}, 10240, v{vXD1}""")
    div_lane(a, 8, 9, 1, 10)
    a(f"""s_and_b32 s3, {sW}, 1
    s_lshl_b32 s3, s3, 2
    s_lshr_b32 s4, {sW}, 1
    s_lshl_b32 s4, s4, 4
    s_add_u32 s60, s3, s4             ; 4(w&1)+16(w>>1)
    v_add_u32 v4, s60, v8
    v_mul_u32_u24 v4, 3840, v4
    v_lshl_add_u32 v4, v9, 4, v4
    s_mul_i32 s3, {sHP}, 160
    s_add_u32 s3, s3, 1280
    v_add_u32 v{vWD}, s3, v4
    s_lshl_b32 s30, {sW}, 11
    s_mul_i32 s31, {sW}, 1280
    s_add_u32 s31, s31, 16384
    s_waitcnt lgkmcnt(0)""")
    a.stamp(1)
    srd(a, 8, P_X, 2621440)
    srd(a, 12, P_WQKV, 2457600)
    XFL = 'nt' if OPT.get('xnt') else ''; WFL = 'nt' if OPT.get('wnt') else ''
    def dmaA(c):
        b = slot(c)
        return [f"""s_add_u32 m0, s30, {b}
        s_nop 0
        buffer_load_dwordx4 v{vXD0}, s[8:11], s28 offen {XFL} lds""",
        f"""s_add_u32 m0, s31, {b}
        {M40}
        buffer_load_dwordx4 v{vWD}, s[12:15], s29 offen {WFL} lds
        {MALL}""",
        f"""s_add_u32 m0, s30, {b + 1024}
        s_add_u32 s39, s29, 30720
        buffer_load_dwordx4 v{vXD1}, s[8:11], s28 offen {XFL} lds
        s_add_u32 s28, s28, 128
        s_add_u32 s29, s29, 245760""",
        f"""s_add_u32 m0, s31, {b + 640}
        {M40}
        buffer_load_dwordx4 v{vWD}, s[12:15], s39 offen {WFL} lds
        {MALL}
        s_cmp_ge_u32 s28, 1280
        s_cselect_b32 s28, 0, s28
        s_cselect_b32 s29, 0, s29"""]
    for x in dmaA(0): a(x)
    srd(a, 16, P_WS, WS_SIZE)
    a(f"""s_and_b32 {sLO}, {sW}, 3
    s_lshr_b32 {sHI}, {sW}, 2
    s_lshl_b32 s61, {sLO}, 1
    s_add_u32 s61, s61, {sHI}
    s_and_b32 s3, s2, 7
    s_lshl_b32 {sRB2}, s3, 2
    s_lshr_b32 s5, s63, 3
    s_add_u32 {sRB2}, {sRB2}, s5
    s_and_b32 {sCS}, s63, 7
    s_min_u32 s4, s3, 5
    s_sub_u32 {sROLE}, {sRB2}, s4
    s_cmp_eq_u32 s5, 3
    s_cselect_b32 s4, s3, 7
    s_add_u32 s3, s3, 32
    s_cmp_lt_u32 s4, 5
    s_cselect_b32 {sROLE}, s3, {sROLE}
    s_lshl_b32 s4, {sHP}, 4
    s_add_u32 s4, s4, {sRB}
    s_lshl_b32 s4, s4, 7
    s_add_u32 s59, s4, {F1_OFF}
    v_mov_b32 v{NEG}, -1
    v_mov_b32 v{NEG+1}, -1
    v_mov_b32 v{NEG+2}, -1
    v_mov_b32 v{NEG+3}, -1
    s_cmp_lg_u32 {sW}, 0
    s_cbranch_scc1 L_NOCLR
    s_lshl_b32 s3, s2, 10
    s_add_u32 s3, s3, {PART_OFF}
    v_lshl_add_u32 v6, v1, 4, s3
    buffer_store_dwordx4 {q4(NEG)}, v6, {WSR}, 0 offen sc1
    s_lshl_b32 s6, s2, 7
    s_add_u32 s6, s6, {ACT_OFF - 128}
    s_lshl_b32 s7, s2, 5
    s_add_u32 s7, s7, {KEY_OFF - 256}
    v_mov_b32 v6, s59
    v_mov_b32 v7, s6
    v_cmp_le_u32 vcc, 8, v1
    v_cndmask_b32 v6, v6, v7, vcc
    v_mov_b32 v7, s7
    v_cmp_le_u32 vcc, 16, v1
    v_cndmask_b32 v6, v6, v7, vcc
    v_lshl_add_u32 v6, v1, 4, v6
    s_mov_b64 exec, 0x3ffff
    buffer_store_dwordx4 {q4(NEG)}, v6, {WSR}, 0 offen sc1
    {MALL}
    L_NOCLR:""")
    div_lane(a, 4, 5, 0, 5)
    a(f"""s_mul_i32 s3, s63, 20
    v_add_u32 v4, s3, v4
    v_mul_u32_u24 v4, 3840, v4
    v_lshl_add_u32 v4, v5, 7, v4
    s_and_b32 s3, s2, 1
    s_mul_i32 s3, s3, 640
    v_add_u32 v244, s3, v4""")
    if OPT.get("tqs", 99) < 0:
        a("v_cmp_gt_u32 vcc, 100, v0"); masked_load(a, 251, 244, P_WQKV, "L_TQ")
    a.stamp(1, 1)
    a(f"""s_lshr_b32 s3, s60, 4
    s_lshl_b32 s3, s3, 2
    s_add_u32 s3, s3, s60             ; 20(w>>1)+4(w&1)
    v_add_u32 v4, s3, v8
    v_mul_u32_u24 v4, 1280, v4
    s_mul_i32 s3, s60, 5
    s_add_u32 s3, s3, 16
    v_add_u32 v5, s3, v8
    v_mul_u32_u24 v5, 1280, v5
    s_mul_i32 s3, {sCS}, 160
    v_lshl_add_u32 v6, v9, 4, s3
    v_add_u32 v{vWO0}, v4, v6
    v_add_u32 v{vWO1}, v5, v6
    v_lshrrev_b32 v4, 1, v2
    v_xor_b32 v4, v4, v3
    v_lshlrev_b32 v4, 4, v4
    v_lshl_add_u32 v4, v2, 7, v4
    s_lshl_b32 s3, s61, 11
    v_add_u32 v{vAS}, s3, v4
    v_xor_b32 v{vAS+1}, 64, v{vAS}
    v_xor_b32 v{vAS+2}, 0x800, v{vAS}
    v_xor_b32 v{vAS+3}, 0x840, v{vAS}""")
    rho(a, 4, 5)
    a(f"""v_mul_u32_u24 v4, 160, v4
    v_and_b32 v5, 3, v1
    v_lshl_add_u32 v4, v5, 3, v4
    v_add_u32 v4, 16384, v4
    s_cmp_ge_u32 {sHP}, 8
    s_cselect_b64 s[56:57], -1, 0
    v_lshlrev_b32 v6, 4, v3
    v_lshlrev_b32 v7, 2, v2
    v_cndmask_b32 v14, v6, v7, s[56:57]
    v_cndmask_b32 v15, v7, v6, s[56:57]
    v_and_b32 v5, 1, v3
    v_xor_b32 v5, {sHI}, v5           ; half
    v_lshrrev_b32 v9, 1, v3           ; g>>1
    v_lshlrev_b32 v6, 8, v5
    v_lshl_add_u32 v6, v2, 4, v6      ; K: half*256 + 16j
    v_lshl_add_u32 v7, v5, 1, v9
    v_mul_u32_u24 v7, 640, v7         ; V: octet*640
    s_sub_u32 s5, 3, {sHI}            ; ntiles
    s_mul_i32 s6, {sHI}, 3""")
    for u in range(3):
        a(f"""s_add_u32 s{32+u}, {sLO}, {u}
        s_cmp_ge_u32 s{32+u}, s5
        s_cselect_b32 s3, s5, 0
        s_sub_u32 s{32+u}, s{32+u}, s3
        s_cmp_ge_u32 s{32+u}, s5
        s_cselect_b32 s3, s5, 0
        s_sub_u32 s{32+u}, s{32+u}, s3
        s_add_u32 s{32+u}, s{32+u}, s6
        s_lshl_b32 s3, s{32+u}, 5
        v_add_u32 v{vAS+4+u}, s3, v4
        s_lshl_b32 s3, s{32+u}, 6
        s_add_u32 s3, s3, {SCR+1024}
        v_add_u32 v{vCSA+u}, s3, v14
        s_lshl_b32 s3, s{32+u}, 1
        v_add_u32 v5, s3, v9
        v_cmp_le_u32 vcc, 5, v5
        v_mov_b32 v8, {64*T32 - 5*512}
        v_cndmask_b32 v8, 0, v8, vcc
        v_lshl_add_u32 v8, v5, 9, v8
        v_add_u32 v{vST+u}, v8, v6
        s_lshl_b32 s3, s{32+u}, 4
        v_add_u32 v5, s3, v2
        v_cmp_le_u32 vcc, 40, v5
        v_mov_b32 v8, {64*T32 - 640}
        v_cndmask_b32 v8, 0, v8, vcc
        v_lshl_add_u32 v8, v5, 4, v8
        v_add_u32 v8, v8, v7
        v_cndmask_b32 v{vST+u}, v{vST+u}, v8, s[56:57]""")
    for q in (1, 2):
        for i in range(7): a(f"v_add_u32 v{vAS+7*q+i}, {2*SLOT*q}, v{vAS+i}")
    for i in range(4): a(f"v_mov_b32 v{ONES+i}, 0x3f803f80")
    for x in dmaA(1): a(x)
    a(f"""s_lshl_b32 s3, s61, 6
    s_add_u32 s3, s3, {SCR}
    v_lshl_add_u32 v{vPW}, v2, 2, s3
    v_add_u32 v{vPR0}, s3, v15
    v_xor_b32 v{vPR1}, 64, v{vPR0}
    s_lshl_b32 s3, s32, 6
    s_add_u32 s3, s3, {SCR+1024}
    v_lshl_add_u32 v{vCW}, v2, 2, s3
    v_lshrrev_b32 v4, 2, v2
    v_cmp_eq_u32 s[54:55], v4, v3
    v_and_b32 v4, 3, v2
    v_cmp_eq_u32 s[48:49], 1, v4
    v_cmp_eq_u32 s[50:51], 2, v4
    v_cmp_eq_u32 s[52:53], 3, v4
    s_lshl_b32 s4, {sRB}, 2
    s_add_u32 s4, s4, {sLO}
    s_mul_i32 s4, s4, {T32}
    s_mul_i32 s37, {sHP}, {2*64*T32}
    s_add_u32 s37, s37, s4""")
    assert V_OFF == 8*2*64*T32 and K_OFF == 0
    div_lane(a, 4, 5, 1, 5)
    a(f"""v_and_b32 v6, 1, v4
    v_lshrrev_b32 v4, 1, v4
    v_lshl_add_u32 v4, v6, 2, v4
    s_lshl_b32 s3, {sW}, 3
    v_add_u32 v4, s3, v4
    v_mul_u32_u24 v4, 3840, v4
    v_lshl_add_u32 v4, v5, 4, v4
    s_mul_i32 s3, {sHP}, 80
    v_add_u32 v{vQD}, s3, v4
    s_mul_i32 s38, {sW}, 640
    v_bfe_u32 v4, v1, 2, 2
    v_lshlrev_b32 v4, 1, v4
    v_lshl_add_u32 v4, v3, 3, v4
    v_mul_u32_u24 v4, 80, v4
    v_and_b32 v5, 3, v1
    v_lshl_add_u32 v4, v5, 3, v4
    s_mul_i32 s4, {sHI}, 2560
    s_sub_u32 s5, 2560, s4""")
    for u in range(3):
        a(f"""s_add_u32 s{40+u}, {sLO}, {u}
        s_cmp_ge_u32 s{40+u}, 3
        s_cselect_b32 s3, 3, 0
        s_sub_u32 s{40+u}, s{40+u}, s3
        s_lshl_b32 s3, s{40+u}, 5
        v_add_u32 v5, s3, v4
        v_add_u32 v{vQA+u}, s4, v5
        v_add_u32 v{vQA+3+u}, s5, v5""")
    a(f"""s_lshl_b32 s3, {sRB}, 2
    s_add_u32 s3, s3, {sLO}
    s_mul_i32 s3, s3, 40960
    s_add_u32 s3, s3, {O_OFF}
    s_lshl_b32 s4, {sHP}, 1
    s_add_u32 s4, s4, {sHI}
    s_lshl_b32 s5, s4, 10
    s_add_u32 s5, s5, s3
    v_lshl_add_u32 v{vOC0}, v1, 4, s5
    s_lshl_b32 s5, s4, 8
    s_add_u32 s5, s5, s3
    s_add_u32 s5, s5, 32768
    v_lshl_add_u32 v{vOC1}, v1, 3, s5
    s_mul_i32 s3, {sCS}, 80
    s_lshl_b32 s4, {sW}, 4
    s_add_u32 s3, s3, s4
    v_lshrrev_b32 v4, 3, v1
    v_add_u32 v4, s3, v4
    v_mul_u32_u24 v4, 3456, v4
    v_and_b32 v5, 7, v1
    v_lshl_add_u32 v4, v5, 4, v4
    s_lshl_b32 s3, {sROLE}, 7
    v_add_u32 v{vGU}, s3, v4
    v_subrev_u32 v5, 24, v1
    v_cmp_gt_u32 vcc, 24, v1
    v_cndmask_b32 v5, v5, v1, vcc
    v_mov_b32 v6, 128
    v_cndmask_b32 v6, v6, 0, vcc
    v_lshrrev_b32 v7, 3, v5
    s_sub_u32 s3, {sRB}, 2
    v_add_u32 v7, s3, v7
    v_cmp_le_i32 s[46:47], 0, v7
    s_lshr_b32 s3, {sHP}, 1
    s_lshl_b32 s3, s3, 4
    v_add3_u32 v6, v6, v7, s3
    v_lshlrev_b32 v6, 7, v6
    v_and_b32 v5, 7, v5
    v_lshl_add_u32 v6, v5, 2, v6
    v_add_u32 v{vF1A}, {F1_OFF}, v6
    s_and_b32 s47, s47, 0xffff
    v_lshrrev_b32 v4, 2, v1
    v_lshlrev_b32 v4, 11, v4
    v_and_b32 v5, 1, v1
    v_lshl_add_u32 v4, v5, 2, v4
    v_and_b32 v5, 2, v1
    v_lshl_add_u32 v4, v5, 3, v4
    s_lshr_b32 s3, {sRB2}, 1
    s_lshl_b32 s3, s3, 7
    s_and_b32 s4, {sRB2}, 1
    s_lshl_b32 s4, s4, 3
    s_add_u32 s3, s3, s4
    s_add_u32 s3, s3, {F1_OFF}
    v_add_u32 v{vF2A}, s3, v4
    s_lshl_b32 s3, {sRB2}, 3
    s_add_u32 s3, s3, {sCS}
    s_mul_i32 s3, s3, 10240
    s_mul_i32 s4, {sW}, 1280
    s_add_u32 s3, s3, s4
    s_add_u32 s3, s3, {H_OFF}
    v_lshl_add_u32 v243, v1, 4, s3""")
    a(f"""    s_mul_i32 s3, s63, 200
    s_max_u32 s4, {sW}, 5
    s_sub_u32 s4, s4, 5
    s_mul_i32 s4, s4, 68
    s_add_u32 s3, s3, s4
    v_add_u32 v4, s3, v1
    v_lshlrev_b32 v245, 7, v4
    v_subrev_u32 v4, 384, v0
    v_lshrrev_b32 v5, 1, v4
    s_mul_i32 s3, s63, 54
    v_add_u32 v5, s3, v5
    v_mul_u32_u24 v5, 1280, v5
    v_and_b32 v4, 1, v4
    v_lshl_add_u32 v5, v4, 7, v5
    s_and_b32 s3, s2, 7
    s_lshl_b32 s3, s3, 8
    v_add_u32 v246, s3, v5""")
    def dmaQ(i):
        return f"""s_add_u32 m0, s38, {WQL + i*5120}
        {M40}
        buffer_load_dwordx4 v{vQD}, s[12:15], s62 offen lds
        {MALL}
        s_add_u32 s62, s62, 245760
        s_cmp_ge_u32 s62, 2457600
        s_cselect_b32 s62, 0, s62"""
    def a1_reads(n, cg):
        c, ks, b = n >> 1, n & 1, n & 1
        sl = (c + 2) % 6
        base, off = vAS + 7*(sl // 2), (sl % 2) * SLOT
        L = [f"ds_read_b128 {q4(XF+4*(n ^ cg))}, v{base+ks} offset:{off}"]
        for u in range(3 - cg):
            for h in range(2):
                L.append(f"ds_read_b64_tr_b16 {q2(WF+12*b+4*u+2*h)}, v{base+4+u} offset:{off + ks*5120 + h*1280}")
        L.insert(3, f"ds_read_b128 {q4(XP+4*b)}, v{base+2+ks} offset:{off}")
        return L
    def a1_mfmas(n, isv, cg):
        b = n & 1; f = n == 0
        x = [XF + 4*(n ^ cg), XP + 4*b]
        L = [(mm16(XX, x[0], x[0], f), 0), (mm16(SX, ONES, x[0], f), 0), (mm16(CS, ONES, WF+12*b, f), 2)]
        for u in range(3 - cg):
            w = WF + 12*b + 4*u
            for t in range(2):
                d = ACC + 8*u + 4*t
                need = (2 if t == 0 else 3) if u == 0 else 2*u + 3
                L.append((mm16(d, x[t], w, f) if isv else mm16(d, w, x[t], f), need))
        return L
    a.stamp(2, 1)
    a("s_waitcnt vmcnt(4)\n s_barrier")
    a.stamp(2); a.stamp(3, 1)
    a(f"""s_cmp_lg_u32 {sW}, 0
    s_cbranch_scc1 L_NOSIG
    s_and_b32 s3, s2, 63
    s_lshl_b32 s3, s3, 2
    v_mov_b32 v4, s3
    v_mov_b32 v5, 1
    s_mov_b64 exec, 1
    global_atomic_add v4, v5, s[{P_DBG}:{P_DBG+1}] sc1
    {MALL}
    L_NOSIG:
    s_lshr_b32 s3, {sHP}, 3
    s_lshl_b32 s3, s3, 1
    s_add_u32 s3, s3, {sHI}
    s_cmp_eq_u32 s3, 1
    s_cbranch_scc1 L_A1_01
    s_cmp_eq_u32 s3, 2
    s_cbranch_scc1 L_A1_10
    s_cmp_eq_u32 s3, 3
    s_cbranch_scc1 L_A1_11""")
    D = OPT.get("dist", 3)
    TQS = OPT.get("tqs", 99); CLS = OPT.get("cls", 9)
    BAR2 = OPT.get("bar2", 0)
    def a1(isv, cg):
        tag = f"{int(isv)}{cg}"
        a(f"L_A1_{tag}:")
        vq = ["c1"] * 4
        side = {n: [] for n in range(20)}
        for c in range(2, 10):
            st = 2 * max(c - D, 0)
            if c - D < 0: st = 0
            for k, x in enumerate(dmaA(c)): side[st + (k >> 1) if c - D >= 0 else 0].append((x, f"c{c}"))
        q0 = max(2 * (10 - D), 13)
        for q in range(10): side[min(q0 + q // 2, 19)].append((dmaQ(q), "q"))
        side[CLS].append((f"""buffer_store_dwordx4 {q4(NEG)}, v{vOC0}, {WSR}, 0 offen sc1""", "x"))
        side[CLS].append((f"""s_mov_b32 exec_hi, 0
        buffer_store_dwordx2 {q2(NEG)}, v{vOC1}, {WSR}, 0 offen sc1
        {MALL}""", "x"))
        R = a1_reads(0, cg)
        for x in R: a(x)
        for n in range(20):
            c = n >> 1
            Rn = a1_reads(n + 1, cg) if n < 19 else []
            M = a1_mfmas(n, isv, cg)
            nr = len(R)
            barrier = (n & 1) and c < 9
            want = [f"c{c+1}"]
            if BAR2 and barrier and c >= BAR2:
                if (c - BAR2) & 1: barrier = False
                elif c + 2 <= 9: want.append(f"c{c+2}")
            issued = 0; done = -1
            if barrier:
                last = max(i for i, t in enumerate(vq) if t in want)
                a(f"s_waitcnt vmcnt({len(vq) - 1 - last})\n s_barrier")
                vq = vq[last + 1:]
                if c in (0, 1, 2, 3, 4, 5, 6, 8): a.stamp({0:4, 1:5, 2:6, 3:7, 4:8, 5:9, 6:10, 8:11}[c], 1)
            S = list(side[n])
            gap = max(1, len(M) // max(1, len(S)))
            for k, (m, need) in enumerate(M):
                if need > done:
                    a(f"s_waitcnt lgkmcnt({nr - 1 - need + issued})"); done = need
                a(m)
                if k < len(Rn): a(Rn[k]); issued += 1
                if S and (k % gap == gap - 1 or k == len(M) - 1):
                    while S:
                        x, t = S.pop(0); a(x); vq.append(t)
                        if k < len(M) - 1: break
            if n == TQS and cg == 0:
                a("v_cmp_gt_u32 vcc, 100, v0"); masked_load(a, 251, 244, P_WQKV, f"L_TQ{tag}")
            R = Rn
        a.stamp(3); a.stamp(1, 2)
        NT = 3 - cg
        if cg == 1:
            a(f"""v_lshlrev_b32 v8, 2, v1
            s_cmp_lg_u32 {sW}, 7
            s_cbranch_scc1 L_NOC1{tag}
            global_load_dword v9, v8, s[{P_DBG}:{P_DBG+1}] sc1
            L_NOC1{tag}:""")
        a(f"""ds_write_b32 v{vCW}, v{CS}
        v_cndmask_b32 v{XX}, v{XX}, v{XX+1}, s[48:49]
        v_cndmask_b32 v{XX}, v{XX}, v{XX+2}, s[50:51]
        v_cndmask_b32 v{SX+1}, v{XX}, v{XX+3}, s[52:53]""")
        ln_scalars(a, SX, SX + 1)
        a(f"""s_mov_b64 exec, s[54:55]
        ds_write2st64_b32 v{vPW}, v{SX}, v{SX+1} offset0:0 offset1:2
        {MALL}
        s_waitcnt lgkmcnt(0)
        s_barrier""")
        a.stamp(2, 2)
        a(f"ds_read2st64_b32 {q2(vMR)}, v{vPW} offset0:0 offset1:2")
        if not isv:
            a(f"ds_read2st64_b32 {q2(vMR+2)}, v{vPR1} offset0:0 offset1:2")
            for u in range(NT): a(f"ds_read_b128 {q4(TMP+4*u)}, v{vCSA+u}")
            a("s_waitcnt lgkmcnt(0)")
            for u in range(NT):
                for t in range(2):
                    for e in (0, 2):
                        d = ACC + 8*u + 4*t + e
                        a(f"v_pk_fma_f32 {q2(d)}, {q2(TMP+4*u+e)}, {q2(vMR+2*t)}, {q2(d)} op_sel_hi:[1,0,1] neg_lo:[1,0,0] neg_hi:[1,0,0]")
            for u in range(NT):
                for t in range(2):
                    for e in (0, 2):
                        d = ACC + 8*u + 4*t + e
                        a(f"v_pk_mul_f32 {q2(d)}, {q2(d)}, {q2(vMR+2*t)} op_sel:[0,1] op_sel_hi:[1,1]")
        else:
            for t in range(2):
                a(f"ds_read_b128 {q4(TMP+8*t)}, v{vPR0+t}\n ds_read_b128 {q4(TMP+8*t+4)}, v{vPR0+t} offset:512")
            for u in range(NT): a(f"ds_read_b32 v{TMP+16+2*u}, v{vCSA+u}")
            a("s_waitcnt lgkmcnt(0)")
            for u in range(NT):
                for t in range(2):
                    for e in (0, 2):
                        d = ACC + 8*u + 4*t + e
                        a(f"v_pk_fma_f32 {q2(d)}, {q2(TMP+8*t+e)}, {q2(TMP+16+2*u)}, {q2(d)} op_sel_hi:[1,0,1] neg_lo:[1,0,0] neg_hi:[1,0,0]")
            for u in range(NT):
                for t in range(2):
                    for e in (0, 2):
                        d = ACC + 8*u + 4*t + e
                        a(f"v_pk_mul_f32 {q2(d)}, {q2(d)}, {q2(TMP+8*t+4+e)}")
        for e in range(0, 8*NT, 2): a(f"v_cvt_pk_bf16_f32 v{PK+e//2}, v{ACC+e}, v{ACC+e+1}")
        for u in range(NT): a(f"v_permlane16_swap_b32 v{PK+4*u}, v{PK+4*u+2}\n v_permlane16_swap_b32 v{PK+4*u+1}, v{PK+4*u+3}")
        a.stamp(3, 2)
        for u in range(NT): a(f"buffer_store_dwordx4 {q4(PK+4*u)}, v{vST+u}, {WSR}, s37 offen sc1")
        a(f"s_waitcnt vmcnt({NT})")
        if tag != "11": a("s_branch L_A2")
    a1(False, 0); a1(False, 1); a1(True, 0); a1(True, 1)

    a("L_A2:")
    a.stamp(4, 2)
    a("s_barrier")
    a.stamp(4); a.stamp(5, 2)
    def a2_reads(n):
        b = n & 1
        return [f"ds_read_b64_tr_b16 {q2(WF+12*b+4*u+2*h)}, v{vQA+3*b+u} offset:{(n >> 1)*5120 + h*80}" for u in range(3) for h in range(2)]
    for r in a2_reads(0): a(r)
    srd(a, 8, P_G, 2211840)
    srd(a, 12, P_U, 2211840)
    srd(a, 48, P_WO, 819200)
    a(f"""s_lshl_b32 s3, {sW}, 2
    s_add_u32 s3, s3, s59
    v_mov_b32 v6, s3
    v_mov_b32 v7, 1
    s_lshl_b32 s39, {sW}, 12
    s_cmp_ge_u32 {sROLE}, 32
    s_cselect_b32 s58, 7, {sW}""")
    def batch(k):
        sr = 8 + 4*k
        a(f"""s_cmp_ge_u32 s58, 5
        s_cbranch_scc1 L_BT{k}
        s_add_u32 m0, s39, {GUL + 2048*k}
        s_mov_b32 s5, {8*3456}
        buffer_load_dwordx4 v{vGU}, s[{sr}:{sr+3}], 0 offen nt lds
        s_add_u32 m0, s39, {GUL + 2048*k + 1024}
        s_nop 0
        buffer_load_dwordx4 v{vGU}, s[{sr}:{sr+3}], s5 offen nt lds
        s_branch L_BD{k}
        L_BT{k}:
        s_mov_b64 exec, 0x1ffff
        s_mov_b32 s5, {34*128*k}
        buffer_load_dword v252, v245, s[48:51], s5 offen
        buffer_load_dword v253, v245, s[48:51], s5 offen offset:{17*128}
        {MALL}
        L_BD{k}:""")
    batch(0)
    F1S = OPT.get("f1s", 3); B2S = OPT.get("b2s", 8); PLS = OPT.get("pls", 15)
    for n in range(20):
        Rn = a2_reads(n + 1) if n < 19 else []
        b = n & 1; f = n == 0
        issued = 0
        for u in range(3):
            a(f"s_waitcnt lgkmcnt({4 - 2*u + issued})")
            a(mm16(ACC+4*u, WF+12*b+4*u, XF+4*n, f))
            if u == 0 and b == 0: a(mm16(CS, ONES, WF, f))
            for x in Rn[2*u:2*u+2]: a(x); issued += 1
        if n == F1S:
            a.stamp(6, 2)
            a("s_waitcnt vmcnt(2)")
            a.stamp(7, 2)
            a(f"""s_mov_b64 exec, 1
            buffer_store_dword v7, v6, {WSR}, 0 offen sc1
            {MALL}""")
        if n == B2S: batch(1)
        if n == PLS:
            a(f"""s_cmp_lg_u32 {sW}, 7
            s_cbranch_scc1 L_NOPL
            v_cmp_gt_u32 vcc, 4, v9
            s_cbranch_vccz L_CLRPOLL_OK""")
            spin_head(a, "L_CLRPOLL")
            a(f"""global_load_dword v9, v8, s[{P_DBG}:{P_DBG+1}] sc1
            s_waitcnt vmcnt(0)
            v_cmp_gt_u32 vcc, 4, v9""")
            spin_tail(a, "L_CLRPOLL")
            a(f"""s_mov_b64 exec, s[46:47]
            buffer_load_dword v8, v{vF1A}, {WSR}, 0 offen sc1
            {MALL}
            L_NOPL:""")
    a.stamp(8, 2)
    a(f"""s_lshl_b32 s3, s40, 6
    s_lshl_b32 s4, {sHI}, 8
    s_add_u32 s3, s3, s4
    s_add_u32 s3, s3, {CS2}
    v_lshl_add_u32 v6, v2, 2, s3
    v_mul_f32 v{vMR+1}, {QSCALE:#x}, v{vMR+1}
    ds_write_b32 v6, v{CS}
    s_lshl_b32 s39, {sW}, 10
    s_lshl_b32 s3, {sRB}, 2
    s_sub_u32 s3, s3, 8
    s_mul_i32 s3, s3, {T32}
    s_add_u32 s3, s3, s39
    v_lshl_add_u32 v10, v1, 4, s3
    s_mul_i32 s3, {sHP}, {64*T32}
    s_add_u32 s4, s{P_WS}, s3
    s_addc_u32 s5, s{P_WS+1}, 0
    s_add_u32 s6, s4, {V_OFF}
    s_addc_u32 s7, s5, 0""")
    srd(a, 8, 4, 64*T32)
    srd(a, 12, 6, 64*T32)
    a(f"""s_cmp_lg_u32 {sW}, 7
    s_cbranch_scc1 L_F1DONE
    s_mov_b64 exec, s[46:47]
    s_waitcnt vmcnt(0)
    v_cmp_ne_u32 vcc, 1, v8
    s_cbranch_vccz L_F1POLL_OK""")
    spin_head(a, "L_F1POLL")
    a(f"""buffer_load_dword v8, v{vF1A}, {WSR}, 0 offen sc1
    s_waitcnt vmcnt(0)
    v_cmp_ne_u32 vcc, 1, v8""")
    spin_tail(a, "L_F1POLL", 1)
    a(f"""{MALL}
    L_F1DONE:
    s_waitcnt lgkmcnt(0)
    s_barrier""")
    a.stamp(5); a.stamp(9, 2)
    for kv in range(2):
        for i in range(4):
            if i == 3: a(f"s_cmp_ge_u32 {sW}, 6\n s_cbranch_scc1 L_KV{kv}")
            a(f"""s_add_u32 m0, s39, {KL + 30720*kv + 8192*i}
            v_add_u32 v4, {8192*i}, v10
            buffer_load_dwordx4 v4, s[{8+4*kv}:{11+4*kv}], 0 offen sc1 lds""")
        a(f"L_KV{kv}:")
    a.stamp(10, 2)
    for u in range(3):
        a(f"""s_lshl_b32 s3, s{40+u}, 6
        s_add_u32 s3, s3, {CS2}
        v_lshl_add_u32 v4, v3, 4, s3
        ds_read_b128 {q4(WF+4*u)}, v4
        ds_read_b128 {q4(WF+12+4*u)}, v4 offset:256""")
    a(f"""s_lshl_b32 s3, s61, 8
    s_add_u32 s3, s3, {QEX}
    v_lshl_add_u32 v6, v2, 4, s3
    v_and_b32 v4, 1, v3
    v_lshl_add_u32 v6, v4, 3, v6
    v_lshrrev_b32 v7, 1, v3
    s_waitcnt lgkmcnt(0)""")
    for e in range(0, 12, 2): a(f"v_pk_add_f32 {q2(WF+e)}, {q2(WF+e)}, {q2(WF+12+e)}")
    for e in range(0, 12, 2):
        a(f"v_pk_fma_f32 {q2(ACC+e)}, {q2(WF+e)}, {q2(vMR)}, {q2(ACC+e)} op_sel_hi:[1,0,1] neg_lo:[1,0,0] neg_hi:[1,0,0]")
    for e in range(0, 12, 2):
        a(f"v_pk_mul_f32 {q2(ACC+e)}, {q2(ACC+e)}, {q2(vMR)} op_sel:[0,1] op_sel_hi:[1,1]")
    for e in range(0, 12, 2): a(f"v_cvt_pk_bf16_f32 v{PK+e//2}, v{ACC+e}, v{ACC+e+1}")
    for u in range(3):
        a(f"""s_lshl_b32 s3, s{40+u}, 1
        v_add_u32 v4, s3, v7
        v_cmp_gt_u32 vcc, 5, v4
        v_lshl_add_u32 v4, v4, 11, v6
        s_and_saveexec_b64 s[4:5], vcc
        ds_write_b64 v4, {q2(PK+2*u)}
        {MALL}""")
    a("s_waitcnt lgkmcnt(0)\n s_barrier")
    a.stamp(6); a.stamp(11, 2)

    a(f"""buffer_store_dwordx4 {q4(NEG)}, v243, {WSR}, 0 offen sc1
    s_mov_b64 exec, 0xffff
    buffer_store_dwordx4 {q4(NEG)}, v243, {WSR}, 0 offen offset:1024 sc1
    {MALL}""")
    vK0, vK1, vV = 11, 12, 13
    vO0, vO1 = 14, 15
    Q0, Q1 = 16, 20
    bWO0, bWO1 = 22, 23
    POOL = 24
    MK = 88; O = 96
    RPD = 112
    bF2A = 87
    TD = 10
    a(f"""v_mov_b32 v{bWO0}, v{vWO0}
    v_mov_b32 v{bWO1}, v{vWO1}
    v_mov_b32 v{vO0}, v{vOC0}
    v_mov_b32 v{vO1}, v{vOC1}
    v_mov_b32 v{TD}, v246
    v_mov_b32 v{bF2A}, v{vF2A}
    v_and_b32 v2, 31, v0
    v_lshrrev_b32 v3, 5, v1
    s_lshl_b32 s3, {sLO}, 9
    s_add_u32 s3, s3, {QEX}
    v_lshl_add_u32 v4, v2, 4, s3
    s_mul_i32 s4, {sHI}, {3*2048}
    v_lshl_add_u32 v5, v3, 11, v4
    v_add_u32 v5, s4, v5
    ds_read_b128 {q4(Q0)}, v5
    s_lshl_b32 s4, {sHI}, 3
    v_add_u32 v4, s4, v4
    ds_read_b64 {q2(Q1)}, v4 offset:4096
    v_bfe_u32 v7, v1, 1, 4""")
    kappa(a, 8, 7, 9)
    a(f"""v_lshlrev_b32 v8, 7, v8
    v_and_b32 v9, 1, v1
    v_lshl_add_u32 v8, v9, 11, v8
    v_lshl_add_u32 v8, v3, 4, v8
    s_lshl_b32 s3, {sW}, 12
    s_add_u32 s3, s3, {GUL}
    v_add_u32 v86, s3, v8""")
    kappa(a, 4, 2, 5)
    a(f"""s_mul_i32 s3, {sLO}, {T32}
    s_add_u32 s3, s3, {KL}
    s_mul_i32 s4, {sHI}, 1536
    s_add_u32 s4, s4, s3
    v_lshlrev_b32 v5, 4, v4
    v_lshl_add_u32 v{vK0}, v3, 9, v5
    v_add_u32 v{vK0}, s4, v{vK0}
    s_lshl_b32 s4, {sHI}, 3
    s_add_u32 s4, s4, s3
    s_add_u32 s4, s4, 1024
    v_add_u32 v{vK1}, s4, v5
    v_cmp_gt_u32 vcc, 20, v2
    v_cndmask_b32 v5, 0, v5, vcc
    v_mul_u32_u24 v6, 640, v3
    s_mul_i32 s4, {sHI}, 320
    s_add_u32 s4, s4, s3
    s_add_u32 s4, s4, 30720
    v_add3_u32 v{vV}, v5, v6, s4
    v_lshlrev_b32 v4, 3, v3
    v_sub_u32 v4, v2, v4
    v_mov_b32 v5, 0xffff
    v_mov_b32 v6, 0xffff0000""")
    MS = 32
    for r in range(16): a(f"v_cmp_gt_i32 s[{MS+2*r}:{MS+1+2*r}], {(r&7) + 16*(r>>3)}, v4")
    for i in range(8):
        a(f"""v_cndmask_b32 v7, 0, v5, s[{MS+4*i}:{MS+1+4*i}]
        v_cndmask_b32 v8, 0, v6, s[{MS+2+4*i}:{MS+3+4*i}]
        v_or_b32 v{MK+i}, v7, v8""")
    FS = [128, 144, 160]
    FK = [176, 182, 188]
    FV = [POOL, POOL+8, POOL+16]; FV0 = POOL + 24
    FP = [200, 208]
    for r in range(32): a(f"v_mov_b32 v{POOL+r}, 0x3f803f80")
    a(f"""s_lshl_b32 s3, {sRB}, 2
    s_add_u32 s3, s3, {sLO}
    s_sub_i32 s30, 8, s3              ; n_invalid
    s_mov_b32 s28, 0xfffff
    s_mov_b32 s29, 0xfffff
    s_mul_i32 s31, {sW}, 1280
    v_cmp_eq_u32 vcc, 0, v3
    s_waitcnt lgkmcnt(0)
    v_cndmask_b32 v{Q1}, 0, v{Q1}, vcc
    v_cndmask_b32 v{Q1+1}, 0, v{Q1+1}, vcc""")
    srd(a, 8, P_WO, 819200)
    a("s_waitcnt vmcnt(8)")
    for i in range(4): a(f"ds_read_b128 {q4(RPD+4*i)}, v86 offset:{32*i}")
    a("s_waitcnt vmcnt(2) lgkmcnt(0)\n s_barrier")
    a.stamp(7)
    def dma_wo(p):
        kh, q = p // 5, p % 5
        if q < 4: v, so, hs = bWO0, (4*kh + q) * 80 * 1280, 8 * 1280
        else:     v, so, hs = bWO1, kh * 320 * 1280, 40 * 1280
        return f"""s_add_u32 m0, s31, {WOL + p*10240}
        s_mov_b32 s3, {so}
        {M40}
        buffer_load_dwordx4 v{v}, s[8:11], s3 offen lds
        s_add_u32 m0, s31, {WOL + p*10240 + 640}
        s_mov_b32 s3, {so + hs}
        buffer_load_dwordx4 v{v}, s[8:11], s3 offen lds
        {MALL}"""
    def kread(r, t): return f"ds_read_b128 {q4(r)}, v{vK0} offset:{T32*t}\n ds_read_b64 {q2(r+4)}, v{vK1} offset:{T32*t}"
    def vread(r, t, chk=True):
        m = f"s_cmp_gt_i32 s30, {t}\n s_cselect_b64 exec, -1, s[28:29]" if chk else "s_mov_b64 exec, s[28:29]"
        return f"""{m}
        ds_read_b128 {q4(r)}, v{vV} offset:{T32*t}
        ds_read_b128 {q4(r+4)}, v{vV} offset:{T32*t+1280}
        {MALL}"""
    def s1(s, k): return f"v_mfma_f32_32x32x16_bf16 {r16(s)}, {q4(k)}, {q4(Q0)}, 0"
    def s2(s, k): return f"v_mfma_f32_32x32x8_bf16 {r16(s)}, {q2(k+4)}, {q2(Q1)}, {r16(s)}"
    def pvm(v, p, first=False): return f"v_mfma_f32_32x32x16_bf16 {r16(O)}, {q4(v)}, {q4(p)}, {'0' if first else r16(O)}"
    seq = [8, 0, 7, 6, 5, 4, 3, 2, 1]
    vseq = [8, 7, 6, 5, 4, 3, 2, 1]
    def vbuf(t): return FV0 if t == 0 else FV[vseq.index(t) % 3]
    for n in range(3): a(kread(FK[n], seq[n]))
    a(vread(vbuf(8), 8, False)); a(vread(FV0, 0)); a(vread(vbuf(7), 7))
    a(f"s_waitcnt lgkmcnt(10)\n {s1(FS[0], FK[0])}\n {s2(FS[0], FK[0])}")
    a(f"s_waitcnt lgkmcnt(8)\n {s1(FS[1], FK[1])}\n {s2(FS[1], FK[1])}")
    a(kread(FK[0], seq[3]))
    a(dma_wo(0))
    a(f"s_waitcnt lgkmcnt(8)\n {s1(FS[2], FK[2])}\n {s2(FS[2], FK[2])}")
    a(kread(FK[1], seq[4]))
    a(dma_wo(1))
    for r in range(16): a(f"v_cndmask_b32 v{FS[1]+r}, v{FS[0]+r}, v{FS[1]+r}, s[{MS+2*r}:{MS+1+2*r}]")
    def tile_body(s, p, extra):
        for gq in range(4):
            for r in range(4*gq, 4*gq + 4): a(f"v_exp_f32 v{s+r}, v{s+r}")
            if gq < len(extra) and extra[gq]: a(extra[gq])
            if gq > 0:
                for k in (2*gq - 2, 2*gq - 1): a(f"v_cvt_pk_bf16_f32 v{p+k}, v{s+2*k}, v{s+2*k+1}")
        for k in (6, 7): a(f"v_cvt_pk_bf16_f32 v{p+k}, v{s+2*k}, v{s+2*k+1}")
    tile_body(FS[1], FP[0], [f"s_waitcnt lgkmcnt(2)\n {s1(FS[0], FK[0])}", s2(FS[0], FK[0]), kread(FK[2], seq[5]) + "\n" + vread(vbuf(6), 6), None])
    for k in range(8): a(f"v_and_b32 v{216+k}, v{MK+k}, v{FP[0]+k}")
    for k in range(8): a(f"v_xor_b32 v{FP[0]+k}, v{216+k}, v{FP[0]+k}")
    a(pvm(FV0, 216, True)); a(dma_wo(2)); a(pvm(FV0+4, 220))
    prevP, prevT = FP[0], 8
    for n in range(2, 9):
        t = seq[n]; p = FP[(n - 1) % 2]
        ex = [None]*4
        ex[0] = f"s_waitcnt lgkmcnt(0)\n {pvm(vbuf(prevT), prevP)}"
        ex[1] = pvm(vbuf(prevT) + 4, prevP + 4)
        if n + 2 <= 8:
            nb = (n + 2) % 3
            ex[2] = s1(FS[nb], FK[nb])
            ex[3] = s2(FS[nb], FK[nb])
        tile_body(FS[n % 3], p, ex)
        post = []
        if n + 4 <= 8: post.append(kread(FK[(n + 4) % 3], seq[n + 4]))
        if t - 2 >= 1: post.append(vread(vbuf(t - 2), t - 2))
        post.append(dma_wo(n + 1))
        if n == 3:
            post.append(f"""s_cmp_ge_u32 {sROLE}, 32
            s_cbranch_scc1 L_NORP
            s_cmp_ge_u32 {sW}, 5
            s_cbranch_scc1 L_NORP
            s_mul_i32 s3, {sROLE}, {8*20480}
            s_mul_i32 s4, {sCS}, 2560
            s_add_u32 s3, s3, s4
            s_lshl_b32 s4, {sW}, 9
            s_add_u32 s3, s3, s4
            s_add_u32 s3, s3, {RP_OFF}
            v_mul_u32_u24 v8, 20480, v3
            v_lshl_add_u32 v8, v2, 4, v8
            buffer_store_dwordx4 {q4(RPD)}, v8, {WSR}, s3 offen sc1
            s_add_u32 s3, s3, 40960
            buffer_store_dwordx4 {q4(RPD+4)}, v8, {WSR}, s3 offen sc1
            s_add_u32 s3, s3, 40960
            buffer_store_dwordx4 {q4(RPD+8)}, v8, {WSR}, s3 offen sc1
            s_add_u32 s3, s3, 40960
            buffer_store_dwordx4 {q4(RPD+12)}, v8, {WSR}, s3 offen sc1
            L_NORP:""")
        for x in post: a(x)
        if n == 5:
            a(f"""s_and_b32 s3, s2, 7
            s_cmp_lt_u32 s3, 5
            s_cselect_b32 s3, 108, 0
            v_subrev_u32 v4, 384, v0
            v_cmp_gt_u32 vcc, s3, v4""")
            masked_load(a, 9, TD, P_D, "L_TD")
        prevP, prevT = p, t
    a(f"s_waitcnt lgkmcnt(0)\n {pvm(vbuf(prevT), prevP)}\n {pvm(vbuf(prevT)+4, prevP+4)}")
    a(f"""v_max3_f32 v4, abs(v{O}), abs(v{O+1}), abs(v{O+2})
    v_max3_f32 v5, abs(v{O+3}), abs(v{O+4}), abs(v{O+5})
    v_max3_f32 v4, abs(v{O+6}), abs(v{O+7}), v4
    v_max3_f32 v5, abs(v{O+8}), abs(v{O+9}), v5
    v_max3_f32 v4, abs(v{O+10}), abs(v{O+11}), v4
    v_max_f32 v4, v4, v5
    v_cmp_nlt_f32 vcc, {f2u(2.0**-60):#x}, v{O+12}
    s_mov_b64 s[4:5], vcc
    v_cmp_ngt_f32 vcc, {f2u(2.0**60):#x}, v{O+12}
    s_or_b64 s[4:5], s[4:5], vcc
    v_cmp_ngt_f32 vcc, {f2u(2.0**120):#x}, v4
    s_or_b64 vcc, s[4:5], vcc""")
    if OPT.get("forcefb"): a("s_branch L_FALLBACK")
    a(f"""s_cbranch_vccnz L_FALLBACK
    L_BDONE:
    v_rcp_f32 v4, v{O+12}""")
    for r in range(0, 12, 2): a(f"v_pk_mul_f32 {q2(O+r)}, {q2(O+r)}, v[4:5] op_sel_hi:[1,0]")
    for k in range(6): a(f"v_cvt_pk_bf16_f32 v{24+k}, v{O+2*k}, v{O+2*k+1}")
    for k in range(6): a(f"v_min_u32 v{24+k}, -2, v{24+k}")
    a(f"""buffer_store_dwordx4 v[24:27], v{vO0}, {WSR}, 0 offen sc1
    s_mov_b32 exec_hi, 0
    buffer_store_dwordx2 v[28:29], v{vO1}, {WSR}, 0 offen sc1
    {MALL}""")
    a.stamp(8)

    XR, WR, WRS = 150, 160, 170
    XU, WU = 180, 200
    OF, CWF, CAC = 40, 80, 120
    HP = 30
    OUTP = 220
    srd(a, 8, P_X, 2621440)
    srd(a, 12, P_WR, 1280)
    a(f"""v_and_b32 v2, 15, v0
    v_lshrrev_b32 v3, 4, v1
    s_lshl_b32 s3, {sRB2}, 6
    s_lshl_b32 s4, {sLO}, 4
    s_add_u32 s3, s3, s4
    v_add_u32 v20, s3, v2             ; row
    v_mul_u32_u24 v4, 1280, v20
    v_mul_u32_u24 v17, 40, v3
    s_mul_i32 s3, {sCS}, 160
    v_add_u32 v17, s3, v17
    v_add_u32 v16, v17, v4
    s_waitcnt vmcnt(2)
    s_cmp_ge_u32 {sW}, 4
    s_cbranch_scc1 L_NOXLD
    buffer_load_dwordx4 {q4(XR)}, v16, s[8:11], 0 offen
    buffer_load_dwordx4 {q4(XR+4)}, v16, s[8:11], 0 offen offset:16
    buffer_load_dwordx2 {q2(XR+8)}, v16, s[8:11], 0 offen offset:32
    buffer_load_dwordx4 {q4(WR)}, v17, s[12:15], 0 offen
    buffer_load_dwordx4 {q4(WR+4)}, v17, s[12:15], 0 offen offset:16
    buffer_load_dwordx2 {q2(WR+8)}, v17, s[12:15], 0 offen offset:32
    v_lshlrev_b32 v4, 2, v1""")
    for i in range(5): a(f"buffer_load_dword v{WRS+i}, v4, s[12:15], 0 offen offset:{256*i}")
    a(f"""s_cmp_lg_u32 {sW}, 0
    s_cbranch_scc1 L_NOCHK2""")
    spin_head(a, "L_CLR2POLL")
    a(f"""buffer_load_dword v5, v{bF2A}, {WSR}, 0 offen sc1
    s_waitcnt vmcnt(0)
    v_cmp_ne_u32 vcc, 1, v5""")
    spin_tail(a, "L_CLR2POLL")
    a("L_NOCHK2:\n s_waitcnt vmcnt(0)")
    for i in range(10):
        a(f"""v_lshlrev_b32 v{XU+2*i}, 16, v{XR+i}
        v_and_b32 v{XU+2*i+1}, 0xffff0000, v{XR+i}
        v_lshlrev_b32 v{WU+2*i}, 16, v{WR+i}
        v_and_b32 v{WU+2*i+1}, 0xffff0000, v{WR+i}""")
    a("v_mov_b32 v8, 0")
    for i in range(5):
        a(f"""v_lshlrev_b32 v5, 16, v{WRS+i}
        v_and_b32 v6, 0xffff0000, v{WRS+i}
        v_add_f32 v8, v8, v5
        v_add_f32 v8, v8, v6""")
    dpp_reduce(a, "v_add_f32", [8])
    a("v_readlane_b32 s36, v8, 63\n L_NOXLD:")
    rho(a, 21, 5)
    a(f"""v_mul_u32_u24 v4, 160, v21
    v_and_b32 v5, 3, v1
    v_lshlrev_b32 v21, 5, v21
    v_lshl_add_u32 v21, v5, 3, v21
    v_mul_u32_u24 v5, 40, v5
    s_mul_i32 s3, {sHI}, 51200
    v_add3_u32 v18, v4, v5, s3
    s_lshl_b32 s3, {sRB2}, 1
    s_lshr_b32 s4, {sLO}, 1
    s_add_u32 s3, s3, s4
    s_mul_i32 s3, s3, 40960
    s_add_u32 s3, s3, {O_OFF}
    s_lshl_b32 s4, {sHI}, 14
    s_add_u32 s29, s3, s4
    s_lshl_b32 s4, {sHI}, 12
    s_add_u32 s33, s3, s4
    s_add_u32 s33, s33, 32768
    s_and_b32 s4, {sLO}, 1
    s_lshl_b32 s4, s4, 4
    v_add_u32 v4, s4, v2
    v_lshlrev_b32 v5, 9, v3
    v_lshl_add_u32 v15, v4, 4, v5
    v_lshl_add_u32 v14, v4, 3, v5
    v_lshrrev_b32 v5, 1, v1""")
    kappa(a, 19, 5, 6)
    a(f"""s_lshl_b32 s30, {sROLE}, 3
    s_add_u32 s30, s30, {sCS}
    s_lshl_b32 s32, {sW}, 10
    s_mul_i32 s3, {sLO}, 5120
    s_add_u32 s34, s3, {RED}
    v_lshl_add_u32 v13, v1, 4, s34
    s_barrier""")
    if OPT.get("csleep", 4): a(f"s_sleep {OPT.get('csleep', 4)}")
    a.stamp(9)
    def c_rd(ks):
        b = ks & 1
        return [f"ds_read_b64_tr_b16 {q2(CWF+20*b+4*t+2*h)}, v18 offset:{ks*5120 + h*1280 + 8*t}" for t in range(5) for h in range(2)]
    spin_head(a, "L_CLOOP")
    for ks in range(8):
        a(f"s_add_u32 s4, s29, {ks*2048}\n buffer_load_dwordx4 {q4(OF+4*ks)}, v15, {WSR}, s4 offen sc1")
    for ks in range(8, 10):
        for hh in range(2):
            a(f"buffer_load_dwordx2 {q2(OF+4*ks+2*hh)}, v14, {WSR}, s33 offen offset:{(ks-8)*2048 + hh*256} sc1")
    for r in c_rd(0): a(r)
    a("v_mov_b32 v4, 0")
    for ks in range(10):
        a(f"s_waitcnt vmcnt({11-ks if ks < 8 else 2*(9-ks)}) lgkmcnt(0)")
        R = c_rd(ks + 1) if ks < 9 else []
        for t in range(5):
            for x in R[2*t:2*t+2]: a(x)
            a(mm16(CAC+4*t, CWF+20*(ks & 1)+4*t, OF+4*ks, ks == 0))
            if t < 2: a(f"v_max3_u32 v4, v4, v{OF+4*ks+2*t}, v{OF+4*ks+2*t+1}")
    a("v_cmp_eq_u32 vcc, -1, v4")
    spin_tail(a, "L_CLOOP", 4)
    a(f"s_cmp_ge_u32 {sW}, 4\n s_cbranch_scc0 L_CLO")
    for t in range(5): a(f"ds_write_b128 v13, {q4(CAC+4*t)} offset:{1024*t}")
    a(f"""v_mov_b32 v24, 0
    v_mov_b32 v25, 0
    v_mov_b32 v26, 0
    v_mov_b32 v27, 0
    s_waitcnt lgkmcnt(0)
    s_barrier
    v_subrev_u32 v12, 256, v0
    v_lshlrev_b32 v12, 4, v12
    v_add_u32 v14, {SB}, v12
    ds_write_b128 v14, v[24:27] offset:{SURV}
    ds_write_b128 v14, v[24:27] offset:{SURV+4096}
    v_mov_b32 v13, {SB+CNT}
    ds_write_b32 v13, v24
    v_lshrrev_b32 v6, 2, v12
    s_mov_b32 s4, {KEY_OFF}
    s_mov_b32 s5, {KEY_OFF+4096}
    s_barrier""")
    spin_head(a, "L_KPOLL")
    a(f"""buffer_load_dwordx4 v[24:27], v12, {WSR}, s4 offen sc1
    buffer_load_dwordx4 v[28:31], v12, {WSR}, s5 offen sc1
    s_waitcnt vmcnt(0)
    v_max3_u32 v4, v24, v25, v26
    v_max3_u32 v5, v27, v28, v29
    v_max3_u32 v4, v4, v30, v31
    v_max_u32 v4, v4, v5
    v_cmp_eq_u32 vcc, -1, v4""")
    spin_tail(a, "L_KPOLL")
    a(f"""ds_write_b128 v14, v[24:27] offset:{RT}
    ds_write_b128 v14, v[28:31] offset:{RT+4096}""")
    for i in range(8): a(f"v_ashrrev_i32 v{40+i}, 31, v{24+i}")
    for i in range(8): a(f"v_or_b32 v{40+i}, 0x80000000, v{40+i}")
    for i in range(8): a(f"v_xor_b32 v{40+i}, v{40+i}, v{24+i}")
    for i in range(8): a(f"v_sub_u32 v{48+i}, {2047 - (i & 3) - 1024*(i >> 2)}, v6")
    a("s_mov_b32 s6, 0xfffff800")
    for i in range(8): a(f"v_and_or_b32 v{40+i}, v{40+i}, s6, v{48+i}")
    a("""v_max_u32 v4, v40, v41
    v_max_u32 v5, v44, v45
    v_max3_u32 v4, v4, v42, v43
    v_max3_u32 v5, v5, v46, v47""")
    dpp_reduce(a, "v_max_u32", [4, 5])
    a(f"""s_lshl_b32 s3, {sLO}, 3
    s_add_u32 s3, s3, {SB+WMAX}
    v_mov_b32 v6, s3
    s_mov_b32 exec_lo, 0
    s_mov_b32 exec_hi, 0x80000000
    ds_write_b64 v6, v[4:5]
    {MALL}
    s_waitcnt lgkmcnt(0)
    s_barrier
    v_mov_b32 v5, {SB+WMAX}
    ds_read_b128 v[48:51], v5
    ds_read_b128 v[52:55], v5 offset:16
    v_mov_b32 v6, 1
    s_waitcnt lgkmcnt(0)
    v_min3_u32 v48, v48, v49, v50
    v_min3_u32 v52, v52, v53, v54
    v_min3_u32 v48, v48, v51, v55
    v_min_u32 v48, v48, v52""")
    for i in range(8): a(f"v_cmp_ge_u32 s[{40+2*i}:{41+2*i}], v{40+i}, v48")
    for i in range(8): a(f"s_mov_b64 exec, s[{40+2*i}:{41+2*i}]\n ds_add_rtn_u32 v{50+i}, v13, v6")
    a(f"{MALL}\n s_mov_b32 s3, {SB}\n s_waitcnt lgkmcnt(0)")
    for i in range(8): a(f"v_lshl_add_u32 v{50+i}, v{50+i}, 2, s3")
    for i in range(8): a(f"s_mov_b64 exec, s[{40+2*i}:{41+2*i}]\n ds_write_b32 v{50+i}, v{40+i} offset:{SURV}")
    a(f"""{MALL}
    s_waitcnt lgkmcnt(0)
    s_barrier
    ds_read_b32 v4, v13
    v_lshrrev_b32 v5, 2, v12
    v_add_u32 v5, {SB}, v5
    s_waitcnt lgkmcnt(0)
    v_readfirstlane_b32 s4, v4
    s_lshl_b32 s5, {sLO}, 6
    L_OUTER:
    s_cmp_ge_u32 s5, s4
    s_cbranch_scc1 L_SELDONE
    ds_read_b32 v6, v5 offset:{SURV}
    v_mov_b32 v7, 0
    v_mov_b32 v8, {SB+SURV}
    s_mov_b32 s6, 0
    L_INNER:
    ds_read_b128 v[44:47], v8
    ds_read_b128 v[48:51], v8 offset:16
    v_add_u32 v8, 32, v8
    s_add_u32 s6, s6, 8
    s_waitcnt lgkmcnt(0)""")
    for i in range(8): a(f"v_cmp_gt_u32 vcc, v{44+i}, v6\n v_addc_co_u32 v7, vcc, 0, v7, vcc")
    a(f"""s_cmp_lt_u32 s6, s4
    s_cbranch_scc1 L_INNER
    v_cmp_gt_u32 vcc, 8, v7
    v_and_b32 v6, 0x7ff, v6
    v_sub_u32 v6, 2047, v6
    v_lshl_add_u32 v7, v7, 2, s3
    s_and_saveexec_b64 s[6:7], vcc
    ds_write_b32 v7, v6 offset:{SELL}
    {MALL}
    v_add_u32 v5, 1024, v5
    s_add_u32 s5, s5, 256
    s_branch L_OUTER""")
    a(f"""L_CLO:
    s_lshl_b32 s3, {sRB2}, 13
    s_lshl_b32 s4, {sLO}, 8
    s_add_u32 s3, s3, s4
    s_add_u32 s37, s3, {PART_OFF}
    s_lshl_b32 s4, {sCS}, 10
    s_add_u32 s35, s4, s37
    s_add_u32 s38, s37, 4096
    v_lshlrev_b32 v10, 4, v2
    v_lshl_add_u32 v11, v3, 10, v10
    v_mul_u32_u24 v5, 160, v2
    v_mul_u32_u24 v6, 40, v3
    v_add3_u32 v12, v5, v6, s34
    s_lshl_b32 s3, {sRB2}, 3
    s_add_u32 s3, s3, {sCS}
    s_mul_i32 s3, s3, 10240
    s_mul_i32 s5, {sLO}, 2560
    s_add_u32 s3, s3, s5
    s_add_u32 s28, s3, {H_OFF}
    v_lshlrev_b32 v7, 4, v1
    v_mov_b32 v47, 0
    s_barrier""")
    for t in range(5): a(f"ds_read_b128 {q4(CWF+4*t)}, v13 offset:{1024*t}")
    a("s_waitcnt lgkmcnt(0)")
    E = range(0, 20, 2)
    for e in E: a(f"v_pk_add_f32 {q2(CAC+e)}, {q2(CAC+e)}, {q2(CWF+e)}")
    for e in E: a(f"v_cvt_pk_bf16_f32 v{HP+e//2}, v{CAC+e}, v{CAC+e+1}")
    for e in E: a(f"v_lshlrev_b32 v{CAC+e}, 16, v{HP+e//2}\n v_and_b32 v{CAC+e+1}, 0xffff0000, v{HP+e//2}")
    for e in E: a(f"v_pk_add_f32 {q2(CAC+e)}, {q2(CAC+e)}, {q2(XU+e)}")
    for e in E: a(f"v_cvt_pk_bf16_f32 v{HP+e//2}, v{CAC+e}, v{CAC+e+1}")
    for e in E: a(f"v_min_u32 v{HP+e//2}, -2, v{HP+e//2}")
    for e in E: a(f"v_lshlrev_b32 v{CAC+e}, 16, v{HP+e//2}\n v_and_b32 v{CAC+e+1}, 0xffff0000, v{HP+e//2}")
    for k in range(5): a(f"ds_write_b64 v12, {q2(HP+2*k)} offset:{8*k}")
    a(f"""v_pk_add_f32 v[40:41], {q2(CAC)}, {q2(CAC+2)}
    v_pk_mul_f32 v[42:43], {q2(CAC)}, {q2(CAC)}
    v_pk_mul_f32 v[48:49], {q2(CAC)}, {q2(WU)}""")
    for e in range(2, 20, 2):
        if e > 2: a(f"v_pk_add_f32 v[40:41], v[40:41], {q2(CAC+e)}")
        a(f"v_pk_fma_f32 v[42:43], {q2(CAC+e)}, {q2(CAC+e)}, v[42:43]\n v_pk_fma_f32 v[48:49], {q2(CAC+e)}, {q2(WU+e)}, v[48:49]")
    a("v_add_f32 v44, v40, v41\n v_add_f32 v45, v42, v43\n v_add_f32 v46, v48, v49")
    xg_sum(a, [44, 45, 46], [40, 41, 42])
    a(f"""v_min_u32 v44, -2, v44
    v_min_u32 v45, -2, v45
    v_min_u32 v46, -2, v46
    s_mov_b64 exec, 0xffff
    buffer_store_dwordx4 v[44:47], v10, {WSR}, s35 offen sc1
    {MALL}
    s_waitcnt lgkmcnt(0)
    ds_read_b128 v[52:55], v13
    ds_read_b128 v[56:59], v13 offset:1024
    ds_read_b128 v[60:63], v13 offset:2048
    s_waitcnt lgkmcnt(0)
    buffer_store_dwordx4 v[52:55], v7, {WSR}, s28 offen sc1
    buffer_store_dwordx4 v[56:59], v7, {WSR}, s28 offen offset:1024 sc1
    s_mov_b32 exec_hi, 0
    buffer_store_dwordx4 v[60:63], v7, {WSR}, s28 offen offset:2048 sc1
    {MALL}""")
    a.stamp(10)
    spin_head(a, "L_PPOLL")
    a(f"""buffer_load_dwordx4 v[64:67], v11, {WSR}, s37 offen sc1
    buffer_load_dwordx4 v[68:71], v11, {WSR}, s38 offen sc1
    s_waitcnt vmcnt(0)
    v_max3_u32 v5, v64, v65, v66
    v_max3_u32 v6, v68, v69, v70
    v_max_u32 v5, v5, v6
    v_cmp_eq_u32 vcc, -1, v5""")
    spin_tail(a, "L_PPOLL")
    a("v_add_f32 v40, v64, v68\n v_add_f32 v41, v65, v69\n v_add_f32 v42, v66, v70")
    xg_sum(a, [40, 41, 42], [44, 45, 46])
    ln_scalars(a, 40, 41)
    a(f"""v_fma_f32 v42, -v40, s36, v42
    v_mul_f32 v42, v42, v41
    v_min_u32 v42, -2, v42
    v_lshlrev_b32 v4, 2, v20
    s_mov_b32 s4, {KEY_OFF}
    s_cmp_lg_u32 {sCS}, 0
    s_cbranch_scc1 L_NOKEY
    s_mov_b64 exec, 0xffff
    buffer_store_dword v42, v4, {WSR}, s4 offen sc1
    {MALL}
    L_NOKEY:
    s_barrier
    s_cmp_ge_u32 {sROLE}, 32
    s_cbranch_scc1 L_WD
    s_mul_i32 s3, s30, 20480
    s_mul_i32 s4, {sLO}, 5120
    s_add_u32 s3, s3, s4
    s_add_u32 s3, s3, {RP_OFF}
    s_add_u32 m0, s4, {GW}
    s_nop 0""")
    for j in range(4): a(f"buffer_load_dwordx4 v7, {WSR}, s3 offen offset:{1024*j} sc1 lds")
    a(f"""s_add_u32 m0, s4, {GW + 4096}
    s_add_u32 s3, s3, 4096
    buffer_load_dwordx4 v7, {WSR}, s3 offen sc1 lds
    s_branch L_WDD
    L_WD:
    s_sub_u32 s3, s30, 256
    s_lshl_b32 s3, s3, 5
    v_mul_u32_u24 v6, 1280, v19
    v_and_b32 v4, 1, v1
    v_lshl_add_u32 v6, v4, 4, v6
    v_add_u32 v6, s3, v6
    s_mul_i32 s33, {sW}, {32*1280}""")
    srd(a, 12, P_D, 2211840)
    for j in range(14):
        a(f"""s_add_u32 m0, s32, {WOL + 4096*j}
        s_add_u32 s3, s33, {4*32*1280*j}
        buffer_load_dwordx4 v6, s[12:15], s3 offen lds""")
    a("L_WDD:")
    for e in E: a(f"v_pk_add_f32 {q2(XU+e)}, {q2(CAC+e)}, v[40:41] op_sel_hi:[1,0] neg_lo:[0,1] neg_hi:[0,1]")
    for e in E: a(f"v_cvt_pk_bf16_f32 v{OUTP+e//2}, v{XU+e}, v{XU+e+1}")
    for e in E: a(f"v_lshlrev_b32 v{XU+e}, 16, v{OUTP+e//2}\n v_and_b32 v{XU+e+1}, 0xffff0000, v{OUTP+e//2}")
    for e in E: a(f"v_pk_mul_f32 {q2(XU+e)}, {q2(XU+e)}, v[40:41] op_sel:[0,1] op_sel_hi:[1,1]")
    for e in E: a(f"v_cvt_pk_bf16_f32 v{OUTP+e//2}, v{XU+e}, v{XU+e+1}")
    for e in E: a(f"v_lshlrev_b32 v{XU+e}, 16, v{OUTP+e//2}\n v_and_b32 v{XU+e+1}, 0xffff0000, v{OUTP+e//2}")
    for e in E: a(f"v_pk_add_f32 {q2(XU+e)}, {q2(XU+e)}, {q2(CAC+e)}")
    for e in E: a(f"v_cvt_pk_bf16_f32 v{OUTP+e//2}, v{XU+e}, v{XU+e+1}")
    a("s_barrier\n s_barrier")
    a("L_SELDONE:")
    for i in range(5):
        a(f"""v_add_u32 v4, {64*i}, v1
        v_mul_u32_u24 v5, 1639, v4
        v_lshrrev_b32 v5, 16, v5
        v_mul_u32_u24 v5, {10240 - 160}, v5
        v_lshl_add_u32 v{64+i}, v4, 2, v5""")
    a("s_waitcnt vmcnt(0) lgkmcnt(0)\n s_barrier")
    a.stamp(11)
    a(f"""v_mov_b32 v5, {SB+SELL}
    ds_read_b128 v[44:47], v5
    ds_read_b128 v[48:51], v5 offset:16
    s_lshl_b32 s3, {sW}, 2
    s_add_u32 s3, s3, {SB}
    v_mov_b32 v5, s3
    ds_read_b32 v4, v5 offset:{SELL}
    v_lshlrev_b32 v14, 2, v1
    s_waitcnt lgkmcnt(0)
    v_readfirstlane_b32 s4, v4
    s_lshr_b32 s5, s4, 6
    s_mul_i32 s5, s5, 81920
    s_and_b32 s4, s4, 63
    s_mul_i32 s4, s4, 160
    s_add_u32 s4, s4, s5
    s_add_u32 s4, s4, {H_OFF}""")
    spin_head(a, "L_RPOLL")
    for i in range(5): a(f"buffer_load_dword v{52+i}, v{64+i}, {WSR}, s4 offen sc1")
    a(f"""s_waitcnt vmcnt(0)
    v_max3_u32 v5, v52, v53, v54
    v_max3_u32 v5, v5, v55, v56
    v_cmp_eq_u32 vcc, -1, v5""")
    spin_tail(a, "L_RPOLL")
    a("v_mov_b32 v6, 0\n v_mov_b32 v7, 0")
    for i in range(5):
        a(f"""v_lshlrev_b32 v4, 16, v{52+i}
        v_and_b32 v5, 0xffff0000, v{52+i}
        v_add_f32 v6, v6, v4
        v_fmac_f32 v7, v4, v4
        v_add_f32 v6, v6, v5
        v_fmac_f32 v7, v5, v5""")
    dpp_reduce(a, "v_add_f32", [6, 7])
    ln_scalars(a, 6, 7)
    a(f"""v_readlane_b32 s5, v6, 63
    v_readlane_b32 s6, v7, 63
    s_mul_i32 s3, {sW}, {XROW}
    s_add_u32 s3, s3, {XS}
    v_add_u32 v8, s3, v14""")
    for i in range(5):
        norm_pair(a, 57 + i, 52 + i, "s5", "s6", 4, 5)
        a(f"ds_write_b32 v8, v{57+i} offset:{256*i}\n ds_write_b32 v8, v{52+i} offset:{HR - XS + 256*i}")
    a("s_waitcnt lgkmcnt(0)\n s_barrier")
    srd(a, 8, P_OUT, 2621440)
    a(f"s_cmp_ge_u32 {sW}, 4\n s_cbranch_scc1 L_NOOUT")
    for i in range(8): a(f"v_cmp_ne_u32 vcc, v{44+i}, v20\n s_and_b64 exec, exec, vcc")
    a(f"""s_cbranch_execz L_OUTD
    buffer_store_dwordx4 {q4(OUTP)}, v16, s[8:11], 0 offen
    buffer_store_dwordx4 {q4(OUTP+4)}, v16, s[8:11], 0 offen offset:16
    buffer_store_dwordx2 {q2(OUTP+8)}, v16, s[8:11], 0 offen offset:32
    L_OUTD:
    {MALL}
    L_NOOUT:
    s_cmp_ge_u32 {sROLE}, 32
    s_cbranch_scc1 L_E
    s_cmp_lg_u32 {sW}, 7
    s_cbranch_scc1 L_END""")
    DW, DX = 64, 144
    a(f"""v_and_b32 v4, 7, v2
    v_mul_u32_u24 v4, {XROW}, v4
    v_lshl_add_u32 v4, v3, 4, v4
    v_add_u32 v4, {XS}, v4
    v_add_u32 v11, {GW}, v21""")
    for ks in range(20):
        for h in range(2): a(f"ds_read_b64_tr_b16 {q2(DW+4*ks+2*h)}, v11 offset:{ks*1024 + h*256}")
        a(f"ds_read_b128 {q4(DX+4*ks)}, v4 offset:{64*ks}")
    for ks in range(20):
        a(f"s_waitcnt lgkmcnt({min(15, 3*(19-ks))})")
        a(mm16(16, DW+4*ks, DX+4*ks, ks == 0))
    for r in range(4):
        rb16(a, 16 + r)
        a(f"v_mov_b32 v{20+r}, v{16+r}")
    for r in range(4): a(f"v_permlane32_swap_b32 v{16+r}, v{20+r}")
    for r in range(4): a(f"v_mul_f32 v{24+r}, 0xbfb8aa3b, v{16+r}")
    for r in range(4): a(f"v_exp_f32 v{24+r}, v{24+r}")
    for r in range(4): a(f"v_add_f32 v{24+r}, 1.0, v{24+r}")
    for r in range(4): a(f"v_rcp_f32 v{24+r}, v{24+r}")
    for r in range(4): a(f"v_mul_f32 v{16+r}, v{16+r}, v{24+r}")
    for r in range(4): rb16(a, 16 + r)
    for r in range(4): a(f"v_mul_f32 v{16+r}, v{16+r}, v{20+r}")
    a(f"""v_cvt_pk_bf16_f32 v16, v16, v17
    v_cvt_pk_bf16_f32 v17, v18, v19
    v_min_u32 v16, -2, v16
    v_min_u32 v17, -2, v17
    v_mov_b32 v18, v16
    v_mov_b32 v19, v17
    v_lshlrev_b32 v4, 4, v2
    v_permlane16_swap_b32 v16, v18
    v_permlane16_swap_b32 v17, v19
    s_lshl_b32 s3, s30, 7
    s_add_u32 s3, s3, {ACT_OFF}
    s_mov_b64 exec, 0xff
    buffer_store_dwordx4 v[16:19], v4, {WSR}, s3 offen sc1
    s_branch L_END""")
    AF, EW = 64, 96
    a(f"""L_E:
    s_sub_u32 s30, s30, 256
    s_lshl_b32 s30, s30, 5""")
    srd(a, 12, P_WS, ACT_OFF + 27648)
    a(f"""v_and_b32 v4, 7, v2
    v_lshlrev_b32 v12, 4, v4
    v_lshl_add_u32 v12, v3, 7, v12
    s_lshl_b32 s4, {sW}, 9
    s_add_u32 s4, s4, {ACT_OFF}
    v_add_u32 v11, s32, v21""")
    for j in range(7):
        for h in range(2): a(f"ds_read_b64_tr_b16 {q2(EW+4*j+2*h)}, v11 offset:{WOL + 8192*j + h*256}")
    a(f"""s_mov_b32 s6, {SB}
    v_lshl_add_u32 v5, v4, 2, s6
    ds_read_b32 v13, v5 offset:{SELL}
    v_mul_u32_u24 v5, {XROW}, v4
    v_lshl_add_u32 v5, v3, 3, v5
    s_add_u32 s3, s30, {XS}
    v_add_u32 v5, s3, v5
    s_waitcnt lgkmcnt(0)
    ds_read_b64 v[22:23], v5
    ds_read_b64 v[130:131], v5 offset:{HR - XS}
    v_lshl_add_u32 v5, v13, 2, s6
    ds_read_b32 v15, v5 offset:{RT}
    v_mul_u32_u24 v13, 1280, v13
    v_lshl_add_u32 v13, v3, 3, v13
    v_add_u32 v13, s30, v13
    s_waitcnt lgkmcnt(0)""")
    rb16(a, 15)
    a("v_mul_f32 v15, 0xbfb8aa3b, v15\n v_exp_f32 v15, v15\n v_add_f32 v15, 1.0, v15\n v_rcp_f32 v15, v15")
    rb16(a, 15)
    spin_head(a, "L_APOLL")
    for j in range(7): a(f"s_add_u32 s5, s4, {4096*j}\n buffer_load_dwordx4 {q4(AF+4*j)}, v12, s[12:15], s5 offen sc1")
    a(f"s_waitcnt vmcnt(0)\n v_max_u32 v5, v{AF}, v{AF+1}")
    for k in range(1, 14): a(f"v_max3_u32 v5, v5, v{AF+2*k}, v{AF+2*k+1}")
    a("v_cmp_eq_u32 vcc, -1, v5")
    spin_tail(a, "L_APOLL")
    for j in range(7): a(mm16(24, EW+4*j, AF+4*j, j == 0))
    a(f"""s_add_u32 s3, s32, {ERED}
    v_lshl_add_u32 v4, v1, 4, s3
    ds_write_b128 v4, v[24:27]
    s_waitcnt lgkmcnt(0)
    s_barrier
    s_cmp_lg_u32 {sW}, 0
    s_cbranch_scc1 L_END""")
    for w in range(1, 8): a(f"ds_read_b128 {q4(28+4*w)}, v4 offset:{1024*w}")
    a("s_waitcnt lgkmcnt(0)")
    for w in range(1, 8):
        for r in range(0, 4, 2): a(f"v_pk_add_f32 {q2(24+r)}, {q2(24+r)}, {q2(28+4*w+r)}")
    for r in range(4):
        rb16(a, 24 + r)
        a(f"v_mul_f32 v{24+r}, v{24+r}, v15")
    a("v_cvt_pk_bf16_f32 v24, v24, v25\n v_cvt_pk_bf16_f32 v25, v26, v27")
    for k in range(2):
        add_pairs(a, 24 + k, 24 + k, 22 + k, 4, 5, 6)
        add_pairs(a, 24 + k, 24 + k, 130 + k, 4, 5, 6)
    a("""s_mov_b32 exec_lo, 0x00ff00ff
    s_mov_b32 exec_hi, 0x00ff00ff
    buffer_store_dwordx2 v[24:25], v13, s[8:11], 0 offen
    L_END:""")
    if PROF:
        a(f"{MALL}\n s_waitcnt vmcnt(0)")
        a.stamp(12)
        for i in range(16): a(f"v_mov_b32 v{8+i}, s{88+i}" if i < 13 else f"v_mov_b32 v{8+i}, 0")
        a(f"""s_lshl_b32 s3, s2, 9
        s_add_u32 s3, s3, {PROF_OFF}
        s_lshl_b32 s4, {sW}, 6
        s_add_u32 s3, s3, s4
        v_mov_b32 v4, s3
        s_mov_b64 exec, 1""")
        for i in range(4): a(f"global_store_dwordx4 v4, {q4(8+4*i)}, s[{P_WS}:{P_WS+1}] offset:{16*i}")
        if "ampj" in OPT:
            i, j = OPT["ampi"], OPT["ampj"]
            a(f"""s_sub_u32 s4, s{88+j}, s{88+i}
            s_mul_i32 s4, s4, 10
            s_min_u32 s4, s4, 100000
            s_cmp_lg_u32 {sW}, 0
            s_cbranch_scc1 L_EXIT
            L_AMP:
            s_memrealtime s[6:7]
            s_waitcnt lgkmcnt(0)
            s_sub_u32 s5, s6, s100
            s_cmp_lt_u32 s5, s4
            s_cbranch_scc1 L_AMP""")
    a("L_EXIT:\n s_endpgm")

    a("L_FALLBACK:\n s_nop 7\n s_nop 7")
    S0 = 112
    def S(i): return S0 + 16*i
    KF = 24
    for n in range(9):
        a(kread(KF + 6*n, n))
        if n % 4 == 3: a("s_waitcnt lgkmcnt(0)")
    a("s_waitcnt lgkmcnt(0)")
    for n in range(9): a(f"{s1(S(n), KF+6*n)}\n {s2(S(n), KF+6*n)}")
    for r in range(8): a(f"v_mov_b32 v{78+r}, 0x3f803f80")
    a("s_nop 7\n s_nop 7")
    for i in range(8):
        a(f"s_cmp_gt_i32 s30, {i}\n s_cbranch_scc0 L_VALID")
        for r in range(16): a(f"v_mov_b32 v{S(i)+r}, 0xff800000")
    a("L_VALID:")
    for r in range(16): a(f"v_cndmask_b32 v{S(0)+r}, v{S(8)+r}, v{S(0)+r}, s[{MS+2*r}:{MS+1+2*r}]")
    a(f"v_max_f32 v4, v{S(0)}, v{S(0)+1}")
    for k in range(1, 64): a(f"v_max3_f32 v4, v{S0+2*k}, v{S0+2*k+1}, v4")
    a("""v_mov_b32 v5, v4
    v_permlane32_swap_b32 v4, v5
    v_max_f32 v4, v4, v5""")
    for i in range(8):
        s = S(i)
        for r in range(16): a(f"v_sub_f32 v{s+r}, v{s+r}, v4")
        for r in range(16): a(f"v_exp_f32 v{s+r}, v{s+r}")
        for k in range(8): a(f"v_cvt_pk_bf16_f32 v{s+k}, v{s+2*k}, v{s+2*k+1}")
    s = S(0)
    for k in range(8): a(f"v_and_b32 v{s+8+k}, v{MK+k}, v{s+k}")
    for k in range(8): a(f"v_xor_b32 v{S(8)+k}, v{s+8+k}, v{s+k}")
    for t in range(9):
        p = s + 8 if t == 0 else S(t)
        a(vread(78, t, False))
        a(f"s_waitcnt lgkmcnt(0)\n {pvm(78, p, t == 0)}\n {pvm(82, p + 4)}\n s_nop 7")
    a("s_nop 7\n s_branch L_BDONE")

def build():
    a = PAsm()
    kernel(a)
    name = NAME + "_kernel"
    L = ["; @launch grid=(256,1,1) block=(512,1,1) lds=163840",
         '.amdgcn_target "amdgcn-amd-amdhsa--gfx950"', ".text", f".globl {name}", ".p2align 8",
         f".type {name},@function", f"{name}:", a.render(), "CODE_END:", "s_endpgm",
         '.section .rodata,"a"', ".p2align 6", f".amdhsa_kernel {name}", "  .amdhsa_next_free_vgpr 256",
         "  .amdhsa_next_free_sgpr 102", "  .amdhsa_accum_offset 256", "  .amdhsa_group_segment_fixed_size 0",
         "  .amdhsa_kernarg_size 88", "  .amdhsa_user_sgpr_count 2", "  .amdhsa_user_sgpr_kernarg_segment_ptr 1",
         "  .amdhsa_system_sgpr_workgroup_id_x 1", ".end_amdhsa_kernel"]
    return "\n".join(L) + "\n"

def check_ws(w, im, cmp, tof):
    import numpy as np
    qkv = im["qkv"]
    k = tof(w[K_OFF:K_OFF + 16*64*T32].view(np.uint16)).reshape(16, 64, 5, 32, 8).transpose(1, 3, 0, 2, 4).reshape(2048, 640)
    cmp("k", k, qkv[:, 640:1280])
    v = tof(w[V_OFF:V_OFF + 16*64*T32].view(np.uint16)).reshape(16, 256, 40, 8).transpose(1, 3, 0, 2).reshape(2048, 640)
    cmp("v", v, qkv[:, 1280:])
    ob = w[O_OFF:O_OFF + 64*40960].reshape(64, 40960)
    om = tof(np.ascontiguousarray(ob[:, :32768]).view(np.uint16)).reshape(64, 32, 2, 32, 8).transpose(0, 3, 1, 2, 4).reshape(2048, 32, 16)
    oq = tof(np.ascontiguousarray(ob[:, 32768:]).view(np.uint16)).reshape(64, 32, 32, 4).transpose(0, 2, 1, 3).reshape(2048, 32, 4)
    o = np.concatenate([om, oq], axis=2).reshape(2048, 640)
    cmp("o", o, im["o"])
    h = tof(w[H_OFF:H_OFF + 2048*1280].view(np.uint16)).reshape(32, 8, 64, 80).transpose(0, 2, 1, 3).reshape(2048, 640)
    cmp("h", h, im["h"])
    r = w[KEY_OFF:KEY_OFF + 8192].view(np.float32)
    cmp("r", r, im["r"])

if __name__ == "__main__":
    PROF = "prof" in sys.argv
    if "cyc" in sys.argv: TIMER = "s_memtime"
    for x in sys.argv[2:]:
        if "=" in x:
            k, v = x.split("="); OPT[k] = int(v)
    out = sys.argv[1] if len(sys.argv) > 1 else f"cdna_kernels/{NAME}.s"
    txt = build()
    open(out, "w").write(txt)
    print("wrote", out, len(txt))
```

```python
import sys, struct
from asmlib import Asm

NAME = "sequential_preLN__sliding_block__moe_arch_mod__prompt"
Q_OFF = 0; K_OFF = 0x280000; V_OFF = 0x500000; O_OFF = 0x780000; H_OFF = 0xA00000
PART_OFF = 0xC80000; PARTB = 0x40000; F1_OFF = 0xD00000; XS_OFF = 0xD08000; KEY_OFF = 0xD10000; ACT_OFF = 0xD12000
ST_OFF = 0xD1C000
RP_OFF = 0xD20000
WS_SIZE = RP_OFF + 27*8*20480
PROF_OFF = 0x1200000
T32 = 2560
PROF = False
TIMER = "s_memrealtime"
SPIN_MAX = 1 << 18
SLEEP = 2
OPT = {}

def f2u(x): return struct.unpack("<I", struct.pack("<f", x))[0]
QSCALE = f2u((20 ** -0.5) * 1.4426950408889634)
EPS = f2u(1e-5); INV640 = f2u(1.0 / 640)
P_X, P_WQKV, P_WO, P_WR, P_G, P_U, P_D, P_OUT, P_DBG, P_WS = 64, 66, 68, 72, 74, 76, 78, 80, 82, 84
WSR = "s[16:19]"
sW, sRB, sHP, sRB2, sCS, sROLE, sLO, sHI = "s20", "s21", "s22", "s23", "s24", "s25", "s26", "s27"

SCR = 94208
KL = 102400; VL = 133120; WOL = 0
GW = KL; SB = 122880; RED = VL
SURV = 0; WMAX = 8320; CNT = 8352; SELL = 8384; LMR = 8704
DRED = 65536

class PAsm(Asm):
    def stamp(self, i, grp=0):
        if i not in (0, 12) and grp != OPT.get("pg", 0): return
        if PROF:
            assert i < 13
            self(f"{TIMER} s[86:87]\n s_waitcnt lgkmcnt(0)\n s_mov_b32 s{88+i}, s86")

def srd(a, d, lo, size):
    a(f"""s_mov_b32 s{d}, s{lo}
    s_and_b32 s{d+1}, s{lo+1}, 0xffff
    s_mov_b32 s{d+2}, {size}
    s_mov_b32 s{d+3}, 0x00020000""")
def rb16(a, v): a(f"v_cvt_pk_bf16_f32 v{v}, v{v}, v{v}\n v_lshlrev_b32 v{v}, 16, v{v}")
def ln_scalars(a, s1, s2):
    a(f"""v_mul_f32 v{s1}, {INV640:#x}, v{s1}
    v_mul_f32 v{s2}, {INV640:#x}, v{s2}
    v_fma_f32 v{s2}, -v{s1}, v{s1}, v{s2}
    v_max_f32 v{s2}, 0, v{s2}
    v_cvt_pk_bf16_f32 v{s2}, v{s1}, v{s2}
    v_lshlrev_b32 v{s1}, 16, v{s2}
    v_and_b32 v{s2}, 0xffff0000, v{s2}
    v_add_f32 v{s2}, {EPS:#x}, v{s2}""")
    rb16(a, s2)
    a(f"v_sqrt_f32 v{s2}, v{s2}")
    rb16(a, s2)
    a(f"v_rcp_f32 v{s2}, v{s2}")
def dpp_reduce(a, op, regs):
    for sh in (1, 2, 4, 8):
        for v in regs: a(f"{op}_dpp v{v}, v{v}, v{v} row_shr:{sh} row_mask:0xf bank_mask:0xf")
    for v in regs: a(f"{op}_dpp v{v}, v{v}, v{v} row_bcast:15 row_mask:0xa bank_mask:0xf")
    for v in regs: a(f"{op}_dpp v{v}, v{v}, v{v} row_bcast:31 row_mask:0xc bank_mask:0xf")
def xg_sum(a, regs, tmps):
    for x, t in zip(regs, tmps): a(f"v_mov_b32 v{t}, v{x}")
    for x, t in zip(regs, tmps): a(f"v_permlane16_swap_b32 v{x}, v{t}")
    for x, t in zip(regs, tmps): a(f"v_add_f32 v{x}, v{x}, v{t}")
    for x, t in zip(regs, tmps): a(f"v_mov_b32 v{t}, v{x}")
    for x, t in zip(regs, tmps): a(f"v_permlane32_swap_b32 v{x}, v{t}")
    for x, t in zip(regs, tmps): a(f"v_add_f32 v{x}, v{x}, v{t}")
def norm_pair(a, d, x, m, rs, t0, t1):
    a(f"""v_lshlrev_b32 v{t0}, 16, v{x}
    v_and_b32 v{t1}, 0xffff0000, v{x}
    v_subrev_f32 v{t0}, {m}, v{t0}
    v_subrev_f32 v{t1}, {m}, v{t1}
    v_cvt_pk_bf16_f32 v{d}, v{t0}, v{t1}
    v_lshlrev_b32 v{t0}, 16, v{d}
    v_and_b32 v{t1}, 0xffff0000, v{d}
    v_mul_f32 v{t0}, {rs}, v{t0}
    v_mul_f32 v{t1}, {rs}, v{t1}
    v_cvt_pk_bf16_f32 v{d}, v{t0}, v{t1}""")
def add_pairs(a, d, x, y, t0, t1, t2):
    a(f"""v_lshlrev_b32 v{t0}, 16, v{x}
    v_lshlrev_b32 v{t1}, 16, v{y}
    v_add_f32 v{t0}, v{t0}, v{t1}
    v_and_b32 v{t1}, 0xffff0000, v{x}
    v_and_b32 v{t2}, 0xffff0000, v{y}
    v_add_f32 v{t1}, v{t1}, v{t2}
    v_cvt_pk_bf16_f32 v{d}, v{t0}, v{t1}""")
def q2(r): return f"v[{r}:{r+1}]"
def q4(r): return f"v[{r}:{r+3}]"
def r16(x): return f"v[{x}:{x+15}]"
M40 = "s_mov_b32 exec_hi, 0xff"
MALL = "s_mov_b64 exec, -1"
def spin_head(a, L):
    a(f"s_mov_b32 s3, 0\n {L}:\n s_add_u32 s3, s3, 1\n s_cmp_gt_u32 s3, {SPIN_MAX}\n s_cbranch_scc1 L_END")
def spin_tail(a, L, sl=None):
    a(f"s_cbranch_vccz {L}_OK\n s_sleep {SLEEP if sl is None else sl}\n s_branch {L}\n {L}_OK:")
def div_lane(a, q, r, src, d):
    magic = (65536 + d - 1) // d
    a(f"""v_mul_u32_u24 v{q}, {magic}, v{src}
    v_lshrrev_b32 v{q}, 16, v{q}
    v_mul_u32_u24 v{r}, {d}, v{q}
    v_sub_u32 v{r}, v{src}, v{r}""")
def kappa(a, d, s, t):
    a(f"""v_and_b32 v{d}, 0x13, v{s}
    v_and_b32 v{t}, 4, v{s}
    v_lshl_or_b32 v{d}, v{t}, 1, v{d}
    v_and_b32 v{t}, 8, v{s}
    v_lshrrev_b32 v{t}, 1, v{t}
    v_or_b32 v{d}, v{d}, v{t}""")
def rho(a, d, t):
    a(f"""v_bfe_u32 v{d}, v1, 2, 2
    v_and_b32 v{t}, 1, v3
    v_lshl_or_b32 v{d}, v{t}, 2, v{d}
    v_lshrrev_b32 v{t}, 1, v3
    v_lshl_or_b32 v{d}, v{t}, 4, v{d}""")
def masked_load(a, dst, voff, ptr, L, fl=""):
    a(f"""s_and_saveexec_b64 s[6:7], vcc
    s_cbranch_execz {L}
    global_load_dword v{dst}, v{voff}, s[{ptr}:{ptr+1}] {fl}
    {L}:
    {MALL}""")
def mm16(d, x, y, first): return f"v_mfma_f32_16x16x32_bf16 {q4(d)}, {q4(x)}, {q4(y)}, {'0' if first else q4(d)}"

def kernel(a):
    vXD, vWD = 112, 113
    vAS = 114
    NEG = 76; ONES = 132
    FR = 136
    ACC = 184
    CS = 216
    PK = 220
    TMP = FR
    vST = 236
    vCW, vCR, vSR = 238, 239, 241
    STV = 244
    TD, vK0, vK1, vV, vO0, vO1 = 10, 11, 12, 13, 14, 15
    bWO0, bWO1, bGU, bF2A, vF1A, vHC, vTO = 22, 23, 86, 87, 85, 84, 83
    sGR, sCT = "s60", "s61"
    def slot(c): return (c % 5) * 32768
    if PROF:
        for i in range(13): a(f"s_mov_b32 s{88+i}, 0")
    a.stamp(0)
    a(f"""s_load_dwordx16 s[64:79], s[0:1], 0
    s_load_dwordx4 s[80:83], s[0:1], 64
    s_load_dwordx2 s[84:85], s[0:1], 80
    s_getpc_b64 s[4:5]
    CODE_START:
    s_cmp_ge_u32 s2, 256
    s_cbranch_scc1 L_EXIT
    s_lshr_b32 s63, s2, 3             ; idx
    s_lshl_b32 s3, s63, 7
    v_lshl_add_u32 v4, v0, 12, s3
    v_cmp_gt_u32 vcc, CODE_END-CODE_START, v4""")
    masked_load(a, 250, 4, 4, "L_NOPF")
    a(f"""v_and_b32 v1, 63, v0
    v_lshrrev_b32 v4, 6, v0
    v_and_b32 v2, 15, v0
    v_readfirstlane_b32 {sW}, v4
    v_lshrrev_b32 v3, 4, v1
    s_and_b32 s3, s63, 3
    s_lshr_b32 {sCT}, s63, 2
    s_bfe_u32 {sGR}, s2, 0x20001
    s_mul_i32 s4, s3, 5
    s_lshr_b32 s4, s4, 1
    s_add_u32 s4, s4, {sCT}
    s_add_u32 s4, s4, {sGR}
    s_cmp_ge_u32 s4, 10
    s_cselect_b32 s5, 10, 0
    s_sub_u32 s4, s4, s5              ; rot
    s_lshl_b32 {sGR}, {sGR}, 2
    s_add_u32 {sGR}, {sGR}, s3
    s_and_b32 s3, s2, 1
    s_lshl_b32 s3, s3, 3
    s_add_u32 {sCT}, {sCT}, s3
    s_lshl_b32 s28, s4, 7
    s_mul_i32 s29, s4, 245760
    s_lshl_b32 s3, {sGR}, 7
    s_lshl_b32 s4, {sW}, 3
    s_add_u32 s3, s3, s4
    v_lshrrev_b32 v4, 3, v1
    v_add_u32 v4, s3, v4
    v_mul_u32_u24 v4, 1280, v4
    s_and_b32 s3, {sW}, 1
    s_lshl_b32 s3, s3, 2
    v_or_b32 v5, s3, v3
    v_and_b32 v6, 7, v1
    v_xor_b32 v5, v5, v6
    v_lshl_add_u32 v{vXD}, v5, 4, v4
    s_lshl_b32 s3, {sW}, 2
    v_add_u32 v4, s3, v3
    v_mul_u32_u24 v4, 3840, v4
    s_lshl_b32 s3, {sW}, 1
    s_and_b32 s3, s3, 4
    v_or_b32 v5, s3, v3
    v_lshlrev_b32 v5, 1, v5
    v_xor_b32 v5, v5, v2
    v_lshl_add_u32 v4, v5, 4, v4
    s_lshl_b32 s3, {sCT}, 8
    v_add_u32 v{vWD}, s3, v4
    s_lshl_b32 s30, {sW}, 10
    s_waitcnt lgkmcnt(0)""")
    a.stamp(1)
    srd(a, 8, P_X, 2621440)
    srd(a, 12, P_WQKV, 2457600)
    def dmaA(c):
        b = slot(c)
        return [f"""s_add_u32 m0, s30, {b}
        s_add_u32 s31, s28, 81920
        buffer_load_dwordx4 v{vXD}, s[8:11], s28 offen lds""",
        f"""s_add_u32 m0, s30, {b + 16384}
        s_add_u32 s39, s29, 122880
        buffer_load_dwordx4 v{vWD}, s[12:15], s29 offen lds""",
        f"""s_add_u32 m0, s30, {b + 8192}
        s_add_u32 s28, s28, 128
        buffer_load_dwordx4 v{vXD}, s[8:11], s31 offen lds""",
        f"""s_add_u32 m0, s30, {b + 16384 + 8192}
        s_add_u32 s29, s29, 245760
        buffer_load_dwordx4 v{vWD}, s[12:15], s39 offen lds
        s_cmp_ge_u32 s28, 1280
        s_cselect_b32 s28, 0, s28
        s_cselect_b32 s29, 0, s29"""]
    srd(a, 16, P_WS, WS_SIZE)
    a(f"""s_lshl_b32 s4, {sCT}, 4
    s_add_u32 s4, s4, {sGR}
    s_lshl_b32 s4, s4, 7
    s_add_u32 s59, s4, {F1_OFF}
    v_mov_b32 v{NEG}, -1
    v_mov_b32 v{NEG+1}, -1
    v_mov_b32 v{NEG+2}, -1
    v_mov_b32 v{NEG+3}, -1
    s_cmp_lg_u32 {sW}, 7
    s_cbranch_scc1 L_NOCLR
    s_lshl_b32 s3, s2, 10
    s_add_u32 s3, s3, {PART_OFF}
    v_lshl_add_u32 v6, v1, 4, s3
    buffer_store_dwordx4 {q4(NEG)}, v6, {WSR}, 0 offen sc1
    s_mov_b32 s3, {PARTB}
    buffer_store_dwordx4 {q4(NEG)}, v6, {WSR}, s3 offen sc1
    s_lshl_b32 s6, s2, 7
    s_add_u32 s5, s6, {XS_OFF - 256}
    s_add_u32 s6, s6, {ACT_OFF - 128}
    s_lshl_b32 s7, s2, 5
    s_add_u32 s7, s7, {KEY_OFF - 384}
    v_mov_b32 v6, s59
    v_mov_b32 v7, s6
    v_cmp_le_u32 vcc, 8, v1
    v_cndmask_b32 v6, v6, v7, vcc
    v_mov_b32 v7, s5
    v_cmp_le_u32 vcc, 16, v1
    v_cndmask_b32 v6, v6, v7, vcc
    v_mov_b32 v7, s7
    v_cmp_le_u32 vcc, 24, v1
    v_cndmask_b32 v6, v6, v7, vcc
    v_lshl_add_u32 v6, v1, 4, v6
    s_mov_b64 exec, 0x3ffffff
    buffer_store_dwordx4 {q4(NEG)}, v6, {WSR}, 0 offen sc1
    {MALL}
    s_cmp_lg_u32 {sCT}, 15
    s_cbranch_scc1 L_NOCLR
    s_lshl_b32 s3, {sGR}, 10
    s_add_u32 s3, s3, {ST_OFF}
    v_lshl_add_u32 v6, v1, 4, s3
    buffer_store_dwordx4 {q4(NEG)}, v6, {WSR}, 0 offen sc1
    L_NOCLR:
    s_cmp_eq_u32 {sCT}, 15
    s_cbranch_scc1 L_HLD""")
    for x in dmaA(0): a(x)
    a("s_branch L_PRE\n L_HLD:")
    HX = 136
    a(f"""s_lshl_b32 s3, {sGR}, 7
    s_lshl_b32 s4, {sW}, 4
    s_add_u32 s3, s3, s4
    v_lshrrev_b32 v4, 2, v1
    v_add_u32 v4, s3, v4
    v_mul_u32_u24 v4, 1280, v4
    v_and_b32 v5, 3, v1
    v_lshl_add_u32 v{vXD}, v5, 4, v4""")
    for i in range(4): a(f"buffer_load_dwordx4 {q4(HX+4*i)}, v{vXD}, s[8:11], 0 offen offset:{64*i}")
    a("L_PRE:")
    a.stamp(1, 1)
    a(f"""s_and_b32 {sLO}, {sW}, 3
    s_lshr_b32 {sHI}, {sW}, 2
    s_and_b32 s3, s2, 7
    s_lshl_b32 {sHP}, s3, 1
    s_lshr_b32 s4, s63, 4
    s_add_u32 {sHP}, {sHP}, s4
    s_and_b32 {sRB}, s63, 15
    s_lshl_b32 {sRB2}, s3, 2
    s_lshr_b32 s5, s63, 3
    s_add_u32 {sRB2}, {sRB2}, s5
    s_and_b32 {sCS}, s63, 7
    s_min_u32 s4, s3, 5
    s_sub_u32 {sROLE}, {sRB2}, s4
    s_cmp_eq_u32 s5, 3
    s_cselect_b32 s4, s3, 7
    s_add_u32 s3, s3, 32
    s_cmp_lt_u32 s4, 5
    s_cselect_b32 {sROLE}, s3, {sROLE}
    v_lshrrev_b32 v4, 1, v2
    v_xor_b32 v4, v4, v3
    v_lshlrev_b32 v4, 4, v4
    v_lshl_add_u32 v4, v2, 7, v4
    s_lshl_b32 s3, {sHI}, 13
    v_add_u32 v{vAS}, s3, v4
    v_xor_b32 v{vAS+1}, 64, v{vAS}
    v_bfe_u32 v4, v1, 2, 2
    v_and_b32 v5, 1, v3
    v_lshl_or_b32 v5, v5, 2, v4
    v_lshl_add_u32 v4, v3, 3, v4
    v_lshlrev_b32 v4, 8, v4
    v_and_b32 v6, 3, v1
    v_lshl_add_u32 v4, v6, 3, v4
    v_add_u32 v4, 16384, v4
    s_lshl_b32 s32, {sLO}, 1
    s_add_u32 s32, s32, {sHI}
    s_xor_b32 s33, s32, 1
    v_xor_b32 v6, s32, v5
    v_lshl_add_u32 v{vAS+2}, v6, 5, v4
    v_xor_b32 v{vAS+3}, 32, v{vAS+2}""")
    for q in (1, 2):
        for i in range(4): a(f"v_add_u32 v{vAS+4*q+i}, {65536*q}, v{vAS+i}")
    for i in range(4): a(f"v_mov_b32 v{ONES+i}, 0x3f803f80")
    a(f"""    ; epilogue addresses
    s_cmp_ge_u32 {sCT}, 10
    s_cselect_b64 s[56:57], -1, 0
    v_lshlrev_b32 v6, 4, v3
    v_lshlrev_b32 v7, 2, v2
    v_cndmask_b32 v8, v6, v7, s[56:57]
    v_cndmask_b32 v9, v7, v6, s[56:57]
    s_lshl_b32 s3, s32, 6
    s_add_u32 s3, s3, {SCR+1024}
    v_add_u32 v{vCW}, s3, v7
    v_add_u32 v{vCR}, s3, v8
    v_xor_b32 v{vCR+1}, 64, v{vCR}
    s_lshl_b32 s3, {sHI}, 8
    s_add_u32 s3, s3, {SCR}
    v_add_u32 v{vSR}, s3, v9
    s_mul_i32 s3, {sCT}, 52
    s_lshr_b32 s3, s3, 8              ; section
    s_mul_i32 s4, s3, 5
    s_sub_u32 s34, {sCT}, s4          ; ct % 5
    s_mul_i32 s37, s3, {K_OFF}
    s_lshl_b32 s4, {sGR}, 2
    s_lshl_b32 s5, {sHI}, 1
    s_add_u32 s4, s4, s5
    s_mul_i32 s4, s4, {T32}
    s_add_u32 s37, s37, s4
    s_cmp_eq_u32 s3, 0
    s_cselect_b32 s36, {QSCALE:#x}, 1.0
    ; q/k: octet O = 16*(ct%5) + 2*(tile(g&1)) + (g>>1)
    v_and_b32 v4, 1, v3
    v_xor_b32 v4, s32, v4
    v_lshrrev_b32 v5, 1, v3
    v_lshl_add_u32 v4, v4, 1, v5
    s_lshl_b32 s3, s34, 4
    v_add_u32 v4, s3, v4
    v_mul_u32_u24 v6, 13108, v4
    v_lshrrev_b32 v6, 16, v6
    v_mul_u32_u24 v6, {64*T32 - 5*512}, v6
    v_lshl_add_u32 v6, v4, 9, v6
    v_lshl_add_u32 v{vST}, v2, 4, v6
    ; v: col = 128*(ct%5) + 16*tile + j ; octet = 2(g&1) + (g>>1)
    v_and_b32 v4, 1, v3
    v_lshl_add_u32 v4, v4, 1, v5
    v_mul_u32_u24 v7, 640, v4""")
    for c in range(2):
        a(f"""s_lshl_b32 s3, s34, 7
        s_lshl_b32 s4, s{32+c}, 4
        s_add_u32 s3, s3, s4
        v_add_u32 v4, s3, v2
        v_mul_u32_u24 v6, 1639, v4
        v_lshrrev_b32 v6, 16, v6
        v_mul_u32_u24 v6, {64*T32 - 640}, v6
        v_lshl_add_u32 v6, v4, 4, v6
        v_add_u32 v6, v6, v7
        v_cndmask_b32 v{vST+c}, v{vST}, v6, s[56:57]""")
    a(f"s_cmp_eq_u32 {sCT}, 15\n s_cbranch_scc1 L_HLD2")
    for x in dmaA(1): a(x)
    a("s_branch L_PRE2\n L_HLD2:")
    for i in range(4, 20): a(f"buffer_load_dwordx4 {q4(HX+4*i)}, v{vXD}, s[8:11], 0 offen offset:{64*i}")
    a("L_PRE2:")
    a(f"""s_cmp_lg_u32 {sW}, 7
    s_cbranch_scc1 L_NOSIG
    s_and_b32 s3, s2, 63
    s_lshl_b32 s3, s3, 2
    v_mov_b32 v4, s3
    v_mov_b32 v5, 1
    s_waitcnt vmcnt(8)
    s_mov_b64 exec, 1
    global_atomic_add v4, v5, s[{P_DBG}:{P_DBG+1}] sc1
    {MALL}
    L_NOSIG:""")
    div_lane(a, 8, 9, 1, 10)
    a(f"""s_and_b32 s3, {sW}, 1
    s_lshl_b32 s3, s3, 2
    v_add_u32 v4, s3, v8
    v_mul_u32_u24 v4, 1280, v4
    s_mul_i32 s3, s3, 5
    s_add_u32 s3, s3, 16
    v_add_u32 v5, s3, v8
    v_mul_u32_u24 v5, 1280, v5
    s_mul_i32 s3, {sCS}, 160
    v_lshl_add_u32 v6, v9, 4, s3
    v_add_u32 v{bWO0}, v4, v6
    v_add_u32 v{bWO1}, v5, v6
    s_lshl_b32 s3, {sRB}, 2
    s_add_u32 s3, s3, {sLO}
    s_mul_i32 s3, s3, 40960
    s_add_u32 s3, s3, {O_OFF}
    s_lshl_b32 s4, {sHP}, 1
    s_add_u32 s4, s4, {sHI}
    s_lshl_b32 s5, s4, 10
    s_add_u32 s5, s5, s3
    v_lshl_add_u32 v{vO0}, v1, 4, s5
    s_lshl_b32 s5, s4, 8
    s_add_u32 s5, s5, s3
    s_add_u32 s5, s5, 32768
    v_lshl_add_u32 v{vO1}, v1, 3, s5
    s_mul_i32 s3, {sCS}, 80
    v_lshrrev_b32 v4, 3, v1
    v_add_u32 v4, s3, v4
    v_mul_u32_u24 v4, 3456, v4
    v_and_b32 v5, 7, v1
    v_lshl_add_u32 v4, v5, 4, v4
    s_lshl_b32 s3, {sROLE}, 7
    v_add_u32 v{bGU}, s3, v4
    s_cmp_ge_u32 {sW}, 3
    s_cselect_b32 s4, 1, 0            ; kv
    s_mul_i32 s5, s4, 3
    s_sub_u32 s5, {sW}, s5
    s_mov_b32 s70, s4
    s_mov_b32 s71, s5
    s_add_u32 s5, s5, {sRB}
    s_sub_u32 s5, s5, 2
    s_max_i32 s5, s5, 0
    s_min_i32 s5, s5, 15
    s_mul_i32 s4, s4, 80
    s_add_u32 s4, s4, 80
    s_add_u32 s4, s4, s5
    v_mov_b32 v4, s4
    v_mov_b32 v5, {sRB}
    v_cmp_gt_u32 vcc, 2, v1
    v_cndmask_b32 v4, v5, v4, vcc
    s_mul_i32 s3, {sHP}, 40
    v_and_b32 v7, 1, v1
    v_mul_u32_u24 v7, 39, v7
    v_add_u32 v7, s3, v7
    v_lshrrev_b32 v7, 7, v7
    v_lshl_add_u32 v4, v7, 4, v4
    v_lshlrev_b32 v4, 7, v4
    v_add_u32 v{vF1A}, {F1_OFF}, v4
    v_bfe_u32 v4, v1, 2, 1
    v_lshlrev_b32 v4, 9, v4
    v_and_b32 v5, 3, v1
    v_lshl_add_u32 v4, v5, 13, v4
    s_lshr_b32 s3, {sRB2}, 1
    s_and_b32 s4, s3, 3
    s_lshl_b32 s4, s4, 7
    s_lshr_b32 s3, s3, 2
    s_lshl_b32 s3, s3, 11
    s_add_u32 s3, s3, s4
    s_lshl_b32 s4, {sHI}, 10
    s_add_u32 s3, s3, s4
    s_add_u32 s3, s3, {F1_OFF + 32}
    v_add_u32 v{bF2A}, s3, v4
    s_mul_i32 s3, s63, 200
    s_mul_i32 s4, {sW}, 25
    s_add_u32 s3, s3, s4
    v_add_u32 v4, s3, v1
    v_lshlrev_b32 v{vTO}, 7, v4
    v_subrev_u32 v4, {128 + 256*OPT.get('guh', 0)}, v0
    v_lshrrev_b32 v5, 1, v4
    s_mul_i32 s3, s63, 54
    v_add_u32 v5, s3, v5
    v_mul_u32_u24 v5, 1280, v5
    v_and_b32 v4, 1, v4
    v_lshl_add_u32 v5, v4, 7, v5
    s_and_b32 s3, s2, 7
    s_lshl_b32 s3, s3, 8
    v_add_u32 v{TD}, s3, v5
    v_lshlrev_b32 v8, 2, v1
    s_lshl_b32 s3, {sGR}, 10
    s_add_u32 s35, s3, {ST_OFF}""")
    srd(a, 44, P_WO, 819200)
    a(f"""s_lshr_b32 s3, {sW}, 1
    s_mul_i32 s41, s3, {80*1280}
    s_mul_i32 s40, s3, 10240
    s_and_b32 s3, {sW}, 1
    s_mul_i32 s3, s3, 1280
    s_add_u32 s40, s40, s3""")
    def wo_early(k):
        z, h = k >> 1, k & 1
        return f"""s_add_u32 m0, s40, {WOL + 640*h + 2560*z}
        s_add_u32 s42, s41, {8*1280*h + 20*1280*z}
        {M40}
        buffer_load_dwordx4 v{bWO0}, s[44:47], s42 offen lds
        {MALL}"""
    WE = OPT.get("we", 1); WES = OPT.get("wes", 17)
    wo_touch = f"""s_mov_b64 exec, 0x1ffffff
        global_load_dword v252, v{vTO}, s[{P_WO}:{P_WO+1}]
        {MALL}"""
    def clr_check(L):
        a(f"v_cmp_gt_u32 vcc, 4, v9\n s_cbranch_vccz {L}_OK")
        spin_head(a, L)
        a(f"""global_load_dword v9, v8, s[{P_DBG}:{P_DBG+1}] sc1
        s_waitcnt vmcnt(0)
        v_cmp_gt_u32 vcc, 4, v9""")
        spin_tail(a, L)
    a.stamp(2, 1)
    a(f"s_cmp_eq_u32 {sCT}, 15\n s_cbranch_scc1 L_HELP")
    a("s_waitcnt vmcnt(4)\n s_barrier")
    a.stamp(2); a.stamp(3, 1)
    def FA(b, t): return FR + 24*b + 4*t
    def FB(b, c): return FR + 24*b + 16 + 4*c
    def a1_reads(n):
        c, ks, b = n >> 1, n & 1, n & 1
        sl = c % 5
        base, off = vAS + 4*(sl // 2), (sl % 2) * 32768
        A = [f"ds_read_b128 {q4(FA(b, t))}, v{base+ks} offset:{off + 2048*t}" for t in range(4)]
        B = [f"ds_read_b64_tr_b16 {q2(FB(b, c2)+2*h)}, v{base+2+c2} offset:{off + 8192*ks + 1024*h}" for c2 in range(2) for h in range(2)]
        return [B[0], B[1], A[0], B[2], B[3], A[1], A[2], A[3]]
    def a1_mfmas(n, isv):
        b = n & 1; f = n == 0
        L = [(mm16(CS, ONES, FB(b, 0), f), 1)]
        for t in range(4):
            for c in range(2):
                d = ACC + 8*t + 4*c
                need = [2, 4][c] if t == 0 else 4 + t
                L.append((mm16(d, FA(b, t), FB(b, c), f) if isv else mm16(d, FB(b, c), FA(b, t), f), need))
        return L
    D = OPT.get("dist", 3)
    CKS = OPT.get("cks", 9); STS = OPT.get("sts", 14)
    for x in a1_reads(0): a(x)
    a(f"s_cmp_ge_u32 {sCT}, 10\n s_cbranch_scc1 L_A1_1")
    def a1(isv):
        tag = str(int(isv))
        a(f"L_A1_{tag}:")
        vq = ["c1"] * 4
        side = {n: [] for n in range(20)}
        for c in range(2, 10):
            for k, x in enumerate(dmaA(c)): side[2*(c - D) + (k >> 1) if c - D >= 0 else 0].append((x, f"c{c}"))
        side[OPT.get("wts", 13)].append((wo_touch, "x"))
        if WE:
            for k in range(8): side[WES + (k * (20 - WES)) // 8].append((wo_early(k), "x"))
        nr = 8
        for n in range(20):
            c = n >> 1
            Rn = a1_reads(n + 1) if n < 19 else []
            M = a1_mfmas(n, isv)
            issued = 0; done = -1
            if (n & 1) and c < 9:
                last = max(i for i, t in enumerate(vq) if t == f"c{c+1}")
                a(f"s_waitcnt vmcnt({len(vq) - 1 - last})\n s_barrier")
                vq = vq[last + 1:]
                if c in (0, 1, 2, 3, 4, 5, 6, 8): a.stamp({0:4, 1:5, 2:6, 3:7, 4:8, 5:9, 6:10, 8:11}[c], 1)
            S = list(side[n])
            gap = max(1, len(M) // max(1, len(S)))
            for k, (m, need) in enumerate(M):
                if need > done:
                    a(f"s_waitcnt lgkmcnt({nr - 1 - need + issued})"); done = need
                a(m)
                if k < len(Rn): a(Rn[k]); issued += 1
                if S and (k % gap == gap - 1 or k == len(M) - 1):
                    while S:
                        x, t = S.pop(0); a(x); vq.append(t)
                        if k < len(M) - 1: break
            if n == CKS:
                a(f"""s_cmp_lg_u32 {sW}, 3
                s_cbranch_scc1 L_CK{tag}
                global_load_dword v9, v8, s[{P_DBG}:{P_DBG+1}] sc1
                L_CK{tag}:""")
                ckpos = len(vq)
            if n == STS:
                a(f"s_cmp_lg_u32 {sW}, 3\n s_cbranch_scc1 L_ST{tag}\n s_waitcnt vmcnt({2*(STS - CKS) - 2})")
                clr_check(f"L_CLR{tag}")
                a(f"""v_lshlrev_b32 v7, 4, v1
                buffer_load_dwordx4 {q4(STV)}, v7, {WSR}, s35 offen sc1
                L_ST{tag}:""")
        a.stamp(3); a.stamp(1, 2)
        a(f"""ds_write_b32 v{vCW}, v{CS}
        s_cmp_lg_u32 {sW}, 3
        s_cbranch_scc1 L_SW{tag}
        s_waitcnt vmcnt({8*WE})
        v_max3_u32 v4, v{STV}, v{STV+1}, v{STV+2}
        v_max_u32 v4, v4, v{STV+3}
        v_cmp_eq_u32 vcc, -1, v4
        s_cbranch_vccz L_SP{tag}_OK""")
        spin_head(a, f"L_SP{tag}")
        a(f"""buffer_load_dwordx4 {q4(STV)}, v7, {WSR}, s35 offen sc1
        s_waitcnt vmcnt(0)
        v_max3_u32 v4, v{STV}, v{STV+1}, v{STV+2}
        v_max_u32 v4, v4, v{STV+3}
        v_cmp_eq_u32 vcc, -1, v4""")
        spin_tail(a, f"L_SP{tag}")
        a(f"""v_add_u32 v7, {SCR}, v7
        ds_write_b128 v7, {q4(STV)}
        L_SW{tag}:
        s_waitcnt lgkmcnt(0)
        s_barrier""")
        a.stamp(2, 2)
        if not isv:
            for c in range(2): a(f"ds_read_b128 {q4(TMP+4*c)}, v{vCR+c}")
            for t in range(4): a(f"ds_read2_b32 {q2(TMP+8+2*t)}, v{vSR} offset0:{16*t} offset1:{128+16*t}")
            for t in range(4):
                a(f"s_waitcnt lgkmcnt({3-t})\n v_mul_f32 v{TMP+9+2*t}, s36, v{TMP+9+2*t}")
                for e in range(0, 8, 2):
                    d = ACC + 8*t + e
                    a(f"v_pk_fma_f32 {q2(d)}, {q2(TMP+e)}, {q2(TMP+8+2*t)}, {q2(d)} op_sel_hi:[1,0,1] neg_lo:[1,0,0] neg_hi:[1,0,0]")
                for e in range(0, 8, 2):
                    d = ACC + 8*t + e
                    a(f"v_pk_mul_f32 {q2(d)}, {q2(d)}, {q2(TMP+8+2*t)} op_sel:[0,1] op_sel_hi:[1,1]")
                for e in range(0, 8, 2): a(f"v_cvt_pk_bf16_f32 v{PK+4*t+e//2}, v{ACC+8*t+e}, v{ACC+8*t+e+1}")
                a(f"""v_permlane16_swap_b32 v{PK+4*t}, v{PK+4*t+2}
                v_permlane16_swap_b32 v{PK+4*t+1}, v{PK+4*t+3}
                buffer_store_dwordx4 {q4(PK+4*t)}, v{vST}, {WSR}, s37 offen offset:{(t >> 1)*T32 + (t & 1)*256} sc1""")
        else:
            for c in range(2): a(f"ds_read_b32 v{TMP+2*c}, v{vCR+c}")
            for t in range(4):
                a(f"ds_read_b128 {q4(TMP+4+8*t)}, v{vSR} offset:{64*t}\n ds_read_b128 {q4(TMP+8+8*t)}, v{vSR} offset:{512+64*t}")
            for p in range(2):
                a(f"s_waitcnt lgkmcnt({4-4*p})")
                for c in range(2):
                    o = PK + 8*p + 4*c
                    ds = [(ACC + 8*(2*p+tt) + 4*c + e, 2*p + tt, e, tt) for tt in range(2) for e in (0, 2)]
                    for d, t, e, tt in ds:
                        a(f"v_pk_fma_f32 {q2(d)}, {q2(TMP+4+8*t+e)}, {q2(TMP+2*c)}, {q2(d)} op_sel_hi:[1,0,1] neg_lo:[1,0,0] neg_hi:[1,0,0]")
                    for d, t, e, tt in ds: a(f"v_pk_mul_f32 {q2(d)}, {q2(d)}, {q2(TMP+8+8*t+e)}")
                    for d, t, e, tt in ds: a(f"v_cvt_pk_bf16_f32 v{o+2*tt+e//2}, v{d}, v{d+1}")
                    a(f"""v_permlane16_swap_b32 v{o}, v{o+2}
                    v_permlane16_swap_b32 v{o+1}, v{o+3}
                    buffer_store_dwordx4 {q4(o)}, v{vST+c}, {WSR}, s37 offen offset:{p*T32} sc1""")
        a("s_branch L_HOP")
    a1(False); a1(True)
    a(f"""L_HELP:
    v_mov_b32 v4, 0
    v_mov_b32 v5, 0
    v_mov_b32 v6, 0
    v_mov_b32 v7, 0""")
    for i in range(20):
        a(f"s_waitcnt vmcnt({19-i})")
        for r in range(4):
            x = HX + 4*i + r
            a(f"v_dot2_f32_bf16 v{4+2*(r&1)}, v{x}, v{ONES}, v{4+2*(r&1)}\n v_dot2_f32_bf16 v{5+2*(r&1)}, v{x}, v{x}, v{5+2*(r&1)}")
    a("""s_nop 3
    v_add_f32 v4, v4, v6
    v_add_f32 v5, v5, v7""")
    for qp in ("[1,0,3,2]", "[2,3,0,1]"):
        for v in (4, 5): a(f"v_add_f32_dpp v{v}, v{v}, v{v} quad_perm:{qp} row_mask:0xf bank_mask:0xf")
    ln_scalars(a, 4, 5)
    a(f"""v_and_b32 v6, 1, v1
    v_cmp_eq_u32 vcc, 1, v6
    v_cndmask_b32 v4, v4, v5, vcc
    v_min_u32 v4, -2, v4
    v_and_b32 v5, 60, v1
    v_lshl_add_u32 v5, v6, 9, v5
    s_lshl_b32 s3, {sW}, 6
    s_add_u32 s3, s3, s35
    s_barrier
    s_mov_b32 exec_lo, 0x33333333
    s_mov_b32 exec_hi, 0x33333333
    buffer_store_dword v4, v5, {WSR}, s3 offen sc1
    {MALL}""")
    a(wo_touch)
    if WE:
        for k in range(8): a(wo_early(k))
    a(f"""v_mov_b32 v9, 0
    s_cmp_lg_u32 {sW}, 3
    s_cbranch_scc1 L_HOP""")
    clr_check("L_CLRH")

    a("L_HOP:")
    a.stamp(4); a.stamp(3, 2)
    RPD = 56
    srd(a, 8, P_WO, 819200)
    a(f"""s_and_b32 s31, {sW}, 1
    s_mul_i32 s31, s31, 1280
    s_lshl_b32 s3, {sW}, 2
    s_add_u32 s3, s3, s59
    v_mov_b32 v6, s3
    s_mov_b32 s101, s59
    v_mov_b32 v7, 1""")
    def dma_wo(p):
        if OPT.get("nowo"): return
        kh, q = p // 5, p % 5
        if q < 4: v, so, hs = bWO0, (4*kh + q) * 80 * 1280, 8 * 1280
        else:     v, so, hs = bWO1, kh * 320 * 1280, 40 * 1280
        zs = 20 * 1280 if q < 4 else 80 * 1280
        for z in range(4):
            for h in range(2):
                a(f"""s_add_u32 m0, s31, {WOL + p*10240 + 640*h + 2560*z}
                s_mov_b32 s3, {so + hs*h + zs*z}
                buffer_load_dwordx4 v{v}, s[8:11], s3 offen lds""")
    WO2 = 10
    WA = OPT.get("wa", 2); WP = OPT.get("wp", 1)
    a(f"s_cmp_ge_u32 {sW}, 6\n s_cbranch_scc0 L_DR\n {M40}")
    PB0 = 4*WE
    for p in range(PB0, PB0 + WA): dma_wo(p)
    a(f"{MALL}\n s_waitcnt vmcnt({8*WA})\n s_branch L_DR2\n L_DR:\n s_waitcnt vmcnt(0)\n L_DR2:")
    a.stamp(4, 2)
    a(f"""s_barrier
    s_cmp_lg_u32 {sW}, 0
    s_cbranch_scc1 L_NOF1
    s_mov_b64 exec, 1
    buffer_store_dword v7, v6, {WSR}, 0 offen sc1
    {MALL}
    L_NOF1:
    s_lshr_b32 s4, {sW}, 1
    {M40}""")
    a.stamp(5, 2)
    w0 = 10 - 3*WP
    for pr in range(3):
        a(f"s_cmp_lg_u32 s4, {pr}\n s_cbranch_scc1 L_WP{pr}")
        for p in range(w0 + pr*WP, w0 + (pr + 1)*WP): dma_wo(p)
        a(f"s_branch L_WPD\n L_WP{pr}:")
    for p in range(PB0 + WA, w0): dma_wo(p)
    a(f"L_WPD:\n {MALL}")
    a.stamp(6, 2)
    def gu_loads(L, vg):
        if OPT.get("nogu"): return
        a(f"""s_cmp_lg_u32 {sHI}, {OPT.get("guh", 0)}
        s_cbranch_scc1 {L}
        s_cmp_ge_u32 {sROLE}, 32
        s_cbranch_scc1 {L}
        s_cmp_ge_u32 {sLO}, 2
        s_cselect_b32 s4, s{P_U}, s{P_G}
        s_cselect_b32 s5, s{P_U+1}, s{P_G+1}
        s_and_b32 s3, {sLO}, 1
        s_mul_i32 s3, s3, {40*3456}
        v_add_u32 v4, s3, v{vg}""")
        for i in range(5):
            a(f"global_load_dwordx4 {q4(RPD+4*i)}, v4, s[4:5] nt")
            if i < 4: a(f"v_add_u32 v4, {8*3456}, v4")
        a(f"{L}:")
    Q0, Q1 = 16, 20
    POOL = 24
    MK = 88; O = 96
    a(f"""v_and_b32 v2, 31, v0
    v_lshrrev_b32 v3, 5, v1
    s_mul_i32 s3, {sHP}, {64*T32}
    s_lshl_b32 s4, {sRB}, 2
    s_add_u32 s5, s4, {sLO}
    s_mul_i32 s5, s5, {T32}
    s_add_u32 s5, s5, s3
    v_lshl_add_u32 v4, v2, 4, s5
    s_mul_i32 s5, {sHI}, 1536
    v_lshl_add_u32 v5, v3, 9, v4
    v_add_u32 v80, s5, v5
    s_lshl_b32 s5, {sHI}, 3
    v_add_u32 v81, s5, v4
    v_mov_b32 v{Q1}, 0
    v_mov_b32 v{Q1+1}, 0
    s_sub_u32 s4, s4, 8
    s_mul_i32 s4, s4, {T32}
    s_mul_i32 s5, s71, 10240
    s_add_u32 s4, s4, s5
    v_lshl_add_u32 v82, v1, 4, s4
    s_mul_i32 s6, s70, 30720
    s_add_u32 s71, s5, s6
    s_add_u32 s71, s71, {KL}
    s_mul_i32 s6, s70, {V_OFF - K_OFF}
    s_add_u32 s3, s3, s6
    s_add_u32 s3, s3, {K_OFF}
    s_add_u32 s4, s{P_WS}, s3
    s_addc_u32 s5, s{P_WS+1}, 0""")
    srd(a, 12, 4, 64*T32)
    kappa(a, 4, 2, 5)
    a(f"""s_mul_i32 s3, {sLO}, {T32}
    s_add_u32 s3, s3, {KL}
    s_mul_i32 s4, {sHI}, 1536
    s_add_u32 s4, s4, s3
    v_lshlrev_b32 v5, 4, v4
    v_lshl_add_u32 v{vK0}, v3, 9, v5
    v_add_u32 v{vK0}, s4, v{vK0}
    s_lshl_b32 s4, {sHI}, 3
    s_add_u32 s4, s4, s3
    s_add_u32 s4, s4, 1024
    v_add_u32 v{vK1}, s4, v5
    v_cmp_gt_u32 vcc, 20, v2
    v_cndmask_b32 v5, 0, v5, vcc
    v_mul_u32_u24 v6, 640, v3
    s_mul_i32 s4, {sHI}, 320
    s_add_u32 s4, s4, s3
    s_add_u32 s4, s4, 30720
    v_add3_u32 v{vV}, v5, v6, s4
    v_lshlrev_b32 v4, 3, v3
    v_sub_u32 v4, v2, v4
    v_mov_b32 v5, 0xffff
    v_mov_b32 v6, 0xffff0000""")
    MS = 32
    for r in range(16): a(f"v_cmp_gt_i32 s[{MS+2*r}:{MS+1+2*r}], {(r&7) + 16*(r>>3)}, v4")
    for i in range(8):
        a(f"""v_cndmask_b32 v7, 0, v5, s[{MS+4*i}:{MS+1+4*i}]
        v_cndmask_b32 v8, 0, v6, s[{MS+2+4*i}:{MS+3+4*i}]
        v_or_b32 v{MK+i}, v7, v8""")
    FS = [128, 144, 160]
    FK = [176, 182, 188]
    FV = [POOL, POOL+8, POOL+16]; FV0 = POOL + 24
    FP = [200, 208]
    for r in range(32): a(f"v_mov_b32 v{POOL+r}, 0x3f803f80")
    a(f"""s_lshl_b32 s3, {sRB}, 2
    s_add_u32 s3, s3, {sLO}
    s_sub_i32 s30, 8, s3              ; n_invalid
    s_mov_b32 s28, 0xfffff
    s_mov_b32 s29, 0xfffff""")
    XR, WR, WRS, F2V = 224, 234, 224, 244
    FH = OPT.get('fh', 0)
    LW = 3 if FH else 7
    vXA_, vROW = 84, 85
    def early_loads(L):
        a(f"""v_and_b32 v4, 15, v0
        v_bfe_u32 v5, v0, 4, 2
        s_lshl_b32 s3, {sRB2}, 6
        s_lshl_b32 s4, {sLO}, 4
        s_add_u32 s3, s3, s4
        v_add_u32 v4, s3, v4
        v_mul_u32_u24 v4, 1280, v4
        v_mul_u32_u24 v5, 40, v5
        s_mul_i32 s3, {sCS}, 160
        v_add_u32 v5, s3, v5
        v_add_u32 v4, v5, v4
        s_cmp_lg_u32 {sHI}, {FH}
        s_cbranch_scc1 {L}_H
        global_load_dwordx4 {q4(XR)}, v4, s[{P_X}:{P_X+1}]
        global_load_dwordx4 {q4(XR+4)}, v4, s[{P_X}:{P_X+1}] offset:16
        global_load_dwordx2 {q2(XR+8)}, v4, s[{P_X}:{P_X+1}] offset:32
        global_load_dwordx4 {q4(WR)}, v5, s[{P_WR}:{P_WR+1}]
        global_load_dwordx4 {q4(WR+4)}, v5, s[{P_WR}:{P_WR+1}] offset:16
        global_load_dwordx2 {q2(WR+8)}, v5, s[{P_WR}:{P_WR+1}] offset:32
        s_branch {L}_D
        {L}_H:
        v_lshlrev_b32 v4, 2, v1""")
        for i in range(5): a(f"global_load_dword v{WRS+i}, v4, s[{P_WR}:{P_WR+1}] offset:{256*i}")
        a(f"{L}_D:")
    if OPT.get("elb", 1) == 0: early_loads("L_EL")
    a.stamp(7, 2)
    PSL = OPT.get("psl", 2)
    a(f"""s_cmp_ge_u32 {sW}, 6
    s_cbranch_scc1 L_WOH
    s_mov_b64 exec, 15""")
    spin_head(a, "L_F1POLL")
    a(f"""buffer_load_dword v4, v{vF1A}, {WSR}, 0 offen sc1
    s_waitcnt vmcnt(0)
    v_cmp_ne_u32 s[6:7], 1, v4
    s_and_b64 vcc, s[6:7], 3""")
    spin_tail(a, "L_F1POLL", PSL)
    a(MALL)
    a.stamp(5); a.stamp(8, 2)
    for i in range(10):
        if i % 4 == 0:
            a(f"s_add_u32 m0, s71, {1024*i}\n v_add_u32 v4, {1024*i}, v82")
        a(f"buffer_load_dwordx4 v4, s[12:15], 0 offen offset:{1024*(i % 4)} sc1 lds")
    a(f"s_cmp_eq_u32 s6, 0\n s_cbranch_scc1 L_QPOLL_OK")
    a(f"""L_WOH:
    s_mov_b64 exec, 12""")
    spin_head(a, "L_QPOLL")
    a(f"""buffer_load_dword v4, v{vF1A}, {WSR}, 0 offen sc1
    s_waitcnt vmcnt(0)
    v_cmp_ne_u32 vcc, 1, v4""")
    spin_tail(a, "L_QPOLL", PSL)
    a(f"""{MALL}
    buffer_load_dwordx4 {q4(Q0)}, v80, {WSR}, 0 offen sc1
    s_mov_b32 exec_hi, 0
    buffer_load_dwordx2 {q2(Q1)}, v81, {WSR}, 0 offen offset:1024 sc1
    {MALL}""")
    a.stamp(6); a.stamp(9, 2)
    a("s_waitcnt vmcnt(0)\n s_barrier")
    a.stamp(7); a.stamp(1, 4); a.stamp(10, 2)
    def kread(r, t): return f"ds_read_b128 {q4(r)}, v{vK0} offset:{T32*t}\n ds_read_b64 {q2(r+4)}, v{vK1} offset:{T32*t}"
    def vread(r, t, chk=True):
        m = f"s_cmp_gt_i32 s30, {t}\n s_cselect_b64 exec, -1, s[28:29]" if chk else "s_mov_b64 exec, s[28:29]"
        return f"""{m}
        ds_read_b128 {q4(r)}, v{vV} offset:{T32*t}
        ds_read_b128 {q4(r+4)}, v{vV} offset:{T32*t+1280}
        {MALL}"""
    def s1(s, k): return f"v_mfma_f32_32x32x16_bf16 {r16(s)}, {q4(k)}, {q4(Q0)}, 0"
    def s2(s, k): return f"v_mfma_f32_32x32x8_bf16 {r16(s)}, {q2(k+4)}, {q2(Q1)}, {r16(s)}"
    def pvm(v, p, first=False): return f"v_mfma_f32_32x32x16_bf16 {r16(O)}, {q4(v)}, {q4(p)}, {'0' if first else r16(O)}"
    seq = [8, 0, 7, 6, 5, 4, 3, 2, 1]
    vseq = [8, 7, 6, 5, 4, 3, 2, 1]
    def vbuf(t): return FV0 if t == 0 else FV[vseq.index(t) % 3]
    for n in range(3): a(kread(FK[n], seq[n]))
    def down_touch(vt):
        if OPT.get("notd"): return
        a(f"""s_and_b32 s3, s2, 7
        s_cmp_lt_u32 s3, 5
        s_cselect_b32 s3, 108, 0
        v_subrev_u32 v4, {128 + 256*OPT.get('guh', 0)}, v0
        v_cmp_gt_u32 vcc, s3, v4""")
        masked_load(a, 9, vt, P_D, "L_TD")
    def wo_slot(k):
        p = WO2 + k
        if p < 10:
            a(f"s_cmp_ge_u32 {sW}, 2\n s_cbranch_scc1 L_WS{k}\n {M40}"); dma_wo(p); a(f"{MALL}\n L_WS{k}:")
    a(vread(vbuf(8), 8, False)); a(vread(FV0, 0)); a(vread(vbuf(7), 7))
    a(f"s_waitcnt lgkmcnt(10)\n {s1(FS[0], FK[0])}\n {s2(FS[0], FK[0])}")
    a(f"s_waitcnt lgkmcnt(8)\n {s1(FS[1], FK[1])}\n {s2(FS[1], FK[1])}")
    a(kread(FK[0], seq[3]))
    if OPT.get('elb', 1) == 1: early_loads('L_EL')
    gu_loads('L_GUB', bGU); down_touch(TD)
    wo_slot(0)
    a(f"s_waitcnt lgkmcnt(8)\n {s1(FS[2], FK[2])}\n {s2(FS[2], FK[2])}")
    a(kread(FK[1], seq[4]))
    wo_slot(1)
    for r in range(16): a(f"v_cndmask_b32 v{FS[1]+r}, v{FS[0]+r}, v{FS[1]+r}, s[{MS+2*r}:{MS+1+2*r}]")
    def tile_body(s, p, extra):
        for gq in range(4):
            for r in range(4*gq, 4*gq + 4): a(f"v_exp_f32 v{s+r}, v{s+r}")
            if gq < len(extra) and extra[gq]: a(extra[gq])
            if gq > 0:
                for k in (2*gq - 2, 2*gq - 1): a(f"v_cvt_pk_bf16_f32 v{p+k}, v{s+2*k}, v{s+2*k+1}")
        for k in (6, 7): a(f"v_cvt_pk_bf16_f32 v{p+k}, v{s+2*k}, v{s+2*k+1}")
    tile_body(FS[1], FP[0], [f"s_waitcnt lgkmcnt(2)\n {s1(FS[0], FK[0])}", s2(FS[0], FK[0]), kread(FK[2], seq[5]) + "\n" + vread(vbuf(6), 6), None])
    for k in range(8): a(f"v_and_b32 v{216+k}, v{MK+k}, v{FP[0]+k}")
    for k in range(8): a(f"v_xor_b32 v{FP[0]+k}, v{216+k}, v{FP[0]+k}")
    a(pvm(FV0, 216, True)); wo_slot(2); a(pvm(FV0+4, 220))
    def repack(vm):
        if OPT.get("nogu") or OPT.get("norp"): return
        a(f"""s_cmp_ge_u32 {sROLE}, 32
        s_cbranch_scc1 L_NORP
        s_cmp_lg_u32 {sHI}, {OPT.get("guh", 0)}
        s_cbranch_scc1 L_NORP
        s_mul_i32 s3, {sROLE}, {8*20480}
        s_mul_i32 s4, {sCS}, 1280
        s_add_u32 s3, s3, s4
        s_lshr_b32 s4, {sLO}, 1
        s_mul_i32 s4, s4, 10240
        s_add_u32 s3, s3, s4
        s_and_b32 s4, {sLO}, 1
        s_mul_i32 s4, s4, 640
        s_add_u32 s3, s3, s4
        s_add_u32 s3, s3, {RP_OFF}
        v_lshrrev_b32 v8, 3, v1
        v_mul_u32_u24 v8, {20480 - 128}, v8
        v_lshl_add_u32 v8, v1, 4, v8
        v_and_b32 v4, 7, v1
        v_lshrrev_b32 v5, 3, v1
        v_lshl_add_u32 v4, v4, 3, v5
        v_lshlrev_b32 v4, 2, v4
        s_waitcnt vmcnt({vm}) lgkmcnt(0)""")
        for r in range(20):
            a(f"ds_bpermute_b32 v{RPD+r}, v4, v{RPD+r}")
        a("s_waitcnt lgkmcnt(0)")
        for i in range(5): a(f"buffer_store_dwordx4 {q4(RPD+4*i)}, v8, {WSR}, s3 offen offset:{128*i} sc1")
        a("L_NORP:")

    prevP, prevT = FP[0], 8
    for n in range(2, 9):
        t = seq[n]; p = FP[(n - 1) % 2]
        ex = [None]*4
        ex[0] = f"s_waitcnt lgkmcnt(0)\n {pvm(vbuf(prevT), prevP)}"
        ex[1] = pvm(vbuf(prevT) + 4, prevP + 4)
        if n + 2 <= 8:
            nb = (n + 2) % 3
            ex[2] = s1(FS[nb], FK[nb])
            ex[3] = s2(FS[nb], FK[nb])
        tile_body(FS[n % 3], p, ex)
        post = []
        if n + 4 <= 8: post.append(kread(FK[(n + 4) % 3], seq[n + 4]))
        if t - 2 >= 1: post.append(vread(vbuf(t - 2), t - 2))
        for x in post: a(x)
        wo_slot(n + 1)
        if n == OPT.get("rpn", 8): repack(0)
        prevP, prevT = p, t
    a(f"s_waitcnt lgkmcnt(0)\n {pvm(vbuf(prevT), prevP)}\n {pvm(vbuf(prevT)+4, prevP+4)}")
    a(f"""v_max3_f32 v4, abs(v{O}), abs(v{O+1}), abs(v{O+2})
    v_max3_f32 v5, abs(v{O+3}), abs(v{O+4}), abs(v{O+5})
    v_max3_f32 v4, abs(v{O+6}), abs(v{O+7}), v4
    v_max3_f32 v5, abs(v{O+8}), abs(v{O+9}), v5
    v_max3_f32 v4, abs(v{O+10}), abs(v{O+11}), v4
    v_max_f32 v4, v4, v5
    v_cmp_nlt_f32 vcc, {f2u(2.0**-60):#x}, v{O+12}
    s_mov_b64 s[4:5], vcc
    v_cmp_ngt_f32 vcc, {f2u(2.0**60):#x}, v{O+12}
    s_or_b64 s[4:5], s[4:5], vcc
    v_cmp_ngt_f32 vcc, {f2u(2.0**120):#x}, v4
    s_or_b64 vcc, s[4:5], vcc""")
    if OPT.get("forcefb"): a("s_branch L_FALLBACK")
    a(f"""s_cbranch_vccnz L_FALLBACK
    L_BDONE:
    v_rcp_f32 v4, v{O+12}""")
    for r in range(0, 12, 2): a(f"v_pk_mul_f32 {q2(O+r)}, {q2(O+r)}, v[4:5] op_sel_hi:[1,0]")
    for k in range(6): a(f"v_cvt_pk_bf16_f32 v{24+k}, v{O+2*k}, v{O+2*k+1}")
    a(f"""buffer_store_dwordx4 v[24:27], v{vO0}, {WSR}, 0 offen sc1
    s_mov_b32 exec_hi, 0
    buffer_store_dwordx2 v[28:29], v{vO1}, {WSR}, 0 offen sc1
    {MALL}""")
    a.stamp(8)
    if OPT.get("rpn", 8) == 9: repack(2)
    a.stamp(2, 4)

    XU, WU = 176, 196
    OF, CAC, CWF = 32, 72, 92
    NB = 4
    HP = 216
    OUTP = 228
    a(f"""v_mov_b32 v22, v{bF2A}
    v_and_b32 v2, 15, v0
    v_lshrrev_b32 v3, 4, v1
    s_lshl_b32 s3, {sRB2}, 6
    s_lshl_b32 s4, {sLO}, 4
    s_add_u32 s3, s3, s4
    v_add_u32 v20, s3, v2             ; row
    v_mul_u32_u24 v4, 1280, v20
    v_mul_u32_u24 v17, 40, v3
    s_mul_i32 s3, {sCS}, 160
    v_add3_u32 v16, v17, v4, s3""")
    rho(a, 21, 5)
    a(f"""v_mul_u32_u24 v4, 160, v21
    v_and_b32 v5, 3, v1
    v_lshlrev_b32 v21, 5, v21
    v_lshl_add_u32 v21, v5, 3, v21
    v_mul_u32_u24 v5, 40, v5
    s_mul_i32 s3, {sHI}, 51200
    v_add3_u32 v18, v4, v5, s3
    s_lshl_b32 s3, {sRB2}, 1
    s_lshr_b32 s4, {sLO}, 1
    s_add_u32 s3, s3, s4
    s_mul_i32 s3, s3, 40960
    s_add_u32 s3, s3, {O_OFF}
    s_lshl_b32 s4, {sHI}, 14
    s_add_u32 s29, s3, s4
    s_lshl_b32 s4, {sHI}, 12
    s_add_u32 s33, s3, s4
    s_add_u32 s33, s33, 32768
    s_and_b32 s4, {sLO}, 1
    s_lshl_b32 s4, s4, 4
    v_add_u32 v4, s4, v2
    v_lshlrev_b32 v5, 9, v3
    v_lshl_add_u32 v15, v4, 4, v5
    v_lshl_add_u32 v14, v4, 3, v5
    s_lshl_b32 s30, {sROLE}, 3
    s_add_u32 s30, s30, {sCS}
    s_lshl_b32 s32, {sW}, 10
    s_mul_i32 s3, {sLO}, 5120
    s_add_u32 s34, s3, {RED}
    v_lshl_add_u32 v13, v1, 4, s34
    s_lshl_b32 s3, {sRB2}, 13
    s_lshl_b32 s4, {sLO}, 8
    s_add_u32 s3, s3, s4
    s_add_u32 s37, s3, {PART_OFF}
    v_lshlrev_b32 v10, 4, v2""")
    ROT = OPT.get("crot", 1)
    for ks in range(8):
        a(f"""s_add_u32 s3, {sCS}, {ks}
        s_and_b32 s3, s3, 7""" if ROT else f"s_mov_b32 s3, {ks}")
        a(f"""s_lshl_b32 s4, s3, 11
        s_add_u32 s{40+ks}, s29, s4
        s_mul_i32 s4, s3, 5120
        v_add_u32 v{246+ks}, s4, v18""")
    a("s_waitcnt vmcnt(2)")
    a(f"s_cmp_lg_u32 {sHI}, {FH}\n s_cbranch_scc1 L_CB")
    for i in range(10):
        a(f"""v_lshlrev_b32 v{XU+2*i}, 16, v{XR+i}
        v_and_b32 v{XU+2*i+1}, 0xffff0000, v{XR+i}
        v_lshlrev_b32 v{WU+2*i}, 16, v{WR+i}
        v_and_b32 v{WU+2*i+1}, 0xffff0000, v{WR+i}""")
    a(f"""L_CB:
    v_mov_b32 v4, s101
    v_mov_b32 v5, 1
    s_waitcnt vmcnt(0)""")
    a.stamp(3, 4)
    a(f"""s_barrier
    s_cmp_lg_u32 {sW}, 0
    s_cbranch_scc1 L_NOF2
    s_mov_b64 exec, 1
    buffer_store_dword v5, v4, {WSR}, 0 offen offset:32 sc1
    {MALL}
    L_NOF2:""")
    WD1 = OPT.get("wd1", 3)
    def wd_lds(j): return [GW, GW + 8192, 153600][j] if j < WD1 else WOL + 8192*j
    def wd_dma(js, L):
        a(f"""s_sub_u32 s3, s30, 256
        s_lshl_b32 s3, s3, 5
        v_lshrrev_b32 v5, 1, v1""")
        kappa(a, 6, 5, 4)
        a(f"""v_mul_u32_u24 v6, 1280, v6
        v_and_b32 v4, 1, v1
        v_lshl_add_u32 v6, v4, 4, v6
        v_add_u32 v6, s3, v6
        s_mul_i32 s4, {sW}, {32*1280}""")
        srd(a, 12, P_D, 2211840)
        for j in js:
            a(f"""s_add_u32 m0, s32, {wd_lds(j)}
            s_add_u32 s3, s4, {8*32*1280*j}
            buffer_load_dwordx4 v6, s[12:15], s3 offen lds""")
    a(f"s_cmp_lt_u32 {sROLE}, 32\n s_cbranch_scc1 L_NWD1")
    wd_dma(range(WD1), "1")
    a("L_NWD1:")
    def c_rd(ks):
        b = ks % NB
        ad, off = (246 + ks, 0) if ks < 8 else (18, ks * 5120)
        return [f"ds_read_b64_tr_b16 {q2(CWF+20*b+4*t+2*h)}, v{ad} offset:{off + h*1280 + 8*t}" for t in range(5) for h in range(2)]
    a.stamp(9); a.stamp(4, 4)
    PRE = OPT.get("cpre", 2)
    def o_load(ks):
        if ks < 8: return f"buffer_load_dwordx4 {q4(OF+4*ks)}, v15, {WSR}, s{40+ks} offen sc1"
        return "\n".join(f"buffer_load_dwordx2 {q2(OF+4*ks+2*hh)}, v14, {WSR}, s33 offen offset:{(ks-8)*2048 + hh*256} sc1" for hh in range(2))
    for ks in range(NB):
        for r in c_rd(ks): a(r)
    a("s_mov_b64 exec, 0xff")
    spin_head(a, "L_F2POLL")
    a(f"""buffer_load_dword v4, v22, {WSR}, 0 offen sc1
    s_waitcnt vmcnt(0)
    v_cmp_ne_u32 vcc, 1, v4""")
    spin_tail(a, "L_F2POLL", OPT.get("psl2", 2))
    a(MALL)
    a.stamp(8, 4)
    for ks in range(10): a(o_load(ks))
    for ks in range(10):
        lg = 0 if ks in (0, 9) else 10
        a(f"s_waitcnt vmcnt({11-ks if ks < 8 else 2*(9-ks)}) lgkmcnt({lg})")
        R = c_rd(ks - 1 + NB) if (ks >= 1 and ks - 1 + NB < 10) else []
        for t in range(5):
            for x in R[2*t:2*t+2]: a(x)
            a(mm16(CAC+4*t, CWF+20*(ks % NB)+4*t, OF+4*ks, ks == 0))
    a.stamp(5, 4)
    if PROF and OPT.get("pg") == 4: a("s_mov_b32 s99, s3")
    a(f"s_cmp_lg_u32 {sHI}, {FH}\n s_cbranch_scc0 L_CLO")
    for t in range(5): a(f"ds_write_b128 v13, {q4(CAC+4*t)} offset:{1024*t}")
    a(f"""v_mov_b32 v24, 0
    v_mov_b32 v25, 0
    v_mov_b32 v26, 0
    v_mov_b32 v27, 0
    s_waitcnt lgkmcnt(0)
    s_barrier
    v_and_b32 v12, 255, v0
    v_lshlrev_b32 v12, 4, v12
    v_add_u32 v14, {SB}, v12
    ds_write_b128 v14, v[24:27] offset:{SURV}
    ds_write_b128 v14, v[24:27] offset:{SURV+4096}
    v_mov_b32 v13, {SB+CNT}
    ds_write_b32 v13, v24
    v_lshl_add_u32 v11, v3, 10, v10
    s_add_u32 s38, s37, 4096
    s_add_u32 s39, s37, {PARTB}
    s_add_u32 s35, s37, {PARTB + 4096}
    v_mov_b32 v8, 0""")
    for i in range(5):
        a(f"""v_lshlrev_b32 v5, 16, v{WRS+i}
        v_and_b32 v6, 0xffff0000, v{WRS+i}
        v_add_f32 v8, v8, v5
        v_add_f32 v8, v8, v6""")
    dpp_reduce(a, "v_add_f32", [8])
    a(f"""v_readlane_b32 s36, v8, 63
    v_sub_u32 v23, 2047, v20
    v_lshlrev_b32 v19, 2, v20
    s_lshl_b32 s3, {sLO}, 8
    s_add_u32 s3, s3, {SB+LMR}
    v_lshl_add_u32 v9, v2, 4, s3
    s_mov_b32 s4, {KEY_OFF}
    s_mov_b32 s5, {KEY_OFF+4096}
    s_mov_b32 s6, 0xfffff800
    s_barrier""")
    a.stamp(1, 3)
    spin_head(a, "L_PPOLL")
    a(f"""buffer_load_dwordx4 v[64:67], v11, {WSR}, s37 offen sc1
    buffer_load_dwordx4 v[68:71], v11, {WSR}, s38 offen sc1
    s_waitcnt vmcnt(0)
    v_max3_u32 v5, v64, v65, v66
    v_max3_u32 v6, v68, v69, v70
    v_max_u32 v5, v5, v6
    v_cmp_eq_u32 vcc, -1, v5
    s_cbranch_vccz L_PPOLL_OK
    s_and_b32 s28, s3, {OPT.get('pbm', 15)}
    s_cmp_lg_u32 s28, 0
    s_cbranch_scc1 L_PPOLL
    buffer_load_dwordx4 v[64:67], v11, {WSR}, s39 offen sc1
    buffer_load_dwordx4 v[68:71], v11, {WSR}, s35 offen sc1
    s_waitcnt vmcnt(0)
    v_max3_u32 v5, v64, v65, v66
    v_max3_u32 v6, v68, v69, v70
    v_max_u32 v5, v5, v6
    v_cmp_eq_u32 vcc, -1, v5
    s_cbranch_vccnz L_PPOLL
    L_PPOLL_OK:""")
    a.stamp(2, 3)
    a("v_add_f32 v40, v64, v68\n v_add_f32 v41, v65, v69\n v_add_f32 v42, v66, v70")
    xg_sum(a, [40, 41, 42], [44, 45, 46])
    ln_scalars(a, 40, 41)
    a(f"""v_fma_f32 v42, -v40, s36, v42
    v_mul_f32 v42, v42, v41
    v_ashrrev_i32 v4, 31, v42
    v_or_b32 v4, 0x80000000, v4
    v_xor_b32 v4, v4, v42
    v_and_or_b32 v4, v4, s6, v23
    v_min_u32 v43, -2, v4
    v_min_u32 v42, -2, v42
    s_mov_b64 exec, 0xffff
    s_cmp_lg_u32 {sCS}, 0
    s_cbranch_scc1 L_NOKEY
    buffer_store_dword v43, v19, {WSR}, s4 offen sc1
    L_NOKEY:
    ds_write_b128 v9, v[40:43]
    {MALL}
    s_waitcnt lgkmcnt(0)
    s_barrier""")
    if OPT.get("ksleep", 4): a(f"s_sleep {OPT.get('ksleep', 4)}")
    a.stamp(3, 3)
    spin_head(a, "L_KPOLL")
    a(f"""buffer_load_dwordx4 v[40:43], v12, {WSR}, s4 offen sc1
    buffer_load_dwordx4 v[44:47], v12, {WSR}, s5 offen sc1
    s_waitcnt vmcnt(0)
    v_max_u32 v4, v40, v41
    v_max_u32 v5, v44, v45
    v_max3_u32 v4, v4, v42, v43
    v_max3_u32 v5, v5, v46, v47
    v_max_u32 v6, v4, v5
    v_cmp_eq_u32 vcc, -1, v6""")
    spin_tail(a, "L_KPOLL")
    a.stamp(4, 3)
    dpp_reduce(a, "v_max_u32", [4, 5])
    a(f"""s_lshl_b32 s3, {sLO}, 3
    s_add_u32 s3, s3, {SB+WMAX}
    v_mov_b32 v6, s3
    s_mov_b32 exec_lo, 0
    s_mov_b32 exec_hi, 0x80000000
    ds_write_b64 v6, v[4:5]
    {MALL}
    v_mov_b32 v5, {SB+WMAX}
    v_mov_b32 v6, 1
    s_mov_b32 s3, {SB}
    s_waitcnt lgkmcnt(0)
    s_barrier
    ds_read_b128 v[48:51], v5
    ds_read_b128 v[52:55], v5 offset:16
    s_waitcnt lgkmcnt(0)
    v_min3_u32 v48, v48, v49, v50
    v_min3_u32 v52, v52, v53, v54
    v_min3_u32 v48, v48, v51, v55
    v_min_u32 v48, v48, v52""")
    a.stamp(5, 3)
    for i in range(8): a(f"v_cmp_ge_u32 s[{40+2*i}:{41+2*i}], v{40+i}, v48")
    for i in range(8): a(f"s_mov_b64 exec, s[{40+2*i}:{41+2*i}]\n ds_add_rtn_u32 v{50+i}, v13, v6")
    a(f"{MALL}\n s_waitcnt lgkmcnt(0)")
    for i in range(8): a(f"v_lshl_add_u32 v{50+i}, v{50+i}, 2, s3")
    for i in range(8): a(f"s_mov_b64 exec, s[{40+2*i}:{41+2*i}]\n ds_write_b32 v{50+i}, v{40+i} offset:{SURV}")
    a(f"{MALL}\n s_branch L_RANK")
    a(f"""L_CLO:
    s_lshl_b32 s4, {sCS}, 10
    s_add_u32 s35, s4, s37
    s_add_u32 s38, s35, {PARTB}
    v_mul_u32_u24 v5, 160, v2
    v_add3_u32 v12, v5, v17, s34
    v_lshlrev_b32 v7, 4, v1
    v_mov_b32 v47, 0
    s_barrier""")
    a.stamp(6, 4)
    for t in range(5): a(f"ds_read_b128 {q4(CWF+4*t)}, v13 offset:{1024*t}")
    E = range(0, 20, 2)
    for e in E:
        if e % 4 == 0: a(f"s_waitcnt lgkmcnt({4 - e//4})")
        a(f"v_pk_add_f32 {q2(CAC+e)}, {q2(CAC+e)}, {q2(CWF+e)}")
    for e in E: a(f"v_cvt_pk_bf16_f32 v{HP+e//2}, v{CAC+e}, v{CAC+e+1}")
    for e in E: a(f"v_lshlrev_b32 v{CAC+e}, 16, v{HP+e//2}\n v_and_b32 v{CAC+e+1}, 0xffff0000, v{HP+e//2}")
    for e in E: a(f"v_pk_add_f32 {q2(CAC+e)}, {q2(CAC+e)}, {q2(XU+e)}")
    for e in E: a(f"v_cvt_pk_bf16_f32 v{HP+e//2}, v{CAC+e}, v{CAC+e+1}")
    for e in E: a(f"v_lshlrev_b32 v{CAC+e}, 16, v{HP+e//2}\n v_and_b32 v{CAC+e+1}, 0xffff0000, v{HP+e//2}")
    a(f"""v_pk_add_f32 v[40:41], {q2(CAC)}, {q2(CAC+2)}
    v_pk_mul_f32 v[42:43], {q2(CAC)}, {q2(CAC)}
    v_pk_mul_f32 v[48:49], {q2(CAC)}, {q2(WU)}""")
    for e in range(2, 20, 2):
        if e > 2: a(f"v_pk_add_f32 v[40:41], v[40:41], {q2(CAC+e)}")
        a(f"v_pk_fma_f32 v[42:43], {q2(CAC+e)}, {q2(CAC+e)}, v[42:43]\n v_pk_fma_f32 v[48:49], {q2(CAC+e)}, {q2(WU+e)}, v[48:49]")
    a("v_add_f32 v44, v40, v41\n v_add_f32 v45, v42, v43\n v_add_f32 v46, v48, v49")
    xg_sum(a, [44, 45, 46], [40, 41, 42])
    a(f"""v_min_u32 v44, -2, v44
    v_min_u32 v45, -2, v45
    v_min_u32 v46, -2, v46
    s_mov_b64 exec, 0xffff
    buffer_store_dwordx4 v[44:47], v10, {WSR}, s35 offen
    buffer_store_dwordx4 v[44:47], v10, {WSR}, s38 offen sc1
    {MALL}
    s_barrier""")
    a.stamp(10); a.stamp(7, 4)
    for e in E: a(f"v_min_u32 v{HP+e//2}, -2, v{HP+e//2}")
    for k in range(5): a(f"ds_write_b64 v12, {q2(HP+2*k)} offset:{8*k}")
    a(f"""s_lshl_b32 s3, {sLO}, 8
    s_add_u32 s3, s3, {SB+LMR}
    v_lshl_add_u32 v9, v2, 4, s3
    s_barrier
    ds_read_b64 v[40:41], v9
    ds_read_b32 v22, v9 offset:12
    s_cmp_ge_u32 {sROLE}, 32
    s_cbranch_scc1 L_WDD
    s_mul_i32 s3, s30, 20480
    s_mul_i32 s4, {sLO}, 5120
    s_add_u32 s3, s3, s4
    s_add_u32 s3, s3, {RP_OFF}
    s_add_u32 m0, s4, {GW}
    s_nop 0""")
    for j in range(4): a(f"buffer_load_dwordx4 v7, {WSR}, s3 offen offset:{1024*j} sc1 lds")
    a(f"""s_add_u32 m0, s4, {GW + 4096}
    s_add_u32 s3, s3, 4096
    buffer_load_dwordx4 v7, {WSR}, s3 offen sc1 lds
    """)
    a("L_WDD:\n s_waitcnt lgkmcnt(0)")
    for e in E: a(f"v_pk_add_f32 {q2(XU+e)}, {q2(CAC+e)}, v[40:41] op_sel_hi:[1,0] neg_lo:[0,1] neg_hi:[0,1]")
    for e in E: a(f"v_cvt_pk_bf16_f32 v{OUTP+e//2}, v{XU+e}, v{XU+e+1}")
    for e in E: a(f"v_lshlrev_b32 v{XU+e}, 16, v{OUTP+e//2}\n v_and_b32 v{XU+e+1}, 0xffff0000, v{OUTP+e//2}")
    for e in E: a(f"v_pk_mul_f32 {q2(XU+e)}, {q2(XU+e)}, v[40:41] op_sel:[0,1] op_sel_hi:[1,1]")
    for e in E: a(f"v_cvt_pk_bf16_f32 v{OUTP+e//2}, v{XU+e}, v{XU+e+1}")
    for e in E: a(f"v_min_u32 v{OUTP+e//2}, -2, v{OUTP+e//2}")
    for k in range(5): a(f"ds_write_b64 v12, {q2(OUTP+2*k)} offset:{2560 + 8*k}")
    for e in E: a(f"v_lshlrev_b32 v{XU+e}, 16, v{OUTP+e//2}\n v_and_b32 v{XU+e+1}, 0xffff0000, v{OUTP+e//2}")
    for e in E: a(f"v_pk_add_f32 {q2(XU+e)}, {q2(XU+e)}, {q2(CAC+e)}")
    for e in E: a(f"v_cvt_pk_bf16_f32 v{OUTP+e//2}, v{XU+e}, v{XU+e+1}")
    srd(a, 8, P_OUT, 2621440)
    a(f"""v_mov_b32 v5, {SB+WMAX}
    s_waitcnt vmcnt(0)
    s_barrier
    ds_read_b128 v[48:51], v5
    ds_read_b128 v[52:55], v5 offset:16
    s_waitcnt lgkmcnt(0)
    v_min3_u32 v48, v48, v49, v50
    v_min3_u32 v52, v52, v53, v54
    v_min3_u32 v48, v48, v51, v55
    v_min_u32 v48, v48, v52
    v_cmp_ge_u32 s[58:59], v22, v48
    s_andn2_b64 exec, exec, s[58:59]
    s_cbranch_execz L_OUT1
    buffer_store_dwordx4 {q4(OUTP)}, v16, s[8:11], 0 offen
    buffer_store_dwordx4 {q4(OUTP+4)}, v16, s[8:11], 0 offen offset:16
    buffer_store_dwordx2 {q2(OUTP+8)}, v16, s[8:11], 0 offen offset:32
    L_OUT1:
    {MALL}""")
    a(f"""L_RANK:
    v_mov_b32 v13, {SB+CNT}
    v_and_b32 v5, 31, v1
    v_lshlrev_b32 v5, 2, v5
    v_add_u32 v5, {SB+SURV}, v5
    v_lshrrev_b32 v8, 5, v1
    v_lshlrev_b32 v8, 6, v8
    v_add_u32 v11, {SB+SURV}, v8
    s_lshl_b32 s3, {sW}, 5
    s_add_u32 s28, s3, {SB+SELL}
    v_and_b32 v9, 7, v1
    v_lshl_add_u32 v9, v9, 2, s28
    v_bfe_u32 v4, v1, 4, 1
    v_mul_u32_u24 v6, 2560, v4
    v_lshlrev_b32 v7, 4, v2
    v_sub_u32 v60, {RED + 2560}, v6
    v_add_u32 v60, v60, v7
    s_lshl_b32 s3, {sCS}, 11
    s_lshl_b32 s4, {sW}, 8
    s_add_u32 s3, s3, s4
    s_add_u32 s3, s3, {XS_OFF}
    v_lshl_add_u32 v61, v4, 14, v7
    v_add_u32 v61, s3, v61
    s_mov_b32 s5, 0
    s_waitcnt lgkmcnt(0)
    s_barrier""")
    a.stamp(6, 3)
    a(f"""ds_read_b32 v4, v13
    L_OUTER:
    ds_read_b32 v6, v5
    v_mov_b32 v7, 0
    v_mov_b32 v8, v11
    s_mov_b32 s6, 0
    L_INNER:""")
    for k in range(4): a(f"ds_read_b128 {q4(44+4*k)}, v8 offset:{16*k}")
    a("""v_add_u32 v8, 128, v8
    s_add_u32 s6, s6, 32
    s_waitcnt lgkmcnt(0)
    v_readfirstlane_b32 s4, v4""")
    for h in range(2):
        for i in range(8): a(f"v_cmp_gt_u32 s[{40+2*i}:{41+2*i}], v{44+8*h+i}, v6")
        for i in range(8): a(f"v_addc_co_u32 v7, vcc, 0, v7, s[{40+2*i}:{41+2*i}]")
    a(f"""s_cmp_lt_u32 s6, s4
    s_cbranch_scc1 L_INNER
    v_mov_b32 v8, v7
    v_and_b32 v6, 0x7ff, v6
    v_sub_u32 v6, 2047, v6
    v_permlane32_swap_b32 v7, v8
    v_add_u32 v7, v7, v8
    v_cmp_gt_u32 vcc, 8, v7
    v_lshl_add_u32 v7, v7, 2, s28
    s_and_saveexec_b64 s[6:7], vcc
    ds_write_b32 v7, v6
    {MALL}
    v_add_u32 v5, 128, v5
    s_add_u32 s5, s5, 32
    s_cmp_lt_u32 s5, s4
    s_cbranch_scc1 L_OUTER
    ds_read_b32 v23, v9
    v_mov_b32 v5, s28
    ds_read_b128 v[44:47], v5
    ds_read_b128 v[48:51], v5 offset:16
    s_waitcnt lgkmcnt(2)
    v_readlane_b32 s4, v23, {sW}
    s_lshr_b32 s5, s4, 6
    s_cmp_lg_u32 s5, {sRB2}
    s_cbranch_scc1 L_NOPUB
    s_bfe_u32 s5, s4, 0x20004
    s_mul_i32 s5, s5, 5120
    s_and_b32 s6, s4, 15
    s_mul_i32 s6, s6, 160
    s_add_u32 s5, s5, s6
    v_add_u32 v4, s5, v60
    s_and_b32 s4, s4, 63
    s_lshl_b32 s4, s4, 4
    s_add_u32 s4, s4, {SB+LMR}
    v_mov_b32 v5, s4
    v_cmp_eq_u32 vcc, 26, v1
    v_cndmask_b32 v4, v4, v5, vcc
    s_mov_b64 exec, 0x07ff03ff
    ds_read_b128 v[52:55], v4
    s_waitcnt lgkmcnt(0)
    buffer_store_dwordx4 v[52:55], v61, {WSR}, 0 offen sc1
    {MALL}
    L_NOPUB:""")
    a.stamp(11); a.stamp(7, 3)
    srd(a, 8, P_OUT, 2621440)
    def out_store(L):
        a(f"s_cmp_lg_u32 {sHI}, {FH}\n s_cbranch_scc1 {L}\n s_mov_b64 exec, s[58:59]\n s_cbranch_execz {L}")
        for i in range(8): a(f"v_cmp_ne_u32 vcc, v{44+i}, v20\n s_and_b64 exec, exec, vcc")
        a(f"""s_cbranch_execz {L}
        buffer_store_dwordx4 {q4(OUTP)}, v16, s[8:11], 0 offen
        buffer_store_dwordx4 {q4(OUTP+4)}, v16, s[8:11], 0 offen offset:16
        buffer_store_dwordx2 {q2(OUTP+8)}, v16, s[8:11], 0 offen offset:32""")
        if OPT.get("wbl2"): a("s_waitcnt vmcnt(0)\n buffer_wbl2 sc1")
        a(f"{L}:\n {MALL}")
    a(f"s_cmp_ge_u32 {sROLE}, 32\n s_cbranch_scc1 L_E")
    HF, DW, MRV = 64, 80, 24
    a(f"""v_lshlrev_b32 v12, 8, v2
    v_lshl_add_u32 v12, v3, 4, v12
    s_lshl_b32 s4, {sW}, 11
    s_add_u32 s4, s4, {XS_OFF}
    s_mul_i32 s5, {sW}, 1280
    s_add_u32 s5, s5, {GW}
    v_bfe_u32 v4, v1, 2, 2
    v_lshl_add_u32 v4, v3, 3, v4
    v_lshlrev_b32 v4, 4, v4
    v_and_b32 v5, 1, v1
    v_lshl_add_u32 v4, v5, 3, v4
    v_bfe_u32 v5, v1, 1, 1
    v_mul_u32_u24 v5, 10240, v5
    v_add3_u32 v11, v4, v5, s5
    s_add_u32 s3, s32, {DRED}
    v_lshl_add_u32 v10, v1, 4, s3""")
    for ks in range(3):
        for h in range(2): a(f"ds_read_b64_tr_b16 {q2(DW+4*ks+2*h)}, v11 offset:{ks*512 + h*64}")
    for r in range(12): a(f"v_mov_b32 v{HF+r}, 0")
    a("v_cmp_gt_u32 vcc, 32, v1\n s_waitcnt lgkmcnt(0)")
    for r in range(4): a(f"v_cndmask_b32 v{DW+8+r}, 0, v{DW+8+r}, vcc")
    out_store("L_OUTD")
    if OPT.get("xsleep", 4): a(f"s_sleep {OPT.get('xsleep', 4)}")
    spin_head(a, "L_RPOLL")
    a(f"""s_mov_b32 exec_lo, 0x00ff00ff
    s_mov_b32 exec_hi, 0x00ff00ff
    buffer_load_dwordx4 {q4(HF)}, v12, {WSR}, s4 offen sc1
    buffer_load_dwordx4 {q4(HF+4)}, v12, {WSR}, s4 offen offset:64 sc1
    s_mov_b32 exec_hi, 0
    buffer_load_dwordx4 {q4(HF+8)}, v12, {WSR}, s4 offen offset:128 sc1
    {MALL}
    s_waitcnt vmcnt(0)
    v_max3_u32 v5, v{HF}, v{HF+1}, v{HF+2}
    v_max3_u32 v6, v{HF+3}, v{HF+4}, v{HF+5}
    v_max3_u32 v5, v5, v{HF+6}, v{HF+7}
    v_max3_u32 v6, v6, v{HF+8}, v{HF+9}
    v_max3_u32 v5, v5, v{HF+10}, v{HF+11}
    v_max_u32 v5, v5, v6
    v_cmp_eq_u32 vcc, -1, v5""")
    spin_tail(a, "L_RPOLL", 1)
    a.stamp(8, 3)
    for ks in range(3): a(mm16(28, DW+4*ks, HF+4*ks, ks == 0))
    a(f"""ds_write_b128 v10, v[28:31]
    s_waitcnt lgkmcnt(0)
    s_barrier""")
    a.stamp(9, 3)
    a(f"""s_cmp_lg_u32 {sW}, {LW}
    s_cbranch_scc1 L_END
    v_subrev_u32 v10, {LW*1024}, v10""")
    oth = [w for w in range(8) if w != LW]
    for n, w in enumerate(oth): a(f"ds_read_b128 {q4(64+4*n)}, v10 offset:{1024*w}")
    for n in range(7):
        a(f"s_waitcnt lgkmcnt({6-n})")
        for r in (0, 2): a(f"v_pk_add_f32 {q2(28+r)}, {q2(28+r)}, {q2(64+4*n+r)}")
    a("""v_cvt_pk_bf16_f32 v32, v28, v29
    v_cvt_pk_bf16_f32 v33, v30, v31
    v_mov_b32 v34, v32
    v_mov_b32 v35, v33
    v_permlane32_swap_b32 v32, v34
    v_permlane32_swap_b32 v33, v35""")
    a.stamp(10, 3)
    for k in range(2):
        a(f"""v_lshlrev_b32 v{40+2*k}, 16, v{32+k}
        v_and_b32 v{41+2*k}, 0xffff0000, v{32+k}
        v_lshlrev_b32 v{44+2*k}, 16, v{34+k}
        v_and_b32 v{45+2*k}, 0xffff0000, v{34+k}""")
    for r in range(4): a(f"v_mul_f32 v{48+r}, 0xbfb8aa3b, v{40+r}")
    for r in range(4): a(f"v_exp_f32 v{48+r}, v{48+r}")
    for r in range(4): a(f"v_add_f32 v{48+r}, 1.0, v{48+r}")
    for r in range(4): a(f"v_rcp_f32 v{48+r}, v{48+r}")
    for r in range(4): a(f"v_mul_f32 v{40+r}, v{40+r}, v{48+r}")
    a("v_cvt_pk_bf16_f32 v32, v40, v41\n v_cvt_pk_bf16_f32 v33, v42, v43")
    for k in range(2):
        a(f"v_lshlrev_b32 v{40+2*k}, 16, v{32+k}\n v_and_b32 v{41+2*k}, 0xffff0000, v{32+k}")
    for r in (0, 2): a(f"v_pk_mul_f32 {q2(40+r)}, {q2(40+r)}, {q2(44+r)}")
    a(f"""v_cvt_pk_bf16_f32 v32, v40, v41
    v_cvt_pk_bf16_f32 v33, v42, v43
    v_min_u32 v32, -2, v32
    v_min_u32 v33, -2, v33
    v_mov_b32 v34, v32
    v_mov_b32 v35, v33
    v_lshlrev_b32 v4, 4, v2
    v_permlane16_swap_b32 v32, v34
    v_permlane16_swap_b32 v33, v35
    s_lshl_b32 s3, s30, 7
    s_add_u32 s3, s3, {ACT_OFF}
    s_mov_b64 exec, 0xff
    buffer_store_dwordx4 v[32:35], v4, {WSR}, s3 offen sc1
    s_branch L_END""")
    AF, EW = 64, 96
    a("L_E:")
    wd_dma(range(WD1, 7), "2")
    a(f"""s_sub_u32 s30, s30, 256
    s_mul_i32 s4, s30, 52
    s_lshr_b32 s4, s4, 8              ; cg/5
    s_lshl_b32 s5, s4, 11
    s_add_u32 s35, s5, {XS_OFF + 16384 + 160}
    s_mul_i32 s4, s4, {2048 - 160}
    s_lshl_b32 s30, s30, 5
    s_add_u32 s4, s4, s30
    s_add_u32 s33, s4, {XS_OFF}
    s_add_u32 s34, s33, 16384
    v_and_b32 v17, 7, v2
    v_lshlrev_b32 v17, 8, v17
    v_lshl_add_u32 v19, v3, 3, v17
    v_add_u32 v11, s32, v21
    v_add_u32 v14, {GW}, v11
    s_waitcnt lgkmcnt(0)""")
    out_store("L_OUTE")
    srd(a, 12, P_WS, ACT_OFF + 27648)
    a(f"""v_and_b32 v4, 7, v2
    v_lshlrev_b32 v12, 4, v4
    v_lshl_add_u32 v12, v3, 7, v12
    s_lshl_b32 s4, {sW}, 9
    s_add_u32 s4, s4, {ACT_OFF}
    v_mul_u32_u24 v13, 1280, v23
    v_lshl_add_u32 v13, v3, 3, v13
    v_add_u32 v13, s30, v13
    s_add_u32 s3, s32, {DRED}
    v_lshl_add_u32 v10, v1, 4, s3
    s_cmp_lg_u32 {sW}, {LW}
    s_cbranch_scc1 L_ENOH""")
    spin_head(a, "L_HPOLL")
    a(f"""buffer_load_dwordx2 v[136:137], v19, {WSR}, s33 offen sc1
    buffer_load_dwordx2 v[130:131], v19, {WSR}, s34 offen sc1
    buffer_load_dword v134, v17, {WSR}, s35 offen offset:8 sc1
    s_waitcnt vmcnt(0)
    v_max3_u32 v5, v130, v131, v134
    v_max3_u32 v5, v5, v136, v137
    v_cmp_eq_u32 vcc, -1, v5""")
    spin_tail(a, "L_HPOLL")
    rb16(a, 134)
    a("v_mul_f32 v15, 0xbfb8aa3b, v134\n v_exp_f32 v15, v15\n v_add_f32 v15, 1.0, v15\n v_rcp_f32 v15, v15")
    rb16(a, 15)
    a("L_ENOH:\n s_waitcnt vmcnt(0)")
    for j in range(7):
        b, o = (14, wd_lds(j) - GW) if j < WD1 else (11, wd_lds(j))
        for h in range(2): a(f"ds_read_b64_tr_b16 {q2(EW+4*j+2*h)}, v{b} offset:{o + h*256}")
    if OPT.get('hint', 0):
        spin_head(a, "L_AHINT")
        a(f"""buffer_load_dwordx4 {q4(AF)}, v12, s[12:15], s4 offen sc1
    s_waitcnt vmcnt(0)
    v_cmp_eq_u32 vcc, -1, v{AF}""")
        spin_tail(a, "L_AHINT")
    if OPT.get('asleep', 0): a(f"s_sleep {OPT['asleep']}")
    spin_head(a, "L_APOLL")
    for j in range(7): a(f"s_add_u32 s5, s4, {4096*j}\n buffer_load_dwordx4 {q4(AF+4*j)}, v12, s[12:15], s5 offen sc1")
    a(f"s_waitcnt vmcnt(0) lgkmcnt(0)")
    for j in range(7):
        a(mm16(24, EW+4*j, AF+4*j, j == 0))
        if j == 0: a(f"v_max_u32 v5, v{AF}, v{AF+1}\n v_max3_u32 v5, v5, v{AF+2}, v{AF+3}")
        else: a(f"v_max3_u32 v5, v5, v{AF+4*j}, v{AF+4*j+1}\n v_max3_u32 v5, v5, v{AF+4*j+2}, v{AF+4*j+3}")
    a("v_cmp_eq_u32 vcc, -1, v5")
    spin_tail(a, "L_APOLL", 1)
    a.stamp(11, 3)
    a(f"""ds_write_b128 v10, v[24:27]
    s_waitcnt lgkmcnt(0)
    s_barrier
    s_cmp_lg_u32 {sW}, {LW}
    s_cbranch_scc1 L_END
    v_subrev_u32 v10, {LW*1024}, v10""")
    for n, w in enumerate(oth): a(f"ds_read_b128 {q4(32+4*n)}, v10 offset:{1024*w}")
    for w in range(7):
        a(f"s_waitcnt lgkmcnt({6-w})")
        for r in (0, 2): a(f"v_pk_add_f32 {q2(24+r)}, {q2(24+r)}, {q2(32+4*w+r)}")
    a("v_cvt_pk_bf16_f32 v28, v24, v25\n v_cvt_pk_bf16_f32 v29, v26, v27")
    for k in range(2):
        a(f"v_lshlrev_b32 v{24+2*k}, 16, v{28+k}\n v_and_b32 v{25+2*k}, 0xffff0000, v{28+k}")
    for r in range(4): a(f"v_mul_f32 v{24+r}, v{24+r}, v15")
    a("v_cvt_pk_bf16_f32 v24, v24, v25\n v_cvt_pk_bf16_f32 v25, v26, v27")
    for k in range(2):
        add_pairs(a, 24 + k, 24 + k, 136 + k, 4, 5, 6)
        add_pairs(a, 24 + k, 24 + k, 130 + k, 4, 5, 6)
    a("""s_mov_b32 exec_lo, 0x00ff00ff
    s_mov_b32 exec_hi, 0x00ff00ff
    buffer_store_dwordx2 v[24:25], v13, s[8:11], 0 offen
    L_END:""")
    if PROF:
        a(f"{MALL}\n s_waitcnt vmcnt(0)")
        a.stamp(12)
        for i in range(16): a(f"v_mov_b32 v{8+i}, s{88+i}" if i < 13 else f"v_mov_b32 v{8+i}, 0")
        a(f"""s_lshl_b32 s3, s2, 9
        s_add_u32 s3, s3, {PROF_OFF}
        s_lshl_b32 s4, {sW}, 6
        s_add_u32 s3, s3, s4
        v_mov_b32 v4, s3
        s_mov_b64 exec, 1""")
        for i in range(4): a(f"global_store_dwordx4 v4, {q4(8+4*i)}, s[{P_WS}:{P_WS+1}] offset:{16*i}")
        if "ampj" in OPT:
            i, j = OPT["ampi"], OPT["ampj"]
            a(f"""s_sub_u32 s4, s{88+j}, s{88+i}
            s_mul_i32 s4, s4, 10
            s_min_u32 s4, s4, 100000
            s_cmp_lg_u32 {sW}, 0
            s_cbranch_scc1 L_EXIT
            L_AMP:
            s_memrealtime s[6:7]
            s_waitcnt lgkmcnt(0)
            s_sub_u32 s5, s6, s100
            s_cmp_lt_u32 s5, s4
            s_cbranch_scc1 L_AMP""")
    a("L_EXIT:\n s_endpgm")

    a("L_FALLBACK:\n s_waitcnt vmcnt(0)\n s_nop 7\n s_nop 7")
    S0 = 112
    def S(i): return S0 + 16*i
    KF = 24
    for n in range(9):
        a(kread(KF + 6*n, n))
        if n % 4 == 3: a("s_waitcnt lgkmcnt(0)")
    a("s_waitcnt lgkmcnt(0)")
    for n in range(9): a(f"{s1(S(n), KF+6*n)}\n {s2(S(n), KF+6*n)}")
    for r in range(8): a(f"v_mov_b32 v{78+r}, 0x3f803f80")
    a("s_nop 7\n s_nop 7")
    for i in range(8):
        a(f"s_cmp_gt_i32 s30, {i}\n s_cbranch_scc0 L_VALID")
        for r in range(16): a(f"v_mov_b32 v{S(i)+r}, 0xff800000")
    a("L_VALID:")
    for r in range(16): a(f"v_cndmask_b32 v{S(0)+r}, v{S(8)+r}, v{S(0)+r}, s[{MS+2*r}:{MS+1+2*r}]")
    a(f"v_max_f32 v4, v{S(0)}, v{S(0)+1}")
    for k in range(1, 64): a(f"v_max3_f32 v4, v{S0+2*k}, v{S0+2*k+1}, v4")
    a("""v_mov_b32 v5, v4
    v_permlane32_swap_b32 v4, v5
    v_max_f32 v4, v4, v5""")
    for i in range(8):
        s = S(i)
        for r in range(16): a(f"v_sub_f32 v{s+r}, v{s+r}, v4")
        for r in range(16): a(f"v_exp_f32 v{s+r}, v{s+r}")
        for k in range(8): a(f"v_cvt_pk_bf16_f32 v{s+k}, v{s+2*k}, v{s+2*k+1}")
    s = S(0)
    for k in range(8): a(f"v_and_b32 v{s+8+k}, v{MK+k}, v{s+k}")
    for k in range(8): a(f"v_xor_b32 v{S(8)+k}, v{s+8+k}, v{s+k}")
    for t in range(9):
        p = s + 8 if t == 0 else S(t)
        a(vread(78, t, False))
        a(f"s_waitcnt lgkmcnt(0)\n {pvm(78, p, t == 0)}\n {pvm(82, p + 4)}\n s_nop 7")
    a("s_nop 7")
    early_loads("L_EL2")
    if OPT.get("rpn", 8) == 9: gu_loads("L_GU2", bGU)
    a("s_branch L_BDONE")

def build():
    a = PAsm()
    kernel(a)
    name = NAME + "_kernel"
    L = ["; @launch grid=(256,1,1) block=(512,1,1) lds=163840",
         '.amdgcn_target "amdgcn-amd-amdhsa--gfx950"', ".text", f".globl {name}", ".p2align 8",
         f".type {name},@function", f"{name}:", a.render(), "CODE_END:", "s_endpgm",
         '.section .rodata,"a"', ".p2align 6", f".amdhsa_kernel {name}", "  .amdhsa_next_free_vgpr 256",
         "  .amdhsa_next_free_sgpr 102", "  .amdhsa_accum_offset 256", "  .amdhsa_group_segment_fixed_size 0",
         "  .amdhsa_kernarg_size 88", "  .amdhsa_user_sgpr_count 2", "  .amdhsa_user_sgpr_kernarg_segment_ptr 1",
         "  .amdhsa_system_sgpr_workgroup_id_x 1", ".end_amdhsa_kernel"]
    return "\n".join(L) + "\n"

def check_ws(w, im, cmp, tof):
    import numpy as np
    qkv = im["qkv"]
    q = tof(w[Q_OFF:Q_OFF + 16*64*T32].view(np.uint16)).reshape(16, 64, 5, 32, 8).transpose(1, 3, 0, 2, 4).reshape(2048, 640)
    cmp("q", q, qkv[:, :640] * (20 ** -0.5) * 1.4426950408889634)
    k = tof(w[K_OFF:K_OFF + 16*64*T32].view(np.uint16)).reshape(16, 64, 5, 32, 8).transpose(1, 3, 0, 2, 4).reshape(2048, 640)
    cmp("k", k, qkv[:, 640:1280])
    v = tof(w[V_OFF:V_OFF + 16*64*T32].view(np.uint16)).reshape(16, 256, 40, 8).transpose(1, 3, 0, 2).reshape(2048, 640)
    cmp("v", v, qkv[:, 1280:])
    ob = w[O_OFF:O_OFF + 64*40960].reshape(64, 40960)
    om = tof(np.ascontiguousarray(ob[:, :32768]).view(np.uint16)).reshape(64, 32, 2, 32, 8).transpose(0, 3, 1, 2, 4).reshape(2048, 32, 16)
    oq = tof(np.ascontiguousarray(ob[:, 32768:]).view(np.uint16)).reshape(64, 32, 32, 4).transpose(0, 2, 1, 3).reshape(2048, 32, 4)
    o = np.concatenate([om, oq], axis=2).reshape(2048, 640)
    cmp("o", o, im["o"])

if __name__ == "__main__":
    PROF = "prof" in sys.argv
    if "cyc" in sys.argv: TIMER = "s_memtime"
    for x in sys.argv[2:]:
        if "=" in x:
            k, v = x.split("="); OPT[k] = int(v)
    out = sys.argv[1] if len(sys.argv) > 1 else f"cdna_kernels/{NAME}.s"
    txt = build()
    open(out, "w").write(txt)
    print("wrote", out, len(txt))
```

```python
import sys, struct
from asmlib import Asm

NAME = "sequential_preLN__sliding_block__moe_arch_mod__prompt"
Q_OFF = 0; K_OFF = 0x280000; V_OFF = 0x500000; O_OFF = 0x780000; H_OFF = 0xA00000
PART_OFF = 0xC80000; PARTB = 0x40000; F1_OFF = 0xD00000; XS_OFF = 0xD08000; KEY_OFF = 0xD10000; ACT_OFF = 0xD12000
ST_OFF = 0xD1C000
RP_OFF = 0xD20000
WS_SIZE = RP_OFF + 27*8*20480
PROF_OFF = 0x1200000
T32 = 2560
PROF = False
TIMER = "s_memrealtime"
SPIN_MAX = 1 << 18
SLEEP = 2
OPT = {}

def f2u(x): return struct.unpack("<I", struct.pack("<f", x))[0]
QSCALE = f2u((20 ** -0.5) * 1.4426950408889634)
EPS = f2u(1e-5); INV640 = f2u(1.0 / 640)
P_X, P_WQKV, P_WO, P_WR, P_G, P_U, P_D, P_OUT, P_DBG, P_WS = 64, 66, 68, 72, 74, 76, 78, 80, 82, 84
WSR = "s[16:19]"
sW, sRB, sHP, sRB2, sCS, sROLE, sLO, sHI = "s20", "s21", "s22", "s23", "s24", "s25", "s26", "s27"

SCR = 94208
KL = 102400; VL = 133120; WOL = 0
GW = KL; SB = 122880; RED = VL
SURV = 0; WMAX = 8320; CNT = 8352; SELL = 8384; LMR = 8704
DRED = 65536

class PAsm(Asm):
    def stamp(self, i, grp=0):
        if i not in (0, 12) and grp != OPT.get("pg", 0): return
        if PROF:
            assert i < 13
            self(f"{TIMER} s[86:87]\n s_waitcnt lgkmcnt(0)\n s_mov_b32 s{88+i}, s86")

def srd(a, d, lo, size):
    a(f"""s_mov_b32 s{d}, s{lo}
    s_and_b32 s{d+1}, s{lo+1}, 0xffff
    s_mov_b32 s{d+2}, {size}
    s_mov_b32 s{d+3}, 0x00020000""")
def rb16(a, v): a(f"v_cvt_pk_bf16_f32 v{v}, v{v}, v{v}\n v_lshlrev_b32 v{v}, 16, v{v}")
def ln_scalars(a, s1, s2):
    a(f"""v_mul_f32 v{s1}, {INV640:#x}, v{s1}
    v_mul_f32 v{s2}, {INV640:#x}, v{s2}
    v_fma_f32 v{s2}, -v{s1}, v{s1}, v{s2}
    v_max_f32 v{s2}, 0, v{s2}
    v_cvt_pk_bf16_f32 v{s2}, v{s1}, v{s2}
    v_lshlrev_b32 v{s1}, 16, v{s2}
    v_and_b32 v{s2}, 0xffff0000, v{s2}
    v_add_f32 v{s2}, {EPS:#x}, v{s2}""")
    rb16(a, s2)
    a(f"v_sqrt_f32 v{s2}, v{s2}")
    rb16(a, s2)
    a(f"v_rcp_f32 v{s2}, v{s2}")
def dpp_reduce(a, op, regs):
    for sh in (1, 2, 4, 8):
        for v in regs: a(f"{op}_dpp v{v}, v{v}, v{v} row_shr:{sh} row_mask:0xf bank_mask:0xf")
    for v in regs: a(f"{op}_dpp v{v}, v{v}, v{v} row_bcast:15 row_mask:0xa bank_mask:0xf")
    for v in regs: a(f"{op}_dpp v{v}, v{v}, v{v} row_bcast:31 row_mask:0xc bank_mask:0xf")
def xg_sum(a, regs, tmps):
    for x, t in zip(regs, tmps): a(f"v_mov_b32 v{t}, v{x}")
    for x, t in zip(regs, tmps): a(f"v_permlane16_swap_b32 v{x}, v{t}")
    for x, t in zip(regs, tmps): a(f"v_add_f32 v{x}, v{x}, v{t}")
    for x, t in zip(regs, tmps): a(f"v_mov_b32 v{t}, v{x}")
    for x, t in zip(regs, tmps): a(f"v_permlane32_swap_b32 v{x}, v{t}")
    for x, t in zip(regs, tmps): a(f"v_add_f32 v{x}, v{x}, v{t}")
def norm_pair(a, d, x, m, rs, t0, t1):
    a(f"""v_lshlrev_b32 v{t0}, 16, v{x}
    v_and_b32 v{t1}, 0xffff0000, v{x}
    v_subrev_f32 v{t0}, {m}, v{t0}
    v_subrev_f32 v{t1}, {m}, v{t1}
    v_cvt_pk_bf16_f32 v{d}, v{t0}, v{t1}
    v_lshlrev_b32 v{t0}, 16, v{d}
    v_and_b32 v{t1}, 0xffff0000, v{d}
    v_mul_f32 v{t0}, {rs}, v{t0}
    v_mul_f32 v{t1}, {rs}, v{t1}
    v_cvt_pk_bf16_f32 v{d}, v{t0}, v{t1}""")
def add_pairs(a, d, x, y, t0, t1, t2):
    a(f"""v_lshlrev_b32 v{t0}, 16, v{x}
    v_lshlrev_b32 v{t1}, 16, v{y}
    v_add_f32 v{t0}, v{t0}, v{t1}
    v_and_b32 v{t1}, 0xffff0000, v{x}
    v_and_b32 v{t2}, 0xffff0000, v{y}
    v_add_f32 v{t1}, v{t1}, v{t2}
    v_cvt_pk_bf16_f32 v{d}, v{t0}, v{t1}""")
def q2(r): return f"v[{r}:{r+1}]"
def q4(r): return f"v[{r}:{r+3}]"
def r16(x): return f"v[{x}:{x+15}]"
M40 = "s_mov_b32 exec_hi, 0xff"
MALL = "s_mov_b64 exec, -1"
def spin_head(a, L):
    a(f"s_mov_b32 s3, 0\n {L}:\n s_add_u32 s3, s3, 1\n s_cmp_gt_u32 s3, {SPIN_MAX}\n s_cbranch_scc1 L_END")
def spin_tail(a, L, sl=None):
    a(f"s_cbranch_vccz {L}_OK\n s_sleep {SLEEP if sl is None else sl}\n s_branch {L}\n {L}_OK:")
def div_lane(a, q, r, src, d):
    magic = (65536 + d - 1) // d
    a(f"""v_mul_u32_u24 v{q}, {magic}, v{src}
    v_lshrrev_b32 v{q}, 16, v{q}
    v_mul_u32_u24 v{r}, {d}, v{q}
    v_sub_u32 v{r}, v{src}, v{r}""")
def kappa(a, d, s, t):
    a(f"""v_and_b32 v{d}, 0x13, v{s}
    v_and_b32 v{t}, 4, v{s}
    v_lshl_or_b32 v{d}, v{t}, 1, v{d}
    v_and_b32 v{t}, 8, v{s}
    v_lshrrev_b32 v{t}, 1, v{t}
    v_or_b32 v{d}, v{d}, v{t}""")
def rho(a, d, t):
    a(f"""v_bfe_u32 v{d}, v1, 2, 2
    v_and_b32 v{t}, 1, v3
    v_lshl_or_b32 v{d}, v{t}, 2, v{d}
    v_lshrrev_b32 v{t}, 1, v3
    v_lshl_or_b32 v{d}, v{t}, 4, v{d}""")
def masked_load(a, dst, voff, ptr, L, fl=""):
    a(f"""s_and_saveexec_b64 s[6:7], vcc
    s_cbranch_execz {L}
    global_load_dword v{dst}, v{voff}, s[{ptr}:{ptr+1}] {fl}
    {L}:
    {MALL}""")
def mm16(d, x, y, first): return f"v_mfma_f32_16x16x32_bf16 {q4(d)}, {q4(x)}, {q4(y)}, {'0' if first else q4(d)}"

def kernel(a):
    vXD, vWD = 112, 113
    vAS = 114
    NEG = 76; ONES = 132
    FR = 136
    ACC = 184
    CS = 216
    PK = 220
    TMP = FR
    vST = 236
    vCW, vCR, vSR = 238, 239, 241
    STV = 244
    TD, vK0, vK1, vV, vO0, vO1 = 10, 11, 12, 13, 14, 15
    bWO0, bWO1, bGU, bF2A, vF1A, vHC, vTO = 22, 23, 86, 87, 85, 84, 83
    sGR, sCT = "s60", "s61"
    def slot(c): return (c % 5) * 32768
    if PROF:
        for i in range(13): a(f"s_mov_b32 s{88+i}, 0")
    a.stamp(0)
    a(f"""s_load_dwordx16 s[64:79], s[0:1], 0
    s_load_dwordx4 s[80:83], s[0:1], 64
    s_load_dwordx2 s[84:85], s[0:1], 80
    s_getpc_b64 s[4:5]
    CODE_START:
    s_cmp_ge_u32 s2, 256
    s_cbranch_scc1 L_EXIT
    s_lshr_b32 s63, s2, 3             ; idx
    s_lshl_b32 s3, s63, 7
    v_lshl_add_u32 v4, v0, 12, s3
    v_cmp_gt_u32 vcc, CODE_END-CODE_START, v4""")
    masked_load(a, 250, 4, 4, "L_NOPF")
    a(f"""v_and_b32 v1, 63, v0
    v_lshrrev_b32 v4, 6, v0
    v_and_b32 v2, 15, v0
    v_readfirstlane_b32 {sW}, v4
    v_lshrrev_b32 v3, 4, v1
    s_and_b32 s3, s63, 3
    s_lshr_b32 {sCT}, s63, 2
    s_bfe_u32 {sGR}, s2, 0x20001
    s_mul_i32 s4, s3, 5
    s_lshr_b32 s4, s4, 1
    s_add_u32 s4, s4, {sCT}
    s_add_u32 s4, s4, {sGR}
    s_cmp_ge_u32 s4, 10
    s_cselect_b32 s5, 10, 0
    s_sub_u32 s4, s4, s5              ; rot
    s_lshl_b32 {sGR}, {sGR}, 2
    s_add_u32 {sGR}, {sGR}, s3
    s_and_b32 s3, s2, 1
    s_lshl_b32 s3, s3, 3
    s_add_u32 {sCT}, {sCT}, s3
    s_lshl_b32 s28, s4, 7
    s_mul_i32 s29, s4, 245760
    s_lshl_b32 s3, {sGR}, 7
    s_lshl_b32 s4, {sW}, 3
    s_add_u32 s3, s3, s4
    v_lshrrev_b32 v4, 3, v1
    v_add_u32 v4, s3, v4
    v_mul_u32_u24 v4, 1280, v4
    s_and_b32 s3, {sW}, 1
    s_lshl_b32 s3, s3, 2
    v_or_b32 v5, s3, v3
    v_and_b32 v6, 7, v1
    v_xor_b32 v5, v5, v6
    v_lshl_add_u32 v{vXD}, v5, 4, v4
    s_lshl_b32 s3, {sW}, 2
    v_add_u32 v4, s3, v3
    v_mul_u32_u24 v4, 3840, v4
    s_lshl_b32 s3, {sW}, 1
    s_and_b32 s3, s3, 4
    v_or_b32 v5, s3, v3
    v_lshlrev_b32 v5, 1, v5
    v_xor_b32 v5, v5, v2
    v_lshl_add_u32 v4, v5, 4, v4
    s_lshl_b32 s3, {sCT}, 8
    v_add_u32 v{vWD}, s3, v4
    s_lshl_b32 s30, {sW}, 10
    s_waitcnt lgkmcnt(0)""")
    a.stamp(1)
    srd(a, 8, P_X, 2621440)
    srd(a, 12, P_WQKV, 2457600)
    def dmaA(c):
        b = slot(c)
        return [f"""s_add_u32 m0, s30, {b}
        s_add_u32 s31, s28, 81920
        buffer_load_dwordx4 v{vXD}, s[8:11], s28 offen lds""",
        f"""s_add_u32 m0, s30, {b + 16384}
        s_add_u32 s39, s29, 122880
        buffer_load_dwordx4 v{vWD}, s[12:15], s29 offen lds""",
        f"""s_add_u32 m0, s30, {b + 8192}
        s_add_u32 s28, s28, 128
        buffer_load_dwordx4 v{vXD}, s[8:11], s31 offen lds""",
        f"""s_add_u32 m0, s30, {b + 16384 + 8192}
        s_add_u32 s29, s29, 245760
        buffer_load_dwordx4 v{vWD}, s[12:15], s39 offen lds
        s_cmp_ge_u32 s28, 1280
        s_cselect_b32 s28, 0, s28
        s_cselect_b32 s29, 0, s29"""]
    srd(a, 16, P_WS, WS_SIZE)
    a(f"""s_lshl_b32 s4, {sCT}, 4
    s_add_u32 s4, s4, {sGR}
    s_lshl_b32 s4, s4, 7
    s_add_u32 s59, s4, {F1_OFF}
    v_mov_b32 v{NEG}, -1
    v_mov_b32 v{NEG+1}, -1
    v_mov_b32 v{NEG+2}, -1
    v_mov_b32 v{NEG+3}, -1
    s_cmp_lg_u32 {sW}, 7
    s_cbranch_scc1 L_NOCLR
    s_lshl_b32 s3, s2, 10
    s_add_u32 s3, s3, {PART_OFF}
    v_lshl_add_u32 v6, v1, 4, s3
    buffer_store_dwordx4 {q4(NEG)}, v6, {WSR}, 0 offen sc1
    s_mov_b32 s3, {PARTB}
    buffer_store_dwordx4 {q4(NEG)}, v6, {WSR}, s3 offen sc1
    s_lshl_b32 s6, s2, 7
    s_add_u32 s5, s6, {XS_OFF - 256}
    s_add_u32 s6, s6, {ACT_OFF - 128}
    s_lshl_b32 s7, s2, 5
    s_add_u32 s7, s7, {KEY_OFF - 384}
    v_mov_b32 v6, s59
    v_mov_b32 v7, s6
    v_cmp_le_u32 vcc, 8, v1
    v_cndmask_b32 v6, v6, v7, vcc
    v_mov_b32 v7, s5
    v_cmp_le_u32 vcc, 16, v1
    v_cndmask_b32 v6, v6, v7, vcc
    v_mov_b32 v7, s7
    v_cmp_le_u32 vcc, 24, v1
    v_cndmask_b32 v6, v6, v7, vcc
    v_lshl_add_u32 v6, v1, 4, v6
    s_mov_b64 exec, 0x3ffffff
    buffer_store_dwordx4 {q4(NEG)}, v6, {WSR}, 0 offen sc1
    {MALL}
    s_cmp_lg_u32 {sCT}, 15
    s_cbranch_scc1 L_NOCLR
    s_lshl_b32 s3, {sGR}, 10
    s_add_u32 s3, s3, {ST_OFF}
    v_lshl_add_u32 v6, v1, 4, s3
    buffer_store_dwordx4 {q4(NEG)}, v6, {WSR}, 0 offen sc1
    L_NOCLR:
    s_cmp_eq_u32 {sCT}, 15
    s_cbranch_scc1 L_HLD""")
    for x in dmaA(0): a(x)
    a("s_branch L_PRE\n L_HLD:")
    HX = 136
    a(f"""s_lshl_b32 s3, {sGR}, 7
    s_lshl_b32 s4, {sW}, 4
    s_add_u32 s3, s3, s4
    v_lshrrev_b32 v4, 2, v1
    v_add_u32 v4, s3, v4
    v_mul_u32_u24 v4, 1280, v4
    v_and_b32 v5, 3, v1
    v_lshl_add_u32 v{vXD}, v5, 4, v4""")
    for i in range(4): a(f"buffer_load_dwordx4 {q4(HX+4*i)}, v{vXD}, s[8:11], 0 offen offset:{64*i}")
    a("L_PRE:")
    a.stamp(1, 1)
    a(f"""s_and_b32 {sLO}, {sW}, 3
    s_lshr_b32 {sHI}, {sW}, 2
    s_and_b32 s3, s2, 7
    s_lshl_b32 {sHP}, s3, 1
    s_lshr_b32 s4, s63, 4
    s_add_u32 {sHP}, {sHP}, s4
    s_and_b32 {sRB}, s63, 15
    s_lshl_b32 {sRB2}, s3, 2
    s_lshr_b32 s5, s63, 3
    s_add_u32 {sRB2}, {sRB2}, s5
    s_and_b32 {sCS}, s63, 7
    s_min_u32 s4, s3, 5
    s_sub_u32 {sROLE}, {sRB2}, s4
    s_cmp_eq_u32 s5, 3
    s_cselect_b32 s4, s3, 7
    s_add_u32 s3, s3, 32
    s_cmp_lt_u32 s4, 5
    s_cselect_b32 {sROLE}, s3, {sROLE}
    v_lshrrev_b32 v4, 1, v2
    v_xor_b32 v4, v4, v3
    v_lshlrev_b32 v4, 4, v4
    v_lshl_add_u32 v4, v2, 7, v4
    s_lshl_b32 s3, {sHI}, 13
    v_add_u32 v{vAS}, s3, v4
    v_xor_b32 v{vAS+1}, 64, v{vAS}
    v_bfe_u32 v4, v1, 2, 2
    v_and_b32 v5, 1, v3
    v_lshl_or_b32 v5, v5, 2, v4
    v_lshl_add_u32 v4, v3, 3, v4
    v_lshlrev_b32 v4, 8, v4
    v_and_b32 v6, 3, v1
    v_lshl_add_u32 v4, v6, 3, v4
    v_add_u32 v4, 16384, v4
    s_lshl_b32 s32, {sLO}, 1
    s_add_u32 s32, s32, {sHI}
    s_xor_b32 s33, s32, 1
    v_xor_b32 v6, s32, v5
    v_lshl_add_u32 v{vAS+2}, v6, 5, v4
    v_xor_b32 v{vAS+3}, 32, v{vAS+2}""")
    for q in (1, 2):
        for i in range(4): a(f"v_add_u32 v{vAS+4*q+i}, {65536*q}, v{vAS+i}")
    for i in range(4): a(f"v_mov_b32 v{ONES+i}, 0x3f803f80")
    a(f"""    ; epilogue addresses
    s_cmp_ge_u32 {sCT}, 10
    s_cselect_b64 s[56:57], -1, 0
    v_lshlrev_b32 v6, 4, v3
    v_lshlrev_b32 v7, 2, v2
    v_cndmask_b32 v8, v6, v7, s[56:57]
    v_cndmask_b32 v9, v7, v6, s[56:57]
    s_lshl_b32 s3, s32, 6
    s_add_u32 s3, s3, {SCR+1024}
    v_add_u32 v{vCW}, s3, v7
    v_add_u32 v{vCR}, s3, v8
    v_xor_b32 v{vCR+1}, 64, v{vCR}
    s_lshl_b32 s3, {sHI}, 8
    s_add_u32 s3, s3, {SCR}
    v_add_u32 v{vSR}, s3, v9
    s_mul_i32 s3, {sCT}, 52
    s_lshr_b32 s3, s3, 8              ; section
    s_mul_i32 s4, s3, 5
    s_sub_u32 s34, {sCT}, s4          ; ct % 5
    s_mul_i32 s37, s3, {K_OFF}
    s_lshl_b32 s4, {sGR}, 2
    s_lshl_b32 s5, {sHI}, 1
    s_add_u32 s4, s4, s5
    s_mul_i32 s4, s4, {T32}
    s_add_u32 s37, s37, s4
    s_cmp_eq_u32 s3, 0
    s_cselect_b32 s36, {QSCALE:#x}, 1.0
    ; q/k: octet O = 16*(ct%5) + 2*(tile(g&1)) + (g>>1)
    v_and_b32 v4, 1, v3
    v_xor_b32 v4, s32, v4
    v_lshrrev_b32 v5, 1, v3
    v_lshl_add_u32 v4, v4, 1, v5
    s_lshl_b32 s3, s34, 4
    v_add_u32 v4, s3, v4
    v_mul_u32_u24 v6, 13108, v4
    v_lshrrev_b32 v6, 16, v6
    v_mul_u32_u24 v6, {64*T32 - 5*512}, v6
    v_lshl_add_u32 v6, v4, 9, v6
    v_lshl_add_u32 v{vST}, v2, 4, v6
    ; v: col = 128*(ct%5) + 16*tile + j ; octet = 2(g&1) + (g>>1)
    v_and_b32 v4, 1, v3
    v_lshl_add_u32 v4, v4, 1, v5
    v_mul_u32_u24 v7, 640, v4""")
    for c in range(2):
        a(f"""s_lshl_b32 s3, s34, 7
        s_lshl_b32 s4, s{32+c}, 4
        s_add_u32 s3, s3, s4
        v_add_u32 v4, s3, v2
        v_mul_u32_u24 v6, 1639, v4
        v_lshrrev_b32 v6, 16, v6
        v_mul_u32_u24 v6, {64*T32 - 640}, v6
        v_lshl_add_u32 v6, v4, 4, v6
        v_add_u32 v6, v6, v7
        v_cndmask_b32 v{vST+c}, v{vST}, v6, s[56:57]""")
    a(f"s_cmp_eq_u32 {sCT}, 15\n s_cbranch_scc1 L_HLD2")
    for x in dmaA(1): a(x)
    a("s_branch L_PRE2\n L_HLD2:")
    for i in range(4, 20): a(f"buffer_load_dwordx4 {q4(HX+4*i)}, v{vXD}, s[8:11], 0 offen offset:{64*i}")
    a("L_PRE2:")
    a(f"""s_cmp_lg_u32 {sW}, 7
    s_cbranch_scc1 L_NOSIG
    s_and_b32 s3, s2, 63
    s_lshl_b32 s3, s3, 2
    v_mov_b32 v4, s3
    v_mov_b32 v5, 1
    s_waitcnt vmcnt(8)
    s_mov_b64 exec, 1
    global_atomic_add v4, v5, s[{P_DBG}:{P_DBG+1}] sc1
    {MALL}
    L_NOSIG:""")
    div_lane(a, 8, 9, 1, 10)
    a(f"""s_and_b32 s3, {sW}, 1
    s_lshl_b32 s3, s3, 2
    v_add_u32 v4, s3, v8
    v_mul_u32_u24 v4, 1280, v4
    s_mul_i32 s3, s3, 5
    s_add_u32 s3, s3, 16
    v_add_u32 v5, s3, v8
    v_mul_u32_u24 v5, 1280, v5
    s_mul_i32 s3, {sCS}, 160
    v_lshl_add_u32 v6, v9, 4, s3
    v_add_u32 v{bWO0}, v4, v6
    v_add_u32 v{bWO1}, v5, v6
    s_lshl_b32 s3, {sRB}, 2
    s_add_u32 s3, s3, {sLO}
    s_mul_i32 s3, s3, 40960
    s_add_u32 s3, s3, {O_OFF}
    s_lshl_b32 s4, {sHP}, 1
    s_add_u32 s4, s4, {sHI}
    s_lshl_b32 s5, s4, 10
    s_add_u32 s5, s5, s3
    v_lshl_add_u32 v{vO0}, v1, 4, s5
    s_lshl_b32 s5, s4, 8
    s_add_u32 s5, s5, s3
    s_add_u32 s5, s5, 32768
    v_lshl_add_u32 v{vO1}, v1, 3, s5
    s_mul_i32 s3, {sCS}, 80
    v_lshrrev_b32 v4, 3, v1
    v_add_u32 v4, s3, v4
    v_mul_u32_u24 v4, 3456, v4
    v_and_b32 v5, 7, v1
    v_lshl_add_u32 v4, v5, 4, v4
    s_lshl_b32 s3, {sROLE}, 7
    v_add_u32 v{bGU}, s3, v4
    s_cmp_ge_u32 {sW}, 3
    s_cselect_b32 s4, 1, 0            ; kv
    s_mul_i32 s5, s4, 3
    s_sub_u32 s5, {sW}, s5
    s_mov_b32 s70, s4
    s_mov_b32 s71, s5
    s_add_u32 s5, s5, {sRB}
    s_sub_u32 s5, s5, 2
    s_max_i32 s5, s5, 0
    s_min_i32 s5, s5, 15
    s_mul_i32 s4, s4, 80
    s_add_u32 s4, s4, 80
    s_add_u32 s4, s4, s5
    v_mov_b32 v4, s4
    v_mov_b32 v5, {sRB}
    v_cmp_gt_u32 vcc, 2, v1
    v_cndmask_b32 v4, v5, v4, vcc
    s_mul_i32 s3, {sHP}, 40
    v_and_b32 v7, 1, v1
    v_mul_u32_u24 v7, 39, v7
    v_add_u32 v7, s3, v7
    v_lshrrev_b32 v7, 7, v7
    v_lshl_add_u32 v4, v7, 4, v4
    v_lshlrev_b32 v4, 7, v4
    v_add_u32 v{vF1A}, {F1_OFF}, v4
    v_bfe_u32 v4, v1, 2, 1
    v_lshlrev_b32 v4, 9, v4
    v_and_b32 v5, 3, v1
    v_lshl_add_u32 v4, v5, 13, v4
    s_lshr_b32 s3, {sRB2}, 1
    s_and_b32 s4, s3, 3
    s_lshl_b32 s4, s4, 7
    s_lshr_b32 s3, s3, 2
    s_lshl_b32 s3, s3, 11
    s_add_u32 s3, s3, s4
    s_lshl_b32 s4, {sHI}, 10
    s_add_u32 s3, s3, s4
    s_add_u32 s3, s3, {F1_OFF + 32}
    v_add_u32 v{bF2A}, s3, v4
    s_mul_i32 s3, s63, 200
    s_mul_i32 s4, {sW}, 25
    s_add_u32 s3, s3, s4
    v_add_u32 v4, s3, v1
    v_lshlrev_b32 v{vTO}, 7, v4
    v_subrev_u32 v4, {128 + 256*OPT.get('guh', 0)}, v0
    v_lshrrev_b32 v5, 1, v4
    s_mul_i32 s3, s63, 54
    v_add_u32 v5, s3, v5
    v_mul_u32_u24 v5, 1280, v5
    v_and_b32 v4, 1, v4
    v_lshl_add_u32 v5, v4, 7, v5
    s_and_b32 s3, s2, 7
    s_lshl_b32 s3, s3, 8
    v_add_u32 v{TD}, s3, v5
    v_lshlrev_b32 v8, 2, v1
    s_lshl_b32 s3, {sGR}, 10
    s_add_u32 s35, s3, {ST_OFF}""")
    srd(a, 44, P_WO, 819200)
    a(f"""s_lshr_b32 s3, {sW}, 1
    s_mul_i32 s41, s3, {80*1280}
    s_mul_i32 s40, s3, 10240
    s_and_b32 s3, {sW}, 1
    s_mul_i32 s3, s3, 1280
    s_add_u32 s40, s40, s3""")
    def wo_early(k):
        z, h = k >> 1, k & 1
        return f"""s_add_u32 m0, s40, {WOL + 640*h + 2560*z}
        s_add_u32 s42, s41, {8*1280*h + 20*1280*z}
        {M40}
        buffer_load_dwordx4 v{bWO0}, s[44:47], s42 offen lds
        {MALL}"""
    WE = OPT.get("we", 1); WES = OPT.get("wes", 17)
    wo_touch = f"""s_mov_b64 exec, 0x1ffffff
        global_load_dword v252, v{vTO}, s[{P_WO}:{P_WO+1}]
        {MALL}"""
    def clr_check(L):
        a(f"v_cmp_gt_u32 vcc, 4, v9\n s_cbranch_vccz {L}_OK")
        spin_head(a, L)
        a(f"""global_load_dword v9, v8, s[{P_DBG}:{P_DBG+1}] sc1
        s_waitcnt vmcnt(0)
        v_cmp_gt_u32 vcc, 4, v9""")
        spin_tail(a, L)
    a.stamp(2, 1)
    a(f"s_cmp_eq_u32 {sCT}, 15\n s_cbranch_scc1 L_HELP")
    a("s_waitcnt vmcnt(4)\n s_barrier")
    a.stamp(2); a.stamp(3, 1)
    def FA(b, t): return FR + 24*b + 4*t
    def FB(b, c): return FR + 24*b + 16 + 4*c
    def a1_reads(n):
        c, ks, b = n >> 1, n & 1, n & 1
        sl = c % 5
        base, off = vAS + 4*(sl // 2), (sl % 2) * 32768
        A = [f"ds_read_b128 {q4(FA(b, t))}, v{base+ks} offset:{off + 2048*t}" for t in range(4)]
        B = [f"ds_read_b64_tr_b16 {q2(FB(b, c2)+2*h)}, v{base+2+c2} offset:{off + 8192*ks + 1024*h}" for c2 in range(2) for h in range(2)]
        return [B[0], B[1], A[0], B[2], B[3], A[1], A[2], A[3]]
    def a1_mfmas(n, isv):
        b = n & 1; f = n == 0
        L = [(mm16(CS, ONES, FB(b, 0), f), 1)]
        for t in range(4):
            for c in range(2):
                d = ACC + 8*t + 4*c
                need = [2, 4][c] if t == 0 else 4 + t
                L.append((mm16(d, FA(b, t), FB(b, c), f) if isv else mm16(d, FB(b, c), FA(b, t), f), need))
        return L
    D = OPT.get("dist", 3)
    CKS = OPT.get("cks", 9); STS = OPT.get("sts", 14)
    for x in a1_reads(0): a(x)
    a(f"s_cmp_ge_u32 {sCT}, 10\n s_cbranch_scc1 L_A1_1")
    def a1(isv):
        tag = str(int(isv))
        a(f"L_A1_{tag}:")
        vq = ["c1"] * 4
        side = {n: [] for n in range(20)}
        for c in range(2, 10):
            for k, x in enumerate(dmaA(c)): side[2*(c - D) + (k >> 1) if c - D >= 0 else 0].append((x, f"c{c}"))
        side[OPT.get("wts", 13)].append((wo_touch, "x"))
        if WE:
            for k in range(8): side[WES + (k * (20 - WES)) // 8].append((wo_early(k), "x"))
        nr = 8
        for n in range(20):
            c = n >> 1
            Rn = a1_reads(n + 1) if n < 19 else []
            M = a1_mfmas(n, isv)
            issued = 0; done = -1
            if (n & 1) and c < 9:
                last = max(i for i, t in enumerate(vq) if t == f"c{c+1}")
                a(f"s_waitcnt vmcnt({len(vq) - 1 - last})\n s_barrier")
                vq = vq[last + 1:]
                if c in (0, 1, 2, 3, 4, 5, 6, 8): a.stamp({0:4, 1:5, 2:6, 3:7, 4:8, 5:9, 6:10, 8:11}[c], 1)
            S = list(side[n])
            gap = max(1, len(M) // max(1, len(S)))
            for k, (m, need) in enumerate(M):
                if need > done:
                    a(f"s_waitcnt lgkmcnt({nr - 1 - need + issued})"); done = need
                a(m)
                if k < len(Rn): a(Rn[k]); issued += 1
                if S and (k % gap == gap - 1 or k == len(M) - 1):
                    while S:
                        x, t = S.pop(0); a(x); vq.append(t)
                        if k < len(M) - 1: break
            if n == CKS:
                a(f"""s_cmp_lg_u32 {sW}, 3
                s_cbranch_scc1 L_CK{tag}
                global_load_dword v9, v8, s[{P_DBG}:{P_DBG+1}] sc1
                L_CK{tag}:""")
                ckpos = len(vq)
            if n == STS:
                a(f"s_cmp_lg_u32 {sW}, 3\n s_cbranch_scc1 L_ST{tag}\n s_waitcnt vmcnt({2*(STS - CKS) - 2})")
                clr_check(f"L_CLR{tag}")
                a(f"""v_lshlrev_b32 v7, 4, v1
                buffer_load_dwordx4 {q4(STV)}, v7, {WSR}, s35 offen sc1
                L_ST{tag}:""")
        a.stamp(3); a.stamp(1, 2)
        a(f"""ds_write_b32 v{vCW}, v{CS}
        s_cmp_lg_u32 {sW}, 3
        s_cbranch_scc1 L_SW{tag}
        s_waitcnt vmcnt({8*WE})
        v_max3_u32 v4, v{STV}, v{STV+1}, v{STV+2}
        v_max_u32 v4, v4, v{STV+3}
        v_cmp_eq_u32 vcc, -1, v4
        s_cbranch_vccz L_SP{tag}_OK""")
        spin_head(a, f"L_SP{tag}")
        a(f"""buffer_load_dwordx4 {q4(STV)}, v7, {WSR}, s35 offen sc1
        s_waitcnt vmcnt(0)
        v_max3_u32 v4, v{STV}, v{STV+1}, v{STV+2}
        v_max_u32 v4, v4, v{STV+3}
        v_cmp_eq_u32 vcc, -1, v4""")
        spin_tail(a, f"L_SP{tag}")
        a(f"""v_add_u32 v7, {SCR}, v7
        ds_write_b128 v7, {q4(STV)}
        L_SW{tag}:
        s_waitcnt lgkmcnt(0)
        s_barrier""")
        a.stamp(2, 2)
        if not isv:
            for c in range(2): a(f"ds_read_b128 {q4(TMP+4*c)}, v{vCR+c}")
            for t in range(4): a(f"ds_read2_b32 {q2(TMP+8+2*t)}, v{vSR} offset0:{16*t} offset1:{128+16*t}")
            for t in range(4):
                a(f"s_waitcnt lgkmcnt({3-t})\n v_mul_f32 v{TMP+9+2*t}, s36, v{TMP+9+2*t}")
                for e in range(0, 8, 2):
                    d = ACC + 8*t + e
                    a(f"v_pk_fma_f32 {q2(d)}, {q2(TMP+e)}, {q2(TMP+8+2*t)}, {q2(d)} op_sel_hi:[1,0,1] neg_lo:[1,0,0] neg_hi:[1,0,0]")
                for e in range(0, 8, 2):
                    d = ACC + 8*t + e
                    a(f"v_pk_mul_f32 {q2(d)}, {q2(d)}, {q2(TMP+8+2*t)} op_sel:[0,1] op_sel_hi:[1,1]")
                for e in range(0, 8, 2): a(f"v_cvt_pk_bf16_f32 v{PK+4*t+e//2}, v{ACC+8*t+e}, v{ACC+8*t+e+1}")
                a(f"""v_permlane16_swap_b32 v{PK+4*t}, v{PK+4*t+2}
                v_permlane16_swap_b32 v{PK+4*t+1}, v{PK+4*t+3}
                buffer_store_dwordx4 {q4(PK+4*t)}, v{vST}, {WSR}, s37 offen offset:{(t >> 1)*T32 + (t & 1)*256} sc1""")
        else:
            for c in range(2): a(f"ds_read_b32 v{TMP+2*c}, v{vCR+c}")
            for t in range(4):
                a(f"ds_read_b128 {q4(TMP+4+8*t)}, v{vSR} offset:{64*t}\n ds_read_b128 {q4(TMP+8+8*t)}, v{vSR} offset:{512+64*t}")
            for p in range(2):
                a(f"s_waitcnt lgkmcnt({4-4*p})")
                for c in range(2):
                    o = PK + 8*p + 4*c
                    ds = [(ACC + 8*(2*p+tt) + 4*c + e, 2*p + tt, e, tt) for tt in range(2) for e in (0, 2)]
                    for d, t, e, tt in ds:
                        a(f"v_pk_fma_f32 {q2(d)}, {q2(TMP+4+8*t+e)}, {q2(TMP+2*c)}, {q2(d)} op_sel_hi:[1,0,1] neg_lo:[1,0,0] neg_hi:[1,0,0]")
                    for d, t, e, tt in ds: a(f"v_pk_mul_f32 {q2(d)}, {q2(d)}, {q2(TMP+8+8*t+e)}")
                    for d, t, e, tt in ds: a(f"v_cvt_pk_bf16_f32 v{o+2*tt+e//2}, v{d}, v{d+1}")
                    a(f"""v_permlane16_swap_b32 v{o}, v{o+2}
                    v_permlane16_swap_b32 v{o+1}, v{o+3}
                    buffer_store_dwordx4 {q4(o)}, v{vST+c}, {WSR}, s37 offen offset:{p*T32} sc1""")
        a("s_branch L_HOP")
    a1(False); a1(True)
    a(f"""L_HELP:
    v_mov_b32 v4, 0
    v_mov_b32 v5, 0
    v_mov_b32 v6, 0
    v_mov_b32 v7, 0""")
    for i in range(20):
        a(f"s_waitcnt vmcnt({19-i})")
        for r in range(4):
            x = HX + 4*i + r
            a(f"v_dot2_f32_bf16 v{4+2*(r&1)}, v{x}, v{ONES}, v{4+2*(r&1)}\n v_dot2_f32_bf16 v{5+2*(r&1)}, v{x}, v{x}, v{5+2*(r&1)}")
    a("""s_nop 3
    v_add_f32 v4, v4, v6
    v_add_f32 v5, v5, v7""")
    for qp in ("[1,0,3,2]", "[2,3,0,1]"):
        for v in (4, 5): a(f"v_add_f32_dpp v{v}, v{v}, v{v} quad_perm:{qp} row_mask:0xf bank_mask:0xf")
    ln_scalars(a, 4, 5)
    a(f"""v_and_b32 v6, 1, v1
    v_cmp_eq_u32 vcc, 1, v6
    v_cndmask_b32 v4, v4, v5, vcc
    v_min_u32 v4, -2, v4
    v_and_b32 v5, 60, v1
    v_lshl_add_u32 v5, v6, 9, v5
    s_lshl_b32 s3, {sW}, 6
    s_add_u32 s3, s3, s35
    s_barrier
    s_mov_b32 exec_lo, 0x33333333
    s_mov_b32 exec_hi, 0x33333333
    buffer_store_dword v4, v5, {WSR}, s3 offen sc1
    {MALL}""")
    a(wo_touch)
    if WE:
        for k in range(8): a(wo_early(k))
    a(f"""v_mov_b32 v9, 0
    s_cmp_lg_u32 {sW}, 3
    s_cbranch_scc1 L_HOP""")
    clr_check("L_CLRH")

    a("L_HOP:")
    a.stamp(4); a.stamp(3, 2)
    RPD = 56
    srd(a, 8, P_WO, 819200)
    a(f"""s_and_b32 s31, {sW}, 1
    s_mul_i32 s31, s31, 1280
    s_lshl_b32 s3, {sW}, 2
    s_add_u32 s3, s3, s59
    v_mov_b32 v6, s3
    s_mov_b32 s101, s59
    v_mov_b32 v7, 1""")
    def dma_wo(p):
        if OPT.get("nowo"): return
        kh, q = p // 5, p % 5
        if q < 4: v, so, hs = bWO0, (4*kh + q) * 80 * 1280, 8 * 1280
        else:     v, so, hs = bWO1, kh * 320 * 1280, 40 * 1280
        zs = 20 * 1280 if q < 4 else 80 * 1280
        for z in range(4):
            for h in range(2):
                a(f"""s_add_u32 m0, s31, {WOL + p*10240 + 640*h + 2560*z}
                s_mov_b32 s3, {so + hs*h + zs*z}
                buffer_load_dwordx4 v{v}, s[8:11], s3 offen lds""")
    WO2 = 10
    WA = OPT.get("wa", 2); WP = OPT.get("wp", 1)
    a(f"s_cmp_ge_u32 {sW}, 6\n s_cbranch_scc0 L_DR\n {M40}")
    PB0 = 4*WE
    for p in range(PB0, PB0 + WA): dma_wo(p)
    a(f"{MALL}\n s_waitcnt vmcnt({8*WA})\n s_branch L_DR2\n L_DR:\n s_waitcnt vmcnt(0)\n L_DR2:")
    a.stamp(4, 2)
    a(f"""s_barrier
    s_cmp_lg_u32 {sW}, 0
    s_cbranch_scc1 L_NOF1
    s_mov_b64 exec, 1
    buffer_store_dword v7, v6, {WSR}, 0 offen sc1
    {MALL}
    L_NOF1:
    s_lshr_b32 s4, {sW}, 1
    {M40}""")
    a.stamp(5, 2)
    w0 = 10 - 3*WP
    for pr in range(3):
        a(f"s_cmp_lg_u32 s4, {pr}\n s_cbranch_scc1 L_WP{pr}")
        for p in range(w0 + pr*WP, w0 + (pr + 1)*WP): dma_wo(p)
        a(f"s_branch L_WPD\n L_WP{pr}:")
    for p in range(PB0 + WA, w0): dma_wo(p)
    a(f"L_WPD:\n {MALL}")
    a.stamp(6, 2)
    def gu_loads(L, vg):
        if OPT.get("nogu"): return
        a(f"""s_cmp_lg_u32 {sHI}, {OPT.get("guh", 0)}
        s_cbranch_scc1 {L}
        s_cmp_ge_u32 {sROLE}, 32
        s_cbranch_scc1 {L}
        s_cmp_ge_u32 {sLO}, 2
        s_cselect_b32 s4, s{P_U}, s{P_G}
        s_cselect_b32 s5, s{P_U+1}, s{P_G+1}
        s_and_b32 s3, {sLO}, 1
        s_mul_i32 s3, s3, {40*3456}
        v_add_u32 v4, s3, v{vg}""")
        for i in range(5):
            a(f"global_load_dwordx4 {q4(RPD+4*i)}, v4, s[4:5] nt")
            if i < 4: a(f"v_add_u32 v4, {8*3456}, v4")
        a(f"{L}:")
    Q0, Q1 = 16, 20
    POOL = 24
    MK = 88; O = 96
    a(f"""v_and_b32 v2, 31, v0
    v_lshrrev_b32 v3, 5, v1
    s_mul_i32 s3, {sHP}, {64*T32}
    s_lshl_b32 s4, {sRB}, 2
    s_add_u32 s5, s4, {sLO}
    s_mul_i32 s5, s5, {T32}
    s_add_u32 s5, s5, s3
    v_lshl_add_u32 v4, v2, 4, s5
    s_mul_i32 s5, {sHI}, 1536
    v_lshl_add_u32 v5, v3, 9, v4
    v_add_u32 v80, s5, v5
    s_lshl_b32 s5, {sHI}, 3
    v_add_u32 v81, s5, v4
    v_mov_b32 v{Q1}, 0
    v_mov_b32 v{Q1+1}, 0
    s_sub_u32 s4, s4, 8
    s_mul_i32 s4, s4, {T32}
    s_mul_i32 s5, s71, 10240
    s_add_u32 s4, s4, s5
    v_lshl_add_u32 v82, v1, 4, s4
    s_mul_i32 s6, s70, 30720
    s_add_u32 s71, s5, s6
    s_add_u32 s71, s71, {KL}
    s_mul_i32 s6, s70, {V_OFF - K_OFF}
    s_add_u32 s3, s3, s6
    s_add_u32 s3, s3, {K_OFF}
    s_add_u32 s4, s{P_WS}, s3
    s_addc_u32 s5, s{P_WS+1}, 0""")
    srd(a, 12, 4, 64*T32)
    kappa(a, 4, 2, 5)
    a(f"""s_mul_i32 s3, {sLO}, {T32}
    s_add_u32 s3, s3, {KL}
    s_mul_i32 s4, {sHI}, 1536
    s_add_u32 s4, s4, s3
    v_lshlrev_b32 v5, 4, v4
    v_lshl_add_u32 v{vK0}, v3, 9, v5
    v_add_u32 v{vK0}, s4, v{vK0}
    s_lshl_b32 s4, {sHI}, 3
    s_add_u32 s4, s4, s3
    s_add_u32 s4, s4, 1024
    v_add_u32 v{vK1}, s4, v5
    v_cmp_gt_u32 vcc, 20, v2
    v_cndmask_b32 v5, 0, v5, vcc
    v_mul_u32_u24 v6, 640, v3
    s_mul_i32 s4, {sHI}, 320
    s_add_u32 s4, s4, s3
    s_add_u32 s4, s4, 30720
    v_add3_u32 v{vV}, v5, v6, s4
    v_lshlrev_b32 v4, 3, v3
    v_sub_u32 v4, v2, v4
    v_mov_b32 v5, 0xffff
    v_mov_b32 v6, 0xffff0000""")
    MS = 32
    for r in range(16): a(f"v_cmp_gt_i32 s[{MS+2*r}:{MS+1+2*r}], {(r&7) + 16*(r>>3)}, v4")
    for i in range(8):
        a(f"""v_cndmask_b32 v7, 0, v5, s[{MS+4*i}:{MS+1+4*i}]
        v_cndmask_b32 v8, 0, v6, s[{MS+2+4*i}:{MS+3+4*i}]
        v_or_b32 v{MK+i}, v7, v8""")
    FS = [128, 144, 160]
    FK = [176, 182, 188]
    FV = [POOL, POOL+8, POOL+16]; FV0 = POOL + 24
    FP = [200, 208]
    for r in range(32): a(f"v_mov_b32 v{POOL+r}, 0x3f803f80")
    a(f"""s_lshl_b32 s3, {sRB}, 2
    s_add_u32 s3, s3, {sLO}
    s_sub_i32 s30, 8, s3              ; n_invalid
    s_mov_b32 s28, 0xfffff
    s_mov_b32 s29, 0xfffff""")
    XR, WR, WRS, F2V = 224, 234, 224, 244
    FH = OPT.get('fh', 0)
    LW = 3 if FH else 7
    vXA_, vROW = 84, 85
    def early_loads(L):
        a(f"""v_and_b32 v4, 15, v0
        v_bfe_u32 v5, v0, 4, 2
        s_lshl_b32 s3, {sRB2}, 6
        s_lshl_b32 s4, {sLO}, 4
        s_add_u32 s3, s3, s4
        v_add_u32 v4, s3, v4
        v_mul_u32_u24 v4, 1280, v4
        v_mul_u32_u24 v5, 40, v5
        s_mul_i32 s3, {sCS}, 160
        v_add_u32 v5, s3, v5
        v_add_u32 v4, v5, v4
        s_cmp_lg_u32 {sHI}, {FH}
        s_cbranch_scc1 {L}_H
        global_load_dwordx4 {q4(XR)}, v4, s[{P_X}:{P_X+1}]
        global_load_dwordx4 {q4(XR+4)}, v4, s[{P_X}:{P_X+1}] offset:16
        global_load_dwordx2 {q2(XR+8)}, v4, s[{P_X}:{P_X+1}] offset:32
        global_load_dwordx4 {q4(WR)}, v5, s[{P_WR}:{P_WR+1}]
        global_load_dwordx4 {q4(WR+4)}, v5, s[{P_WR}:{P_WR+1}] offset:16
        global_load_dwordx2 {q2(WR+8)}, v5, s[{P_WR}:{P_WR+1}] offset:32
        s_branch {L}_D
        {L}_H:
        v_lshlrev_b32 v4, 2, v1""")
        for i in range(5): a(f"global_load_dword v{WRS+i}, v4, s[{P_WR}:{P_WR+1}] offset:{256*i}")
        a(f"{L}_D:")
    if OPT.get("elb", 1) == 0: early_loads("L_EL")
    a.stamp(7, 2)
    PSL = OPT.get("psl", 2)
    a(f"""s_cmp_ge_u32 {sW}, 6
    s_cbranch_scc1 L_WOH
    s_mov_b64 exec, 15""")
    spin_head(a, "L_F1POLL")
    a(f"""buffer_load_dword v4, v{vF1A}, {WSR}, 0 offen sc1
    s_waitcnt vmcnt(0)
    v_cmp_ne_u32 s[6:7], 1, v4
    s_and_b64 vcc, s[6:7], 3""")
    spin_tail(a, "L_F1POLL", PSL)
    a(MALL)
    a.stamp(5); a.stamp(8, 2)
    for i in range(10):
        if i % 4 == 0:
            a(f"s_add_u32 m0, s71, {1024*i}\n v_add_u32 v4, {1024*i}, v82")
        a(f"buffer_load_dwordx4 v4, s[12:15], 0 offen offset:{1024*(i % 4)} sc1 lds")
    a(f"s_cmp_eq_u32 s6, 0\n s_cbranch_scc1 L_QPOLL_OK")
    a(f"""L_WOH:
    s_mov_b64 exec, 12""")
    spin_head(a, "L_QPOLL")
    a(f"""buffer_load_dword v4, v{vF1A}, {WSR}, 0 offen sc1
    s_waitcnt vmcnt(0)
    v_cmp_ne_u32 vcc, 1, v4""")
    spin_tail(a, "L_QPOLL", PSL)
    a(f"""{MALL}
    buffer_load_dwordx4 {q4(Q0)}, v80, {WSR}, 0 offen sc1
    s_mov_b32 exec_hi, 0
    buffer_load_dwordx2 {q2(Q1)}, v81, {WSR}, 0 offen offset:1024 sc1
    {MALL}""")
    a.stamp(6); a.stamp(9, 2)
    a("s_waitcnt vmcnt(0)\n s_barrier")
    a.stamp(7); a.stamp(1, 4); a.stamp(10, 2)
    def kread(r, t): return f"ds_read_b128 {q4(r)}, v{vK0} offset:{T32*t}\n ds_read_b64 {q2(r+4)}, v{vK1} offset:{T32*t}"
    def vread(r, t, chk=True):
        m = f"s_cmp_gt_i32 s30, {t}\n s_cselect_b64 exec, -1, s[28:29]" if chk else "s_mov_b64 exec, s[28:29]"
        return f"""{m}
        ds_read_b128 {q4(r)}, v{vV} offset:{T32*t}
        ds_read_b128 {q4(r+4)}, v{vV} offset:{T32*t+1280}
        {MALL}"""
    def s1(s, k): return f"v_mfma_f32_32x32x16_bf16 {r16(s)}, {q4(k)}, {q4(Q0)}, 0"
    def s2(s, k): return f"v_mfma_f32_32x32x8_bf16 {r16(s)}, {q2(k+4)}, {q2(Q1)}, {r16(s)}"
    def pvm(v, p, first=False): return f"v_mfma_f32_32x32x16_bf16 {r16(O)}, {q4(v)}, {q4(p)}, {'0' if first else r16(O)}"
    seq = [8, 0, 7, 6, 5, 4, 3, 2, 1]
    vseq = [8, 7, 6, 5, 4, 3, 2, 1]
    def vbuf(t): return FV0 if t == 0 else FV[vseq.index(t) % 3]
    for n in range(3): a(kread(FK[n], seq[n]))
    def down_touch(vt):
        if OPT.get("notd"): return
        a(f"""s_and_b32 s3, s2, 7
        s_cmp_lt_u32 s3, 5
        s_cselect_b32 s3, 108, 0
        v_subrev_u32 v4, {128 + 256*OPT.get('guh', 0)}, v0
        v_cmp_gt_u32 vcc, s3, v4""")
        masked_load(a, 9, vt, P_D, "L_TD")
    def wo_slot(k):
        p = WO2 + k
        if p < 10:
            a(f"s_cmp_ge_u32 {sW}, 2\n s_cbranch_scc1 L_WS{k}\n {M40}"); dma_wo(p); a(f"{MALL}\n L_WS{k}:")
    a(vread(vbuf(8), 8, False)); a(vread(FV0, 0)); a(vread(vbuf(7), 7))
    a(f"s_waitcnt lgkmcnt(10)\n {s1(FS[0], FK[0])}\n {s2(FS[0], FK[0])}")
    a(f"s_waitcnt lgkmcnt(8)\n {s1(FS[1], FK[1])}\n {s2(FS[1], FK[1])}")
    a(kread(FK[0], seq[3]))
    if OPT.get('elb', 1) == 1: early_loads('L_EL')
    gu_loads('L_GUB', bGU); down_touch(TD)
    wo_slot(0)
    a(f"s_waitcnt lgkmcnt(8)\n {s1(FS[2], FK[2])}\n {s2(FS[2], FK[2])}")
    a(kread(FK[1], seq[4]))
    wo_slot(1)
    for r in range(16): a(f"v_cndmask_b32 v{FS[1]+r}, v{FS[0]+r}, v{FS[1]+r}, s[{MS+2*r}:{MS+1+2*r}]")
    def tile_body(s, p, extra):
        for gq in range(4):
            for r in range(4*gq, 4*gq + 4): a(f"v_exp_f32 v{s+r}, v{s+r}")
            if gq < len(extra) and extra[gq]: a(extra[gq])
            if gq > 0:
                for k in (2*gq - 2, 2*gq - 1): a(f"v_cvt_pk_bf16_f32 v{p+k}, v{s+2*k}, v{s+2*k+1}")
        for k in (6, 7): a(f"v_cvt_pk_bf16_f32 v{p+k}, v{s+2*k}, v{s+2*k+1}")
    tile_body(FS[1], FP[0], [f"s_waitcnt lgkmcnt(2)\n {s1(FS[0], FK[0])}", s2(FS[0], FK[0]), kread(FK[2], seq[5]) + "\n" + vread(vbuf(6), 6), None])
    for k in range(8): a(f"v_and_b32 v{216+k}, v{MK+k}, v{FP[0]+k}")
    for k in range(8): a(f"v_xor_b32 v{FP[0]+k}, v{216+k}, v{FP[0]+k}")
    a(pvm(FV0, 216, True)); wo_slot(2); a(pvm(FV0+4, 220))
    def repack(vm):
        if OPT.get("nogu") or OPT.get("norp"): return
        a(f"""s_cmp_ge_u32 {sROLE}, 32
        s_cbranch_scc1 L_NORP
        s_cmp_lg_u32 {sHI}, {OPT.get("guh", 0)}
        s_cbranch_scc1 L_NORP
        s_mul_i32 s3, {sROLE}, {8*20480}
        s_mul_i32 s4, {sCS}, 1280
        s_add_u32 s3, s3, s4
        s_lshr_b32 s4, {sLO}, 1
        s_mul_i32 s4, s4, 10240
        s_add_u32 s3, s3, s4
        s_and_b32 s4, {sLO}, 1
        s_mul_i32 s4, s4, 640
        s_add_u32 s3, s3, s4
        s_add_u32 s3, s3, {RP_OFF}
        v_lshrrev_b32 v8, 3, v1
        v_mul_u32_u24 v8, {20480 - 128}, v8
        v_lshl_add_u32 v8, v1, 4, v8
        v_and_b32 v4, 7, v1
        v_lshrrev_b32 v5, 3, v1
        v_lshl_add_u32 v4, v4, 3, v5
        v_lshlrev_b32 v4, 2, v4
        s_waitcnt vmcnt({vm}) lgkmcnt(0)""")
        for r in range(20):
            a(f"ds_bpermute_b32 v{RPD+r}, v4, v{RPD+r}")
        a("s_waitcnt lgkmcnt(0)")
        for i in range(5): a(f"buffer_store_dwordx4 {q4(RPD+4*i)}, v8, {WSR}, s3 offen offset:{128*i} sc1")
        a("L_NORP:")

    prevP, prevT = FP[0], 8
    for n in range(2, 9):
        t = seq[n]; p = FP[(n - 1) % 2]
        ex = [None]*4
        ex[0] = f"s_waitcnt lgkmcnt(0)\n {pvm(vbuf(prevT), prevP)}"
        ex[1] = pvm(vbuf(prevT) + 4, prevP + 4)
        if n + 2 <= 8:
            nb = (n + 2) % 3
            ex[2] = s1(FS[nb], FK[nb])
            ex[3] = s2(FS[nb], FK[nb])
        tile_body(FS[n % 3], p, ex)
        post = []
        if n + 4 <= 8: post.append(kread(FK[(n + 4) % 3], seq[n + 4]))
        if t - 2 >= 1: post.append(vread(vbuf(t - 2), t - 2))
        for x in post: a(x)
        wo_slot(n + 1)
        if n == OPT.get("rpn", 8): repack(0)
        prevP, prevT = p, t
    a(f"s_waitcnt lgkmcnt(0)\n {pvm(vbuf(prevT), prevP)}\n {pvm(vbuf(prevT)+4, prevP+4)}")
    a(f"""v_max3_f32 v4, abs(v{O}), abs(v{O+1}), abs(v{O+2})
    v_max3_f32 v5, abs(v{O+3}), abs(v{O+4}), abs(v{O+5})
    v_max3_f32 v4, abs(v{O+6}), abs(v{O+7}), v4
    v_max3_f32 v5, abs(v{O+8}), abs(v{O+9}), v5
    v_max3_f32 v4, abs(v{O+10}), abs(v{O+11}), v4
    v_max_f32 v4, v4, v5
    v_cmp_nlt_f32 vcc, {f2u(2.0**-60):#x}, v{O+12}
    s_mov_b64 s[4:5], vcc
    v_cmp_ngt_f32 vcc, {f2u(2.0**60):#x}, v{O+12}
    s_or_b64 s[4:5], s[4:5], vcc
    v_cmp_ngt_f32 vcc, {f2u(2.0**120):#x}, v4
    s_or_b64 vcc, s[4:5], vcc""")
    if OPT.get("forcefb"): a("s_branch L_FALLBACK")
    a(f"""s_cbranch_vccnz L_FALLBACK
    L_BDONE:
    v_rcp_f32 v4, v{O+12}""")
    for r in range(0, 12, 2): a(f"v_pk_mul_f32 {q2(O+r)}, {q2(O+r)}, v[4:5] op_sel_hi:[1,0]")
    for k in range(6): a(f"v_cvt_pk_bf16_f32 v{24+k}, v{O+2*k}, v{O+2*k+1}")
    a(f"""buffer_store_dwordx4 v[24:27], v{vO0}, {WSR}, 0 offen sc1
    s_mov_b32 exec_hi, 0
    buffer_store_dwordx2 v[28:29], v{vO1}, {WSR}, 0 offen sc1
    {MALL}""")
    a.stamp(8)
    if OPT.get("rpn", 8) == 9: repack(2)
    a.stamp(2, 4)

    XU, WU = 176, 196
    OF, CAC, CWF = 32, 72, 92
    NB = 4
    HP = 216
    OUTP = 228
    OFL = ['', 'nt', 'sc1', 'sc0'][OPT.get('ofl', 0)]
    a(f"""v_mov_b32 v22, v{bF2A}
    v_and_b32 v2, 15, v0
    v_lshrrev_b32 v3, 4, v1
    s_lshl_b32 s3, {sRB2}, 6
    s_lshl_b32 s4, {sLO}, 4
    s_add_u32 s3, s3, s4
    v_add_u32 v20, s3, v2             ; row
    v_mul_u32_u24 v4, 1280, v20
    v_mul_u32_u24 v17, 40, v3
    s_mul_i32 s3, {sCS}, 160
    v_add3_u32 v16, v17, v4, s3""")
    rho(a, 21, 5)
    a(f"""v_mul_u32_u24 v4, 160, v21
    v_and_b32 v5, 3, v1
    v_lshlrev_b32 v21, 5, v21
    v_lshl_add_u32 v21, v5, 3, v21
    v_mul_u32_u24 v5, 40, v5
    s_mul_i32 s3, {sHI}, 51200
    v_add3_u32 v18, v4, v5, s3
    s_lshl_b32 s3, {sRB2}, 1
    s_lshr_b32 s4, {sLO}, 1
    s_add_u32 s3, s3, s4
    s_mul_i32 s3, s3, 40960
    s_add_u32 s3, s3, {O_OFF}
    s_lshl_b32 s4, {sHI}, 14
    s_add_u32 s29, s3, s4
    s_lshl_b32 s4, {sHI}, 12
    s_add_u32 s33, s3, s4
    s_add_u32 s33, s33, 32768
    s_and_b32 s4, {sLO}, 1
    s_lshl_b32 s4, s4, 4
    v_add_u32 v4, s4, v2
    v_lshlrev_b32 v5, 9, v3
    v_lshl_add_u32 v15, v4, 4, v5
    v_lshl_add_u32 v14, v4, 3, v5
    s_lshl_b32 s30, {sROLE}, 3
    s_add_u32 s30, s30, {sCS}
    s_lshl_b32 s32, {sW}, 10
    s_mul_i32 s3, {sLO}, 5120
    s_add_u32 s34, s3, {RED}
    v_lshl_add_u32 v13, v1, 4, s34
    s_lshl_b32 s3, {sRB2}, 13
    s_lshl_b32 s4, {sLO}, 8
    s_add_u32 s3, s3, s4
    s_add_u32 s37, s3, {PART_OFF}
    v_lshlrev_b32 v10, 4, v2""")
    ROT = OPT.get("crot", 1)
    for ks in range(8):
        a(f"""s_add_u32 s3, {sCS}, {ks}
        s_and_b32 s3, s3, 7""" if ROT else f"s_mov_b32 s3, {ks}")
        a(f"""s_lshl_b32 s4, s3, 11
        s_add_u32 s{40+ks}, s29, s4
        s_mul_i32 s4, s3, 5120
        v_add_u32 v{246+ks}, s4, v18""")
    a("s_waitcnt vmcnt(2)")
    a(f"s_cmp_lg_u32 {sHI}, {FH}\n s_cbranch_scc1 L_CB")
    for i in range(10):
        a(f"""v_lshlrev_b32 v{XU+2*i}, 16, v{XR+i}
        v_and_b32 v{XU+2*i+1}, 0xffff0000, v{XR+i}
        v_lshlrev_b32 v{WU+2*i}, 16, v{WR+i}
        v_and_b32 v{WU+2*i+1}, 0xffff0000, v{WR+i}""")
    a(f"""L_CB:
    v_mov_b32 v4, s101
    v_mov_b32 v5, 1
    s_waitcnt vmcnt(0)""")
    a.stamp(3, 4)
    a(f"""s_barrier
    s_cmp_lg_u32 {sW}, 0
    s_cbranch_scc1 L_NOF2
    s_mov_b64 exec, 1
    buffer_store_dword v5, v4, {WSR}, 0 offen offset:32 sc1
    {MALL}
    L_NOF2:""")
    WD1 = OPT.get("wd1", 3)
    def wd_lds(j): return [GW, GW + 8192, 153600][j] if j < WD1 else WOL + 8192*j
    def wd_dma(js, L):
        a(f"""s_sub_u32 s3, s30, 256
        s_lshl_b32 s3, s3, 5
        v_lshrrev_b32 v5, 1, v1""")
        kappa(a, 6, 5, 4)
        a(f"""v_mul_u32_u24 v6, 1280, v6
        v_and_b32 v4, 1, v1
        v_lshl_add_u32 v6, v4, 4, v6
        v_add_u32 v6, s3, v6
        s_mul_i32 s4, {sW}, {32*1280}""")
        srd(a, 12, P_D, 2211840)
        for j in js:
            a(f"""s_add_u32 m0, s32, {wd_lds(j)}
            s_add_u32 s3, s4, {8*32*1280*j}
            buffer_load_dwordx4 v6, s[12:15], s3 offen lds""")
    a(f"s_cmp_lt_u32 {sROLE}, 32\n s_cbranch_scc1 L_NWD1")
    wd_dma(range(WD1), "1")
    a("L_NWD1:")
    def c_rd(ks):
        b = ks % NB
        ad, off = (246 + ks, 0) if ks < 8 else (18, ks * 5120)
        return [f"ds_read_b64_tr_b16 {q2(CWF+20*b+4*t+2*h)}, v{ad} offset:{off + h*1280 + 8*t}" for t in range(5) for h in range(2)]
    a.stamp(9); a.stamp(4, 4)
    PRE = OPT.get("cpre", 2)
    def o_load(ks):
        if ks < 8: return f"buffer_load_dwordx4 {q4(OF+4*ks)}, v15, {WSR}, s{40+ks} offen sc1"
        return "\n".join(f"buffer_load_dwordx2 {q2(OF+4*ks+2*hh)}, v14, {WSR}, s33 offen offset:{(ks-8)*2048 + hh*256} sc1" for hh in range(2))
    for ks in range(NB):
        for r in c_rd(ks): a(r)
    a("s_mov_b64 exec, 0xff")
    spin_head(a, "L_F2POLL")
    a(f"""buffer_load_dword v4, v22, {WSR}, 0 offen sc1
    s_waitcnt vmcnt(0)
    v_cmp_ne_u32 vcc, 1, v4""")
    spin_tail(a, "L_F2POLL", OPT.get("psl2", 2))
    a(MALL)
    a.stamp(8, 4)
    for ks in range(10): a(o_load(ks))
    for ks in range(10):
        lg = 0 if ks in (0, 9) else 10
        a(f"s_waitcnt vmcnt({11-ks if ks < 8 else 2*(9-ks)}) lgkmcnt({lg})")
        R = c_rd(ks - 1 + NB) if (ks >= 1 and ks - 1 + NB < 10) else []
        for t in range(5):
            for x in R[2*t:2*t+2]: a(x)
            a(mm16(CAC+4*t, CWF+20*(ks % NB)+4*t, OF+4*ks, ks == 0))
    a.stamp(5, 4)
    if PROF and OPT.get("pg") == 4: a("s_mov_b32 s99, s3")
    a(f"s_cmp_lg_u32 {sHI}, {FH}\n s_cbranch_scc0 L_CLO")
    for t in range(5): a(f"ds_write_b128 v13, {q4(CAC+4*t)} offset:{1024*t}")
    a(f"""v_mov_b32 v24, 0
    v_mov_b32 v25, 0
    v_mov_b32 v26, 0
    v_mov_b32 v27, 0
    s_waitcnt lgkmcnt(0)
    s_barrier
    v_and_b32 v12, 255, v0
    v_lshlrev_b32 v12, 4, v12
    v_add_u32 v14, {SB}, v12
    ds_write_b128 v14, v[24:27] offset:{SURV}
    ds_write_b128 v14, v[24:27] offset:{SURV+4096}
    v_mov_b32 v13, {SB+CNT}
    ds_write_b32 v13, v24
    v_lshl_add_u32 v11, v3, 10, v10
    s_add_u32 s38, s37, 4096
    s_add_u32 s39, s37, {PARTB}
    s_add_u32 s35, s37, {PARTB + 4096}
    v_mov_b32 v8, 0""")
    for i in range(5):
        a(f"""v_lshlrev_b32 v5, 16, v{WRS+i}
        v_and_b32 v6, 0xffff0000, v{WRS+i}
        v_add_f32 v8, v8, v5
        v_add_f32 v8, v8, v6""")
    dpp_reduce(a, "v_add_f32", [8])
    a(f"""v_readlane_b32 s36, v8, 63
    v_sub_u32 v23, 2047, v20
    v_lshlrev_b32 v19, 2, v20
    s_lshl_b32 s3, {sLO}, 8
    s_add_u32 s3, s3, {SB+LMR}
    v_lshl_add_u32 v9, v2, 4, s3
    s_mov_b32 s4, {KEY_OFF}
    s_mov_b32 s5, {KEY_OFF+4096}
    s_mov_b32 s6, 0xfffff800
    s_barrier""")
    a.stamp(1, 3)
    spin_head(a, "L_PPOLL")
    a(f"""buffer_load_dwordx4 v[64:67], v11, {WSR}, s37 offen sc1
    buffer_load_dwordx4 v[68:71], v11, {WSR}, s38 offen sc1
    s_waitcnt vmcnt(0)
    v_max3_u32 v5, v64, v65, v66
    v_max3_u32 v6, v68, v69, v70
    v_max_u32 v5, v5, v6
    v_cmp_eq_u32 vcc, -1, v5
    s_cbranch_vccz L_PPOLL_OK
    s_and_b32 s28, s3, {OPT.get('pbm', 15)}
    s_cmp_lg_u32 s28, 0
    s_cbranch_scc1 L_PPOLL
    buffer_load_dwordx4 v[64:67], v11, {WSR}, s39 offen sc1
    buffer_load_dwordx4 v[68:71], v11, {WSR}, s35 offen sc1
    s_waitcnt vmcnt(0)
    v_max3_u32 v5, v64, v65, v66
    v_max3_u32 v6, v68, v69, v70
    v_max_u32 v5, v5, v6
    v_cmp_eq_u32 vcc, -1, v5
    s_cbranch_vccnz L_PPOLL
    L_PPOLL_OK:""")
    a.stamp(2, 3)
    a("v_add_f32 v40, v64, v68\n v_add_f32 v41, v65, v69\n v_add_f32 v42, v66, v70")
    xg_sum(a, [40, 41, 42], [44, 45, 46])
    ln_scalars(a, 40, 41)
    a(f"""v_fma_f32 v42, -v40, s36, v42
    v_mul_f32 v42, v42, v41
    v_ashrrev_i32 v4, 31, v42
    v_or_b32 v4, 0x80000000, v4
    v_xor_b32 v4, v4, v42
    v_and_or_b32 v4, v4, s6, v23
    v_min_u32 v43, -2, v4
    v_min_u32 v42, -2, v42
    s_mov_b64 exec, 0xffff
    s_cmp_lg_u32 {sCS}, 0
    s_cbranch_scc1 L_NOKEY
    buffer_store_dword v43, v19, {WSR}, s4 offen sc1
    L_NOKEY:
    ds_write_b128 v9, v[40:43]
    {MALL}
    s_waitcnt lgkmcnt(0)
    s_barrier""")
    if OPT.get("ksleep", 4): a(f"s_sleep {OPT.get('ksleep', 4)}")
    a.stamp(3, 3)
    spin_head(a, "L_KPOLL")
    a(f"""buffer_load_dwordx4 v[40:43], v12, {WSR}, s4 offen sc1
    buffer_load_dwordx4 v[44:47], v12, {WSR}, s5 offen sc1
    s_waitcnt vmcnt(0)
    v_max_u32 v4, v40, v41
    v_max_u32 v5, v44, v45
    v_max3_u32 v4, v4, v42, v43
    v_max3_u32 v5, v5, v46, v47
    v_max_u32 v6, v4, v5
    v_cmp_eq_u32 vcc, -1, v6""")
    spin_tail(a, "L_KPOLL")
    a.stamp(4, 3)
    dpp_reduce(a, "v_max_u32", [4, 5])
    a(f"""s_lshl_b32 s3, {sLO}, 3
    s_add_u32 s3, s3, {SB+WMAX}
    v_mov_b32 v6, s3
    s_mov_b32 exec_lo, 0
    s_mov_b32 exec_hi, 0x80000000
    ds_write_b64 v6, v[4:5]
    {MALL}
    v_mov_b32 v5, {SB+WMAX}
    v_mov_b32 v6, 1
    s_mov_b32 s3, {SB}
    s_waitcnt lgkmcnt(0)
    s_barrier
    ds_read_b128 v[48:51], v5
    ds_read_b128 v[52:55], v5 offset:16
    s_waitcnt lgkmcnt(0)
    v_min3_u32 v48, v48, v49, v50
    v_min3_u32 v52, v52, v53, v54
    v_min3_u32 v48, v48, v51, v55
    v_min_u32 v48, v48, v52""")
    a.stamp(5, 3)
    for i in range(8): a(f"v_cmp_ge_u32 s[{40+2*i}:{41+2*i}], v{40+i}, v48")
    for i in range(8): a(f"s_mov_b64 exec, s[{40+2*i}:{41+2*i}]\n ds_add_rtn_u32 v{50+i}, v13, v6")
    a(f"{MALL}\n s_waitcnt lgkmcnt(0)")
    for i in range(8): a(f"v_lshl_add_u32 v{50+i}, v{50+i}, 2, s3")
    for i in range(8): a(f"s_mov_b64 exec, s[{40+2*i}:{41+2*i}]\n ds_write_b32 v{50+i}, v{40+i} offset:{SURV}")
    a(f"{MALL}\n s_branch L_RANK")
    a(f"""L_CLO:
    s_lshl_b32 s4, {sCS}, 10
    s_add_u32 s35, s4, s37
    s_add_u32 s38, s35, {PARTB}
    v_mul_u32_u24 v5, 160, v2
    v_add3_u32 v12, v5, v17, s34
    v_lshlrev_b32 v7, 4, v1
    v_mov_b32 v47, 0
    s_barrier""")
    a.stamp(6, 4)
    for t in range(5): a(f"ds_read_b128 {q4(CWF+4*t)}, v13 offset:{1024*t}")
    E = range(0, 20, 2)
    for e in E:
        if e % 4 == 0: a(f"s_waitcnt lgkmcnt({4 - e//4})")
        a(f"v_pk_add_f32 {q2(CAC+e)}, {q2(CAC+e)}, {q2(CWF+e)}")
    for e in E: a(f"v_cvt_pk_bf16_f32 v{HP+e//2}, v{CAC+e}, v{CAC+e+1}")
    for e in E: a(f"v_lshlrev_b32 v{CAC+e}, 16, v{HP+e//2}\n v_and_b32 v{CAC+e+1}, 0xffff0000, v{HP+e//2}")
    for e in E: a(f"v_pk_add_f32 {q2(CAC+e)}, {q2(CAC+e)}, {q2(XU+e)}")
    for e in E: a(f"v_cvt_pk_bf16_f32 v{HP+e//2}, v{CAC+e}, v{CAC+e+1}")
    for e in E: a(f"v_lshlrev_b32 v{CAC+e}, 16, v{HP+e//2}\n v_and_b32 v{CAC+e+1}, 0xffff0000, v{HP+e//2}")
    a(f"""v_pk_add_f32 v[40:41], {q2(CAC)}, {q2(CAC+2)}
    v_pk_mul_f32 v[42:43], {q2(CAC)}, {q2(CAC)}
    v_pk_mul_f32 v[48:49], {q2(CAC)}, {q2(WU)}""")
    for e in range(2, 20, 2):
        if e > 2: a(f"v_pk_add_f32 v[40:41], v[40:41], {q2(CAC+e)}")
        a(f"v_pk_fma_f32 v[42:43], {q2(CAC+e)}, {q2(CAC+e)}, v[42:43]\n v_pk_fma_f32 v[48:49], {q2(CAC+e)}, {q2(WU+e)}, v[48:49]")
    a("v_add_f32 v44, v40, v41\n v_add_f32 v45, v42, v43\n v_add_f32 v46, v48, v49")
    xg_sum(a, [44, 45, 46], [40, 41, 42])
    a(f"""v_min_u32 v44, -2, v44
    v_min_u32 v45, -2, v45
    v_min_u32 v46, -2, v46
    s_mov_b64 exec, 0xffff
    buffer_store_dwordx4 v[44:47], v10, {WSR}, s35 offen
    buffer_store_dwordx4 v[44:47], v10, {WSR}, s38 offen sc1
    {MALL}
    s_barrier""")
    a.stamp(10); a.stamp(7, 4)
    for e in E: a(f"v_min_u32 v{HP+e//2}, -2, v{HP+e//2}")
    for k in range(5): a(f"ds_write_b64 v12, {q2(HP+2*k)} offset:{8*k}")
    a(f"""s_lshl_b32 s3, {sLO}, 8
    s_add_u32 s3, s3, {SB+LMR}
    v_lshl_add_u32 v9, v2, 4, s3
    s_barrier
    ds_read_b64 v[40:41], v9
    ds_read_b32 v22, v9 offset:12
    s_cmp_ge_u32 {sROLE}, 32
    s_cbranch_scc1 L_WDD
    s_mul_i32 s3, s30, 20480
    s_mul_i32 s4, {sLO}, 5120
    s_add_u32 s3, s3, s4
    s_add_u32 s3, s3, {RP_OFF}
    s_add_u32 m0, s4, {GW}
    s_nop 0""")
    for j in range(4): a(f"buffer_load_dwordx4 v7, {WSR}, s3 offen offset:{1024*j} sc1 lds")
    a(f"""s_add_u32 m0, s4, {GW + 4096}
    s_add_u32 s3, s3, 4096
    buffer_load_dwordx4 v7, {WSR}, s3 offen sc1 lds
    """)
    a("L_WDD:\n s_waitcnt lgkmcnt(0)")
    for e in E: a(f"v_pk_add_f32 {q2(XU+e)}, {q2(CAC+e)}, v[40:41] op_sel_hi:[1,0] neg_lo:[0,1] neg_hi:[0,1]")
    for e in E: a(f"v_cvt_pk_bf16_f32 v{OUTP+e//2}, v{XU+e}, v{XU+e+1}")
    for e in E: a(f"v_lshlrev_b32 v{XU+e}, 16, v{OUTP+e//2}\n v_and_b32 v{XU+e+1}, 0xffff0000, v{OUTP+e//2}")
    for e in E: a(f"v_pk_mul_f32 {q2(XU+e)}, {q2(XU+e)}, v[40:41] op_sel:[0,1] op_sel_hi:[1,1]")
    for e in E: a(f"v_cvt_pk_bf16_f32 v{OUTP+e//2}, v{XU+e}, v{XU+e+1}")
    for e in E: a(f"v_min_u32 v{OUTP+e//2}, -2, v{OUTP+e//2}")
    for k in range(5): a(f"ds_write_b64 v12, {q2(OUTP+2*k)} offset:{2560 + 8*k}")
    for e in E: a(f"v_lshlrev_b32 v{XU+e}, 16, v{OUTP+e//2}\n v_and_b32 v{XU+e+1}, 0xffff0000, v{OUTP+e//2}")
    for e in E: a(f"v_pk_add_f32 {q2(XU+e)}, {q2(XU+e)}, {q2(CAC+e)}")
    for e in E: a(f"v_cvt_pk_bf16_f32 v{OUTP+e//2}, v{XU+e}, v{XU+e+1}")
    srd(a, 8, P_OUT, 2621440)
    a(f"""v_mov_b32 v5, {SB+WMAX}
    s_waitcnt vmcnt(0)
    s_barrier
    ds_read_b128 v[48:51], v5
    ds_read_b128 v[52:55], v5 offset:16
    s_waitcnt lgkmcnt(0)
    v_min3_u32 v48, v48, v49, v50
    v_min3_u32 v52, v52, v53, v54
    v_min3_u32 v48, v48, v51, v55
    v_min_u32 v48, v48, v52
    v_cmp_ge_u32 s[58:59], v22, v48
    s_andn2_b64 exec, exec, s[58:59]
    s_cbranch_execz L_OUT1
    buffer_store_dwordx4 {q4(OUTP)}, v16, s[8:11], 0 offen {OFL}
    buffer_store_dwordx4 {q4(OUTP+4)}, v16, s[8:11], 0 offen offset:16 {OFL}
    buffer_store_dwordx2 {q2(OUTP+8)}, v16, s[8:11], 0 offen offset:32 {OFL}
    L_OUT1:
    {MALL}""")
    a(f"""L_RANK:
    v_mov_b32 v13, {SB+CNT}
    v_and_b32 v5, 31, v1
    v_lshlrev_b32 v5, 2, v5
    v_add_u32 v5, {SB+SURV}, v5
    v_lshrrev_b32 v8, 5, v1
    v_lshlrev_b32 v8, 6, v8
    v_add_u32 v11, {SB+SURV}, v8
    s_lshl_b32 s3, {sW}, 5
    s_add_u32 s28, s3, {SB+SELL}
    v_and_b32 v9, 7, v1
    v_lshl_add_u32 v9, v9, 2, s28
    v_bfe_u32 v4, v1, 4, 1
    v_mul_u32_u24 v6, 2560, v4
    v_lshlrev_b32 v7, 4, v2
    v_sub_u32 v60, {RED + 2560}, v6
    v_add_u32 v60, v60, v7
    s_lshl_b32 s3, {sCS}, 11
    s_lshl_b32 s4, {sW}, 8
    s_add_u32 s3, s3, s4
    s_add_u32 s3, s3, {XS_OFF}
    v_lshl_add_u32 v61, v4, 14, v7
    v_add_u32 v61, s3, v61
    s_mov_b32 s5, 0
    s_waitcnt lgkmcnt(0)
    s_barrier""")
    a.stamp(6, 3)
    a(f"""ds_read_b32 v4, v13
    L_OUTER:
    ds_read_b32 v6, v5
    v_mov_b32 v7, 0
    v_mov_b32 v8, v11
    s_mov_b32 s6, 0
    L_INNER:""")
    for k in range(4): a(f"ds_read_b128 {q4(44+4*k)}, v8 offset:{16*k}")
    a("""v_add_u32 v8, 128, v8
    s_add_u32 s6, s6, 32
    s_waitcnt lgkmcnt(0)
    v_readfirstlane_b32 s4, v4""")
    for h in range(2):
        for i in range(8): a(f"v_cmp_gt_u32 s[{40+2*i}:{41+2*i}], v{44+8*h+i}, v6")
        for i in range(8): a(f"v_addc_co_u32 v7, vcc, 0, v7, s[{40+2*i}:{41+2*i}]")
    a(f"""s_cmp_lt_u32 s6, s4
    s_cbranch_scc1 L_INNER
    v_mov_b32 v8, v7
    v_and_b32 v6, 0x7ff, v6
    v_sub_u32 v6, 2047, v6
    v_permlane32_swap_b32 v7, v8
    v_add_u32 v7, v7, v8
    v_cmp_gt_u32 vcc, 8, v7
    v_lshl_add_u32 v7, v7, 2, s28
    s_and_saveexec_b64 s[6:7], vcc
    ds_write_b32 v7, v6
    {MALL}
    v_add_u32 v5, 128, v5
    s_add_u32 s5, s5, 32
    s_cmp_lt_u32 s5, s4
    s_cbranch_scc1 L_OUTER
    ds_read_b32 v23, v9
    v_mov_b32 v5, s28
    ds_read_b128 v[44:47], v5
    ds_read_b128 v[48:51], v5 offset:16
    s_waitcnt lgkmcnt(2)
    v_readlane_b32 s4, v23, {sW}
    s_lshr_b32 s5, s4, 6
    s_cmp_lg_u32 s5, {sRB2}
    s_cbranch_scc1 L_NOPUB
    s_bfe_u32 s5, s4, 0x20004
    s_mul_i32 s5, s5, 5120
    s_and_b32 s6, s4, 15
    s_mul_i32 s6, s6, 160
    s_add_u32 s5, s5, s6
    v_add_u32 v4, s5, v60
    s_and_b32 s4, s4, 63
    s_lshl_b32 s4, s4, 4
    s_add_u32 s4, s4, {SB+LMR}
    v_mov_b32 v5, s4
    v_cmp_eq_u32 vcc, 26, v1
    v_cndmask_b32 v4, v4, v5, vcc
    s_mov_b64 exec, 0x07ff03ff
    ds_read_b128 v[52:55], v4
    s_waitcnt lgkmcnt(0)
    buffer_store_dwordx4 v[52:55], v61, {WSR}, 0 offen sc1
    {MALL}
    L_NOPUB:""")
    a.stamp(11); a.stamp(7, 3)
    srd(a, 8, P_OUT, 2621440)
    def out_store(L):
        a(f"s_cmp_lg_u32 {sHI}, {FH}\n s_cbranch_scc1 {L}\n s_mov_b64 exec, s[58:59]\n s_cbranch_execz {L}")
        for i in range(8): a(f"v_cmp_ne_u32 vcc, v{44+i}, v20\n s_and_b64 exec, exec, vcc")
        a(f"""s_cbranch_execz {L}
        buffer_store_dwordx4 {q4(OUTP)}, v16, s[8:11], 0 offen {OFL}
        buffer_store_dwordx4 {q4(OUTP+4)}, v16, s[8:11], 0 offen offset:16 {OFL}
        buffer_store_dwordx2 {q2(OUTP+8)}, v16, s[8:11], 0 offen offset:32 {OFL}""")
        if OPT.get("wbl2"): a("s_waitcnt vmcnt(0)\n buffer_wbl2 sc1")
        a(f"{L}:\n {MALL}")
    a(f"s_cmp_ge_u32 {sROLE}, 32\n s_cbranch_scc1 L_E")
    HF, DW, MRV = 64, 80, 24
    a(f"""v_lshlrev_b32 v12, 8, v2
    v_lshl_add_u32 v12, v3, 4, v12
    s_lshl_b32 s4, {sW}, 11
    s_add_u32 s4, s4, {XS_OFF}
    s_mul_i32 s5, {sW}, 1280
    s_add_u32 s5, s5, {GW}
    v_bfe_u32 v4, v1, 2, 2
    v_lshl_add_u32 v4, v3, 3, v4
    v_lshlrev_b32 v4, 4, v4
    v_and_b32 v5, 1, v1
    v_lshl_add_u32 v4, v5, 3, v4
    v_bfe_u32 v5, v1, 1, 1
    v_mul_u32_u24 v5, 10240, v5
    v_add3_u32 v11, v4, v5, s5
    s_add_u32 s3, s32, {DRED}
    v_lshl_add_u32 v10, v1, 4, s3""")
    for ks in range(3):
        for h in range(2): a(f"ds_read_b64_tr_b16 {q2(DW+4*ks+2*h)}, v11 offset:{ks*512 + h*64}")
    for r in range(12): a(f"v_mov_b32 v{HF+r}, 0")
    a("v_cmp_gt_u32 vcc, 32, v1\n s_waitcnt lgkmcnt(0)")
    for r in range(4): a(f"v_cndmask_b32 v{DW+8+r}, 0, v{DW+8+r}, vcc")
    out_store("L_OUTD")
    if OPT.get("xsleep", 4): a(f"s_sleep {OPT.get('xsleep', 4)}")
    spin_head(a, "L_RPOLL")
    a(f"""s_mov_b32 exec_lo, 0x00ff00ff
    s_mov_b32 exec_hi, 0x00ff00ff
    buffer_load_dwordx4 {q4(HF)}, v12, {WSR}, s4 offen sc1
    buffer_load_dwordx4 {q4(HF+4)}, v12, {WSR}, s4 offen offset:64 sc1
    s_mov_b32 exec_hi, 0
    buffer_load_dwordx4 {q4(HF+8)}, v12, {WSR}, s4 offen offset:128 sc1
    {MALL}
    s_waitcnt vmcnt(0)
    v_max3_u32 v5, v{HF}, v{HF+1}, v{HF+2}
    v_max3_u32 v6, v{HF+3}, v{HF+4}, v{HF+5}
    v_max3_u32 v5, v5, v{HF+6}, v{HF+7}
    v_max3_u32 v6, v6, v{HF+8}, v{HF+9}
    v_max3_u32 v5, v5, v{HF+10}, v{HF+11}
    v_max_u32 v5, v5, v6
    v_cmp_eq_u32 vcc, -1, v5""")
    spin_tail(a, "L_RPOLL", 1)
    a.stamp(8, 3)
    for ks in range(3): a(mm16(28, DW+4*ks, HF+4*ks, ks == 0))
    a(f"""ds_write_b128 v10, v[28:31]
    s_waitcnt lgkmcnt(0)
    s_barrier""")
    a.stamp(9, 3)
    a(f"""s_cmp_lg_u32 {sW}, {LW}
    s_cbranch_scc1 L_END
    v_subrev_u32 v10, {LW*1024}, v10""")
    oth = [w for w in range(8) if w != LW]
    for n, w in enumerate(oth): a(f"ds_read_b128 {q4(64+4*n)}, v10 offset:{1024*w}")
    for n in range(7):
        a(f"s_waitcnt lgkmcnt({6-n})")
        for r in (0, 2): a(f"v_pk_add_f32 {q2(28+r)}, {q2(28+r)}, {q2(64+4*n+r)}")
    a("""v_cvt_pk_bf16_f32 v32, v28, v29
    v_cvt_pk_bf16_f32 v33, v30, v31
    v_mov_b32 v34, v32
    v_mov_b32 v35, v33
    v_permlane32_swap_b32 v32, v34
    v_permlane32_swap_b32 v33, v35""")
    a.stamp(10, 3)
    for k in range(2):
        a(f"""v_lshlrev_b32 v{40+2*k}, 16, v{32+k}
        v_and_b32 v{41+2*k}, 0xffff0000, v{32+k}
        v_lshlrev_b32 v{44+2*k}, 16, v{34+k}
        v_and_b32 v{45+2*k}, 0xffff0000, v{34+k}""")
    for r in range(4): a(f"v_mul_f32 v{48+r}, 0xbfb8aa3b, v{40+r}")
    for r in range(4): a(f"v_exp_f32 v{48+r}, v{48+r}")
    for r in range(4): a(f"v_add_f32 v{48+r}, 1.0, v{48+r}")
    for r in range(4): a(f"v_rcp_f32 v{48+r}, v{48+r}")
    for r in range(4): a(f"v_mul_f32 v{40+r}, v{40+r}, v{48+r}")
    a("v_cvt_pk_bf16_f32 v32, v40, v41\n v_cvt_pk_bf16_f32 v33, v42, v43")
    for k in range(2):
        a(f"v_lshlrev_b32 v{40+2*k}, 16, v{32+k}\n v_and_b32 v{41+2*k}, 0xffff0000, v{32+k}")
    for r in (0, 2): a(f"v_pk_mul_f32 {q2(40+r)}, {q2(40+r)}, {q2(44+r)}")
    a(f"""v_cvt_pk_bf16_f32 v32, v40, v41
    v_cvt_pk_bf16_f32 v33, v42, v43
    v_min_u32 v32, -2, v32
    v_min_u32 v33, -2, v33
    v_mov_b32 v34, v32
    v_mov_b32 v35, v33
    v_lshlrev_b32 v4, 4, v2
    v_permlane16_swap_b32 v32, v34
    v_permlane16_swap_b32 v33, v35
    s_lshl_b32 s3, s30, 7
    s_add_u32 s3, s3, {ACT_OFF}
    s_mov_b64 exec, 0xff
    buffer_store_dwordx4 v[32:35], v4, {WSR}, s3 offen sc1
    s_branch L_END""")
    AF, EW = 64, 96
    a("L_E:")
    wd_dma(range(WD1, 7), "2")
    a(f"""s_sub_u32 s30, s30, 256
    s_mul_i32 s4, s30, 52
    s_lshr_b32 s4, s4, 8              ; cg/5
    s_lshl_b32 s5, s4, 11
    s_add_u32 s35, s5, {XS_OFF + 16384 + 160}
    s_mul_i32 s4, s4, {2048 - 160}
    s_lshl_b32 s30, s30, 5
    s_add_u32 s4, s4, s30
    s_add_u32 s33, s4, {XS_OFF}
    s_add_u32 s34, s33, 16384
    v_and_b32 v17, 7, v2
    v_lshlrev_b32 v17, 8, v17
    v_lshl_add_u32 v19, v3, 3, v17
    v_add_u32 v11, s32, v21
    v_add_u32 v14, {GW}, v11
    s_waitcnt lgkmcnt(0)""")
    out_store("L_OUTE")
    srd(a, 12, P_WS, ACT_OFF + 27648)
    a(f"""v_and_b32 v4, 7, v2
    v_lshlrev_b32 v12, 4, v4
    v_lshl_add_u32 v12, v3, 7, v12
    s_lshl_b32 s4, {sW}, 9
    s_add_u32 s4, s4, {ACT_OFF}
    v_mul_u32_u24 v13, 1280, v23
    v_lshl_add_u32 v13, v3, 3, v13
    v_add_u32 v13, s30, v13
    s_add_u32 s3, s32, {DRED}
    v_lshl_add_u32 v10, v1, 4, s3
    s_cmp_lg_u32 {sW}, {LW}
    s_cbranch_scc1 L_ENOH""")
    spin_head(a, "L_HPOLL")
    a(f"""buffer_load_dwordx2 v[136:137], v19, {WSR}, s33 offen sc1
    buffer_load_dwordx2 v[130:131], v19, {WSR}, s34 offen sc1
    buffer_load_dword v134, v17, {WSR}, s35 offen offset:8 sc1
    s_waitcnt vmcnt(0)
    v_max3_u32 v5, v130, v131, v134
    v_max3_u32 v5, v5, v136, v137
    v_cmp_eq_u32 vcc, -1, v5""")
    spin_tail(a, "L_HPOLL")
    rb16(a, 134)
    a("v_mul_f32 v15, 0xbfb8aa3b, v134\n v_exp_f32 v15, v15\n v_add_f32 v15, 1.0, v15\n v_rcp_f32 v15, v15")
    rb16(a, 15)
    a("L_ENOH:\n s_waitcnt vmcnt(0)")
    for j in range(7):
        b, o = (14, wd_lds(j) - GW) if j < WD1 else (11, wd_lds(j))
        for h in range(2): a(f"ds_read_b64_tr_b16 {q2(EW+4*j+2*h)}, v{b} offset:{o + h*256}")
    if OPT.get('hint', 0):
        spin_head(a, "L_AHINT")
        a(f"""buffer_load_dwordx4 {q4(AF)}, v12, s[12:15], s4 offen sc1
    s_waitcnt vmcnt(0)
    v_cmp_eq_u32 vcc, -1, v{AF}""")
        spin_tail(a, "L_AHINT")
    if OPT.get('asleep', 0): a(f"s_sleep {OPT['asleep']}")
    spin_head(a, "L_APOLL")
    for j in range(7): a(f"s_add_u32 s5, s4, {4096*j}\n buffer_load_dwordx4 {q4(AF+4*j)}, v12, s[12:15], s5 offen sc1")
    a(f"s_waitcnt vmcnt(0) lgkmcnt(0)")
    for j in range(7):
        a(mm16(24, EW+4*j, AF+4*j, j == 0))
        if j == 0: a(f"v_max_u32 v5, v{AF}, v{AF+1}\n v_max3_u32 v5, v5, v{AF+2}, v{AF+3}")
        else: a(f"v_max3_u32 v5, v5, v{AF+4*j}, v{AF+4*j+1}\n v_max3_u32 v5, v5, v{AF+4*j+2}, v{AF+4*j+3}")
    a("v_cmp_eq_u32 vcc, -1, v5")
    spin_tail(a, "L_APOLL", 1)
    a.stamp(11, 3)
    a(f"""ds_write_b128 v10, v[24:27]
    s_waitcnt lgkmcnt(0)
    s_barrier
    s_cmp_lg_u32 {sW}, {LW}
    s_cbranch_scc1 L_END
    v_subrev_u32 v10, {LW*1024}, v10""")
    for n, w in enumerate(oth): a(f"ds_read_b128 {q4(32+4*n)}, v10 offset:{1024*w}")
    for w in range(7):
        a(f"s_waitcnt lgkmcnt({6-w})")
        for r in (0, 2): a(f"v_pk_add_f32 {q2(24+r)}, {q2(24+r)}, {q2(32+4*w+r)}")
    a("v_cvt_pk_bf16_f32 v28, v24, v25\n v_cvt_pk_bf16_f32 v29, v26, v27")
    for k in range(2):
        a(f"v_lshlrev_b32 v{24+2*k}, 16, v{28+k}\n v_and_b32 v{25+2*k}, 0xffff0000, v{28+k}")
    for r in range(4): a(f"v_mul_f32 v{24+r}, v{24+r}, v15")
    a("v_cvt_pk_bf16_f32 v24, v24, v25\n v_cvt_pk_bf16_f32 v25, v26, v27")
    for k in range(2):
        add_pairs(a, 24 + k, 24 + k, 136 + k, 4, 5, 6)
        add_pairs(a, 24 + k, 24 + k, 130 + k, 4, 5, 6)
    a("""s_mov_b32 exec_lo, 0x00ff00ff
    s_mov_b32 exec_hi, 0x00ff00ff
    buffer_store_dwordx2 v[24:25], v13, s[8:11], 0 offen
    L_END:""")
    if PROF:
        a(f"{MALL}\n s_waitcnt vmcnt(0)")
        a.stamp(12)
        for i in range(16): a(f"v_mov_b32 v{8+i}, s{88+i}" if i < 13 else f"v_mov_b32 v{8+i}, 0")
        a(f"""s_lshl_b32 s3, s2, 9
        s_add_u32 s3, s3, {PROF_OFF}
        s_lshl_b32 s4, {sW}, 6
        s_add_u32 s3, s3, s4
        v_mov_b32 v4, s3
        s_mov_b64 exec, 1""")
        for i in range(4): a(f"global_store_dwordx4 v4, {q4(8+4*i)}, s[{P_WS}:{P_WS+1}] offset:{16*i}")
        if "ampj" in OPT:
            i, j = OPT["ampi"], OPT["ampj"]
            a(f"""s_sub_u32 s4, s{88+j}, s{88+i}
            s_mul_i32 s4, s4, 10
            s_min_u32 s4, s4, 100000
            s_cmp_lg_u32 {sW}, 0
            s_cbranch_scc1 L_EXIT
            L_AMP:
            s_memrealtime s[6:7]
            s_waitcnt lgkmcnt(0)
            s_sub_u32 s5, s6, s100
            s_cmp_lt_u32 s5, s4
            s_cbranch_scc1 L_AMP""")
    a("L_EXIT:\n s_endpgm")

    a("L_FALLBACK:\n s_waitcnt vmcnt(0)\n s_nop 7\n s_nop 7")
    S0 = 112
    def S(i): return S0 + 16*i
    KF = 24
    for n in range(9):
        a(kread(KF + 6*n, n))
        if n % 4 == 3: a("s_waitcnt lgkmcnt(0)")
    a("s_waitcnt lgkmcnt(0)")
    for n in range(9): a(f"{s1(S(n), KF+6*n)}\n {s2(S(n), KF+6*n)}")
    for r in range(8): a(f"v_mov_b32 v{78+r}, 0x3f803f80")
    a("s_nop 7\n s_nop 7")
    for i in range(8):
        a(f"s_cmp_gt_i32 s30, {i}\n s_cbranch_scc0 L_VALID")
        for r in range(16): a(f"v_mov_b32 v{S(i)+r}, 0xff800000")
    a("L_VALID:")
    for r in range(16): a(f"v_cndmask_b32 v{S(0)+r}, v{S(8)+r}, v{S(0)+r}, s[{MS+2*r}:{MS+1+2*r}]")
    a(f"v_max_f32 v4, v{S(0)}, v{S(0)+1}")
    for k in range(1, 64): a(f"v_max3_f32 v4, v{S0+2*k}, v{S0+2*k+1}, v4")
    a("""v_mov_b32 v5, v4
    v_permlane32_swap_b32 v4, v5
    v_max_f32 v4, v4, v5""")
    for i in range(8):
        s = S(i)
        for r in range(16): a(f"v_sub_f32 v{s+r}, v{s+r}, v4")
        for r in range(16): a(f"v_exp_f32 v{s+r}, v{s+r}")
        for k in range(8): a(f"v_cvt_pk_bf16_f32 v{s+k}, v{s+2*k}, v{s+2*k+1}")
    s = S(0)
    for k in range(8): a(f"v_and_b32 v{s+8+k}, v{MK+k}, v{s+k}")
    for k in range(8): a(f"v_xor_b32 v{S(8)+k}, v{s+8+k}, v{s+k}")
    for t in range(9):
        p = s + 8 if t == 0 else S(t)
        a(vread(78, t, False))
        a(f"s_waitcnt lgkmcnt(0)\n {pvm(78, p, t == 0)}\n {pvm(82, p + 4)}\n s_nop 7")
    a("s_nop 7")
    early_loads("L_EL2")
    if OPT.get("rpn", 8) == 9: gu_loads("L_GU2", bGU)
    a("s_branch L_BDONE")

def build():
    a = PAsm()
    kernel(a)
    name = NAME + "_kernel"
    L = ["; @launch grid=(256,1,1) block=(512,1,1) lds=163840",
         '.amdgcn_target "amdgcn-amd-amdhsa--gfx950"', ".text", f".globl {name}", ".p2align 8",
         f".type {name},@function", f"{name}:", a.render(), "CODE_END:", "s_endpgm",
         '.section .rodata,"a"', ".p2align 6", f".amdhsa_kernel {name}", "  .amdhsa_next_free_vgpr 256",
         "  .amdhsa_next_free_sgpr 102", "  .amdhsa_accum_offset 256", "  .amdhsa_group_segment_fixed_size 0",
         "  .amdhsa_kernarg_size 88", "  .amdhsa_user_sgpr_count 2", "  .amdhsa_user_sgpr_kernarg_segment_ptr 1",
         "  .amdhsa_system_sgpr_workgroup_id_x 1", ".end_amdhsa_kernel"]
    return "\n".join(L) + "\n"

def check_ws(w, im, cmp, tof):
    import numpy as np
    qkv = im["qkv"]
    q = tof(w[Q_OFF:Q_OFF + 16*64*T32].view(np.uint16)).reshape(16, 64, 5, 32, 8).transpose(1, 3, 0, 2, 4).reshape(2048, 640)
    cmp("q", q, qkv[:, :640] * (20 ** -0.5) * 1.4426950408889634)
    k = tof(w[K_OFF:K_OFF + 16*64*T32].view(np.uint16)).reshape(16, 64, 5, 32, 8).transpose(1, 3, 0, 2, 4).reshape(2048, 640)
    cmp("k", k, qkv[:, 640:1280])
    v = tof(w[V_OFF:V_OFF + 16*64*T32].view(np.uint16)).reshape(16, 256, 40, 8).transpose(1, 3, 0, 2).reshape(2048, 640)
    cmp("v", v, qkv[:, 1280:])
    ob = w[O_OFF:O_OFF + 64*40960].reshape(64, 40960)
    om = tof(np.ascontiguousarray(ob[:, :32768]).view(np.uint16)).reshape(64, 32, 2, 32, 8).transpose(0, 3, 1, 2, 4).reshape(2048, 32, 16)
    oq = tof(np.ascontiguousarray(ob[:, 32768:]).view(np.uint16)).reshape(64, 32, 32, 4).transpose(0, 2, 1, 3).reshape(2048, 32, 4)
    o = np.concatenate([om, oq], axis=2).reshape(2048, 640)
    cmp("o", o, im["o"])

if __name__ == "__main__":
    PROF = "prof" in sys.argv
    if "cyc" in sys.argv: TIMER = "s_memtime"
    for x in sys.argv[2:]:
        if "=" in x:
            k, v = x.split("="); OPT[k] = int(v)
    out = sys.argv[1] if len(sys.argv) > 1 else f"cdna_kernels/{NAME}.s"
    txt = build()
    open(out, "w").write(txt)
    print("wrote", out, len(txt))
```

```python
import sys, struct
from asmlib import Asm

NAME = "sequential_preLN__sliding_block__moe_arch_mod__prompt"
Q_OFF = 0; K_OFF = 0x280000; V_OFF = 0x500000; O_OFF = 0x780000
PART_OFF = 0xC00000; EP_OFF = 0xC80000; PARTB = 0x40000; F1_OFF = 0xD00000; XS_OFF = 0xD08000; KEY_OFF = 0xD10000; ACT_OFF = 0xD14000
ST_OFF = 0xD1C000
RP_OFF = 0xD20000
WS_SIZE = RP_OFF + 27*8*20480
PROF_OFF = 0x1200000
T32 = 2560
PROF = False
TIMER = "s_memrealtime"
SPIN_MAX = 1 << 18
SLEEP = 2
OPT = {}

def f2u(x): return struct.unpack("<I", struct.pack("<f", x))[0]
QSCALE = f2u((20 ** -0.5) * 1.4426950408889634)
EPS = f2u(1e-5); INV640 = f2u(1.0 / 640)
P_X, P_WQKV, P_WO, P_WR, P_G, P_U, P_D, P_OUT, P_DBG, P_WS = 64, 66, 68, 72, 74, 76, 78, 80, 82, 84
WSR = "s[16:19]"
sW, sRB, sHP, sRB2, sCS, sROLE, sLO, sHI = "s20", "s21", "s22", "s23", "s24", "s25", "s26", "s27"

SCR = 94208
KL = 102400; VL = 133120; WOL = 0
GW = KL; SB = 122880; RED = VL
SURV = 0; WMAX = 8320; CNT = 8352; SELL = 8384; LMR = 8704
DRED = 65536

class PAsm(Asm):
    def stamp(self, i, grp=0):
        if i not in (0, 12) and grp != OPT.get("pg", 0): return
        if PROF:
            assert i < 13
            self(f"{TIMER} s[86:87]\n s_waitcnt lgkmcnt(0)\n s_mov_b32 s{88+i}, s86")

def srd(a, d, lo, size):
    a(f"""s_mov_b32 s{d}, s{lo}
    s_and_b32 s{d+1}, s{lo+1}, 0xffff
    s_mov_b32 s{d+2}, {size}
    s_mov_b32 s{d+3}, 0x00020000""")
def rb16(a, v): a(f"v_cvt_pk_bf16_f32 v{v}, v{v}, v{v}\n v_lshlrev_b32 v{v}, 16, v{v}")
def ln_scalars(a, s1, s2):
    a(f"""v_mul_f32 v{s1}, {INV640:#x}, v{s1}
    v_mul_f32 v{s2}, {INV640:#x}, v{s2}
    v_fma_f32 v{s2}, -v{s1}, v{s1}, v{s2}
    v_max_f32 v{s2}, 0, v{s2}
    v_cvt_pk_bf16_f32 v{s2}, v{s1}, v{s2}
    v_lshlrev_b32 v{s1}, 16, v{s2}
    v_and_b32 v{s2}, 0xffff0000, v{s2}
    v_add_f32 v{s2}, {EPS:#x}, v{s2}""")
    rb16(a, s2)
    a(f"v_sqrt_f32 v{s2}, v{s2}")
    rb16(a, s2)
    a(f"v_rcp_f32 v{s2}, v{s2}")
def dpp_reduce(a, op, regs):
    for sh in (1, 2, 4, 8):
        for v in regs: a(f"{op}_dpp v{v}, v{v}, v{v} row_shr:{sh} row_mask:0xf bank_mask:0xf")
    for v in regs: a(f"{op}_dpp v{v}, v{v}, v{v} row_bcast:15 row_mask:0xa bank_mask:0xf")
    for v in regs: a(f"{op}_dpp v{v}, v{v}, v{v} row_bcast:31 row_mask:0xc bank_mask:0xf")
def xg_sum(a, regs, tmps):
    for x, t in zip(regs, tmps): a(f"v_mov_b32 v{t}, v{x}")
    for x, t in zip(regs, tmps): a(f"v_permlane16_swap_b32 v{x}, v{t}")
    for x, t in zip(regs, tmps): a(f"v_add_f32 v{x}, v{x}, v{t}")
    for x, t in zip(regs, tmps): a(f"v_mov_b32 v{t}, v{x}")
    for x, t in zip(regs, tmps): a(f"v_permlane32_swap_b32 v{x}, v{t}")
    for x, t in zip(regs, tmps): a(f"v_add_f32 v{x}, v{x}, v{t}")
def norm_pair(a, d, x, m, rs, t0, t1):
    a(f"""v_lshlrev_b32 v{t0}, 16, v{x}
    v_and_b32 v{t1}, 0xffff0000, v{x}
    v_subrev_f32 v{t0}, {m}, v{t0}
    v_subrev_f32 v{t1}, {m}, v{t1}
    v_cvt_pk_bf16_f32 v{d}, v{t0}, v{t1}
    v_lshlrev_b32 v{t0}, 16, v{d}
    v_and_b32 v{t1}, 0xffff0000, v{d}
    v_mul_f32 v{t0}, {rs}, v{t0}
    v_mul_f32 v{t1}, {rs}, v{t1}
    v_cvt_pk_bf16_f32 v{d}, v{t0}, v{t1}""")
def add_pairs(a, d, x, y, t0, t1, t2):
    a(f"""v_lshlrev_b32 v{t0}, 16, v{x}
    v_lshlrev_b32 v{t1}, 16, v{y}
    v_add_f32 v{t0}, v{t0}, v{t1}
    v_and_b32 v{t1}, 0xffff0000, v{x}
    v_and_b32 v{t2}, 0xffff0000, v{y}
    v_add_f32 v{t1}, v{t1}, v{t2}
    v_cvt_pk_bf16_f32 v{d}, v{t0}, v{t1}""")
def q2(r): return f"v[{r}:{r+1}]"
def q4(r): return f"v[{r}:{r+3}]"
def r16(x): return f"v[{x}:{x+15}]"
M40 = "s_mov_b32 exec_hi, 0xff"
MALL = "s_mov_b64 exec, -1"
def spin_head(a, L):
    a(f"s_mov_b32 s3, 0\n {L}:\n s_add_u32 s3, s3, 1\n s_cmp_gt_u32 s3, {SPIN_MAX}\n s_cbranch_scc1 L_END")
def spin_tail(a, L, sl=None):
    a(f"s_cbranch_vccz {L}_OK\n s_sleep {SLEEP if sl is None else sl}\n s_branch {L}\n {L}_OK:")
def div_lane(a, q, r, src, d):
    magic = (65536 + d - 1) // d
    a(f"""v_mul_u32_u24 v{q}, {magic}, v{src}
    v_lshrrev_b32 v{q}, 16, v{q}
    v_mul_u32_u24 v{r}, {d}, v{q}
    v_sub_u32 v{r}, v{src}, v{r}""")
def kappa(a, d, s, t):
    a(f"""v_and_b32 v{d}, 0x13, v{s}
    v_and_b32 v{t}, 4, v{s}
    v_lshl_or_b32 v{d}, v{t}, 1, v{d}
    v_and_b32 v{t}, 8, v{s}
    v_lshrrev_b32 v{t}, 1, v{t}
    v_or_b32 v{d}, v{d}, v{t}""")
def rho(a, d, t):
    a(f"""v_bfe_u32 v{d}, v1, 2, 2
    v_and_b32 v{t}, 1, v3
    v_lshl_or_b32 v{d}, v{t}, 2, v{d}
    v_lshrrev_b32 v{t}, 1, v3
    v_lshl_or_b32 v{d}, v{t}, 4, v{d}""")
def masked_load(a, dst, voff, ptr, L, fl=""):
    a(f"""s_and_saveexec_b64 s[6:7], vcc
    s_cbranch_execz {L}
    global_load_dword v{dst}, v{voff}, s[{ptr}:{ptr+1}] {fl}
    {L}:
    {MALL}""")
def mm16(d, x, y, first): return f"v_mfma_f32_16x16x32_bf16 {q4(d)}, {q4(x)}, {q4(y)}, {'0' if first else q4(d)}"

def kernel(a):
    vXD, vWD = 112, 113
    vAS = 114
    NEG = 76; ONES = 132
    FR = 136
    ACC = 184
    CS = 216
    PK = 220
    TMP = FR
    vST = 236
    vCW, vCR, vSR = 238, 239, 241
    STV = 244
    TD, vK0, vK1, vV, vO0, vO1 = 10, 11, 12, 13, 14, 15
    bWO0, bWO1, bGU, bF2A, vF1A, vHC, vTO = 22, 23, 86, 87, 85, 84, 83
    sGR, sCT = "s60", "s61"
    ROTX = [f"s_add_u32 s4, s4, {sCT}\n s_add_u32 s4, s4, {sGR}",
            f"s_add_u32 s4, s4, {sCT}",
            f"s_add_u32 s4, s4, {sCT}\n s_and_b32 s5, {sGR}, 1\n s_add_u32 s4, s4, s5",
            f"s_and_b32 s5, {sCT}, 6\n s_add_u32 s4, s4, s5",
            f"s_and_b32 s5, s2, 1\n s_lshl_b32 s5, s5, 1\n s_add_u32 s4, s4, s5\n s_add_u32 s4, s4, {sCT}\n s_add_u32 s4, s4, {sGR}",
            ][OPT.get("rotx", 0)]
    def slot(c): return (c % 5) * 32768
    if PROF:
        for i in range(13): a(f"s_mov_b32 s{88+i}, 0")
    a.stamp(0)
    a(f"""s_load_dwordx16 s[64:79], s[0:1], 0
    s_load_dwordx4 s[80:83], s[0:1], 64
    s_load_dwordx2 s[84:85], s[0:1], 80
    s_getpc_b64 s[4:5]
    CODE_START:
    s_cmp_ge_u32 s2, 256
    s_cbranch_scc1 L_EXIT
    s_lshr_b32 s63, s2, 3             ; idx
    s_lshl_b32 s3, s63, 7
    v_lshl_add_u32 v4, v0, 12, s3
    v_cmp_gt_u32 vcc, CODE_END-CODE_START, v4""")
    masked_load(a, 250, 4, 4, "L_NOPF")
    a(f"""v_and_b32 v1, 63, v0
    v_lshrrev_b32 v4, 6, v0
    v_and_b32 v2, 15, v0
    v_readfirstlane_b32 {sW}, v4
    v_lshrrev_b32 v3, 4, v1
    s_and_b32 s3, s63, 3
    s_lshr_b32 {sCT}, s63, 2
    s_bfe_u32 {sGR}, s2, 0x20001
    s_mul_i32 s4, s3, 5
    s_lshr_b32 s4, s4, 1
    {ROTX}
    s_cmp_ge_u32 s4, 10
    s_cselect_b32 s5, 10, 0
    s_sub_u32 s4, s4, s5              ; rot
    s_lshl_b32 {sGR}, {sGR}, 2
    s_add_u32 {sGR}, {sGR}, s3
    s_and_b32 s3, s2, 1
    s_lshl_b32 s3, s3, 3
    s_add_u32 {sCT}, {sCT}, s3
    s_lshl_b32 s28, s4, 7
    s_mul_i32 s29, s4, 245760
    s_lshl_b32 s3, {sGR}, 7
    s_lshl_b32 s4, {sW}, 3
    s_add_u32 s3, s3, s4
    v_lshrrev_b32 v4, 3, v1
    v_add_u32 v4, s3, v4
    v_mul_u32_u24 v4, 1280, v4
    s_and_b32 s3, {sW}, 1
    s_lshl_b32 s3, s3, 2
    v_or_b32 v5, s3, v3
    v_and_b32 v6, 7, v1
    v_xor_b32 v5, v5, v6
    v_lshl_add_u32 v{vXD}, v5, 4, v4
    s_lshl_b32 s3, {sW}, 2
    v_add_u32 v4, s3, v3
    v_mul_u32_u24 v4, 3840, v4
    s_lshl_b32 s3, {sW}, 1
    s_and_b32 s3, s3, 4
    v_or_b32 v5, s3, v3
    v_lshlrev_b32 v5, 1, v5
    v_xor_b32 v5, v5, v2
    v_lshl_add_u32 v4, v5, 4, v4
    s_lshl_b32 s3, {sCT}, 8
    v_add_u32 v{vWD}, s3, v4
    s_lshl_b32 s30, {sW}, 10
    s_waitcnt lgkmcnt(0)""")
    a.stamp(1)
    srd(a, 8, P_X, 2621440)
    srd(a, 12, P_WQKV, 2457600)
    def dmaA(c):
        b = slot(c)
        return [f"""s_add_u32 m0, s30, {b}
        s_add_u32 s31, s28, 81920
        buffer_load_dwordx4 v{vXD}, s[8:11], s28 offen lds""",
        f"""s_add_u32 m0, s30, {b + 16384}
        s_add_u32 s39, s29, 122880
        buffer_load_dwordx4 v{vWD}, s[12:15], s29 offen lds""",
        f"""s_add_u32 m0, s30, {b + 8192}
        s_add_u32 s28, s28, 128
        buffer_load_dwordx4 v{vXD}, s[8:11], s31 offen lds""",
        f"""s_add_u32 m0, s30, {b + 16384 + 8192}
        s_add_u32 s29, s29, 245760
        buffer_load_dwordx4 v{vWD}, s[12:15], s39 offen lds
        s_cmp_ge_u32 s28, 1280
        s_cselect_b32 s28, 0, s28
        s_cselect_b32 s29, 0, s29"""]
    srd(a, 16, P_WS, WS_SIZE)
    a(f"""s_lshl_b32 s4, {sCT}, 4
    s_add_u32 s4, s4, {sGR}
    s_lshl_b32 s4, s4, 7
    s_add_u32 s59, s4, {F1_OFF}
    v_mov_b32 v{NEG}, -1
    v_mov_b32 v{NEG+1}, -1
    v_mov_b32 v{NEG+2}, -1
    v_mov_b32 v{NEG+3}, -1
    s_cmp_lg_u32 {sW}, 7
    s_cbranch_scc1 L_NOCLR
    s_lshl_b32 s3, s2, 10
    s_add_u32 s3, s3, {PART_OFF}
    v_lshl_add_u32 v6, v1, 4, s3
    buffer_store_dwordx4 {q4(NEG)}, v6, {WSR}, 0 offen sc1
    s_mov_b32 s3, {PARTB}
    buffer_store_dwordx4 {q4(NEG)}, v6, {WSR}, s3 offen sc1
    s_mov_b32 s3, {EP_OFF - PART_OFF}
    buffer_store_dwordx4 {q4(NEG)}, v6, {WSR}, s3 offen sc1
    s_mov_b32 s3, {EP_OFF - PART_OFF + 0x40000}
    buffer_store_dwordx4 {q4(NEG)}, v6, {WSR}, s3 offen sc1
    s_lshl_b32 s6, s2, 7
    s_add_u32 s5, s6, {XS_OFF - 256}
    s_add_u32 s6, s6, {ACT_OFF - 128}
    s_lshl_b32 s7, s2, 6
    s_add_u32 s7, s7, {KEY_OFF - 384}
    v_mov_b32 v6, s59
    v_mov_b32 v7, s6
    v_cmp_le_u32 vcc, 8, v1
    v_cndmask_b32 v6, v6, v7, vcc
    v_mov_b32 v7, s5
    v_cmp_le_u32 vcc, 16, v1
    v_cndmask_b32 v6, v6, v7, vcc
    v_mov_b32 v7, s7
    v_cmp_le_u32 vcc, 24, v1
    v_cndmask_b32 v6, v6, v7, vcc
    v_lshl_add_u32 v6, v1, 4, v6
    s_mov_b64 exec, 0xfffffff
    buffer_store_dwordx4 {q4(NEG)}, v6, {WSR}, 0 offen sc1
    {MALL}
    s_cmp_lg_u32 {sCT}, 15
    s_cbranch_scc1 L_NOCLR
    s_lshl_b32 s3, {sGR}, 10
    s_add_u32 s3, s3, {ST_OFF}
    v_lshl_add_u32 v6, v1, 4, s3
    buffer_store_dwordx4 {q4(NEG)}, v6, {WSR}, 0 offen sc1
    L_NOCLR:
    s_cmp_eq_u32 {sCT}, 15
    s_cbranch_scc1 L_HLD""")
    for x in dmaA(0): a(x)
    a("s_branch L_PRE\n L_HLD:")
    HX = 136
    a(f"""s_lshl_b32 s3, {sGR}, 7
    s_lshl_b32 s4, {sW}, 4
    s_add_u32 s3, s3, s4
    v_lshrrev_b32 v4, 2, v1
    v_add_u32 v4, s3, v4
    v_mul_u32_u24 v4, 1280, v4
    v_and_b32 v5, 3, v1
    v_lshl_add_u32 v{vXD}, v5, 4, v4""")
    for i in range(4): a(f"buffer_load_dwordx4 {q4(HX+4*i)}, v{vXD}, s[8:11], 0 offen offset:{64*i}")
    a("L_PRE:")
    a.stamp(1, 1)
    a(f"""s_and_b32 {sLO}, {sW}, 3
    s_lshr_b32 {sHI}, {sW}, 2
    s_and_b32 s3, s2, 7
    s_lshl_b32 {sHP}, s3, 1
    s_lshr_b32 s4, s63, 4
    s_add_u32 {sHP}, {sHP}, s4
    s_and_b32 {sRB}, s63, 15
    s_lshl_b32 {sRB2}, s3, 2
    s_lshr_b32 s5, s63, 3
    s_add_u32 {sRB2}, {sRB2}, s5
    s_and_b32 {sCS}, s63, 7
    s_min_u32 s4, s3, 5
    s_sub_u32 {sROLE}, {sRB2}, s4
    s_cmp_eq_u32 s5, 3
    s_cselect_b32 s4, s3, 7
    s_add_u32 s3, s3, 32
    s_cmp_lt_u32 s4, 5
    s_cselect_b32 {sROLE}, s3, {sROLE}
    v_lshrrev_b32 v4, 1, v2
    v_xor_b32 v4, v4, v3
    v_lshlrev_b32 v4, 4, v4
    v_lshl_add_u32 v4, v2, 7, v4
    s_lshl_b32 s3, {sHI}, 13
    v_add_u32 v{vAS}, s3, v4
    v_xor_b32 v{vAS+1}, 64, v{vAS}
    v_bfe_u32 v4, v1, 2, 2
    v_and_b32 v5, 1, v3
    v_lshl_or_b32 v5, v5, 2, v4
    v_lshl_add_u32 v4, v3, 3, v4
    v_lshlrev_b32 v4, 8, v4
    v_and_b32 v6, 3, v1
    v_lshl_add_u32 v4, v6, 3, v4
    v_add_u32 v4, 16384, v4
    s_lshl_b32 s32, {sLO}, 1
    s_add_u32 s32, s32, {sHI}
    s_xor_b32 s33, s32, 1
    v_xor_b32 v6, s32, v5
    v_lshl_add_u32 v{vAS+2}, v6, 5, v4
    v_xor_b32 v{vAS+3}, 32, v{vAS+2}""")
    for q in (1, 2):
        for i in range(4): a(f"v_add_u32 v{vAS+4*q+i}, {65536*q}, v{vAS+i}")
    for i in range(4): a(f"v_mov_b32 v{ONES+i}, 0x3f803f80")
    a(f"""    ; epilogue addresses
    s_cmp_ge_u32 {sCT}, 10
    s_cselect_b64 s[56:57], -1, 0
    v_lshlrev_b32 v6, 4, v3
    v_lshlrev_b32 v7, 2, v2
    v_cndmask_b32 v8, v6, v7, s[56:57]
    v_cndmask_b32 v9, v7, v6, s[56:57]
    s_lshl_b32 s3, s32, 6
    s_add_u32 s3, s3, {SCR+1024}
    v_add_u32 v{vCW}, s3, v7
    v_add_u32 v{vCR}, s3, v8
    v_xor_b32 v{vCR+1}, 64, v{vCR}
    s_lshl_b32 s3, {sHI}, 8
    s_add_u32 s3, s3, {SCR}
    v_add_u32 v{vSR}, s3, v9
    s_mul_i32 s3, {sCT}, 52
    s_lshr_b32 s3, s3, 8              ; section
    s_mul_i32 s4, s3, 5
    s_sub_u32 s34, {sCT}, s4          ; ct % 5
    s_mul_i32 s37, s3, {K_OFF}
    s_lshl_b32 s4, {sGR}, 2
    s_lshl_b32 s5, {sHI}, 1
    s_add_u32 s4, s4, s5
    s_mul_i32 s4, s4, {T32}
    s_add_u32 s37, s37, s4
    s_cmp_eq_u32 s3, 0
    s_cselect_b32 s36, {QSCALE:#x}, 1.0
    ; q/k: octet O = 16*(ct%5) + 2*(tile(g&1)) + (g>>1)
    v_and_b32 v4, 1, v3
    v_xor_b32 v4, s32, v4
    v_lshrrev_b32 v5, 1, v3
    v_lshl_add_u32 v4, v4, 1, v5
    s_lshl_b32 s3, s34, 4
    v_add_u32 v4, s3, v4
    v_mul_u32_u24 v6, 13108, v4
    v_lshrrev_b32 v6, 16, v6
    v_mul_u32_u24 v6, {64*T32 - 5*512}, v6
    v_lshl_add_u32 v6, v4, 9, v6
    v_lshl_add_u32 v{vST}, v2, 4, v6
    ; v: col = 128*(ct%5) + 16*tile + j ; octet = 2(g&1) + (g>>1)
    v_and_b32 v4, 1, v3
    v_lshl_add_u32 v4, v4, 1, v5
    v_mul_u32_u24 v7, 640, v4""")
    for c in range(2):
        a(f"""s_lshl_b32 s3, s34, 7
        s_lshl_b32 s4, s{32+c}, 4
        s_add_u32 s3, s3, s4
        v_add_u32 v4, s3, v2
        v_mul_u32_u24 v6, 1639, v4
        v_lshrrev_b32 v6, 16, v6
        v_mul_u32_u24 v6, {64*T32 - 640}, v6
        v_lshl_add_u32 v6, v4, 4, v6
        v_add_u32 v6, v6, v7
        v_cndmask_b32 v{vST+c}, v{vST}, v6, s[56:57]""")
    def signal(vm):
        a(f"""s_cmp_lg_u32 {sW}, 7
        s_cbranch_scc1 L_NOSIG
        s_and_b32 s3, s2, 63
        s_lshl_b32 s3, s3, 2
        v_mov_b32 v4, s3
        v_mov_b32 v5, 1
        s_waitcnt vmcnt({vm})
        s_mov_b64 exec, 1
        global_atomic_add v4, v5, s[{P_DBG}:{P_DBG+1}] sc1
        {MALL}
        L_NOSIG:""")
    if OPT.get('sige', 0): signal(4)
    a(f"s_cmp_eq_u32 {sCT}, 15\n s_cbranch_scc1 L_HLD2")
    for x in dmaA(1): a(x)
    a("s_branch L_PRE2\n L_HLD2:")
    for i in range(4, 20): a(f"buffer_load_dwordx4 {q4(HX+4*i)}, v{vXD}, s[8:11], 0 offen offset:{64*i}")
    a("L_PRE2:")
    if not OPT.get('sige', 0): signal(8)
    div_lane(a, 8, 9, 1, 10)
    a(f"""s_and_b32 s3, {sW}, 1
    s_lshl_b32 s3, s3, 2
    v_add_u32 v4, s3, v8
    v_mul_u32_u24 v4, 1280, v4
    s_mul_i32 s3, s3, 5
    s_add_u32 s3, s3, 16
    v_add_u32 v5, s3, v8
    v_mul_u32_u24 v5, 1280, v5
    s_mul_i32 s3, {sCS}, 160
    v_lshl_add_u32 v6, v9, 4, s3
    v_add_u32 v{bWO0}, v4, v6
    v_add_u32 v{bWO1}, v5, v6
    s_lshl_b32 s3, {sRB}, 2
    s_add_u32 s3, s3, {sLO}
    s_mul_i32 s3, s3, 40960
    s_add_u32 s3, s3, {O_OFF}
    s_lshl_b32 s4, {sHP}, 1
    s_add_u32 s4, s4, {sHI}
    s_lshl_b32 s5, s4, 10
    s_add_u32 s5, s5, s3
    v_lshl_add_u32 v{vO0}, v1, 4, s5
    s_lshl_b32 s5, s4, 8
    s_add_u32 s5, s5, s3
    s_add_u32 s5, s5, 32768
    v_lshl_add_u32 v{vO1}, v1, 3, s5
    s_mul_i32 s3, {sCS}, 80
    v_lshrrev_b32 v4, 3, v1
    v_add_u32 v4, s3, v4
    v_mul_u32_u24 v4, 3456, v4
    v_and_b32 v5, 7, v1
    v_lshl_add_u32 v4, v5, 4, v4
    s_lshl_b32 s3, {sROLE}, 7
    v_add_u32 v{bGU}, s3, v4
    s_cmp_ge_u32 {sW}, 3
    s_cselect_b32 s4, 1, 0            ; kv
    s_mul_i32 s5, s4, 3
    s_sub_u32 s5, {sW}, s5
    s_mov_b32 s70, s4
    s_mov_b32 s71, s5
    s_add_u32 s5, s5, {sRB}
    s_sub_u32 s5, s5, 2
    s_max_i32 s5, s5, 0
    s_min_i32 s5, s5, 15
    s_mul_i32 s4, s4, 80
    s_add_u32 s4, s4, 80
    s_add_u32 s4, s4, s5
    v_mov_b32 v4, s4
    v_mov_b32 v5, {sRB}
    v_cmp_gt_u32 vcc, 2, v1
    v_cndmask_b32 v4, v5, v4, vcc
    s_mul_i32 s3, {sHP}, 40
    v_and_b32 v7, 1, v1
    v_mul_u32_u24 v7, 39, v7
    v_add_u32 v7, s3, v7
    v_lshrrev_b32 v7, 7, v7
    v_lshl_add_u32 v4, v7, 4, v4
    v_lshlrev_b32 v4, 7, v4
    v_add_u32 v{vF1A}, {F1_OFF}, v4
    v_bfe_u32 v4, v1, 2, 1
    v_lshlrev_b32 v4, 9, v4
    v_and_b32 v5, 3, v1
    v_lshl_add_u32 v4, v5, 13, v4
    s_lshr_b32 s3, {sRB2}, 1
    s_and_b32 s4, s3, 3
    s_lshl_b32 s4, s4, 7
    s_lshr_b32 s3, s3, 2
    s_lshl_b32 s3, s3, 11
    s_add_u32 s3, s3, s4
    s_lshl_b32 s4, {sHI}, 10
    s_add_u32 s3, s3, s4
    s_add_u32 s3, s3, {F1_OFF + 32}
    v_add_u32 v{bF2A}, s3, v4
    v_bfe_u32 v4, v1, 2, 1
    v_lshlrev_b32 v4, 11, v4
    v_lshl_add_u32 v4, v5, 7, v4
    s_and_b32 s3, {sCT}, 14
    s_lshl_b32 s3, s3, 11
    s_and_b32 s4, {sGR}, 12
    s_lshl_b32 s4, s4, 7
    s_add_u32 s3, s3, s4
    s_add_u32 s3, s3, {F1_OFF + 32}
    v_add_u32 v4, s3, v4
    v_cmp_le_u32 vcc, 8, v1
    v_cndmask_b32 v{bF2A}, v{bF2A}, v4, vcc
    s_mul_i32 s3, s63, 200
    s_mul_i32 s4, {sW}, 25
    s_add_u32 s3, s3, s4
    v_add_u32 v4, s3, v1
    v_lshlrev_b32 v{vTO}, 7, v4
    v_subrev_u32 v4, {128 + 256*OPT.get('guh', 0)}, v0
    v_lshrrev_b32 v5, 1, v4
    s_mul_i32 s3, s63, 54
    v_add_u32 v5, s3, v5
    v_mul_u32_u24 v5, 1280, v5
    v_and_b32 v4, 1, v4
    v_lshl_add_u32 v5, v4, 7, v5
    s_and_b32 s3, s2, 7
    s_lshl_b32 s3, s3, 8
    v_add_u32 v{TD}, s3, v5
    v_lshlrev_b32 v8, 2, v1
    s_lshl_b32 s3, {sGR}, 10
    s_add_u32 s35, s3, {ST_OFF}""")
    srd(a, 44, P_WO, 819200)
    a(f"""s_lshr_b32 s3, {sW}, 1
    s_mul_i32 s41, s3, {80*1280}
    s_mul_i32 s40, s3, 10240
    s_and_b32 s3, {sW}, 1
    s_mul_i32 s3, s3, 1280
    s_add_u32 s40, s40, s3""")
    def wo_early(k):
        z, h = k >> 1, k & 1
        return f"""s_add_u32 m0, s40, {WOL + 640*h + 2560*z}
        s_add_u32 s42, s41, {8*1280*h + 20*1280*z}
        {M40}
        buffer_load_dwordx4 v{bWO0}, s[44:47], s42 offen lds
        {MALL}"""
    WE = OPT.get("we", 1); WES = OPT.get("wes", 17)
    wo_touch = f"""s_mov_b64 exec, 0x1ffffff
        global_load_dword v252, v{vTO}, s[{P_WO}:{P_WO+1}]
        {MALL}"""
    def clr_check(L):
        a(f"v_cmp_gt_u32 vcc, 4, v9\n s_cbranch_vccz {L}_OK")
        spin_head(a, L)
        a(f"""global_load_dword v9, v8, s[{P_DBG}:{P_DBG+1}] sc1
        s_waitcnt vmcnt(0)
        v_cmp_gt_u32 vcc, 4, v9""")
        spin_tail(a, L)
    a.stamp(2, 1)
    a(f"s_cmp_eq_u32 {sCT}, 15\n s_cbranch_scc1 L_HELP")
    a("s_waitcnt vmcnt(4)\n s_barrier")
    a.stamp(2); a.stamp(3, 1)
    def FA(b, t): return FR + 24*b + 4*t
    def FB(b, c): return FR + 24*b + 16 + 4*c
    def a1_reads(n):
        c, ks, b = n >> 1, n & 1, n & 1
        sl = c % 5
        base, off = vAS + 4*(sl // 2), (sl % 2) * 32768
        A = [f"ds_read_b128 {q4(FA(b, t))}, v{base+ks} offset:{off + 2048*t}" for t in range(4)]
        B = [f"ds_read_b64_tr_b16 {q2(FB(b, c2)+2*h)}, v{base+2+c2} offset:{off + 8192*ks + 1024*h}" for c2 in range(2) for h in range(2)]
        return [B[0], B[1], A[0], B[2], B[3], A[1], A[2], A[3]]
    def a1_mfmas(n, isv):
        b = n & 1; f = n == 0
        L = [(mm16(CS, ONES, FB(b, 0), f), 1)]
        for t in range(4):
            for c in range(2):
                d = ACC + 8*t + 4*c
                need = [2, 4][c] if t == 0 else 4 + t
                L.append((mm16(d, FA(b, t), FB(b, c), f) if isv else mm16(d, FB(b, c), FA(b, t), f), need))
        return L
    D = OPT.get("dist", 3)
    CKS = OPT.get("cks", 11); STS = OPT.get("sts", 16)
    for x in a1_reads(0): a(x)
    a(f"s_cmp_ge_u32 {sCT}, 10\n s_cbranch_scc1 L_A1_1")
    def a1(isv):
        tag = str(int(isv))
        a(f"L_A1_{tag}:")
        vq = ["c1"] * 4
        side = {n: [] for n in range(20)}
        for c in range(2, 10):
            for k, x in enumerate(dmaA(c)): side[2*(c - D) + (k >> 1) if c - D >= 0 else 0].append((x, f"c{c}"))
        side[OPT.get("wts", 13)].append((wo_touch, "x"))
        if WE:
            for k in range(8): side[WES + (k * (20 - WES)) // 8].append((wo_early(k), "x"))
        nr = 8
        nis = [0]
        for n in range(20):
            c = n >> 1
            Rn = a1_reads(n + 1) if n < 19 else []
            M = a1_mfmas(n, isv)
            issued = 0; done = -1
            if (n & 1) and c < 9:
                last = max(i for i, t in enumerate(vq) if t == f"c{c+1}")
                a(f"s_waitcnt vmcnt({len(vq) - 1 - last})\n s_barrier")
                vq = vq[last + 1:]
                if c in (0, 1, 2, 3, 4, 5, 6, 8): a.stamp({0:4, 1:5, 2:6, 3:7, 4:8, 5:9, 6:10, 8:11}[c], 1)
            S = list(side[n])
            gap = max(1, len(M) // max(1, len(S)))
            for k, (m, need) in enumerate(M):
                if need > done:
                    a(f"s_waitcnt lgkmcnt({nr - 1 - need + issued})"); done = need
                a(m)
                if k < len(Rn): a(Rn[k]); issued += 1
                if S and (k % gap == gap - 1 or k == len(M) - 1):
                    while S:
                        x, t = S.pop(0); a(x); vq.append(t); nis[0] += 1
                        if k < len(M) - 1: break
            if n == CKS:
                a(f"""s_cmp_lg_u32 {sW}, 3
                s_cbranch_scc1 L_CK{tag}
                global_load_dword v9, v8, s[{P_DBG}:{P_DBG+1}] sc1
                L_CK{tag}:""")
                ckpos = nis[0]
            if n == STS:
                a(f"s_cmp_lg_u32 {sW}, 3\n s_cbranch_scc1 L_ST{tag}\n s_waitcnt vmcnt({nis[0] - ckpos})")
                clr_check(f"L_CLR{tag}")
                a(f"""v_lshlrev_b32 v7, 4, v1
                buffer_load_dwordx4 {q4(STV)}, v7, {WSR}, s35 offen sc1
                L_ST{tag}:""")
                stpos = nis[0]
        a.stamp(3); a.stamp(1, 2)
        a(f"""ds_write_b32 v{vCW}, v{CS}
        s_cmp_lg_u32 {sW}, 3
        s_cbranch_scc1 L_SW{tag}
        s_waitcnt vmcnt({nis[0] - stpos})
        v_max3_u32 v4, v{STV}, v{STV+1}, v{STV+2}
        v_max_u32 v4, v4, v{STV+3}
        v_cmp_eq_u32 vcc, -1, v4
        s_cbranch_vccz L_SP{tag}_OK""")
        spin_head(a, f"L_SP{tag}")
        a(f"""buffer_load_dwordx4 {q4(STV)}, v7, {WSR}, s35 offen sc1
        s_waitcnt vmcnt(0)
        v_max3_u32 v4, v{STV}, v{STV+1}, v{STV+2}
        v_max_u32 v4, v4, v{STV+3}
        v_cmp_eq_u32 vcc, -1, v4""")
        spin_tail(a, f"L_SP{tag}")
        a(f"""v_add_u32 v7, {SCR}, v7
        ds_write_b128 v7, {q4(STV)}
        L_SW{tag}:
        s_waitcnt lgkmcnt(0)
        s_barrier""")
        a.stamp(2, 2)
        if not isv:
            for c in range(2): a(f"ds_read_b128 {q4(TMP+4*c)}, v{vCR+c}")
            for t in range(4): a(f"ds_read2_b32 {q2(TMP+8+2*t)}, v{vSR} offset0:{16*t} offset1:{128+16*t}")
            for t in range(4):
                a(f"s_waitcnt lgkmcnt({3-t})\n v_mul_f32 v{TMP+16+2*t}, s36, v{TMP+9+2*t}")
                for e in range(0, 8, 2):
                    d = ACC + 8*t + e
                    a(f"v_pk_fma_f32 {q2(d)}, {q2(TMP+e)}, {q2(TMP+8+2*t)}, {q2(d)} op_sel_hi:[1,0,1] neg_lo:[1,0,0] neg_hi:[1,0,0]")
                for e in range(0, 8, 2):
                    d = ACC + 8*t + e
                    a(f"v_pk_mul_f32 {q2(d)}, {q2(d)}, {q2(TMP+16+2*t)} op_sel_hi:[1,0]")
                for e in range(0, 8, 2): a(f"v_cvt_pk_bf16_f32 v{PK+4*t+e//2}, v{ACC+8*t+e}, v{ACC+8*t+e+1}")
                a(f"""v_permlane16_swap_b32 v{PK+4*t}, v{PK+4*t+2}
                v_permlane16_swap_b32 v{PK+4*t+1}, v{PK+4*t+3}
                buffer_store_dwordx4 {q4(PK+4*t)}, v{vST}, {WSR}, s37 offen offset:{(t >> 1)*T32 + (t & 1)*256} sc1""")
        else:
            for c in range(2): a(f"ds_read_b32 v{TMP+2*c}, v{vCR+c}")
            for t in range(4):
                a(f"ds_read_b128 {q4(TMP+4+8*t)}, v{vSR} offset:{64*t}\n ds_read_b128 {q4(TMP+8+8*t)}, v{vSR} offset:{512+64*t}")
            for p in range(2):
                a(f"s_waitcnt lgkmcnt({4-4*p})")
                for c in range(2):
                    o = PK + 8*p + 4*c
                    ds = [(ACC + 8*(2*p+tt) + 4*c + e, 2*p + tt, e, tt) for tt in range(2) for e in (0, 2)]
                    for d, t, e, tt in ds:
                        a(f"v_pk_fma_f32 {q2(d)}, {q2(TMP+4+8*t+e)}, {q2(TMP+2*c)}, {q2(d)} op_sel_hi:[1,0,1] neg_lo:[1,0,0] neg_hi:[1,0,0]")
                    for d, t, e, tt in ds: a(f"v_pk_mul_f32 {q2(d)}, {q2(d)}, {q2(TMP+8+8*t+e)}")
                    for d, t, e, tt in ds: a(f"v_cvt_pk_bf16_f32 v{o+2*tt+e//2}, v{d}, v{d+1}")
                    a(f"""v_permlane16_swap_b32 v{o}, v{o+2}
                    v_permlane16_swap_b32 v{o+1}, v{o+3}
                    buffer_store_dwordx4 {q4(o)}, v{vST+c}, {WSR}, s37 offen offset:{p*T32} sc1""")
        a("s_branch L_HOP")
    a1(False); a1(True)
    a(f"""L_HELP:
    v_mov_b32 v4, 0
    v_mov_b32 v5, 0
    v_mov_b32 v6, 0
    v_mov_b32 v7, 0""")
    for i in range(20):
        a(f"s_waitcnt vmcnt({19-i})")
        for r in range(4):
            x = HX + 4*i + r
            a(f"v_dot2_f32_bf16 v{4+2*(r&1)}, v{x}, v{ONES}, v{4+2*(r&1)}\n v_dot2_f32_bf16 v{5+2*(r&1)}, v{x}, v{x}, v{5+2*(r&1)}")
    a("""s_nop 3
    v_add_f32 v4, v4, v6
    v_add_f32 v5, v5, v7""")
    for qp in ("[1,0,3,2]", "[2,3,0,1]"):
        for v in (4, 5): a(f"v_add_f32_dpp v{v}, v{v}, v{v} quad_perm:{qp} row_mask:0xf bank_mask:0xf")
    ln_scalars(a, 4, 5)
    a(f"""v_and_b32 v6, 1, v1
    v_cmp_eq_u32 vcc, 1, v6
    v_cndmask_b32 v4, v4, v5, vcc
    v_min_u32 v4, -2, v4
    v_and_b32 v5, 60, v1
    v_lshl_add_u32 v5, v6, 9, v5
    s_lshl_b32 s3, {sW}, 6
    s_add_u32 s3, s3, s35
    s_barrier
    s_mov_b32 exec_lo, 0x33333333
    s_mov_b32 exec_hi, 0x33333333
    buffer_store_dword v4, v5, {WSR}, s3 offen sc1
    {MALL}""")
    a(wo_touch)
    if WE:
        for k in range(8): a(wo_early(k))
    a(f"""v_mov_b32 v9, 0
    s_cmp_lg_u32 {sW}, 3
    s_cbranch_scc1 L_HOP""")
    clr_check("L_CLRH")

    a("L_HOP:")
    a.stamp(4); a.stamp(3, 2)
    RPD = 56
    srd(a, 8, P_WO, 819200)
    a(f"""s_and_b32 s31, {sW}, 1
    s_mul_i32 s31, s31, 1280
    s_lshl_b32 s3, {sW}, 2
    s_add_u32 s3, s3, s59
    v_mov_b32 v6, s3
    s_mov_b32 s101, s59
    v_mov_b32 v7, 1""")
    def dma_wo(p):
        if OPT.get("nowo"): return
        kh, q = p // 5, p % 5
        if q < 4: v, so, hs = bWO0, (4*kh + q) * 80 * 1280, 8 * 1280
        else:     v, so, hs = bWO1, kh * 320 * 1280, 40 * 1280
        zs = 20 * 1280 if q < 4 else 80 * 1280
        for z in range(4):
            for h in range(2):
                a(f"""s_add_u32 m0, s31, {WOL + p*10240 + 640*h + 2560*z}
                s_mov_b32 s3, {so + hs*h + zs*z}
                buffer_load_dwordx4 v{v}, s[8:11], s3 offen lds""")
    WO2 = 10
    WA = OPT.get("wa", 2); WP = OPT.get("wp", 1)
    a(f"s_cmp_ge_u32 {sW}, 6\n s_cbranch_scc0 L_DR\n {M40}")
    PB0 = 4*WE
    for p in range(PB0, PB0 + WA): dma_wo(p)
    a(f"{MALL}\n s_waitcnt vmcnt({8*WA})\n s_branch L_DR2\n L_DR:\n s_waitcnt vmcnt(0)\n L_DR2:")
    a.stamp(4, 2)
    a(f"""s_barrier
    s_cmp_lg_u32 {sW}, 0
    s_cbranch_scc1 L_NOF1
    s_mov_b64 exec, 1
    buffer_store_dword v7, v6, {WSR}, 0 offen sc1
    {MALL}
    L_NOF1:
    s_lshr_b32 s4, {sW}, 1
    {M40}""")
    a.stamp(5, 2)
    w0 = 10 - 3*WP
    for pr in range(3):
        a(f"s_cmp_lg_u32 s4, {pr}\n s_cbranch_scc1 L_WP{pr}")
        for p in range(w0 + pr*WP, w0 + (pr + 1)*WP): dma_wo(p)
        a(f"s_branch L_WPD\n L_WP{pr}:")
    for p in range(PB0 + WA, w0): dma_wo(p)
    a(f"L_WPD:\n {MALL}")
    a.stamp(6, 2)
    def gu_loads(L, vg):
        if OPT.get("nogu"): return
        a(f"""s_cmp_lg_u32 {sHI}, {OPT.get("guh", 0)}
        s_cbranch_scc1 {L}
        s_cmp_ge_u32 {sROLE}, 32
        s_cbranch_scc1 {L}
        s_cmp_ge_u32 {sLO}, 2
        s_cselect_b32 s4, s{P_U}, s{P_G}
        s_cselect_b32 s5, s{P_U+1}, s{P_G+1}
        s_and_b32 s3, {sLO}, 1
        s_mul_i32 s3, s3, {40*3456}
        v_add_u32 v4, s3, v{vg}""")
        for i in range(5):
            a(f"global_load_dwordx4 {q4(RPD+4*i)}, v4, s[4:5] nt")
            if i < 4: a(f"v_add_u32 v4, {8*3456}, v4")
        a(f"{L}:")
    Q0, Q1 = 16, 20
    POOL = 24
    MK = 88; O = 96
    a(f"""v_and_b32 v2, 31, v0
    v_lshrrev_b32 v3, 5, v1
    s_mul_i32 s3, {sHP}, {64*T32}
    s_lshl_b32 s4, {sRB}, 2
    s_add_u32 s5, s4, {sLO}
    s_mul_i32 s5, s5, {T32}
    s_add_u32 s5, s5, s3
    v_lshl_add_u32 v4, v2, 4, s5
    s_mul_i32 s5, {sHI}, 1536
    v_lshl_add_u32 v5, v3, 9, v4
    v_add_u32 v80, s5, v5
    s_lshl_b32 s5, {sHI}, 3
    v_add_u32 v81, s5, v4
    v_mov_b32 v{Q1}, 0
    v_mov_b32 v{Q1+1}, 0
    s_sub_u32 s4, s4, 8
    s_mul_i32 s4, s4, {T32}
    s_mul_i32 s5, s71, 10240
    s_add_u32 s4, s4, s5
    v_lshl_add_u32 v82, v1, 4, s4
    s_mul_i32 s6, s70, 30720
    s_add_u32 s71, s5, s6
    s_add_u32 s71, s71, {KL}
    s_mul_i32 s6, s70, {V_OFF - K_OFF}
    s_add_u32 s3, s3, s6
    s_add_u32 s3, s3, {K_OFF}
    s_add_u32 s4, s{P_WS}, s3
    s_addc_u32 s5, s{P_WS+1}, 0""")
    srd(a, 12, 4, 64*T32)
    kappa(a, 4, 2, 5)
    a(f"""s_mul_i32 s3, {sLO}, {T32}
    s_add_u32 s3, s3, {KL}
    s_mul_i32 s4, {sHI}, 1536
    s_add_u32 s4, s4, s3
    v_lshlrev_b32 v5, 4, v4
    v_lshl_add_u32 v{vK0}, v3, 9, v5
    v_add_u32 v{vK0}, s4, v{vK0}
    s_lshl_b32 s4, {sHI}, 3
    s_add_u32 s4, s4, s3
    s_add_u32 s4, s4, 1024
    v_add_u32 v{vK1}, s4, v5
    v_cmp_gt_u32 vcc, 20, v2
    v_cndmask_b32 v5, 0, v5, vcc
    v_mul_u32_u24 v6, 640, v3
    s_mul_i32 s4, {sHI}, 320
    s_add_u32 s4, s4, s3
    s_add_u32 s4, s4, 30720
    v_add3_u32 v{vV}, v5, v6, s4
    v_lshlrev_b32 v4, 3, v3
    v_sub_u32 v4, v2, v4
    v_mov_b32 v5, 0xffff
    v_mov_b32 v6, 0xffff0000""")
    MS = 32
    for r in range(16): a(f"v_cmp_gt_i32 s[{MS+2*r}:{MS+1+2*r}], {(r&7) + 16*(r>>3)}, v4")
    for i in range(8):
        a(f"""v_cndmask_b32 v7, 0, v5, s[{MS+4*i}:{MS+1+4*i}]
        v_cndmask_b32 v8, 0, v6, s[{MS+2+4*i}:{MS+3+4*i}]
        v_or_b32 v{MK+i}, v7, v8""")
    FS = [128, 144, 160]
    FK = [176, 182, 188]
    FV = [POOL, POOL+8, POOL+16]; FV0 = POOL + 24
    FP = [200, 208]
    for r in range(32): a(f"v_mov_b32 v{POOL+r}, 0x3f803f80")
    a(f"""s_lshl_b32 s3, {sRB}, 2
    s_add_u32 s3, s3, {sLO}
    s_sub_i32 s30, 8, s3              ; n_invalid
    s_mov_b32 s28, 0xfffff
    s_mov_b32 s29, 0xfffff""")
    XR, WR, WRS, F2V = 224, 234, 224, 244
    FH = OPT.get('fh', 0)
    LW = 3 if FH else 7
    vXA_, vROW = 84, 85
    def early_loads(L, who=3):
        a(f"""v_and_b32 v4, 15, v0
        v_bfe_u32 v5, v0, 4, 2
        s_lshl_b32 s3, {sRB2}, 6
        s_lshl_b32 s4, {sLO}, 4
        s_add_u32 s3, s3, s4
        v_add_u32 v4, s3, v4
        v_mul_u32_u24 v4, 1280, v4
        v_mul_u32_u24 v5, 40, v5
        s_mul_i32 s3, {sCS}, 160
        v_add_u32 v5, s3, v5
        v_add_u32 v4, v5, v4
        s_cmp_lg_u32 {sHI}, {FH}
        s_cbranch_scc1 {L}_H""")
        if who & 1: a(f"""global_load_dwordx4 {q4(XR)}, v4, s[{P_X}:{P_X+1}]
        global_load_dwordx4 {q4(XR+4)}, v4, s[{P_X}:{P_X+1}] offset:16
        global_load_dwordx2 {q2(XR+8)}, v4, s[{P_X}:{P_X+1}] offset:32
        global_load_dwordx4 {q4(WR)}, v5, s[{P_WR}:{P_WR+1}]
        global_load_dwordx4 {q4(WR+4)}, v5, s[{P_WR}:{P_WR+1}] offset:16
        global_load_dwordx2 {q2(WR+8)}, v5, s[{P_WR}:{P_WR+1}] offset:32""")
        a(f"""s_branch {L}_D
        {L}_H:
        v_lshlrev_b32 v4, 2, v1""")
        for i in range(5 if who & 2 else 0): a(f"global_load_dword v{WRS+i}, v4, s[{P_WR}:{P_WR+1}] offset:{256*i}")
        a(f"{L}_D:")
    early_loads("L_EL0", 3 - OPT.get("elb", 1))
    a.stamp(7, 2)
    PSL = OPT.get("psl", 4)
    a(f"""s_cmp_ge_u32 {sW}, 6
    s_cbranch_scc1 L_WOH
    s_mov_b64 exec, 15""")
    spin_head(a, "L_F1POLL")
    a(f"""buffer_load_dword v4, v{vF1A}, {WSR}, 0 offen sc1
    s_waitcnt vmcnt(0)
    v_cmp_ne_u32 s[6:7], 1, v4
    s_and_b64 vcc, s[6:7], 3""")
    spin_tail(a, "L_F1POLL", PSL)
    a(MALL)
    a.stamp(5); a.stamp(8, 2)
    for i in range(10):
        if i % 4 == 0:
            a(f"s_add_u32 m0, s71, {1024*i}\n v_add_u32 v4, {1024*i}, v82")
        a(f"buffer_load_dwordx4 v4, s[12:15], 0 offen offset:{1024*(i % 4)} sc1 lds")
    a(f"s_cmp_eq_u32 s6, 0\n s_cbranch_scc1 L_QPOLL_OK")
    a(f"""L_WOH:
    s_mov_b64 exec, 12""")
    spin_head(a, "L_QPOLL")
    a(f"""buffer_load_dword v4, v{vF1A}, {WSR}, 0 offen sc1
    s_waitcnt vmcnt(0)
    v_cmp_ne_u32 vcc, 1, v4""")
    spin_tail(a, "L_QPOLL", PSL)
    a(f"""{MALL}
    buffer_load_dwordx4 {q4(Q0)}, v80, {WSR}, 0 offen sc1
    s_mov_b32 exec_hi, 0
    buffer_load_dwordx2 {q2(Q1)}, v81, {WSR}, 0 offen offset:1024 sc1
    {MALL}""")
    a.stamp(6); a.stamp(9, 2)
    a("s_waitcnt vmcnt(0)\n s_barrier")
    a.stamp(7); a.stamp(1, 4); a.stamp(10, 2)
    def kread(r, t): return f"ds_read_b128 {q4(r)}, v{vK0} offset:{T32*t}\n ds_read_b64 {q2(r+4)}, v{vK1} offset:{T32*t}"
    def vread(r, t, chk=True):
        m = f"s_cmp_gt_i32 s30, {t}\n s_cselect_b64 exec, -1, s[28:29]" if chk else "s_mov_b64 exec, s[28:29]"
        return f"""{m}
        ds_read_b128 {q4(r)}, v{vV} offset:{T32*t}
        ds_read_b128 {q4(r+4)}, v{vV} offset:{T32*t+1280}
        {MALL}"""
    def s1(s, k): return f"v_mfma_f32_32x32x16_bf16 {r16(s)}, {q4(k)}, {q4(Q0)}, 0"
    def s2(s, k): return f"v_mfma_f32_32x32x8_bf16 {r16(s)}, {q2(k+4)}, {q2(Q1)}, {r16(s)}"
    def pvm(v, p, first=False): return f"v_mfma_f32_32x32x16_bf16 {r16(O)}, {q4(v)}, {q4(p)}, {'0' if first else r16(O)}"
    seq = [8, 0, 7, 6, 5, 4, 3, 2, 1]
    vseq = [8, 7, 6, 5, 4, 3, 2, 1]
    def vbuf(t): return FV0 if t == 0 else FV[vseq.index(t) % 3]
    for n in range(3): a(kread(FK[n], seq[n]))
    def down_touch(vt):
        if OPT.get("notd"): return
        a(f"""s_and_b32 s3, s2, 7
        s_cmp_lt_u32 s3, 5
        s_cselect_b32 s3, 108, 0
        v_subrev_u32 v4, {128 + 256*OPT.get('guh', 0)}, v0
        v_cmp_gt_u32 vcc, s3, v4""")
        masked_load(a, 9, vt, P_D, "L_TD")
    def wo_slot(k):
        p = WO2 + k
        if p < 10:
            a(f"s_cmp_ge_u32 {sW}, 2\n s_cbranch_scc1 L_WS{k}\n {M40}"); dma_wo(p); a(f"{MALL}\n L_WS{k}:")
    a(vread(vbuf(8), 8, False)); a(vread(FV0, 0)); a(vread(vbuf(7), 7))
    a(f"s_waitcnt lgkmcnt(10)\n {s1(FS[0], FK[0])}\n {s2(FS[0], FK[0])}")
    a(f"s_waitcnt lgkmcnt(8)\n {s1(FS[1], FK[1])}\n {s2(FS[1], FK[1])}")
    a(kread(FK[0], seq[3]))
    if OPT.get('elb', 1): early_loads('L_EL', OPT.get('elb', 1))
    gu_loads('L_GUB', bGU); down_touch(TD)
    wo_slot(0)
    a(f"s_waitcnt lgkmcnt(8)\n {s1(FS[2], FK[2])}\n {s2(FS[2], FK[2])}")
    a(kread(FK[1], seq[4]))
    wo_slot(1)
    for r in range(16): a(f"v_cndmask_b32 v{FS[1]+r}, v{FS[0]+r}, v{FS[1]+r}, s[{MS+2*r}:{MS+1+2*r}]")
    def tile_body(s, p, extra):
        for gq in range(4):
            for r in range(4*gq, 4*gq + 4): a(f"v_exp_f32 v{s+r}, v{s+r}")
            if gq < len(extra) and extra[gq]: a(extra[gq])
            if gq > 0:
                for k in (2*gq - 2, 2*gq - 1): a(f"v_cvt_pk_bf16_f32 v{p+k}, v{s+2*k}, v{s+2*k+1}")
        for k in (6, 7): a(f"v_cvt_pk_bf16_f32 v{p+k}, v{s+2*k}, v{s+2*k+1}")
    tile_body(FS[1], FP[0], [f"s_waitcnt lgkmcnt(2)\n {s1(FS[0], FK[0])}", s2(FS[0], FK[0]), kread(FK[2], seq[5]) + "\n" + vread(vbuf(6), 6), None])
    for k in range(8): a(f"v_and_b32 v{216+k}, v{MK+k}, v{FP[0]+k}")
    for k in range(8): a(f"v_xor_b32 v{FP[0]+k}, v{216+k}, v{FP[0]+k}")
    a(pvm(FV0, 216, True)); wo_slot(2); a(pvm(FV0+4, 220))
    def repack(vm):
        if OPT.get("nogu") or OPT.get("norp"): return
        a(f"""s_cmp_ge_u32 {sROLE}, 32
        s_cbranch_scc1 L_NORP
        s_cmp_lg_u32 {sHI}, {OPT.get("guh", 0)}
        s_cbranch_scc1 L_NORP
        s_mul_i32 s3, {sROLE}, {8*20480}
        s_mul_i32 s4, {sCS}, 1280
        s_add_u32 s3, s3, s4
        s_lshr_b32 s4, {sLO}, 1
        s_mul_i32 s4, s4, 10240
        s_add_u32 s3, s3, s4
        s_and_b32 s4, {sLO}, 1
        s_mul_i32 s4, s4, 640
        s_add_u32 s3, s3, s4
        s_add_u32 s3, s3, {RP_OFF}
        v_lshrrev_b32 v8, 3, v1
        v_mul_u32_u24 v8, {20480 - 128}, v8
        v_lshl_add_u32 v8, v1, 4, v8
        v_and_b32 v4, 7, v1
        v_lshrrev_b32 v5, 3, v1
        v_lshl_add_u32 v4, v4, 3, v5
        v_lshlrev_b32 v4, 2, v4
        s_waitcnt vmcnt({vm}) lgkmcnt(0)""")
        for r in range(20):
            a(f"ds_bpermute_b32 v{RPD+r}, v4, v{RPD+r}")
        a("s_waitcnt lgkmcnt(0)")
        for i in range(5): a(f"buffer_store_dwordx4 {q4(RPD+4*i)}, v8, {WSR}, s3 offen offset:{128*i} sc1")
        a("L_NORP:")

    prevP, prevT = FP[0], 8
    for n in range(2, 9):
        t = seq[n]; p = FP[(n - 1) % 2]
        ex = [None]*4
        ex[0] = f"s_waitcnt lgkmcnt(0)\n {pvm(vbuf(prevT), prevP)}"
        ex[1] = pvm(vbuf(prevT) + 4, prevP + 4)
        if n + 2 <= 8:
            nb = (n + 2) % 3
            ex[2] = s1(FS[nb], FK[nb])
            ex[3] = s2(FS[nb], FK[nb])
        tile_body(FS[n % 3], p, ex)
        post = []
        if n + 4 <= 8: post.append(kread(FK[(n + 4) % 3], seq[n + 4]))
        if t - 2 >= 1: post.append(vread(vbuf(t - 2), t - 2))
        for x in post: a(x)
        wo_slot(n + 1)
        if n == OPT.get("rpn", 8): repack(0)
        prevP, prevT = p, t
    a(f"s_waitcnt lgkmcnt(0)\n {pvm(vbuf(prevT), prevP)}\n {pvm(vbuf(prevT)+4, prevP+4)}")
    a(f"""v_max3_f32 v4, abs(v{O}), abs(v{O+1}), abs(v{O+2})
    v_max3_f32 v5, abs(v{O+3}), abs(v{O+4}), abs(v{O+5})
    v_max3_f32 v4, abs(v{O+6}), abs(v{O+7}), v4
    v_max3_f32 v5, abs(v{O+8}), abs(v{O+9}), v5
    v_max3_f32 v4, abs(v{O+10}), abs(v{O+11}), v4
    v_max_f32 v4, v4, v5
    v_cmp_nlt_f32 vcc, {f2u(2.0**-60):#x}, v{O+12}
    s_mov_b64 s[4:5], vcc
    v_cmp_ngt_f32 vcc, {f2u(2.0**60):#x}, v{O+12}
    s_or_b64 s[4:5], s[4:5], vcc
    v_cmp_ngt_f32 vcc, {f2u(2.0**120):#x}, v4
    s_or_b64 vcc, s[4:5], vcc""")
    if OPT.get("forcefb"): a("s_branch L_FALLBACK")
    a(f"""s_cbranch_vccnz L_FALLBACK
    L_BDONE:
    v_rcp_f32 v4, v{O+12}""")
    for r in range(0, 12, 2): a(f"v_pk_mul_f32 {q2(O+r)}, {q2(O+r)}, v[4:5] op_sel_hi:[1,0]")
    for k in range(6): a(f"v_cvt_pk_bf16_f32 v{24+k}, v{O+2*k}, v{O+2*k+1}")
    a(f"""buffer_store_dwordx4 v[24:27], v{vO0}, {WSR}, 0 offen sc1
    s_mov_b32 exec_hi, 0
    buffer_store_dwordx2 v[28:29], v{vO1}, {WSR}, 0 offen sc1
    {MALL}""")
    a.stamp(8)
    if OPT.get("rpn", 8) == 9: repack(2)
    a.stamp(2, 4)

    XU, WU = 176, 196
    OF, CAC, CWF = 32, 72, 92
    NB = 4
    HP = 216
    OUTP = 228
    KSH = OPT.get('ksh', 7)
    OFL = ['', 'nt', 'sc1', 'sc0'][OPT.get('ofl', 0)]
    a(f"""v_mov_b32 v22, v{bF2A}
    v_and_b32 v2, 15, v0
    v_lshrrev_b32 v3, 4, v1
    s_lshl_b32 s3, {sRB2}, 6
    s_lshl_b32 s4, {sLO}, 4
    s_add_u32 s3, s3, s4
    v_add_u32 v20, s3, v2             ; row
    v_mul_u32_u24 v4, 1280, v20
    v_mul_u32_u24 v17, 40, v3
    s_mul_i32 s3, {sCS}, 160
    v_add3_u32 v16, v17, v4, s3""")
    rho(a, 21, 5)
    a(f"""v_mul_u32_u24 v4, 160, v21
    v_and_b32 v5, 3, v1
    v_lshlrev_b32 v21, 5, v21
    v_lshl_add_u32 v21, v5, 3, v21
    v_mul_u32_u24 v5, 40, v5
    s_mul_i32 s3, {sHI}, 51200
    v_add3_u32 v18, v4, v5, s3
    s_lshl_b32 s3, {sRB2}, 1
    s_lshr_b32 s4, {sLO}, 1
    s_add_u32 s3, s3, s4
    s_mul_i32 s3, s3, 40960
    s_add_u32 s3, s3, {O_OFF}
    s_lshl_b32 s4, {sHI}, 14
    s_add_u32 s29, s3, s4
    s_lshl_b32 s4, {sHI}, 12
    s_add_u32 s33, s3, s4
    s_add_u32 s33, s33, 32768
    s_and_b32 s4, {sLO}, 1
    s_lshl_b32 s4, s4, 4
    v_add_u32 v4, s4, v2
    v_lshlrev_b32 v5, 9, v3
    v_lshl_add_u32 v15, v4, 4, v5
    v_lshl_add_u32 v14, v4, 3, v5
    s_lshl_b32 s30, {sROLE}, 3
    s_add_u32 s30, s30, {sCS}
    s_lshl_b32 s32, {sW}, 10
    s_mul_i32 s3, {sLO}, 5120
    s_add_u32 s34, s3, {RED}
    v_lshl_add_u32 v13, v1, 4, s34
    s_lshl_b32 s3, {sRB2}, 13
    s_lshl_b32 s4, {sLO}, 8
    s_add_u32 s3, s3, s4
    s_add_u32 s37, s3, {PART_OFF}
    v_lshlrev_b32 v10, 4, v2""")
    ROT = OPT.get("crot", 1)
    for ks in range(8):
        a(f"""s_add_u32 s3, {sCS}, {ks}
        s_and_b32 s3, s3, 7""" if ROT else f"s_mov_b32 s3, {ks}")
        a(f"""s_lshl_b32 s4, s3, 11
        s_add_u32 s{40+ks}, s29, s4
        s_mul_i32 s4, s3, 5120
        v_add_u32 v{246+ks}, s4, v18""")
    a("s_waitcnt vmcnt(2)")
    for i in range(20): a(f"v_mov_b32 v{CAC+i}, 0")
    a(f"s_cmp_lg_u32 {sHI}, {FH}\n s_cbranch_scc1 L_CB")
    for i in range(10):
        a(f"""v_lshlrev_b32 v{CAC+2*i}, 16, v{XR+i}
        v_and_b32 v{CAC+2*i+1}, 0xffff0000, v{XR+i}
        v_lshlrev_b32 v{WU+2*i}, 16, v{WR+i}
        v_and_b32 v{WU+2*i+1}, 0xffff0000, v{WR+i}""")
    a(f"""L_CB:
    v_mov_b32 v4, s101
    v_mov_b32 v5, 1
    s_waitcnt vmcnt(0)""")
    a.stamp(3, 4)
    a(f"""s_barrier
    s_cmp_lg_u32 {sW}, 0
    s_cbranch_scc1 L_NOF2
    s_mov_b64 exec, 1
    buffer_store_dword v5, v4, {WSR}, 0 offen offset:32 sc1
    {MALL}
    L_NOF2:""")
    WD1 = OPT.get("wd1", 3)
    def wd_lds(j): return [GW, GW + 8192, 153600][j] if j < WD1 else WOL + 8192*j
    def wd_dma(js, L):
        a(f"""s_sub_u32 s3, s30, 256
        s_lshl_b32 s3, s3, 5
        v_lshrrev_b32 v5, 1, v1""")
        kappa(a, 6, 5, 4)
        a(f"""v_mul_u32_u24 v6, 1280, v6
        v_and_b32 v4, 1, v1
        v_lshl_add_u32 v6, v4, 4, v6
        v_add_u32 v6, s3, v6
        s_mul_i32 s4, {sW}, {32*1280}""")
        srd(a, 12, P_D, 2211840)
        for j in js:
            a(f"""s_add_u32 m0, s32, {wd_lds(j)}
            s_add_u32 s3, s4, {8*32*1280*j}
            buffer_load_dwordx4 v6, s[12:15], s3 offen lds""")
    a(f"s_cmp_lt_u32 {sROLE}, 32\n s_cbranch_scc1 L_NWD1")
    wd_dma(range(WD1), "1")
    a("L_NWD1:")
    def c_rd(ks):
        b = ks % NB
        ad, off = (246 + ks, 0) if ks < 8 else (18, ks * 5120)
        return [f"ds_read_b64_tr_b16 {q2(CWF+20*b+4*t+2*h)}, v{ad} offset:{off + h*1280 + 8*t}" for t in range(5) for h in range(2)]
    a.stamp(9); a.stamp(4, 4)
    PRE = OPT.get("cpre", 2)
    def o_load(ks):
        if ks < 8: return f"buffer_load_dwordx4 {q4(OF+4*ks)}, v15, {WSR}, s{40+ks} offen sc1"
        return "\n".join(f"buffer_load_dwordx2 {q2(OF+4*ks+2*hh)}, v14, {WSR}, s33 offen offset:{(ks-8)*2048 + hh*256} sc1" for hh in range(2))
    def rp_dma(L, cond):
        a(f"""s_cmp_ge_u32 {sROLE}, 32
        s_cbranch_scc1 {L}
        s_cmp_eq_u32 s56, 0
        s_cbranch_{cond} {L}
        s_mul_i32 s3, s30, 20480
        s_mul_i32 s4, {sLO}, 5120
        s_add_u32 s3, s3, s4
        s_add_u32 s3, s3, {RP_OFF}
        s_add_u32 m0, s4, {GW}
        v_lshlrev_b32 v7, 4, v1""")
        for j in range(4): a(f"buffer_load_dwordx4 v7, {WSR}, s3 offen offset:{1024*j} sc1 lds")
        a(f"""s_add_u32 m0, s4, {GW + 4096}
        s_add_u32 s3, s3, 4096
        buffer_load_dwordx4 v7, {WSR}, s3 offen sc1 lds
        {L}:""")
    RPE = OPT.get("rpe", 0)
    for ks in range(NB):
        for r in c_rd(ks): a(r)
    if OPT.get("cprio", 0): a(f"s_cmp_eq_u32 {sHI}, {FH}\n s_cbranch_scc1 L_NPR\n s_setprio 2\n L_NPR:")
    if RPE: a(f"s_cmp_eq_u32 {sHI}, {FH}\n s_mov_b32 s3, 0xff\n s_cselect_b32 exec_lo, 0xffff, s3\n s_mov_b32 exec_hi, 0")
    else: a("s_mov_b64 exec, 0xff")
    spin_head(a, "L_F2POLL")
    a(f"""buffer_load_dword v4, v22, {WSR}, 0 offen sc1
    s_waitcnt vmcnt(0)
    v_cmp_ne_u32 s[56:57], 1, v4
    s_and_b64 vcc, s[56:57], 0xff""")
    spin_tail(a, "L_F2POLL", OPT.get("psl2", 4))
    a(MALL)
    a.stamp(8, 4)
    if not RPE: a("s_mov_b32 s56, 1")
    for ks in range(10): a(o_load(ks))
    for ks in range(10):
        lg = 0 if ks in (0, 9) else 10
        a(f"s_waitcnt vmcnt({11-ks if ks < 8 else 2*(9-ks)}) lgkmcnt({lg})")
        if ks == 9 and RPE == 2:
            a(f"s_cmp_lg_u32 {sHI}, {FH}\n s_cbranch_scc1 L_RP0")
            rp_dma("L_RP0", "scc0")
        R = c_rd(ks - 1 + NB) if (ks >= 1 and ks - 1 + NB < 10) else []
        for t in range(5):
            for x in R[2*t:2*t+2]: a(x)
            a(mm16(CAC+4*t, CWF+20*(ks % NB)+4*t, OF+4*ks, False))
    a.stamp(5, 4)
    if PROF and OPT.get("pg") == 4: a("s_mov_b32 s99, s3")
    a(f"s_cmp_lg_u32 {sHI}, {FH}\n s_cbranch_scc0 L_CLO")
    for t in range(5): a(f"ds_write_b128 v13, {q4(CAC+4*t)} offset:{1024*t}")
    a(f"""v_mov_b32 v24, 0
    v_mov_b32 v25, 0
    v_mov_b32 v26, 0
    v_mov_b32 v27, 0
    s_waitcnt lgkmcnt(0)
    s_barrier
    s_setprio 0
    v_and_b32 v12, 255, v0
    v_lshlrev_b32 v12, 4, v12
    v_add_u32 v14, {SB}, v12
    ds_write_b128 v14, v[24:27] offset:{SURV}
    ds_write_b128 v14, v[24:27] offset:{SURV+4096}
    v_lshl_add_u32 v11, v3, 10, v10
    s_add_u32 s38, s37, 4096
    s_add_u32 s39, s37, {PARTB}
    s_add_u32 s35, s37, {PARTB + 4096}
    v_mov_b32 v8, 0""")
    for i in range(5):
        a(f"""v_lshlrev_b32 v5, 16, v{WRS+i}
        v_and_b32 v6, 0xffff0000, v{WRS+i}
        v_add_f32 v8, v8, v5
        v_add_f32 v8, v8, v6""")
    dpp_reduce(a, "v_add_f32", [8])
    a(f"""v_readlane_b32 s36, v8, 63
    v_sub_u32 v23, 2047, v20
    v_lshlrev_b32 v23, 2, v23
    s_lshl_b32 s3, {sRB2}, 2
    s_add_u32 s3, s3, {sLO}
    s_lshl_b32 s3, s3, {KSH}
    s_add_u32 s4, s3, {KEY_OFF}
    s_lshl_b32 s3, {sLO}, 8
    s_add_u32 s3, s3, {SB+LMR}
    v_lshl_add_u32 v9, v2, 4, s3
    s_mov_b32 s6, 0xffffe000
    v_lshlrev_b32 v12, {KSH}, v1
    s_barrier""")
    a.stamp(1, 3)
    spin_head(a, "L_PPOLL")
    a(f"""buffer_load_dwordx4 v[64:67], v11, {WSR}, s37 offen sc1
    buffer_load_dwordx4 v[68:71], v11, {WSR}, s38 offen sc1
    s_waitcnt vmcnt(0)
    v_max3_u32 v5, v64, v65, v66
    v_max3_u32 v6, v68, v69, v70
    v_max_u32 v5, v5, v6
    v_cmp_eq_u32 vcc, -1, v5
    s_cbranch_vccz L_PPOLL_OK
    s_and_b32 s28, s3, {OPT.get('pbm', 15)}
    s_cmp_lg_u32 s28, 0
    s_cbranch_scc1 L_PPOLL
    buffer_load_dwordx4 v[64:67], v11, {WSR}, s39 offen sc1
    buffer_load_dwordx4 v[68:71], v11, {WSR}, s35 offen sc1
    s_waitcnt vmcnt(0)
    v_max3_u32 v5, v64, v65, v66
    v_max3_u32 v6, v68, v69, v70
    v_max_u32 v5, v5, v6
    v_cmp_eq_u32 vcc, -1, v5
    s_cbranch_vccnz L_PPOLL
    L_PPOLL_OK:""")
    a.stamp(2, 3)
    a("v_add_f32 v40, v64, v68\n v_add_f32 v41, v65, v69\n v_add_f32 v42, v66, v70")
    xg_sum(a, [40, 41, 42], [44, 45, 46])
    ln_scalars(a, 40, 41)
    a(f"""v_fma_f32 v42, -v40, s36, v42
    v_mul_f32 v42, v42, v41
    v_ashrrev_i32 v4, 31, v42
    v_or_b32 v4, 0x80000000, v4
    v_xor_b32 v4, v4, v42
    v_and_or_b32 v4, v4, s6, v23
    v_min_u32 v42, -2, v42
    v_mov_b32 v5, v4
    v_mov_b32 v7, 0
    v_mov_b32_dpp v5, v4 row_ror:4 row_mask:0x2 bank_mask:0xf
    v_mov_b32_dpp v5, v4 row_ror:8 row_mask:0x4 bank_mask:0xf
    v_mov_b32_dpp v5, v4 row_ror:12 row_mask:0x8 bank_mask:0xf
    v_mov_b32_dpp v44, v5 row_ror:1 row_mask:0xf bank_mask:0xf
    v_mov_b32_dpp v45, v5 row_ror:2 row_mask:0xf bank_mask:0xf
    v_mov_b32_dpp v46, v5 row_ror:3 row_mask:0xf bank_mask:0xf
    v_cmp_gt_u32 s[40:41], v5, v4
    v_cmp_gt_u32 s[42:43], v44, v4
    v_cmp_gt_u32 s[44:45], v45, v4
    v_cmp_gt_u32 s[46:47], v46, v4
    v_addc_co_u32 v7, vcc, 0, v7, s[40:41]
    v_addc_co_u32 v7, vcc, 0, v7, s[42:43]
    v_addc_co_u32 v7, vcc, 0, v7, s[44:45]
    v_addc_co_u32 v7, vcc, 0, v7, s[46:47]
    v_mov_b32 v6, v7
    v_permlane16_swap_b32 v7, v6
    v_add_u32 v7, v7, v6
    v_mov_b32 v6, v7
    v_permlane32_swap_b32 v7, v6
    v_add_u32 v7, v7, v6
    v_min_u32 v6, 2, v7
    v_or_b32 v43, v4, v6
    v_lshlrev_b32 v7, 2, v7
    s_mov_b64 exec, 0xffff
    s_cmp_lg_u32 {sCS}, 0
    s_cbranch_scc1 L_NOKEY
    buffer_store_dword v43, v7, {WSR}, s4 offen sc1
    L_NOKEY:
    ds_write_b128 v9, v[40:43]
    {MALL}
    s_waitcnt lgkmcnt(0)
    s_barrier
    s_cmp_lg_u32 {sW}, {LW}
    s_cbranch_scc1 L_SELW
    s_mov_b32 s4, {KEY_OFF}
    s_mov_b32 s5, {KEY_OFF + (64 << KSH)}
    s_mov_b32 s28, {SB+SURV}
    s_mov_b32 s29, 0
    v_and_b32 v13, 31, v1
    v_lshlrev_b32 v13, 2, v13
    v_add_u32 v13, {SB+SURV}, v13
    v_lshrrev_b32 v8, 5, v1
    v_lshlrev_b32 v8, 6, v8
    v_add_u32 v11, {SB+SURV}, v8""")
    if OPT.get("ksleep", 4): a(f"s_sleep {OPT.get('ksleep', 4)}")
    a.stamp(3, 3)
    a("L_KQ:")
    spin_head(a, "L_KPOLL")
    a(f"""buffer_load_dwordx4 v[40:43], v12, {WSR}, s4 offen sc1
    buffer_load_dwordx4 v[44:47], v12, {WSR}, s5 offen sc1
    s_waitcnt vmcnt(0)
    v_max3_u32 v4, v41, v42, v43
    v_max3_u32 v5, v45, v46, v47
    v_max_u32 v6, v40, v44
    v_max3_u32 v4, v4, v5, v6
    v_cmp_eq_u32 vcc, -1, v4""")
    spin_tail(a, "L_KPOLL", OPT.get("psl3", 1))
    a.stamp(4, 3)
    a(f"""s_cmp_lg_u32 s29, 0
    s_cbranch_scc1 L_HAVET
    v_max_u32_dpp v6, v6, v6 quad_perm:[1,0,3,2] row_mask:0xf bank_mask:0xf
    v_max_u32_dpp v6, v6, v6 quad_perm:[2,3,0,1] row_mask:0xf bank_mask:0xf
    v_max_u32_dpp v6, v6, v6 row_half_mirror row_mask:0xf bank_mask:0xf
    v_min_u32_dpp v6, v6, v6 row_ror:8 row_mask:0xf bank_mask:0xf
    v_mov_b32 v5, v6
    v_permlane16_swap_b32 v6, v5
    v_min_u32 v6, v6, v5
    v_mov_b32 v5, v6
    v_permlane32_swap_b32 v6, v5
    v_min_u32 v48, v6, v5
    L_HAVET:""")
    a.stamp(5, 3)
    ordr = [0, 4, 1, 5, 2, 6, 3, 7]
    for i in ordr: a(f"v_cmp_ge_u32 s[{40+2*i}:{41+2*i}], v{40+i}, v48")
    for i in ordr: a(f"v_mbcnt_lo_u32_b32 v{50+i}, s{40+2*i}, 0")
    for i in ordr: a(f"v_mbcnt_hi_u32_b32 v{50+i}, s{41+2*i}, v{50+i}")
    for n, i in enumerate(ordr):
        if n in (2, 4):
            a(f"s_or_b64 s[6:7], s[{40+2*i}:{41+2*i}], s[{48+2*i}:{49+2*i}]\n s_cbranch_scc0 L_CDONE")
        a(f"""v_lshl_add_u32 v{50+i}, v{50+i}, 2, s28
        s_bcnt1_i32_b64 s3, s[{40+2*i}:{41+2*i}]
        s_mov_b64 exec, s[{40+2*i}:{41+2*i}]
        ds_write_b32 v{50+i}, v{40+i}
        {MALL}
        s_lshl_b32 s3, s3, 2
        s_add_u32 s28, s28, s3""")
    a(f"""s_or_b64 s[6:7], s[46:47], s[54:55]
    s_cbranch_scc0 L_CDONE
    s_add_u32 s29, s29, 1
    s_add_u32 s4, s4, 16
    s_add_u32 s5, s5, 16
    s_cmp_lt_u32 s29, 4
    s_cbranch_scc1 L_KQ
    L_CDONE:
    s_sub_u32 s4, s28, {SB+SURV}
    s_mov_b32 s5, 0
    s_mov_b32 s28, {SB+SELL}""")
    a.stamp(6, 3)
    a(f"""L_OUTER:
    ds_read_b32 v6, v13
    v_mov_b32 v7, 0
    v_mov_b32 v8, v11
    s_mov_b32 s6, 0
    L_INNER:""")
    for k in range(4): a(f"ds_read_b128 {q4(44+4*k)}, v8 offset:{16*k}")
    a("""v_add_u32 v8, 128, v8
    s_add_u32 s6, s6, 128
    v_mov_b32 v9, 0
    s_waitcnt lgkmcnt(2)""")
    for h in range(2):
        if h: a("s_waitcnt lgkmcnt(0)")
        for i in range(8): a(f"v_cmp_gt_u32 s[{40+2*i}:{41+2*i}], v{44+8*h+i}, v6")
        for i in range(8): a(f"v_addc_co_u32 v{7+2*(i&1)}, vcc, 0, v{7+2*(i&1)}, s[{40+2*i}:{41+2*i}]")
    a(f"""v_add_u32 v7, v7, v9
    s_cmp_lt_u32 s6, s4
    s_cbranch_scc1 L_INNER
    v_mov_b32 v8, v7
    v_not_b32 v6, v6
    v_and_b32 v6, 0x1fff, v6
    v_permlane32_swap_b32 v7, v8
    v_add_u32 v7, v7, v8
    v_cmp_gt_u32 vcc, 8, v7
    v_lshl_add_u32 v7, v7, 2, s28
    s_and_saveexec_b64 s[6:7], vcc
    ds_write_b32 v7, v6
    {MALL}
    v_add_u32 v13, 128, v13
    s_add_u32 s5, s5, 128
    s_cmp_lt_u32 s5, s4
    s_cbranch_scc1 L_OUTER
    s_branch L_SELW""")
    a("L_CLO:")
    if RPE == 1: rp_dma("L_RP1", "scc0")
    a(f"""s_lshl_b32 s4, {sCS}, 10
    s_add_u32 s35, s4, s37
    s_add_u32 s38, s35, {PARTB}
    v_mul_u32_u24 v5, 160, v2
    v_add3_u32 v12, v5, v17, s34
    v_lshlrev_b32 v7, 4, v1
    v_mov_b32 v47, 0
    s_barrier""")
    a.stamp(6, 4)
    for t in range(5): a(f"ds_read_b128 {q4(CWF+4*t)}, v13 offset:{1024*t}")
    E = range(0, 20, 2)
    for e in E:
        if e % 4 == 0: a(f"s_waitcnt lgkmcnt({4 - e//4})")
        a(f"v_pk_add_f32 {q2(CAC+e)}, {q2(CAC+e)}, {q2(CWF+e)}")
    for e in E:
        c = 6 * ((e >> 1) & 1)
        if e < 4:
            a(f"v_pk_add_f32 {q2(50+c)}, {q2(CAC+e)}, {q2(CAC+e+4)}\n v_pk_mul_f32 {q2(52+c)}, {q2(CAC+e)}, {q2(CAC+e)}\n v_pk_mul_f32 {q2(54+c)}, {q2(CAC+e)}, {q2(WU+e)}")
        else:
            if e >= 8: a(f"v_pk_add_f32 {q2(50+c)}, {q2(50+c)}, {q2(CAC+e)}")
            a(f"v_pk_fma_f32 {q2(52+c)}, {q2(CAC+e)}, {q2(CAC+e)}, {q2(52+c)}\n v_pk_fma_f32 {q2(54+c)}, {q2(CAC+e)}, {q2(WU+e)}, {q2(54+c)}")
    for k in range(3): a(f"v_pk_add_f32 {q2(50+2*k)}, {q2(50+2*k)}, {q2(56+2*k)}")
    for k in range(3): a(f"v_add_f32 v{44+k}, v{50+2*k}, v{51+2*k}")
    xg_sum(a, [44, 45, 46], [40, 41, 42])
    a(f"""v_min_u32 v44, -2, v44
    v_min_u32 v45, -2, v45
    v_min_u32 v46, -2, v46
    s_mov_b64 exec, 0xffff
    buffer_store_dwordx4 v[44:47], v10, {WSR}, s35 offen
    buffer_store_dwordx4 v[44:47], v10, {WSR}, s38 offen sc1
    {MALL}
    s_barrier""")
    a.stamp(10); a.stamp(7, 4)
    if RPE == 3: rp_dma("L_RP1", "scc0")
    for e in E: a(f"v_cvt_pk_bf16_f32 v{HP+e//2}, v{CAC+e}, v{CAC+e+1}")
    for e in E: a(f"v_min_u32 v{HP+e//2}, -2, v{HP+e//2}")
    for e in E: a(f"v_lshlrev_b32 v{CAC+e}, 16, v{HP+e//2}\n v_and_b32 v{CAC+e+1}, 0xffff0000, v{HP+e//2}")
    for k in range(5): a(f"ds_write_b64 v12, {q2(HP+2*k)} offset:{8*k}")
    a(f"""s_lshl_b32 s3, {sLO}, 8
    s_add_u32 s3, s3, {SB+LMR}
    v_lshl_add_u32 v9, v2, 4, s3
    s_lshl_b32 s3, {sRB2}, 2
    s_add_u32 s3, s3, {sLO}
    s_lshl_b32 s3, s3, 12
    s_lshl_b32 s4, {sCS}, 8
    s_add_u32 s3, s3, s4
    s_add_u32 s28, s3, {EP_OFF}
    v_lshl_add_u32 v11, v3, 11, v10
    s_barrier
    ds_read_b64 v[40:41], v9
    ds_read_b32 v22, v9 offset:12
    s_waitcnt lgkmcnt(0)""")
    for e in E: a(f"v_pk_add_f32 {q2(XU+e)}, {q2(CAC+e)}, v[40:41] op_sel_hi:[1,0] neg_lo:[0,1] neg_hi:[0,1]")
    for e in E: a(f"v_cvt_pk_bf16_f32 v{OUTP+e//2}, v{XU+e}, v{XU+e+1}")
    for e in E: a(f"v_lshlrev_b32 v{XU+e}, 16, v{OUTP+e//2}\n v_and_b32 v{XU+e+1}, 0xffff0000, v{OUTP+e//2}")
    a("v_mov_b32 v42, v41")
    for e in E: a(f"v_pk_mul_f32 {q2(XU+e)}, {q2(XU+e)}, v[42:43] op_sel_hi:[1,0]")
    for e in E: a(f"v_cvt_pk_bf16_f32 v{OUTP+e//2}, v{XU+e}, v{XU+e+1}")
    for e in E: a(f"v_min_u32 v{OUTP+e//2}, -2, v{OUTP+e//2}")
    for k in range(5): a(f"ds_write_b64 v12, {q2(OUTP+2*k)} offset:{2560 + 8*k}")
    a(f"""v_and_b32 v4, 3, v22
    v_cmp_eq_u32 s[4:5], 0, v4
    v_cmp_eq_u32 s[6:7], 1, v4
    s_ff1_i32_b32 s4, s4
    s_ff1_i32_b32 s6, s6
    s_mul_i32 s4, s4, 160
    s_mul_i32 s6, s6, 160
    v_mov_b32 v4, s4
    v_mov_b32 v5, s6
    v_cmp_eq_u32 vcc, 1, v3
    v_cndmask_b32 v4, v4, v5, vcc
    v_add3_u32 v4, v4, v10, s34
    s_mov_b64 exec, 0x03ff03ff
    ds_read_b128 v[52:55], v4 offset:2560
    s_waitcnt lgkmcnt(0)
    buffer_store_dwordx4 v[52:55], v11, {WSR}, s28 offen sc1
    {MALL}
    """)
    rp_dma("L_RP2", "scc1")
    for e in E: a(f"v_lshlrev_b32 v{XU+e}, 16, v{OUTP+e//2}\n v_and_b32 v{XU+e+1}, 0xffff0000, v{OUTP+e//2}")
    for e in E: a(f"v_pk_add_f32 {q2(XU+e)}, {q2(XU+e)}, {q2(CAC+e)}")
    for e in E: a(f"v_cvt_pk_bf16_f32 v{OUTP+e//2}, v{XU+e}, v{XU+e+1}")
    a("v_not_b32 v22, v22\n v_and_b32 v22, 0x1fff, v22\n s_waitcnt vmcnt(0)")
    a(f"""L_SELW:
    v_and_b32 v9, 7, v1
    v_lshlrev_b32 v62, 8, v9
    v_lshlrev_b32 v9, 2, v9
    v_add_u32 v9, {SB+SELL}, v9
    v_bfe_u32 v4, v1, 4, 1
    v_mul_u32_u24 v6, 2560, v4
    v_lshlrev_b32 v7, 4, v2
    v_sub_u32 v60, {RED + 2560}, v6
    v_add_u32 v60, v60, v7
    s_lshl_b32 s3, {sCS}, 11
    s_lshl_b32 s4, {sW}, 8
    s_add_u32 s3, s3, s4
    s_add_u32 s3, s3, {XS_OFF}
    v_lshl_add_u32 v61, v4, 14, v7
    v_add_u32 v61, s3, v61
    s_lshl_b32 s3, {sW}, 11
    s_add_u32 s3, s3, {XS_OFF}
    v_add_u32 v62, s3, v62
    s_add_u32 s29, s4, {EP_OFF}
    v_mov_b32 v5, {SB+SELL}""")
    srd(a, 8, P_OUT, 2621440)
    a(f"""s_waitcnt lgkmcnt(0)
    s_barrier
    ds_read_b32 v23, v9
    ds_read_b128 v[44:47], v5
    ds_read_b128 v[48:51], v5 offset:16
    s_waitcnt lgkmcnt(2)""")
    a.stamp(11); a.stamp(7, 3)
    def publish(L):
        a(f"""v_readlane_b32 s4, v23, {sW}
        s_lshr_b32 s5, s4, 8
        s_cmp_lg_u32 s5, {sRB2}
        s_cbranch_scc1 {L}
        s_bfe_u32 s5, s4, 0x20006
        s_mul_i32 s5, s5, 5120
        s_bfe_u32 s6, s4, 0x40002
        s_mul_i32 s6, s6, 160
        s_add_u32 s5, s5, s6
        v_add_u32 v4, s5, v60
        s_bfe_u32 s4, s4, 0x60002
        s_lshl_b32 s4, s4, 4
        s_add_u32 s4, s4, {SB+LMR}
        v_mov_b32 v5, s4
        v_cmp_eq_u32 vcc, 26, v1
        v_cndmask_b32 v4, v4, v5, vcc
        s_mov_b64 exec, 0x07ff03ff
        ds_read_b128 v[52:55], v4
        s_waitcnt lgkmcnt(0)
        buffer_store_dwordx4 v[52:55], v61, {WSR}, 0 offen sc1
        {MALL}
        {L}:""")
    def out_store(L):
        a(f"s_cmp_lg_u32 {sHI}, {FH}\n s_cbranch_scc1 {L}\n s_waitcnt lgkmcnt(0)")
        for i in range(8): a(f"v_cmp_ne_u32 vcc, v{44+i}, v22\n s_and_b64 exec, exec, vcc")
        a(f"""s_cbranch_execz {L}
        buffer_store_dwordx4 {q4(OUTP)}, v16, s[8:11], 0 offen {OFL}
        buffer_store_dwordx4 {q4(OUTP+4)}, v16, s[8:11], 0 offen offset:16 {OFL}
        buffer_store_dwordx2 {q2(OUTP+8)}, v16, s[8:11], 0 offen offset:32 {OFL}""")
        a(f"{L}:\n {MALL}")
    a(f"s_cmp_ge_u32 {sROLE}, 32\n s_cbranch_scc1 L_E")
    HF, DW, MRV = 64, 80, 24
    for r in range(12): a(f"v_mov_b32 v{HF+r}, 0")
    a(f"""v_lshrrev_b32 v4, 6, v23
    v_lshlrev_b32 v4, 12, v4
    v_not_b32 v5, v23
    v_and_b32 v5, 3, v5               ; slot
    v_lshl_add_u32 v4, v5, 11, v4
    v_add_u32 v4, s29, v4
    v_cmp_gt_u32 vcc, 2, v5
    v_cndmask_b32 v12, v62, v4, vcc
    v_lshl_add_u32 v12, v3, 4, v12""")
    def d_loads():
        a(f"""s_mov_b32 exec_lo, 0x00ff00ff
        s_mov_b32 exec_hi, 0x00ff00ff
        buffer_load_dwordx4 {q4(HF)}, v12, {WSR}, 0 offen sc1
        buffer_load_dwordx4 {q4(HF+4)}, v12, {WSR}, 0 offen offset:64 sc1
        s_mov_b32 exec_hi, 0
        buffer_load_dwordx4 {q4(HF+8)}, v12, {WSR}, 0 offen offset:128 sc1
        {MALL}""")
    def d_check():
        a(f"""s_waitcnt vmcnt(0)
        v_max3_u32 v5, v{HF}, v{HF+1}, v{HF+2}
        v_max3_u32 v6, v{HF+3}, v{HF+4}, v{HF+5}
        v_max3_u32 v5, v5, v{HF+6}, v{HF+7}
        v_max3_u32 v6, v6, v{HF+8}, v{HF+9}
        v_max3_u32 v5, v5, v{HF+10}, v{HF+11}
        v_max_u32 v5, v5, v6
        v_cmp_eq_u32 vcc, -1, v5""")
    d_loads()
    publish("L_NOPUB")
    a(f"""s_mul_i32 s5, {sW}, 1280
    s_add_u32 s5, s5, {GW}
    v_bfe_u32 v4, v1, 2, 2
    v_lshl_add_u32 v4, v3, 3, v4
    v_lshlrev_b32 v4, 4, v4
    v_and_b32 v5, 1, v1
    v_lshl_add_u32 v4, v5, 3, v4
    v_bfe_u32 v5, v1, 1, 1
    v_mul_u32_u24 v5, 10240, v5
    v_add3_u32 v11, v4, v5, s5
    s_add_u32 s3, s32, {DRED}
    v_lshl_add_u32 v10, v1, 4, s3""")
    for ks in range(3):
        for h in range(2): a(f"ds_read_b64_tr_b16 {q2(DW+4*ks+2*h)}, v11 offset:{ks*512 + h*64}")
    a("v_cmp_gt_u32 vcc, 32, v1\n s_waitcnt lgkmcnt(0)")
    for r in range(4): a(f"v_cndmask_b32 v{DW+8+r}, 0, v{DW+8+r}, vcc")
    d_check()
    a("s_cbranch_vccz L_RPOLL_OK")
    spin_head(a, "L_RPOLL")
    d_loads(); d_check()
    spin_tail(a, "L_RPOLL", 1)
    a.stamp(8, 3)
    for ks in range(3): a(mm16(28, DW+4*ks, HF+4*ks, ks == 0))
    a(f"""ds_write_b128 v10, v[28:31]
    s_waitcnt lgkmcnt(0)
    s_barrier""")
    a.stamp(9, 3)
    a(f"s_cmp_eq_u32 {sW}, {LW}\n s_cbranch_scc1 L_DFIN\n s_barrier")
    out_store("L_OUTD")
    a(f"""s_branch L_END
    L_DFIN:
    v_subrev_u32 v10, {LW*1024}, v10""")
    oth = [w for w in range(8) if w != LW]
    for n, w in enumerate(oth): a(f"ds_read_b128 {q4(64+4*n)}, v10 offset:{1024*w}")
    for n in range(7):
        a(f"s_waitcnt lgkmcnt({6-n})")
        for r in (0, 2): a(f"v_pk_add_f32 {q2(28+r)}, {q2(28+r)}, {q2(64+4*n+r)}")
    a("""v_cvt_pk_bf16_f32 v32, v28, v29
    v_cvt_pk_bf16_f32 v33, v30, v31
    v_mov_b32 v34, v32
    v_mov_b32 v35, v33
    v_permlane32_swap_b32 v32, v34
    v_permlane32_swap_b32 v33, v35""")
    a.stamp(10, 3)
    for k in range(2):
        a(f"""v_lshlrev_b32 v{40+2*k}, 16, v{32+k}
        v_and_b32 v{41+2*k}, 0xffff0000, v{32+k}
        v_lshlrev_b32 v{44+2*k}, 16, v{34+k}
        v_and_b32 v{45+2*k}, 0xffff0000, v{34+k}""")
    for r in range(4): a(f"v_mul_f32 v{48+r}, 0xbfb8aa3b, v{40+r}")
    for r in range(4): a(f"v_exp_f32 v{48+r}, v{48+r}")
    for r in range(4): a(f"v_add_f32 v{48+r}, 1.0, v{48+r}")
    for r in range(4): a(f"v_rcp_f32 v{48+r}, v{48+r}")
    for r in range(4): a(f"v_mul_f32 v{40+r}, v{40+r}, v{48+r}")
    a("v_cvt_pk_bf16_f32 v32, v40, v41\n v_cvt_pk_bf16_f32 v33, v42, v43")
    for k in range(2):
        a(f"v_lshlrev_b32 v{40+2*k}, 16, v{32+k}\n v_and_b32 v{41+2*k}, 0xffff0000, v{32+k}")
    for r in (0, 2): a(f"v_pk_mul_f32 {q2(40+r)}, {q2(40+r)}, {q2(44+r)}")
    a(f"""v_cvt_pk_bf16_f32 v32, v40, v41
    v_cvt_pk_bf16_f32 v33, v42, v43
    v_min_u32 v32, -2, v32
    v_min_u32 v33, -2, v33
    v_mov_b32 v34, v32
    v_mov_b32 v35, v33
    v_lshlrev_b32 v4, 4, v2
    v_permlane16_swap_b32 v32, v34
    v_permlane16_swap_b32 v33, v35
    s_lshl_b32 s3, s30, 7
    s_add_u32 s3, s3, {ACT_OFF}
    s_mov_b64 exec, 0xff
    buffer_store_dwordx4 v[32:35], v4, {WSR}, s3 offen sc1
    s_barrier
    s_branch L_END""")
    AF, EW = 64, 96
    a("L_E:")
    publish("L_NOPUBE")
    a("v_lshrrev_b32 v23, 2, v23")
    wd_dma(range(WD1, 7), "2")
    a(f"""s_sub_u32 s30, s30, 256
    s_mul_i32 s4, s30, 52
    s_lshr_b32 s4, s4, 8              ; cg/5
    s_lshl_b32 s5, s4, 11
    s_add_u32 s35, s5, {XS_OFF + 16384 + 160}
    s_mul_i32 s4, s4, {2048 - 160}
    s_lshl_b32 s30, s30, 5
    s_add_u32 s4, s4, s30
    s_add_u32 s33, s4, {XS_OFF}
    s_add_u32 s34, s33, 16384
    v_and_b32 v17, 7, v2
    v_lshlrev_b32 v17, 8, v17
    v_lshl_add_u32 v19, v3, 3, v17
    v_add_u32 v11, s32, v21
    v_add_u32 v14, {GW}, v11
    s_waitcnt lgkmcnt(0)""")
    out_store("L_OUTE")
    srd(a, 12, P_WS, ACT_OFF + 27648)
    a(f"""v_and_b32 v4, 7, v2
    v_lshlrev_b32 v12, 4, v4
    v_lshl_add_u32 v12, v3, 7, v12
    s_lshl_b32 s4, {sW}, 9
    s_add_u32 s4, s4, {ACT_OFF}
    v_mul_u32_u24 v13, 1280, v23
    v_lshl_add_u32 v13, v3, 3, v13
    v_add_u32 v13, s30, v13
    s_add_u32 s3, s32, {DRED}
    v_lshl_add_u32 v10, v1, 4, s3
    s_cmp_lg_u32 {sW}, {LW}
    s_cbranch_scc1 L_ENOH""")
    spin_head(a, "L_HPOLL")
    a(f"""buffer_load_dwordx2 v[136:137], v19, {WSR}, s33 offen sc1
    buffer_load_dwordx2 v[130:131], v19, {WSR}, s34 offen sc1
    buffer_load_dword v134, v17, {WSR}, s35 offen offset:8 sc1
    s_waitcnt vmcnt(0)
    v_max3_u32 v5, v130, v131, v134
    v_max3_u32 v5, v5, v136, v137
    v_cmp_eq_u32 vcc, -1, v5""")
    spin_tail(a, "L_HPOLL")
    rb16(a, 134)
    a("v_mul_f32 v15, 0xbfb8aa3b, v134\n v_exp_f32 v15, v15\n v_add_f32 v15, 1.0, v15\n v_rcp_f32 v15, v15")
    rb16(a, 15)
    a("L_ENOH:\n s_waitcnt vmcnt(0)")
    for j in range(7):
        b, o = (14, wd_lds(j) - GW) if j < WD1 else (11, wd_lds(j))
        for h in range(2): a(f"ds_read_b64_tr_b16 {q2(EW+4*j+2*h)}, v{b} offset:{o + h*256}")
    if OPT.get('hint', 0):
        spin_head(a, "L_AHINT")
        a(f"""buffer_load_dwordx4 {q4(AF)}, v12, s[12:15], s4 offen sc1
    s_waitcnt vmcnt(0)
    v_cmp_eq_u32 vcc, -1, v{AF}""")
        spin_tail(a, "L_AHINT")
    if OPT.get('asleep', 0): a(f"s_sleep {OPT['asleep']}")
    spin_head(a, "L_APOLL")
    for j in range(7): a(f"s_add_u32 s5, s4, {4096*j}\n buffer_load_dwordx4 {q4(AF+4*j)}, v12, s[12:15], s5 offen sc1")
    a(f"s_waitcnt vmcnt(0) lgkmcnt(0)")
    for j in range(7):
        a(mm16(24, EW+4*j, AF+4*j, j == 0))
        if j == 0: a(f"v_max_u32 v5, v{AF}, v{AF+1}\n v_max3_u32 v5, v5, v{AF+2}, v{AF+3}")
        else: a(f"v_max3_u32 v5, v5, v{AF+4*j}, v{AF+4*j+1}\n v_max3_u32 v5, v5, v{AF+4*j+2}, v{AF+4*j+3}")
    a("v_cmp_eq_u32 vcc, -1, v5")
    spin_tail(a, "L_APOLL", 1)
    a.stamp(11, 3)
    a(f"""ds_write_b128 v10, v[24:27]
    s_waitcnt lgkmcnt(0)
    s_barrier
    s_cmp_lg_u32 {sW}, {LW}
    s_cbranch_scc1 L_END
    v_subrev_u32 v10, {LW*1024}, v10""")
    for n, w in enumerate(oth): a(f"ds_read_b128 {q4(32+4*n)}, v10 offset:{1024*w}")
    for w in range(7):
        a(f"s_waitcnt lgkmcnt({6-w})")
        for r in (0, 2): a(f"v_pk_add_f32 {q2(24+r)}, {q2(24+r)}, {q2(32+4*w+r)}")
    a("v_cvt_pk_bf16_f32 v28, v24, v25\n v_cvt_pk_bf16_f32 v29, v26, v27")
    for k in range(2):
        a(f"v_lshlrev_b32 v{24+2*k}, 16, v{28+k}\n v_and_b32 v{25+2*k}, 0xffff0000, v{28+k}")
    for r in range(4): a(f"v_mul_f32 v{24+r}, v{24+r}, v15")
    a("v_cvt_pk_bf16_f32 v24, v24, v25\n v_cvt_pk_bf16_f32 v25, v26, v27")
    for k in range(2):
        add_pairs(a, 24 + k, 24 + k, 136 + k, 4, 5, 6)
        add_pairs(a, 24 + k, 24 + k, 130 + k, 4, 5, 6)
    a("""s_mov_b32 exec_lo, 0x00ff00ff
    s_mov_b32 exec_hi, 0x00ff00ff
    buffer_store_dwordx2 v[24:25], v13, s[8:11], 0 offen
    L_END:""")
    if PROF:
        a(f"{MALL}\n s_waitcnt vmcnt(0)")
        a.stamp(12)
        for i in range(16): a(f"v_mov_b32 v{8+i}, s{88+i}" if i < 13 else f"v_mov_b32 v{8+i}, 0")
        a(f"""s_lshl_b32 s3, s2, 9
        s_add_u32 s3, s3, {PROF_OFF}
        s_lshl_b32 s4, {sW}, 6
        s_add_u32 s3, s3, s4
        v_mov_b32 v4, s3
        s_mov_b64 exec, 1""")
        for i in range(4): a(f"global_store_dwordx4 v4, {q4(8+4*i)}, s[{P_WS}:{P_WS+1}] offset:{16*i}")
        if "ampj" in OPT:
            i, j = OPT["ampi"], OPT["ampj"]
            a(f"""s_sub_u32 s4, s{88+j}, s{88+i}
            s_mul_i32 s4, s4, 10
            s_min_u32 s4, s4, 100000
            s_cmp_lg_u32 {sW}, 0
            s_cbranch_scc1 L_EXIT
            L_AMP:
            s_memrealtime s[6:7]
            s_waitcnt lgkmcnt(0)
            s_sub_u32 s5, s6, s100
            s_cmp_lt_u32 s5, s4
            s_cbranch_scc1 L_AMP""")
    a("L_EXIT:\n s_endpgm")

    a("L_FALLBACK:\n s_waitcnt vmcnt(0)\n s_nop 7\n s_nop 7")
    S0 = 112
    def S(i): return S0 + 16*i
    KF = 24
    for n in range(9):
        a(kread(KF + 6*n, n))
        if n % 4 == 3: a("s_waitcnt lgkmcnt(0)")
    a("s_waitcnt lgkmcnt(0)")
    for n in range(9): a(f"{s1(S(n), KF+6*n)}\n {s2(S(n), KF+6*n)}")
    for r in range(8): a(f"v_mov_b32 v{78+r}, 0x3f803f80")
    a("s_nop 7\n s_nop 7")
    for i in range(8):
        a(f"s_cmp_gt_i32 s30, {i}\n s_cbranch_scc0 L_VALID")
        for r in range(16): a(f"v_mov_b32 v{S(i)+r}, 0xff800000")
    a("L_VALID:")
    for r in range(16): a(f"v_cndmask_b32 v{S(0)+r}, v{S(8)+r}, v{S(0)+r}, s[{MS+2*r}:{MS+1+2*r}]")
    a(f"v_max_f32 v4, v{S(0)}, v{S(0)+1}")
    for k in range(1, 64): a(f"v_max3_f32 v4, v{S0+2*k}, v{S0+2*k+1}, v4")
    a("""v_mov_b32 v5, v4
    v_permlane32_swap_b32 v4, v5
    v_max_f32 v4, v4, v5""")
    for i in range(8):
        s = S(i)
        for r in range(16): a(f"v_sub_f32 v{s+r}, v{s+r}, v4")
        for r in range(16): a(f"v_exp_f32 v{s+r}, v{s+r}")
        for k in range(8): a(f"v_cvt_pk_bf16_f32 v{s+k}, v{s+2*k}, v{s+2*k+1}")
    s = S(0)
    for k in range(8): a(f"v_and_b32 v{s+8+k}, v{MK+k}, v{s+k}")
    for k in range(8): a(f"v_xor_b32 v{S(8)+k}, v{s+8+k}, v{s+k}")
    for t in range(9):
        p = s + 8 if t == 0 else S(t)
        a(vread(78, t, False))
        a(f"s_waitcnt lgkmcnt(0)\n {pvm(78, p, t == 0)}\n {pvm(82, p + 4)}\n s_nop 7")
    a("s_nop 7")
    early_loads("L_EL2")
    if OPT.get("rpn", 8) == 9: gu_loads("L_GU2", bGU)
    a("s_branch L_BDONE")

def build():
    a = PAsm()
    kernel(a)
    name = NAME + "_kernel"
    L = ["; @launch grid=(256,1,1) block=(512,1,1) lds=163840",
         '.amdgcn_target "amdgcn-amd-amdhsa--gfx950"', ".text", f".globl {name}", ".p2align 8",
         f".type {name},@function", f"{name}:", a.render(), "CODE_END:", "s_endpgm",
         '.section .rodata,"a"', ".p2align 6", f".amdhsa_kernel {name}", "  .amdhsa_next_free_vgpr 256",
         "  .amdhsa_next_free_sgpr 102", "  .amdhsa_accum_offset 256", "  .amdhsa_group_segment_fixed_size 0",
         "  .amdhsa_kernarg_size 88", "  .amdhsa_user_sgpr_count 2", "  .amdhsa_user_sgpr_kernarg_segment_ptr 1",
         "  .amdhsa_system_sgpr_workgroup_id_x 1", ".end_amdhsa_kernel"]
    return "\n".join(L) + "\n"

def check_ws(w, im, cmp, tof):
    import numpy as np
    qkv = im["qkv"]
    q = tof(w[Q_OFF:Q_OFF + 16*64*T32].view(np.uint16)).reshape(16, 64, 5, 32, 8).transpose(1, 3, 0, 2, 4).reshape(2048, 640)
    cmp("q", q, qkv[:, :640] * (20 ** -0.5) * 1.4426950408889634)
    k = tof(w[K_OFF:K_OFF + 16*64*T32].view(np.uint16)).reshape(16, 64, 5, 32, 8).transpose(1, 3, 0, 2, 4).reshape(2048, 640)
    cmp("k", k, qkv[:, 640:1280])
    v = tof(w[V_OFF:V_OFF + 16*64*T32].view(np.uint16)).reshape(16, 256, 40, 8).transpose(1, 3, 0, 2).reshape(2048, 640)
    cmp("v", v, qkv[:, 1280:])
    ob = w[O_OFF:O_OFF + 64*40960].reshape(64, 40960)
    om = tof(np.ascontiguousarray(ob[:, :32768]).view(np.uint16)).reshape(64, 32, 2, 32, 8).transpose(0, 3, 1, 2, 4).reshape(2048, 32, 16)
    oq = tof(np.ascontiguousarray(ob[:, 32768:]).view(np.uint16)).reshape(64, 32, 32, 4).transpose(0, 2, 1, 3).reshape(2048, 32, 4)
    o = np.concatenate([om, oq], axis=2).reshape(2048, 640)
    cmp("o", o, im["o"])

if __name__ == "__main__":
    PROF = "prof" in sys.argv
    if "cyc" in sys.argv: TIMER = "s_memtime"
    for x in sys.argv[2:]:
        if "=" in x:
            k, v = x.split("="); OPT[k] = int(v)
    out = sys.argv[1] if len(sys.argv) > 1 else f"cdna_kernels/{NAME}.s"
    txt = build()
    open(out, "w").write(txt)
    print("wrote", out, len(txt))
```

```python
import sys, struct
from asmlib import Asm

NAME = "sequential_preLN__sliding_block__moe_arch_mod__prompt"
Q_OFF = 0; K_OFF = 0x280000; V_OFF = 0x500000; O_OFF = 0x780000
PART_OFF = 0xC00000; EP_OFF = 0xC80000; PARTB = 0x40000; F1_OFF = 0xD00000; XS_OFF = 0xD08000; KEY_OFF = 0xD10000; ACT_OFF = 0xD14000
ST_OFF = 0xD1C000
RP_OFF = 0xD20000
WS_SIZE = RP_OFF + 27*8*20480
PROF_OFF = 0x1200000
T32 = 2560
PROF = False
TIMER = "s_memrealtime"
SPIN_MAX = 1 << 18
SLEEP = 2
OPT = {}

def f2u(x): return struct.unpack("<I", struct.pack("<f", x))[0]
QSCALE = f2u((20 ** -0.5) * 1.4426950408889634)
EPS = f2u(1e-5); INV640 = f2u(1.0 / 640)
P_X, P_WQKV, P_WO, P_WR, P_G, P_U, P_D, P_OUT, P_DBG, P_WS = 64, 66, 68, 72, 74, 76, 78, 80, 82, 84
WSR = "s[16:19]"
sW, sRB, sHP, sRB2, sCS, sROLE, sLO, sHI = "s20", "s21", "s22", "s23", "s24", "s25", "s26", "s27"

SCR = 94208
KL = 102400; VL = 133120; WOL = 0
GW = KL; SB = 122880; RED = VL
SURV = 0; WMAX = 8320; CNT = 8352; SELL = 8384; LMR = 8704
DRED = 65536

class PAsm(Asm):
    def stamp(self, i, grp=0):
        if i not in (0, 12) and grp != OPT.get("pg", 0): return
        if PROF:
            assert i < 13
            self(f"{TIMER} s[86:87]\n s_waitcnt lgkmcnt(0)\n s_mov_b32 s{88+i}, s86")

def srd(a, d, lo, size):
    a(f"""s_mov_b32 s{d}, s{lo}
    s_and_b32 s{d+1}, s{lo+1}, 0xffff
    s_mov_b32 s{d+2}, {size}
    s_mov_b32 s{d+3}, 0x00020000""")
def rb16(a, v): a(f"v_cvt_pk_bf16_f32 v{v}, v{v}, v{v}\n v_lshlrev_b32 v{v}, 16, v{v}")
def ln_scalars(a, s1, s2):
    a(f"""v_mul_f32 v{s1}, {INV640:#x}, v{s1}
    v_mul_f32 v{s2}, {INV640:#x}, v{s2}
    v_fma_f32 v{s2}, -v{s1}, v{s1}, v{s2}
    v_max_f32 v{s2}, 0, v{s2}
    v_cvt_pk_bf16_f32 v{s2}, v{s1}, v{s2}
    v_lshlrev_b32 v{s1}, 16, v{s2}
    v_and_b32 v{s2}, 0xffff0000, v{s2}
    v_add_f32 v{s2}, {EPS:#x}, v{s2}""")
    rb16(a, s2)
    a(f"v_sqrt_f32 v{s2}, v{s2}")
    rb16(a, s2)
    a(f"v_rcp_f32 v{s2}, v{s2}")
def dpp_reduce(a, op, regs):
    for sh in (1, 2, 4, 8):
        for v in regs: a(f"{op}_dpp v{v}, v{v}, v{v} row_shr:{sh} row_mask:0xf bank_mask:0xf")
    for v in regs: a(f"{op}_dpp v{v}, v{v}, v{v} row_bcast:15 row_mask:0xa bank_mask:0xf")
    for v in regs: a(f"{op}_dpp v{v}, v{v}, v{v} row_bcast:31 row_mask:0xc bank_mask:0xf")
def xg_sum(a, regs, tmps):
    for x, t in zip(regs, tmps): a(f"v_mov_b32 v{t}, v{x}")
    for x, t in zip(regs, tmps): a(f"v_permlane16_swap_b32 v{x}, v{t}")
    for x, t in zip(regs, tmps): a(f"v_add_f32 v{x}, v{x}, v{t}")
    for x, t in zip(regs, tmps): a(f"v_mov_b32 v{t}, v{x}")
    for x, t in zip(regs, tmps): a(f"v_permlane32_swap_b32 v{x}, v{t}")
    for x, t in zip(regs, tmps): a(f"v_add_f32 v{x}, v{x}, v{t}")
def norm_pair(a, d, x, m, rs, t0, t1):
    a(f"""v_lshlrev_b32 v{t0}, 16, v{x}
    v_and_b32 v{t1}, 0xffff0000, v{x}
    v_subrev_f32 v{t0}, {m}, v{t0}
    v_subrev_f32 v{t1}, {m}, v{t1}
    v_cvt_pk_bf16_f32 v{d}, v{t0}, v{t1}
    v_lshlrev_b32 v{t0}, 16, v{d}
    v_and_b32 v{t1}, 0xffff0000, v{d}
    v_mul_f32 v{t0}, {rs}, v{t0}
    v_mul_f32 v{t1}, {rs}, v{t1}
    v_cvt_pk_bf16_f32 v{d}, v{t0}, v{t1}""")
def add_pairs(a, d, x, y, t0, t1, t2):
    a(f"""v_lshlrev_b32 v{t0}, 16, v{x}
    v_lshlrev_b32 v{t1}, 16, v{y}
    v_add_f32 v{t0}, v{t0}, v{t1}
    v_and_b32 v{t1}, 0xffff0000, v{x}
    v_and_b32 v{t2}, 0xffff0000, v{y}
    v_add_f32 v{t1}, v{t1}, v{t2}
    v_cvt_pk_bf16_f32 v{d}, v{t0}, v{t1}""")
def q2(r): return f"v[{r}:{r+1}]"
def q4(r): return f"v[{r}:{r+3}]"
def r16(x): return f"v[{x}:{x+15}]"
M40 = "s_mov_b32 exec_hi, 0xff"
MALL = "s_mov_b64 exec, -1"
def spin_head(a, L):
    a(f"s_mov_b32 s3, 0\n {L}:\n s_add_u32 s3, s3, 1\n s_cmp_gt_u32 s3, {SPIN_MAX}\n s_cbranch_scc1 L_END")
def spin_tail(a, L, sl=None):
    a(f"s_cbranch_vccz {L}_OK\n s_sleep {SLEEP if sl is None else sl}\n s_branch {L}\n {L}_OK:")
def div_lane(a, q, r, src, d):
    magic = (65536 + d - 1) // d
    a(f"""v_mul_u32_u24 v{q}, {magic}, v{src}
    v_lshrrev_b32 v{q}, 16, v{q}
    v_mul_u32_u24 v{r}, {d}, v{q}
    v_sub_u32 v{r}, v{src}, v{r}""")
def kappa(a, d, s, t):
    a(f"""v_and_b32 v{d}, 0x13, v{s}
    v_and_b32 v{t}, 4, v{s}
    v_lshl_or_b32 v{d}, v{t}, 1, v{d}
    v_and_b32 v{t}, 8, v{s}
    v_lshrrev_b32 v{t}, 1, v{t}
    v_or_b32 v{d}, v{d}, v{t}""")
def rho(a, d, t):
    a(f"""v_bfe_u32 v{d}, v1, 2, 2
    v_and_b32 v{t}, 1, v3
    v_lshl_or_b32 v{d}, v{t}, 2, v{d}
    v_lshrrev_b32 v{t}, 1, v3
    v_lshl_or_b32 v{d}, v{t}, 4, v{d}""")
def masked_load(a, dst, voff, ptr, L, fl=""):
    a(f"""s_and_saveexec_b64 s[6:7], vcc
    s_cbranch_execz {L}
    global_load_dword v{dst}, v{voff}, s[{ptr}:{ptr+1}] {fl}
    {L}:
    {MALL}""")
def mm16(d, x, y, first): return f"v_mfma_f32_16x16x32_bf16 {q4(d)}, {q4(x)}, {q4(y)}, {'0' if first else q4(d)}"

def kernel(a):
    vXD, vWD = 112, 113
    vAS = 114
    NEG = 76; ONES = 132
    FR = 136
    ACC = 184
    CS = 216
    PK = 220
    TMP = FR
    vST = 236
    vCW, vCR, vSR = 238, 239, 241
    STV = 244
    TD, vK0, vK1, vV, vO0, vO1 = 10, 11, 12, 13, 14, 15
    bWO0, bWO1, bGU, bF2A, vF1A, vHC, vTO = 22, 23, 86, 87, 85, 84, 83
    sGR, sCT = "s60", "s61"
    ROTX = [f"s_add_u32 s4, s4, {sCT}\n s_add_u32 s4, s4, {sGR}",
            f"s_add_u32 s4, s4, {sCT}",
            f"s_add_u32 s4, s4, {sCT}\n s_and_b32 s5, {sGR}, 1\n s_add_u32 s4, s4, s5",
            f"s_and_b32 s5, {sCT}, 6\n s_add_u32 s4, s4, s5",
            f"s_and_b32 s5, s2, 1\n s_lshl_b32 s5, s5, 1\n s_add_u32 s4, s4, s5\n s_add_u32 s4, s4, {sCT}\n s_add_u32 s4, s4, {sGR}",
            ][OPT.get("rotx", 0)]
    def slot(c): return (c % 5) * 32768
    if PROF:
        for i in range(13): a(f"s_mov_b32 s{88+i}, 0")
    a.stamp(0)
    a(f"""s_load_dwordx16 s[64:79], s[0:1], 0
    s_load_dwordx4 s[80:83], s[0:1], 64
    s_load_dwordx2 s[84:85], s[0:1], 80
    s_getpc_b64 s[4:5]
    CODE_START:
    s_cmp_ge_u32 s2, 256
    s_cbranch_scc1 L_EXIT
    s_lshr_b32 s63, s2, 3             ; idx
    s_lshl_b32 s3, s63, 7
    v_lshl_add_u32 v4, v0, 12, s3
    v_cmp_gt_u32 vcc, CODE_END-CODE_START, v4""")
    masked_load(a, 250, 4, 4, "L_NOPF")
    a(f"""v_and_b32 v1, 63, v0
    v_lshrrev_b32 v4, 6, v0
    v_and_b32 v2, 15, v0
    v_readfirstlane_b32 {sW}, v4
    v_lshrrev_b32 v3, 4, v1
    s_and_b32 s3, s63, 3
    s_lshr_b32 {sCT}, s63, 2
    s_bfe_u32 {sGR}, s2, 0x20001
    s_mul_i32 s4, s3, 5
    s_lshr_b32 s4, s4, 1
    {ROTX}
    s_cmp_ge_u32 s4, 10
    s_cselect_b32 s5, 10, 0
    s_sub_u32 s4, s4, s5              ; rot
    s_lshl_b32 {sGR}, {sGR}, 2
    s_add_u32 {sGR}, {sGR}, s3
    s_and_b32 s3, s2, 1
    s_lshl_b32 s3, s3, 3
    s_add_u32 {sCT}, {sCT}, s3
    s_lshl_b32 s28, s4, 7
    s_mul_i32 s29, s4, 245760
    s_lshl_b32 s3, {sGR}, 7
    s_lshl_b32 s4, {sW}, 3
    s_add_u32 s3, s3, s4
    v_lshrrev_b32 v4, 3, v1
    v_add_u32 v4, s3, v4
    v_mul_u32_u24 v4, 1280, v4
    s_and_b32 s3, {sW}, 1
    s_lshl_b32 s3, s3, 2
    v_or_b32 v5, s3, v3
    v_and_b32 v6, 7, v1
    v_xor_b32 v5, v5, v6
    v_lshl_add_u32 v{vXD}, v5, 4, v4
    s_lshl_b32 s3, {sW}, 2
    v_add_u32 v4, s3, v3
    v_mul_u32_u24 v4, 3840, v4
    s_lshl_b32 s3, {sW}, 1
    s_and_b32 s3, s3, 4
    v_or_b32 v5, s3, v3
    v_lshlrev_b32 v5, 1, v5
    v_xor_b32 v5, v5, v2
    v_lshl_add_u32 v4, v5, 4, v4
    s_lshl_b32 s3, {sCT}, 8
    v_add_u32 v{vWD}, s3, v4
    s_lshl_b32 s30, {sW}, 10
    s_waitcnt lgkmcnt(0)""")
    a.stamp(1)
    srd(a, 8, P_X, 2621440)
    srd(a, 12, P_WQKV, 2457600)
    def dmaA(c):
        b = slot(c)
        return [f"""s_add_u32 m0, s30, {b}
        s_add_u32 s31, s28, 81920
        buffer_load_dwordx4 v{vXD}, s[8:11], s28 offen lds""",
        f"""s_add_u32 m0, s30, {b + 16384}
        s_add_u32 s39, s29, 122880
        buffer_load_dwordx4 v{vWD}, s[12:15], s29 offen lds""",
        f"""s_add_u32 m0, s30, {b + 8192}
        s_add_u32 s28, s28, 128
        buffer_load_dwordx4 v{vXD}, s[8:11], s31 offen lds""",
        f"""s_add_u32 m0, s30, {b + 16384 + 8192}
        s_add_u32 s29, s29, 245760
        buffer_load_dwordx4 v{vWD}, s[12:15], s39 offen lds
        s_cmp_ge_u32 s28, 1280
        s_cselect_b32 s28, 0, s28
        s_cselect_b32 s29, 0, s29"""]
    srd(a, 16, P_WS, WS_SIZE)
    a(f"""s_lshl_b32 s4, {sCT}, 4
    s_add_u32 s4, s4, {sGR}
    s_lshl_b32 s4, s4, 7
    s_add_u32 s59, s4, {F1_OFF}
    v_mov_b32 v{NEG}, -1
    v_mov_b32 v{NEG+1}, -1
    v_mov_b32 v{NEG+2}, -1
    v_mov_b32 v{NEG+3}, -1
    s_cmp_lg_u32 {sW}, 7
    s_cbranch_scc1 L_NOCLR
    s_lshl_b32 s3, s2, 10
    s_add_u32 s3, s3, {PART_OFF}
    v_lshl_add_u32 v6, v1, 4, s3
    buffer_store_dwordx4 {q4(NEG)}, v6, {WSR}, 0 offen sc1
    s_mov_b32 s3, {PARTB}
    buffer_store_dwordx4 {q4(NEG)}, v6, {WSR}, s3 offen sc1
    s_mov_b32 s3, {EP_OFF - PART_OFF}
    buffer_store_dwordx4 {q4(NEG)}, v6, {WSR}, s3 offen sc1
    s_mov_b32 s3, {EP_OFF - PART_OFF + 0x40000}
    buffer_store_dwordx4 {q4(NEG)}, v6, {WSR}, s3 offen sc1
    s_lshl_b32 s6, s2, 7
    s_add_u32 s5, s6, {XS_OFF - 256}
    s_add_u32 s6, s6, {ACT_OFF - 128}
    s_lshl_b32 s7, s2, 6
    s_add_u32 s7, s7, {KEY_OFF - 384}
    v_mov_b32 v6, s59
    v_mov_b32 v7, s6
    v_cmp_le_u32 vcc, 8, v1
    v_cndmask_b32 v6, v6, v7, vcc
    v_mov_b32 v7, s5
    v_cmp_le_u32 vcc, 16, v1
    v_cndmask_b32 v6, v6, v7, vcc
    v_mov_b32 v7, s7
    v_cmp_le_u32 vcc, 24, v1
    v_cndmask_b32 v6, v6, v7, vcc
    v_lshl_add_u32 v6, v1, 4, v6
    s_mov_b64 exec, 0xfffffff
    buffer_store_dwordx4 {q4(NEG)}, v6, {WSR}, 0 offen sc1
    {MALL}
    s_cmp_lg_u32 {sCT}, 15
    s_cbranch_scc1 L_NOCLR
    s_lshl_b32 s3, {sGR}, 10
    s_add_u32 s3, s3, {ST_OFF}
    v_lshl_add_u32 v6, v1, 4, s3
    buffer_store_dwordx4 {q4(NEG)}, v6, {WSR}, 0 offen sc1
    L_NOCLR:
    s_cmp_eq_u32 {sCT}, 15
    s_cbranch_scc1 L_HLD""")
    for x in dmaA(0): a(x)
    a("s_branch L_PRE\n L_HLD:")
    HX = 136
    a(f"""s_lshl_b32 s3, {sGR}, 7
    s_lshl_b32 s4, {sW}, 4
    s_add_u32 s3, s3, s4
    v_lshrrev_b32 v4, 2, v1
    v_add_u32 v4, s3, v4
    v_mul_u32_u24 v4, 1280, v4
    v_and_b32 v5, 3, v1
    v_lshl_add_u32 v{vXD}, v5, 4, v4""")
    for i in range(4): a(f"buffer_load_dwordx4 {q4(HX+4*i)}, v{vXD}, s[8:11], 0 offen offset:{64*i}")
    a("L_PRE:")
    a.stamp(1, 1)
    a(f"""s_and_b32 {sLO}, {sW}, 3
    s_lshr_b32 {sHI}, {sW}, 2
    s_and_b32 s3, s2, 7
    s_lshl_b32 {sHP}, s3, 1
    s_lshr_b32 s4, s63, 4
    s_add_u32 {sHP}, {sHP}, s4
    s_and_b32 {sRB}, s63, 15
    s_lshl_b32 {sRB2}, s3, 2
    s_lshr_b32 s5, s63, 3
    s_add_u32 {sRB2}, {sRB2}, s5
    s_and_b32 {sCS}, s63, 7
    s_min_u32 s4, s3, 5
    s_sub_u32 {sROLE}, {sRB2}, s4
    s_cmp_eq_u32 s5, 3
    s_cselect_b32 s4, s3, 7
    s_add_u32 s3, s3, 32
    s_cmp_lt_u32 s4, 5
    s_cselect_b32 {sROLE}, s3, {sROLE}
    v_lshrrev_b32 v4, 1, v2
    v_xor_b32 v4, v4, v3
    v_lshlrev_b32 v4, 4, v4
    v_lshl_add_u32 v4, v2, 7, v4
    s_lshl_b32 s3, {sHI}, 13
    v_add_u32 v{vAS}, s3, v4
    v_xor_b32 v{vAS+1}, 64, v{vAS}
    v_bfe_u32 v4, v1, 2, 2
    v_and_b32 v5, 1, v3
    v_lshl_or_b32 v5, v5, 2, v4
    v_lshl_add_u32 v4, v3, 3, v4
    v_lshlrev_b32 v4, 8, v4
    v_and_b32 v6, 3, v1
    v_lshl_add_u32 v4, v6, 3, v4
    v_add_u32 v4, 16384, v4
    s_lshl_b32 s32, {sLO}, 1
    s_add_u32 s32, s32, {sHI}
    s_xor_b32 s33, s32, 1
    v_xor_b32 v6, s32, v5
    v_lshl_add_u32 v{vAS+2}, v6, 5, v4
    v_xor_b32 v{vAS+3}, 32, v{vAS+2}""")
    for q in (1, 2):
        for i in range(4): a(f"v_add_u32 v{vAS+4*q+i}, {65536*q}, v{vAS+i}")
    for i in range(4): a(f"v_mov_b32 v{ONES+i}, 0x3f803f80")
    a(f"""    ; epilogue addresses
    s_cmp_ge_u32 {sCT}, 10
    s_cselect_b64 s[56:57], -1, 0
    v_lshlrev_b32 v6, 4, v3
    v_lshlrev_b32 v7, 2, v2
    v_cndmask_b32 v8, v6, v7, s[56:57]
    v_cndmask_b32 v9, v7, v6, s[56:57]
    s_lshl_b32 s3, s32, 6
    s_add_u32 s3, s3, {SCR+1024}
    v_add_u32 v{vCW}, s3, v7
    v_add_u32 v{vCR}, s3, v8
    v_xor_b32 v{vCR+1}, 64, v{vCR}
    s_lshl_b32 s3, {sHI}, 8
    s_add_u32 s3, s3, {SCR}
    v_add_u32 v{vSR}, s3, v9
    s_mul_i32 s3, {sCT}, 52
    s_lshr_b32 s3, s3, 8              ; section
    s_mul_i32 s4, s3, 5
    s_sub_u32 s34, {sCT}, s4          ; ct % 5
    s_mul_i32 s37, s3, {K_OFF}
    s_lshl_b32 s4, {sGR}, 2
    s_lshl_b32 s5, {sHI}, 1
    s_add_u32 s4, s4, s5
    s_mul_i32 s4, s4, {T32}
    s_add_u32 s37, s37, s4
    s_cmp_eq_u32 s3, 0
    s_cselect_b32 s36, {QSCALE:#x}, 1.0
    ; q/k: octet O = 16*(ct%5) + 2*(tile(g&1)) + (g>>1)
    v_and_b32 v4, 1, v3
    v_xor_b32 v4, s32, v4
    v_lshrrev_b32 v5, 1, v3
    v_lshl_add_u32 v4, v4, 1, v5
    s_lshl_b32 s3, s34, 4
    v_add_u32 v4, s3, v4
    v_mul_u32_u24 v6, 13108, v4
    v_lshrrev_b32 v6, 16, v6
    v_mul_u32_u24 v6, {64*T32 - 5*512}, v6
    v_lshl_add_u32 v6, v4, 9, v6
    v_lshl_add_u32 v{vST}, v2, 4, v6
    ; v: col = 128*(ct%5) + 16*tile + j ; octet = 2(g&1) + (g>>1)
    v_and_b32 v4, 1, v3
    v_lshl_add_u32 v4, v4, 1, v5
    v_mul_u32_u24 v7, 640, v4""")
    for c in range(2):
        a(f"""s_lshl_b32 s3, s34, 7
        s_lshl_b32 s4, s{32+c}, 4
        s_add_u32 s3, s3, s4
        v_add_u32 v4, s3, v2
        v_mul_u32_u24 v6, 1639, v4
        v_lshrrev_b32 v6, 16, v6
        v_mul_u32_u24 v6, {64*T32 - 640}, v6
        v_lshl_add_u32 v6, v4, 4, v6
        v_add_u32 v6, v6, v7
        v_cndmask_b32 v{vST+c}, v{vST}, v6, s[56:57]""")
    def signal(vm):
        a(f"""s_cmp_lg_u32 {sW}, 7
        s_cbranch_scc1 L_NOSIG
        s_and_b32 s3, s2, 63
        s_lshl_b32 s3, s3, 2
        v_mov_b32 v4, s3
        v_mov_b32 v5, 1
        s_waitcnt vmcnt({vm})
        s_mov_b64 exec, 1
        global_atomic_add v4, v5, s[{P_DBG}:{P_DBG+1}] sc1
        {MALL}
        L_NOSIG:""")
    if OPT.get('sige', 0): signal(4)
    a(f"s_cmp_eq_u32 {sCT}, 15\n s_cbranch_scc1 L_HLD2")
    for x in dmaA(1): a(x)
    a("s_branch L_PRE2\n L_HLD2:")
    for i in range(4, 20): a(f"buffer_load_dwordx4 {q4(HX+4*i)}, v{vXD}, s[8:11], 0 offen offset:{64*i}")
    a("L_PRE2:")
    if not OPT.get('sige', 0): signal(8)
    div_lane(a, 8, 9, 1, 10)
    a(f"""s_and_b32 s3, {sW}, 1
    s_lshl_b32 s3, s3, 2
    v_add_u32 v4, s3, v8
    v_mul_u32_u24 v4, 1280, v4
    s_mul_i32 s3, s3, 5
    s_add_u32 s3, s3, 16
    v_add_u32 v5, s3, v8
    v_mul_u32_u24 v5, 1280, v5
    s_mul_i32 s3, {sCS}, 160
    v_lshl_add_u32 v6, v9, 4, s3
    v_add_u32 v{bWO0}, v4, v6
    v_add_u32 v{bWO1}, v5, v6
    s_lshl_b32 s3, {sRB}, 2
    s_add_u32 s3, s3, {sLO}
    s_mul_i32 s3, s3, 40960
    s_add_u32 s3, s3, {O_OFF}
    s_lshl_b32 s4, {sHP}, 1
    s_add_u32 s4, s4, {sHI}
    s_lshl_b32 s5, s4, 10
    s_add_u32 s5, s5, s3
    v_lshl_add_u32 v{vO0}, v1, 4, s5
    s_lshl_b32 s5, s4, 8
    s_add_u32 s5, s5, s3
    s_add_u32 s5, s5, 32768
    v_lshl_add_u32 v{vO1}, v1, 3, s5
    s_mul_i32 s3, {sCS}, 80
    v_lshrrev_b32 v4, 3, v1
    v_add_u32 v4, s3, v4
    v_mul_u32_u24 v4, 3456, v4
    v_and_b32 v5, 7, v1
    v_lshl_add_u32 v4, v5, 4, v4
    s_lshl_b32 s3, {sROLE}, 7
    v_add_u32 v{bGU}, s3, v4
    s_cmp_ge_u32 {sW}, 3
    s_cselect_b32 s4, 1, 0            ; kv
    s_mul_i32 s5, s4, 3
    s_sub_u32 s5, {sW}, s5
    s_mov_b32 s70, s4
    s_mov_b32 s71, s5
    s_add_u32 s5, s5, {sRB}
    s_sub_u32 s5, s5, 2
    s_max_i32 s5, s5, 0
    s_min_i32 s5, s5, 15
    s_mul_i32 s4, s4, 80
    s_add_u32 s4, s4, 80
    s_add_u32 s4, s4, s5
    v_mov_b32 v4, s4
    v_mov_b32 v5, {sRB}
    v_cmp_gt_u32 vcc, 2, v1
    v_cndmask_b32 v4, v5, v4, vcc
    s_mul_i32 s3, {sHP}, 40
    v_and_b32 v7, 1, v1
    v_mul_u32_u24 v7, 39, v7
    v_add_u32 v7, s3, v7
    v_lshrrev_b32 v7, 7, v7
    v_lshl_add_u32 v4, v7, 4, v4
    v_lshlrev_b32 v4, 7, v4
    v_add_u32 v{vF1A}, {F1_OFF}, v4
    v_bfe_u32 v4, v1, 2, 1
    v_lshlrev_b32 v4, 9, v4
    v_and_b32 v5, 3, v1
    v_lshl_add_u32 v4, v5, 13, v4
    s_lshr_b32 s3, {sRB2}, 1
    s_and_b32 s4, s3, 3
    s_lshl_b32 s4, s4, 7
    s_lshr_b32 s3, s3, 2
    s_lshl_b32 s3, s3, 11
    s_add_u32 s3, s3, s4
    s_lshl_b32 s4, {sHI}, 10
    s_add_u32 s3, s3, s4
    s_add_u32 s3, s3, {F1_OFF + 32}
    v_add_u32 v{bF2A}, s3, v4
    v_bfe_u32 v4, v1, 2, 1
    v_lshlrev_b32 v4, 11, v4
    v_lshl_add_u32 v4, v5, 7, v4
    s_and_b32 s3, {sCT}, 14
    s_lshl_b32 s3, s3, 11
    s_and_b32 s4, {sGR}, 12
    s_lshl_b32 s4, s4, 7
    s_add_u32 s3, s3, s4
    s_add_u32 s3, s3, {F1_OFF + 32}
    v_add_u32 v4, s3, v4
    v_cmp_le_u32 vcc, 8, v1
    v_cndmask_b32 v{bF2A}, v{bF2A}, v4, vcc
    s_mul_i32 s3, s63, 200
    s_mul_i32 s4, {sW}, 25
    s_add_u32 s3, s3, s4
    v_add_u32 v4, s3, v1
    v_lshlrev_b32 v{vTO}, 7, v4
    v_subrev_u32 v4, {128 + 256*OPT.get('guh', 0)}, v0
    v_lshrrev_b32 v5, 1, v4
    s_mul_i32 s3, s63, 54
    v_add_u32 v5, s3, v5
    v_mul_u32_u24 v5, 1280, v5
    v_and_b32 v4, 1, v4
    v_lshl_add_u32 v5, v4, 7, v5
    s_and_b32 s3, s2, 7
    s_lshl_b32 s3, s3, 8
    v_add_u32 v{TD}, s3, v5
    v_lshlrev_b32 v8, 2, v1
    s_lshl_b32 s3, {sGR}, 10
    s_add_u32 s35, s3, {ST_OFF}""")
    srd(a, 44, P_WO, 819200)
    a(f"""s_lshr_b32 s3, {sW}, 1
    s_mul_i32 s41, s3, {80*1280}
    s_mul_i32 s40, s3, 10240
    s_and_b32 s3, {sW}, 1
    s_mul_i32 s3, s3, 1280
    s_add_u32 s40, s40, s3""")
    def wo_early(k):
        z, h = k >> 1, k & 1
        return f"""s_add_u32 m0, s40, {WOL + 640*h + 2560*z}
        s_add_u32 s42, s41, {8*1280*h + 20*1280*z}
        {M40}
        buffer_load_dwordx4 v{bWO0}, s[44:47], s42 offen lds
        {MALL}"""
    WE = OPT.get("we", 1); WES = OPT.get("wes", 17)
    wo_touch = f"""s_mov_b64 exec, 0x1ffffff
        global_load_dword v252, v{vTO}, s[{P_WO}:{P_WO+1}]
        {MALL}"""
    def clr_check(L):
        a(f"v_cmp_gt_u32 vcc, 4, v9\n s_cbranch_vccz {L}_OK")
        spin_head(a, L)
        a(f"""global_load_dword v9, v8, s[{P_DBG}:{P_DBG+1}] sc1
        s_waitcnt vmcnt(0)
        v_cmp_gt_u32 vcc, 4, v9""")
        spin_tail(a, L)
    a.stamp(2, 1)
    a(f"s_cmp_eq_u32 {sCT}, 15\n s_cbranch_scc1 L_HELP")
    a("s_waitcnt vmcnt(4)\n s_barrier")
    a.stamp(2); a.stamp(3, 1)
    def FA(b, t): return FR + 24*b + 4*t
    def FB(b, c): return FR + 24*b + 16 + 4*c
    def a1_reads(n):
        c, ks, b = n >> 1, n & 1, n & 1
        sl = c % 5
        base, off = vAS + 4*(sl // 2), (sl % 2) * 32768
        A = [f"ds_read_b128 {q4(FA(b, t))}, v{base+ks} offset:{off + 2048*t}" for t in range(4)]
        B = [f"ds_read_b64_tr_b16 {q2(FB(b, c2)+2*h)}, v{base+2+c2} offset:{off + 8192*ks + 1024*h}" for c2 in range(2) for h in range(2)]
        return [B[0], B[1], A[0], B[2], B[3], A[1], A[2], A[3]]
    def a1_mfmas(n, isv):
        b = n & 1; f = n == 0
        L = [(mm16(CS, ONES, FB(b, 0), f), 1)]
        for t in range(4):
            for c in range(2):
                d = ACC + 8*t + 4*c
                need = [2, 4][c] if t == 0 else 4 + t
                L.append((mm16(d, FA(b, t), FB(b, c), f) if isv else mm16(d, FB(b, c), FA(b, t), f), need))
        return L
    D = OPT.get("dist", 3)
    CKS = OPT.get("cks", 11); STS = OPT.get("sts", 16)
    for x in a1_reads(0): a(x)
    a(f"s_cmp_ge_u32 {sCT}, 10\n s_cbranch_scc1 L_A1_1")
    def a1(isv):
        tag = str(int(isv))
        a(f"L_A1_{tag}:")
        vq = ["c1"] * 4
        side = {n: [] for n in range(20)}
        for c in range(2, 10):
            for k, x in enumerate(dmaA(c)): side[2*(c - D) + (k >> 1) if c - D >= 0 else 0].append((x, f"c{c}"))
        side[OPT.get("wts", 13)].append((wo_touch, "x"))
        if WE:
            for k in range(8): side[WES + (k * (20 - WES)) // 8].append((wo_early(k), "x"))
        nr = 8
        nis = [0]
        for n in range(20):
            c = n >> 1
            Rn = a1_reads(n + 1) if n < 19 else []
            M = a1_mfmas(n, isv)
            issued = 0; done = -1
            if (n & 1) and c < 9:
                last = max(i for i, t in enumerate(vq) if t == f"c{c+1}")
                a(f"s_waitcnt vmcnt({len(vq) - 1 - last})\n s_barrier")
                vq = vq[last + 1:]
                if c in (0, 1, 2, 3, 4, 5, 6, 8): a.stamp({0:4, 1:5, 2:6, 3:7, 4:8, 5:9, 6:10, 8:11}[c], 1)
            S = list(side[n])
            gap = max(1, len(M) // max(1, len(S)))
            for k, (m, need) in enumerate(M):
                if need > done:
                    a(f"s_waitcnt lgkmcnt({nr - 1 - need + issued})"); done = need
                a(m)
                if k < len(Rn): a(Rn[k]); issued += 1
                if S and (k % gap == gap - 1 or k == len(M) - 1):
                    while S:
                        x, t = S.pop(0); a(x); vq.append(t); nis[0] += 1
                        if k < len(M) - 1: break
            if n == CKS:
                a(f"""s_cmp_lg_u32 {sW}, 3
                s_cbranch_scc1 L_CK{tag}
                global_load_dword v9, v8, s[{P_DBG}:{P_DBG+1}] sc1
                L_CK{tag}:""")
                ckpos = nis[0]
            if n == STS:
                a(f"s_cmp_lg_u32 {sW}, 3\n s_cbranch_scc1 L_ST{tag}\n s_waitcnt vmcnt({nis[0] - ckpos})")
                clr_check(f"L_CLR{tag}")
                a(f"""v_lshlrev_b32 v7, 4, v1
                buffer_load_dwordx4 {q4(STV)}, v7, {WSR}, s35 offen sc1
                L_ST{tag}:""")
                stpos = nis[0]
        a.stamp(3); a.stamp(1, 2)
        a(f"""ds_write_b32 v{vCW}, v{CS}
        s_cmp_lg_u32 {sW}, 3
        s_cbranch_scc1 L_SW{tag}
        s_waitcnt vmcnt({nis[0] - stpos})
        v_max3_u32 v4, v{STV}, v{STV+1}, v{STV+2}
        v_max_u32 v4, v4, v{STV+3}
        v_cmp_eq_u32 vcc, -1, v4
        s_cbranch_vccz L_SP{tag}_OK""")
        spin_head(a, f"L_SP{tag}")
        a(f"""buffer_load_dwordx4 {q4(STV)}, v7, {WSR}, s35 offen sc1
        s_waitcnt vmcnt(0)
        v_max3_u32 v4, v{STV}, v{STV+1}, v{STV+2}
        v_max_u32 v4, v4, v{STV+3}
        v_cmp_eq_u32 vcc, -1, v4""")
        spin_tail(a, f"L_SP{tag}")
        a(f"""v_add_u32 v7, {SCR}, v7
        ds_write_b128 v7, {q4(STV)}
        L_SW{tag}:
        s_waitcnt lgkmcnt(0)
        s_barrier""")
        a.stamp(2, 2)
        if not isv:
            for c in range(2): a(f"ds_read_b128 {q4(TMP+4*c)}, v{vCR+c}")
            for t in range(4): a(f"ds_read2_b32 {q2(TMP+8+2*t)}, v{vSR} offset0:{16*t} offset1:{128+16*t}")
            for t in range(4):
                a(f"s_waitcnt lgkmcnt({3-t})\n v_mul_f32 v{TMP+16+2*t}, s36, v{TMP+9+2*t}")
                for e in range(0, 8, 2):
                    d = ACC + 8*t + e
                    a(f"v_pk_fma_f32 {q2(d)}, {q2(TMP+e)}, {q2(TMP+8+2*t)}, {q2(d)} op_sel_hi:[1,0,1] neg_lo:[1,0,0] neg_hi:[1,0,0]")
                for e in range(0, 8, 2):
                    d = ACC + 8*t + e
                    a(f"v_pk_mul_f32 {q2(d)}, {q2(d)}, {q2(TMP+16+2*t)} op_sel_hi:[1,0]")
                for e in range(0, 8, 2): a(f"v_cvt_pk_bf16_f32 v{PK+4*t+e//2}, v{ACC+8*t+e}, v{ACC+8*t+e+1}")
                a(f"""v_permlane16_swap_b32 v{PK+4*t}, v{PK+4*t+2}
                v_permlane16_swap_b32 v{PK+4*t+1}, v{PK+4*t+3}
                buffer_store_dwordx4 {q4(PK+4*t)}, v{vST}, {WSR}, s37 offen offset:{(t >> 1)*T32 + (t & 1)*256} sc1""")
        else:
            for c in range(2): a(f"ds_read_b32 v{TMP+2*c}, v{vCR+c}")
            for t in range(4):
                a(f"ds_read_b128 {q4(TMP+4+8*t)}, v{vSR} offset:{64*t}\n ds_read_b128 {q4(TMP+8+8*t)}, v{vSR} offset:{512+64*t}")
            for p in range(2):
                a(f"s_waitcnt lgkmcnt({4-4*p})")
                for c in range(2):
                    o = PK + 8*p + 4*c
                    ds = [(ACC + 8*(2*p+tt) + 4*c + e, 2*p + tt, e, tt) for tt in range(2) for e in (0, 2)]
                    for d, t, e, tt in ds:
                        a(f"v_pk_fma_f32 {q2(d)}, {q2(TMP+4+8*t+e)}, {q2(TMP+2*c)}, {q2(d)} op_sel_hi:[1,0,1] neg_lo:[1,0,0] neg_hi:[1,0,0]")
                    for d, t, e, tt in ds: a(f"v_pk_mul_f32 {q2(d)}, {q2(d)}, {q2(TMP+8+8*t+e)}")
                    for d, t, e, tt in ds: a(f"v_cvt_pk_bf16_f32 v{o+2*tt+e//2}, v{d}, v{d+1}")
                    a(f"""v_permlane16_swap_b32 v{o}, v{o+2}
                    v_permlane16_swap_b32 v{o+1}, v{o+3}
                    buffer_store_dwordx4 {q4(o)}, v{vST+c}, {WSR}, s37 offen offset:{p*T32} sc1""")
        a("s_branch L_HOP")
    a1(False); a1(True)
    a(f"""L_HELP:
    v_mov_b32 v4, 0
    v_mov_b32 v5, 0
    v_mov_b32 v6, 0
    v_mov_b32 v7, 0""")
    for i in range(20):
        a(f"s_waitcnt vmcnt({19-i})")
        for r in range(4):
            x = HX + 4*i + r
            a(f"v_dot2_f32_bf16 v{4+2*(r&1)}, v{x}, v{ONES}, v{4+2*(r&1)}\n v_dot2_f32_bf16 v{5+2*(r&1)}, v{x}, v{x}, v{5+2*(r&1)}")
    a("""s_nop 3
    v_add_f32 v4, v4, v6
    v_add_f32 v5, v5, v7""")
    for qp in ("[1,0,3,2]", "[2,3,0,1]"):
        for v in (4, 5): a(f"v_add_f32_dpp v{v}, v{v}, v{v} quad_perm:{qp} row_mask:0xf bank_mask:0xf")
    ln_scalars(a, 4, 5)
    a(f"""v_and_b32 v6, 1, v1
    v_cmp_eq_u32 vcc, 1, v6
    v_cndmask_b32 v4, v4, v5, vcc
    v_min_u32 v4, -2, v4
    v_and_b32 v5, 60, v1
    v_lshl_add_u32 v5, v6, 9, v5
    s_lshl_b32 s3, {sW}, 6
    s_add_u32 s3, s3, s35
    s_barrier
    s_mov_b32 exec_lo, 0x33333333
    s_mov_b32 exec_hi, 0x33333333
    buffer_store_dword v4, v5, {WSR}, s3 offen sc1
    {MALL}""")
    a(wo_touch)
    if WE:
        for k in range(8): a(wo_early(k))
    a(f"""v_mov_b32 v9, 0
    s_cmp_lg_u32 {sW}, 3
    s_cbranch_scc1 L_HOP""")
    clr_check("L_CLRH")

    a("L_HOP:")
    a.stamp(4); a.stamp(3, 2)
    RPD = 56
    srd(a, 8, P_WO, 819200)
    a(f"""s_and_b32 s31, {sW}, 1
    s_mul_i32 s31, s31, 1280
    s_mov_b32 s101, s59""")
    def dma_wo(p):
        if OPT.get("nowo"): return
        kh, q = p // 5, p % 5
        if q < 4: v, so, hs = bWO0, (4*kh + q) * 80 * 1280, 8 * 1280
        else:     v, so, hs = bWO1, kh * 320 * 1280, 40 * 1280
        zs = 20 * 1280 if q < 4 else 80 * 1280
        for z in range(4):
            for h in range(2):
                a(f"""s_add_u32 m0, s31, {WOL + p*10240 + 640*h + 2560*z}
                s_mov_b32 s3, {so + hs*h + zs*z}
                buffer_load_dwordx4 v{v}, s[8:11], s3 offen lds""")
    WO2 = 10
    def gu_loads(L, vg):
        if OPT.get("nogu"): return
        a(f"""s_cmp_lg_u32 {sHI}, {OPT.get("guh", 0)}
        s_cbranch_scc1 {L}
        s_cmp_ge_u32 {sROLE}, 32
        s_cbranch_scc1 {L}
        s_cmp_ge_u32 {sLO}, 2
        s_cselect_b32 s4, s{P_U}, s{P_G}
        s_cselect_b32 s5, s{P_U+1}, s{P_G+1}
        s_and_b32 s3, {sLO}, 1
        s_mul_i32 s3, s3, {40*3456}
        v_add_u32 v4, s3, v{vg}""")
        for i in range(5):
            a(f"global_load_dwordx4 {q4(RPD+4*i)}, v4, s[4:5] nt")
            if i < 4: a(f"v_add_u32 v4, {8*3456}, v4")
        a(f"{L}:")
    Q0, Q1 = 16, 20
    POOL = 24
    MK = 88; O = 96
    a(f"""v_and_b32 v2, 31, v0
    v_lshrrev_b32 v3, 5, v1
    s_mul_i32 s3, {sHP}, {64*T32}
    s_lshl_b32 s4, {sRB}, 2
    s_add_u32 s5, s4, {sLO}
    s_mul_i32 s5, s5, {T32}
    s_add_u32 s5, s5, s3
    v_lshl_add_u32 v4, v2, 4, s5
    s_mul_i32 s5, {sHI}, 1536
    v_lshl_add_u32 v5, v3, 9, v4
    v_add_u32 v80, s5, v5
    s_lshl_b32 s5, {sHI}, 3
    v_add_u32 v81, s5, v4
    v_mov_b32 v{Q1}, 0
    v_mov_b32 v{Q1+1}, 0
    s_sub_u32 s4, s4, 8
    s_mul_i32 s4, s4, {T32}
    s_mul_i32 s5, s71, 10240
    s_add_u32 s4, s4, s5
    v_lshl_add_u32 v82, v1, 4, s4
    s_mul_i32 s6, s70, 30720
    s_add_u32 s71, s5, s6
    s_add_u32 s71, s71, {KL}
    s_mul_i32 s6, s70, {V_OFF - K_OFF}
    s_add_u32 s3, s3, s6
    s_add_u32 s3, s3, {K_OFF}
    s_add_u32 s4, s{P_WS}, s3
    s_addc_u32 s5, s{P_WS+1}, 0""")
    srd(a, 12, 4, 64*T32)
    kappa(a, 4, 2, 5)
    a(f"""s_mul_i32 s3, {sLO}, {T32}
    s_add_u32 s3, s3, {KL}
    s_mul_i32 s4, {sHI}, 1536
    s_add_u32 s4, s4, s3
    v_lshlrev_b32 v5, 4, v4
    v_lshl_add_u32 v{vK0}, v3, 9, v5
    v_add_u32 v{vK0}, s4, v{vK0}
    s_lshl_b32 s4, {sHI}, 3
    s_add_u32 s4, s4, s3
    s_add_u32 s4, s4, 1024
    v_add_u32 v{vK1}, s4, v5
    v_cmp_gt_u32 vcc, 20, v2
    v_cndmask_b32 v5, 0, v5, vcc
    v_mul_u32_u24 v6, 640, v3
    s_mul_i32 s4, {sHI}, 320
    s_add_u32 s4, s4, s3
    s_add_u32 s4, s4, 30720
    v_add3_u32 v{vV}, v5, v6, s4
    v_lshlrev_b32 v4, 3, v3
    v_sub_u32 v4, v2, v4
    v_mov_b32 v5, 0xffff
    v_mov_b32 v6, 0xffff0000""")
    MS = 32
    for r in range(16): a(f"v_cmp_gt_i32 s[{MS+2*r}:{MS+1+2*r}], {(r&7) + 16*(r>>3)}, v4")
    for i in range(8):
        a(f"""v_cndmask_b32 v7, 0, v5, s[{MS+4*i}:{MS+1+4*i}]
        v_cndmask_b32 v8, 0, v6, s[{MS+2+4*i}:{MS+3+4*i}]
        v_or_b32 v{MK+i}, v7, v8""")
    FS = [128, 144, 160]
    FK = [176, 182, 188]
    FV = [POOL, POOL+8, POOL+16]; FV0 = POOL + 24
    FP = [200, 208]
    for r in range(32): a(f"v_mov_b32 v{POOL+r}, 0x3f803f80")
    a(f"""s_lshl_b32 s3, {sRB}, 2
    s_add_u32 s3, s3, {sLO}
    s_sub_i32 s30, 8, s3              ; n_invalid
    s_mov_b32 s28, 0xfffff
    s_mov_b32 s29, 0xfffff""")
    XR, WR, WRS, F2V = 224, 234, 224, 244
    FH = OPT.get('fh', 0)
    LW = 3 if FH else 7
    vXA_, vROW = 84, 85
    def early_loads(L, who=3):
        a(f"""v_and_b32 v4, 15, v0
        v_bfe_u32 v5, v0, 4, 2
        s_lshl_b32 s3, {sRB2}, 6
        s_lshl_b32 s4, {sLO}, 4
        s_add_u32 s3, s3, s4
        v_add_u32 v4, s3, v4
        v_mul_u32_u24 v4, 1280, v4
        v_mul_u32_u24 v5, 40, v5
        s_mul_i32 s3, {sCS}, 160
        v_add_u32 v5, s3, v5
        v_add_u32 v4, v5, v4
        s_cmp_lg_u32 {sHI}, {FH}
        s_cbranch_scc1 {L}_H""")
        if who & 1: a(f"""global_load_dwordx4 {q4(XR)}, v4, s[{P_X}:{P_X+1}]
        global_load_dwordx4 {q4(XR+4)}, v4, s[{P_X}:{P_X+1}] offset:16
        global_load_dwordx2 {q2(XR+8)}, v4, s[{P_X}:{P_X+1}] offset:32
        global_load_dwordx4 {q4(WR)}, v5, s[{P_WR}:{P_WR+1}]
        global_load_dwordx4 {q4(WR+4)}, v5, s[{P_WR}:{P_WR+1}] offset:16
        global_load_dwordx2 {q2(WR+8)}, v5, s[{P_WR}:{P_WR+1}] offset:32""")
        a(f"""s_branch {L}_D
        {L}_H:
        v_lshlrev_b32 v4, 2, v1""")
        for i in range(5 if who & 2 else 0): a(f"global_load_dword v{WRS+i}, v4, s[{P_WR}:{P_WR+1}] offset:{256*i}")
        a(f"{L}_D:")
    PLAN = OPT.get("plan", 6)
    pre, post, inb = [
        ([[4], [5], [6], [7]], [[], [], [], [8, 9]], []),
        ([[], [], [4], [5]], [[], [], [], [6, 7]], [8, 9]),
        ([[], [], [], [4]], [[], [], [], [5, 6, 7]], [8, 9]),
        ([[], [], [4], [5]], [[], [], [], [6, 7, 8, 9]], []),
        ([[], [], [], [4]], [[], [], [], [5]], [6, 7, 8, 9]),
        ([[4], [5], [6], [7]], [[], [], [], []], [8, 9]),
        ([[], [], [], [4]], [[7], [8], [9], [5, 6]], []),
        ([[], [], [], []], [[7], [8], [9], [4, 5, 6]], []),
        ([[], [], [], [4, 5]], [[7], [8], [9], [6]], []),
        ([[4], [5], [], []], [[7], [8], [9], [6]], []),
        ([[4], [], [], []], [[7], [8], [9], [5, 6]], []),
        ([[4], [5], [], []], [[], [], [9], [6, 7, 8]], []),
    ][PLAN]
    a.stamp(6, 2)
    a(f"s_lshr_b32 s4, {sW}, 1\n v_mov_b32 v6, s101\n v_mov_b32 v7, 1")
    for pr in range(4):
        if pr < 3: a(f"s_cmp_lg_u32 s4, {pr}\n s_cbranch_scc1 L_PR{pr}")
        if pre[pr]: a(M40)
        for p in pre[pr]: dma_wo(p)
        a(f"{MALL}\n s_waitcnt vmcnt({8*len(pre[pr])})")
        if pr < 3: a(f"s_branch L_PRD\n L_PR{pr}:")
    a("L_PRD:")
    a.stamp(4, 2)
    a(f"""s_barrier
    s_cmp_lg_u32 {sW}, 7
    s_cbranch_scc1 L_NOF1
    s_mov_b64 exec, 1
    buffer_store_dword v7, v6, {WSR}, 0 offen sc1
    {MALL}
    L_NOF1:""")
    a.stamp(5, 2)
    for pr in range(4):
        if post[pr]:
            a(f"s_cmp_lg_u32 s4, {pr}\n s_cbranch_scc1 L_PO{pr}\n {M40}")
            for p in post[pr]: dma_wo(p)
            a(f"{MALL}\n L_PO{pr}:")
    a.stamp(7, 2)
    PSL = OPT.get("psl", 4)
    a(f"""s_cmp_ge_u32 {sW}, 6
    s_cbranch_scc1 L_WOH
    s_mov_b64 exec, 15""")
    if OPT.get("fsl", 0): a(f"s_sleep {OPT['fsl']}")
    spin_head(a, "L_F1POLL")
    a(f"""buffer_load_dword v4, v{vF1A}, {WSR}, 0 offen sc1
    s_waitcnt vmcnt(0)
    v_cmp_ne_u32 s[6:7], 1, v4
    s_and_b64 vcc, s[6:7], 3""")
    spin_tail(a, "L_F1POLL", PSL)
    a(MALL)
    a.stamp(5); a.stamp(8, 2)
    for i in range(10):
        if i % 4 == 0:
            a(f"s_add_u32 m0, s71, {1024*i}\n v_add_u32 v4, {1024*i}, v82")
        a(f"buffer_load_dwordx4 v4, s[12:15], 0 offen offset:{1024*(i % 4)} sc1 lds")
    a(f"s_cmp_eq_u32 s6, 0\n s_cbranch_scc1 L_QPOLL_OK")
    a(f"""L_WOH:
    s_mov_b64 exec, 12""")
    spin_head(a, "L_QPOLL")
    a(f"""buffer_load_dword v4, v{vF1A}, {WSR}, 0 offen sc1
    s_waitcnt vmcnt(0)
    v_cmp_ne_u32 vcc, 1, v4""")
    spin_tail(a, "L_QPOLL", PSL)
    a(f"""{MALL}
    buffer_load_dwordx4 {q4(Q0)}, v80, {WSR}, 0 offen sc1
    s_mov_b32 exec_hi, 0
    buffer_load_dwordx2 {q2(Q1)}, v81, {WSR}, 0 offen offset:1024 sc1
    {MALL}""")
    a.stamp(6); a.stamp(9, 2)
    early_loads("L_EL0", 3 - OPT.get("elb", 1))
    a("s_waitcnt vmcnt(0)\n s_barrier")
    a.stamp(7); a.stamp(1, 4); a.stamp(10, 2)
    def kread(r, t): return f"ds_read_b128 {q4(r)}, v{vK0} offset:{T32*t}\n ds_read_b64 {q2(r+4)}, v{vK1} offset:{T32*t}"
    def vread(r, t, chk=True):
        m = f"s_cmp_gt_i32 s30, {t}\n s_cselect_b64 exec, -1, s[28:29]" if chk else "s_mov_b64 exec, s[28:29]"
        return f"""{m}
        ds_read_b128 {q4(r)}, v{vV} offset:{T32*t}
        ds_read_b128 {q4(r+4)}, v{vV} offset:{T32*t+1280}
        {MALL}"""
    def s1(s, k): return f"v_mfma_f32_32x32x16_bf16 {r16(s)}, {q4(k)}, {q4(Q0)}, 0"
    def s2(s, k): return f"v_mfma_f32_32x32x8_bf16 {r16(s)}, {q2(k+4)}, {q2(Q1)}, {r16(s)}"
    def pvm(v, p, first=False): return f"v_mfma_f32_32x32x16_bf16 {r16(O)}, {q4(v)}, {q4(p)}, {'0' if first else r16(O)}"
    seq = [8, 0, 7, 6, 5, 4, 3, 2, 1]
    vseq = [8, 7, 6, 5, 4, 3, 2, 1]
    def vbuf(t): return FV0 if t == 0 else FV[vseq.index(t) % 3]
    for n in range(3): a(kread(FK[n], seq[n]))
    def down_touch(vt):
        if OPT.get("notd"): return
        a(f"""s_and_b32 s3, s2, 7
        s_cmp_lt_u32 s3, 5
        s_cselect_b32 s3, 108, 0
        v_subrev_u32 v4, {128 + 256*OPT.get('guh', 0)}, v0
        v_cmp_gt_u32 vcc, s3, v4""")
        masked_load(a, 9, vt, P_D, "L_TD")
    def wo_slot(k):
        if 2*k < len(inb):
            a(f"s_lshr_b32 s4, {sW}, 1")
            for pr in range(2):
                a(f"s_cmp_lg_u32 s4, {pr}\n s_cbranch_scc1 L_WS{k}_{pr}\n {M40}"); dma_wo(inb[2*k + pr]); a(f"{MALL}\n L_WS{k}_{pr}:")
    a(vread(vbuf(8), 8, False)); a(vread(FV0, 0)); a(vread(vbuf(7), 7))
    a(f"s_waitcnt lgkmcnt(10)\n {s1(FS[0], FK[0])}\n {s2(FS[0], FK[0])}")
    a(f"s_waitcnt lgkmcnt(8)\n {s1(FS[1], FK[1])}\n {s2(FS[1], FK[1])}")
    a(kread(FK[0], seq[3]))
    if OPT.get('elb', 1): early_loads('L_EL', OPT.get('elb', 1))
    wo_slot(0); wo_slot(1)
    gu_loads('L_GUB', bGU); down_touch(TD)
    a(f"s_waitcnt lgkmcnt(8)\n {s1(FS[2], FK[2])}\n {s2(FS[2], FK[2])}")
    a(kread(FK[1], seq[4]))
    for r in range(16): a(f"v_cndmask_b32 v{FS[1]+r}, v{FS[0]+r}, v{FS[1]+r}, s[{MS+2*r}:{MS+1+2*r}]")
    def tile_body(s, p, extra):
        for gq in range(4):
            for r in range(4*gq, 4*gq + 4): a(f"v_exp_f32 v{s+r}, v{s+r}")
            if gq < len(extra) and extra[gq]: a(extra[gq])
            if gq > 0:
                for k in (2*gq - 2, 2*gq - 1): a(f"v_cvt_pk_bf16_f32 v{p+k}, v{s+2*k}, v{s+2*k+1}")
        for k in (6, 7): a(f"v_cvt_pk_bf16_f32 v{p+k}, v{s+2*k}, v{s+2*k+1}")
    tile_body(FS[1], FP[0], [f"s_waitcnt lgkmcnt(2)\n {s1(FS[0], FK[0])}", s2(FS[0], FK[0]), kread(FK[2], seq[5]) + "\n" + vread(vbuf(6), 6), None])
    for k in range(8): a(f"v_and_b32 v{216+k}, v{MK+k}, v{FP[0]+k}")
    for k in range(8): a(f"v_xor_b32 v{FP[0]+k}, v{216+k}, v{FP[0]+k}")
    a(pvm(FV0, 216, True)); wo_slot(2); a(pvm(FV0+4, 220))
    def repack(vm):
        if OPT.get("nogu") or OPT.get("norp"): return
        a(f"""s_cmp_ge_u32 {sROLE}, 32
        s_cbranch_scc1 L_NORP
        s_cmp_lg_u32 {sHI}, {OPT.get("guh", 0)}
        s_cbranch_scc1 L_NORP
        s_mul_i32 s3, {sROLE}, {8*20480}
        s_mul_i32 s4, {sCS}, 1280
        s_add_u32 s3, s3, s4
        s_lshr_b32 s4, {sLO}, 1
        s_mul_i32 s4, s4, 10240
        s_add_u32 s3, s3, s4
        s_and_b32 s4, {sLO}, 1
        s_mul_i32 s4, s4, 640
        s_add_u32 s3, s3, s4
        s_add_u32 s3, s3, {RP_OFF}
        v_lshrrev_b32 v8, 3, v1
        v_mul_u32_u24 v8, {20480 - 128}, v8
        v_lshl_add_u32 v8, v1, 4, v8
        v_and_b32 v4, 7, v1
        v_lshrrev_b32 v5, 3, v1
        v_lshl_add_u32 v4, v4, 3, v5
        v_lshlrev_b32 v4, 2, v4
        s_waitcnt vmcnt({vm}) lgkmcnt(0)""")
        for r in range(20):
            a(f"ds_bpermute_b32 v{RPD+r}, v4, v{RPD+r}")
        a("s_waitcnt lgkmcnt(0)")
        for i in range(5): a(f"buffer_store_dwordx4 {q4(RPD+4*i)}, v8, {WSR}, s3 offen offset:{128*i} sc1")
        a("L_NORP:")

    prevP, prevT = FP[0], 8
    for n in range(2, 9):
        t = seq[n]; p = FP[(n - 1) % 2]
        ex = [None]*4
        ex[0] = f"s_waitcnt lgkmcnt(0)\n {pvm(vbuf(prevT), prevP)}"
        ex[1] = pvm(vbuf(prevT) + 4, prevP + 4)
        if n + 2 <= 8:
            nb = (n + 2) % 3
            ex[2] = s1(FS[nb], FK[nb])
            ex[3] = s2(FS[nb], FK[nb])
        tile_body(FS[n % 3], p, ex)
        post = []
        if n + 4 <= 8: post.append(kread(FK[(n + 4) % 3], seq[n + 4]))
        if t - 2 >= 1: post.append(vread(vbuf(t - 2), t - 2))
        for x in post: a(x)
        wo_slot(n + 1)
        if n == OPT.get("rpn", 8): repack(0)
        prevP, prevT = p, t
    a(f"s_waitcnt lgkmcnt(0)\n {pvm(vbuf(prevT), prevP)}\n {pvm(vbuf(prevT)+4, prevP+4)}")
    a(f"""v_max3_f32 v4, abs(v{O}), abs(v{O+1}), abs(v{O+2})
    v_max3_f32 v5, abs(v{O+3}), abs(v{O+4}), abs(v{O+5})
    v_max3_f32 v4, abs(v{O+6}), abs(v{O+7}), v4
    v_max3_f32 v5, abs(v{O+8}), abs(v{O+9}), v5
    v_max3_f32 v4, abs(v{O+10}), abs(v{O+11}), v4
    v_max_f32 v4, v4, v5
    v_cmp_nlt_f32 vcc, {f2u(2.0**-60):#x}, v{O+12}
    s_mov_b64 s[4:5], vcc
    v_cmp_ngt_f32 vcc, {f2u(2.0**60):#x}, v{O+12}
    s_or_b64 s[4:5], s[4:5], vcc
    v_cmp_ngt_f32 vcc, {f2u(2.0**120):#x}, v4
    s_or_b64 vcc, s[4:5], vcc""")
    if OPT.get("forcefb"): a("s_branch L_FALLBACK")
    a(f"""s_cbranch_vccnz L_FALLBACK
    L_BDONE:
    v_rcp_f32 v4, v{O+12}""")
    for r in range(0, 12, 2): a(f"v_pk_mul_f32 {q2(O+r)}, {q2(O+r)}, v[4:5] op_sel_hi:[1,0]")
    for k in range(6): a(f"v_cvt_pk_bf16_f32 v{24+k}, v{O+2*k}, v{O+2*k+1}")
    a(f"""buffer_store_dwordx4 v[24:27], v{vO0}, {WSR}, 0 offen sc1
    s_mov_b32 exec_hi, 0
    buffer_store_dwordx2 v[28:29], v{vO1}, {WSR}, 0 offen sc1
    {MALL}""")
    a.stamp(8)
    if OPT.get("rpn", 8) == 9: repack(2)
    a.stamp(2, 4)

    XU, WU = 176, 196
    OF, CAC, CWF = 32, 72, 92
    NB = 4
    HP = 216
    OUTP = 228
    KSH = OPT.get('ksh', 7)
    OFL = ['', 'nt', 'sc1', 'sc0'][OPT.get('ofl', 0)]
    a(f"""v_mov_b32 v22, v{bF2A}
    v_and_b32 v2, 15, v0
    v_lshrrev_b32 v3, 4, v1
    s_lshl_b32 s3, {sRB2}, 6
    s_lshl_b32 s4, {sLO}, 4
    s_add_u32 s3, s3, s4
    v_add_u32 v20, s3, v2             ; row
    v_mul_u32_u24 v4, 1280, v20
    v_mul_u32_u24 v17, 40, v3
    s_mul_i32 s3, {sCS}, 160
    v_add3_u32 v16, v17, v4, s3""")
    rho(a, 21, 5)
    a(f"""v_mul_u32_u24 v4, 160, v21
    v_and_b32 v5, 3, v1
    v_lshlrev_b32 v21, 5, v21
    v_lshl_add_u32 v21, v5, 3, v21
    v_mul_u32_u24 v5, 40, v5
    s_mul_i32 s3, {sHI}, 51200
    v_add3_u32 v18, v4, v5, s3
    s_lshl_b32 s3, {sRB2}, 1
    s_lshr_b32 s4, {sLO}, 1
    s_add_u32 s3, s3, s4
    s_mul_i32 s3, s3, 40960
    s_add_u32 s3, s3, {O_OFF}
    s_lshl_b32 s4, {sHI}, 14
    s_add_u32 s29, s3, s4
    s_lshl_b32 s4, {sHI}, 12
    s_add_u32 s33, s3, s4
    s_add_u32 s33, s33, 32768
    s_and_b32 s4, {sLO}, 1
    s_lshl_b32 s4, s4, 4
    v_add_u32 v4, s4, v2
    v_lshlrev_b32 v5, 9, v3
    v_lshl_add_u32 v15, v4, 4, v5
    v_lshl_add_u32 v14, v4, 3, v5
    s_lshl_b32 s30, {sROLE}, 3
    s_add_u32 s30, s30, {sCS}
    s_lshl_b32 s32, {sW}, 10
    s_mul_i32 s3, {sLO}, 5120
    s_add_u32 s34, s3, {RED}
    v_lshl_add_u32 v13, v1, 4, s34
    s_lshl_b32 s3, {sRB2}, 13
    s_lshl_b32 s4, {sLO}, 8
    s_add_u32 s3, s3, s4
    s_add_u32 s37, s3, {PART_OFF}
    v_lshlrev_b32 v10, 4, v2""")
    ROT = OPT.get("crot", 1)
    for ks in range(8):
        a(f"""s_add_u32 s3, {sCS}, {ks}
        s_and_b32 s3, s3, 7""" if ROT else f"s_mov_b32 s3, {ks}")
        a(f"""s_lshl_b32 s4, s3, 11
        s_add_u32 s{40+ks}, s29, s4
        s_mul_i32 s4, s3, 5120
        v_add_u32 v{246+ks}, s4, v18""")
    a("s_waitcnt vmcnt(2)")
    for i in range(20): a(f"v_mov_b32 v{CAC+i}, 0")
    a(f"s_cmp_lg_u32 {sHI}, {FH}\n s_cbranch_scc1 L_CB")
    for i in range(10):
        a(f"""v_lshlrev_b32 v{CAC+2*i}, 16, v{XR+i}
        v_and_b32 v{CAC+2*i+1}, 0xffff0000, v{XR+i}
        v_lshlrev_b32 v{WU+2*i}, 16, v{WR+i}
        v_and_b32 v{WU+2*i+1}, 0xffff0000, v{WR+i}""")
    a(f"""L_CB:
    v_mov_b32 v4, s101
    v_mov_b32 v5, 1
    s_waitcnt vmcnt(0)""")
    a.stamp(3, 4)
    a(f"""s_barrier
    s_cmp_lg_u32 {sW}, 0
    s_cbranch_scc1 L_NOF2
    s_mov_b64 exec, 1
    buffer_store_dword v5, v4, {WSR}, 0 offen offset:32 sc1
    {MALL}
    L_NOF2:""")
    WD1 = OPT.get("wd1", 3)
    def wd_lds(j): return [GW, GW + 8192, 153600][j] if j < WD1 else WOL + 8192*j
    def wd_dma(js, L, both=False):
        a(f"""s_sub_u32 s3, s30, 256
        s_lshl_b32 s3, s3, 5
        v_lshrrev_b32 v5, 1, v1""")
        kappa(a, 6, 5, 4)
        a(f"""v_mul_u32_u24 v6, 1280, v6
        v_and_b32 v4, 1, v1
        v_lshl_add_u32 v6, v4, 4, v6
        v_add_u32 v6, s3, v6
        s_mul_i32 s4, {sW}, {32*1280}""")
        srd(a, 12, P_D, 2211840)
        for j in js:
            a(f"""s_add_u32 m0, s32, {wd_lds(j)}
            s_add_u32 s3, s4, {8*32*1280*j}
            buffer_load_dwordx4 v6, s[12:15], s3 offen lds""")
            if both:
                d = 4 if FH == 0 else -4
                a(f"""s_add_u32 m0, s32, {wd_lds(j) + 1024*d}
                s_add_u32 s3, s4, {8*32*1280*j + 32*1280*d}
                buffer_load_dwordx4 v6, s[12:15], s3 offen lds""")
    a(f"s_cmp_lt_u32 {sROLE}, 32\n s_cbranch_scc1 L_NWD1")
    wd_dma(range(WD1), "1")
    a("L_NWD1:")
    def c_rd(ks):
        b = ks % NB
        ad, off = (246 + ks, 0) if ks < 8 else (18, ks * 5120)
        return [f"ds_read_b64_tr_b16 {q2(CWF+20*b+4*t+2*h)}, v{ad} offset:{off + h*1280 + 8*t}" for t in range(5) for h in range(2)]
    a.stamp(9); a.stamp(4, 4)
    PRE = OPT.get("cpre", 2)
    def o_load(ks):
        if ks < 8: return f"buffer_load_dwordx4 {q4(OF+4*ks)}, v15, {WSR}, s{40+ks} offen sc1"
        return "\n".join(f"buffer_load_dwordx2 {q2(OF+4*ks+2*hh)}, v14, {WSR}, s33 offen offset:{(ks-8)*2048 + hh*256} sc1" for hh in range(2))
    def rp_dma(L, cond):
        a(f"""s_cmp_ge_u32 {sROLE}, 32
        s_cbranch_scc1 {L}
        s_cmp_eq_u32 s56, 0
        s_cbranch_{cond} {L}
        s_mul_i32 s3, s30, 20480
        s_mul_i32 s4, {sLO}, 5120
        s_add_u32 s3, s3, s4
        s_add_u32 s3, s3, {RP_OFF}
        s_add_u32 m0, s4, {GW}
        v_lshlrev_b32 v7, 4, v1""")
        for j in range(4): a(f"buffer_load_dwordx4 v7, {WSR}, s3 offen offset:{1024*j} sc1 lds")
        a(f"""s_add_u32 m0, s4, {GW + 4096}
        s_add_u32 s3, s3, 4096
        buffer_load_dwordx4 v7, {WSR}, s3 offen sc1 lds
        {L}:""")
    RPE = OPT.get("rpe", 0)
    for ks in range(NB):
        for r in c_rd(ks): a(r)
    if OPT.get("cprio", 0): a(f"s_cmp_eq_u32 {sHI}, {FH}\n s_cbranch_scc1 L_NPR\n s_setprio 2\n L_NPR:")
    if RPE: a(f"s_cmp_eq_u32 {sHI}, {FH}\n s_mov_b32 s3, 0xff\n s_cselect_b32 exec_lo, 0xffff, s3\n s_mov_b32 exec_hi, 0")
    else: a("s_mov_b64 exec, 0xff")
    if OPT.get("fsl2", 0): a(f"s_sleep {OPT['fsl2']}")
    spin_head(a, "L_F2POLL")
    a(f"""buffer_load_dword v4, v22, {WSR}, 0 offen sc1
    s_waitcnt vmcnt(0)
    v_cmp_ne_u32 s[56:57], 1, v4
    s_and_b64 vcc, s[56:57], 0xff""")
    DYN = OPT.get("dyn", 0)
    if DYN:
        a(f"""s_cbranch_vccz L_F2POLL_OK
        s_bcnt1_i32_b32 s4, vcc_lo
        s_cmp_le_u32 s4, {OPT.get("dynm", 5)}
        s_cbranch_scc1 L_DYN""")
    spin_tail(a, "L_F2POLL", OPT.get("psl2", 4))
    a(MALL)
    a.stamp(8, 4)
    if not RPE: a("s_mov_b32 s56, 1")
    for ks in range(10): a(o_load(ks))
    for ks in range(10):
        lg = 0 if ks in (0, 9) else 10
        a(f"s_waitcnt vmcnt({11-ks if ks < 8 else 2*(9-ks)}) lgkmcnt({lg})")
        if ks == 9 and RPE == 2:
            a(f"s_cmp_lg_u32 {sHI}, {FH}\n s_cbranch_scc1 L_RP0")
            rp_dma("L_RP0", "scc0")
        R = c_rd(ks - 1 + NB) if (ks >= 1 and ks - 1 + NB < 10) else []
        for t in range(5):
            for x in R[2*t:2*t+2]: a(x)
            a(mm16(CAC+4*t, CWF+20*(ks % NB)+4*t, OF+4*ks, False))
    a("L_CDONE2:")
    def emit_dyn():
        def wrd(ks, b):
            ad, off = (246 + ks, 0) if ks < 8 else (18, ks * 5120)
            for t in range(5):
                for h in range(2): a(f"ds_read_b64_tr_b16 {q2(CWF+20*b+4*t+2*h)}, v{ad} offset:{off + h*1280 + 8*t}")
        a(f"""L_DYN:
        {MALL}
        s_mov_b32 s50, 0
        s_mov_b32 s51, 0
        s_waitcnt lgkmcnt(0)""")
        wrd(8, 2); wrd(9, 3)
        a(f"""L_DYNL:
        s_not_b32 s4, s56
        s_and_b32 s4, s4, 0xff
        s_lshl_b32 s5, s4, 8
        s_or_b32 s4, s4, s5
        s_lshr_b32 s4, s4, {sCS if ROT else 0}
        s_and_b32 s52, s4, 0xff
        s_andn2_b32 s53, s52, s50         ; new
        s_andn2_b32 s54, s50, s51         ; todo""")
        for ks in range(8):
            a(f"s_bitcmp1_b32 s53, {ks}\n s_cbranch_scc0 L_DN{ks}\n {o_load(ks)}\n L_DN{ks}:")
        a(f"s_cmp_lg_u32 s52, 0xff\n s_cbranch_scc1 L_DYNC\n {o_load(8)}\n {o_load(9)}\n L_DYNC:")
        for ks in range(8):
            a(f"s_bitcmp1_b32 s54, {ks}\n s_cbranch_scc0 L_DC{ks}")
            wrd(ks, ks & 1)
            a("s_cmp_eq_u32 s50, 0xff\n s_cbranch_scc0 L_DW" + str(ks) + "\n s_waitcnt vmcnt(4)\n L_DW" + str(ks) + ":")
            for t in range(5):
                a(f"s_waitcnt lgkmcnt({8 - 2*t})")
                a(mm16(CAC+4*t, CWF+20*(ks & 1)+4*t, OF+4*ks, False))
            a(f"L_DC{ks}:")
        a(f"""s_mov_b32 s51, s50
        s_cmp_eq_u32 s50, 0xff
        s_cbranch_scc1 L_DYNQ
        s_mov_b32 s50, s52
        s_mov_b32 s54, s53
        s_cmp_eq_u32 s52, 0xff
        s_cbranch_scc1 L_DYNC
        s_add_u32 s3, s3, 1
        s_cmp_gt_u32 s3, {SPIN_MAX}
        s_cbranch_scc1 L_END
        s_sleep {OPT.get("psl4", 1)}
        s_mov_b64 exec, 0xff
        buffer_load_dword v4, v22, {WSR}, 0 offen sc1
        s_waitcnt vmcnt(0)
        v_cmp_ne_u32 s[56:57], 1, v4
        {MALL}
        s_branch L_DYNL
        L_DYNQ:
        s_waitcnt vmcnt(0) lgkmcnt(0)""")
        for ks in (8, 9):
            for t in range(5): a(mm16(CAC+4*t, CWF+20*(ks - 6)+4*t, OF+4*ks, False))
        a("s_mov_b32 s56, 1\n s_branch L_CDONE2")
    a.stamp(5, 4)
    if PROF and OPT.get("pg") == 4: a("s_mov_b32 s99, s3")
    a(f"s_cmp_lg_u32 {sHI}, {FH}\n s_cbranch_scc0 L_CLO")
    for t in range(5): a(f"ds_write_b128 v13, {q4(CAC+4*t)} offset:{1024*t}")
    a(f"""v_mov_b32 v24, 0
    v_mov_b32 v25, 0
    v_mov_b32 v26, 0
    v_mov_b32 v27, 0
    s_waitcnt lgkmcnt(0)
    s_barrier
    s_setprio 0
    v_and_b32 v12, 255, v0
    v_lshlrev_b32 v12, 4, v12
    v_add_u32 v14, {SB}, v12
    ds_write_b128 v14, v[24:27] offset:{SURV}
    ds_write_b128 v14, v[24:27] offset:{SURV+4096}
    v_lshl_add_u32 v11, v3, 10, v10
    s_add_u32 s38, s37, 4096
    s_add_u32 s39, s37, {PARTB}
    s_add_u32 s35, s37, {PARTB + 4096}
    v_mov_b32 v8, 0""")
    for i in range(5):
        a(f"""v_lshlrev_b32 v5, 16, v{WRS+i}
        v_and_b32 v6, 0xffff0000, v{WRS+i}
        v_add_f32 v8, v8, v5
        v_add_f32 v8, v8, v6""")
    dpp_reduce(a, "v_add_f32", [8])
    a(f"""v_readlane_b32 s36, v8, 63
    v_sub_u32 v23, 2047, v20
    v_lshlrev_b32 v23, 2, v23
    s_lshl_b32 s3, {sRB2}, 2
    s_add_u32 s3, s3, {sLO}
    s_lshl_b32 s3, s3, {KSH}
    s_add_u32 s4, s3, {KEY_OFF}
    s_lshl_b32 s3, {sLO}, 8
    s_add_u32 s3, s3, {SB+LMR}
    v_lshl_add_u32 v9, v2, 4, s3
    s_mov_b32 s6, 0xffffe000
    v_lshlrev_b32 v12, {KSH}, v1
    s_barrier""")
    a.stamp(1, 3)
    spin_head(a, "L_PPOLL")
    a(f"""buffer_load_dwordx4 v[64:67], v11, {WSR}, s37 offen sc1
    buffer_load_dwordx4 v[68:71], v11, {WSR}, s38 offen sc1
    s_waitcnt vmcnt(0)
    v_max3_u32 v5, v64, v65, v66
    v_max3_u32 v6, v68, v69, v70
    v_max_u32 v5, v5, v6
    v_cmp_eq_u32 vcc, -1, v5
    s_cbranch_vccz L_PPOLL_OK
    s_and_b32 s28, s3, {OPT.get('pbm', 15)}
    s_cmp_lg_u32 s28, 0
    s_cbranch_scc1 L_PPOLL
    buffer_load_dwordx4 v[64:67], v11, {WSR}, s39 offen sc1
    buffer_load_dwordx4 v[68:71], v11, {WSR}, s35 offen sc1
    s_waitcnt vmcnt(0)
    v_max3_u32 v5, v64, v65, v66
    v_max3_u32 v6, v68, v69, v70
    v_max_u32 v5, v5, v6
    v_cmp_eq_u32 vcc, -1, v5
    s_cbranch_vccnz L_PPOLL
    L_PPOLL_OK:""")
    a.stamp(2, 3)
    a("v_add_f32 v40, v64, v68\n v_add_f32 v41, v65, v69\n v_add_f32 v42, v66, v70")
    xg_sum(a, [40, 41, 42], [44, 45, 46])
    ln_scalars(a, 40, 41)
    a(f"""v_fma_f32 v42, -v40, s36, v42
    v_mul_f32 v42, v42, v41
    v_ashrrev_i32 v4, 31, v42
    v_or_b32 v4, 0x80000000, v4
    v_xor_b32 v4, v4, v42
    v_and_or_b32 v4, v4, s6, v23
    v_min_u32 v42, -2, v42
    v_mov_b32 v5, v4
    v_mov_b32 v7, 0
    v_mov_b32_dpp v5, v4 row_ror:4 row_mask:0x2 bank_mask:0xf
    v_mov_b32_dpp v5, v4 row_ror:8 row_mask:0x4 bank_mask:0xf
    v_mov_b32_dpp v5, v4 row_ror:12 row_mask:0x8 bank_mask:0xf
    v_mov_b32_dpp v44, v5 row_ror:1 row_mask:0xf bank_mask:0xf
    v_mov_b32_dpp v45, v5 row_ror:2 row_mask:0xf bank_mask:0xf
    v_mov_b32_dpp v46, v5 row_ror:3 row_mask:0xf bank_mask:0xf
    v_cmp_gt_u32 s[40:41], v5, v4
    v_cmp_gt_u32 s[42:43], v44, v4
    v_cmp_gt_u32 s[44:45], v45, v4
    v_cmp_gt_u32 s[46:47], v46, v4
    v_addc_co_u32 v7, vcc, 0, v7, s[40:41]
    v_addc_co_u32 v7, vcc, 0, v7, s[42:43]
    v_addc_co_u32 v7, vcc, 0, v7, s[44:45]
    v_addc_co_u32 v7, vcc, 0, v7, s[46:47]
    v_mov_b32 v6, v7
    v_permlane16_swap_b32 v7, v6
    v_add_u32 v7, v7, v6
    v_mov_b32 v6, v7
    v_permlane32_swap_b32 v7, v6
    v_add_u32 v7, v7, v6
    v_min_u32 v6, 2, v7
    v_or_b32 v43, v4, v6
    v_lshlrev_b32 v7, 2, v7
    s_mov_b64 exec, 0xffff
    s_cmp_lg_u32 {sCS}, 0
    s_cbranch_scc1 L_NOKEY
    buffer_store_dword v43, v7, {WSR}, s4 offen sc1
    L_NOKEY:
    ds_write_b128 v9, v[40:43]
    {MALL}
    s_waitcnt lgkmcnt(0)
    s_barrier
    s_cmp_lg_u32 {sW}, {LW}
    s_cbranch_scc1 L_SELW
    s_mov_b32 s4, {KEY_OFF}
    s_mov_b32 s5, {KEY_OFF + (64 << KSH)}
    s_mov_b32 s28, {SB+SURV}
    s_mov_b32 s29, 0
    v_and_b32 v13, 31, v1
    v_lshlrev_b32 v13, 2, v13
    v_add_u32 v13, {SB+SURV}, v13
    v_lshrrev_b32 v8, 5, v1
    v_lshlrev_b32 v8, 6, v8
    v_add_u32 v11, {SB+SURV}, v8""")
    if OPT.get("ksleep", 4): a(f"s_sleep {OPT.get('ksleep', 4)}")
    a.stamp(3, 3)
    a("L_KQ:")
    spin_head(a, "L_KPOLL")
    a(f"""buffer_load_dwordx4 v[40:43], v12, {WSR}, s4 offen sc1
    buffer_load_dwordx4 v[44:47], v12, {WSR}, s5 offen sc1
    s_waitcnt vmcnt(0)
    v_max3_u32 v4, v41, v42, v43
    v_max3_u32 v5, v45, v46, v47
    v_max_u32 v6, v40, v44
    v_max3_u32 v4, v4, v5, v6
    v_cmp_eq_u32 vcc, -1, v4""")
    spin_tail(a, "L_KPOLL", OPT.get("psl3", 1))
    a.stamp(4, 3)
    a(f"""s_cmp_lg_u32 s29, 0
    s_cbranch_scc1 L_HAVET
    v_max_u32_dpp v6, v6, v6 quad_perm:[1,0,3,2] row_mask:0xf bank_mask:0xf
    v_max_u32_dpp v6, v6, v6 quad_perm:[2,3,0,1] row_mask:0xf bank_mask:0xf
    v_max_u32_dpp v6, v6, v6 row_half_mirror row_mask:0xf bank_mask:0xf
    v_min_u32_dpp v6, v6, v6 row_ror:8 row_mask:0xf bank_mask:0xf
    v_mov_b32 v5, v6
    v_permlane16_swap_b32 v6, v5
    v_min_u32 v6, v6, v5
    v_mov_b32 v5, v6
    v_permlane32_swap_b32 v6, v5
    v_min_u32 v48, v6, v5
    L_HAVET:""")
    a.stamp(5, 3)
    ordr = [0, 4, 1, 5, 2, 6, 3, 7]
    for i in ordr: a(f"v_cmp_ge_u32 s[{40+2*i}:{41+2*i}], v{40+i}, v48")
    for i in ordr: a(f"v_mbcnt_lo_u32_b32 v{50+i}, s{40+2*i}, 0")
    for i in ordr: a(f"v_mbcnt_hi_u32_b32 v{50+i}, s{41+2*i}, v{50+i}")
    for n, i in enumerate(ordr):
        if n in (2, 4):
            a(f"s_or_b64 s[6:7], s[{40+2*i}:{41+2*i}], s[{48+2*i}:{49+2*i}]\n s_cbranch_scc0 L_CDONE")
        a(f"""v_lshl_add_u32 v{50+i}, v{50+i}, 2, s28
        s_bcnt1_i32_b64 s3, s[{40+2*i}:{41+2*i}]
        s_mov_b64 exec, s[{40+2*i}:{41+2*i}]
        ds_write_b32 v{50+i}, v{40+i}
        {MALL}
        s_lshl_b32 s3, s3, 2
        s_add_u32 s28, s28, s3""")
    a(f"""s_or_b64 s[6:7], s[46:47], s[54:55]
    s_cbranch_scc0 L_CDONE
    s_add_u32 s29, s29, 1
    s_add_u32 s4, s4, 16
    s_add_u32 s5, s5, 16
    s_cmp_lt_u32 s29, 4
    s_cbranch_scc1 L_KQ
    L_CDONE:
    s_sub_u32 s4, s28, {SB+SURV}
    s_mov_b32 s5, 0
    s_mov_b32 s28, {SB+SELL}""")
    a.stamp(6, 3)
    a(f"""L_OUTER:
    ds_read_b32 v6, v13
    v_mov_b32 v7, 0
    v_mov_b32 v8, v11
    s_mov_b32 s6, 0
    L_INNER:""")
    for k in range(4): a(f"ds_read_b128 {q4(44+4*k)}, v8 offset:{16*k}")
    a("""v_add_u32 v8, 128, v8
    s_add_u32 s6, s6, 128
    v_mov_b32 v9, 0
    s_waitcnt lgkmcnt(2)""")
    for h in range(2):
        if h: a("s_waitcnt lgkmcnt(0)")
        for i in range(8): a(f"v_cmp_gt_u32 s[{40+2*i}:{41+2*i}], v{44+8*h+i}, v6")
        for i in range(8): a(f"v_addc_co_u32 v{7+2*(i&1)}, vcc, 0, v{7+2*(i&1)}, s[{40+2*i}:{41+2*i}]")
    a(f"""v_add_u32 v7, v7, v9
    s_cmp_lt_u32 s6, s4
    s_cbranch_scc1 L_INNER
    v_mov_b32 v8, v7
    v_not_b32 v6, v6
    v_and_b32 v6, 0x1fff, v6
    v_permlane32_swap_b32 v7, v8
    v_add_u32 v7, v7, v8
    v_cmp_gt_u32 vcc, 8, v7
    v_lshl_add_u32 v7, v7, 2, s28
    s_and_saveexec_b64 s[6:7], vcc
    ds_write_b32 v7, v6
    {MALL}
    v_add_u32 v13, 128, v13
    s_add_u32 s5, s5, 128
    s_cmp_lt_u32 s5, s4
    s_cbranch_scc1 L_OUTER
    s_branch L_SELW""")
    a("L_CLO:")
    if RPE == 1: rp_dma("L_RP1", "scc0")
    a(f"""s_lshl_b32 s4, {sCS}, 10
    s_add_u32 s35, s4, s37
    s_add_u32 s38, s35, {PARTB}
    v_mul_u32_u24 v5, 160, v2
    v_add3_u32 v12, v5, v17, s34
    v_lshlrev_b32 v7, 4, v1
    v_mov_b32 v47, 0
    s_barrier""")
    a.stamp(6, 4)
    for t in range(5): a(f"ds_read_b128 {q4(CWF+4*t)}, v13 offset:{1024*t}")
    E = range(0, 20, 2)
    for e in E:
        if e % 4 == 0: a(f"s_waitcnt lgkmcnt({4 - e//4})")
        a(f"v_pk_add_f32 {q2(CAC+e)}, {q2(CAC+e)}, {q2(CWF+e)}")
    for e in E:
        c = 6 * ((e >> 1) & 1)
        if e < 4:
            a(f"v_pk_add_f32 {q2(50+c)}, {q2(CAC+e)}, {q2(CAC+e+4)}\n v_pk_mul_f32 {q2(52+c)}, {q2(CAC+e)}, {q2(CAC+e)}\n v_pk_mul_f32 {q2(54+c)}, {q2(CAC+e)}, {q2(WU+e)}")
        else:
            if e >= 8: a(f"v_pk_add_f32 {q2(50+c)}, {q2(50+c)}, {q2(CAC+e)}")
            a(f"v_pk_fma_f32 {q2(52+c)}, {q2(CAC+e)}, {q2(CAC+e)}, {q2(52+c)}\n v_pk_fma_f32 {q2(54+c)}, {q2(CAC+e)}, {q2(WU+e)}, {q2(54+c)}")
    for k in range(3): a(f"v_pk_add_f32 {q2(50+2*k)}, {q2(50+2*k)}, {q2(56+2*k)}")
    for k in range(3): a(f"v_add_f32 v{44+k}, v{50+2*k}, v{51+2*k}")
    xg_sum(a, [44, 45, 46], [40, 41, 42])
    a(f"""v_min_u32 v44, -2, v44
    v_min_u32 v45, -2, v45
    v_min_u32 v46, -2, v46
    s_mov_b64 exec, 0xffff
    buffer_store_dwordx4 v[44:47], v10, {WSR}, s35 offen
    buffer_store_dwordx4 v[44:47], v10, {WSR}, s38 offen sc1
    {MALL}
    s_barrier""")
    a.stamp(10); a.stamp(7, 4)
    if RPE == 3: rp_dma("L_RP1", "scc0")
    for e in E: a(f"v_cvt_pk_bf16_f32 v{HP+e//2}, v{CAC+e}, v{CAC+e+1}")
    for e in E: a(f"v_min_u32 v{HP+e//2}, -2, v{HP+e//2}")
    for e in E: a(f"v_lshlrev_b32 v{CAC+e}, 16, v{HP+e//2}\n v_and_b32 v{CAC+e+1}, 0xffff0000, v{HP+e//2}")
    for k in range(5): a(f"ds_write_b64 v12, {q2(HP+2*k)} offset:{8*k}")
    a(f"""s_lshl_b32 s3, {sLO}, 8
    s_add_u32 s3, s3, {SB+LMR}
    v_lshl_add_u32 v9, v2, 4, s3
    s_lshl_b32 s3, {sRB2}, 2
    s_add_u32 s3, s3, {sLO}
    s_lshl_b32 s3, s3, 12
    s_lshl_b32 s4, {sCS}, 8
    s_add_u32 s3, s3, s4
    s_add_u32 s28, s3, {EP_OFF}
    v_lshl_add_u32 v11, v3, 11, v10
    s_barrier
    ds_read_b64 v[40:41], v9
    ds_read_b32 v22, v9 offset:12
    s_waitcnt lgkmcnt(0)""")
    for e in E: a(f"v_pk_add_f32 {q2(XU+e)}, {q2(CAC+e)}, v[40:41] op_sel_hi:[1,0] neg_lo:[0,1] neg_hi:[0,1]")
    for e in E: a(f"v_cvt_pk_bf16_f32 v{OUTP+e//2}, v{XU+e}, v{XU+e+1}")
    for e in E: a(f"v_lshlrev_b32 v{XU+e}, 16, v{OUTP+e//2}\n v_and_b32 v{XU+e+1}, 0xffff0000, v{OUTP+e//2}")
    a("v_mov_b32 v42, v41")
    for e in E: a(f"v_pk_mul_f32 {q2(XU+e)}, {q2(XU+e)}, v[42:43] op_sel_hi:[1,0]")
    for e in E: a(f"v_cvt_pk_bf16_f32 v{OUTP+e//2}, v{XU+e}, v{XU+e+1}")
    for e in E: a(f"v_min_u32 v{OUTP+e//2}, -2, v{OUTP+e//2}")
    for k in range(5): a(f"ds_write_b64 v12, {q2(OUTP+2*k)} offset:{2560 + 8*k}")
    a(f"""v_and_b32 v4, 3, v22
    v_cmp_eq_u32 s[4:5], 0, v4
    v_cmp_eq_u32 s[6:7], 1, v4
    s_ff1_i32_b32 s4, s4
    s_ff1_i32_b32 s6, s6
    s_mul_i32 s4, s4, 160
    s_mul_i32 s6, s6, 160
    v_mov_b32 v4, s4
    v_mov_b32 v5, s6
    v_cmp_eq_u32 vcc, 1, v3
    v_cndmask_b32 v4, v4, v5, vcc
    v_add3_u32 v4, v4, v10, s34
    s_mov_b64 exec, 0x03ff03ff
    ds_read_b128 v[52:55], v4 offset:2560
    s_waitcnt lgkmcnt(0)
    buffer_store_dwordx4 v[52:55], v11, {WSR}, s28 offen sc1
    {MALL}
    """)
    rp_dma("L_RP2", "scc1")
    WDE = OPT.get("wde", 1)
    if WDE:
        a(f"s_cmp_lt_u32 {sROLE}, 32\n s_cbranch_scc1 L_NWD2")
        wd_dma(range(WD1, 7 - OPT.get("wdl", 0)), "2", True)
        a("L_NWD2:")
    for e in E: a(f"v_lshlrev_b32 v{XU+e}, 16, v{OUTP+e//2}\n v_and_b32 v{XU+e+1}, 0xffff0000, v{OUTP+e//2}")
    for e in E: a(f"v_pk_add_f32 {q2(XU+e)}, {q2(XU+e)}, {q2(CAC+e)}")
    for e in E: a(f"v_cvt_pk_bf16_f32 v{OUTP+e//2}, v{XU+e}, v{XU+e+1}")
    a("v_not_b32 v22, v22\n v_and_b32 v22, 0x1fff, v22\n s_waitcnt vmcnt(0)")
    a(f"""L_SELW:
    v_and_b32 v9, 7, v1
    v_lshlrev_b32 v62, 8, v9
    v_lshlrev_b32 v9, 2, v9
    v_add_u32 v9, {SB+SELL}, v9
    v_bfe_u32 v4, v1, 4, 1
    v_mul_u32_u24 v6, 2560, v4
    v_lshlrev_b32 v7, 4, v2
    v_sub_u32 v60, {RED + 2560}, v6
    v_add_u32 v60, v60, v7
    s_lshl_b32 s3, {sCS}, 11
    s_lshl_b32 s4, {sW}, 8
    s_add_u32 s3, s3, s4
    s_add_u32 s3, s3, {XS_OFF}
    v_lshl_add_u32 v61, v4, 14, v7
    v_add_u32 v61, s3, v61
    s_lshl_b32 s3, {sW}, 11
    s_add_u32 s3, s3, {XS_OFF}
    v_add_u32 v62, s3, v62
    s_add_u32 s29, s4, {EP_OFF}
    v_mov_b32 v5, {SB+SELL}""")
    srd(a, 8, P_OUT, 2621440)
    a(f"""s_waitcnt lgkmcnt(0)
    s_barrier
    ds_read_b32 v23, v9
    ds_read_b128 v[44:47], v5
    ds_read_b128 v[48:51], v5 offset:16
    s_waitcnt lgkmcnt(2)""")
    a.stamp(11); a.stamp(7, 3)
    def publish(L):
        a(f"""v_readlane_b32 s4, v23, {sW}
        s_lshr_b32 s5, s4, 8
        s_cmp_lg_u32 s5, {sRB2}
        s_cbranch_scc1 {L}
        s_bfe_u32 s5, s4, 0x20006
        s_mul_i32 s5, s5, 5120
        s_bfe_u32 s6, s4, 0x40002
        s_mul_i32 s6, s6, 160
        s_add_u32 s5, s5, s6
        v_add_u32 v4, s5, v60
        s_bfe_u32 s4, s4, 0x60002
        s_lshl_b32 s4, s4, 4
        s_add_u32 s4, s4, {SB+LMR}
        v_mov_b32 v5, s4
        v_cmp_eq_u32 vcc, 26, v1
        v_cndmask_b32 v4, v4, v5, vcc
        s_mov_b64 exec, 0x07ff03ff
        ds_read_b128 v[52:55], v4
        s_waitcnt lgkmcnt(0)
        buffer_store_dwordx4 v[52:55], v61, {WSR}, 0 offen sc1
        {MALL}
        {L}:""")
    def out_store(L):
        a(f"s_cmp_lg_u32 {sHI}, {FH}\n s_cbranch_scc1 {L}\n s_waitcnt lgkmcnt(0)")
        for i in range(8): a(f"v_cmp_ne_u32 vcc, v{44+i}, v22\n s_and_b64 exec, exec, vcc")
        a(f"""s_cbranch_execz {L}
        buffer_store_dwordx4 {q4(OUTP)}, v16, s[8:11], 0 offen {OFL}
        buffer_store_dwordx4 {q4(OUTP+4)}, v16, s[8:11], 0 offen offset:16 {OFL}
        buffer_store_dwordx2 {q2(OUTP+8)}, v16, s[8:11], 0 offen offset:32 {OFL}""")
        a(f"{L}:\n {MALL}")
    a(f"s_cmp_ge_u32 {sROLE}, 32\n s_cbranch_scc1 L_E")
    HF, DW, MRV = 64, 80, 24
    for r in range(12): a(f"v_mov_b32 v{HF+r}, 0")
    a(f"""v_lshrrev_b32 v4, 6, v23
    v_lshlrev_b32 v4, 12, v4
    v_not_b32 v5, v23
    v_and_b32 v5, 3, v5               ; slot
    v_lshl_add_u32 v4, v5, 11, v4
    v_add_u32 v4, s29, v4
    v_cmp_gt_u32 vcc, 2, v5
    v_cndmask_b32 v12, v62, v4, vcc
    v_lshl_add_u32 v12, v3, 4, v12""")
    def d_loads():
        a(f"""s_mov_b32 exec_lo, 0x00ff00ff
        s_mov_b32 exec_hi, 0x00ff00ff
        buffer_load_dwordx4 {q4(HF)}, v12, {WSR}, 0 offen sc1
        buffer_load_dwordx4 {q4(HF+4)}, v12, {WSR}, 0 offen offset:64 sc1
        s_mov_b32 exec_hi, 0
        buffer_load_dwordx4 {q4(HF+8)}, v12, {WSR}, 0 offen offset:128 sc1
        {MALL}""")
    def d_check():
        a(f"""s_waitcnt vmcnt(0)
        v_max3_u32 v5, v{HF}, v{HF+1}, v{HF+2}
        v_max3_u32 v6, v{HF+3}, v{HF+4}, v{HF+5}
        v_max3_u32 v5, v5, v{HF+6}, v{HF+7}
        v_max3_u32 v6, v6, v{HF+8}, v{HF+9}
        v_max3_u32 v5, v5, v{HF+10}, v{HF+11}
        v_max_u32 v5, v5, v6
        v_cmp_eq_u32 vcc, -1, v5""")
    d_loads()
    publish("L_NOPUB")
    a(f"""s_mul_i32 s5, {sW}, 1280
    s_add_u32 s5, s5, {GW}
    v_bfe_u32 v4, v1, 2, 2
    v_lshl_add_u32 v4, v3, 3, v4
    v_lshlrev_b32 v4, 4, v4
    v_and_b32 v5, 1, v1
    v_lshl_add_u32 v4, v5, 3, v4
    v_bfe_u32 v5, v1, 1, 1
    v_mul_u32_u24 v5, 10240, v5
    v_add3_u32 v11, v4, v5, s5
    s_add_u32 s3, s32, {DRED}
    v_lshl_add_u32 v10, v1, 4, s3""")
    for ks in range(3):
        for h in range(2): a(f"ds_read_b64_tr_b16 {q2(DW+4*ks+2*h)}, v11 offset:{ks*512 + h*64}")
    a("v_cmp_gt_u32 vcc, 32, v1\n s_waitcnt lgkmcnt(0)")
    for r in range(4): a(f"v_cndmask_b32 v{DW+8+r}, 0, v{DW+8+r}, vcc")
    d_check()
    a("s_cbranch_vccz L_RPOLL_OK")
    spin_head(a, "L_RPOLL")
    d_loads(); d_check()
    spin_tail(a, "L_RPOLL", 1)
    a.stamp(8, 3)
    for ks in range(3): a(mm16(28, DW+4*ks, HF+4*ks, ks == 0))
    a(f"""ds_write_b128 v10, v[28:31]
    s_waitcnt lgkmcnt(0)
    s_barrier""")
    a.stamp(9, 3)
    a(f"""s_cmp_lg_u32 {sW}, {LW}
    s_cbranch_scc1 L_DOTH
    v_subrev_u32 v10, {LW*1024}, v10""")
    oth = [w for w in range(8) if w != LW]
    for n, w in enumerate(oth): a(f"ds_read_b128 {q4(64+4*n)}, v10 offset:{1024*w}")
    for n in range(7):
        a(f"s_waitcnt lgkmcnt({6-n})")
        for r in (0, 2): a(f"v_pk_add_f32 {q2(28+r)}, {q2(28+r)}, {q2(64+4*n+r)}")
    a("""v_cvt_pk_bf16_f32 v32, v28, v29
    v_cvt_pk_bf16_f32 v33, v30, v31
    v_mov_b32 v34, v32
    v_mov_b32 v35, v33
    v_permlane32_swap_b32 v32, v34
    v_permlane32_swap_b32 v33, v35""")
    a.stamp(10, 3)
    for k in range(2):
        a(f"""v_lshlrev_b32 v{40+2*k}, 16, v{32+k}
        v_and_b32 v{41+2*k}, 0xffff0000, v{32+k}
        v_lshlrev_b32 v{44+2*k}, 16, v{34+k}
        v_and_b32 v{45+2*k}, 0xffff0000, v{34+k}""")
    for r in range(4): a(f"v_mul_f32 v{48+r}, 0xbfb8aa3b, v{40+r}")
    for r in range(4): a(f"v_exp_f32 v{48+r}, v{48+r}")
    for r in range(4): a(f"v_add_f32 v{48+r}, 1.0, v{48+r}")
    for r in range(4): a(f"v_rcp_f32 v{48+r}, v{48+r}")
    for r in range(4): a(f"v_mul_f32 v{40+r}, v{40+r}, v{48+r}")
    a("v_cvt_pk_bf16_f32 v32, v40, v41\n v_cvt_pk_bf16_f32 v33, v42, v43")
    for k in range(2):
        a(f"v_lshlrev_b32 v{40+2*k}, 16, v{32+k}\n v_and_b32 v{41+2*k}, 0xffff0000, v{32+k}")
    for r in (0, 2): a(f"v_pk_mul_f32 {q2(40+r)}, {q2(40+r)}, {q2(44+r)}")
    a(f"""v_cvt_pk_bf16_f32 v32, v40, v41
    v_cvt_pk_bf16_f32 v33, v42, v43
    v_min_u32 v32, -2, v32
    v_min_u32 v33, -2, v33
    v_mov_b32 v34, v32
    v_mov_b32 v35, v33
    v_lshlrev_b32 v4, 4, v2
    v_permlane16_swap_b32 v32, v34
    v_permlane16_swap_b32 v33, v35
    s_lshl_b32 s3, s30, 7
    s_add_u32 s3, s3, {ACT_OFF}
    s_mov_b64 exec, 0xff
    buffer_store_dwordx4 v[32:35], v4, {WSR}, s3 offen sc1""")
    a.stamp(4, 6)
    a(f"""s_barrier
    s_branch L_END
    L_DOTH:
    s_barrier
    L_DOTH2:""")
    if OPT.get("osl", 0): a(f"s_sleep {OPT['osl']}")
    out_store("L_OUTD")
    a("s_branch L_END")
    AF, EW = 64, 96
    a("L_E:")
    a.stamp(1, 6)
    publish("L_NOPUBE")
    a("v_lshrrev_b32 v23, 2, v23")
    if not WDE: wd_dma(range(WD1, 7), "2")
    elif OPT.get("wdl", 0): wd_dma(range(7 - OPT.get("wdl", 0), 7), "3")
    a(f"""s_sub_u32 s30, s30, 256
    s_mul_i32 s4, s30, 52
    s_lshr_b32 s4, s4, 8              ; cg/5
    s_lshl_b32 s5, s4, 11
    s_add_u32 s35, s5, {XS_OFF + 16384 + 160}
    s_mul_i32 s4, s4, {2048 - 160}
    s_lshl_b32 s30, s30, 5
    s_add_u32 s4, s4, s30
    s_add_u32 s33, s4, {XS_OFF}
    s_add_u32 s34, s33, 16384
    v_and_b32 v17, 7, v2
    v_lshlrev_b32 v17, 8, v17
    v_lshl_add_u32 v19, v3, 3, v17
    v_add_u32 v11, s32, v21
    v_add_u32 v14, {GW}, v11
    s_waitcnt lgkmcnt(0)""")
    EO = OPT.get("eo", 0)
    if EO == 0: out_store("L_OUTE")
    srd(a, 12, P_WS, ACT_OFF + 27648)
    a(f"""v_and_b32 v4, 7, v2
    v_lshlrev_b32 v12, 4, v4
    v_lshl_add_u32 v12, v3, 7, v12
    s_lshl_b32 s4, {sW}, 9
    s_add_u32 s4, s4, {ACT_OFF}
    v_mul_u32_u24 v13, 1280, v23
    v_lshl_add_u32 v13, v3, 3, v13
    v_add_u32 v13, s30, v13
    s_add_u32 s3, s32, {DRED}
    v_lshl_add_u32 v10, v1, 4, s3
    s_cmp_lg_u32 {sW}, {LW}
    s_cbranch_scc1 L_ENOH""")
    spin_head(a, "L_HPOLL")
    a(f"""buffer_load_dwordx2 v[136:137], v19, {WSR}, s33 offen sc1
    buffer_load_dwordx2 v[130:131], v19, {WSR}, s34 offen sc1
    buffer_load_dword v134, v17, {WSR}, s35 offen offset:8 sc1
    s_waitcnt vmcnt(0)
    v_max3_u32 v5, v130, v131, v134
    v_max3_u32 v5, v5, v136, v137
    v_cmp_eq_u32 vcc, -1, v5""")
    spin_tail(a, "L_HPOLL")
    rb16(a, 134)
    a("v_mul_f32 v15, 0xbfb8aa3b, v134\n v_exp_f32 v15, v15\n v_add_f32 v15, 1.0, v15\n v_rcp_f32 v15, v15")
    rb16(a, 15)
    a("L_ENOH:\n s_waitcnt vmcnt(0)")
    for j in range(7):
        b, o = (14, wd_lds(j) - GW) if j < WD1 else (11, wd_lds(j))
        for h in range(2): a(f"ds_read_b64_tr_b16 {q2(EW+4*j+2*h)}, v{b} offset:{o + h*256}")
    if OPT.get('hint', 0):
        spin_head(a, "L_AHINT")
        a(f"""buffer_load_dwordx4 {q4(AF)}, v12, s[12:15], s4 offen sc1
    s_waitcnt vmcnt(0)
    v_cmp_eq_u32 vcc, -1, v{AF}""")
        spin_tail(a, "L_AHINT")
    AM = OPT.get("am", 1)
    if AM:
        for r in range(28): a(f"v_mov_b32 v{AF+r}, 0")
    if OPT.get('abar', 1): a("s_barrier")
    if OPT.get('asleep', 0): a(f"s_sleep {OPT['asleep']}")
    a.stamp(2, 6)
    spin_head(a, "L_APOLL")
    if AM: a("s_mov_b32 exec_lo, 0x00ff00ff\n s_mov_b32 exec_hi, 0x00ff00ff")
    for j in range(7): a(f"s_add_u32 s5, s4, {4096*j}\n buffer_load_dwordx4 {q4(AF+4*j)}, v12, s[12:15], s5 offen sc1")
    if AM: a(MALL)
    a(f"s_waitcnt vmcnt(0) lgkmcnt(0)")
    for j in range(7):
        a(mm16(24, EW+4*j, AF+4*j, j == 0))
        if j == 0: a(f"v_max_u32 v5, v{AF}, v{AF+1}\n v_max3_u32 v5, v5, v{AF+2}, v{AF+3}")
        else: a(f"v_max3_u32 v5, v5, v{AF+4*j}, v{AF+4*j+1}\n v_max3_u32 v5, v5, v{AF+4*j+2}, v{AF+4*j+3}")
    a("v_cmp_eq_u32 vcc, -1, v5")
    spin_tail(a, "L_APOLL", 1)
    a.stamp(11, 3); a.stamp(3, 6)
    if PROF and OPT.get("pg") == 6: a("s_mov_b32 s99, s3")
    a(f"""ds_write_b128 v10, v[24:27]
    s_waitcnt lgkmcnt(0)
    s_barrier
    s_cmp_lg_u32 {sW}, {LW}
    s_cbranch_scc1 {"L_DOTH2" if EO else "L_END"}
    v_subrev_u32 v10, {LW*1024}, v10""")
    for n, w in enumerate(oth): a(f"ds_read_b128 {q4(32+4*n)}, v10 offset:{1024*w}")
    for w in range(7):
        a(f"s_waitcnt lgkmcnt({6-w})")
        for r in (0, 2): a(f"v_pk_add_f32 {q2(24+r)}, {q2(24+r)}, {q2(32+4*w+r)}")
    a("v_cvt_pk_bf16_f32 v28, v24, v25\n v_cvt_pk_bf16_f32 v29, v26, v27")
    for k in range(2):
        a(f"v_lshlrev_b32 v{24+2*k}, 16, v{28+k}\n v_and_b32 v{25+2*k}, 0xffff0000, v{28+k}")
    for r in range(4): a(f"v_mul_f32 v{24+r}, v{24+r}, v15")
    a("v_cvt_pk_bf16_f32 v24, v24, v25\n v_cvt_pk_bf16_f32 v25, v26, v27")
    for k in range(2):
        add_pairs(a, 24 + k, 24 + k, 136 + k, 4, 5, 6)
        add_pairs(a, 24 + k, 24 + k, 130 + k, 4, 5, 6)
    a("""s_mov_b32 exec_lo, 0x00ff00ff
    s_mov_b32 exec_hi, 0x00ff00ff
    buffer_store_dwordx2 v[24:25], v13, s[8:11], 0 offen
    L_END:""")
    if PROF:
        a(f"{MALL}\n s_waitcnt vmcnt(0)")
        a.stamp(12)
        for i in range(16): a(f"v_mov_b32 v{8+i}, s{88+i}" if i < 13 else f"v_mov_b32 v{8+i}, 0")
        a(f"""s_lshl_b32 s3, s2, 9
        s_add_u32 s3, s3, {PROF_OFF}
        s_lshl_b32 s4, {sW}, 6
        s_add_u32 s3, s3, s4
        v_mov_b32 v4, s3
        s_mov_b64 exec, 1""")
        for i in range(4): a(f"global_store_dwordx4 v4, {q4(8+4*i)}, s[{P_WS}:{P_WS+1}] offset:{16*i}")
        if "ampj" in OPT:
            i, j = OPT["ampi"], OPT["ampj"]
            a(f"""s_sub_u32 s4, s{88+j}, s{88+i}
            s_mul_i32 s4, s4, 10
            s_min_u32 s4, s4, 100000
            s_cmp_lg_u32 {sW}, 0
            s_cbranch_scc1 L_EXIT
            L_AMP:
            s_memrealtime s[6:7]
            s_waitcnt lgkmcnt(0)
            s_sub_u32 s5, s6, s100
            s_cmp_lt_u32 s5, s4
            s_cbranch_scc1 L_AMP""")
    a("L_EXIT:\n s_endpgm")

    if DYN: emit_dyn()
    a("L_FALLBACK:\n s_waitcnt vmcnt(0)\n s_nop 7\n s_nop 7")
    S0 = 112
    def S(i): return S0 + 16*i
    KF = 24
    for n in range(9):
        a(kread(KF + 6*n, n))
        if n % 4 == 3: a("s_waitcnt lgkmcnt(0)")
    a("s_waitcnt lgkmcnt(0)")
    for n in range(9): a(f"{s1(S(n), KF+6*n)}\n {s2(S(n), KF+6*n)}")
    for r in range(8): a(f"v_mov_b32 v{78+r}, 0x3f803f80")
    a("s_nop 7\n s_nop 7")
    for i in range(8):
        a(f"s_cmp_gt_i32 s30, {i}\n s_cbranch_scc0 L_VALID")
        for r in range(16): a(f"v_mov_b32 v{S(i)+r}, 0xff800000")
    a("L_VALID:")
    for r in range(16): a(f"v_cndmask_b32 v{S(0)+r}, v{S(8)+r}, v{S(0)+r}, s[{MS+2*r}:{MS+1+2*r}]")
    a(f"v_max_f32 v4, v{S(0)}, v{S(0)+1}")
    for k in range(1, 64): a(f"v_max3_f32 v4, v{S0+2*k}, v{S0+2*k+1}, v4")
    a("""v_mov_b32 v5, v4
    v_permlane32_swap_b32 v4, v5
    v_max_f32 v4, v4, v5""")
    for i in range(8):
        s = S(i)
        for r in range(16): a(f"v_sub_f32 v{s+r}, v{s+r}, v4")
        for r in range(16): a(f"v_exp_f32 v{s+r}, v{s+r}")
        for k in range(8): a(f"v_cvt_pk_bf16_f32 v{s+k}, v{s+2*k}, v{s+2*k+1}")
    s = S(0)
    for k in range(8): a(f"v_and_b32 v{s+8+k}, v{MK+k}, v{s+k}")
    for k in range(8): a(f"v_xor_b32 v{S(8)+k}, v{s+8+k}, v{s+k}")
    for t in range(9):
        p = s + 8 if t == 0 else S(t)
        a(vread(78, t, False))
        a(f"s_waitcnt lgkmcnt(0)\n {pvm(78, p, t == 0)}\n {pvm(82, p + 4)}\n s_nop 7")
    a("s_nop 7")
    early_loads("L_EL2")
    if OPT.get("rpn", 8) == 9: gu_loads("L_GU2", bGU)
    a("s_branch L_BDONE")

def build():
    a = PAsm()
    kernel(a)
    name = NAME + "_kernel"
    L = ["; @launch grid=(256,1,1) block=(512,1,1) lds=163840",
         '.amdgcn_target "amdgcn-amd-amdhsa--gfx950"', ".text", f".globl {name}", ".p2align 8",
         f".type {name},@function", f"{name}:", a.render(), "CODE_END:", "s_endpgm",
         '.section .rodata,"a"', ".p2align 6", f".amdhsa_kernel {name}", "  .amdhsa_next_free_vgpr 256",
         "  .amdhsa_next_free_sgpr 102", "  .amdhsa_accum_offset 256", "  .amdhsa_group_segment_fixed_size 0",
         "  .amdhsa_kernarg_size 88", "  .amdhsa_user_sgpr_count 2", "  .amdhsa_user_sgpr_kernarg_segment_ptr 1",
         "  .amdhsa_system_sgpr_workgroup_id_x 1", ".end_amdhsa_kernel"]
    return "\n".join(L) + "\n"

def check_ws(w, im, cmp, tof):
    import numpy as np
    qkv = im["qkv"]
    q = tof(w[Q_OFF:Q_OFF + 16*64*T32].view(np.uint16)).reshape(16, 64, 5, 32, 8).transpose(1, 3, 0, 2, 4).reshape(2048, 640)
    cmp("q", q, qkv[:, :640] * (20 ** -0.5) * 1.4426950408889634)
    k = tof(w[K_OFF:K_OFF + 16*64*T32].view(np.uint16)).reshape(16, 64, 5, 32, 8).transpose(1, 3, 0, 2, 4).reshape(2048, 640)
    cmp("k", k, qkv[:, 640:1280])
    v = tof(w[V_OFF:V_OFF + 16*64*T32].view(np.uint16)).reshape(16, 256, 40, 8).transpose(1, 3, 0, 2).reshape(2048, 640)
    cmp("v", v, qkv[:, 1280:])
    ob = w[O_OFF:O_OFF + 64*40960].reshape(64, 40960)
    om = tof(np.ascontiguousarray(ob[:, :32768]).view(np.uint16)).reshape(64, 32, 2, 32, 8).transpose(0, 3, 1, 2, 4).reshape(2048, 32, 16)
    oq = tof(np.ascontiguousarray(ob[:, 32768:]).view(np.uint16)).reshape(64, 32, 32, 4).transpose(0, 2, 1, 3).reshape(2048, 32, 4)
    o = np.concatenate([om, oq], axis=2).reshape(2048, 640)
    cmp("o", o, im["o"])

if __name__ == "__main__":
    PROF = "prof" in sys.argv
    if "cyc" in sys.argv: TIMER = "s_memtime"
    for x in sys.argv[2:]:
        if "=" in x:
            k, v = x.split("="); OPT[k] = int(v)
    out = sys.argv[1] if len(sys.argv) > 1 else f"cdna_kernels/{NAME}.s"
    txt = build()
    import re
    if OPT.get("sys") == 1: txt = txt.replace(" sc1", " sc0 sc1").replace("global_atomic_add v4, v5, s[82:83] sc0 sc1", "global_atomic_add v4, v5, s[82:83] sc1")
    if OPT.get("sys") == 2: txt = re.sub(r"(buffer_store[^\n]*) sc1", r"\1 sc0 sc1", txt)
    if OPT.get("sys") == 3: txt = re.sub(r"(buffer_load[^\n]*) sc1", r"\1 sc0 sc1", txt)
    if OPT.get("sys") == 4: txt = re.sub(r"(buffer_load[^\n]*) sc1 lds", r"\1 lds", txt)
    open(out, "w").write(txt)
    print("wrote", out, len(txt))
```

```python
import sys, struct
from asmlib import Asm

NAME = "sequential_preLN__sliding_block__moe_arch_mod__prompt"
Q_OFF = 0; K_OFF = 0x280000; V_OFF = 0x500000; O_OFF = 0x780000
PART_OFF = 0xC00000; EP_OFF = 0xC80000; PARTB = 0x40000; F1_OFF = 0xD00000; XS_OFF = 0xD08000; KEY_OFF = 0xD10000; ACT_OFF = 0xD14000
ST_OFF = 0xD1C000
RP_OFF = 0xD20000
WS_SIZE = RP_OFF + 27*8*20480
PROF_OFF = 0x1200000
T32 = 2560
PROF = False
TIMER = "s_memrealtime"
SPIN_MAX = 1 << 18
SLEEP = 2
OPT = {}

def f2u(x): return struct.unpack("<I", struct.pack("<f", x))[0]
QSCALE = f2u((20 ** -0.5) * 1.4426950408889634)
EPS = f2u(1e-5); INV640 = f2u(1.0 / 640)
P_X, P_WQKV, P_WO, P_WR, P_G, P_U, P_D, P_OUT, P_DBG, P_WS = 64, 66, 68, 72, 74, 76, 78, 80, 82, 84
WSR = "s[16:19]"
sW, sRB, sHP, sRB2, sCS, sROLE, sLO, sHI = "s20", "s21", "s22", "s23", "s24", "s25", "s26", "s27"

SCR = 94208
KL = 102400; VL = 133120; WOL = 0
GW = KL; SB = 122880; RED = VL
SURV = 0; WMAX = 8320; CNT = 8352; SELL = 8384; LMR = 8704
DRED = 65536

class PAsm(Asm):
    def stamp(self, i, grp=0):
        if i not in (0, 12) and grp != OPT.get("pg", 0): return
        if PROF:
            assert i < 13
            self(f"{TIMER} s[86:87]\n s_waitcnt lgkmcnt(0)\n s_mov_b32 s{88+i}, s86")

def srd(a, d, lo, size):
    a(f"""s_mov_b32 s{d}, s{lo}
    s_and_b32 s{d+1}, s{lo+1}, 0xffff
    s_mov_b32 s{d+2}, {size}
    s_mov_b32 s{d+3}, 0x00020000""")
def rb16(a, v): a(f"v_cvt_pk_bf16_f32 v{v}, v{v}, v{v}\n v_lshlrev_b32 v{v}, 16, v{v}")
def ln_scalars(a, s1, s2):
    a(f"""v_mul_f32 v{s1}, {INV640:#x}, v{s1}
    v_mul_f32 v{s2}, {INV640:#x}, v{s2}
    v_fma_f32 v{s2}, -v{s1}, v{s1}, v{s2}
    v_max_f32 v{s2}, 0, v{s2}
    v_cvt_pk_bf16_f32 v{s2}, v{s1}, v{s2}
    v_lshlrev_b32 v{s1}, 16, v{s2}
    v_and_b32 v{s2}, 0xffff0000, v{s2}
    v_add_f32 v{s2}, {EPS:#x}, v{s2}""")
    rb16(a, s2)
    a(f"v_sqrt_f32 v{s2}, v{s2}")
    rb16(a, s2)
    a(f"v_rcp_f32 v{s2}, v{s2}")
def dpp_reduce(a, op, regs):
    for sh in (1, 2, 4, 8):
        for v in regs: a(f"{op}_dpp v{v}, v{v}, v{v} row_shr:{sh} row_mask:0xf bank_mask:0xf")
    for v in regs: a(f"{op}_dpp v{v}, v{v}, v{v} row_bcast:15 row_mask:0xa bank_mask:0xf")
    for v in regs: a(f"{op}_dpp v{v}, v{v}, v{v} row_bcast:31 row_mask:0xc bank_mask:0xf")
def xg_sum(a, regs, tmps):
    for x, t in zip(regs, tmps): a(f"v_mov_b32 v{t}, v{x}")
    for x, t in zip(regs, tmps): a(f"v_permlane16_swap_b32 v{x}, v{t}")
    for x, t in zip(regs, tmps): a(f"v_add_f32 v{x}, v{x}, v{t}")
    for x, t in zip(regs, tmps): a(f"v_mov_b32 v{t}, v{x}")
    for x, t in zip(regs, tmps): a(f"v_permlane32_swap_b32 v{x}, v{t}")
    for x, t in zip(regs, tmps): a(f"v_add_f32 v{x}, v{x}, v{t}")
def norm_pair(a, d, x, m, rs, t0, t1):
    a(f"""v_lshlrev_b32 v{t0}, 16, v{x}
    v_and_b32 v{t1}, 0xffff0000, v{x}
    v_subrev_f32 v{t0}, {m}, v{t0}
    v_subrev_f32 v{t1}, {m}, v{t1}
    v_cvt_pk_bf16_f32 v{d}, v{t0}, v{t1}
    v_lshlrev_b32 v{t0}, 16, v{d}
    v_and_b32 v{t1}, 0xffff0000, v{d}
    v_mul_f32 v{t0}, {rs}, v{t0}
    v_mul_f32 v{t1}, {rs}, v{t1}
    v_cvt_pk_bf16_f32 v{d}, v{t0}, v{t1}""")
def add_pairs(a, d, x, y, t0, t1, t2):
    a(f"""v_lshlrev_b32 v{t0}, 16, v{x}
    v_lshlrev_b32 v{t1}, 16, v{y}
    v_add_f32 v{t0}, v{t0}, v{t1}
    v_and_b32 v{t1}, 0xffff0000, v{x}
    v_and_b32 v{t2}, 0xffff0000, v{y}
    v_add_f32 v{t1}, v{t1}, v{t2}
    v_cvt_pk_bf16_f32 v{d}, v{t0}, v{t1}""")
def q2(r): return f"v[{r}:{r+1}]"
def q4(r): return f"v[{r}:{r+3}]"
def r16(x): return f"v[{x}:{x+15}]"
M40 = "s_mov_b32 exec_hi, 0xff"
MALL = "s_mov_b64 exec, -1"
def spin_head(a, L):
    a(f"s_mov_b32 s3, 0\n {L}:\n s_add_u32 s3, s3, 1\n s_cmp_gt_u32 s3, {SPIN_MAX}\n s_cbranch_scc1 L_END")
def spin_tail(a, L, sl=None):
    a(f"s_cbranch_vccz {L}_OK\n s_sleep {SLEEP if sl is None else sl}\n s_branch {L}\n {L}_OK:")
def div_lane(a, q, r, src, d):
    magic = (65536 + d - 1) // d
    a(f"""v_mul_u32_u24 v{q}, {magic}, v{src}
    v_lshrrev_b32 v{q}, 16, v{q}
    v_mul_u32_u24 v{r}, {d}, v{q}
    v_sub_u32 v{r}, v{src}, v{r}""")
def kappa(a, d, s, t):
    a(f"""v_and_b32 v{d}, 0x13, v{s}
    v_and_b32 v{t}, 4, v{s}
    v_lshl_or_b32 v{d}, v{t}, 1, v{d}
    v_and_b32 v{t}, 8, v{s}
    v_lshrrev_b32 v{t}, 1, v{t}
    v_or_b32 v{d}, v{d}, v{t}""")
def rho(a, d, t):
    a(f"""v_bfe_u32 v{d}, v1, 2, 2
    v_and_b32 v{t}, 1, v3
    v_lshl_or_b32 v{d}, v{t}, 2, v{d}
    v_lshrrev_b32 v{t}, 1, v3
    v_lshl_or_b32 v{d}, v{t}, 4, v{d}""")
def masked_load(a, dst, voff, ptr, L, fl=""):
    a(f"""s_and_saveexec_b64 s[6:7], vcc
    s_cbranch_execz {L}
    global_load_dword v{dst}, v{voff}, s[{ptr}:{ptr+1}] {fl}
    {L}:
    {MALL}""")
def mm16(d, x, y, first): return f"v_mfma_f32_16x16x32_bf16 {q4(d)}, {q4(x)}, {q4(y)}, {'0' if first else q4(d)}"

def kernel(a):
    vXD, vWD = 112, 113
    vAS = 114
    NEG = 76; ONES = 132
    FR = 136
    ACC = 184
    CS = 216
    PK = 220
    EC = OPT.get('ec', 1)
    TMP = 24 if EC else FR
    XB = 64
    vST = 236
    vCW, vCR, vSR = 238, 239, 241
    STV = 244
    TD, vK0, vK1, vV, vO0, vO1 = 10, 11, 12, 13, 14, 15
    bWO0, bWO1, bGU, bF2A, vF1A, vHC, vTO = 22, 23, 86, 87, 85, 84, 83
    sGR, sCT = "s60", "s61"
    ROTX = [f"s_add_u32 s4, s4, {sCT}\n s_add_u32 s4, s4, {sGR}",
            f"s_add_u32 s4, s4, {sCT}",
            f"s_add_u32 s4, s4, {sCT}\n s_and_b32 s5, {sGR}, 1\n s_add_u32 s4, s4, s5",
            f"s_and_b32 s5, {sCT}, 6\n s_add_u32 s4, s4, s5",
            f"s_and_b32 s5, s2, 1\n s_lshl_b32 s5, s5, 1\n s_add_u32 s4, s4, s5\n s_add_u32 s4, s4, {sCT}\n s_add_u32 s4, s4, {sGR}",
            ][OPT.get("rotx", 0)]
    def slot(c): return (c % 5) * 32768
    if PROF:
        for i in range(13): a(f"s_mov_b32 s{88+i}, 0")
    a.stamp(0)
    a(f"""s_load_dwordx16 s[64:79], s[0:1], 0
    s_load_dwordx4 s[80:83], s[0:1], 64
    s_load_dwordx2 s[84:85], s[0:1], 80
    s_getpc_b64 s[4:5]
    CODE_START:
    s_cmp_ge_u32 s2, 256
    s_cbranch_scc1 L_EXIT
    s_lshr_b32 s63, s2, 3             ; idx
    s_lshl_b32 s3, s63, 7
    v_lshl_add_u32 v4, v0, 12, s3
    v_cmp_gt_u32 vcc, CODE_END-CODE_START, v4""")
    masked_load(a, 250, 4, 4, "L_NOPF")
    a(f"""v_and_b32 v1, 63, v0
    v_lshrrev_b32 v4, 6, v0
    v_and_b32 v2, 15, v0
    v_readfirstlane_b32 {sW}, v4
    v_lshrrev_b32 v3, 4, v1
    s_and_b32 s3, s63, 3
    s_lshr_b32 {sCT}, s63, 2
    s_bfe_u32 {sGR}, s2, 0x20001
    s_mul_i32 s4, s3, 5
    s_lshr_b32 s4, s4, 1
    {ROTX}
    s_cmp_ge_u32 s4, 10
    s_cselect_b32 s5, 10, 0
    s_sub_u32 s4, s4, s5              ; rot
    s_lshl_b32 {sGR}, {sGR}, 2
    s_add_u32 {sGR}, {sGR}, s3
    s_and_b32 s3, s2, 1
    s_lshl_b32 s3, s3, 3
    s_add_u32 {sCT}, {sCT}, s3
    s_lshl_b32 s28, s4, 7
    s_mul_i32 s29, s4, 245760
    s_lshl_b32 s3, {sGR}, 7
    s_lshl_b32 s4, {sW}, 3
    s_add_u32 s3, s3, s4
    v_lshrrev_b32 v4, 3, v1
    v_add_u32 v4, s3, v4
    v_mul_u32_u24 v4, 1280, v4
    s_and_b32 s3, {sW}, 1
    s_lshl_b32 s3, s3, 2
    v_or_b32 v5, s3, v3
    v_and_b32 v6, 7, v1
    v_xor_b32 v5, v5, v6
    v_lshl_add_u32 v{vXD}, v5, 4, v4
    s_lshl_b32 s3, {sW}, 2
    v_add_u32 v4, s3, v3
    v_mul_u32_u24 v4, 3840, v4
    s_lshl_b32 s3, {sW}, 1
    s_and_b32 s3, s3, 4
    v_or_b32 v5, s3, v3
    v_lshlrev_b32 v5, 1, v5
    v_xor_b32 v5, v5, v2
    v_lshl_add_u32 v4, v5, 4, v4
    s_lshl_b32 s3, {sCT}, 8
    v_add_u32 v{vWD}, s3, v4
    s_lshl_b32 s30, {sW}, 10
    s_waitcnt lgkmcnt(0)""")
    a.stamp(1)
    srd(a, 8, P_X, 2621440)
    srd(a, 12, P_WQKV, 2457600)
    def dmaA(c):
        b = slot(c)
        return [f"""s_add_u32 m0, s30, {b}
        s_add_u32 s31, s28, 81920
        buffer_load_dwordx4 v{vXD}, s[8:11], s28 offen lds""",
        f"""s_add_u32 m0, s30, {b + 16384}
        s_add_u32 s39, s29, 122880
        buffer_load_dwordx4 v{vWD}, s[12:15], s29 offen lds""",
        f"""s_add_u32 m0, s30, {b + 8192}
        s_add_u32 s28, s28, 128
        buffer_load_dwordx4 v{vXD}, s[8:11], s31 offen lds""",
        f"""s_add_u32 m0, s30, {b + 16384 + 8192}
        s_add_u32 s29, s29, 245760
        buffer_load_dwordx4 v{vWD}, s[12:15], s39 offen lds
        s_cmp_ge_u32 s28, 1280
        s_cselect_b32 s28, 0, s28
        s_cselect_b32 s29, 0, s29"""]
    srd(a, 16, P_WS, WS_SIZE)
    a(f"""s_lshl_b32 s4, {sCT}, 4
    s_add_u32 s4, s4, {sGR}
    s_lshl_b32 s4, s4, 7
    s_add_u32 s59, s4, {F1_OFF}
    v_mov_b32 v{NEG}, -1
    v_mov_b32 v{NEG+1}, -1
    v_mov_b32 v{NEG+2}, -1
    v_mov_b32 v{NEG+3}, -1
    s_cmp_lg_u32 {sW}, 7
    s_cbranch_scc1 L_NOCLR
    s_lshl_b32 s3, s2, 10
    s_add_u32 s3, s3, {PART_OFF}
    v_lshl_add_u32 v6, v1, 4, s3
    buffer_store_dwordx4 {q4(NEG)}, v6, {WSR}, 0 offen sc1
    s_mov_b32 s3, {PARTB}
    buffer_store_dwordx4 {q4(NEG)}, v6, {WSR}, s3 offen sc1
    s_mov_b32 s3, {EP_OFF - PART_OFF}
    buffer_store_dwordx4 {q4(NEG)}, v6, {WSR}, s3 offen sc1
    s_mov_b32 s3, {EP_OFF - PART_OFF + 0x40000}
    buffer_store_dwordx4 {q4(NEG)}, v6, {WSR}, s3 offen sc1
    s_lshl_b32 s6, s2, 7
    s_add_u32 s5, s6, {XS_OFF - 256}
    s_add_u32 s6, s6, {ACT_OFF - 128}
    s_lshl_b32 s7, s2, 6
    s_add_u32 s7, s7, {KEY_OFF - 384}
    v_mov_b32 v6, s59
    v_mov_b32 v7, s6
    v_cmp_le_u32 vcc, 8, v1
    v_cndmask_b32 v6, v6, v7, vcc
    v_mov_b32 v7, s5
    v_cmp_le_u32 vcc, 16, v1
    v_cndmask_b32 v6, v6, v7, vcc
    v_mov_b32 v7, s7
    v_cmp_le_u32 vcc, 24, v1
    v_cndmask_b32 v6, v6, v7, vcc
    v_lshl_add_u32 v6, v1, 4, v6
    s_mov_b64 exec, 0xfffffff
    buffer_store_dwordx4 {q4(NEG)}, v6, {WSR}, 0 offen sc1
    {MALL}
    s_cmp_lg_u32 {sCT}, 15
    s_cbranch_scc1 L_NOCLR
    s_lshl_b32 s3, {sGR}, 10
    s_add_u32 s3, s3, {ST_OFF}
    v_lshl_add_u32 v6, v1, 4, s3
    buffer_store_dwordx4 {q4(NEG)}, v6, {WSR}, 0 offen sc1
    L_NOCLR:
    s_cmp_eq_u32 {sCT}, 15
    s_cbranch_scc1 L_HLD""")
    for x in dmaA(0): a(x)
    a("s_branch L_PRE\n L_HLD:")
    HX = 136
    a(f"""s_lshl_b32 s3, {sGR}, 7
    s_lshl_b32 s4, {sW}, 4
    s_add_u32 s3, s3, s4
    v_lshrrev_b32 v4, 2, v1
    v_add_u32 v4, s3, v4
    v_mul_u32_u24 v4, 1280, v4
    v_and_b32 v5, 3, v1
    v_lshl_add_u32 v{vXD}, v5, 4, v4""")
    for i in range(4): a(f"buffer_load_dwordx4 {q4(HX+4*i)}, v{vXD}, s[8:11], 0 offen offset:{64*i}")
    a("L_PRE:")
    a.stamp(1, 1)
    a(f"""s_and_b32 {sLO}, {sW}, 3
    s_lshr_b32 {sHI}, {sW}, 2
    s_and_b32 s3, s2, 7
    s_lshl_b32 {sHP}, s3, 1
    s_lshr_b32 s4, s63, 4
    s_add_u32 {sHP}, {sHP}, s4
    s_and_b32 {sRB}, s63, 15
    s_lshl_b32 {sRB2}, s3, 2
    s_lshr_b32 s5, s63, 3
    s_add_u32 {sRB2}, {sRB2}, s5
    s_and_b32 {sCS}, s63, 7
    s_min_u32 s4, s3, 5
    s_sub_u32 {sROLE}, {sRB2}, s4
    s_cmp_eq_u32 s5, 3
    s_cselect_b32 s4, s3, 7
    s_add_u32 s3, s3, 32
    s_cmp_lt_u32 s4, 5
    s_cselect_b32 {sROLE}, s3, {sROLE}
    v_lshrrev_b32 v4, 1, v2
    v_xor_b32 v4, v4, v3
    v_lshlrev_b32 v4, 4, v4
    v_lshl_add_u32 v4, v2, 7, v4
    s_lshl_b32 s3, {sHI}, 13
    v_add_u32 v{vAS}, s3, v4
    v_xor_b32 v{vAS+1}, 64, v{vAS}
    v_bfe_u32 v4, v1, 2, 2
    v_and_b32 v5, 1, v3
    v_lshl_or_b32 v5, v5, 2, v4
    v_lshl_add_u32 v4, v3, 3, v4
    v_lshlrev_b32 v4, 8, v4
    v_and_b32 v6, 3, v1
    v_lshl_add_u32 v4, v6, 3, v4
    v_add_u32 v4, 16384, v4
    s_lshl_b32 s32, {sLO}, 1
    s_add_u32 s32, s32, {sHI}
    s_xor_b32 s33, s32, 1
    v_xor_b32 v6, s32, v5
    v_lshl_add_u32 v{vAS+2}, v6, 5, v4
    v_xor_b32 v{vAS+3}, 32, v{vAS+2}""")
    for q in (1, 2):
        for i in range(4): a(f"v_add_u32 v{vAS+4*q+i}, {65536*q}, v{vAS+i}")
    for i in range(4): a(f"v_mov_b32 v{ONES+i}, 0x3f803f80")
    if OPT.get("z2", 1):
        a(f"""s_cmp_eq_u32 {sCT}, 15
        s_cbranch_scc1 L_KEEP1
        s_mov_b32 exec_lo, 0xfffefffe
        s_mov_b32 exec_hi, 0xfffefffe""")
        for i in range(4): a(f"v_mov_b32 v{ONES+i}, 0")
        a(f"{MALL}\n L_KEEP1:")
    a(f"""    ; epilogue addresses
    s_cmp_ge_u32 {sCT}, 10
    s_cselect_b64 s[56:57], -1, 0
    v_lshlrev_b32 v6, 4, v3
    v_lshlrev_b32 v7, 2, v2
    v_cndmask_b32 v8, v6, v7, s[56:57]
    v_cndmask_b32 v9, v7, v6, s[56:57]
    s_lshl_b32 s3, s32, 6
    s_add_u32 s3, s3, {SCR+1024}
    v_add_u32 v{vCW}, s3, v7
    v_add_u32 v{vCR}, s3, v8
    v_xor_b32 v{vCR+1}, 64, v{vCR}
    s_lshl_b32 s3, {sHI}, 8
    s_add_u32 s3, s3, {SCR}
    v_add_u32 v{vSR}, s3, v9
    s_mul_i32 s3, {sCT}, 52
    s_lshr_b32 s3, s3, 8              ; section
    s_mul_i32 s4, s3, 5
    s_sub_u32 s34, {sCT}, s4          ; ct % 5
    s_mul_i32 s37, s3, {K_OFF}
    s_lshl_b32 s4, {sGR}, 2
    s_lshl_b32 s5, {sHI}, 1
    s_add_u32 s4, s4, s5
    s_mul_i32 s4, s4, {T32}
    s_add_u32 s37, s37, s4
    s_cmp_eq_u32 s3, 0
    s_cselect_b32 s36, {QSCALE:#x}, 1.0
    ; q/k: octet O = 16*(ct%5) + 2*(tile(g&1)) + (g>>1)
    v_and_b32 v4, 1, v3
    v_xor_b32 v4, s32, v4
    v_lshrrev_b32 v5, 1, v3
    v_lshl_add_u32 v4, v4, 1, v5
    s_lshl_b32 s3, s34, 4
    v_add_u32 v4, s3, v4
    v_mul_u32_u24 v6, 13108, v4
    v_lshrrev_b32 v6, 16, v6
    v_mul_u32_u24 v6, {64*T32 - 5*512}, v6
    v_lshl_add_u32 v6, v4, 9, v6
    v_lshl_add_u32 v{vST}, v2, 4, v6
    ; v: col = 128*(ct%5) + 16*tile + j ; octet = 2(g&1) + (g>>1)
    v_and_b32 v4, 1, v3
    v_lshl_add_u32 v4, v4, 1, v5
    v_mul_u32_u24 v7, 640, v4""")
    for c in range(2):
        a(f"""s_lshl_b32 s3, s34, 7
        s_lshl_b32 s4, s{32+c}, 4
        s_add_u32 s3, s3, s4
        v_add_u32 v4, s3, v2
        v_mul_u32_u24 v6, 1639, v4
        v_lshrrev_b32 v6, 16, v6
        v_mul_u32_u24 v6, {64*T32 - 640}, v6
        v_lshl_add_u32 v6, v4, 4, v6
        v_add_u32 v6, v6, v7
        v_cndmask_b32 v{vST+c}, v{vST}, v6, s[56:57]""")
    def signal(vm):
        a(f"""s_cmp_lg_u32 {sW}, 7
        s_cbranch_scc1 L_NOSIG
        s_and_b32 s3, s2, 63
        s_lshl_b32 s3, s3, 2
        v_mov_b32 v4, s3
        v_mov_b32 v5, 1
        s_waitcnt vmcnt({vm})
        s_mov_b64 exec, 1
        global_atomic_add v4, v5, s[{P_DBG}:{P_DBG+1}] sc1
        {MALL}
        L_NOSIG:""")
    if OPT.get('sige', 0): signal(4)
    a(f"s_cmp_eq_u32 {sCT}, 15\n s_cbranch_scc1 L_HLD2")
    for x in dmaA(1): a(x)
    a("s_branch L_PRE2\n L_HLD2:")
    for i in range(4, 20): a(f"buffer_load_dwordx4 {q4(HX+4*i)}, v{vXD}, s[8:11], 0 offen offset:{64*i}")
    a("L_PRE2:")
    if not OPT.get('sige', 0): signal(8)
    div_lane(a, 8, 9, 1, 10)
    a(f"""s_and_b32 s3, {sW}, 1
    s_lshl_b32 s3, s3, 2
    v_add_u32 v4, s3, v8
    v_mul_u32_u24 v4, 1280, v4
    s_mul_i32 s3, s3, 5
    s_add_u32 s3, s3, 16
    v_add_u32 v5, s3, v8
    v_mul_u32_u24 v5, 1280, v5
    s_mul_i32 s3, {sCS}, 160
    v_lshl_add_u32 v6, v9, 4, s3
    v_add_u32 v{bWO0}, v4, v6
    v_add_u32 v{bWO1}, v5, v6
    s_lshl_b32 s3, {sRB}, 2
    s_add_u32 s3, s3, {sLO}
    s_mul_i32 s3, s3, 40960
    s_add_u32 s3, s3, {O_OFF}
    s_lshl_b32 s4, {sHP}, 1
    s_add_u32 s4, s4, {sHI}
    s_lshl_b32 s5, s4, 10
    s_add_u32 s5, s5, s3
    v_lshl_add_u32 v{vO0}, v1, 4, s5
    s_lshl_b32 s5, s4, 8
    s_add_u32 s5, s5, s3
    s_add_u32 s5, s5, 32768
    v_lshl_add_u32 v{vO1}, v1, 3, s5
    s_mul_i32 s3, {sCS}, 80
    v_lshrrev_b32 v4, 3, v1
    v_add_u32 v4, s3, v4
    v_mul_u32_u24 v4, 3456, v4
    v_and_b32 v5, 7, v1
    v_lshl_add_u32 v4, v5, 4, v4
    s_lshl_b32 s3, {sROLE}, 7
    v_add_u32 v{bGU}, s3, v4
    s_cmp_ge_u32 {sW}, 3
    s_cselect_b32 s4, 1, 0            ; kv
    s_mul_i32 s5, s4, 3
    s_sub_u32 s5, {sW}, s5
    s_mov_b32 s70, s4
    s_mov_b32 s71, s5
    s_add_u32 s5, s5, {sRB}
    s_sub_u32 s5, s5, 2
    s_max_i32 s5, s5, 0
    s_min_i32 s5, s5, 15
    s_mul_i32 s4, s4, 80
    s_add_u32 s4, s4, 80
    s_add_u32 s4, s4, s5
    v_mov_b32 v4, s4
    v_mov_b32 v5, {sRB}
    v_cmp_gt_u32 vcc, 2, v1
    v_cndmask_b32 v4, v5, v4, vcc
    s_mul_i32 s3, {sHP}, 40
    v_and_b32 v7, 1, v1
    v_mul_u32_u24 v7, 39, v7
    v_add_u32 v7, s3, v7
    v_lshrrev_b32 v7, 7, v7
    v_lshl_add_u32 v4, v7, 4, v4
    v_lshlrev_b32 v4, 7, v4
    v_add_u32 v{vF1A}, {F1_OFF}, v4
    v_bfe_u32 v4, v1, 2, 1
    v_lshlrev_b32 v4, 9, v4
    v_and_b32 v5, 3, v1
    v_lshl_add_u32 v4, v5, 13, v4
    s_lshr_b32 s3, {sRB2}, 1
    s_and_b32 s4, s3, 3
    s_lshl_b32 s4, s4, 7
    s_lshr_b32 s3, s3, 2
    s_lshl_b32 s3, s3, 11
    s_add_u32 s3, s3, s4
    s_lshl_b32 s4, {sHI}, 10
    s_add_u32 s3, s3, s4
    s_add_u32 s3, s3, {F1_OFF + 32}
    v_add_u32 v{bF2A}, s3, v4
    v_bfe_u32 v4, v1, 2, 1
    v_lshlrev_b32 v4, 11, v4
    v_lshl_add_u32 v4, v5, 7, v4
    s_and_b32 s3, {sCT}, 14
    s_lshl_b32 s3, s3, 11
    s_and_b32 s4, {sGR}, 12
    s_lshl_b32 s4, s4, 7
    s_add_u32 s3, s3, s4
    s_add_u32 s3, s3, {F1_OFF + 32}
    v_add_u32 v4, s3, v4
    v_cmp_le_u32 vcc, 8, v1
    v_cndmask_b32 v{bF2A}, v{bF2A}, v4, vcc
    s_mul_i32 s3, s63, 200
    s_mul_i32 s4, {sW}, 25
    s_add_u32 s3, s3, s4
    v_add_u32 v4, s3, v1
    v_lshlrev_b32 v{vTO}, 7, v4
    v_subrev_u32 v4, {128 + 256*OPT.get('guh', 1)}, v0
    v_lshrrev_b32 v5, 1, v4
    s_mul_i32 s3, s63, 54
    v_add_u32 v5, s3, v5
    v_mul_u32_u24 v5, 1280, v5
    v_and_b32 v4, 1, v4
    v_lshl_add_u32 v5, v4, 7, v5
    s_and_b32 s3, s2, 7
    s_lshl_b32 s3, s3, 8
    v_add_u32 v{TD}, s3, v5
    v_lshlrev_b32 v8, 2, v1
    s_lshl_b32 s3, {sGR}, 10
    s_add_u32 s35, s3, {ST_OFF}""")
    srd(a, 44, P_WO, 819200)
    a(f"""s_lshr_b32 s3, {sW}, 1
    s_mul_i32 s41, s3, {80*1280}
    s_mul_i32 s40, s3, 10240
    s_and_b32 s3, {sW}, 1
    s_mul_i32 s3, s3, 1280
    s_add_u32 s40, s40, s3""")
    def wo_early(k):
        z, h = k >> 1, k & 1
        return f"""s_add_u32 m0, s40, {WOL + 640*h + 2560*z}
        s_add_u32 s42, s41, {8*1280*h + 20*1280*z}
        {M40}
        buffer_load_dwordx4 v{bWO0}, s[44:47], s42 offen lds
        {MALL}"""
    WE = OPT.get("we", 1); WES = OPT.get("wes", 17)
    wo_touch = f"""s_mov_b64 exec, 0x1ffffff
        global_load_dword v252, v{vTO}, s[{P_WO}:{P_WO+1}]
        {MALL}"""
    def clr_check(L):
        a(f"v_cmp_gt_u32 vcc, 4, v9\n s_cbranch_vccz {L}_OK")
        spin_head(a, L)
        a(f"""global_load_dword v9, v8, s[{P_DBG}:{P_DBG+1}] sc1
        s_waitcnt vmcnt(0)
        v_cmp_gt_u32 vcc, 4, v9""")
        spin_tail(a, L)
    a.stamp(2, 1)
    a(f"s_cmp_eq_u32 {sCT}, 15\n s_cbranch_scc1 L_HELP")
    a("s_waitcnt vmcnt(4)\n s_barrier")
    a.stamp(2); a.stamp(3, 1)
    def FA(b, t): return FR + 24*b + 4*t
    def FB(b, c): return FR + 24*b + 16 + 4*c
    def a1_reads(n):
        c, ks, b = n >> 1, n & 1, n & 1
        sl = c % 5
        base, off = vAS + 4*(sl // 2), (sl % 2) * 32768
        A = [f"ds_read_b128 {q4(FA(b, t))}, v{base+ks} offset:{off + 2048*t}" for t in range(4)]
        B = [f"ds_read_b64_tr_b16 {q2(FB(b, c2)+2*h)}, v{base+2+c2} offset:{off + 8192*ks + 1024*h}" for c2 in range(2) for h in range(2)]
        L = [B[0], B[1], A[0], B[2], B[3], A[1], A[2], A[3]]
        if EC and n == 18:
            L = [f"ds_read_b64_tr_b16 {q2(XB+2*h)}, v{base+2} offset:{off + 8192 + 1024*h}" for h in range(2)] + L
        return L
    def a1_mfmas(n, isv):
        b = n & 1; f = n == 0
        L = [(mm16(CS, ONES, FB(b, 0), f), 1)]
        for t in range(4):
            for c in range(2):
                d = ACC + 8*t + 4*c
                need = [2, 4][c] if t == 0 else 4 + t
                L.append((mm16(d, FA(b, t), FB(b, c), f) if isv else mm16(d, FB(b, c), FA(b, t), f), need))
        if EC and n == 18: L = [(mm16(CS, ONES, XB, False), 1)] + [(m, q + 2) for m, q in L]
        if EC and n == 19: L = L[1:]
        return L
    def ep_reads(isv):
        if not isv:
            return [f"ds_read_b128 {q4(TMP+4*c)}, v{vCR+c}" for c in range(2)] + \
                   [f"ds_read2_b32 {q2(TMP+8+2*t)}, v{vSR} offset0:{16*t} offset1:{128+16*t}" for t in range(4)]
        L = [f"ds_read_b32 v{TMP+2*c}, v{vCR+c}" for c in range(2)]
        for t in range(4):
            L += [f"ds_read_b128 {q4(TMP+4+8*t)}, v{vSR} offset:{64*t}", f"ds_read_b128 {q4(TMP+8+8*t)}, v{vSR} offset:{512+64*t}"]
        return L
    D = OPT.get("dist", 3)
    CKS = OPT.get("cks", 11); STS = OPT.get("sts", 16)
    for x in a1_reads(0): a(x)
    a(f"s_cmp_ge_u32 {sCT}, 10\n s_cbranch_scc1 L_A1_1")
    def a1(isv):
        tag = str(int(isv))
        a(f"L_A1_{tag}:")
        vq = ["c1"] * 4
        side = {n: [] for n in range(20)}
        for c in range(2, 10):
            for k, x in enumerate(dmaA(c)): side[2*(c - D) + (k >> 1) if c - D >= 0 else 0].append((x, f"c{c}"))
        side[OPT.get("wts", 13)].append((wo_touch, "x"))
        if WE:
            for k in range(8): side[WES + (k * (20 - WES)) // 8].append((wo_early(k), "x"))
        nr = 8
        nis = [0]; stp = [0]
        def publish_stats():
            a(f"""s_mov_b64 exec, 0xffff
            ds_write_b32 v{vCW}, v{CS}
            {MALL}
            s_cmp_lg_u32 {sW}, 3
            s_cbranch_scc1 L_SW{tag}
            s_waitcnt vmcnt({nis[0] - stp[0]})
            v_max3_u32 v4, v{STV}, v{STV+1}, v{STV+2}
            v_max_u32 v4, v4, v{STV+3}
            v_cmp_eq_u32 vcc, -1, v4
            s_cbranch_vccz L_SP{tag}_OK""")
            spin_head(a, f"L_SP{tag}")
            a(f"""buffer_load_dwordx4 {q4(STV)}, v7, {WSR}, s35 offen sc1
            s_waitcnt vmcnt(0)
            v_max3_u32 v4, v{STV}, v{STV+1}, v{STV+2}
            v_max_u32 v4, v4, v{STV+3}
            v_cmp_eq_u32 vcc, -1, v4""")
            spin_tail(a, f"L_SP{tag}")
            a(f"""v_add_u32 v7, {SCR}, v7
            ds_write_b128 v7, {q4(STV)}
            L_SW{tag}:
            s_waitcnt lgkmcnt(0)
            s_barrier""")
        for n in range(20):
            c = n >> 1
            Rn = a1_reads(n + 1) if n < 19 else (ep_reads(isv) if EC else [])
            nr = len(a1_reads(n))
            M = a1_mfmas(n, isv)
            issued = 0; done = -1
            if (n & 1) and c < 9:
                last = max(i for i, t in enumerate(vq) if t == f"c{c+1}")
                a(f"s_waitcnt vmcnt({len(vq) - 1 - last})\n s_barrier")
                vq = vq[last + 1:]
                if c in (0, 1, 2, 3, 4, 5, 6, 8): a.stamp({0:4, 1:5, 2:6, 3:7, 4:8, 5:9, 6:10, 8:11}[c], 1)
            S = list(side[n])
            gap = max(1, len(M) // max(1, len(S)))
            for k, (m, need) in enumerate(M):
                if need > done:
                    a(f"s_waitcnt lgkmcnt({nr - 1 - need + issued})"); done = need
                a(m)
                if k < len(Rn): a(Rn[k]); issued += 1
                if S and (k % gap == gap - 1 or k == len(M) - 1):
                    while S:
                        x, t = S.pop(0); a(x); vq.append(t); nis[0] += 1
                        if k < len(M) - 1: break
            for x in Rn[len(M):]: a(x)
            if n == CKS:
                a(f"""s_cmp_lg_u32 {sW}, 3
                s_cbranch_scc1 L_CK{tag}
                global_load_dword v9, v8, s[{P_DBG}:{P_DBG+1}] sc1
                L_CK{tag}:""")
                ckpos = nis[0]
            if n == STS:
                a(f"s_cmp_lg_u32 {sW}, 3\n s_cbranch_scc1 L_ST{tag}\n s_waitcnt vmcnt({nis[0] - ckpos})")
                clr_check(f"L_CLR{tag}")
                a(f"""v_lshlrev_b32 v7, 4, v1
                buffer_load_dwordx4 {q4(STV)}, v7, {WSR}, s35 offen sc1
                L_ST{tag}:""")
                stp[0] = nis[0]
            if EC and n == 18: publish_stats()
        a.stamp(3); a.stamp(1, 2)
        if not EC: publish_stats()
        a.stamp(2, 2)
        if not isv:
            if not EC:
                for x in ep_reads(isv): a(x)
            for t in range(4):
                a(f"s_waitcnt lgkmcnt({3-t})\n v_mul_f32 v{TMP+16+2*t}, s36, v{TMP+9+2*t}")
                for e in range(0, 8, 2):
                    d = ACC + 8*t + e
                    a(f"v_pk_fma_f32 {q2(d)}, {q2(TMP+e)}, {q2(TMP+8+2*t)}, {q2(d)} op_sel_hi:[1,0,1] neg_lo:[1,0,0] neg_hi:[1,0,0]")
                for e in range(0, 8, 2):
                    d = ACC + 8*t + e
                    a(f"v_pk_mul_f32 {q2(d)}, {q2(d)}, {q2(TMP+16+2*t)} op_sel_hi:[1,0]")
                for e in range(0, 8, 2): a(f"v_cvt_pk_bf16_f32 v{PK+4*t+e//2}, v{ACC+8*t+e}, v{ACC+8*t+e+1}")
                a(f"""v_permlane16_swap_b32 v{PK+4*t}, v{PK+4*t+2}
                v_permlane16_swap_b32 v{PK+4*t+1}, v{PK+4*t+3}
                buffer_store_dwordx4 {q4(PK+4*t)}, v{vST}, {WSR}, s37 offen offset:{(t >> 1)*T32 + (t & 1)*256} sc1""")
        else:
            if not EC:
                for x in ep_reads(isv): a(x)
            for p in range(2):
                a(f"s_waitcnt lgkmcnt({4-4*p})")
                for c in range(2):
                    o = PK + 8*p + 4*c
                    ds = [(ACC + 8*(2*p+tt) + 4*c + e, 2*p + tt, e, tt) for tt in range(2) for e in (0, 2)]
                    for d, t, e, tt in ds:
                        a(f"v_pk_fma_f32 {q2(d)}, {q2(TMP+4+8*t+e)}, {q2(TMP+2*c)}, {q2(d)} op_sel_hi:[1,0,1] neg_lo:[1,0,0] neg_hi:[1,0,0]")
                    for d, t, e, tt in ds: a(f"v_pk_mul_f32 {q2(d)}, {q2(d)}, {q2(TMP+8+8*t+e)}")
                    for d, t, e, tt in ds: a(f"v_cvt_pk_bf16_f32 v{o+2*tt+e//2}, v{d}, v{d+1}")
                    a(f"""v_permlane16_swap_b32 v{o}, v{o+2}
                    v_permlane16_swap_b32 v{o+1}, v{o+3}
                    buffer_store_dwordx4 {q4(o)}, v{vST+c}, {WSR}, s37 offen offset:{p*T32} sc1""")
        a("s_branch L_HOP")
    a1(False); a1(True)
    a(f"""L_HELP:
    v_mov_b32 v4, 0
    v_mov_b32 v5, 0
    v_mov_b32 v6, 0
    v_mov_b32 v7, 0""")
    for i in range(20):
        a(f"s_waitcnt vmcnt({19-i})")
        for r in range(4):
            x = HX + 4*i + r
            a(f"v_dot2_f32_bf16 v{4+2*(r&1)}, v{x}, v{ONES}, v{4+2*(r&1)}\n v_dot2_f32_bf16 v{5+2*(r&1)}, v{x}, v{x}, v{5+2*(r&1)}")
    a("""s_nop 3
    v_add_f32 v4, v4, v6
    v_add_f32 v5, v5, v7""")
    for qp in ("[1,0,3,2]", "[2,3,0,1]"):
        for v in (4, 5): a(f"v_add_f32_dpp v{v}, v{v}, v{v} quad_perm:{qp} row_mask:0xf bank_mask:0xf")
    ln_scalars(a, 4, 5)
    a(f"""v_and_b32 v6, 1, v1
    v_cmp_eq_u32 vcc, 1, v6
    v_cndmask_b32 v4, v4, v5, vcc
    v_min_u32 v4, -2, v4
    v_and_b32 v5, 60, v1
    v_lshl_add_u32 v5, v6, 9, v5
    s_lshl_b32 s3, {sW}, 6
    s_add_u32 s3, s3, s35
    s_barrier
    s_mov_b32 exec_lo, 0x33333333
    s_mov_b32 exec_hi, 0x33333333
    buffer_store_dword v4, v5, {WSR}, s3 offen sc1
    {MALL}""")
    a(wo_touch)
    if WE:
        for k in range(8): a(wo_early(k))
    a(f"""v_mov_b32 v9, 0
    s_cmp_lg_u32 {sW}, 3
    s_cbranch_scc1 L_HOP""")
    clr_check("L_CLRH")

    a("L_HOP:")
    a.stamp(4); a.stamp(3, 2)
    RPD = 56
    srd(a, 8, P_WO, 819200)
    a(f"""s_and_b32 s31, {sW}, 1
    s_mul_i32 s31, s31, 1280
    s_mov_b32 s101, s59""")
    def dma_wo(p):
        if OPT.get("nowo"): return
        kh, q = p // 5, p % 5
        if q < 4: v, so, hs = bWO0, (4*kh + q) * 80 * 1280, 8 * 1280
        else:     v, so, hs = bWO1, kh * 320 * 1280, 40 * 1280
        zs = 20 * 1280 if q < 4 else 80 * 1280
        for z in range(4):
            for h in range(2):
                a(f"""s_add_u32 m0, s31, {WOL + p*10240 + 640*h + 2560*z}
                s_mov_b32 s3, {so + hs*h + zs*z}
                buffer_load_dwordx4 v{v}, s[8:11], s3 offen lds""")
    WO2 = 10
    def gu_loads(L, vg):
        if OPT.get("nogu"): return
        a(f"""s_cmp_lg_u32 {sHI}, {OPT.get("guh", 1)}
        s_cbranch_scc1 {L}
        s_cmp_ge_u32 {sROLE}, 32
        s_cbranch_scc1 {L}
        s_cmp_ge_u32 {sLO}, 2
        s_cselect_b32 s4, s{P_U}, s{P_G}
        s_cselect_b32 s5, s{P_U+1}, s{P_G+1}
        s_and_b32 s3, {sLO}, 1
        s_mul_i32 s3, s3, {40*3456}
        v_add_u32 v4, s3, v{vg}""")
        for i in range(5):
            a(f"global_load_dwordx4 {q4(RPD+4*i)}, v4, s[4:5] nt")
            if i < 4: a(f"v_add_u32 v4, {8*3456}, v4")
        a(f"{L}:")
    Q0, Q1 = 16, 20
    POOL = 24
    MK = 88; O = 96
    a(f"""v_and_b32 v2, 31, v0
    v_lshrrev_b32 v3, 5, v1
    s_mul_i32 s3, {sHP}, {64*T32}
    s_lshl_b32 s4, {sRB}, 2
    s_add_u32 s5, s4, {sLO}
    s_mul_i32 s5, s5, {T32}
    s_add_u32 s5, s5, s3
    v_lshl_add_u32 v4, v2, 4, s5
    s_mul_i32 s5, {sHI}, 1536
    v_lshl_add_u32 v5, v3, 9, v4
    v_add_u32 v80, s5, v5
    s_lshl_b32 s5, {sHI}, 3
    v_add_u32 v81, s5, v4
    v_mov_b32 v{Q1}, 0
    v_mov_b32 v{Q1+1}, 0
    s_sub_u32 s4, s4, 8
    s_mul_i32 s4, s4, {T32}
    s_mul_i32 s5, s71, 10240
    s_add_u32 s4, s4, s5
    v_lshl_add_u32 v82, v1, 4, s4
    s_mul_i32 s6, s70, 30720
    s_add_u32 s71, s5, s6
    s_add_u32 s71, s71, {KL}
    s_mul_i32 s6, s70, {V_OFF - K_OFF}
    s_add_u32 s3, s3, s6
    s_add_u32 s3, s3, {K_OFF}
    s_add_u32 s4, s{P_WS}, s3
    s_addc_u32 s5, s{P_WS+1}, 0""")
    srd(a, 12, 4, 64*T32)
    kappa(a, 4, 2, 5)
    a(f"""s_mul_i32 s3, {sLO}, {T32}
    s_add_u32 s3, s3, {KL}
    s_mul_i32 s4, {sHI}, 1536
    s_add_u32 s4, s4, s3
    v_lshlrev_b32 v5, 4, v4
    v_lshl_add_u32 v{vK0}, v3, 9, v5
    v_add_u32 v{vK0}, s4, v{vK0}
    s_lshl_b32 s4, {sHI}, 3
    s_add_u32 s4, s4, s3
    s_add_u32 s4, s4, 1024
    v_add_u32 v{vK1}, s4, v5
    v_cmp_gt_u32 vcc, 20, v2
    v_cndmask_b32 v5, 0, v5, vcc
    v_mul_u32_u24 v6, 640, v3
    s_mul_i32 s4, {sHI}, 320
    s_add_u32 s4, s4, s3
    s_add_u32 s4, s4, 30720
    v_add3_u32 v{vV}, v5, v6, s4
    v_lshlrev_b32 v4, 3, v3
    v_sub_u32 v4, v2, v4
    v_mov_b32 v5, 0xffff
    v_mov_b32 v6, 0xffff0000""")
    MS = 32
    for r in range(16): a(f"v_cmp_gt_i32 s[{MS+2*r}:{MS+1+2*r}], {(r&7) + 16*(r>>3)}, v4")
    for i in range(8):
        a(f"""v_cndmask_b32 v7, 0, v5, s[{MS+4*i}:{MS+1+4*i}]
        v_cndmask_b32 v8, 0, v6, s[{MS+2+4*i}:{MS+3+4*i}]
        v_or_b32 v{MK+i}, v7, v8""")
    FS = [128, 144, 160]
    FK = [176, 182, 188]
    FV = [POOL, POOL+8, POOL+16]; FV0 = POOL + 24
    FP = [200, 208]
    if OPT.get("z1", 1):
        a(f"v_mov_b32 v{POOL}, 0\n s_mov_b32 exec_lo, 0x11000000\n s_mov_b32 exec_hi, 0x11000000\n v_mov_b32 v{POOL}, 0x3f803f80\n {MALL}")
        for r in range(1, 32): a(f"v_mov_b32 v{POOL+r}, v{POOL}")
    else:
        for r in range(32): a(f"v_mov_b32 v{POOL+r}, 0x3f803f80")
    a(f"""s_lshl_b32 s3, {sRB}, 2
    s_add_u32 s3, s3, {sLO}
    s_sub_i32 s30, 8, s3              ; n_invalid
    s_mov_b32 s28, 0xfffff
    s_mov_b32 s29, 0xfffff""")
    XR, WR, WRS, F2V = 224, 234, 224, 244
    FH = OPT.get('fh', 0)
    LW = 3 if FH else 7
    vXA_, vROW = 84, 85
    def early_loads(L, who=3):
        a(f"""v_and_b32 v4, 15, v0
        v_bfe_u32 v5, v0, 4, 2
        s_lshl_b32 s3, {sRB2}, 6
        s_lshl_b32 s4, {sLO}, 4
        s_add_u32 s3, s3, s4
        v_add_u32 v4, s3, v4
        v_mul_u32_u24 v4, 1280, v4
        v_mul_u32_u24 v5, 40, v5
        s_mul_i32 s3, {sCS}, 160
        v_add_u32 v5, s3, v5
        v_add_u32 v4, v5, v4
        s_cmp_lg_u32 {sHI}, {FH}
        s_cbranch_scc1 {L}_H""")
        if who & 1: a(f"""global_load_dwordx4 {q4(XR)}, v4, s[{P_X}:{P_X+1}]
        global_load_dwordx4 {q4(XR+4)}, v4, s[{P_X}:{P_X+1}] offset:16
        global_load_dwordx2 {q2(XR+8)}, v4, s[{P_X}:{P_X+1}] offset:32
        global_load_dwordx4 {q4(WR)}, v5, s[{P_WR}:{P_WR+1}]
        global_load_dwordx4 {q4(WR+4)}, v5, s[{P_WR}:{P_WR+1}] offset:16
        global_load_dwordx2 {q2(WR+8)}, v5, s[{P_WR}:{P_WR+1}] offset:32""")
        a(f"""s_branch {L}_D
        {L}_H:
        v_lshlrev_b32 v4, 2, v1""")
        for i in range(5 if who & 2 else 0): a(f"global_load_dword v{WRS+i}, v4, s[{P_WR}:{P_WR+1}] offset:{256*i}")
        a(f"{L}_D:")
    PLAN = OPT.get("plan", 6)
    pre, post, inb = [
        ([[4], [5], [6], [7]], [[], [], [], [8, 9]], []),
        ([[], [], [4], [5]], [[], [], [], [6, 7]], [8, 9]),
        ([[], [], [], [4]], [[], [], [], [5, 6, 7]], [8, 9]),
        ([[], [], [4], [5]], [[], [], [], [6, 7, 8, 9]], []),
        ([[], [], [], [4]], [[], [], [], [5]], [6, 7, 8, 9]),
        ([[4], [5], [6], [7]], [[], [], [], []], [8, 9]),
        ([[], [], [], [4]], [[7], [8], [9], [5, 6]], []),
        ([[], [], [], []], [[7], [8], [9], [4, 5, 6]], []),
        ([[], [], [], [4, 5]], [[7], [8], [9], [6]], []),
        ([[4], [5], [], []], [[7], [8], [9], [6]], []),
        ([[4], [], [], []], [[7], [8], [9], [5, 6]], []),
        ([[4], [5], [], []], [[], [], [9], [6, 7, 8]], []),
    ][PLAN]
    a.stamp(6, 2)
    a(f"s_lshr_b32 s4, {sW}, 1\n v_mov_b32 v6, s101\n v_mov_b32 v7, 1")
    for pr in range(4):
        if pr < 3: a(f"s_cmp_lg_u32 s4, {pr}\n s_cbranch_scc1 L_PR{pr}")
        if pre[pr]: a(M40)
        for p in pre[pr]: dma_wo(p)
        a(f"{MALL}\n s_waitcnt vmcnt({8*len(pre[pr])})")
        if pr < 3: a(f"s_branch L_PRD\n L_PR{pr}:")
    a("L_PRD:")
    a.stamp(4, 2)
    a(f"""s_barrier
    s_cmp_lg_u32 {sW}, 7
    s_cbranch_scc1 L_NOF1
    s_mov_b64 exec, 1
    buffer_store_dword v7, v6, {WSR}, 0 offen sc1
    {MALL}
    L_NOF1:""")
    a.stamp(5, 2)
    for pr in range(4):
        if post[pr]:
            a(f"s_cmp_lg_u32 s4, {pr}\n s_cbranch_scc1 L_PO{pr}\n {M40}")
            for p in post[pr]: dma_wo(p)
            a(f"{MALL}\n L_PO{pr}:")
    a.stamp(7, 2)
    PSL = OPT.get("psl", 4)
    a(f"""s_cmp_ge_u32 {sW}, 6
    s_cbranch_scc1 L_WOH
    s_mov_b64 exec, 15""")
    if OPT.get("fsl", 0): a(f"s_sleep {OPT['fsl']}")
    spin_head(a, "L_F1POLL")
    a(f"""buffer_load_dword v4, v{vF1A}, {WSR}, 0 offen sc1
    s_waitcnt vmcnt(0)
    v_cmp_ne_u32 s[6:7], 1, v4
    s_and_b64 vcc, s[6:7], 3""")
    spin_tail(a, "L_F1POLL", PSL)
    a(MALL)
    a.stamp(5); a.stamp(8, 2)
    for i in range(10):
        if i % 4 == 0:
            a(f"s_add_u32 m0, s71, {1024*i}\n v_add_u32 v4, {1024*i}, v82")
        a(f"buffer_load_dwordx4 v4, s[12:15], 0 offen offset:{1024*(i % 4)} sc1 lds")
    a(f"s_cmp_eq_u32 s6, 0\n s_cbranch_scc1 L_QPOLL_OK")
    a(f"""L_WOH:
    s_mov_b64 exec, 12""")
    spin_head(a, "L_QPOLL")
    a(f"""buffer_load_dword v4, v{vF1A}, {WSR}, 0 offen sc1
    s_waitcnt vmcnt(0)
    v_cmp_ne_u32 vcc, 1, v4""")
    spin_tail(a, "L_QPOLL", PSL)
    a(f"""{MALL}
    buffer_load_dwordx4 {q4(Q0)}, v80, {WSR}, 0 offen sc1
    s_mov_b32 exec_hi, 0
    buffer_load_dwordx2 {q2(Q1)}, v81, {WSR}, 0 offen offset:1024 sc1
    {MALL}""")
    a.stamp(6); a.stamp(9, 2)
    early_loads("L_EL0", 3 - OPT.get("elb", 1))
    a("s_waitcnt vmcnt(0)\n s_barrier")
    a.stamp(7); a.stamp(1, 4); a.stamp(10, 2)
    if OPT.get("bpr", 0): a(f"s_cmp_lg_u32 {sHI}, {OPT['bpr'] - 1}\n s_cbranch_scc1 L_NBP\n s_setprio 1\n L_NBP:")
    def kread(r, t): return f"ds_read_b128 {q4(r)}, v{vK0} offset:{T32*t}\n ds_read_b64 {q2(r+4)}, v{vK1} offset:{T32*t}"
    def vread(r, t, chk=True):
        m = f"s_cmp_gt_i32 s30, {t}\n s_cselect_b64 exec, -1, s[28:29]" if chk else "s_mov_b64 exec, s[28:29]"
        return f"""{m}
        ds_read_b128 {q4(r)}, v{vV} offset:{T32*t}
        ds_read_b128 {q4(r+4)}, v{vV} offset:{T32*t+1280}
        {MALL}"""
    def s1(s, k): return f"v_mfma_f32_32x32x16_bf16 {r16(s)}, {q4(k)}, {q4(Q0)}, 0"
    def s2(s, k): return f"v_mfma_f32_32x32x8_bf16 {r16(s)}, {q2(k+4)}, {q2(Q1)}, {r16(s)}"
    def pvm(v, p, first=False): return f"v_mfma_f32_32x32x16_bf16 {r16(O)}, {q4(v)}, {q4(p)}, {'0' if first else r16(O)}"
    seq = [8, 0, 7, 6, 5, 4, 3, 2, 1]
    vseq = [8, 7, 6, 5, 4, 3, 2, 1]
    def vbuf(t): return FV0 if t == 0 else FV[vseq.index(t) % 3]
    for n in range(3): a(kread(FK[n], seq[n]))
    def down_touch(vt):
        if OPT.get("notd"): return
        a(f"""s_and_b32 s3, s2, 7
        s_cmp_lt_u32 s3, 5
        s_cselect_b32 s3, 108, 0
        v_subrev_u32 v4, {128 + 256*OPT.get('guh', 1)}, v0
        v_cmp_gt_u32 vcc, s3, v4""")
        masked_load(a, 9, vt, P_D, "L_TD")
    def wo_slot(k):
        if 2*k < len(inb):
            a(f"s_lshr_b32 s4, {sW}, 1")
            for pr in range(2):
                a(f"s_cmp_lg_u32 s4, {pr}\n s_cbranch_scc1 L_WS{k}_{pr}\n {M40}"); dma_wo(inb[2*k + pr]); a(f"{MALL}\n L_WS{k}_{pr}:")
    a(vread(vbuf(8), 8, False)); a(vread(FV0, 0)); a(vread(vbuf(7), 7))
    a(f"s_waitcnt lgkmcnt(10)\n {s1(FS[0], FK[0])}\n {s2(FS[0], FK[0])}")
    a(f"s_waitcnt lgkmcnt(8)\n {s1(FS[1], FK[1])}\n {s2(FS[1], FK[1])}")
    a(kread(FK[0], seq[3]))
    if OPT.get('elb', 1): early_loads('L_EL', OPT.get('elb', 1))
    wo_slot(0); wo_slot(1)
    gu_loads('L_GUB', bGU); down_touch(TD)
    a(f"s_waitcnt lgkmcnt(8)\n {s1(FS[2], FK[2])}\n {s2(FS[2], FK[2])}")
    a(kread(FK[1], seq[4]))
    for r in range(16): a(f"v_cndmask_b32 v{FS[1]+r}, v{FS[0]+r}, v{FS[1]+r}, s[{MS+2*r}:{MS+1+2*r}]")
    def tile_body(s, p, extra, mid=None):
        for gq in range(4):
            for r in range(4*gq, 4*gq + 4):
                a(f"v_exp_f32{'_e64' if OPT.get('e64') else ''} v{s+r}, v{s+r}")
                if mid and r == 4*gq + 1 and gq < len(mid) and mid[gq]: a(mid[gq])
            if gq < len(extra) and extra[gq]: a(extra[gq])
            if gq > 0:
                for k in (2*gq - 2, 2*gq - 1): a(f"v_cvt_pk_bf16_f32 v{p+k}, v{s+2*k}, v{s+2*k+1}")
        for k in (6, 7): a(f"v_cvt_pk_bf16_f32 v{p+k}, v{s+2*k}, v{s+2*k+1}")
    tile_body(FS[1], FP[0], [f"s_waitcnt lgkmcnt(2)\n {s1(FS[0], FK[0])}", s2(FS[0], FK[0]), kread(FK[2], seq[5]) + "\n" + vread(vbuf(6), 6), None])
    for k in range(8): a(f"v_and_b32 v{216+k}, v{MK+k}, v{FP[0]+k}")
    for k in range(8): a(f"v_xor_b32 v{FP[0]+k}, v{216+k}, v{FP[0]+k}")
    a(pvm(FV0, 216, True)); wo_slot(2); a(pvm(FV0+4, 220))
    def repack(vm):
        if OPT.get("nogu") or OPT.get("norp"): return
        a(f"""s_cmp_ge_u32 {sROLE}, 32
        s_cbranch_scc1 L_NORP
        s_cmp_lg_u32 {sHI}, {OPT.get("guh", 1)}
        s_cbranch_scc1 L_NORP
        s_mul_i32 s3, {sROLE}, {8*20480}
        s_mul_i32 s4, {sCS}, 1280
        s_add_u32 s3, s3, s4
        s_lshr_b32 s4, {sLO}, 1
        s_mul_i32 s4, s4, 10240
        s_add_u32 s3, s3, s4
        s_and_b32 s4, {sLO}, 1
        s_mul_i32 s4, s4, 640
        s_add_u32 s3, s3, s4
        s_add_u32 s3, s3, {RP_OFF}
        v_lshrrev_b32 v8, 3, v1
        v_mul_u32_u24 v8, {20480 - 128}, v8
        v_lshl_add_u32 v8, v1, 4, v8
        v_and_b32 v4, 7, v1
        v_lshrrev_b32 v5, 3, v1
        v_lshl_add_u32 v4, v4, 3, v5
        v_lshlrev_b32 v4, 2, v4
        s_waitcnt vmcnt({vm}) lgkmcnt(0)""")
        for r in range(20):
            a(f"ds_bpermute_b32 v{RPD+r}, v4, v{RPD+r}")
        a("s_waitcnt lgkmcnt(0)")
        for i in range(5): a(f"buffer_store_dwordx4 {q4(RPD+4*i)}, v8, {WSR}, s3 offen offset:{128*i} sc1")
        a("L_NORP:")

    prevP, prevT = FP[0], 8
    for n in range(2, 9):
        t = seq[n]; p = FP[(n - 1) % 2]
        ex = [None]*4
        ex[0] = f"s_waitcnt lgkmcnt(0)\n {pvm(vbuf(prevT), prevP)}"
        ex[1] = pvm(vbuf(prevT) + 4, prevP + 4)
        if n + 2 <= 8:
            nb = (n + 2) % 3
            ex[2] = s1(FS[nb], FK[nb])
            ex[3] = s2(FS[nb], FK[nb])
        post = []
        if n + 4 <= 8: post.append(kread(FK[(n + 4) % 3], seq[n + 4]))
        if t - 2 >= 1: post.append(vread(vbuf(t - 2), t - 2))
        if OPT.get("bmid"):
            mid = [None, None, None, None]
            if n + 4 <= 8: mid[1] = post[0]
            if t - 2 >= 1: mid[3] = post[-1]
            tile_body(FS[n % 3], p, ex, mid)
        else:
            tile_body(FS[n % 3], p, ex)
            for x in post: a(x)
        wo_slot(n + 1)
        if n == OPT.get("rpn", 10): repack(0)
        prevP, prevT = p, t
    a(f"s_waitcnt lgkmcnt(0)\n {pvm(vbuf(prevT), prevP)}\n {pvm(vbuf(prevT)+4, prevP+4)}")
    a(f"""v_max3_f32 v4, abs(v{O}), abs(v{O+1}), abs(v{O+2})
    v_max3_f32 v5, abs(v{O+3}), abs(v{O+4}), abs(v{O+5})
    v_max3_f32 v4, abs(v{O+6}), abs(v{O+7}), v4
    v_max3_f32 v5, abs(v{O+8}), abs(v{O+9}), v5
    v_max3_f32 v4, abs(v{O+10}), abs(v{O+11}), v4
    v_max_f32 v4, v4, v5
    v_cmp_nlt_f32 vcc, {f2u(2.0**-60):#x}, v{O+12}
    s_mov_b64 s[4:5], vcc
    v_cmp_ngt_f32 vcc, {f2u(2.0**60):#x}, v{O+12}
    s_or_b64 s[4:5], s[4:5], vcc
    v_cmp_ngt_f32 vcc, {f2u(2.0**120):#x}, v4
    s_or_b64 vcc, s[4:5], vcc""")
    if OPT.get("forcefb"): a("s_branch L_FALLBACK")
    a(f"""s_cbranch_vccnz L_FALLBACK
    L_BDONE:
    v_rcp_f32 v4, v{O+12}""")
    for r in range(0, 12, 2): a(f"v_pk_mul_f32 {q2(O+r)}, {q2(O+r)}, v[4:5] op_sel_hi:[1,0]")
    for k in range(6): a(f"v_cvt_pk_bf16_f32 v{24+k}, v{O+2*k}, v{O+2*k+1}")
    a(f"""buffer_store_dwordx4 v[24:27], v{vO0}, {WSR}, 0 offen sc1
    s_mov_b32 exec_hi, 0
    buffer_store_dwordx2 v[28:29], v{vO1}, {WSR}, 0 offen sc1
    {MALL}""")
    if OPT.get("bpr", 0): a("s_setprio 0")
    a.stamp(8)
    if OPT.get("rpn", 10) == 9: repack(2)
    a.stamp(2, 4)

    XU, WU = 176, 196
    OF, CAC, CWF = 32, 72, 92
    NB = 4
    HP = 216
    OUTP = 228
    KSH = OPT.get('ksh', 7)
    OFL = ['', 'nt', 'sc1', 'sc0'][OPT.get('ofl', 0)]
    a(f"""v_mov_b32 v22, v{bF2A}
    v_and_b32 v2, 15, v0
    v_lshrrev_b32 v3, 4, v1
    s_lshl_b32 s3, {sRB2}, 6
    s_lshl_b32 s4, {sLO}, 4
    s_add_u32 s3, s3, s4
    v_add_u32 v20, s3, v2             ; row
    v_mul_u32_u24 v4, 1280, v20
    v_mul_u32_u24 v17, 40, v3
    s_mul_i32 s3, {sCS}, 160
    v_add3_u32 v16, v17, v4, s3""")
    rho(a, 21, 5)
    a(f"""v_mul_u32_u24 v4, 160, v21
    v_and_b32 v5, 3, v1
    v_lshlrev_b32 v21, 5, v21
    v_lshl_add_u32 v21, v5, 3, v21
    v_mul_u32_u24 v5, 40, v5
    s_mul_i32 s3, {sHI}, 51200
    v_add3_u32 v18, v4, v5, s3
    s_lshl_b32 s3, {sRB2}, 1
    s_lshr_b32 s4, {sLO}, 1
    s_add_u32 s3, s3, s4
    s_mul_i32 s3, s3, 40960
    s_add_u32 s3, s3, {O_OFF}
    s_lshl_b32 s4, {sHI}, 14
    s_add_u32 s29, s3, s4
    s_lshl_b32 s4, {sHI}, 12
    s_add_u32 s33, s3, s4
    s_add_u32 s33, s33, 32768
    s_and_b32 s4, {sLO}, 1
    s_lshl_b32 s4, s4, 4
    v_add_u32 v4, s4, v2
    v_lshlrev_b32 v5, 9, v3
    v_lshl_add_u32 v15, v4, 4, v5
    v_lshl_add_u32 v14, v4, 3, v5
    s_lshl_b32 s30, {sROLE}, 3
    s_add_u32 s30, s30, {sCS}
    s_lshl_b32 s32, {sW}, 10
    s_mul_i32 s3, {sLO}, 5120
    s_add_u32 s34, s3, {RED}
    v_lshl_add_u32 v13, v1, 4, s34
    s_lshl_b32 s3, {sRB2}, 13
    s_lshl_b32 s4, {sLO}, 8
    s_add_u32 s3, s3, s4
    s_add_u32 s37, s3, {PART_OFF}
    v_lshlrev_b32 v10, 4, v2""")
    ROT = OPT.get("crot", 1)
    for ks in range(8):
        a(f"""s_add_u32 s3, {sCS}, {ks}
        s_and_b32 s3, s3, 7""" if ROT else f"s_mov_b32 s3, {ks}")
        a(f"""s_lshl_b32 s4, s3, 11
        s_add_u32 s{40+ks}, s29, s4
        s_mul_i32 s4, s3, 5120
        v_add_u32 v{246+ks}, s4, v18""")
    a("s_waitcnt vmcnt(2)")
    LATE = OPT.get("rpn", 10) == 10
    if LATE: assert OPT.get("guh", 1) == 1
    for i in range(4 if LATE else 0, 20): a(f"v_mov_b32 v{CAC+i}, 0")
    a(f"s_cmp_lg_u32 {sHI}, {FH}\n s_cbranch_scc1 L_CB")
    for i in range(10):
        a(f"""v_lshlrev_b32 v{CAC+2*i}, 16, v{XR+i}
        v_and_b32 v{CAC+2*i+1}, 0xffff0000, v{XR+i}
        v_lshlrev_b32 v{WU+2*i}, 16, v{WR+i}
        v_and_b32 v{WU+2*i+1}, 0xffff0000, v{WR+i}""")
    a(f"""L_CB:
    v_mov_b32 v4, s101
    v_mov_b32 v5, 1
    s_waitcnt vmcnt(0)""")
    a.stamp(3, 4)
    a(f"""s_barrier
    s_cmp_lg_u32 {sW}, 0
    s_cbranch_scc1 L_NOF2
    s_mov_b64 exec, 1
    buffer_store_dword v5, v4, {WSR}, 0 offen offset:32 sc1
    {MALL}
    L_NOF2:""")
    if LATE:
        repack(0)
        a(f"s_cmp_eq_u32 {sHI}, {FH}\n s_cbranch_scc1 L_NZ")
        for i in range(4): a(f"v_mov_b32 v{CAC+i}, 0")
        a("L_NZ:")
    WD1 = OPT.get("wd1", 3)
    def wd_lds(j): return [GW, GW + 8192, 153600][j] if j < WD1 else WOL + 8192*j
    def wd_dma(js, L, both=False):
        a(f"""s_sub_u32 s3, s30, 256
        s_lshl_b32 s3, s3, 5
        v_lshrrev_b32 v5, 1, v1""")
        kappa(a, 6, 5, 4)
        a(f"""v_mul_u32_u24 v6, 1280, v6
        v_and_b32 v4, 1, v1
        v_lshl_add_u32 v6, v4, 4, v6
        v_add_u32 v6, s3, v6
        s_mul_i32 s4, {sW}, {32*1280}""")
        srd(a, 12, P_D, 2211840)
        for j in js:
            a(f"""s_add_u32 m0, s32, {wd_lds(j)}
            s_add_u32 s3, s4, {8*32*1280*j}
            buffer_load_dwordx4 v6, s[12:15], s3 offen lds""")
            if both:
                d = 4 if FH == 0 else -4
                a(f"""s_add_u32 m0, s32, {wd_lds(j) + 1024*d}
                s_add_u32 s3, s4, {8*32*1280*j + 32*1280*d}
                buffer_load_dwordx4 v6, s[12:15], s3 offen lds""")
    a(f"s_cmp_lt_u32 {sROLE}, 32\n s_cbranch_scc1 L_NWD1")
    wd_dma(range(WD1), "1")
    a("L_NWD1:")
    def c_rd(ks):
        b = ks % NB
        ad, off = (246 + ks, 0) if ks < 8 else (18, ks * 5120)
        return [f"ds_read_b64_tr_b16 {q2(CWF+20*b+4*t+2*h)}, v{ad} offset:{off + h*1280 + 8*t}" for t in range(5) for h in range(2)]
    a.stamp(9); a.stamp(4, 4)
    PRE = OPT.get("cpre", 2)
    def o_load(ks):
        if ks < 8: return f"buffer_load_dwordx4 {q4(OF+4*ks)}, v15, {WSR}, s{40+ks} offen sc1"
        return "\n".join(f"buffer_load_dwordx2 {q2(OF+4*ks+2*hh)}, v14, {WSR}, s33 offen offset:{(ks-8)*2048 + hh*256} sc1" for hh in range(2))
    def rp_dma(L, cond):
        a(f"""s_cmp_ge_u32 {sROLE}, 32
        s_cbranch_scc1 {L}
        s_cmp_eq_u32 s56, 0
        s_cbranch_{cond} {L}
        s_mul_i32 s3, s30, 20480
        s_mul_i32 s4, {sLO}, 5120
        s_add_u32 s3, s3, s4
        s_add_u32 s3, s3, {RP_OFF}
        s_add_u32 m0, s4, {GW}
        v_lshlrev_b32 v7, 4, v1""")
        for j in range(4): a(f"buffer_load_dwordx4 v7, {WSR}, s3 offen offset:{1024*j} sc1 lds")
        a(f"""s_add_u32 m0, s4, {GW + 4096}
        s_add_u32 s3, s3, 4096
        buffer_load_dwordx4 v7, {WSR}, s3 offen sc1 lds
        {L}:""")
    RPE = OPT.get("rpe", 0)
    for ks in range(NB):
        for r in c_rd(ks): a(r)
    if OPT.get("cprio", 0): a(f"s_cmp_eq_u32 {sHI}, {FH}\n s_cbranch_scc1 L_NPR\n s_setprio 2\n L_NPR:")
    if RPE: a(f"s_cmp_eq_u32 {sHI}, {FH}\n s_mov_b32 s3, 0xff\n s_cselect_b32 exec_lo, 0xffff, s3\n s_mov_b32 exec_hi, 0")
    else: a("s_mov_b64 exec, 0xff")
    if OPT.get("fsl2", 0): a(f"s_sleep {OPT['fsl2']}")
    spin_head(a, "L_F2POLL")
    a(f"""buffer_load_dword v4, v22, {WSR}, 0 offen sc1
    s_waitcnt vmcnt(0)
    v_cmp_ne_u32 s[56:57], 1, v4
    s_and_b64 vcc, s[56:57], 0xff""")
    DYN = OPT.get("dyn", 0)
    if DYN:
        a(f"""s_cbranch_vccz L_F2POLL_OK
        s_bcnt1_i32_b32 s4, vcc_lo
        s_cmp_le_u32 s4, {OPT.get("dynm", 5)}
        s_cbranch_scc1 L_DYN""")
    spin_tail(a, "L_F2POLL", OPT.get("psl2", 4))
    a(MALL)
    a.stamp(8, 4)
    if not RPE: a("s_mov_b32 s56, 1")
    for ks in range(10): a(o_load(ks))
    for ks in range(10):
        lg = 0 if ks in (0, 9) else 10
        a(f"s_waitcnt vmcnt({11-ks if ks < 8 else 2*(9-ks)}) lgkmcnt({lg})")
        if ks == 9 and RPE == 2:
            a(f"s_cmp_lg_u32 {sHI}, {FH}\n s_cbranch_scc1 L_RP0")
            rp_dma("L_RP0", "scc0")
        R = c_rd(ks - 1 + NB) if (ks >= 1 and ks - 1 + NB < 10) else []
        for t in range(5):
            for x in R[2*t:2*t+2]: a(x)
            a(mm16(CAC+4*t, CWF+20*(ks % NB)+4*t, OF+4*ks, False))
    a("L_CDONE2:")
    def emit_dyn():
        def wrd(ks, b):
            ad, off = (246 + ks, 0) if ks < 8 else (18, ks * 5120)
            for t in range(5):
                for h in range(2): a(f"ds_read_b64_tr_b16 {q2(CWF+20*b+4*t+2*h)}, v{ad} offset:{off + h*1280 + 8*t}")
        a(f"""L_DYN:
        {MALL}
        s_mov_b32 s50, 0
        s_mov_b32 s51, 0
        s_waitcnt lgkmcnt(0)""")
        wrd(8, 2); wrd(9, 3)
        a(f"""L_DYNL:
        s_not_b32 s4, s56
        s_and_b32 s4, s4, 0xff
        s_lshl_b32 s5, s4, 8
        s_or_b32 s4, s4, s5
        s_lshr_b32 s4, s4, {sCS if ROT else 0}
        s_and_b32 s52, s4, 0xff
        s_andn2_b32 s53, s52, s50         ; new
        s_andn2_b32 s54, s50, s51         ; todo""")
        for ks in range(8):
            a(f"s_bitcmp1_b32 s53, {ks}\n s_cbranch_scc0 L_DN{ks}\n {o_load(ks)}\n L_DN{ks}:")
        a(f"s_cmp_lg_u32 s52, 0xff\n s_cbranch_scc1 L_DYNC\n {o_load(8)}\n {o_load(9)}\n L_DYNC:")
        for ks in range(8):
            a(f"s_bitcmp1_b32 s54, {ks}\n s_cbranch_scc0 L_DC{ks}")
            wrd(ks, ks & 1)
            a("s_cmp_eq_u32 s50, 0xff\n s_cbranch_scc0 L_DW" + str(ks) + "\n s_waitcnt vmcnt(4)\n L_DW" + str(ks) + ":")
            for t in range(5):
                a(f"s_waitcnt lgkmcnt({8 - 2*t})")
                a(mm16(CAC+4*t, CWF+20*(ks & 1)+4*t, OF+4*ks, False))
            a(f"L_DC{ks}:")
        a(f"""s_mov_b32 s51, s50
        s_cmp_eq_u32 s50, 0xff
        s_cbranch_scc1 L_DYNQ
        s_mov_b32 s50, s52
        s_mov_b32 s54, s53
        s_cmp_eq_u32 s52, 0xff
        s_cbranch_scc1 L_DYNC
        s_add_u32 s3, s3, 1
        s_cmp_gt_u32 s3, {SPIN_MAX}
        s_cbranch_scc1 L_END
        s_sleep {OPT.get("psl4", 1)}
        s_mov_b64 exec, 0xff
        buffer_load_dword v4, v22, {WSR}, 0 offen sc1
        s_waitcnt vmcnt(0)
        v_cmp_ne_u32 s[56:57], 1, v4
        {MALL}
        s_branch L_DYNL
        L_DYNQ:
        s_waitcnt vmcnt(0) lgkmcnt(0)""")
        for ks in (8, 9):
            for t in range(5): a(mm16(CAC+4*t, CWF+20*(ks - 6)+4*t, OF+4*ks, False))
        a("s_mov_b32 s56, 1\n s_branch L_CDONE2")
    a.stamp(5, 4)
    if PROF and OPT.get("pg") == 4: a("s_mov_b32 s99, s3")
    a(f"s_cmp_lg_u32 {sHI}, {FH}\n s_cbranch_scc0 L_CLO")
    XD = 77824
    def sel_setup():
        a(f"""v_and_b32 v150, 7, v1
        v_lshlrev_b32 v150, 2, v150
        v_add_u32 v150, {SB+SELL}, v150       ; sel[j&7]
        v_lshrrev_b32 v4, 3, v1
        v_lshlrev_b32 v153, 8, v4
        v_lshlrev_b32 v4, 2, v4
        v_add_u32 v151, {SB+SELL}, v4         ; sel[l>>3]
        v_bfe_u32 v4, v1, 1, 3
        v_lshlrev_b32 v154, 8, v4
        v_lshlrev_b32 v4, 2, v4
        v_add_u32 v152, {SB+SELL}, v4         ; sel[(l>>1)&7]
        v_bfe_u32 v4, v1, 4, 1
        v_mul_u32_u24 v6, 2560, v4
        v_lshlrev_b32 v7, 4, v2
        v_sub_u32 v160, {RED + 2560}, v6
        v_add_u32 v160, v160, v7
        s_lshl_b32 s3, {sCS}, 11
        s_lshl_b32 s4, {sW}, 8
        s_add_u32 s3, s3, s4
        s_add_u32 s3, s3, {XS_OFF}
        v_lshl_add_u32 v161, v4, 14, v7
        v_add_u32 v161, s3, v161
        s_lshl_b32 s3, {sW}, 11
        s_sub_u32 s3, s3, s4
        s_add_u32 s3, s3, {XS_OFF - EP_OFF}
        v_add_u32 v153, s3, v153
        v_add_u32 v154, s3, v154
        s_add_u32 s58, s4, {EP_OFF}
        v_and_b32 v4, 7, v1
        v_lshlrev_b32 v155, 4, v4
        v_and_b32 v4, 1, v1
        v_lshlrev_b32 v156, 4, v4
        v_add_u32 v156, 128, v156
        v_mov_b32 v157, {SB+SELL}
        s_mul_i32 s59, {sW}, 1280
        s_add_u32 s5, s59, {GW}
        s_add_u32 s59, s59, {XD}
        v_and_b32 v4, 7, v2
        v_lshlrev_b32 v6, 4, v3
        v_lshl_add_u32 v158, v4, 7, v6
        v_add_u32 v158, s59, v158
        v_and_b32 v6, 16, v6
        v_lshl_add_u32 v159, v4, 5, v6
        v_add_u32 v159, s59, v159
        v_bfe_u32 v4, v1, 2, 2
        v_lshl_add_u32 v4, v3, 3, v4
        v_lshlrev_b32 v4, 4, v4
        v_and_b32 v6, 1, v1
        v_lshl_add_u32 v4, v6, 3, v4
        v_bfe_u32 v6, v1, 1, 1
        v_mul_u32_u24 v6, 10240, v6
        v_add3_u32 v162, v4, v6, s5
        s_add_u32 s3, s32, {DRED}
        v_lshl_add_u32 v163, v1, 4, s3""")
        srd(a, 8, P_OUT, 2621440)
    for t in range(5): a(f"ds_write_b128 v13, {q4(CAC+4*t)} offset:{1024*t}")
    a(f"""v_mov_b32 v24, 0
    v_mov_b32 v25, 0
    v_mov_b32 v26, 0
    v_mov_b32 v27, 0
    s_waitcnt lgkmcnt(0)
    s_barrier
    s_setprio 0
    v_and_b32 v12, 255, v0
    v_lshlrev_b32 v12, 4, v12
    v_add_u32 v14, {SB}, v12
    ds_write_b128 v14, v[24:27] offset:{SURV}
    ds_write_b128 v14, v[24:27] offset:{SURV+4096}
    v_lshl_add_u32 v11, v3, 10, v10
    s_add_u32 s38, s37, 4096
    s_add_u32 s39, s37, {PARTB}
    s_add_u32 s35, s37, {PARTB + 4096}
    v_mov_b32 v8, 0""")
    for i in range(5):
        a(f"""v_lshlrev_b32 v5, 16, v{WRS+i}
        v_and_b32 v6, 0xffff0000, v{WRS+i}
        v_add_f32 v8, v8, v5
        v_add_f32 v8, v8, v6""")
    dpp_reduce(a, "v_add_f32", [8])
    a(f"""v_readlane_b32 s36, v8, 63
    v_sub_u32 v23, 2047, v20
    v_lshlrev_b32 v23, 2, v23
    s_lshl_b32 s3, {sRB2}, 2
    s_add_u32 s3, s3, {sLO}
    s_lshl_b32 s3, s3, {KSH}
    s_add_u32 s4, s3, {KEY_OFF}
    s_lshl_b32 s3, {sLO}, 8
    s_add_u32 s3, s3, {SB+LMR}
    v_lshl_add_u32 v9, v2, 4, s3
    s_mov_b32 s6, 0xffffe000
    v_lshlrev_b32 v12, {KSH}, v1
    s_barrier""")
    a.stamp(1, 3)
    spin_head(a, "L_PPOLL")
    a(f"""buffer_load_dwordx4 v[64:67], v11, {WSR}, s37 offen sc1
    buffer_load_dwordx4 v[68:71], v11, {WSR}, s38 offen sc1
    s_waitcnt vmcnt(0)
    v_max3_u32 v5, v64, v65, v66
    v_max3_u32 v6, v68, v69, v70
    v_max_u32 v5, v5, v6
    v_cmp_eq_u32 vcc, -1, v5
    s_cbranch_vccz L_PPOLL_OK
    s_and_b32 s28, s3, {OPT.get('pbm', 15)}
    s_cmp_lg_u32 s28, 0
    s_cbranch_scc1 L_PPOLL
    buffer_load_dwordx4 v[64:67], v11, {WSR}, s39 offen sc1
    buffer_load_dwordx4 v[68:71], v11, {WSR}, s35 offen sc1
    s_waitcnt vmcnt(0)
    v_max3_u32 v5, v64, v65, v66
    v_max3_u32 v6, v68, v69, v70
    v_max_u32 v5, v5, v6
    v_cmp_eq_u32 vcc, -1, v5
    s_cbranch_vccnz L_PPOLL
    L_PPOLL_OK:""")
    a.stamp(2, 3)
    a("v_add_f32 v40, v64, v68\n v_add_f32 v41, v65, v69\n v_add_f32 v42, v66, v70")
    xg_sum(a, [40, 41, 42], [44, 45, 46])
    ln_scalars(a, 40, 41)
    a(f"""v_fma_f32 v42, -v40, s36, v42
    v_mul_f32 v42, v42, v41
    v_ashrrev_i32 v4, 31, v42
    v_or_b32 v4, 0x80000000, v4
    v_xor_b32 v4, v4, v42
    v_and_or_b32 v4, v4, s6, v23
    v_min_u32 v42, -2, v42
    v_mov_b32 v5, v4
    v_mov_b32 v7, 0
    v_mov_b32_dpp v5, v4 row_ror:4 row_mask:0x2 bank_mask:0xf
    v_mov_b32_dpp v5, v4 row_ror:8 row_mask:0x4 bank_mask:0xf
    v_mov_b32_dpp v5, v4 row_ror:12 row_mask:0x8 bank_mask:0xf
    v_mov_b32_dpp v44, v5 row_ror:1 row_mask:0xf bank_mask:0xf
    v_mov_b32_dpp v45, v5 row_ror:2 row_mask:0xf bank_mask:0xf
    v_mov_b32_dpp v46, v5 row_ror:3 row_mask:0xf bank_mask:0xf
    v_cmp_gt_u32 s[40:41], v5, v4
    v_cmp_gt_u32 s[42:43], v44, v4
    v_cmp_gt_u32 s[44:45], v45, v4
    v_cmp_gt_u32 s[46:47], v46, v4
    v_addc_co_u32 v7, vcc, 0, v7, s[40:41]
    v_addc_co_u32 v7, vcc, 0, v7, s[42:43]
    v_addc_co_u32 v7, vcc, 0, v7, s[44:45]
    v_addc_co_u32 v7, vcc, 0, v7, s[46:47]
    v_mov_b32 v6, v7
    v_permlane16_swap_b32 v7, v6
    v_add_u32 v7, v7, v6
    v_mov_b32 v6, v7
    v_permlane32_swap_b32 v7, v6
    v_add_u32 v7, v7, v6
    v_min_u32 v6, 2, v7
    v_or_b32 v43, v4, v6
    v_lshlrev_b32 v7, 2, v7
    s_mov_b64 exec, 0xffff
    s_cmp_lg_u32 {sCS}, 0
    s_cbranch_scc1 L_NOKEY
    buffer_store_dword v43, v7, {WSR}, s4 offen sc1
    L_NOKEY:
    ds_write_b128 v9, v[40:43]
    {MALL}
    s_waitcnt lgkmcnt(0)
    s_barrier
    s_cmp_lg_u32 {sW}, {LW}
    s_cbranch_scc1 L_SELW""")
    sel_setup()
    a(f"""s_mov_b32 s4, {KEY_OFF}
    s_mov_b32 s5, {KEY_OFF + (64 << KSH)}
    s_mov_b32 s28, {SB+SURV}
    s_mov_b32 s29, 0
    v_and_b32 v13, 31, v1
    v_lshlrev_b32 v13, 2, v13
    v_add_u32 v13, {SB+SURV}, v13
    v_lshrrev_b32 v8, 5, v1
    v_lshlrev_b32 v8, 6, v8
    v_add_u32 v11, {SB+SURV}, v8""")
    if OPT.get("ksleep", 0): a(f"s_sleep {OPT.get('ksleep', 0)}")
    a.stamp(3, 3)
    a("L_KQ:")
    spin_head(a, "L_KPOLL")
    a(f"""buffer_load_dwordx4 v[40:43], v12, {WSR}, s4 offen sc1
    buffer_load_dwordx4 v[44:47], v12, {WSR}, s5 offen sc1
    s_waitcnt vmcnt(0)
    v_max3_u32 v4, v41, v42, v43
    v_max3_u32 v5, v45, v46, v47
    v_max_u32 v6, v40, v44
    v_max3_u32 v4, v4, v5, v6
    v_cmp_eq_u32 vcc, -1, v4""")
    spin_tail(a, "L_KPOLL", OPT.get("psl3", 1))
    a.stamp(4, 3)
    a(f"""s_cmp_lg_u32 s29, 0
    s_cbranch_scc1 L_HAVET
    v_max_u32_dpp v6, v6, v6 quad_perm:[1,0,3,2] row_mask:0xf bank_mask:0xf
    v_max_u32_dpp v6, v6, v6 quad_perm:[2,3,0,1] row_mask:0xf bank_mask:0xf
    v_max_u32_dpp v6, v6, v6 row_half_mirror row_mask:0xf bank_mask:0xf
    v_min_u32_dpp v6, v6, v6 row_ror:8 row_mask:0xf bank_mask:0xf
    v_mov_b32 v5, v6
    v_permlane16_swap_b32 v6, v5
    v_min_u32 v6, v6, v5
    v_mov_b32 v5, v6
    v_permlane32_swap_b32 v6, v5
    v_min_u32 v48, v6, v5
    L_HAVET:""")
    a.stamp(5, 3)
    ordr = [0, 4, 1, 5, 2, 6, 3, 7]
    for i in ordr: a(f"v_cmp_ge_u32 s[{40+2*i}:{41+2*i}], v{40+i}, v48")
    for i in ordr: a(f"v_mbcnt_lo_u32_b32 v{50+i}, s{40+2*i}, 0")
    for i in ordr: a(f"v_mbcnt_hi_u32_b32 v{50+i}, s{41+2*i}, v{50+i}")
    for n, i in enumerate(ordr):
        if n in (2, 4):
            a(f"s_or_b64 s[6:7], s[{40+2*i}:{41+2*i}], s[{48+2*i}:{49+2*i}]\n s_cbranch_scc0 L_CDONE")
        a(f"""v_lshl_add_u32 v{50+i}, v{50+i}, 2, s28
        s_bcnt1_i32_b64 s3, s[{40+2*i}:{41+2*i}]
        s_mov_b64 exec, s[{40+2*i}:{41+2*i}]
        ds_write_b32 v{50+i}, v{40+i}
        {MALL}
        s_lshl_b32 s3, s3, 2
        s_add_u32 s28, s28, s3""")
    a(f"""s_or_b64 s[6:7], s[46:47], s[54:55]
    s_cbranch_scc0 L_CDONE
    s_add_u32 s29, s29, 1
    s_add_u32 s4, s4, 16
    s_add_u32 s5, s5, 16
    s_cmp_lt_u32 s29, 4
    s_cbranch_scc1 L_KQ
    L_CDONE:
    s_sub_u32 s4, s28, {SB+SURV}
    s_mov_b32 s5, 0
    s_mov_b32 s28, {SB+SELL}""")
    a.stamp(6, 3)
    a(f"""L_OUTER:
    ds_read_b32 v6, v13
    v_mov_b32 v7, 0
    v_mov_b32 v8, v11
    s_mov_b32 s6, 0
    L_INNER:""")
    for k in range(4): a(f"ds_read_b128 {q4(44+4*k)}, v8 offset:{16*k}")
    a("""v_add_u32 v8, 128, v8
    s_add_u32 s6, s6, 128
    v_mov_b32 v9, 0
    s_waitcnt lgkmcnt(2)""")
    for h in range(2):
        if h: a("s_waitcnt lgkmcnt(0)")
        for i in range(8): a(f"v_cmp_gt_u32 s[{40+2*i}:{41+2*i}], v{44+8*h+i}, v6")
        for i in range(8): a(f"v_addc_co_u32 v{7+2*(i&1)}, vcc, 0, v{7+2*(i&1)}, s[{40+2*i}:{41+2*i}]")
    a(f"""v_add_u32 v7, v7, v9
    s_cmp_lt_u32 s6, s4
    s_cbranch_scc1 L_INNER
    v_mov_b32 v8, v7
    v_not_b32 v6, v6
    v_and_b32 v6, 0x1fff, v6
    v_permlane32_swap_b32 v7, v8
    v_add_u32 v7, v7, v8
    v_cmp_gt_u32 vcc, 8, v7
    v_lshl_add_u32 v7, v7, 2, s28
    s_and_saveexec_b64 s[6:7], vcc
    ds_write_b32 v7, v6
    {MALL}
    v_add_u32 v13, 128, v13
    s_add_u32 s5, s5, 128
    s_cmp_lt_u32 s5, s4
    s_cbranch_scc1 L_OUTER
    s_branch L_SELB""")
    a("L_CLO:")
    if RPE == 1: rp_dma("L_RP1", "scc0")
    a(f"""s_lshl_b32 s4, {sCS}, 10
    s_add_u32 s35, s4, s37
    s_add_u32 s38, s35, {PARTB}
    v_mul_u32_u24 v5, 160, v2
    v_add3_u32 v12, v5, v17, s34
    v_lshlrev_b32 v7, 4, v1
    v_mov_b32 v47, 0
    s_barrier""")
    a.stamp(6, 4)
    for t in range(5): a(f"ds_read_b128 {q4(CWF+4*t)}, v13 offset:{1024*t}")
    E = range(0, 20, 2)
    for e in E:
        if e % 4 == 0: a(f"s_waitcnt lgkmcnt({4 - e//4})")
        a(f"v_pk_add_f32 {q2(CAC+e)}, {q2(CAC+e)}, {q2(CWF+e)}")
    for e in E:
        c = 6 * ((e >> 1) & 1)
        if e < 4:
            a(f"v_pk_add_f32 {q2(50+c)}, {q2(CAC+e)}, {q2(CAC+e+4)}\n v_pk_mul_f32 {q2(52+c)}, {q2(CAC+e)}, {q2(CAC+e)}\n v_pk_mul_f32 {q2(54+c)}, {q2(CAC+e)}, {q2(WU+e)}")
        else:
            if e >= 8: a(f"v_pk_add_f32 {q2(50+c)}, {q2(50+c)}, {q2(CAC+e)}")
            a(f"v_pk_fma_f32 {q2(52+c)}, {q2(CAC+e)}, {q2(CAC+e)}, {q2(52+c)}\n v_pk_fma_f32 {q2(54+c)}, {q2(CAC+e)}, {q2(WU+e)}, {q2(54+c)}")
    for k in range(3): a(f"v_pk_add_f32 {q2(50+2*k)}, {q2(50+2*k)}, {q2(56+2*k)}")
    for k in range(3): a(f"v_add_f32 v{44+k}, v{50+2*k}, v{51+2*k}")
    xg_sum(a, [44, 45, 46], [40, 41, 42])
    a(f"""v_min_u32 v44, -2, v44
    v_min_u32 v45, -2, v45
    v_min_u32 v46, -2, v46
    s_mov_b64 exec, 0xffff
    buffer_store_dwordx4 v[44:47], v10, {WSR}, s35 offen
    buffer_store_dwordx4 v[44:47], v10, {WSR}, s38 offen sc1
    {MALL}
    s_barrier""")
    a.stamp(10); a.stamp(7, 4)
    if RPE == 3: rp_dma("L_RP1", "scc0")
    for e in E: a(f"v_cvt_pk_bf16_f32 v{HP+e//2}, v{CAC+e}, v{CAC+e+1}")
    for e in E: a(f"v_min_u32 v{HP+e//2}, -2, v{HP+e//2}")
    for e in E: a(f"v_lshlrev_b32 v{CAC+e}, 16, v{HP+e//2}\n v_and_b32 v{CAC+e+1}, 0xffff0000, v{HP+e//2}")
    for k in range(5): a(f"ds_write_b64 v12, {q2(HP+2*k)} offset:{8*k}")
    a(f"""s_lshl_b32 s3, {sLO}, 8
    s_add_u32 s3, s3, {SB+LMR}
    v_lshl_add_u32 v9, v2, 4, s3
    s_lshl_b32 s3, {sRB2}, 2
    s_add_u32 s3, s3, {sLO}
    s_lshl_b32 s3, s3, 12
    s_lshl_b32 s4, {sCS}, 8
    s_add_u32 s3, s3, s4
    s_add_u32 s28, s3, {EP_OFF}
    v_lshl_add_u32 v11, v3, 11, v10
    s_barrier
    ds_read_b64 v[40:41], v9
    ds_read_b32 v22, v9 offset:12
    s_waitcnt lgkmcnt(0)""")
    for e in E: a(f"v_pk_add_f32 {q2(XU+e)}, {q2(CAC+e)}, v[40:41] op_sel_hi:[1,0] neg_lo:[0,1] neg_hi:[0,1]")
    for e in E: a(f"v_cvt_pk_bf16_f32 v{OUTP+e//2}, v{XU+e}, v{XU+e+1}")
    for e in E: a(f"v_lshlrev_b32 v{XU+e}, 16, v{OUTP+e//2}\n v_and_b32 v{XU+e+1}, 0xffff0000, v{OUTP+e//2}")
    a("v_mov_b32 v42, v41")
    for e in E: a(f"v_pk_mul_f32 {q2(XU+e)}, {q2(XU+e)}, v[42:43] op_sel_hi:[1,0]")
    for e in E: a(f"v_cvt_pk_bf16_f32 v{OUTP+e//2}, v{XU+e}, v{XU+e+1}")
    for e in E: a(f"v_min_u32 v{OUTP+e//2}, -2, v{OUTP+e//2}")
    for k in range(5): a(f"ds_write_b64 v12, {q2(OUTP+2*k)} offset:{2560 + 8*k}")
    a(f"""v_and_b32 v4, 3, v22
    v_cmp_eq_u32 s[4:5], 0, v4
    v_cmp_eq_u32 s[6:7], 1, v4
    s_ff1_i32_b32 s4, s4
    s_ff1_i32_b32 s6, s6
    s_mul_i32 s4, s4, 160
    s_mul_i32 s6, s6, 160
    v_mov_b32 v4, s4
    v_mov_b32 v5, s6
    v_cmp_eq_u32 vcc, 1, v3
    v_cndmask_b32 v4, v4, v5, vcc
    v_add3_u32 v4, v4, v10, s34
    s_mov_b64 exec, 0x03ff03ff
    ds_read_b128 v[52:55], v4 offset:2560
    s_waitcnt lgkmcnt(0)
    buffer_store_dwordx4 v[52:55], v11, {WSR}, s28 offen sc1
    {MALL}
    """)
    rp_dma("L_RP2", "scc1")
    WDE = OPT.get("wde", 1)
    if WDE:
        a(f"s_cmp_lt_u32 {sROLE}, 32\n s_cbranch_scc1 L_NWD2")
        wd_dma(range(WD1, 7 - OPT.get("wdl", 0)), "2", True)
        a("L_NWD2:")
    for e in E: a(f"v_lshlrev_b32 v{XU+e}, 16, v{OUTP+e//2}\n v_and_b32 v{XU+e+1}, 0xffff0000, v{OUTP+e//2}")
    for e in E: a(f"v_pk_add_f32 {q2(XU+e)}, {q2(XU+e)}, {q2(CAC+e)}")
    for e in E: a(f"v_cvt_pk_bf16_f32 v{OUTP+e//2}, v{XU+e}, v{XU+e+1}")
    a("v_not_b32 v22, v22\n v_and_b32 v22, 0x1fff, v22\n s_waitcnt vmcnt(0)")
    a("L_SELW:")
    sel_setup()
    a(f"""L_SELB:
    s_waitcnt lgkmcnt(0)
    s_barrier
    ds_read_b32 v24, v151
    ds_read_b32 v25, v152
    ds_read_b32 v23, v150
    ds_read_b128 v[44:47], v157
    ds_read_b128 v[48:51], v157 offset:16""")
    a.stamp(11); a.stamp(7, 3)
    def publish(L):
        a(f"""s_waitcnt lgkmcnt(2)
        v_readlane_b32 s4, v23, {sW}
        s_lshr_b32 s5, s4, 8
        s_cmp_lg_u32 s5, {sRB2}
        s_cbranch_scc1 {L}
        s_bfe_u32 s5, s4, 0x20006
        s_mul_i32 s5, s5, 5120
        s_bfe_u32 s6, s4, 0x40002
        s_mul_i32 s6, s6, 160
        s_add_u32 s5, s5, s6
        v_add_u32 v4, s5, v160
        s_bfe_u32 s4, s4, 0x60002
        s_lshl_b32 s4, s4, 4
        s_add_u32 s4, s4, {SB+LMR}
        v_mov_b32 v5, s4
        v_cmp_eq_u32 vcc, 26, v1
        v_cndmask_b32 v4, v4, v5, vcc
        s_mov_b64 exec, 0x07ff03ff
        ds_read_b128 v[52:55], v4
        s_waitcnt lgkmcnt(0)
        buffer_store_dwordx4 v[52:55], v161, {WSR}, 0 offen sc1
        {MALL}
        {L}:""")
    def out_store(L):
        a(f"s_cmp_lg_u32 {sHI}, {FH}\n s_cbranch_scc1 {L}\n s_waitcnt lgkmcnt(0)")
        for i in range(8): a(f"v_cmp_ne_u32 vcc, v{44+i}, v22\n s_and_b64 exec, exec, vcc")
        a(f"""s_cbranch_execz {L}
        buffer_store_dwordx4 {q4(OUTP)}, v16, s[8:11], 0 offen {OFL}
        buffer_store_dwordx4 {q4(OUTP+4)}, v16, s[8:11], 0 offen offset:16 {OFL}
        buffer_store_dwordx2 {q2(OUTP+8)}, v16, s[8:11], 0 offen offset:32 {OFL}""")
        a(f"{L}:\n {MALL}")
    a(f"s_cmp_ge_u32 {sROLE}, 32\n s_cbranch_scc1 L_E")
    HF, DW, MRV = 64, 80, 24
    a("s_waitcnt lgkmcnt(3)")
    for i in range(2): a(f"v_not_b32 v{26+i}, v{24+i}\n v_lshrrev_b32 v{24+i}, 6, v{24+i}")
    for i in range(2): a(f"v_and_b32 v{26+i}, 3, v{26+i}\n v_lshlrev_b32 v{24+i}, 12, v{24+i}")
    for i in range(2): a(f"v_cmp_gt_u32 s[{4+2*i}:{5+2*i}], 2, v{26+i}\n v_lshl_add_u32 v{24+i}, v{26+i}, 11, v{24+i}")
    for i in range(2): a(f"v_cndmask_b32 v{24+i}, v{153+i}, v{24+i}, s[{4+2*i}:{5+2*i}]")
    for i in range(2): a(f"v_add_u32 v{24+i}, v{24+i}, v{155+i}")
    def d_loads():
        a(f"""s_mov_b32 m0, s59
        s_nop 0
        buffer_load_dwordx4 v24, {WSR}, s58 offen sc1 lds
        s_add_u32 m0, s59, 1024
        s_mov_b64 exec, 0xffff
        buffer_load_dwordx4 v25, {WSR}, s58 offen sc1 lds
        {MALL}""")
    def d_check():
        a(f"""s_waitcnt vmcnt(0)
        ds_read_b128 {q4(HF)}, v158
        ds_read_b128 {q4(HF+4)}, v158 offset:64
        ds_read_b128 {q4(HF+8)}, v159 offset:1024""")
        for ks in range(3):
            a(f"s_waitcnt lgkmcnt({2-ks})")
            a(mm16(28, DW+4*ks, HF+4*ks, ks == 0))
        a(f"""v_max3_u32 v5, v{HF}, v{HF+1}, v{HF+2}
        v_max3_u32 v6, v{HF+3}, v{HF+4}, v{HF+5}
        v_max3_u32 v5, v5, v{HF+6}, v{HF+7}
        v_max3_u32 v6, v6, v{HF+8}, v{HF+9}
        v_max3_u32 v5, v5, v{HF+10}, v{HF+11}
        v_max_u32 v5, v5, v6
        v_cmp_eq_u32 vcc, -1, v5""")
    d_loads()
    publish("L_NOPUB")
    for ks in range(3):
        for h in range(2): a(f"ds_read_b64_tr_b16 {q2(DW+4*ks+2*h)}, v162 offset:{ks*512 + h*64}")
    a("v_cmp_gt_u32 s[6:7], 32, v1\n v_mov_b32 v10, v163\n s_waitcnt lgkmcnt(0)")
    for r in range(4): a(f"v_cndmask_b32 v{DW+8+r}, 0, v{DW+8+r}, s[6:7]")
    d_check()
    a("s_cbranch_vccz L_RPOLL_OK")
    spin_head(a, "L_RPOLL")
    d_loads(); d_check()
    spin_tail(a, "L_RPOLL", 1)
    a.stamp(8, 3)
    a(f"""ds_write_b128 v10, v[28:31]
    s_waitcnt lgkmcnt(0)
    s_barrier""")
    a.stamp(9, 3)
    a(f"""s_cmp_lg_u32 {sW}, {LW}
    s_cbranch_scc1 L_DOTH
    v_subrev_u32 v10, {LW*1024}, v10""")
    oth = [w for w in range(8) if w != LW]
    for n, w in enumerate(oth): a(f"ds_read_b128 {q4(64+4*n)}, v10 offset:{1024*w}")
    for n in range(7):
        a(f"s_waitcnt lgkmcnt({6-n})")
        for r in (0, 2): a(f"v_pk_add_f32 {q2(28+r)}, {q2(28+r)}, {q2(64+4*n+r)}")
    a("""v_cvt_pk_bf16_f32 v32, v28, v29
    v_cvt_pk_bf16_f32 v33, v30, v31
    v_mov_b32 v34, v32
    v_mov_b32 v35, v33
    v_permlane32_swap_b32 v32, v34
    v_permlane32_swap_b32 v33, v35""")
    a.stamp(10, 3)
    for k in range(2):
        a(f"""v_lshlrev_b32 v{40+2*k}, 16, v{32+k}
        v_and_b32 v{41+2*k}, 0xffff0000, v{32+k}
        v_lshlrev_b32 v{44+2*k}, 16, v{34+k}
        v_and_b32 v{45+2*k}, 0xffff0000, v{34+k}""")
    for r in range(4): a(f"v_mul_f32 v{48+r}, 0xbfb8aa3b, v{40+r}")
    for r in range(4): a(f"v_exp_f32 v{48+r}, v{48+r}")
    for r in range(4): a(f"v_add_f32 v{48+r}, 1.0, v{48+r}")
    for r in range(4): a(f"v_rcp_f32 v{48+r}, v{48+r}")
    for r in range(4): a(f"v_mul_f32 v{40+r}, v{40+r}, v{48+r}")
    a("v_cvt_pk_bf16_f32 v32, v40, v41\n v_cvt_pk_bf16_f32 v33, v42, v43")
    for k in range(2):
        a(f"v_lshlrev_b32 v{40+2*k}, 16, v{32+k}\n v_and_b32 v{41+2*k}, 0xffff0000, v{32+k}")
    for r in (0, 2): a(f"v_pk_mul_f32 {q2(40+r)}, {q2(40+r)}, {q2(44+r)}")
    a(f"""v_cvt_pk_bf16_f32 v32, v40, v41
    v_cvt_pk_bf16_f32 v33, v42, v43
    v_min_u32 v32, -2, v32
    v_min_u32 v33, -2, v33
    v_mov_b32 v34, v32
    v_mov_b32 v35, v33
    v_lshlrev_b32 v4, 4, v2
    v_permlane16_swap_b32 v32, v34
    v_permlane16_swap_b32 v33, v35
    s_lshl_b32 s3, s30, 7
    s_add_u32 s3, s3, {ACT_OFF}
    s_mov_b64 exec, 0xff
    buffer_store_dwordx4 v[32:35], v4, {WSR}, s3 offen sc1""")
    a.stamp(4, 6)
    a(f"""s_barrier
    s_branch L_END
    L_DOTH:
    s_barrier
    L_DOTH2:""")
    if OPT.get("osl", 0): a(f"s_sleep {OPT['osl']}")
    out_store("L_OUTD")
    a("s_branch L_END")
    AF, EW = 64, 96
    HM = OPT.get("hm", 1)
    def h_loads():
        a(f"""buffer_load_dwordx2 v[136:137], v19, {WSR}, s33 offen sc1
        buffer_load_dwordx2 v[130:131], v19, {WSR}, s34 offen sc1
        buffer_load_dword v134, v17, {WSR}, s35 offen offset:8 sc1""")
    def h_part(first):
        if not first:
            a("v_max3_u32 v5, v130, v131, v134\n v_max3_u32 v5, v5, v136, v137\n v_cmp_eq_u32 vcc, -1, v5\n s_cbranch_vccz L_HPOLL_OK")
        spin_head(a, "L_HPOLL")
        a(f"""buffer_load_dwordx2 v[136:137], v19, {WSR}, s33 offen sc1
        buffer_load_dwordx2 v[130:131], v19, {WSR}, s34 offen sc1
        buffer_load_dword v134, v17, {WSR}, s35 offen offset:8 sc1
        s_waitcnt vmcnt(0)
        v_max3_u32 v5, v130, v131, v134
        v_max3_u32 v5, v5, v136, v137
        v_cmp_eq_u32 vcc, -1, v5""")
        spin_tail(a, "L_HPOLL")
        rb16(a, 134)
        a("v_mul_f32 v15, 0xbfb8aa3b, v134\n v_exp_f32 v15, v15\n v_add_f32 v15, 1.0, v15\n v_rcp_f32 v15, v15")
        rb16(a, 15)
        a("v_mov_b32 v16, v15")
        for k in range(2):
            a(f"""v_lshlrev_b32 v{140+2*k}, 16, v{136+k}
            v_and_b32 v{141+2*k}, 0xffff0000, v{136+k}
            v_lshlrev_b32 v{144+2*k}, 16, v{130+k}
            v_and_b32 v{145+2*k}, 0xffff0000, v{130+k}""")
    a("L_E:")
    a.stamp(1, 6)
    publish("L_NOPUBE")
    a("v_lshrrev_b32 v23, 2, v23")
    if not WDE: wd_dma(range(WD1, 7), "2")
    elif OPT.get("wdl", 0): wd_dma(range(7 - OPT.get("wdl", 0), 7), "3")
    a(f"""s_sub_u32 s30, s30, 256
    s_mul_i32 s4, s30, 52
    s_lshr_b32 s4, s4, 8              ; cg/5
    s_lshl_b32 s5, s4, 11
    s_add_u32 s35, s5, {XS_OFF + 16384 + 160}
    s_mul_i32 s4, s4, {2048 - 160}
    s_lshl_b32 s30, s30, 5
    s_add_u32 s4, s4, s30
    s_add_u32 s33, s4, {XS_OFF}
    s_add_u32 s34, s33, 16384
    v_and_b32 v17, 7, v2
    v_lshlrev_b32 v17, 8, v17
    v_lshl_add_u32 v19, v3, 3, v17
    v_add_u32 v11, s32, v21
    v_add_u32 v14, {GW}, v11
    s_waitcnt lgkmcnt(0)""")
    EO = OPT.get("eo", 0)
    if EO == 0: out_store("L_OUTE")
    srd(a, 12, P_WS, ACT_OFF + 27648)
    a(f"""v_and_b32 v4, 7, v2
    v_lshlrev_b32 v12, 4, v4
    v_lshl_add_u32 v12, v3, 7, v12
    s_lshl_b32 s4, {sW}, 9
    s_add_u32 s4, s4, {ACT_OFF}
    v_mul_u32_u24 v13, 1280, v23
    v_lshl_add_u32 v13, v3, 3, v13
    v_add_u32 v13, s30, v13
    s_add_u32 s3, s32, {DRED}
    v_lshl_add_u32 v10, v1, 4, s3
    s_cmp_lg_u32 {sW}, {LW}
    s_cbranch_scc1 L_ENOH""")
    if not HM: h_part(True)
    a("L_ENOH:\n s_waitcnt vmcnt(0)")
    for j in range(7):
        b, o = (14, wd_lds(j) - GW) if j < WD1 else (11, wd_lds(j))
        for h in range(2): a(f"ds_read_b64_tr_b16 {q2(EW+4*j+2*h)}, v{b} offset:{o + h*256}")
    if OPT.get('hint', 0):
        spin_head(a, "L_AHINT")
        a(f"""buffer_load_dwordx4 {q4(AF)}, v12, s[12:15], s4 offen sc1
    s_waitcnt vmcnt(0)
    v_cmp_eq_u32 vcc, -1, v{AF}""")
        spin_tail(a, "L_AHINT")
    AM = OPT.get("am", 1)
    if AM:
        for r in range(28): a(f"v_mov_b32 v{AF+r}, 0")
    if OPT.get('abar', 1): a("s_barrier")
    if OPT.get('asleep', 0): a(f"s_sleep {OPT['asleep']}")
    a.stamp(2, 6)
    spin_head(a, "L_APOLL")
    if AM: a("s_mov_b32 exec_lo, 0x00ff00ff\n s_mov_b32 exec_hi, 0x00ff00ff")
    for j in range(7): a(f"s_add_u32 s5, s4, {4096*j}\n buffer_load_dwordx4 {q4(AF+4*j)}, v12, s[12:15], s5 offen sc1")
    if AM: a(MALL)
    if HM:
        a(f"s_cmp_lg_u32 {sW}, {LW}\n s_cbranch_scc1 L_NH")
        h_loads()
        a("L_NH:")
    a(f"s_waitcnt vmcnt(0) lgkmcnt(0)")
    for j in range(7):
        a(mm16(24, EW+4*j, AF+4*j, j == 0))
        if j == 0: a(f"v_max_u32 v5, v{AF}, v{AF+1}\n v_max3_u32 v5, v5, v{AF+2}, v{AF+3}")
        else: a(f"v_max3_u32 v5, v5, v{AF+4*j}, v{AF+4*j+1}\n v_max3_u32 v5, v5, v{AF+4*j+2}, v{AF+4*j+3}")
    a("v_cmp_eq_u32 vcc, -1, v5")
    spin_tail(a, "L_APOLL", 1)
    a.stamp(11, 3); a.stamp(3, 6)
    if PROF and OPT.get("pg") == 6: a("s_mov_b32 s99, s3")
    a("ds_write_b128 v10, v[24:27]")
    if HM:
        a(f"s_cmp_lg_u32 {sW}, {LW}\n s_cbranch_scc1 L_NH2")
        h_part(False)
        a("L_NH2:")
    a(f"""s_waitcnt lgkmcnt(0)
    s_barrier
    s_cmp_lg_u32 {sW}, {LW}
    s_cbranch_scc1 {"L_DOTH2" if EO else "L_END"}
    v_subrev_u32 v10, {LW*1024}, v10""")
    for n, w in enumerate(oth): a(f"ds_read_b128 {q4(32+4*n)}, v10 offset:{1024*w}")
    for w in range(7):
        a(f"s_waitcnt lgkmcnt({6-w})")
        for r in (0, 2): a(f"v_pk_add_f32 {q2(24+r)}, {q2(24+r)}, {q2(32+4*w+r)}")
    a("v_cvt_pk_bf16_f32 v28, v24, v25\n v_cvt_pk_bf16_f32 v29, v26, v27")
    for k in range(2):
        a(f"v_lshlrev_b32 v{24+2*k}, 16, v{28+k}\n v_and_b32 v{25+2*k}, 0xffff0000, v{28+k}")
    def rnd():
        a("v_cvt_pk_bf16_f32 v28, v24, v25\n v_cvt_pk_bf16_f32 v29, v26, v27")
        for k in range(2): a(f"v_lshlrev_b32 v{24+2*k}, 16, v{28+k}\n v_and_b32 v{25+2*k}, 0xffff0000, v{28+k}")
    for r in (0, 2): a(f"v_pk_mul_f32 {q2(24+r)}, {q2(24+r)}, v[16:17] op_sel_hi:[1,0]")
    rnd()
    for r in (0, 2): a(f"v_pk_add_f32 {q2(24+r)}, {q2(24+r)}, {q2(140+r)}")
    rnd()
    for r in (0, 2): a(f"v_pk_add_f32 {q2(24+r)}, {q2(24+r)}, {q2(144+r)}")
    a("v_cvt_pk_bf16_f32 v24, v24, v25\n v_cvt_pk_bf16_f32 v25, v26, v27")
    a("""s_mov_b32 exec_lo, 0x00ff00ff
    s_mov_b32 exec_hi, 0x00ff00ff
    buffer_store_dwordx2 v[24:25], v13, s[8:11], 0 offen
    L_END:""")
    if PROF:
        a(f"{MALL}\n s_waitcnt vmcnt(0)")
        a.stamp(12)
        for i in range(16): a(f"v_mov_b32 v{8+i}, s{88+i}" if i < 13 else f"v_mov_b32 v{8+i}, 0")
        a(f"""s_lshl_b32 s3, s2, 9
        s_add_u32 s3, s3, {PROF_OFF}
        s_lshl_b32 s4, {sW}, 6
        s_add_u32 s3, s3, s4
        v_mov_b32 v4, s3
        s_mov_b64 exec, 1""")
        for i in range(4): a(f"global_store_dwordx4 v4, {q4(8+4*i)}, s[{P_WS}:{P_WS+1}] offset:{16*i}")
        if "ampj" in OPT:
            i, j = OPT["ampi"], OPT["ampj"]
            a(f"""s_sub_u32 s4, s{88+j}, s{88+i}
            s_mul_i32 s4, s4, 10
            s_min_u32 s4, s4, 100000
            s_cmp_lg_u32 {sW}, 0
            s_cbranch_scc1 L_EXIT
            L_AMP:
            s_memrealtime s[6:7]
            s_waitcnt lgkmcnt(0)
            s_sub_u32 s5, s6, s100
            s_cmp_lt_u32 s5, s4
            s_cbranch_scc1 L_AMP""")
    a("L_EXIT:\n s_endpgm")

    if DYN: emit_dyn()
    a("L_FALLBACK:\n s_waitcnt vmcnt(0)\n s_nop 7\n s_nop 7")
    S0 = 112
    def S(i): return S0 + 16*i
    KF = 24
    for n in range(9):
        a(kread(KF + 6*n, n))
        if n % 4 == 3: a("s_waitcnt lgkmcnt(0)")
    a("s_waitcnt lgkmcnt(0)")
    for n in range(9): a(f"{s1(S(n), KF+6*n)}\n {s2(S(n), KF+6*n)}")
    for r in range(8): a(f"v_mov_b32 v{78+r}, 0x3f803f80")
    a("s_nop 7\n s_nop 7")
    for i in range(8):
        a(f"s_cmp_gt_i32 s30, {i}\n s_cbranch_scc0 L_VALID")
        for r in range(16): a(f"v_mov_b32 v{S(i)+r}, 0xff800000")
    a("L_VALID:")
    for r in range(16): a(f"v_cndmask_b32 v{S(0)+r}, v{S(8)+r}, v{S(0)+r}, s[{MS+2*r}:{MS+1+2*r}]")
    a(f"v_max_f32 v4, v{S(0)}, v{S(0)+1}")
    for k in range(1, 64): a(f"v_max3_f32 v4, v{S0+2*k}, v{S0+2*k+1}, v4")
    a("""v_mov_b32 v5, v4
    v_permlane32_swap_b32 v4, v5
    v_max_f32 v4, v4, v5""")
    for i in range(8):
        s = S(i)
        for r in range(16): a(f"v_sub_f32 v{s+r}, v{s+r}, v4")
        for r in range(16): a(f"v_exp_f32 v{s+r}, v{s+r}")
        for k in range(8): a(f"v_cvt_pk_bf16_f32 v{s+k}, v{s+2*k}, v{s+2*k+1}")
    s = S(0)
    for k in range(8): a(f"v_and_b32 v{s+8+k}, v{MK+k}, v{s+k}")
    for k in range(8): a(f"v_xor_b32 v{S(8)+k}, v{s+8+k}, v{s+k}")
    for t in range(9):
        p = s + 8 if t == 0 else S(t)
        a(vread(78, t, False))
        a(f"s_waitcnt lgkmcnt(0)\n {pvm(78, p, t == 0)}\n {pvm(82, p + 4)}\n s_nop 7")
    a("s_nop 7")
    early_loads("L_EL2")
    if OPT.get("rpn", 10) >= 9: gu_loads("L_GU2", bGU)
    a("s_branch L_BDONE")

def build():
    a = PAsm()
    kernel(a)
    name = NAME + "_kernel"
    L = ["; @launch grid=(256,1,1) block=(512,1,1) lds=163840",
         '.amdgcn_target "amdgcn-amd-amdhsa--gfx950"', ".text", f".globl {name}", ".p2align 8",
         f".type {name},@function", f"{name}:", a.render(), "CODE_END:", "s_endpgm",
         '.section .rodata,"a"', ".p2align 6", f".amdhsa_kernel {name}", "  .amdhsa_next_free_vgpr 256",
         "  .amdhsa_next_free_sgpr 102", "  .amdhsa_accum_offset 256", "  .amdhsa_group_segment_fixed_size 0",
         "  .amdhsa_kernarg_size 88", "  .amdhsa_user_sgpr_count 2", "  .amdhsa_user_sgpr_kernarg_segment_ptr 1",
         "  .amdhsa_system_sgpr_workgroup_id_x 1", ".end_amdhsa_kernel"]
    return "\n".join(L) + "\n"

def check_ws(w, im, cmp, tof):
    import numpy as np
    qkv = im["qkv"]
    q = tof(w[Q_OFF:Q_OFF + 16*64*T32].view(np.uint16)).reshape(16, 64, 5, 32, 8).transpose(1, 3, 0, 2, 4).reshape(2048, 640)
    cmp("q", q, qkv[:, :640] * (20 ** -0.5) * 1.4426950408889634)
    k = tof(w[K_OFF:K_OFF + 16*64*T32].view(np.uint16)).reshape(16, 64, 5, 32, 8).transpose(1, 3, 0, 2, 4).reshape(2048, 640)
    cmp("k", k, qkv[:, 640:1280])
    v = tof(w[V_OFF:V_OFF + 16*64*T32].view(np.uint16)).reshape(16, 256, 40, 8).transpose(1, 3, 0, 2).reshape(2048, 640)
    cmp("v", v, qkv[:, 1280:])
    ob = w[O_OFF:O_OFF + 64*40960].reshape(64, 40960)
    om = tof(np.ascontiguousarray(ob[:, :32768]).view(np.uint16)).reshape(64, 32, 2, 32, 8).transpose(0, 3, 1, 2, 4).reshape(2048, 32, 16)
    oq = tof(np.ascontiguousarray(ob[:, 32768:]).view(np.uint16)).reshape(64, 32, 32, 4).transpose(0, 2, 1, 3).reshape(2048, 32, 4)
    o = np.concatenate([om, oq], axis=2).reshape(2048, 640)
    cmp("o", o, im["o"])

if __name__ == "__main__":
    PROF = "prof" in sys.argv
    if "cyc" in sys.argv: TIMER = "s_memtime"
    for x in sys.argv[2:]:
        if "=" in x:
            k, v = x.split("="); OPT[k] = int(v)
    out = sys.argv[1] if len(sys.argv) > 1 else f"cdna_kernels/{NAME}.s"
    txt = build()
    if OPT.get("nbig"):
        ls = txt.split("\n"); n = 0
        for i, l in enumerate(ls):
            if "buffer_store_dwordx4 v[76:79], v6" in l and n < 4: ls[i] = "    s_nop 0"; n += 1
        txt = "\n".join(ls)
    import re
    if OPT.get("sys") == 1: txt = txt.replace(" sc1", " sc0 sc1").replace("global_atomic_add v4, v5, s[82:83] sc0 sc1", "global_atomic_add v4, v5, s[82:83] sc1")
    if OPT.get("sys") == 2: txt = re.sub(r"(buffer_store[^\n]*) sc1", r"\1 sc0 sc1", txt)
    if OPT.get("sys") == 3: txt = re.sub(r"(buffer_load[^\n]*) sc1", r"\1 sc0 sc1", txt)
    if OPT.get("sys") == 4: txt = re.sub(r"(buffer_load[^\n]*) sc1 lds", r"\1 lds", txt)
    open(out, "w").write(txt)
    print("wrote", out, len(txt))
```

```python
import sys, struct
from asmlib import Asm

NAME = "sequential_preLN__sliding_block__moe_arch_mod__prompt"
Q_OFF = 0; K_OFF = 0x280000; V_OFF = 0x500000; O_OFF = 0x780000
PART_OFF = 0xC00000; EP_OFF = 0xC80000; PARTB = 0x40000; F1_OFF = 0xD00000; XS_OFF = 0xD08000; KEY_OFF = 0xD10000; ACT_OFF = 0xD14000
ST_OFF = 0xD1C000
RP_OFF = 0xD20000
WS_SIZE = RP_OFF + 27*8*20480
PROF_OFF = 0x1200000
T32 = 2560
PROF = False
TIMER = "s_memrealtime"
SPIN_MAX = 1 << 21
SLEEP = 2
OPT = {}

def f2u(x): return struct.unpack("<I", struct.pack("<f", x))[0]
QSCALE = f2u((20 ** -0.5) * 1.4426950408889634)
EPS = f2u(1e-5); INV640 = f2u(1.0 / 640)
P_X, P_WQKV, P_WO, P_WR, P_G, P_U, P_D, P_OUT, P_DBG, P_WS = 64, 66, 68, 72, 74, 76, 78, 80, 82, 84
WSR = "s[16:19]"
sW, sRB, sHP, sRB2, sCS, sROLE, sLO, sHI = "s20", "s21", "s22", "s23", "s24", "s25", "s26", "s27"

SCR = 94208
KL = 102400; VL = 133120; WOL = 0
GW = KL; SB = 122880; RED = VL
SURV = 0; WMAX = 8320; CNT = 8352; SELL = 8384; LMR = 8704
DRED = 65536

class PAsm(Asm):
    def stamp(self, i, grp=0):
        if i not in (0, 12) and grp != OPT.get("pg", 0): return
        if PROF:
            assert i < 13
            self(f"{TIMER} s[86:87]\n s_waitcnt lgkmcnt(0)\n s_mov_b32 s{88+i}, s86")

def srd(a, d, lo, size):
    a(f"""s_mov_b32 s{d}, s{lo}
    s_and_b32 s{d+1}, s{lo+1}, 0xffff
    s_mov_b32 s{d+2}, {size}
    s_mov_b32 s{d+3}, 0x00020000""")
def rb16(a, v): a(f"v_cvt_pk_bf16_f32 v{v}, v{v}, v{v}\n v_lshlrev_b32 v{v}, 16, v{v}")
def ln_scalars(a, s1, s2):
    a(f"""v_mul_f32 v{s1}, {INV640:#x}, v{s1}
    v_mul_f32 v{s2}, {INV640:#x}, v{s2}
    v_fma_f32 v{s2}, -v{s1}, v{s1}, v{s2}
    v_max_f32 v{s2}, 0, v{s2}
    v_cvt_pk_bf16_f32 v{s2}, v{s1}, v{s2}
    v_lshlrev_b32 v{s1}, 16, v{s2}
    v_and_b32 v{s2}, 0xffff0000, v{s2}
    v_add_f32 v{s2}, {EPS:#x}, v{s2}""")
    rb16(a, s2)
    a(f"v_sqrt_f32 v{s2}, v{s2}")
    rb16(a, s2)
    a(f"v_rcp_f32 v{s2}, v{s2}")
def dpp_reduce(a, op, regs):
    for sh in (1, 2, 4, 8):
        for v in regs: a(f"{op}_dpp v{v}, v{v}, v{v} row_shr:{sh} row_mask:0xf bank_mask:0xf")
    for v in regs: a(f"{op}_dpp v{v}, v{v}, v{v} row_bcast:15 row_mask:0xa bank_mask:0xf")
    for v in regs: a(f"{op}_dpp v{v}, v{v}, v{v} row_bcast:31 row_mask:0xc bank_mask:0xf")
def xg_sum(a, regs, tmps):
    for x, t in zip(regs, tmps): a(f"v_mov_b32 v{t}, v{x}")
    for x, t in zip(regs, tmps): a(f"v_permlane16_swap_b32 v{x}, v{t}")
    for x, t in zip(regs, tmps): a(f"v_add_f32 v{x}, v{x}, v{t}")
    for x, t in zip(regs, tmps): a(f"v_mov_b32 v{t}, v{x}")
    for x, t in zip(regs, tmps): a(f"v_permlane32_swap_b32 v{x}, v{t}")
    for x, t in zip(regs, tmps): a(f"v_add_f32 v{x}, v{x}, v{t}")
def norm_pair(a, d, x, m, rs, t0, t1):
    a(f"""v_lshlrev_b32 v{t0}, 16, v{x}
    v_and_b32 v{t1}, 0xffff0000, v{x}
    v_subrev_f32 v{t0}, {m}, v{t0}
    v_subrev_f32 v{t1}, {m}, v{t1}
    v_cvt_pk_bf16_f32 v{d}, v{t0}, v{t1}
    v_lshlrev_b32 v{t0}, 16, v{d}
    v_and_b32 v{t1}, 0xffff0000, v{d}
    v_mul_f32 v{t0}, {rs}, v{t0}
    v_mul_f32 v{t1}, {rs}, v{t1}
    v_cvt_pk_bf16_f32 v{d}, v{t0}, v{t1}""")
def add_pairs(a, d, x, y, t0, t1, t2):
    a(f"""v_lshlrev_b32 v{t0}, 16, v{x}
    v_lshlrev_b32 v{t1}, 16, v{y}
    v_add_f32 v{t0}, v{t0}, v{t1}
    v_and_b32 v{t1}, 0xffff0000, v{x}
    v_and_b32 v{t2}, 0xffff0000, v{y}
    v_add_f32 v{t1}, v{t1}, v{t2}
    v_cvt_pk_bf16_f32 v{d}, v{t0}, v{t1}""")
def q2(r): return f"v[{r}:{r+1}]"
def q4(r): return f"v[{r}:{r+3}]"
def r16(x): return f"v[{x}:{x+15}]"
M40 = "s_mov_b32 exec_hi, 0xff"
MALL = "s_mov_b64 exec, -1"
def spin_head(a, L):
    a(f"s_mov_b32 s3, 0\n {L}:\n s_add_u32 s3, s3, 1\n s_cmp_gt_u32 s3, {SPIN_MAX}\n s_cbranch_scc1 L_END")
def spin_tail(a, L, sl=None):
    a(f"s_cbranch_vccz {L}_OK\n s_sleep {SLEEP if sl is None else sl}\n s_branch {L}\n {L}_OK:")
def div_lane(a, q, r, src, d):
    magic = (65536 + d - 1) // d
    a(f"""v_mul_u32_u24 v{q}, {magic}, v{src}
    v_lshrrev_b32 v{q}, 16, v{q}
    v_mul_u32_u24 v{r}, {d}, v{q}
    v_sub_u32 v{r}, v{src}, v{r}""")
def kappa(a, d, s, t):
    a(f"""v_and_b32 v{d}, 0x13, v{s}
    v_and_b32 v{t}, 4, v{s}
    v_lshl_or_b32 v{d}, v{t}, 1, v{d}
    v_and_b32 v{t}, 8, v{s}
    v_lshrrev_b32 v{t}, 1, v{t}
    v_or_b32 v{d}, v{d}, v{t}""")
def rho(a, d, t):
    a(f"""v_bfe_u32 v{d}, v1, 2, 2
    v_and_b32 v{t}, 1, v3
    v_lshl_or_b32 v{d}, v{t}, 2, v{d}
    v_lshrrev_b32 v{t}, 1, v3
    v_lshl_or_b32 v{d}, v{t}, 4, v{d}""")
def masked_load(a, dst, voff, ptr, L, fl=""):
    a(f"""s_and_saveexec_b64 s[6:7], vcc
    s_cbranch_execz {L}
    global_load_dword v{dst}, v{voff}, s[{ptr}:{ptr+1}] {fl}
    {L}:
    {MALL}""")
def mm16(d, x, y, first): return f"v_mfma_f32_16x16x32_bf16 {q4(d)}, {q4(x)}, {q4(y)}, {'0' if first else q4(d)}"

def kernel(a):
    vXD, vWD = 112, 113
    vAS = 114
    NEG = 76; ONES = 132
    FR = 136
    ACC = 184
    CS = 216
    PK = 220
    EC = OPT.get('ec', 1)
    TMP = 24 if EC else FR
    XB = 64
    vST = 236
    vCW, vCR, vSR = 238, 239, 241
    STV = 244
    TD, vK0, vK1, vV, vO0, vO1 = 10, 11, 12, 13, 14, 15
    bWO0, bWO1, bGU, bF2A, vF1A, vHC, vTO = 22, 23, 86, 87, 85, 84, 83
    sGR, sCT = "s60", "s61"
    ROTX = [f"s_add_u32 s4, s4, {sCT}\n s_add_u32 s4, s4, {sGR}",
            f"s_add_u32 s4, s4, {sCT}",
            f"s_add_u32 s4, s4, {sCT}\n s_and_b32 s5, {sGR}, 1\n s_add_u32 s4, s4, s5",
            f"s_and_b32 s5, {sCT}, 6\n s_add_u32 s4, s4, s5",
            f"s_and_b32 s5, s2, 1\n s_lshl_b32 s5, s5, 1\n s_add_u32 s4, s4, s5\n s_add_u32 s4, s4, {sCT}\n s_add_u32 s4, s4, {sGR}",
            ][OPT.get("rotx", 0)]
    def slot(c): return (c % 5) * 32768
    if PROF:
        for i in range(13): a(f"s_mov_b32 s{88+i}, 0")
    a.stamp(0)
    a(f"""s_load_dwordx16 s[64:79], s[0:1], 0
    s_load_dwordx4 s[80:83], s[0:1], 64
    s_load_dwordx2 s[84:85], s[0:1], 80
    s_getpc_b64 s[4:5]
    CODE_START:
    s_cmp_ge_u32 s2, 256
    s_cbranch_scc1 L_EXIT
    s_lshr_b32 s63, s2, 3             ; idx
    s_lshl_b32 s3, s63, 7
    v_lshl_add_u32 v4, v0, 12, s3
    v_cmp_gt_u32 vcc, CODE_END-CODE_START, v4""")
    masked_load(a, 250, 4, 4, "L_NOPF")
    a(f"""v_and_b32 v1, 63, v0
    v_lshrrev_b32 v4, 6, v0
    v_and_b32 v2, 15, v0
    v_readfirstlane_b32 {sW}, v4
    v_lshrrev_b32 v3, 4, v1
    s_and_b32 s3, s63, 3
    s_lshr_b32 {sCT}, s63, 2
    s_bfe_u32 {sGR}, s2, 0x20001
    s_mul_i32 s4, s3, 5
    s_lshr_b32 s4, s4, 1
    {ROTX}
    s_cmp_ge_u32 s4, 10
    s_cselect_b32 s5, 10, 0
    s_sub_u32 s4, s4, s5              ; rot
    s_lshl_b32 {sGR}, {sGR}, 2
    s_add_u32 {sGR}, {sGR}, s3
    s_and_b32 s3, s2, 1
    s_lshl_b32 s3, s3, 3
    s_add_u32 {sCT}, {sCT}, s3
    s_lshl_b32 s28, s4, 7
    s_mul_i32 s29, s4, 245760
    s_lshl_b32 s3, {sGR}, 7
    s_lshl_b32 s4, {sW}, 3
    s_add_u32 s3, s3, s4
    v_lshrrev_b32 v4, 3, v1
    v_add_u32 v4, s3, v4
    v_mul_u32_u24 v4, 1280, v4
    s_and_b32 s3, {sW}, 1
    s_lshl_b32 s3, s3, 2
    v_or_b32 v5, s3, v3
    v_and_b32 v6, 7, v1
    v_xor_b32 v5, v5, v6
    v_lshl_add_u32 v{vXD}, v5, 4, v4
    s_lshl_b32 s3, {sW}, 2
    v_add_u32 v4, s3, v3
    v_mul_u32_u24 v4, 3840, v4
    s_lshl_b32 s3, {sW}, 1
    s_and_b32 s3, s3, 4
    v_or_b32 v5, s3, v3
    v_lshlrev_b32 v5, 1, v5
    v_xor_b32 v5, v5, v2
    v_lshl_add_u32 v4, v5, 4, v4
    s_lshl_b32 s3, {sCT}, 8
    v_add_u32 v{vWD}, s3, v4
    s_lshl_b32 s30, {sW}, 10
    s_waitcnt lgkmcnt(0)""")
    a.stamp(1)
    srd(a, 8, P_X, 2621440)
    srd(a, 12, P_WQKV, 2457600)
    def dmaA(c):
        b = slot(c)
        return [f"""s_add_u32 m0, s30, {b}
        s_add_u32 s31, s28, 81920
        buffer_load_dwordx4 v{vXD}, s[8:11], s28 offen lds""",
        f"""s_add_u32 m0, s30, {b + 16384}
        s_add_u32 s39, s29, 122880
        buffer_load_dwordx4 v{vWD}, s[12:15], s29 offen lds""",
        f"""s_add_u32 m0, s30, {b + 8192}
        s_add_u32 s28, s28, 128
        buffer_load_dwordx4 v{vXD}, s[8:11], s31 offen lds""",
        f"""s_add_u32 m0, s30, {b + 16384 + 8192}
        s_add_u32 s29, s29, 245760
        buffer_load_dwordx4 v{vWD}, s[12:15], s39 offen lds
        s_cmp_ge_u32 s28, 1280
        s_cselect_b32 s28, 0, s28
        s_cselect_b32 s29, 0, s29"""]
    srd(a, 16, P_WS, WS_SIZE)
    a(f"""s_lshl_b32 s4, {sCT}, 4
    s_add_u32 s4, s4, {sGR}
    s_lshl_b32 s4, s4, 7
    s_add_u32 s59, s4, {F1_OFF}
    v_mov_b32 v{NEG}, -1
    v_mov_b32 v{NEG+1}, -1
    v_mov_b32 v{NEG+2}, -1
    v_mov_b32 v{NEG+3}, -1
    s_cmp_lg_u32 {sW}, 7
    s_cbranch_scc1 L_NOCLR
    s_lshl_b32 s3, s2, 10
    s_add_u32 s3, s3, {PART_OFF}
    v_lshl_add_u32 v6, v1, 4, s3
    buffer_store_dwordx4 {q4(NEG)}, v6, {WSR}, 0 offen sc1
    s_mov_b32 s3, {PARTB}
    buffer_store_dwordx4 {q4(NEG)}, v6, {WSR}, s3 offen sc1
    s_mov_b32 s3, {EP_OFF - PART_OFF}
    buffer_store_dwordx4 {q4(NEG)}, v6, {WSR}, s3 offen sc1
    s_mov_b32 s3, {EP_OFF - PART_OFF + 0x40000}
    buffer_store_dwordx4 {q4(NEG)}, v6, {WSR}, s3 offen sc1
    s_lshl_b32 s6, s2, 7
    s_add_u32 s5, s6, {XS_OFF - 256}
    s_add_u32 s6, s6, {ACT_OFF - 128}
    s_lshl_b32 s7, s2, 6
    s_add_u32 s7, s7, {KEY_OFF - 384}
    v_mov_b32 v6, s59
    v_mov_b32 v7, s6
    v_cmp_le_u32 vcc, 8, v1
    v_cndmask_b32 v6, v6, v7, vcc
    v_mov_b32 v7, s5
    v_cmp_le_u32 vcc, 16, v1
    v_cndmask_b32 v6, v6, v7, vcc
    v_mov_b32 v7, s7
    v_cmp_le_u32 vcc, 24, v1
    v_cndmask_b32 v6, v6, v7, vcc
    v_lshl_add_u32 v6, v1, 4, v6
    s_mov_b64 exec, 0xfffffff
    buffer_store_dwordx4 {q4(NEG)}, v6, {WSR}, 0 offen sc1
    {MALL}
    s_cmp_lg_u32 {sCT}, 15
    s_cbranch_scc1 L_NOCLR
    s_lshl_b32 s3, {sGR}, 10
    s_add_u32 s3, s3, {ST_OFF}
    v_lshl_add_u32 v6, v1, 4, s3
    buffer_store_dwordx4 {q4(NEG)}, v6, {WSR}, 0 offen sc1
    L_NOCLR:
    s_cmp_eq_u32 {sCT}, 15
    s_cbranch_scc1 L_HLD""")
    for x in dmaA(0): a(x)
    a("s_branch L_PRE\n L_HLD:")
    HX = 136
    a(f"""s_lshl_b32 s3, {sGR}, 7
    s_lshl_b32 s4, {sW}, 4
    s_add_u32 s3, s3, s4
    v_lshrrev_b32 v4, 2, v1
    v_add_u32 v4, s3, v4
    v_mul_u32_u24 v4, 1280, v4
    v_and_b32 v5, 3, v1
    v_lshl_add_u32 v{vXD}, v5, 4, v4""")
    for i in range(4): a(f"buffer_load_dwordx4 {q4(HX+4*i)}, v{vXD}, s[8:11], 0 offen offset:{64*i}")
    a("L_PRE:")
    a.stamp(1, 1)
    a(f"""s_and_b32 {sLO}, {sW}, 3
    s_lshr_b32 {sHI}, {sW}, 2
    s_and_b32 s3, s2, 7
    s_lshl_b32 {sHP}, s3, 1
    s_lshr_b32 s4, s63, 4
    s_add_u32 {sHP}, {sHP}, s4
    s_and_b32 {sRB}, s63, 15
    s_lshl_b32 {sRB2}, s3, 2
    s_lshr_b32 s5, s63, 3
    s_add_u32 {sRB2}, {sRB2}, s5
    s_and_b32 {sCS}, s63, 7
    s_min_u32 s4, s3, 5
    s_sub_u32 {sROLE}, {sRB2}, s4
    s_cmp_eq_u32 s5, 3
    s_cselect_b32 s4, s3, 7
    s_add_u32 s3, s3, 32
    s_cmp_lt_u32 s4, 5
    s_cselect_b32 {sROLE}, s3, {sROLE}
    v_lshrrev_b32 v4, 1, v2
    v_xor_b32 v4, v4, v3
    v_lshlrev_b32 v4, 4, v4
    v_lshl_add_u32 v4, v2, 7, v4
    s_lshl_b32 s3, {sHI}, 13
    v_add_u32 v{vAS}, s3, v4
    v_xor_b32 v{vAS+1}, 64, v{vAS}
    v_bfe_u32 v4, v1, 2, 2
    v_and_b32 v5, 1, v3
    v_lshl_or_b32 v5, v5, 2, v4
    v_lshl_add_u32 v4, v3, 3, v4
    v_lshlrev_b32 v4, 8, v4
    v_and_b32 v6, 3, v1
    v_lshl_add_u32 v4, v6, 3, v4
    v_add_u32 v4, 16384, v4
    s_lshl_b32 s32, {sLO}, 1
    s_add_u32 s32, s32, {sHI}
    s_xor_b32 s33, s32, 1
    v_xor_b32 v6, s32, v5
    v_lshl_add_u32 v{vAS+2}, v6, 5, v4
    v_xor_b32 v{vAS+3}, 32, v{vAS+2}""")
    for q in (1, 2):
        for i in range(4): a(f"v_add_u32 v{vAS+4*q+i}, {65536*q}, v{vAS+i}")
    for i in range(4): a(f"v_mov_b32 v{ONES+i}, 0x3f803f80")
    if OPT.get("z2", 1):
        a(f"""s_cmp_eq_u32 {sCT}, 15
        s_cbranch_scc1 L_KEEP1
        s_mov_b32 exec_lo, 0xfffefffe
        s_mov_b32 exec_hi, 0xfffefffe""")
        for i in range(4): a(f"v_mov_b32 v{ONES+i}, 0")
        a(f"{MALL}\n L_KEEP1:")
    a(f"""    ; epilogue addresses
    s_cmp_ge_u32 {sCT}, 10
    s_cselect_b64 s[56:57], -1, 0
    v_lshlrev_b32 v6, 4, v3
    v_lshlrev_b32 v7, 2, v2
    v_cndmask_b32 v8, v6, v7, s[56:57]
    v_cndmask_b32 v9, v7, v6, s[56:57]
    s_lshl_b32 s3, s32, 6
    s_add_u32 s3, s3, {SCR+1024}
    v_add_u32 v{vCW}, s3, v7
    v_add_u32 v{vCR}, s3, v8
    v_xor_b32 v{vCR+1}, 64, v{vCR}
    s_lshl_b32 s3, {sHI}, 8
    s_add_u32 s3, s3, {SCR}
    v_add_u32 v{vSR}, s3, v9
    s_mul_i32 s3, {sCT}, 52
    s_lshr_b32 s3, s3, 8              ; section
    s_mul_i32 s4, s3, 5
    s_sub_u32 s34, {sCT}, s4          ; ct % 5
    s_mul_i32 s37, s3, {K_OFF}
    s_lshl_b32 s4, {sGR}, 2
    s_lshl_b32 s5, {sHI}, 1
    s_add_u32 s4, s4, s5
    s_mul_i32 s4, s4, {T32}
    s_add_u32 s37, s37, s4
    s_cmp_eq_u32 s3, 0
    s_cselect_b32 s36, {QSCALE:#x}, 1.0
    ; q/k: octet O = 16*(ct%5) + 2*(tile(g&1)) + (g>>1)
    v_and_b32 v4, 1, v3
    v_xor_b32 v4, s32, v4
    v_lshrrev_b32 v5, 1, v3
    v_lshl_add_u32 v4, v4, 1, v5
    s_lshl_b32 s3, s34, 4
    v_add_u32 v4, s3, v4
    v_mul_u32_u24 v6, 13108, v4
    v_lshrrev_b32 v6, 16, v6
    v_mul_u32_u24 v6, {64*T32 - 5*512}, v6
    v_lshl_add_u32 v6, v4, 9, v6
    v_lshl_add_u32 v{vST}, v2, 4, v6
    ; v: col = 128*(ct%5) + 16*tile + j ; octet = 2(g&1) + (g>>1)
    v_and_b32 v4, 1, v3
    v_lshl_add_u32 v4, v4, 1, v5
    v_mul_u32_u24 v7, 640, v4""")
    for c in range(2):
        a(f"""s_lshl_b32 s3, s34, 7
        s_lshl_b32 s4, s{32+c}, 4
        s_add_u32 s3, s3, s4
        v_add_u32 v4, s3, v2
        v_mul_u32_u24 v6, 1639, v4
        v_lshrrev_b32 v6, 16, v6
        v_mul_u32_u24 v6, {64*T32 - 640}, v6
        v_lshl_add_u32 v6, v4, 4, v6
        v_add_u32 v6, v6, v7
        v_cndmask_b32 v{vST+c}, v{vST}, v6, s[56:57]""")
    def signal(vm):
        a(f"""s_cmp_lg_u32 {sW}, 7
        s_cbranch_scc1 L_NOSIG
        s_and_b32 s3, s2, 63
        s_lshl_b32 s3, s3, 2
        v_mov_b32 v4, s3
        v_mov_b32 v5, 1
        s_waitcnt vmcnt({vm})
        s_mov_b64 exec, 1
        global_atomic_add v4, v5, s[{P_DBG}:{P_DBG+1}] sc1
        {MALL}
        L_NOSIG:""")
    if OPT.get('sige', 0): signal(4)
    a(f"s_cmp_eq_u32 {sCT}, 15\n s_cbranch_scc1 L_HLD2")
    for x in dmaA(1): a(x)
    a("s_branch L_PRE2\n L_HLD2:")
    for i in range(4, 20): a(f"buffer_load_dwordx4 {q4(HX+4*i)}, v{vXD}, s[8:11], 0 offen offset:{64*i}")
    a("L_PRE2:")
    if not OPT.get('sige', 0): signal(8)
    div_lane(a, 8, 9, 1, 10)
    a(f"""s_and_b32 s3, {sW}, 1
    s_lshl_b32 s3, s3, 2
    v_add_u32 v4, s3, v8
    v_mul_u32_u24 v4, 1280, v4
    s_mul_i32 s3, s3, 5
    s_add_u32 s3, s3, 16
    v_add_u32 v5, s3, v8
    v_mul_u32_u24 v5, 1280, v5
    s_mul_i32 s3, {sCS}, 160
    v_lshl_add_u32 v6, v9, 4, s3
    v_add_u32 v{bWO0}, v4, v6
    v_add_u32 v{bWO1}, v5, v6
    s_lshl_b32 s3, {sRB}, 2
    s_add_u32 s3, s3, {sLO}
    s_mul_i32 s3, s3, 40960
    s_add_u32 s3, s3, {O_OFF}
    s_lshl_b32 s4, {sHP}, 1
    s_add_u32 s4, s4, {sHI}
    s_lshl_b32 s5, s4, 10
    s_add_u32 s5, s5, s3
    v_lshl_add_u32 v{vO0}, v1, 4, s5
    s_lshl_b32 s5, s4, 8
    s_add_u32 s5, s5, s3
    s_add_u32 s5, s5, 32768
    v_lshl_add_u32 v{vO1}, v1, 3, s5
    s_mul_i32 s3, {sCS}, 80
    v_lshrrev_b32 v4, 3, v1
    v_add_u32 v4, s3, v4
    v_mul_u32_u24 v4, 3456, v4
    v_and_b32 v5, 7, v1
    v_lshl_add_u32 v4, v5, 4, v4
    s_lshl_b32 s3, {sROLE}, 7
    v_add_u32 v{bGU}, s3, v4
    s_cmp_ge_u32 {sW}, 3
    s_cselect_b32 s4, 1, 0            ; kv
    s_mul_i32 s5, s4, 3
    s_sub_u32 s5, {sW}, s5
    s_mov_b32 s70, s4
    s_mov_b32 s71, s5
    s_add_u32 s5, s5, {sRB}
    s_sub_u32 s5, s5, 2
    s_max_i32 s5, s5, 0
    s_min_i32 s5, s5, 15
    s_mul_i32 s4, s4, 80
    s_add_u32 s4, s4, 80
    s_add_u32 s4, s4, s5
    v_mov_b32 v4, s4
    v_mov_b32 v5, {sRB}
    v_cmp_gt_u32 vcc, 2, v1
    v_cndmask_b32 v4, v5, v4, vcc
    s_mul_i32 s3, {sHP}, 40
    v_and_b32 v7, 1, v1
    v_mul_u32_u24 v7, 39, v7
    v_add_u32 v7, s3, v7
    v_lshrrev_b32 v7, 7, v7
    v_lshl_add_u32 v4, v7, 4, v4
    v_lshlrev_b32 v4, 7, v4
    v_add_u32 v{vF1A}, {F1_OFF}, v4
    v_bfe_u32 v4, v1, 2, 1
    v_lshlrev_b32 v4, 9, v4
    v_and_b32 v5, 3, v1
    v_lshl_add_u32 v4, v5, 13, v4
    s_lshr_b32 s3, {sRB2}, 1
    s_and_b32 s4, s3, 3
    s_lshl_b32 s4, s4, 7
    s_lshr_b32 s3, s3, 2
    s_lshl_b32 s3, s3, 11
    s_add_u32 s3, s3, s4
    s_lshl_b32 s4, {sHI}, 10
    s_add_u32 s3, s3, s4
    s_add_u32 s3, s3, {F1_OFF + 32}
    v_add_u32 v{bF2A}, s3, v4
    v_bfe_u32 v4, v1, 2, 1
    v_lshlrev_b32 v4, 11, v4
    v_lshl_add_u32 v4, v5, 7, v4
    s_and_b32 s3, {sCT}, 14
    s_lshl_b32 s3, s3, 11
    s_and_b32 s4, {sGR}, 12
    s_lshl_b32 s4, s4, 7
    s_add_u32 s3, s3, s4
    s_add_u32 s3, s3, {F1_OFF + 32}
    v_add_u32 v4, s3, v4
    v_cmp_le_u32 vcc, 8, v1
    v_cndmask_b32 v{bF2A}, v{bF2A}, v4, vcc
    s_mul_i32 s3, s63, 200
    s_mul_i32 s4, {sW}, 25
    s_add_u32 s3, s3, s4
    v_add_u32 v4, s3, v1
    v_lshlrev_b32 v{vTO}, 7, v4
    v_subrev_u32 v4, {128 + 256*OPT.get('guh', 1)}, v0
    v_lshrrev_b32 v5, 1, v4
    s_mul_i32 s3, s63, 54
    v_add_u32 v5, s3, v5
    v_mul_u32_u24 v5, 1280, v5
    v_and_b32 v4, 1, v4
    v_lshl_add_u32 v5, v4, 7, v5
    s_and_b32 s3, s2, 7
    s_lshl_b32 s3, s3, 8
    v_add_u32 v{TD}, s3, v5
    v_lshlrev_b32 v8, 2, v1
    s_lshl_b32 s3, {sGR}, 10
    s_add_u32 s35, s3, {ST_OFF}""")
    srd(a, 44, P_WO, 819200)
    a(f"""s_lshr_b32 s3, {sW}, 1
    s_mul_i32 s41, s3, {80*1280}
    s_mul_i32 s40, s3, 10240
    s_and_b32 s3, {sW}, 1
    s_mul_i32 s3, s3, 1280
    s_add_u32 s40, s40, s3""")
    def wo_early(k):
        z, h = k >> 1, k & 1
        return f"""s_add_u32 m0, s40, {WOL + 640*h + 2560*z}
        s_add_u32 s42, s41, {8*1280*h + 20*1280*z}
        {M40}
        buffer_load_dwordx4 v{bWO0}, s[44:47], s42 offen lds
        {MALL}"""
    WE = OPT.get("we", 1); WES = OPT.get("wes", 17)
    wo_touch = f"""s_mov_b64 exec, 0x1ffffff
        global_load_dword v252, v{vTO}, s[{P_WO}:{P_WO+1}]
        {MALL}"""
    def clr_check(L):
        a(f"v_cmp_gt_u32 vcc, 4, v9\n s_cbranch_vccz {L}_OK")
        spin_head(a, L)
        a(f"""global_load_dword v9, v8, s[{P_DBG}:{P_DBG+1}] sc1
        s_waitcnt vmcnt(0)
        v_cmp_gt_u32 vcc, 4, v9""")
        spin_tail(a, L)
    a.stamp(2, 1)
    a(f"s_cmp_eq_u32 {sCT}, 15\n s_cbranch_scc1 L_HELP")
    a("s_waitcnt vmcnt(4)\n s_barrier")
    a.stamp(2); a.stamp(3, 1)
    def FA(b, t): return FR + 24*b + 4*t
    def FB(b, c): return FR + 24*b + 16 + 4*c
    def a1_reads(n):
        c, ks, b = n >> 1, n & 1, n & 1
        sl = c % 5
        base, off = vAS + 4*(sl // 2), (sl % 2) * 32768
        A = [f"ds_read_b128 {q4(FA(b, t))}, v{base+ks} offset:{off + 2048*t}" for t in range(4)]
        B = [f"ds_read_b64_tr_b16 {q2(FB(b, c2)+2*h)}, v{base+2+c2} offset:{off + 8192*ks + 1024*h}" for c2 in range(2) for h in range(2)]
        L = [B[0], B[1], A[0], B[2], B[3], A[1], A[2], A[3]]
        if EC and n == 18:
            L = [f"ds_read_b64_tr_b16 {q2(XB+2*h)}, v{base+2} offset:{off + 8192 + 1024*h}" for h in range(2)] + L
        return L
    def a1_mfmas(n, isv):
        b = n & 1; f = n == 0
        L = [(mm16(CS, ONES, FB(b, 0), f), 1)]
        for t in range(4):
            for c in range(2):
                d = ACC + 8*t + 4*c
                need = [2, 4][c] if t == 0 else 4 + t
                L.append((mm16(d, FA(b, t), FB(b, c), f) if isv else mm16(d, FB(b, c), FA(b, t), f), need))
        if EC and n == 18: L = [(mm16(CS, ONES, XB, False), 1)] + [(m, q + 2) for m, q in L]
        if EC and n == 19: L = L[1:]
        return L
    def ep_reads(isv):
        if not isv:
            return [f"ds_read_b128 {q4(TMP+4*c)}, v{vCR+c}" for c in range(2)] + \
                   [f"ds_read2_b32 {q2(TMP+8+2*t)}, v{vSR} offset0:{16*t} offset1:{128+16*t}" for t in range(4)]
        L = [f"ds_read_b32 v{TMP+2*c}, v{vCR+c}" for c in range(2)]
        for t in range(4):
            L += [f"ds_read_b128 {q4(TMP+4+8*t)}, v{vSR} offset:{64*t}", f"ds_read_b128 {q4(TMP+8+8*t)}, v{vSR} offset:{512+64*t}"]
        return L
    D = OPT.get("dist", 3)
    CKS = OPT.get("cks", 11); STS = OPT.get("sts", 16)
    for x in a1_reads(0): a(x)
    a(f"s_cmp_ge_u32 {sCT}, 10\n s_cbranch_scc1 L_A1_1")
    def a1(isv):
        tag = str(int(isv))
        a(f"L_A1_{tag}:")
        vq = ["c1"] * 4
        side = {n: [] for n in range(20)}
        for c in range(2, 10):
            for k, x in enumerate(dmaA(c)): side[2*(c - D) + (k >> 1) if c - D >= 0 else 0].append((x, f"c{c}"))
        side[OPT.get("wts", 13)].append((wo_touch, "x"))
        if WE:
            for k in range(8): side[WES + (k * (20 - WES)) // 8].append((wo_early(k), "x"))
        nr = 8
        nis = [0]; stp = [0]
        def publish_stats():
            a(f"""s_mov_b64 exec, 0xffff
            ds_write_b32 v{vCW}, v{CS}
            {MALL}
            s_cmp_lg_u32 {sW}, 3
            s_cbranch_scc1 L_SW{tag}
            s_waitcnt vmcnt({nis[0] - stp[0]})
            v_max3_u32 v4, v{STV}, v{STV+1}, v{STV+2}
            v_max_u32 v4, v4, v{STV+3}
            v_cmp_eq_u32 vcc, -1, v4
            s_cbranch_vccz L_SP{tag}_OK""")
            spin_head(a, f"L_SP{tag}")
            a(f"""buffer_load_dwordx4 {q4(STV)}, v7, {WSR}, s35 offen sc1
            s_waitcnt vmcnt(0)
            v_max3_u32 v4, v{STV}, v{STV+1}, v{STV+2}
            v_max_u32 v4, v4, v{STV+3}
            v_cmp_eq_u32 vcc, -1, v4""")
            spin_tail(a, f"L_SP{tag}")
            a(f"""v_add_u32 v7, {SCR}, v7
            ds_write_b128 v7, {q4(STV)}
            L_SW{tag}:
            s_waitcnt lgkmcnt(0)
            s_barrier""")
        for n in range(20):
            c = n >> 1
            Rn = a1_reads(n + 1) if n < 19 else (ep_reads(isv) if EC else [])
            nr = len(a1_reads(n))
            M = a1_mfmas(n, isv)
            issued = 0; done = -1
            if (n & 1) and c < 9:
                last = max(i for i, t in enumerate(vq) if t == f"c{c+1}")
                a(f"s_waitcnt vmcnt({len(vq) - 1 - last})\n s_barrier")
                vq = vq[last + 1:]
                if c in (0, 1, 2, 3, 4, 5, 6, 8): a.stamp({0:4, 1:5, 2:6, 3:7, 4:8, 5:9, 6:10, 8:11}[c], 1)
            S = list(side[n])
            gap = max(1, len(M) // max(1, len(S)))
            for k, (m, need) in enumerate(M):
                if need > done:
                    a(f"s_waitcnt lgkmcnt({nr - 1 - need + issued})"); done = need
                a(m)
                if k < len(Rn): a(Rn[k]); issued += 1
                if S and (k % gap == gap - 1 or k == len(M) - 1):
                    while S:
                        x, t = S.pop(0); a(x); vq.append(t); nis[0] += 1
                        if k < len(M) - 1: break
            for x in Rn[len(M):]: a(x)
            if n == CKS:
                a(f"""s_cmp_lg_u32 {sW}, 3
                s_cbranch_scc1 L_CK{tag}
                global_load_dword v9, v8, s[{P_DBG}:{P_DBG+1}] sc1
                L_CK{tag}:""")
                ckpos = nis[0]
            if n == STS:
                a(f"s_cmp_lg_u32 {sW}, 3\n s_cbranch_scc1 L_ST{tag}\n s_waitcnt vmcnt({nis[0] - ckpos})")
                clr_check(f"L_CLR{tag}")
                a(f"""v_lshlrev_b32 v7, 4, v1
                buffer_load_dwordx4 {q4(STV)}, v7, {WSR}, s35 offen sc1
                L_ST{tag}:""")
                stp[0] = nis[0]
            if EC and n == 18: publish_stats()
        a.stamp(3); a.stamp(1, 2)
        if not EC: publish_stats()
        a.stamp(2, 2)
        if not isv:
            if not EC:
                for x in ep_reads(isv): a(x)
            for t in range(4):
                a(f"s_waitcnt lgkmcnt({3-t})\n v_mul_f32 v{TMP+16+2*t}, s36, v{TMP+9+2*t}")
                for e in range(0, 8, 2):
                    d = ACC + 8*t + e
                    a(f"v_pk_fma_f32 {q2(d)}, {q2(TMP+e)}, {q2(TMP+8+2*t)}, {q2(d)} op_sel_hi:[1,0,1] neg_lo:[1,0,0] neg_hi:[1,0,0]")
                for e in range(0, 8, 2):
                    d = ACC + 8*t + e
                    a(f"v_pk_mul_f32 {q2(d)}, {q2(d)}, {q2(TMP+16+2*t)} op_sel_hi:[1,0]")
                for e in range(0, 8, 2): a(f"v_cvt_pk_bf16_f32 v{PK+4*t+e//2}, v{ACC+8*t+e}, v{ACC+8*t+e+1}")
                a(f"""v_permlane16_swap_b32 v{PK+4*t}, v{PK+4*t+2}
                v_permlane16_swap_b32 v{PK+4*t+1}, v{PK+4*t+3}
                buffer_store_dwordx4 {q4(PK+4*t)}, v{vST}, {WSR}, s37 offen offset:{(t >> 1)*T32 + (t & 1)*256} sc1""")
        else:
            if not EC:
                for x in ep_reads(isv): a(x)
            for p in range(2):
                a(f"s_waitcnt lgkmcnt({4-4*p})")
                for c in range(2):
                    o = PK + 8*p + 4*c
                    ds = [(ACC + 8*(2*p+tt) + 4*c + e, 2*p + tt, e, tt) for tt in range(2) for e in (0, 2)]
                    for d, t, e, tt in ds:
                        a(f"v_pk_fma_f32 {q2(d)}, {q2(TMP+4+8*t+e)}, {q2(TMP+2*c)}, {q2(d)} op_sel_hi:[1,0,1] neg_lo:[1,0,0] neg_hi:[1,0,0]")
                    for d, t, e, tt in ds: a(f"v_pk_mul_f32 {q2(d)}, {q2(d)}, {q2(TMP+8+8*t+e)}")
                    for d, t, e, tt in ds: a(f"v_cvt_pk_bf16_f32 v{o+2*tt+e//2}, v{d}, v{d+1}")
                    a(f"""v_permlane16_swap_b32 v{o}, v{o+2}
                    v_permlane16_swap_b32 v{o+1}, v{o+3}
                    buffer_store_dwordx4 {q4(o)}, v{vST+c}, {WSR}, s37 offen offset:{p*T32} sc1""")
        a("s_branch L_HOP")
    a1(False); a1(True)
    a(f"""L_HELP:
    v_mov_b32 v4, 0
    v_mov_b32 v5, 0
    v_mov_b32 v6, 0
    v_mov_b32 v7, 0""")
    for i in range(20):
        a(f"s_waitcnt vmcnt({19-i})")
        for r in range(4):
            x = HX + 4*i + r
            a(f"v_dot2_f32_bf16 v{4+2*(r&1)}, v{x}, v{ONES}, v{4+2*(r&1)}\n v_dot2_f32_bf16 v{5+2*(r&1)}, v{x}, v{x}, v{5+2*(r&1)}")
    a("""s_nop 3
    v_add_f32 v4, v4, v6
    v_add_f32 v5, v5, v7""")
    for qp in ("[1,0,3,2]", "[2,3,0,1]"):
        for v in (4, 5): a(f"v_add_f32_dpp v{v}, v{v}, v{v} quad_perm:{qp} row_mask:0xf bank_mask:0xf")
    ln_scalars(a, 4, 5)
    a(f"""v_and_b32 v6, 1, v1
    v_cmp_eq_u32 vcc, 1, v6
    v_cndmask_b32 v4, v4, v5, vcc
    v_min_u32 v4, -2, v4
    v_and_b32 v5, 60, v1
    v_lshl_add_u32 v5, v6, 9, v5
    s_lshl_b32 s3, {sW}, 6
    s_add_u32 s3, s3, s35
    s_barrier
    s_mov_b32 exec_lo, 0x33333333
    s_mov_b32 exec_hi, 0x33333333
    buffer_store_dword v4, v5, {WSR}, s3 offen sc1
    {MALL}""")
    a(wo_touch)
    if WE:
        for k in range(8): a(wo_early(k))
    a(f"""v_mov_b32 v9, 0
    s_cmp_lg_u32 {sW}, 3
    s_cbranch_scc1 L_HOP""")
    clr_check("L_CLRH")

    a("L_HOP:")
    a.stamp(4); a.stamp(3, 2)
    RPD = 56
    srd(a, 8, P_WO, 819200)
    a(f"""s_and_b32 s31, {sW}, 1
    s_mul_i32 s31, s31, 1280
    s_mov_b32 s101, s59""")
    def dma_wo(p):
        if OPT.get("nowo"): return
        kh, q = p // 5, p % 5
        if q < 4: v, so, hs = bWO0, (4*kh + q) * 80 * 1280, 8 * 1280
        else:     v, so, hs = bWO1, kh * 320 * 1280, 40 * 1280
        zs = 20 * 1280 if q < 4 else 80 * 1280
        for z in range(4):
            for h in range(2):
                a(f"""s_add_u32 m0, s31, {WOL + p*10240 + 640*h + 2560*z}
                s_mov_b32 s3, {so + hs*h + zs*z}
                buffer_load_dwordx4 v{v}, s[8:11], s3 offen lds""")
    WO2 = 10
    def gu_loads(L, vg):
        if OPT.get("nogu"): return
        a(f"""s_cmp_lg_u32 {sHI}, {OPT.get("guh", 1)}
        s_cbranch_scc1 {L}
        s_cmp_ge_u32 {sROLE}, 32
        s_cbranch_scc1 {L}
        s_cmp_ge_u32 {sLO}, 2
        s_cselect_b32 s4, s{P_U}, s{P_G}
        s_cselect_b32 s5, s{P_U+1}, s{P_G+1}
        s_and_b32 s3, {sLO}, 1
        s_mul_i32 s3, s3, {40*3456}
        v_add_u32 v4, s3, v{vg}""")
        for i in range(5):
            a(f"global_load_dwordx4 {q4(RPD+4*i)}, v4, s[4:5] nt")
            if i < 4: a(f"v_add_u32 v4, {8*3456}, v4")
        a(f"{L}:")
    Q0, Q1 = 16, 20
    POOL = 24
    MK = 88; O = 96
    a(f"""v_and_b32 v2, 31, v0
    v_lshrrev_b32 v3, 5, v1
    s_mul_i32 s3, {sHP}, {64*T32}
    s_lshl_b32 s4, {sRB}, 2
    s_add_u32 s5, s4, {sLO}
    s_mul_i32 s5, s5, {T32}
    s_add_u32 s5, s5, s3
    v_lshl_add_u32 v4, v2, 4, s5
    s_mul_i32 s5, {sHI}, 1536
    v_lshl_add_u32 v5, v3, 9, v4
    v_add_u32 v80, s5, v5
    s_lshl_b32 s5, {sHI}, 3
    v_add_u32 v81, s5, v4
    v_mov_b32 v{Q1}, 0
    v_mov_b32 v{Q1+1}, 0
    s_sub_u32 s4, s4, 8
    s_mul_i32 s4, s4, {T32}
    s_mul_i32 s5, s71, 10240
    s_add_u32 s4, s4, s5
    v_lshl_add_u32 v82, v1, 4, s4
    s_mul_i32 s6, s70, 30720
    s_add_u32 s71, s5, s6
    s_add_u32 s71, s71, {KL}
    s_mul_i32 s6, s70, {V_OFF - K_OFF}
    s_add_u32 s3, s3, s6
    s_add_u32 s3, s3, {K_OFF}
    s_add_u32 s4, s{P_WS}, s3
    s_addc_u32 s5, s{P_WS+1}, 0""")
    srd(a, 12, 4, 64*T32)
    kappa(a, 4, 2, 5)
    a(f"""s_mul_i32 s3, {sLO}, {T32}
    s_add_u32 s3, s3, {KL}
    s_mul_i32 s4, {sHI}, 1536
    s_add_u32 s4, s4, s3
    v_lshlrev_b32 v5, 4, v4
    v_lshl_add_u32 v{vK0}, v3, 9, v5
    v_add_u32 v{vK0}, s4, v{vK0}
    s_lshl_b32 s4, {sHI}, 3
    s_add_u32 s4, s4, s3
    s_add_u32 s4, s4, 1024
    v_add_u32 v{vK1}, s4, v5
    v_cmp_gt_u32 vcc, 20, v2
    v_cndmask_b32 v5, 0, v5, vcc
    v_mul_u32_u24 v6, 640, v3
    s_mul_i32 s4, {sHI}, 320
    s_add_u32 s4, s4, s3
    s_add_u32 s4, s4, 30720
    v_add3_u32 v{vV}, v5, v6, s4
    v_lshlrev_b32 v4, 3, v3
    v_sub_u32 v4, v2, v4
    v_mov_b32 v5, 0xffff
    v_mov_b32 v6, 0xffff0000""")
    MS = 32
    for r in range(16): a(f"v_cmp_gt_i32 s[{MS+2*r}:{MS+1+2*r}], {(r&7) + 16*(r>>3)}, v4")
    for i in range(8):
        a(f"""v_cndmask_b32 v7, 0, v5, s[{MS+4*i}:{MS+1+4*i}]
        v_cndmask_b32 v8, 0, v6, s[{MS+2+4*i}:{MS+3+4*i}]
        v_or_b32 v{MK+i}, v7, v8""")
    FS = [128, 144, 160]
    FK = [176, 182, 188]
    FV = [POOL, POOL+8, POOL+16]; FV0 = POOL + 24
    FP = [200, 208]
    if OPT.get("z1", 1):
        a(f"v_mov_b32 v{POOL}, 0\n s_mov_b32 exec_lo, 0x11000000\n s_mov_b32 exec_hi, 0x11000000\n v_mov_b32 v{POOL}, 0x3f803f80\n {MALL}")
        for r in range(1, 32): a(f"v_mov_b32 v{POOL+r}, v{POOL}")
    else:
        for r in range(32): a(f"v_mov_b32 v{POOL+r}, 0x3f803f80")
    a(f"""s_lshl_b32 s3, {sRB}, 2
    s_add_u32 s3, s3, {sLO}
    s_sub_i32 s30, 8, s3              ; n_invalid
    s_mov_b32 s28, 0xfffff
    s_mov_b32 s29, 0xfffff""")
    XR, WR, WRS, F2V = 224, 234, 224, 244
    FH = OPT.get('fh', 0)
    LW = 3 if FH else 7
    vXA_, vROW = 84, 85
    def early_loads(L, who=3):
        a(f"""v_and_b32 v4, 15, v0
        v_bfe_u32 v5, v0, 4, 2
        s_lshl_b32 s3, {sRB2}, 6
        s_lshl_b32 s4, {sLO}, 4
        s_add_u32 s3, s3, s4
        v_add_u32 v4, s3, v4
        v_mul_u32_u24 v4, 1280, v4
        v_mul_u32_u24 v5, 40, v5
        s_mul_i32 s3, {sCS}, 160
        v_add_u32 v5, s3, v5
        v_add_u32 v4, v5, v4
        s_cmp_lg_u32 {sHI}, {FH}
        s_cbranch_scc1 {L}_H""")
        if who & 1: a(f"""global_load_dwordx4 {q4(XR)}, v4, s[{P_X}:{P_X+1}]
        global_load_dwordx4 {q4(XR+4)}, v4, s[{P_X}:{P_X+1}] offset:16
        global_load_dwordx2 {q2(XR+8)}, v4, s[{P_X}:{P_X+1}] offset:32
        global_load_dwordx4 {q4(WR)}, v5, s[{P_WR}:{P_WR+1}]
        global_load_dwordx4 {q4(WR+4)}, v5, s[{P_WR}:{P_WR+1}] offset:16
        global_load_dwordx2 {q2(WR+8)}, v5, s[{P_WR}:{P_WR+1}] offset:32""")
        a(f"""s_branch {L}_D
        {L}_H:
        v_lshlrev_b32 v4, 2, v1""")
        for i in range(5 if who & 2 else 0): a(f"global_load_dword v{WRS+i}, v4, s[{P_WR}:{P_WR+1}] offset:{256*i}")
        a(f"{L}_D:")
    PLAN = OPT.get("plan", 6)
    pre, post, inb = [
        ([[4], [5], [6], [7]], [[], [], [], [8, 9]], []),
        ([[], [], [4], [5]], [[], [], [], [6, 7]], [8, 9]),
        ([[], [], [], [4]], [[], [], [], [5, 6, 7]], [8, 9]),
        ([[], [], [4], [5]], [[], [], [], [6, 7, 8, 9]], []),
        ([[], [], [], [4]], [[], [], [], [5]], [6, 7, 8, 9]),
        ([[4], [5], [6], [7]], [[], [], [], []], [8, 9]),
        ([[], [], [], [4]], [[7], [8], [9], [5, 6]], []),
        ([[], [], [], []], [[7], [8], [9], [4, 5, 6]], []),
        ([[], [], [], [4, 5]], [[7], [8], [9], [6]], []),
        ([[4], [5], [], []], [[7], [8], [9], [6]], []),
        ([[4], [], [], []], [[7], [8], [9], [5, 6]], []),
        ([[4], [5], [], []], [[], [], [9], [6, 7, 8]], []),
    ][PLAN]
    a.stamp(6, 2)
    a(f"s_lshr_b32 s4, {sW}, 1\n v_mov_b32 v6, s101\n v_mov_b32 v7, 1")
    for pr in range(4):
        if pr < 3: a(f"s_cmp_lg_u32 s4, {pr}\n s_cbranch_scc1 L_PR{pr}")
        if pre[pr]: a(M40)
        for p in pre[pr]: dma_wo(p)
        a(f"{MALL}\n s_waitcnt vmcnt({8*len(pre[pr])})")
        if pr < 3: a(f"s_branch L_PRD\n L_PR{pr}:")
    a("L_PRD:")
    a.stamp(4, 2)
    a(f"""s_barrier
    s_cmp_lg_u32 {sW}, 7
    s_cbranch_scc1 L_NOF1
    s_mov_b64 exec, 1
    buffer_store_dword v7, v6, {WSR}, 0 offen sc1
    {MALL}
    L_NOF1:""")
    a.stamp(5, 2)
    for pr in range(4):
        if post[pr]:
            a(f"s_cmp_lg_u32 s4, {pr}\n s_cbranch_scc1 L_PO{pr}\n {M40}")
            for p in post[pr]: dma_wo(p)
            a(f"{MALL}\n L_PO{pr}:")
    a.stamp(7, 2)
    PSL = OPT.get("psl", 4)
    SP = OPT.get("sp", 0)
    if SP:
        a(f"""v_readlane_b32 s66, v{vF1A}, 0
        v_readlane_b32 s67, v{vF1A}, 1
        v_readlane_b32 s0, v{vF1A}, 2
        v_readlane_b32 s1, v{vF1A}, 3
        s_cmp_ge_u32 {sW}, 6
        s_cbranch_scc1 L_WOH""")
        spin_head(a, "L_F1POLL")
        a(f"""s_load_dword s4, s[{P_WS}:{P_WS+1}], s66 glc
        s_load_dword s5, s[{P_WS}:{P_WS+1}], s67 glc
        s_load_dword s6, s[{P_WS}:{P_WS+1}], s0 glc
        s_load_dword s7, s[{P_WS}:{P_WS+1}], s1 glc
        s_waitcnt lgkmcnt(0)
        s_or_b32 s6, s6, s7
        s_xor_b32 s6, s6, 1
        s_or_b32 s4, s4, s5
        s_cmp_eq_u32 s4, 1
        s_cbranch_scc1 L_F1POLL_OK
        s_sleep {PSL}
        s_branch L_F1POLL
        L_F1POLL_OK:""")
    else:
        a(f"""s_cmp_ge_u32 {sW}, 6
    s_cbranch_scc1 L_WOH
    s_mov_b64 exec, 15""")
        if OPT.get("fsl", 0): a(f"s_sleep {OPT['fsl']}")
        spin_head(a, "L_F1POLL")
        a(f"""buffer_load_dword v4, v{vF1A}, {WSR}, 0 offen sc1
    s_waitcnt vmcnt(0)
    v_cmp_ne_u32 s[6:7], 1, v4
    s_and_b64 vcc, s[6:7], 3""")
        spin_tail(a, "L_F1POLL", PSL)
        a(MALL)
    a.stamp(5); a.stamp(8, 2)
    for i in range(10):
        if i % 4 == 0:
            a(f"s_add_u32 m0, s71, {1024*i}\n v_add_u32 v4, {1024*i}, v82")
        a(f"buffer_load_dwordx4 v4, s[12:15], 0 offen offset:{1024*(i % 4)} sc1 lds")
    a(f"s_cmp_eq_u32 s6, 0\n s_cbranch_scc1 L_QPOLL_OK")
    if SP:
        a("L_WOH:")
        spin_head(a, "L_QPOLL")
        a(f"""s_load_dword s6, s[{P_WS}:{P_WS+1}], s0 glc
        s_load_dword s7, s[{P_WS}:{P_WS+1}], s1 glc
        s_waitcnt lgkmcnt(0)
        s_or_b32 s6, s6, s7
        s_cmp_eq_u32 s6, 1
        s_cbranch_scc1 L_QPOLL_OK
        s_sleep {PSL}
        s_branch L_QPOLL
        L_QPOLL_OK:""")
    else:
        a(f"""L_WOH:
    s_mov_b64 exec, 12""")
        spin_head(a, "L_QPOLL")
        a(f"""buffer_load_dword v4, v{vF1A}, {WSR}, 0 offen sc1
    s_waitcnt vmcnt(0)
    v_cmp_ne_u32 vcc, 1, v4""")
        spin_tail(a, "L_QPOLL", PSL)
    a(f"""{MALL}
    buffer_load_dwordx4 {q4(Q0)}, v80, {WSR}, 0 offen sc1
    s_mov_b32 exec_hi, 0
    buffer_load_dwordx2 {q2(Q1)}, v81, {WSR}, 0 offen offset:1024 sc1
    {MALL}""")
    a.stamp(6); a.stamp(9, 2)
    early_loads("L_EL0", 3 - OPT.get("elb", 1))
    a("s_waitcnt vmcnt(0)\n s_barrier")
    a.stamp(7); a.stamp(1, 4); a.stamp(10, 2)
    if OPT.get("bpr", 0): a(f"s_cmp_lg_u32 {sHI}, {OPT['bpr'] - 1}\n s_cbranch_scc1 L_NBP\n s_setprio 1\n L_NBP:")
    def kread(r, t): return f"ds_read_b128 {q4(r)}, v{vK0} offset:{T32*t}\n ds_read_b64 {q2(r+4)}, v{vK1} offset:{T32*t}"
    def vread(r, t, chk=True):
        m = f"s_cmp_gt_i32 s30, {t}\n s_cselect_b64 exec, -1, s[28:29]" if chk else "s_mov_b64 exec, s[28:29]"
        return f"""{m}
        ds_read_b128 {q4(r)}, v{vV} offset:{T32*t}
        ds_read_b128 {q4(r+4)}, v{vV} offset:{T32*t+1280}
        {MALL}"""
    def s1(s, k): return f"v_mfma_f32_32x32x16_bf16 {r16(s)}, {q4(k)}, {q4(Q0)}, 0"
    def s2(s, k): return f"v_mfma_f32_32x32x8_bf16 {r16(s)}, {q2(k+4)}, {q2(Q1)}, {r16(s)}"
    def pvm(v, p, first=False): return f"v_mfma_f32_32x32x16_bf16 {r16(O)}, {q4(v)}, {q4(p)}, {'0' if first else r16(O)}"
    seq = [8, 0, 7, 6, 5, 4, 3, 2, 1]
    vseq = [8, 7, 6, 5, 4, 3, 2, 1]
    def vbuf(t): return FV0 if t == 0 else FV[vseq.index(t) % 3]
    for n in range(3): a(kread(FK[n], seq[n]))
    def down_touch(vt):
        if OPT.get("notd"): return
        a(f"""s_and_b32 s3, s2, 7
        s_cmp_lt_u32 s3, 5
        s_cselect_b32 s3, 108, 0
        v_subrev_u32 v4, {128 + 256*OPT.get('guh', 1)}, v0
        v_cmp_gt_u32 vcc, s3, v4""")
        masked_load(a, 9, vt, P_D, "L_TD")
    def wo_slot(k):
        if 2*k < len(inb):
            a(f"s_lshr_b32 s4, {sW}, 1")
            for pr in range(2):
                a(f"s_cmp_lg_u32 s4, {pr}\n s_cbranch_scc1 L_WS{k}_{pr}\n {M40}"); dma_wo(inb[2*k + pr]); a(f"{MALL}\n L_WS{k}_{pr}:")
    a(vread(vbuf(8), 8, False)); a(vread(FV0, 0)); a(vread(vbuf(7), 7))
    a(f"s_waitcnt lgkmcnt(10)\n {s1(FS[0], FK[0])}\n {s2(FS[0], FK[0])}")
    a(f"s_waitcnt lgkmcnt(8)\n {s1(FS[1], FK[1])}\n {s2(FS[1], FK[1])}")
    a(kread(FK[0], seq[3]))
    if OPT.get('elb', 1): early_loads('L_EL', OPT.get('elb', 1))
    wo_slot(0); wo_slot(1)
    gu_loads('L_GUB', bGU); down_touch(TD)
    a(f"s_waitcnt lgkmcnt(8)\n {s1(FS[2], FK[2])}\n {s2(FS[2], FK[2])}")
    a(kread(FK[1], seq[4]))
    for r in range(16): a(f"v_cndmask_b32 v{FS[1]+r}, v{FS[0]+r}, v{FS[1]+r}, s[{MS+2*r}:{MS+1+2*r}]")
    def tile_body(s, p, extra, mid=None):
        for gq in range(4):
            for r in range(4*gq, 4*gq + 4):
                a(f"v_exp_f32{'_e64' if OPT.get('e64') else ''} v{s+r}, v{s+r}")
                if mid and r == 4*gq + 1 and gq < len(mid) and mid[gq]: a(mid[gq])
            if gq < len(extra) and extra[gq]: a(extra[gq])
            if gq > 0:
                for k in (2*gq - 2, 2*gq - 1): a(f"v_cvt_pk_bf16_f32 v{p+k}, v{s+2*k}, v{s+2*k+1}")
        for k in (6, 7): a(f"v_cvt_pk_bf16_f32 v{p+k}, v{s+2*k}, v{s+2*k+1}")
    tile_body(FS[1], FP[0], [f"s_waitcnt lgkmcnt(2)\n {s1(FS[0], FK[0])}", s2(FS[0], FK[0]), kread(FK[2], seq[5]) + "\n" + vread(vbuf(6), 6), None])
    for k in range(8): a(f"v_and_b32 v{216+k}, v{MK+k}, v{FP[0]+k}")
    for k in range(8): a(f"v_xor_b32 v{FP[0]+k}, v{216+k}, v{FP[0]+k}")
    a(pvm(FV0, 216, True)); wo_slot(2); a(pvm(FV0+4, 220))
    def repack(vm):
        if OPT.get("nogu") or OPT.get("norp"): return
        a(f"""s_cmp_ge_u32 {sROLE}, 32
        s_cbranch_scc1 L_NORP
        s_cmp_lg_u32 {sHI}, {OPT.get("guh", 1)}
        s_cbranch_scc1 L_NORP
        s_mul_i32 s3, {sROLE}, {8*20480}
        s_mul_i32 s4, {sCS}, 1280
        s_add_u32 s3, s3, s4
        s_lshr_b32 s4, {sLO}, 1
        s_mul_i32 s4, s4, 10240
        s_add_u32 s3, s3, s4
        s_and_b32 s4, {sLO}, 1
        s_mul_i32 s4, s4, 640
        s_add_u32 s3, s3, s4
        s_add_u32 s3, s3, {RP_OFF}
        v_lshrrev_b32 v8, 3, v1
        v_mul_u32_u24 v8, {20480 - 128}, v8
        v_lshl_add_u32 v8, v1, 4, v8
        v_and_b32 v4, 7, v1
        v_lshrrev_b32 v5, 3, v1
        v_lshl_add_u32 v4, v4, 3, v5
        v_lshlrev_b32 v4, 2, v4
        s_waitcnt vmcnt({vm}) lgkmcnt(0)""")
        for r in range(20):
            a(f"ds_bpermute_b32 v{RPD+r}, v4, v{RPD+r}")
        a("s_waitcnt lgkmcnt(0)")
        for i in range(5): a(f"buffer_store_dwordx4 {q4(RPD+4*i)}, v8, {WSR}, s3 offen offset:{128*i} sc1")
        a("L_NORP:")

    prevP, prevT = FP[0], 8
    for n in range(2, 9):
        t = seq[n]; p = FP[(n - 1) % 2]
        ex = [None]*4
        ex[0] = f"s_waitcnt lgkmcnt(0)\n {pvm(vbuf(prevT), prevP)}"
        ex[1] = pvm(vbuf(prevT) + 4, prevP + 4)
        if n + 2 <= 8:
            nb = (n + 2) % 3
            ex[2] = s1(FS[nb], FK[nb])
            ex[3] = s2(FS[nb], FK[nb])
        post = []
        if n + 4 <= 8: post.append(kread(FK[(n + 4) % 3], seq[n + 4]))
        if t - 2 >= 1: post.append(vread(vbuf(t - 2), t - 2))
        if OPT.get("bmid"):
            mid = [None, None, None, None]
            if n + 4 <= 8: mid[1] = post[0]
            if t - 2 >= 1: mid[3] = post[-1]
            tile_body(FS[n % 3], p, ex, mid)
        else:
            tile_body(FS[n % 3], p, ex)
            for x in post: a(x)
        wo_slot(n + 1)
        if n == OPT.get("rpn", 10): repack(0)
        prevP, prevT = p, t
    a(f"s_waitcnt lgkmcnt(0)\n {pvm(vbuf(prevT), prevP)}\n {pvm(vbuf(prevT)+4, prevP+4)}")
    a(f"""v_max3_f32 v4, abs(v{O}), abs(v{O+1}), abs(v{O+2})
    v_max3_f32 v5, abs(v{O+3}), abs(v{O+4}), abs(v{O+5})
    v_max3_f32 v4, abs(v{O+6}), abs(v{O+7}), v4
    v_max3_f32 v5, abs(v{O+8}), abs(v{O+9}), v5
    v_max3_f32 v4, abs(v{O+10}), abs(v{O+11}), v4
    v_max_f32 v4, v4, v5
    v_cmp_nlt_f32 vcc, {f2u(2.0**-60):#x}, v{O+12}
    s_mov_b64 s[4:5], vcc
    v_cmp_ngt_f32 vcc, {f2u(2.0**60):#x}, v{O+12}
    s_or_b64 s[4:5], s[4:5], vcc
    v_cmp_ngt_f32 vcc, {f2u(2.0**120):#x}, v4
    s_or_b64 vcc, s[4:5], vcc""")
    if OPT.get("forcefb"): a("s_branch L_FALLBACK")
    a(f"""s_cbranch_vccnz L_FALLBACK
    L_BDONE:
    v_rcp_f32 v4, v{O+12}""")
    for r in range(0, 12, 2): a(f"v_pk_mul_f32 {q2(O+r)}, {q2(O+r)}, v[4:5] op_sel_hi:[1,0]")
    for k in range(6): a(f"v_cvt_pk_bf16_f32 v{24+k}, v{O+2*k}, v{O+2*k+1}")
    a(f"""buffer_store_dwordx4 v[24:27], v{vO0}, {WSR}, 0 offen sc1
    s_mov_b32 exec_hi, 0
    buffer_store_dwordx2 v[28:29], v{vO1}, {WSR}, 0 offen sc1
    {MALL}""")
    if OPT.get("bpr", 0): a("s_setprio 0")
    a.stamp(8)
    if OPT.get("rpn", 10) == 9: repack(2)
    a.stamp(2, 4)

    XU, WU = 176, 196
    OF, CAC, CWF = 32, 72, 92
    NB = 4
    HP = 216
    OUTP = 228
    KSH = OPT.get('ksh', 7)
    OFL = ['', 'nt', 'sc1', 'sc0'][OPT.get('ofl', 0)]
    a(f"""v_mov_b32 v22, v{bF2A}
    v_and_b32 v2, 15, v0
    v_lshrrev_b32 v3, 4, v1
    s_lshl_b32 s3, {sRB2}, 6
    s_lshl_b32 s4, {sLO}, 4
    s_add_u32 s3, s3, s4
    v_add_u32 v20, s3, v2             ; row
    v_mul_u32_u24 v4, 1280, v20
    v_mul_u32_u24 v17, 40, v3
    s_mul_i32 s3, {sCS}, 160
    v_add3_u32 v16, v17, v4, s3""")
    rho(a, 21, 5)
    a(f"""v_mul_u32_u24 v4, 160, v21
    v_and_b32 v5, 3, v1
    v_lshlrev_b32 v21, 5, v21
    v_lshl_add_u32 v21, v5, 3, v21
    v_mul_u32_u24 v5, 40, v5
    s_mul_i32 s3, {sHI}, 51200
    v_add3_u32 v18, v4, v5, s3
    s_lshl_b32 s3, {sRB2}, 1
    s_lshr_b32 s4, {sLO}, 1
    s_add_u32 s3, s3, s4
    s_mul_i32 s3, s3, 40960
    s_add_u32 s3, s3, {O_OFF}
    s_lshl_b32 s4, {sHI}, 14
    s_add_u32 s29, s3, s4
    s_lshl_b32 s4, {sHI}, 12
    s_add_u32 s33, s3, s4
    s_add_u32 s33, s33, 32768
    s_and_b32 s4, {sLO}, 1
    s_lshl_b32 s4, s4, 4
    v_add_u32 v4, s4, v2
    v_lshlrev_b32 v5, 9, v3
    v_lshl_add_u32 v15, v4, 4, v5
    v_lshl_add_u32 v14, v4, 3, v5
    s_lshl_b32 s30, {sROLE}, 3
    s_add_u32 s30, s30, {sCS}
    s_lshl_b32 s32, {sW}, 10
    s_mul_i32 s3, {sLO}, 5120
    s_add_u32 s34, s3, {RED}
    v_lshl_add_u32 v13, v1, 4, s34
    s_lshl_b32 s3, {sRB2}, 13
    s_lshl_b32 s4, {sLO}, 8
    s_add_u32 s3, s3, s4
    s_add_u32 s37, s3, {PART_OFF}
    v_lshlrev_b32 v10, 4, v2""")
    ROT = OPT.get("crot", 1)
    for ks in range(8):
        a(f"""s_add_u32 s3, {sCS}, {ks}
        s_and_b32 s3, s3, 7""" if ROT else f"s_mov_b32 s3, {ks}")
        a(f"""s_lshl_b32 s4, s3, 11
        s_add_u32 s{40+ks}, s29, s4
        s_mul_i32 s4, s3, 5120
        v_add_u32 v{246+ks}, s4, v18""")
    a("s_waitcnt vmcnt(2)")
    LATE = OPT.get("rpn", 10) == 10
    if LATE: assert OPT.get("guh", 1) == 1
    for i in range(4 if LATE else 0, 20): a(f"v_mov_b32 v{CAC+i}, 0")
    a(f"s_cmp_lg_u32 {sHI}, {FH}\n s_cbranch_scc1 L_CB")
    for i in range(10):
        a(f"""v_lshlrev_b32 v{CAC+2*i}, 16, v{XR+i}
        v_and_b32 v{CAC+2*i+1}, 0xffff0000, v{XR+i}
        v_lshlrev_b32 v{WU+2*i}, 16, v{WR+i}
        v_and_b32 v{WU+2*i+1}, 0xffff0000, v{WR+i}""")
    a(f"""L_CB:
    v_mov_b32 v4, s101
    v_mov_b32 v5, 1
    s_waitcnt vmcnt(0)""")
    a.stamp(3, 4)
    a(f"""s_barrier
    s_cmp_lg_u32 {sW}, 0
    s_cbranch_scc1 L_NOF2
    s_mov_b64 exec, 1
    buffer_store_dword v5, v4, {WSR}, 0 offen offset:32 sc1
    {MALL}
    L_NOF2:""")
    if LATE:
        repack(0)
        a(f"s_cmp_eq_u32 {sHI}, {FH}\n s_cbranch_scc1 L_NZ")
        for i in range(4): a(f"v_mov_b32 v{CAC+i}, 0")
        a("L_NZ:")
    WD1 = OPT.get("wd1", 3)
    def wd_lds(j): return [GW, GW + 8192, 153600][j] if j < WD1 else WOL + 8192*j
    def wd_dma(js, L, both=False):
        a(f"""s_sub_u32 s3, s30, 256
        s_lshl_b32 s3, s3, 5
        v_lshrrev_b32 v5, 1, v1""")
        kappa(a, 6, 5, 4)
        a(f"""v_mul_u32_u24 v6, 1280, v6
        v_and_b32 v4, 1, v1
        v_lshl_add_u32 v6, v4, 4, v6
        v_add_u32 v6, s3, v6
        s_mul_i32 s4, {sW}, {32*1280}""")
        srd(a, 12, P_D, 2211840)
        for j in js:
            a(f"""s_add_u32 m0, s32, {wd_lds(j)}
            s_add_u32 s3, s4, {8*32*1280*j}
            buffer_load_dwordx4 v6, s[12:15], s3 offen lds""")
            if both:
                d = 4 if FH == 0 else -4
                a(f"""s_add_u32 m0, s32, {wd_lds(j) + 1024*d}
                s_add_u32 s3, s4, {8*32*1280*j + 32*1280*d}
                buffer_load_dwordx4 v6, s[12:15], s3 offen lds""")
    a(f"s_cmp_lt_u32 {sROLE}, 32\n s_cbranch_scc1 L_NWD1")
    wd_dma(range(WD1), "1")
    a("L_NWD1:")
    def c_rd(ks):
        b = ks % NB
        ad, off = (246 + ks, 0) if ks < 8 else (18, ks * 5120)
        return [f"ds_read_b64_tr_b16 {q2(CWF+20*b+4*t+2*h)}, v{ad} offset:{off + h*1280 + 8*t}" for t in range(5) for h in range(2)]
    a.stamp(9); a.stamp(4, 4)
    PRE = OPT.get("cpre", 2)
    def o_load(ks):
        if ks < 8: return f"buffer_load_dwordx4 {q4(OF+4*ks)}, v15, {WSR}, s{40+ks} offen sc1"
        return "\n".join(f"buffer_load_dwordx2 {q2(OF+4*ks+2*hh)}, v14, {WSR}, s33 offen offset:{(ks-8)*2048 + hh*256} sc1" for hh in range(2))
    def rp_dma(L, cond):
        a(f"""s_cmp_ge_u32 {sROLE}, 32
        s_cbranch_scc1 {L}
        s_cmp_eq_u32 s56, 0
        s_cbranch_{cond} {L}
        s_mul_i32 s3, s30, 20480
        s_mul_i32 s4, {sLO}, 5120
        s_add_u32 s3, s3, s4
        s_add_u32 s3, s3, {RP_OFF}
        s_add_u32 m0, s4, {GW}
        v_lshlrev_b32 v7, 4, v1""")
        for j in range(4): a(f"buffer_load_dwordx4 v7, {WSR}, s3 offen offset:{1024*j} sc1 lds")
        a(f"""s_add_u32 m0, s4, {GW + 4096}
        s_add_u32 s3, s3, 4096
        buffer_load_dwordx4 v7, {WSR}, s3 offen sc1 lds
        {L}:""")
    RPE = OPT.get("rpe", 0)
    for ks in range(NB):
        for r in c_rd(ks): a(r)
    if OPT.get("cprio", 0): a(f"s_cmp_eq_u32 {sHI}, {FH}\n s_cbranch_scc1 L_NPR\n s_setprio 2\n L_NPR:")
    if RPE: a(f"s_cmp_eq_u32 {sHI}, {FH}\n s_mov_b32 s3, 0xff\n s_cselect_b32 exec_lo, 0xffff, s3\n s_mov_b32 exec_hi, 0")
    else: a("s_mov_b64 exec, 0xff")
    if OPT.get("fsl2", 0): a(f"s_sleep {OPT['fsl2']}")
    spin_head(a, "L_F2POLL")
    a(f"""buffer_load_dword v4, v22, {WSR}, 0 offen sc1
    s_waitcnt vmcnt(0)
    v_cmp_ne_u32 s[56:57], 1, v4
    s_and_b64 vcc, s[56:57], 0xff""")
    DYN = OPT.get("dyn", 0)
    if DYN:
        a(f"""s_cbranch_vccz L_F2POLL_OK
        s_bcnt1_i32_b32 s4, vcc_lo
        s_cmp_le_u32 s4, {OPT.get("dynm", 5)}
        s_cbranch_scc1 L_DYN""")
    spin_tail(a, "L_F2POLL", OPT.get("psl2", 4))
    a(MALL)
    a.stamp(8, 4)
    if not RPE: a("s_mov_b32 s56, 1")
    for ks in range(10): a(o_load(ks))
    for ks in range(10):
        lg = 0 if ks in (0, 9) else 10
        a(f"s_waitcnt vmcnt({11-ks if ks < 8 else 2*(9-ks)}) lgkmcnt({lg})")
        if ks == 9 and RPE == 2:
            a(f"s_cmp_lg_u32 {sHI}, {FH}\n s_cbranch_scc1 L_RP0")
            rp_dma("L_RP0", "scc0")
        R = c_rd(ks - 1 + NB) if (ks >= 1 and ks - 1 + NB < 10) else []
        for t in range(5):
            for x in R[2*t:2*t+2]: a(x)
            a(mm16(CAC+4*t, CWF+20*(ks % NB)+4*t, OF+4*ks, False))
    a("L_CDONE2:")
    def emit_dyn():
        def wrd(ks, b):
            ad, off = (246 + ks, 0) if ks < 8 else (18, ks * 5120)
            for t in range(5):
                for h in range(2): a(f"ds_read_b64_tr_b16 {q2(CWF+20*b+4*t+2*h)}, v{ad} offset:{off + h*1280 + 8*t}")
        a(f"""L_DYN:
        {MALL}
        s_mov_b32 s50, 0
        s_mov_b32 s51, 0
        s_waitcnt lgkmcnt(0)""")
        wrd(8, 2); wrd(9, 3)
        a(f"""L_DYNL:
        s_not_b32 s4, s56
        s_and_b32 s4, s4, 0xff
        s_lshl_b32 s5, s4, 8
        s_or_b32 s4, s4, s5
        s_lshr_b32 s4, s4, {sCS if ROT else 0}
        s_and_b32 s52, s4, 0xff
        s_andn2_b32 s53, s52, s50         ; new
        s_andn2_b32 s54, s50, s51         ; todo""")
        for ks in range(8):
            a(f"s_bitcmp1_b32 s53, {ks}\n s_cbranch_scc0 L_DN{ks}\n {o_load(ks)}\n L_DN{ks}:")
        a(f"s_cmp_lg_u32 s52, 0xff\n s_cbranch_scc1 L_DYNC\n {o_load(8)}\n {o_load(9)}\n L_DYNC:")
        for ks in range(8):
            a(f"s_bitcmp1_b32 s54, {ks}\n s_cbranch_scc0 L_DC{ks}")
            wrd(ks, ks & 1)
            a("s_cmp_eq_u32 s50, 0xff\n s_cbranch_scc0 L_DW" + str(ks) + "\n s_waitcnt vmcnt(4)\n L_DW" + str(ks) + ":")
            for t in range(5):
                a(f"s_waitcnt lgkmcnt({8 - 2*t})")
                a(mm16(CAC+4*t, CWF+20*(ks & 1)+4*t, OF+4*ks, False))
            a(f"L_DC{ks}:")
        a(f"""s_mov_b32 s51, s50
        s_cmp_eq_u32 s50, 0xff
        s_cbranch_scc1 L_DYNQ
        s_mov_b32 s50, s52
        s_mov_b32 s54, s53
        s_cmp_eq_u32 s52, 0xff
        s_cbranch_scc1 L_DYNC
        s_add_u32 s3, s3, 1
        s_cmp_gt_u32 s3, {SPIN_MAX}
        s_cbranch_scc1 L_END
        s_sleep {OPT.get("psl4", 1)}
        s_mov_b64 exec, 0xff
        buffer_load_dword v4, v22, {WSR}, 0 offen sc1
        s_waitcnt vmcnt(0)
        v_cmp_ne_u32 s[56:57], 1, v4
        {MALL}
        s_branch L_DYNL
        L_DYNQ:
        s_waitcnt vmcnt(0) lgkmcnt(0)""")
        for ks in (8, 9):
            for t in range(5): a(mm16(CAC+4*t, CWF+20*(ks - 6)+4*t, OF+4*ks, False))
        a("s_mov_b32 s56, 1\n s_branch L_CDONE2")
    a.stamp(5, 4)
    if PROF and OPT.get("pg") == 4: a("s_mov_b32 s99, s3")
    a(f"s_cmp_lg_u32 {sHI}, {FH}\n s_cbranch_scc0 L_CLO")
    XD = 77824
    def sel_setup():
        a(f"""v_and_b32 v150, 7, v1
        v_lshlrev_b32 v150, 2, v150
        v_add_u32 v150, {SB+SELL}, v150       ; sel[j&7]
        v_lshrrev_b32 v4, 3, v1
        v_lshlrev_b32 v153, 8, v4
        v_lshlrev_b32 v4, 2, v4
        v_add_u32 v151, {SB+SELL}, v4         ; sel[l>>3]
        v_bfe_u32 v4, v1, 1, 3
        v_lshlrev_b32 v154, 8, v4
        v_lshlrev_b32 v4, 2, v4
        v_add_u32 v152, {SB+SELL}, v4         ; sel[(l>>1)&7]
        v_bfe_u32 v4, v1, 4, 1
        v_mul_u32_u24 v6, 2560, v4
        v_lshlrev_b32 v7, 4, v2
        v_sub_u32 v160, {RED + 2560}, v6
        v_add_u32 v160, v160, v7
        s_lshl_b32 s3, {sCS}, 11
        s_lshl_b32 s4, {sW}, 8
        s_add_u32 s3, s3, s4
        s_add_u32 s3, s3, {XS_OFF}
        v_lshl_add_u32 v161, v4, 14, v7
        v_add_u32 v161, s3, v161
        s_lshl_b32 s3, {sW}, 11
        s_sub_u32 s3, s3, s4
        s_add_u32 s3, s3, {XS_OFF - EP_OFF}
        v_add_u32 v153, s3, v153
        v_add_u32 v154, s3, v154
        s_add_u32 s58, s4, {EP_OFF}
        v_and_b32 v4, 7, v1
        v_lshlrev_b32 v155, 4, v4
        v_and_b32 v4, 1, v1
        v_lshlrev_b32 v156, 4, v4
        v_add_u32 v156, 128, v156
        v_mov_b32 v157, {SB+SELL}
        s_mul_i32 s59, {sW}, 1280
        s_add_u32 s5, s59, {GW}
        s_add_u32 s59, s59, {XD}
        v_and_b32 v4, 7, v2
        v_lshlrev_b32 v6, 4, v3
        v_lshl_add_u32 v158, v4, 7, v6
        v_add_u32 v158, s59, v158
        v_and_b32 v6, 16, v6
        v_lshl_add_u32 v159, v4, 5, v6
        v_add_u32 v159, s59, v159
        v_bfe_u32 v4, v1, 2, 2
        v_lshl_add_u32 v4, v3, 3, v4
        v_lshlrev_b32 v4, 4, v4
        v_and_b32 v6, 1, v1
        v_lshl_add_u32 v4, v6, 3, v4
        v_bfe_u32 v6, v1, 1, 1
        v_mul_u32_u24 v6, 10240, v6
        v_add3_u32 v162, v4, v6, s5
        s_add_u32 s3, s32, {DRED}
        v_lshl_add_u32 v163, v1, 4, s3""")
        srd(a, 8, P_OUT, 2621440)
    for t in range(5): a(f"ds_write_b128 v13, {q4(CAC+4*t)} offset:{1024*t}")
    a(f"""v_mov_b32 v24, 0
    v_mov_b32 v25, 0
    v_mov_b32 v26, 0
    v_mov_b32 v27, 0
    s_waitcnt lgkmcnt(0)
    s_barrier
    s_setprio 0
    v_and_b32 v12, 255, v0
    v_lshlrev_b32 v12, 4, v12
    v_add_u32 v14, {SB}, v12
    ds_write_b128 v14, v[24:27] offset:{SURV}
    ds_write_b128 v14, v[24:27] offset:{SURV+4096}
    v_lshl_add_u32 v11, v3, 10, v10
    s_add_u32 s38, s37, 4096
    s_add_u32 s39, s37, {PARTB}
    s_add_u32 s35, s37, {PARTB + 4096}
    v_mov_b32 v8, 0""")
    for i in range(5):
        a(f"""v_lshlrev_b32 v5, 16, v{WRS+i}
        v_and_b32 v6, 0xffff0000, v{WRS+i}
        v_add_f32 v8, v8, v5
        v_add_f32 v8, v8, v6""")
    dpp_reduce(a, "v_add_f32", [8])
    a(f"""v_readlane_b32 s36, v8, 63
    v_sub_u32 v23, 2047, v20
    v_lshlrev_b32 v23, 2, v23
    s_lshl_b32 s3, {sRB2}, 2
    s_add_u32 s3, s3, {sLO}
    s_lshl_b32 s3, s3, {KSH}
    s_add_u32 s4, s3, {KEY_OFF}
    s_lshl_b32 s3, {sLO}, 8
    s_add_u32 s3, s3, {SB+LMR}
    v_lshl_add_u32 v9, v2, 4, s3
    s_mov_b32 s6, 0xffffe000
    v_lshlrev_b32 v12, {KSH}, v1
    s_barrier""")
    a.stamp(1, 3)
    spin_head(a, "L_PPOLL")
    a(f"""buffer_load_dwordx4 v[64:67], v11, {WSR}, s37 offen sc1
    buffer_load_dwordx4 v[68:71], v11, {WSR}, s38 offen sc1
    s_waitcnt vmcnt(0)
    v_max3_u32 v5, v64, v65, v66
    v_max3_u32 v6, v68, v69, v70
    v_max_u32 v5, v5, v6
    v_cmp_eq_u32 vcc, -1, v5
    s_cbranch_vccz L_PPOLL_OK
    s_and_b32 s28, s3, {OPT.get('pbm', 15)}
    s_cmp_lg_u32 s28, 0
    s_cbranch_scc1 L_PPOLL
    buffer_load_dwordx4 v[64:67], v11, {WSR}, s39 offen sc1
    buffer_load_dwordx4 v[68:71], v11, {WSR}, s35 offen sc1
    s_waitcnt vmcnt(0)
    v_max3_u32 v5, v64, v65, v66
    v_max3_u32 v6, v68, v69, v70
    v_max_u32 v5, v5, v6
    v_cmp_eq_u32 vcc, -1, v5
    s_cbranch_vccnz L_PPOLL
    L_PPOLL_OK:""")
    a.stamp(2, 3)
    a("v_add_f32 v40, v64, v68\n v_add_f32 v41, v65, v69\n v_add_f32 v42, v66, v70")
    xg_sum(a, [40, 41, 42], [44, 45, 46])
    ln_scalars(a, 40, 41)
    a(f"""v_fma_f32 v42, -v40, s36, v42
    v_mul_f32 v42, v42, v41
    v_ashrrev_i32 v4, 31, v42
    v_or_b32 v4, 0x80000000, v4
    v_xor_b32 v4, v4, v42
    v_and_or_b32 v4, v4, s6, v23
    v_min_u32 v42, -2, v42
    v_mov_b32 v5, v4
    v_mov_b32 v7, 0
    v_mov_b32_dpp v5, v4 row_ror:4 row_mask:0x2 bank_mask:0xf
    v_mov_b32_dpp v5, v4 row_ror:8 row_mask:0x4 bank_mask:0xf
    v_mov_b32_dpp v5, v4 row_ror:12 row_mask:0x8 bank_mask:0xf
    v_mov_b32_dpp v44, v5 row_ror:1 row_mask:0xf bank_mask:0xf
    v_mov_b32_dpp v45, v5 row_ror:2 row_mask:0xf bank_mask:0xf
    v_mov_b32_dpp v46, v5 row_ror:3 row_mask:0xf bank_mask:0xf
    v_cmp_gt_u32 s[40:41], v5, v4
    v_cmp_gt_u32 s[42:43], v44, v4
    v_cmp_gt_u32 s[44:45], v45, v4
    v_cmp_gt_u32 s[46:47], v46, v4
    v_addc_co_u32 v7, vcc, 0, v7, s[40:41]
    v_addc_co_u32 v7, vcc, 0, v7, s[42:43]
    v_addc_co_u32 v7, vcc, 0, v7, s[44:45]
    v_addc_co_u32 v7, vcc, 0, v7, s[46:47]
    v_mov_b32 v6, v7
    v_permlane16_swap_b32 v7, v6
    v_add_u32 v7, v7, v6
    v_mov_b32 v6, v7
    v_permlane32_swap_b32 v7, v6
    v_add_u32 v7, v7, v6
    v_min_u32 v6, 2, v7
    v_or_b32 v43, v4, v6
    v_lshlrev_b32 v7, 2, v7
    s_mov_b64 exec, 0xffff
    s_cmp_lg_u32 {sCS}, 0
    s_cbranch_scc1 L_NOKEY
    buffer_store_dword v43, v7, {WSR}, s4 offen sc1
    L_NOKEY:
    ds_write_b128 v9, v[40:43]
    {MALL}
    s_waitcnt lgkmcnt(0)
    s_barrier
    s_cmp_lg_u32 {sW}, {LW}
    s_cbranch_scc1 L_SELW""")
    sel_setup()
    a(f"""s_mov_b32 s4, {KEY_OFF}
    s_mov_b32 s5, {KEY_OFF + (64 << KSH)}
    s_mov_b32 s28, {SB+SURV}
    s_mov_b32 s29, 0
    v_and_b32 v13, 31, v1
    v_lshlrev_b32 v13, 2, v13
    v_add_u32 v13, {SB+SURV}, v13
    v_lshrrev_b32 v8, 5, v1
    v_lshlrev_b32 v8, 6, v8
    v_add_u32 v11, {SB+SURV}, v8""")
    if OPT.get("ksleep", 0): a(f"s_sleep {OPT.get('ksleep', 0)}")
    a.stamp(3, 3)
    a("L_KQ:")
    spin_head(a, "L_KPOLL")
    a(f"""buffer_load_dwordx4 v[40:43], v12, {WSR}, s4 offen sc1
    buffer_load_dwordx4 v[44:47], v12, {WSR}, s5 offen sc1
    s_waitcnt vmcnt(0)
    v_max3_u32 v4, v41, v42, v43
    v_max3_u32 v5, v45, v46, v47
    v_max_u32 v6, v40, v44
    v_max3_u32 v4, v4, v5, v6
    v_cmp_eq_u32 vcc, -1, v4""")
    spin_tail(a, "L_KPOLL", OPT.get("psl3", 1))
    a.stamp(4, 3)
    a(f"""s_cmp_lg_u32 s29, 0
    s_cbranch_scc1 L_HAVET
    v_mov_b32 v7, v6
    v_max_u32_dpp v6, v6, v6 quad_perm:[1,0,3,2] row_mask:0xf bank_mask:0xf
    v_max_u32_dpp v7, v7, v7 row_ror:8 row_mask:0xf bank_mask:0xf
    v_max_u32_dpp v6, v6, v6 quad_perm:[2,3,0,1] row_mask:0xf bank_mask:0xf
    v_mov_b32 v8, v7
    v_max_u32_dpp v6, v6, v6 row_half_mirror row_mask:0xf bank_mask:0xf
    v_permlane16_swap_b32 v7, v8
    v_min_u32_dpp v6, v6, v6 row_ror:8 row_mask:0xf bank_mask:0xf
    v_max_u32 v7, v7, v8
    v_mov_b32 v5, v6
    v_mov_b32 v8, v7
    v_permlane16_swap_b32 v6, v5
    v_permlane32_swap_b32 v7, v8
    v_min_u32 v6, v6, v5
    v_max_u32 v7, v7, v8
    v_mov_b32 v5, v6
    v_min_u32_dpp v7, v7, v7 quad_perm:[1,0,3,2] row_mask:0xf bank_mask:0xf
    v_permlane32_swap_b32 v6, v5
    v_min_u32_dpp v7, v7, v7 quad_perm:[2,3,0,1] row_mask:0xf bank_mask:0xf
    v_min_u32 v6, v6, v5
    v_min_u32_dpp v7, v7, v7 row_half_mirror row_mask:0xf bank_mask:0xf
    v_max_u32 v48, v6, v7
    L_HAVET:""")
    a.stamp(5, 3)
    ordr = [0, 4, 1, 5, 2, 6, 3, 7]
    for i in ordr: a(f"v_cmp_ge_u32 s[{40+2*i}:{41+2*i}], v{40+i}, v48")
    for i in ordr: a(f"v_mbcnt_lo_u32_b32 v{50+i}, s{40+2*i}, 0")
    for i in ordr: a(f"v_mbcnt_hi_u32_b32 v{50+i}, s{41+2*i}, v{50+i}")
    for n, i in enumerate(ordr):
        if n in (2, 4):
            a(f"s_or_b64 s[6:7], s[{40+2*i}:{41+2*i}], s[{48+2*i}:{49+2*i}]\n s_cbranch_scc0 L_CDONE")
        a(f"""v_lshl_add_u32 v{50+i}, v{50+i}, 2, s28
        s_bcnt1_i32_b64 s3, s[{40+2*i}:{41+2*i}]
        s_mov_b64 exec, s[{40+2*i}:{41+2*i}]
        ds_write_b32 v{50+i}, v{40+i}
        {MALL}
        s_lshl_b32 s3, s3, 2
        s_add_u32 s28, s28, s3""")
    a(f"""s_or_b64 s[6:7], s[46:47], s[54:55]
    s_cbranch_scc0 L_CDONE
    s_add_u32 s29, s29, 1
    s_add_u32 s4, s4, 16
    s_add_u32 s5, s5, 16
    s_cmp_lt_u32 s29, 4
    s_cbranch_scc1 L_KQ
    L_CDONE:
    s_sub_u32 s4, s28, {SB+SURV}
    s_mov_b32 s5, 0
    s_mov_b32 s28, {SB+SELL}""")
    a.stamp(6, 3)
    a(f"""L_OUTER:
    ds_read_b32 v6, v13
    v_mov_b32 v7, 0
    v_mov_b32 v8, v11
    s_mov_b32 s6, 0
    L_INNER:""")
    for k in range(4): a(f"ds_read_b128 {q4(44+4*k)}, v8 offset:{16*k}")
    a("""v_add_u32 v8, 128, v8
    s_add_u32 s6, s6, 128
    v_mov_b32 v9, 0
    s_waitcnt lgkmcnt(2)""")
    for h in range(2):
        if h: a("s_waitcnt lgkmcnt(0)")
        for i in range(8): a(f"v_cmp_gt_u32 s[{40+2*i}:{41+2*i}], v{44+8*h+i}, v6")
        for i in range(8): a(f"v_addc_co_u32 v{7+2*(i&1)}, vcc, 0, v{7+2*(i&1)}, s[{40+2*i}:{41+2*i}]")
    a(f"""v_add_u32 v7, v7, v9
    s_cmp_lt_u32 s6, s4
    s_cbranch_scc1 L_INNER
    v_mov_b32 v8, v7
    v_not_b32 v6, v6
    v_and_b32 v6, 0x1fff, v6
    v_permlane32_swap_b32 v7, v8
    v_add_u32 v7, v7, v8
    v_cmp_gt_u32 vcc, 8, v7
    v_lshl_add_u32 v7, v7, 2, s28
    s_and_saveexec_b64 s[6:7], vcc
    ds_write_b32 v7, v6
    {MALL}
    v_add_u32 v13, 128, v13
    s_add_u32 s5, s5, 128
    s_cmp_lt_u32 s5, s4
    s_cbranch_scc1 L_OUTER
    s_branch L_SELB""")
    a("L_CLO:")
    if RPE == 1: rp_dma("L_RP1", "scc0")
    a(f"""s_lshl_b32 s4, {sCS}, 10
    s_add_u32 s35, s4, s37
    s_add_u32 s38, s35, {PARTB}
    v_mul_u32_u24 v5, 160, v2
    v_add3_u32 v12, v5, v17, s34
    v_lshlrev_b32 v7, 4, v1
    v_mov_b32 v47, 0
    s_barrier""")
    a.stamp(6, 4)
    for t in range(5): a(f"ds_read_b128 {q4(CWF+4*t)}, v13 offset:{1024*t}")
    E = range(0, 20, 2)
    for e in E:
        if e % 4 == 0: a(f"s_waitcnt lgkmcnt({4 - e//4})")
        a(f"v_pk_add_f32 {q2(CAC+e)}, {q2(CAC+e)}, {q2(CWF+e)}")
    for e in E:
        c = 6 * ((e >> 1) & 1)
        if e < 4:
            a(f"v_pk_add_f32 {q2(50+c)}, {q2(CAC+e)}, {q2(CAC+e+4)}\n v_pk_mul_f32 {q2(52+c)}, {q2(CAC+e)}, {q2(CAC+e)}\n v_pk_mul_f32 {q2(54+c)}, {q2(CAC+e)}, {q2(WU+e)}")
        else:
            if e >= 8: a(f"v_pk_add_f32 {q2(50+c)}, {q2(50+c)}, {q2(CAC+e)}")
            a(f"v_pk_fma_f32 {q2(52+c)}, {q2(CAC+e)}, {q2(CAC+e)}, {q2(52+c)}\n v_pk_fma_f32 {q2(54+c)}, {q2(CAC+e)}, {q2(WU+e)}, {q2(54+c)}")
    for k in range(3): a(f"v_pk_add_f32 {q2(50+2*k)}, {q2(50+2*k)}, {q2(56+2*k)}")
    for k in range(3): a(f"v_add_f32 v{44+k}, v{50+2*k}, v{51+2*k}")
    xg_sum(a, [44, 45, 46], [40, 41, 42])
    a(f"""v_min_u32 v44, -2, v44
    v_min_u32 v45, -2, v45
    v_min_u32 v46, -2, v46
    s_mov_b64 exec, 0xffff
    buffer_store_dwordx4 v[44:47], v10, {WSR}, s35 offen
    buffer_store_dwordx4 v[44:47], v10, {WSR}, s38 offen sc1
    {MALL}
    s_barrier""")
    a.stamp(10); a.stamp(7, 4)
    if RPE == 3: rp_dma("L_RP1", "scc0")
    for e in E: a(f"v_cvt_pk_bf16_f32 v{HP+e//2}, v{CAC+e}, v{CAC+e+1}")
    for e in E: a(f"v_min_u32 v{HP+e//2}, -2, v{HP+e//2}")
    for e in E: a(f"v_lshlrev_b32 v{CAC+e}, 16, v{HP+e//2}\n v_and_b32 v{CAC+e+1}, 0xffff0000, v{HP+e//2}")
    for k in range(5): a(f"ds_write_b64 v12, {q2(HP+2*k)} offset:{8*k}")
    a(f"""s_lshl_b32 s3, {sLO}, 8
    s_add_u32 s3, s3, {SB+LMR}
    v_lshl_add_u32 v9, v2, 4, s3
    s_lshl_b32 s3, {sRB2}, 2
    s_add_u32 s3, s3, {sLO}
    s_lshl_b32 s3, s3, 12
    s_lshl_b32 s4, {sCS}, 8
    s_add_u32 s3, s3, s4
    s_add_u32 s28, s3, {EP_OFF}
    v_lshl_add_u32 v11, v3, 11, v10
    s_barrier
    ds_read_b64 v[40:41], v9
    ds_read_b32 v22, v9 offset:12
    s_waitcnt lgkmcnt(0)""")
    for e in E: a(f"v_pk_add_f32 {q2(XU+e)}, {q2(CAC+e)}, v[40:41] op_sel_hi:[1,0] neg_lo:[0,1] neg_hi:[0,1]")
    for e in E: a(f"v_cvt_pk_bf16_f32 v{OUTP+e//2}, v{XU+e}, v{XU+e+1}")
    for e in E: a(f"v_lshlrev_b32 v{XU+e}, 16, v{OUTP+e//2}\n v_and_b32 v{XU+e+1}, 0xffff0000, v{OUTP+e//2}")
    a("v_mov_b32 v42, v41")
    for e in E: a(f"v_pk_mul_f32 {q2(XU+e)}, {q2(XU+e)}, v[42:43] op_sel_hi:[1,0]")
    for e in E: a(f"v_cvt_pk_bf16_f32 v{OUTP+e//2}, v{XU+e}, v{XU+e+1}")
    for e in E: a(f"v_min_u32 v{OUTP+e//2}, -2, v{OUTP+e//2}")
    for k in range(5): a(f"ds_write_b64 v12, {q2(OUTP+2*k)} offset:{2560 + 8*k}")
    a(f"""v_and_b32 v4, 3, v22
    v_cmp_eq_u32 s[4:5], 0, v4
    v_cmp_eq_u32 s[6:7], 1, v4
    s_ff1_i32_b32 s4, s4
    s_ff1_i32_b32 s6, s6
    s_mul_i32 s4, s4, 160
    s_mul_i32 s6, s6, 160
    v_mov_b32 v4, s4
    v_mov_b32 v5, s6
    v_cmp_eq_u32 vcc, 1, v3
    v_cndmask_b32 v4, v4, v5, vcc
    v_add3_u32 v4, v4, v10, s34
    s_mov_b64 exec, 0x03ff03ff
    ds_read_b128 v[52:55], v4 offset:2560
    s_waitcnt lgkmcnt(0)
    buffer_store_dwordx4 v[52:55], v11, {WSR}, s28 offen sc1
    {MALL}
    """)
    rp_dma("L_RP2", "scc1")
    WDE = OPT.get("wde", 1)
    if WDE:
        a(f"s_cmp_lt_u32 {sROLE}, 32\n s_cbranch_scc1 L_NWD2")
        wd_dma(range(WD1, 7 - OPT.get("wdl", 0)), "2", True)
        a("L_NWD2:")
    for e in E: a(f"v_lshlrev_b32 v{XU+e}, 16, v{OUTP+e//2}\n v_and_b32 v{XU+e+1}, 0xffff0000, v{OUTP+e//2}")
    for e in E: a(f"v_pk_add_f32 {q2(XU+e)}, {q2(XU+e)}, {q2(CAC+e)}")
    for e in E: a(f"v_cvt_pk_bf16_f32 v{OUTP+e//2}, v{XU+e}, v{XU+e+1}")
    a("v_not_b32 v22, v22\n v_and_b32 v22, 0x1fff, v22\n s_waitcnt vmcnt(0)")
    a("L_SELW:")
    sel_setup()
    a(f"""L_SELB:
    s_waitcnt lgkmcnt(0)
    s_barrier
    ds_read_b32 v24, v151
    ds_read_b32 v25, v152
    ds_read_b32 v23, v150
    ds_read_b128 v[44:47], v157
    ds_read_b128 v[48:51], v157 offset:16""")
    a.stamp(11); a.stamp(7, 3)
    def publish(L):
        a(f"""s_waitcnt lgkmcnt(2)
        v_readlane_b32 s4, v23, {sW}
        s_lshr_b32 s5, s4, 8
        s_cmp_lg_u32 s5, {sRB2}
        s_cbranch_scc1 {L}
        s_bfe_u32 s5, s4, 0x20006
        s_mul_i32 s5, s5, 5120
        s_bfe_u32 s6, s4, 0x40002
        s_mul_i32 s6, s6, 160
        s_add_u32 s5, s5, s6
        v_add_u32 v4, s5, v160
        s_bfe_u32 s4, s4, 0x60002
        s_lshl_b32 s4, s4, 4
        s_add_u32 s4, s4, {SB+LMR}
        v_mov_b32 v5, s4
        v_cmp_eq_u32 vcc, 26, v1
        v_cndmask_b32 v4, v4, v5, vcc
        s_mov_b64 exec, 0x07ff03ff
        ds_read_b128 v[52:55], v4
        s_waitcnt lgkmcnt(0)
        buffer_store_dwordx4 v[52:55], v161, {WSR}, 0 offen sc1
        {MALL}
        {L}:""")
    def out_store(L):
        a(f"s_cmp_lg_u32 {sHI}, {FH}\n s_cbranch_scc1 {L}\n s_waitcnt lgkmcnt(0)")
        for i in range(8): a(f"v_cmp_ne_u32 vcc, v{44+i}, v22\n s_and_b64 exec, exec, vcc")
        a(f"""s_cbranch_execz {L}
        buffer_store_dwordx4 {q4(OUTP)}, v16, s[8:11], 0 offen {OFL}
        buffer_store_dwordx4 {q4(OUTP+4)}, v16, s[8:11], 0 offen offset:16 {OFL}
        buffer_store_dwordx2 {q2(OUTP+8)}, v16, s[8:11], 0 offen offset:32 {OFL}""")
        a(f"{L}:\n {MALL}")
    a(f"s_cmp_ge_u32 {sROLE}, 32\n s_cbranch_scc1 L_E")
    HF, DW, MRV = 64, 80, 24
    a("s_waitcnt lgkmcnt(3)")
    for i in range(2): a(f"v_not_b32 v{26+i}, v{24+i}\n v_lshrrev_b32 v{24+i}, 6, v{24+i}")
    for i in range(2): a(f"v_and_b32 v{26+i}, 3, v{26+i}\n v_lshlrev_b32 v{24+i}, 12, v{24+i}")
    for i in range(2): a(f"v_cmp_gt_u32 s[{4+2*i}:{5+2*i}], 2, v{26+i}\n v_lshl_add_u32 v{24+i}, v{26+i}, 11, v{24+i}")
    for i in range(2): a(f"v_cndmask_b32 v{24+i}, v{153+i}, v{24+i}, s[{4+2*i}:{5+2*i}]")
    for i in range(2): a(f"v_add_u32 v{24+i}, v{24+i}, v{155+i}")
    def d_loads():
        a(f"""s_mov_b32 m0, s59
        s_nop 0
        buffer_load_dwordx4 v24, {WSR}, s58 offen sc1 lds
        s_add_u32 m0, s59, 1024
        s_mov_b64 exec, 0xffff
        buffer_load_dwordx4 v25, {WSR}, s58 offen sc1 lds
        {MALL}""")
    def d_check():
        a(f"""s_waitcnt vmcnt(0)
        ds_read_b128 {q4(HF)}, v158
        ds_read_b128 {q4(HF+4)}, v158 offset:64
        ds_read_b128 {q4(HF+8)}, v159 offset:1024""")
        for ks in range(3):
            a(f"s_waitcnt lgkmcnt({2-ks})")
            a(mm16(28, DW+4*ks, HF+4*ks, ks == 0))
        a(f"""v_max3_u32 v5, v{HF}, v{HF+1}, v{HF+2}
        v_max3_u32 v6, v{HF+3}, v{HF+4}, v{HF+5}
        v_max3_u32 v5, v5, v{HF+6}, v{HF+7}
        v_max3_u32 v6, v6, v{HF+8}, v{HF+9}
        v_max3_u32 v5, v5, v{HF+10}, v{HF+11}
        v_max_u32 v5, v5, v6
        v_cmp_eq_u32 vcc, -1, v5""")
    d_loads()
    publish("L_NOPUB")
    for ks in range(3):
        for h in range(2): a(f"ds_read_b64_tr_b16 {q2(DW+4*ks+2*h)}, v162 offset:{ks*512 + h*64}")
    a("v_cmp_gt_u32 s[6:7], 32, v1\n v_mov_b32 v10, v163\n s_waitcnt lgkmcnt(0)")
    for r in range(4): a(f"v_cndmask_b32 v{DW+8+r}, 0, v{DW+8+r}, s[6:7]")
    d_check()
    a("s_cbranch_vccz L_RPOLL_OK")
    spin_head(a, "L_RPOLL")
    d_loads(); d_check()
    spin_tail(a, "L_RPOLL", 1)
    a.stamp(8, 3)
    a(f"""ds_write_b128 v10, v[28:31]
    s_waitcnt lgkmcnt(0)
    s_barrier""")
    a.stamp(9, 3)
    a(f"""s_cmp_lg_u32 {sW}, {LW}
    s_cbranch_scc1 L_DOTH
    v_subrev_u32 v10, {LW*1024}, v10""")
    oth = [w for w in range(8) if w != LW]
    for n, w in enumerate(oth): a(f"ds_read_b128 {q4(64+4*n)}, v10 offset:{1024*w}")
    for n in range(7):
        a(f"s_waitcnt lgkmcnt({6-n})")
        for r in (0, 2): a(f"v_pk_add_f32 {q2(28+r)}, {q2(28+r)}, {q2(64+4*n+r)}")
    a("""v_cvt_pk_bf16_f32 v32, v28, v29
    v_cvt_pk_bf16_f32 v33, v30, v31
    v_mov_b32 v34, v32
    v_mov_b32 v35, v33
    v_permlane32_swap_b32 v32, v34
    v_permlane32_swap_b32 v33, v35""")
    a.stamp(10, 3)
    for k in range(2):
        a(f"""v_lshlrev_b32 v{40+2*k}, 16, v{32+k}
        v_and_b32 v{41+2*k}, 0xffff0000, v{32+k}
        v_lshlrev_b32 v{44+2*k}, 16, v{34+k}
        v_and_b32 v{45+2*k}, 0xffff0000, v{34+k}""")
    for r in range(4): a(f"v_mul_f32 v{48+r}, 0xbfb8aa3b, v{40+r}")
    for r in range(4): a(f"v_exp_f32 v{48+r}, v{48+r}")
    for r in range(4): a(f"v_add_f32 v{48+r}, 1.0, v{48+r}")
    for r in range(4): a(f"v_rcp_f32 v{48+r}, v{48+r}")
    for r in range(4): a(f"v_mul_f32 v{40+r}, v{40+r}, v{48+r}")
    a("v_cvt_pk_bf16_f32 v32, v40, v41\n v_cvt_pk_bf16_f32 v33, v42, v43")
    for k in range(2):
        a(f"v_lshlrev_b32 v{40+2*k}, 16, v{32+k}\n v_and_b32 v{41+2*k}, 0xffff0000, v{32+k}")
    for r in (0, 2): a(f"v_pk_mul_f32 {q2(40+r)}, {q2(40+r)}, {q2(44+r)}")
    a(f"""v_cvt_pk_bf16_f32 v32, v40, v41
    v_cvt_pk_bf16_f32 v33, v42, v43
    v_min_u32 v32, -2, v32
    v_min_u32 v33, -2, v33
    v_mov_b32 v34, v32
    v_mov_b32 v35, v33
    v_lshlrev_b32 v4, 4, v2
    v_permlane16_swap_b32 v32, v34
    v_permlane16_swap_b32 v33, v35
    s_lshl_b32 s3, s30, 7
    s_add_u32 s3, s3, {ACT_OFF}
    s_mov_b64 exec, 0xff
    buffer_store_dwordx4 v[32:35], v4, {WSR}, s3 offen sc1""")
    a.stamp(4, 6)
    a(f"""s_barrier
    s_branch L_END
    L_DOTH:
    s_barrier
    L_DOTH2:""")
    if OPT.get("osl", 0): a(f"s_sleep {OPT['osl']}")
    out_store("L_OUTD")
    a("s_branch L_END")
    AF, EW = 64, 96
    HM = OPT.get("hm", 1)
    def h_loads():
        a(f"""buffer_load_dwordx2 v[136:137], v19, {WSR}, s33 offen sc1
        buffer_load_dwordx2 v[130:131], v19, {WSR}, s34 offen sc1
        buffer_load_dword v134, v17, {WSR}, s35 offen offset:8 sc1""")
    def h_part(first):
        if not first:
            a("v_max3_u32 v5, v130, v131, v134\n v_max3_u32 v5, v5, v136, v137\n v_cmp_eq_u32 vcc, -1, v5\n s_cbranch_vccz L_HPOLL_OK")
        spin_head(a, "L_HPOLL")
        a(f"""buffer_load_dwordx2 v[136:137], v19, {WSR}, s33 offen sc1
        buffer_load_dwordx2 v[130:131], v19, {WSR}, s34 offen sc1
        buffer_load_dword v134, v17, {WSR}, s35 offen offset:8 sc1
        s_waitcnt vmcnt(0)
        v_max3_u32 v5, v130, v131, v134
        v_max3_u32 v5, v5, v136, v137
        v_cmp_eq_u32 vcc, -1, v5""")
        spin_tail(a, "L_HPOLL")
        rb16(a, 134)
        a("v_mul_f32 v15, 0xbfb8aa3b, v134\n v_exp_f32 v15, v15\n v_add_f32 v15, 1.0, v15\n v_rcp_f32 v15, v15")
        rb16(a, 15)
        a("v_mov_b32 v16, v15")
        for k in range(2):
            a(f"""v_lshlrev_b32 v{140+2*k}, 16, v{136+k}
            v_and_b32 v{141+2*k}, 0xffff0000, v{136+k}
            v_lshlrev_b32 v{144+2*k}, 16, v{130+k}
            v_and_b32 v{145+2*k}, 0xffff0000, v{130+k}""")
    a("L_E:")
    a.stamp(1, 6)
    publish("L_NOPUBE")
    a("v_lshrrev_b32 v23, 2, v23")
    if not WDE: wd_dma(range(WD1, 7), "2")
    elif OPT.get("wdl", 0): wd_dma(range(7 - OPT.get("wdl", 0), 7), "3")
    a(f"""s_sub_u32 s30, s30, 256
    s_mul_i32 s4, s30, 52
    s_lshr_b32 s4, s4, 8              ; cg/5
    s_lshl_b32 s5, s4, 11
    s_add_u32 s35, s5, {XS_OFF + 16384 + 160}
    s_mul_i32 s4, s4, {2048 - 160}
    s_lshl_b32 s30, s30, 5
    s_add_u32 s4, s4, s30
    s_add_u32 s33, s4, {XS_OFF}
    s_add_u32 s34, s33, 16384
    v_and_b32 v17, 7, v2
    v_lshlrev_b32 v17, 8, v17
    v_lshl_add_u32 v19, v3, 3, v17
    v_add_u32 v11, s32, v21
    v_add_u32 v14, {GW}, v11
    s_waitcnt lgkmcnt(0)""")
    EO = OPT.get("eo", 0)
    if EO == 0: out_store("L_OUTE")
    srd(a, 12, P_WS, ACT_OFF + 27648)
    a(f"""v_and_b32 v4, 7, v2
    v_lshlrev_b32 v12, 4, v4
    v_lshl_add_u32 v12, v3, 7, v12
    s_lshl_b32 s4, {sW}, 9
    s_add_u32 s4, s4, {ACT_OFF}
    v_mul_u32_u24 v13, 1280, v23
    v_lshl_add_u32 v13, v3, 3, v13
    v_add_u32 v13, s30, v13
    s_add_u32 s3, s32, {DRED}
    v_lshl_add_u32 v10, v1, 4, s3
    s_cmp_lg_u32 {sW}, {LW}
    s_cbranch_scc1 L_ENOH""")
    if not HM: h_part(True)
    a("L_ENOH:\n s_waitcnt vmcnt(0)")
    for j in range(7):
        b, o = (14, wd_lds(j) - GW) if j < WD1 else (11, wd_lds(j))
        for h in range(2): a(f"ds_read_b64_tr_b16 {q2(EW+4*j+2*h)}, v{b} offset:{o + h*256}")
    if OPT.get('hint', 0):
        spin_head(a, "L_AHINT")
        a(f"""buffer_load_dwordx4 {q4(AF)}, v12, s[12:15], s4 offen sc1
    s_waitcnt vmcnt(0)
    v_cmp_eq_u32 vcc, -1, v{AF}""")
        spin_tail(a, "L_AHINT")
    AM = OPT.get("am", 1)
    if AM:
        for r in range(28): a(f"v_mov_b32 v{AF+r}, 0")
    if OPT.get('abar', 1): a("s_barrier")
    if OPT.get('asleep', 0): a(f"s_sleep {OPT['asleep']}")
    a.stamp(2, 6)
    spin_head(a, "L_APOLL")
    if AM: a("s_mov_b32 exec_lo, 0x00ff00ff\n s_mov_b32 exec_hi, 0x00ff00ff")
    for j in range(7): a(f"s_add_u32 s5, s4, {4096*j}\n buffer_load_dwordx4 {q4(AF+4*j)}, v12, s[12:15], s5 offen sc1")
    if AM: a(MALL)
    if HM:
        a(f"s_cmp_lg_u32 {sW}, {LW}\n s_cbranch_scc1 L_NH")
        h_loads()
        a("L_NH:")
    a(f"s_waitcnt vmcnt(0) lgkmcnt(0)")
    for j in range(7):
        a(mm16(24, EW+4*j, AF+4*j, j == 0))
        if j == 0: a(f"v_max_u32 v5, v{AF}, v{AF+1}\n v_max3_u32 v5, v5, v{AF+2}, v{AF+3}")
        else: a(f"v_max3_u32 v5, v5, v{AF+4*j}, v{AF+4*j+1}\n v_max3_u32 v5, v5, v{AF+4*j+2}, v{AF+4*j+3}")
    a("v_cmp_eq_u32 vcc, -1, v5")
    spin_tail(a, "L_APOLL", 1)
    a.stamp(11, 3); a.stamp(3, 6)
    if PROF and OPT.get("pg") == 6: a("s_mov_b32 s99, s3")
    a("ds_write_b128 v10, v[24:27]")
    if HM:
        a(f"s_cmp_lg_u32 {sW}, {LW}\n s_cbranch_scc1 L_NH2")
        h_part(False)
        a("L_NH2:")
    a(f"""s_waitcnt lgkmcnt(0)
    s_barrier
    s_cmp_lg_u32 {sW}, {LW}
    s_cbranch_scc1 {"L_DOTH2" if EO else "L_END"}
    v_subrev_u32 v10, {LW*1024}, v10""")
    for n, w in enumerate(oth): a(f"ds_read_b128 {q4(32+4*n)}, v10 offset:{1024*w}")
    for w in range(7):
        a(f"s_waitcnt lgkmcnt({6-w})")
        for r in (0, 2): a(f"v_pk_add_f32 {q2(24+r)}, {q2(24+r)}, {q2(32+4*w+r)}")
    a("v_cvt_pk_bf16_f32 v28, v24, v25\n v_cvt_pk_bf16_f32 v29, v26, v27")
    for k in range(2):
        a(f"v_lshlrev_b32 v{24+2*k}, 16, v{28+k}\n v_and_b32 v{25+2*k}, 0xffff0000, v{28+k}")
    def rnd():
        a("v_cvt_pk_bf16_f32 v28, v24, v25\n v_cvt_pk_bf16_f32 v29, v26, v27")
        for k in range(2): a(f"v_lshlrev_b32 v{24+2*k}, 16, v{28+k}\n v_and_b32 v{25+2*k}, 0xffff0000, v{28+k}")
    for r in (0, 2): a(f"v_pk_mul_f32 {q2(24+r)}, {q2(24+r)}, v[16:17] op_sel_hi:[1,0]")
    rnd()
    for r in (0, 2): a(f"v_pk_add_f32 {q2(24+r)}, {q2(24+r)}, {q2(140+r)}")
    rnd()
    for r in (0, 2): a(f"v_pk_add_f32 {q2(24+r)}, {q2(24+r)}, {q2(144+r)}")
    a("v_cvt_pk_bf16_f32 v24, v24, v25\n v_cvt_pk_bf16_f32 v25, v26, v27")
    a("""s_mov_b32 exec_lo, 0x00ff00ff
    s_mov_b32 exec_hi, 0x00ff00ff
    buffer_store_dwordx2 v[24:25], v13, s[8:11], 0 offen
    L_END:""")
    if PROF:
        a(f"{MALL}\n s_waitcnt vmcnt(0)")
        a.stamp(12)
        for i in range(16): a(f"v_mov_b32 v{8+i}, s{88+i}" if i < 13 else f"v_mov_b32 v{8+i}, 0")
        a(f"""s_lshl_b32 s3, s2, 9
        s_add_u32 s3, s3, {PROF_OFF}
        s_lshl_b32 s4, {sW}, 6
        s_add_u32 s3, s3, s4
        v_mov_b32 v4, s3
        s_mov_b64 exec, 1""")
        for i in range(4): a(f"global_store_dwordx4 v4, {q4(8+4*i)}, s[{P_WS}:{P_WS+1}] offset:{16*i}")
        if "ampj" in OPT:
            i, j = OPT["ampi"], OPT["ampj"]
            a(f"""s_sub_u32 s4, s{88+j}, s{88+i}
            s_mul_i32 s4, s4, 10
            s_min_u32 s4, s4, 100000
            s_cmp_lg_u32 {sW}, 0
            s_cbranch_scc1 L_EXIT
            L_AMP:
            s_memrealtime s[6:7]
            s_waitcnt lgkmcnt(0)
            s_sub_u32 s5, s6, s100
            s_cmp_lt_u32 s5, s4
            s_cbranch_scc1 L_AMP""")
    a("L_EXIT:\n s_endpgm")

    if DYN: emit_dyn()
    a("L_FALLBACK:\n s_waitcnt vmcnt(0)\n s_nop 7\n s_nop 7")
    S0 = 112
    def S(i): return S0 + 16*i
    KF = 24
    for n in range(9):
        a(kread(KF + 6*n, n))
        if n % 4 == 3: a("s_waitcnt lgkmcnt(0)")
    a("s_waitcnt lgkmcnt(0)")
    for n in range(9): a(f"{s1(S(n), KF+6*n)}\n {s2(S(n), KF+6*n)}")
    for r in range(8): a(f"v_mov_b32 v{78+r}, 0x3f803f80")
    a("s_nop 7\n s_nop 7")
    for i in range(8):
        a(f"s_cmp_gt_i32 s30, {i}\n s_cbranch_scc0 L_VALID")
        for r in range(16): a(f"v_mov_b32 v{S(i)+r}, 0xff800000")
    a("L_VALID:")
    for r in range(16): a(f"v_cndmask_b32 v{S(0)+r}, v{S(8)+r}, v{S(0)+r}, s[{MS+2*r}:{MS+1+2*r}]")
    a(f"v_max_f32 v4, v{S(0)}, v{S(0)+1}")
    for k in range(1, 64): a(f"v_max3_f32 v4, v{S0+2*k}, v{S0+2*k+1}, v4")
    a("""v_mov_b32 v5, v4
    v_permlane32_swap_b32 v4, v5
    v_max_f32 v4, v4, v5""")
    for i in range(8):
        s = S(i)
        for r in range(16): a(f"v_sub_f32 v{s+r}, v{s+r}, v4")
        for r in range(16): a(f"v_exp_f32 v{s+r}, v{s+r}")
        for k in range(8): a(f"v_cvt_pk_bf16_f32 v{s+k}, v{s+2*k}, v{s+2*k+1}")
    s = S(0)
    for k in range(8): a(f"v_and_b32 v{s+8+k}, v{MK+k}, v{s+k}")
    for k in range(8): a(f"v_xor_b32 v{S(8)+k}, v{s+8+k}, v{s+k}")
    for t in range(9):
        p = s + 8 if t == 0 else S(t)
        a(vread(78, t, False))
        a(f"s_waitcnt lgkmcnt(0)\n {pvm(78, p, t == 0)}\n {pvm(82, p + 4)}\n s_nop 7")
    a("s_nop 7")
    early_loads("L_EL2")
    if OPT.get("rpn", 10) >= 9: gu_loads("L_GU2", bGU)
    a("s_branch L_BDONE")

HEADER = """; Fused persistent kernel, 256 workgroups x 512 threads, one per CU (generated by a script of the author).
;   itself (the clears are confirmed through counters in d_debug before anything is trusted); all spins are bounded."""
def build():
    a = PAsm()
    kernel(a)
    name = NAME + "_kernel"
    L = ["; @launch grid=(256,1,1) block=(512,1,1) lds=163840", HEADER,
         '.amdgcn_target "amdgcn-amd-amdhsa--gfx950"', ".text", f".globl {name}", ".p2align 8",
         f".type {name},@function", f"{name}:", a.render(), "CODE_END:", "s_endpgm",
         '.section .rodata,"a"', ".p2align 6", f".amdhsa_kernel {name}", "  .amdhsa_next_free_vgpr 256",
         "  .amdhsa_next_free_sgpr 102", "  .amdhsa_accum_offset 256", "  .amdhsa_group_segment_fixed_size 0",
         "  .amdhsa_kernarg_size 88", "  .amdhsa_user_sgpr_count 2", "  .amdhsa_user_sgpr_kernarg_segment_ptr 1",
         "  .amdhsa_system_sgpr_workgroup_id_x 1", ".end_amdhsa_kernel"]
    return "\n".join(L) + "\n"

def check_ws(w, im, cmp, tof):
    import numpy as np
    qkv = im["qkv"]
    q = tof(w[Q_OFF:Q_OFF + 16*64*T32].view(np.uint16)).reshape(16, 64, 5, 32, 8).transpose(1, 3, 0, 2, 4).reshape(2048, 640)
    cmp("q", q, qkv[:, :640] * (20 ** -0.5) * 1.4426950408889634)
    k = tof(w[K_OFF:K_OFF + 16*64*T32].view(np.uint16)).reshape(16, 64, 5, 32, 8).transpose(1, 3, 0, 2, 4).reshape(2048, 640)
    cmp("k", k, qkv[:, 640:1280])
    v = tof(w[V_OFF:V_OFF + 16*64*T32].view(np.uint16)).reshape(16, 256, 40, 8).transpose(1, 3, 0, 2).reshape(2048, 640)
    cmp("v", v, qkv[:, 1280:])
    ob = w[O_OFF:O_OFF + 64*40960].reshape(64, 40960)
    om = tof(np.ascontiguousarray(ob[:, :32768]).view(np.uint16)).reshape(64, 32, 2, 32, 8).transpose(0, 3, 1, 2, 4).reshape(2048, 32, 16)
    oq = tof(np.ascontiguousarray(ob[:, 32768:]).view(np.uint16)).reshape(64, 32, 32, 4).transpose(0, 2, 1, 3).reshape(2048, 32, 4)
    o = np.concatenate([om, oq], axis=2).reshape(2048, 640)
    cmp("o", o, im["o"])

if __name__ == "__main__":
    PROF = "prof" in sys.argv
    if "cyc" in sys.argv: TIMER = "s_memtime"
    for x in sys.argv[2:]:
        if "=" in x:
            k, v = x.split("="); OPT[k] = int(v)
    out = sys.argv[1] if len(sys.argv) > 1 else f"cdna_kernels/{NAME}.s"
    txt = build()
    if OPT.get("nbig"):
        ls = txt.split("\n"); n = 0
        for i, l in enumerate(ls):
            if "buffer_store_dwordx4 v[76:79], v6" in l and n < 4: ls[i] = "    s_nop 0"; n += 1
        txt = "\n".join(ls)
    import re
    if OPT.get("sys") == 1: txt = txt.replace(" sc1", " sc0 sc1").replace("global_atomic_add v4, v5, s[82:83] sc0 sc1", "global_atomic_add v4, v5, s[82:83] sc1")
    if OPT.get("sys") == 2: txt = re.sub(r"(buffer_store[^\n]*) sc1", r"\1 sc0 sc1", txt)
    if OPT.get("sys") == 3: txt = re.sub(r"(buffer_load[^\n]*) sc1", r"\1 sc0 sc1", txt)
    if OPT.get("sys") == 4: txt = re.sub(r"(buffer_load[^\n]*) sc1 lds", r"\1 lds", txt)
    open(out, "w").write(txt)
    print("wrote", out, len(txt))
```

```python
import sys, struct
from asmlib import Asm

NAME = "sequential_preLN__sliding_block__moe_arch_mod__prompt"
Q_OFF = 0; K_OFF = 0x280000; V_OFF = 0x500000; O_OFF = 0x780000; CSP_OFF = 0xA00000; RSP_OFF = 0xA20000
PART_OFF = 0xC00000; EP_OFF = 0xC80000; PARTB = 0x40000; F1_OFF = 0xD00000; XS_OFF = 0xD08000; KEY_OFF = 0xD10000; ACT_OFF = 0xD14000
ST_OFF = 0xD1C000
RP_OFF = 0xD20000
WS_SIZE = RP_OFF + 27*8*20480
PROF_OFF = 0x1200000
T32 = 2560
PROF = False
TIMER = "s_memrealtime"
SPIN_MAX = 1 << 21
SLEEP = 2
OPT = {}

def f2u(x): return struct.unpack("<I", struct.pack("<f", x))[0]
QSCALE = f2u((20 ** -0.5) * 1.4426950408889634)
EPS = f2u(1e-5); INV640 = f2u(1.0 / 640)
P_X, P_WQKV, P_WO, P_WR, P_G, P_U, P_D, P_OUT, P_DBG, P_WS = 64, 66, 68, 72, 74, 76, 78, 80, 82, 84
WSR = "s[16:19]"
sW, sRB, sHP, sRB2, sCS, sROLE, sLO, sHI = "s20", "s21", "s22", "s23", "s24", "s25", "s26", "s27"

SCR = 61440
KL = 102400; VL = 133120; WOL = 0
GW = KL; SB = 122880; RED = VL
SURV = 0; WMAX = 8320; CNT = 8352; SELL = 8384; LMR = 8704
DRED = 65536

class PAsm(Asm):
    def stamp(self, i, grp=0):
        if i not in (0, 12) and grp != OPT.get("pg", 0): return
        if PROF:
            assert i < 13
            self(f"{TIMER} s[86:87]\n s_waitcnt lgkmcnt(0)\n s_mov_b32 s{88+i}, s86")

def srd(a, d, lo, size):
    a(f"""s_mov_b32 s{d}, s{lo}
    s_and_b32 s{d+1}, s{lo+1}, 0xffff
    s_mov_b32 s{d+2}, {size}
    s_mov_b32 s{d+3}, 0x00020000""")
def rb16(a, v): a(f"v_cvt_pk_bf16_f32 v{v}, v{v}, v{v}\n v_lshlrev_b32 v{v}, 16, v{v}")
def ln_scalars(a, s1, s2):
    a(f"""v_mul_f32 v{s1}, {INV640:#x}, v{s1}
    v_mul_f32 v{s2}, {INV640:#x}, v{s2}
    v_fma_f32 v{s2}, -v{s1}, v{s1}, v{s2}
    v_max_f32 v{s2}, 0, v{s2}
    v_cvt_pk_bf16_f32 v{s2}, v{s1}, v{s2}
    v_lshlrev_b32 v{s1}, 16, v{s2}
    v_and_b32 v{s2}, 0xffff0000, v{s2}
    v_add_f32 v{s2}, {EPS:#x}, v{s2}""")
    rb16(a, s2)
    a(f"v_sqrt_f32 v{s2}, v{s2}")
    rb16(a, s2)
    a(f"v_rcp_f32 v{s2}, v{s2}")
def dpp_reduce(a, op, regs):
    for sh in (1, 2, 4, 8):
        for v in regs: a(f"{op}_dpp v{v}, v{v}, v{v} row_shr:{sh} row_mask:0xf bank_mask:0xf")
    for v in regs: a(f"{op}_dpp v{v}, v{v}, v{v} row_bcast:15 row_mask:0xa bank_mask:0xf")
    for v in regs: a(f"{op}_dpp v{v}, v{v}, v{v} row_bcast:31 row_mask:0xc bank_mask:0xf")
def xg_sum(a, regs, tmps):
    for x, t in zip(regs, tmps): a(f"v_mov_b32 v{t}, v{x}")
    for x, t in zip(regs, tmps): a(f"v_permlane16_swap_b32 v{x}, v{t}")
    for x, t in zip(regs, tmps): a(f"v_add_f32 v{x}, v{x}, v{t}")
    for x, t in zip(regs, tmps): a(f"v_mov_b32 v{t}, v{x}")
    for x, t in zip(regs, tmps): a(f"v_permlane32_swap_b32 v{x}, v{t}")
    for x, t in zip(regs, tmps): a(f"v_add_f32 v{x}, v{x}, v{t}")
def norm_pair(a, d, x, m, rs, t0, t1):
    a(f"""v_lshlrev_b32 v{t0}, 16, v{x}
    v_and_b32 v{t1}, 0xffff0000, v{x}
    v_subrev_f32 v{t0}, {m}, v{t0}
    v_subrev_f32 v{t1}, {m}, v{t1}
    v_cvt_pk_bf16_f32 v{d}, v{t0}, v{t1}
    v_lshlrev_b32 v{t0}, 16, v{d}
    v_and_b32 v{t1}, 0xffff0000, v{d}
    v_mul_f32 v{t0}, {rs}, v{t0}
    v_mul_f32 v{t1}, {rs}, v{t1}
    v_cvt_pk_bf16_f32 v{d}, v{t0}, v{t1}""")
def add_pairs(a, d, x, y, t0, t1, t2):
    a(f"""v_lshlrev_b32 v{t0}, 16, v{x}
    v_lshlrev_b32 v{t1}, 16, v{y}
    v_add_f32 v{t0}, v{t0}, v{t1}
    v_and_b32 v{t1}, 0xffff0000, v{x}
    v_and_b32 v{t2}, 0xffff0000, v{y}
    v_add_f32 v{t1}, v{t1}, v{t2}
    v_cvt_pk_bf16_f32 v{d}, v{t0}, v{t1}""")
def q2(r): return f"v[{r}:{r+1}]"
def q4(r): return f"v[{r}:{r+3}]"
def r16(x): return f"v[{x}:{x+15}]"
M40 = "s_mov_b32 exec_hi, 0xff"
MALL = "s_mov_b64 exec, -1"
def spin_head(a, L):
    a(f"s_mov_b32 s3, 0\n {L}:\n s_add_u32 s3, s3, 1\n s_cmp_gt_u32 s3, {SPIN_MAX}\n s_cbranch_scc1 L_END")
def spin_tail(a, L, sl=None):
    a(f"s_cbranch_vccz {L}_OK\n s_sleep {SLEEP if sl is None else sl}\n s_branch {L}\n {L}_OK:")
def div_lane(a, q, r, src, d):
    magic = (65536 + d - 1) // d
    a(f"""v_mul_u32_u24 v{q}, {magic}, v{src}
    v_lshrrev_b32 v{q}, 16, v{q}
    v_mul_u32_u24 v{r}, {d}, v{q}
    v_sub_u32 v{r}, v{src}, v{r}""")
def kappa(a, d, s, t):
    a(f"""v_and_b32 v{d}, 0x13, v{s}
    v_and_b32 v{t}, 4, v{s}
    v_lshl_or_b32 v{d}, v{t}, 1, v{d}
    v_and_b32 v{t}, 8, v{s}
    v_lshrrev_b32 v{t}, 1, v{t}
    v_or_b32 v{d}, v{d}, v{t}""")
def rho(a, d, t):
    a(f"""v_bfe_u32 v{d}, v1, 2, 2
    v_and_b32 v{t}, 1, v3
    v_lshl_or_b32 v{d}, v{t}, 2, v{d}
    v_lshrrev_b32 v{t}, 1, v3
    v_lshl_or_b32 v{d}, v{t}, 4, v{d}""")
def masked_load(a, dst, voff, ptr, L, fl=""):
    a(f"""s_and_saveexec_b64 s[6:7], vcc
    s_cbranch_execz {L}
    global_load_dword v{dst}, v{voff}, s[{ptr}:{ptr+1}] {fl}
    {L}:
    {MALL}""")
def mm16(d, x, y, first): return f"v_mfma_f32_16x16x32_bf16 {q4(d)}, {q4(x)}, {q4(y)}, {'0' if first else q4(d)}"

def kernel(a):
    vXD, vWD = 112, 113
    vAS = 88
    NEG = 76; ONES = 116
    FR = 128; ACC = 192; CS = 120; PK = 128
    TMP = 24; XB = 64
    vST = 106; vCW = 110; vCR = [111, 114]; vSR = 115
    STV = 244
    TD, vK0, vK1, vV, vO0, vO1 = 10, 11, 12, 13, 14, 15
    bWO0, bWO1, bGU, bF2A, vF1A, vHC, vTO = 22, 23, 86, 87, 85, 84, 83
    sGR, sCT = "s60", "s61"
    ROTX = f"""s_and_b32 s5, s2, 1
    s_mul_i32 s5, s5, {OPT.get('ro', 0)}
    s_add_u32 s4, s4, s5
    s_add_u32 s4, s4, {sCT}
    s_add_u32 s4, s4, {sGR}
    s_cmp_ge_u32 s4, 10
    s_cselect_b32 s5, 10, 0
    s_sub_u32 s4, s4, s5"""
    def slot(c): return (c % 5) * 32768
    if PROF:
        for i in range(13): a(f"s_mov_b32 s{88+i}, 0")
    a.stamp(0)
    a(f"""s_load_dwordx16 s[64:79], s[0:1], 0
    s_load_dwordx4 s[80:83], s[0:1], 64
    s_load_dwordx2 s[84:85], s[0:1], 80
    s_getpc_b64 s[4:5]
    CODE_START:
    s_cmp_ge_u32 s2, 256
    s_cbranch_scc1 L_EXIT
    s_lshr_b32 s63, s2, 3             ; idx
    s_lshl_b32 s3, s63, 7
    v_lshl_add_u32 v4, v0, 12, s3
    v_cmp_gt_u32 vcc, CODE_END-CODE_START, v4""")
    masked_load(a, 250, 4, 4, "L_NOPF")
    a(f"""v_and_b32 v1, 63, v0
    v_lshrrev_b32 v4, 6, v0
    v_and_b32 v2, 15, v0
    v_readfirstlane_b32 {sW}, v4
    v_lshrrev_b32 v3, 4, v1
    s_and_b32 s3, s63, 3
    s_lshr_b32 {sCT}, s63, 2
    s_bfe_u32 {sGR}, s2, 0x20001
    s_mul_i32 s4, s3, 5
    s_lshr_b32 s4, s4, 1
    {ROTX}
    s_cmp_ge_u32 s4, 10
    s_cselect_b32 s5, 10, 0
    s_sub_u32 s4, s4, s5              ; rot
    s_lshl_b32 {sGR}, {sGR}, 2
    s_add_u32 {sGR}, {sGR}, s3
    s_and_b32 s3, s2, 1
    s_lshl_b32 s3, s3, 3
    s_add_u32 {sCT}, {sCT}, s3
    s_lshl_b32 s28, s4, 7
    s_mul_i32 s29, s4, 245760
    s_and_b32 {sLO}, {sW}, 3
    s_lshr_b32 {sHI}, {sW}, 2
    s_lshl_b32 s3, {sGR}, 7
    s_lshl_b32 s4, {sLO}, 3
    s_add_u32 s3, s3, s4
    v_lshrrev_b32 v4, 3, v1
    v_add_u32 v4, s3, v4
    v_mul_u32_u24 v4, 1280, v4
    s_and_b32 s3, {sLO}, 1
    s_lshl_b32 s3, s3, 2
    v_or_b32 v5, s3, v3
    v_and_b32 v6, 7, v1
    v_xor_b32 v5, v5, v6
    v_lshl_add_u32 v{vXD}, v5, 4, v4
    s_lshl_b32 s3, {sLO}, 2
    v_add_u32 v4, s3, v3
    v_mul_u32_u24 v4, 3840, v4
    s_lshl_b32 s3, {sLO}, 1
    s_and_b32 s3, s3, 4
    v_or_b32 v5, s3, v3
    v_lshlrev_b32 v5, 1, v5
    v_xor_b32 v5, v5, v2
    v_lshl_add_u32 v4, v5, 4, v4
    s_lshl_b32 s3, {sCT}, 8
    v_add_u32 v{vWD}, s3, v4
    s_lshl_b32 s30, {sLO}, 10
    s_waitcnt lgkmcnt(0)""")
    a.stamp(1)
    srd(a, 8, P_X, 2621440)
    srd(a, 12, P_WQKV, 2457600)
    def dmaA(c, fill=None):
        b = slot(c)
        for k in range(4):
            a(f"""s_add_u32 m0, s30, {b + 4096*k}
            s_add_u32 s31, s28, {40960*k}
            buffer_load_dwordx4 v{vXD}, s[8:11], s31 offen lds""")
            if fill: a(fill[2*k])
            a(f"""s_add_u32 m0, s30, {b + 16384 + 4096*k}
            s_add_u32 s31, s29, {61440*k}
            buffer_load_dwordx4 v{vWD}, s[12:15], s31 offen lds""")
            if fill: a(fill[2*k + 1])
        a(f"""s_add_u32 s28, s28, 128
        s_add_u32 s29, s29, 245760
        s_cmp_ge_u32 s28, 1280
        s_cselect_b32 s28, 0, s28
        s_cselect_b32 s29, 0, s29""")
    a(f"""s_cmp_eq_u32 {sCT}, 15
    s_cbranch_scc1 L_ND0
    s_cmp_eq_u32 {sHI}, 0
    s_cbranch_scc1 L_ND0""")
    dmaA(0)
    a("L_ND0:")
    def signal(vm, sfx):
        a(f"""s_cmp_lg_u32 {sW}, 0
        s_cbranch_scc1 L_NOSIG{sfx}
        s_and_b32 s3, s2, 31
        s_lshl_b32 s3, s3, 2
        s_add_u32 s3, s3, 128
        v_mov_b32 v4, s3
        v_mov_b32 v5, 1
        s_lshl_b32 s3, {sGR}, 2
        v_mov_b32 v6, s3
        s_waitcnt vmcnt({vm})
        s_mov_b64 exec, 1
        {f"global_store_dword v6, v5, s[{P_DBG}:{P_DBG+1}] sc1" if sfx == "H" else ""}
        global_atomic_add v4, v5, s[{P_DBG}:{P_DBG+1}] sc1
        {MALL}
        L_NOSIG{sfx}:""")
    srd(a, 16, P_WS, WS_SIZE)
    a(f"""s_lshl_b32 s4, {sCT}, 4
    s_add_u32 s4, s4, {sGR}
    s_lshl_b32 s4, s4, 7
    s_add_u32 s59, s4, {F1_OFF}
    v_mov_b32 v{NEG}, -1
    v_mov_b32 v{NEG+1}, -1
    v_mov_b32 v{NEG+2}, -1
    v_mov_b32 v{NEG+3}, -1
    s_cmp_lg_u32 {sW}, 0
    s_cbranch_scc1 L_NOCLR
    s_lshl_b32 s3, s2, 10
    s_add_u32 s3, s3, {PART_OFF}
    v_lshl_add_u32 v6, v1, 4, s3
    buffer_store_dwordx4 {q4(NEG)}, v6, {WSR}, 0 offen sc1
    s_mov_b32 s3, {PARTB}
    buffer_store_dwordx4 {q4(NEG)}, v6, {WSR}, s3 offen sc1
    s_mov_b32 s3, {EP_OFF - PART_OFF}
    buffer_store_dwordx4 {q4(NEG)}, v6, {WSR}, s3 offen sc1
    s_mov_b32 s3, {EP_OFF - PART_OFF + 0x40000}
    buffer_store_dwordx4 {q4(NEG)}, v6, {WSR}, s3 offen sc1
    s_lshl_b32 s6, s2, 7
    s_add_u32 s5, s6, {XS_OFF - 256}
    s_add_u32 s6, s6, {ACT_OFF - 128}
    s_lshl_b32 s7, s2, 6
    s_add_u32 s7, s7, {KEY_OFF - 384}
    v_mov_b32 v6, s59
    v_mov_b32 v7, s6
    v_cmp_le_u32 vcc, 8, v1
    v_cndmask_b32 v6, v6, v7, vcc
    v_mov_b32 v7, s5
    v_cmp_le_u32 vcc, 16, v1
    v_cndmask_b32 v6, v6, v7, vcc
    v_mov_b32 v7, s7
    v_cmp_le_u32 vcc, 24, v1
    v_cndmask_b32 v6, v6, v7, vcc
    v_lshl_add_u32 v6, v1, 4, v6
    s_mov_b64 exec, 0xfffffff
    buffer_store_dwordx4 {q4(NEG)}, v6, {WSR}, 0 offen sc1
    {MALL}
    s_cmp_lg_u32 {sCT}, 15
    s_cbranch_scc1 L_NOCLR
    s_lshl_b32 s3, {sGR}, 10
    s_add_u32 s3, s3, {ST_OFF}
    v_lshl_add_u32 v6, v1, 4, s3
    buffer_store_dwordx4 {q4(NEG)}, v6, {WSR}, 0 offen sc1
    L_NOCLR:
    s_cmp_lg_u32 {sCT}, 15
    s_cbranch_scc1 L_PRE""")
    HX = 136
    a(f"""s_lshl_b32 s3, {sGR}, 7
    s_lshl_b32 s4, {sW}, 4
    s_add_u32 s3, s3, s4
    v_lshrrev_b32 v4, 3, v1
    v_add_u32 v4, s3, v4
    v_mul_u32_u24 v4, 1280, v4
    v_and_b32 v5, 7, v1
    v_lshl_add_u32 v{vXD}, v5, 4, v4
    s_mov_b32 s5, 10240""")
    for i in range(20): a(f"buffer_load_dwordx4 {q4(HX+4*i)}, v{vXD}, s[8:11], {'s5' if i & 1 else '0'} offen offset:{128*(i >> 1)}")
    a("v_mov_b32 v8, 0x3f803f80")
    for r in range(8): a(f"v_mov_b32 v{24+r}, 0")
    for i in range(20):
        a(f"s_waitcnt vmcnt({19-i})")
        if i == 0: signal(63, "H")
        for r in range(4):
            x = HX + 4*i + r; d = 24 + 4*(i & 1) + 2*(r & 1)
            a(f"v_dot2_f32_bf16 v{d}, v{x}, v8, v{d}\n v_dot2_f32_bf16 v{d+1}, v{x}, v{x}, v{d+1}")
    a("""s_nop 3
    v_add_f32 v24, v24, v26
    v_add_f32 v25, v25, v27
    v_add_f32 v26, v28, v30
    v_add_f32 v27, v29, v31""")
    for pat in ("quad_perm:[1,0,3,2]", "quad_perm:[2,3,0,1]", "row_half_mirror"):
        for v in range(24, 28): a(f"v_add_f32_dpp v{v}, v{v}, v{v} {pat} row_mask:0xf bank_mask:0xf")
    a("""v_and_b32 v6, 1, v1
    v_cmp_eq_u32 s[6:7], 1, v6
    v_cndmask_b32 v24, v24, v26, s[6:7]
    v_cndmask_b32 v25, v25, v27, s[6:7]""")
    ln_scalars(a, 24, 25)
    a(f"""v_min_u32 v24, -2, v24
    v_min_u32 v25, -2, v25
    v_lshrrev_b32 v4, 3, v1
    v_lshl_add_u32 v4, v6, 3, v4
    s_lshl_b32 s3, {sW}, 6
    v_lshl_add_u32 v4, v4, 2, s3
    ds_write2st64_b32 v4, v24, v25 offset0:0 offset1:2
    s_waitcnt lgkmcnt(0)
    s_barrier
    s_cmp_lg_u32 {sW}, 0
    s_cbranch_scc1 L_HB2
    v_lshlrev_b32 v4, 4, v1
    ds_read_b128 v[24:27], v4
    s_lshl_b32 s3, {sGR}, 10
    s_add_u32 s3, s3, {ST_OFF}
    s_waitcnt lgkmcnt(0)
    buffer_store_dwordx4 v[24:27], v4, {WSR}, s3 offen sc1
    L_HB2:""")
    if OPT.get("hw", 1):
        a(f"""s_mul_i32 s3, {sGR}, 51200
        v_lshl_add_u32 v4, v0, 7, s3
        v_cmp_gt_u32 vcc, 400, v0""")
        masked_load(a, 251, 4, P_WO, "L_HWT")
    if OPT.get("hr", 1):
        a("v_subrev_u32 v4, 448, v0\n v_cmp_gt_u32 vcc, 10, v4\n v_lshlrev_b32 v4, 7, v4")
        masked_load(a, 251, 4, P_WR, "L_HWR")
    if OPT.get("hd", 0):
        n = OPT["hd"]
        a(f"""s_mul_i32 s3, {sGR}, {n*128}
        v_lshl_add_u32 v4, v0, 7, s3
        v_cmp_gt_u32 vcc, {n}, v0""")
        masked_load(a, 251, 4, P_D, "L_HWD")
    a("s_barrier")
    a.stamp(7, 5)
    a("L_PRE:")
    a.stamp(1, 1)
    a(f"""s_and_b32 s3, s2, 7
    s_lshl_b32 {sHP}, s3, 1
    s_lshr_b32 s4, s63, 4
    s_add_u32 {sHP}, {sHP}, s4
    s_and_b32 {sRB}, s63, 15
    s_lshl_b32 {sRB2}, s3, 2
    s_lshr_b32 s5, s63, 3
    s_add_u32 {sRB2}, {sRB2}, s5
    s_and_b32 {sCS}, s63, 7
    s_min_u32 s4, s3, 5
    s_sub_u32 {sROLE}, {sRB2}, s4
    s_cmp_eq_u32 s5, 3
    s_cselect_b32 s4, s3, 7
    s_add_u32 s3, s3, 32
    s_cmp_lt_u32 s4, 5
    s_cselect_b32 {sROLE}, s3, {sROLE}
    v_lshrrev_b32 v4, 1, v2
    v_xor_b32 v4, v4, v3
    v_lshlrev_b32 v4, 4, v4
    v_lshl_add_u32 v4, v2, 7, v4
    s_lshr_b32 s33, {sLO}, 1          ; wr
    s_lshl_b32 s3, s33, 13
    v_add_u32 v{vAS}, s3, v4
    v_xor_b32 v{vAS+1}, 64, v{vAS}
    v_bfe_u32 v4, v1, 2, 2
    v_and_b32 v5, 1, v3
    v_lshl_or_b32 v5, v5, 2, v4
    v_lshl_add_u32 v4, v3, 3, v4
    v_lshlrev_b32 v4, 8, v4
    v_and_b32 v6, 3, v1
    v_lshl_add_u32 v4, v6, 3, v4
    v_add_u32 v4, 16384, v4
    s_and_b32 s32, {sLO}, 1
    s_lshl_b32 s32, s32, 2
    s_lshl_b32 s3, s33, 1
    s_add_u32 s32, s32, s3
    v_xor_b32 v6, s32, v5
    v_lshl_add_u32 v{vAS+2}, v6, 5, v4
    v_xor_b32 v{vAS+3}, 32, v{vAS+2}
    v_xor_b32 v{vAS+4}, 64, v{vAS+2}
    v_xor_b32 v{vAS+5}, 0x60, v{vAS+2}""")
    for q in (1, 2):
        for i in range(6): a(f"v_add_u32 v{vAS+6*q+i}, {65536*q}, v{vAS+i}")
    for i in range(4): a(f"v_mov_b32 v{ONES+i}, 0x3f803f80")
    if OPT.get("z2", 1):
        a(f"""s_cmp_eq_u32 {sCT}, 15
        s_cbranch_scc1 L_KEEP1
        s_mov_b32 exec_lo, 0xfffefffe
        s_mov_b32 exec_hi, 0xfffefffe""")
        for i in range(4): a(f"v_mov_b32 v{ONES+i}, 0")
        a(f"{MALL}\n L_KEEP1:")
    a(f"""    ; epilogue addresses
    s_cmp_ge_u32 {sCT}, 10
    s_cselect_b64 s[56:57], -1, 0
    v_lshlrev_b32 v6, 4, v3
    v_lshlrev_b32 v7, 2, v2
    v_cndmask_b32 v8, v6, v7, s[56:57]
    v_cndmask_b32 v9, v7, v6, s[56:57]
    s_lshl_b32 s3, s32, 6
    s_add_u32 s3, s3, {SCR+1024}
    v_add_u32 v{vCW}, s3, v7
    v_add_u32 v{vCR[0]}, s3, v8
    v_xor_b32 v{vCR[1]}, 0x80, v{vCR[0]}
    s_lshl_b32 s3, s33, 8
    s_add_u32 s3, s3, {SCR}
    v_add_u32 v{vSR}, s3, v9
    s_mul_i32 s3, {sCT}, 52
    s_lshr_b32 s3, s3, 8              ; section
    s_mul_i32 s4, s3, 5
    s_sub_u32 s34, {sCT}, s4          ; ct % 5
    s_mul_i32 s37, s3, {K_OFF}
    s_lshl_b32 s4, {sGR}, 2
    s_lshl_b32 s5, s33, 1
    s_add_u32 s4, s4, s5
    s_mul_i32 s4, s4, {T32}
    s_add_u32 s37, s37, s4
    s_cmp_eq_u32 s3, 0
    s_cselect_b32 s36, {QSCALE:#x}, 1.0
    v_lshrrev_b32 v5, 1, v3
    v_and_b32 v4, 1, v3
    v_lshl_add_u32 v8, v4, 1, v5      ; 2(g&1) + (g>>1)
    v_mul_u32_u24 v7, 640, v8""")
    for u in range(4):
        a(f"""s_xor_b32 s4, s32, {2*u if u < 2 else 0}
        s_lshl_b32 s4, s4, 1
        s_lshl_b32 s3, s34, 4
        s_add_u32 s3, s3, s4
        v_add_u32 v4, s3, v8
        v_mul_u32_u24 v6, 13108, v4
        v_lshrrev_b32 v6, 16, v6
        v_mul_u32_u24 v6, {64*T32 - 5*512}, v6
        v_lshl_add_u32 v6, v4, 9, v6
        v_lshl_add_u32 v9, v2, 4, v6""" if u < 2 else "")
        a(f"""s_xor_b32 s4, s32, {u}
        s_lshl_b32 s4, s4, 4
        s_lshl_b32 s3, s34, 7
        s_add_u32 s3, s3, s4
        v_add_u32 v4, s3, v2
        v_mul_u32_u24 v6, 1639, v4
        v_lshrrev_b32 v6, 16, v6
        v_mul_u32_u24 v6, {64*T32 - 640}, v6
        v_lshl_add_u32 v6, v4, 4, v6
        v_add_u32 v6, v6, v7
        v_cndmask_b32 v{vST+u}, v9, v6, s[56:57]""")
    a(f"""s_cmp_eq_u32 {sCT}, 15
    s_cbranch_scc1 L_PRE2
    s_cmp_eq_u32 {sHI}, 0
    s_cbranch_scc1 L_PRE2""")
    dmaA(1)
    a("L_PRE2:")
    div_lane(a, 8, 9, 1, 10)
    a(f"""s_and_b32 s3, {sW}, 1
    s_lshl_b32 s3, s3, 2
    v_add_u32 v4, s3, v8
    v_mul_u32_u24 v4, 1280, v4
    s_mul_i32 s3, s3, 5
    s_add_u32 s3, s3, 16
    v_add_u32 v5, s3, v8
    v_mul_u32_u24 v5, 1280, v5
    s_mul_i32 s3, {sCS}, 160
    v_lshl_add_u32 v6, v9, 4, s3
    v_add_u32 v{bWO0}, v4, v6
    v_add_u32 v{bWO1}, v5, v6
    s_lshl_b32 s3, {sRB}, 2
    s_add_u32 s3, s3, {sLO}
    s_mul_i32 s3, s3, 40960
    s_add_u32 s3, s3, {O_OFF}
    s_lshl_b32 s4, {sHP}, 1
    s_add_u32 s4, s4, {sHI}
    s_lshl_b32 s5, s4, 10
    s_add_u32 s5, s5, s3
    v_lshl_add_u32 v{vO0}, v1, 4, s5
    s_lshl_b32 s5, s4, 8
    s_add_u32 s5, s5, s3
    s_add_u32 s5, s5, 32768
    v_lshl_add_u32 v{vO1}, v1, 3, s5
    s_mul_i32 s3, {sCS}, 80
    v_lshrrev_b32 v4, 3, v1
    v_add_u32 v4, s3, v4
    v_mul_u32_u24 v4, 3456, v4
    v_and_b32 v5, 7, v1
    v_lshl_add_u32 v4, v5, 4, v4
    s_lshl_b32 s3, {sROLE}, 7
    v_add_u32 v{bGU}, s3, v4
    s_cmp_ge_u32 {sW}, 3
    s_cselect_b32 s4, 1, 0            ; kv
    s_mul_i32 s5, s4, 3
    s_sub_u32 s5, {sW}, s5
    s_mov_b32 s70, s4
    s_mov_b32 s71, s5
    s_add_u32 s5, s5, {sRB}
    s_sub_u32 s5, s5, 2
    s_max_i32 s5, s5, 0
    s_min_i32 s5, s5, 15
    s_mul_i32 s4, s4, 80
    s_add_u32 s4, s4, 80
    s_add_u32 s4, s4, s5
    v_mov_b32 v4, s4
    v_mov_b32 v5, {sRB}
    v_cmp_gt_u32 vcc, 2, v1
    v_cndmask_b32 v4, v5, v4, vcc
    s_mul_i32 s3, {sHP}, 40
    v_and_b32 v7, 1, v1
    v_mul_u32_u24 v7, 39, v7
    v_add_u32 v7, s3, v7
    v_lshrrev_b32 v7, 7, v7
    v_lshl_add_u32 v4, v7, 4, v4
    v_lshlrev_b32 v4, 7, v4
    v_add_u32 v{vF1A}, {F1_OFF}, v4
    v_bfe_u32 v4, v1, 2, 1
    v_lshlrev_b32 v4, 9, v4
    v_and_b32 v5, 3, v1
    v_lshl_add_u32 v4, v5, 13, v4
    s_lshr_b32 s3, {sRB2}, 1
    s_and_b32 s4, s3, 3
    s_lshl_b32 s4, s4, 7
    s_lshr_b32 s3, s3, 2
    s_lshl_b32 s3, s3, 11
    s_add_u32 s3, s3, s4
    s_lshl_b32 s4, {sHI}, 10
    s_add_u32 s3, s3, s4
    s_add_u32 s3, s3, {F1_OFF + 32}
    v_add_u32 v{bF2A}, s3, v4
    v_bfe_u32 v4, v1, 2, 1
    v_lshlrev_b32 v4, 11, v4
    v_lshl_add_u32 v4, v5, 7, v4
    s_and_b32 s3, {sCT}, 14
    s_lshl_b32 s3, s3, 11
    s_and_b32 s4, {sGR}, 12
    s_lshl_b32 s4, s4, 7
    s_add_u32 s3, s3, s4
    s_add_u32 s3, s3, {F1_OFF + 32}
    v_add_u32 v4, s3, v4
    v_cmp_le_u32 vcc, 8, v1
    v_cndmask_b32 v{bF2A}, v{bF2A}, v4, vcc
    s_mul_i32 s3, s63, 200
    s_mul_i32 s4, {sLO}, 50
    s_add_u32 s3, s3, s4
    v_add_u32 v4, s3, v1
    v_lshlrev_b32 v{vTO}, 7, v4
    v_subrev_u32 v4, {128 + 256*OPT.get('guh', 1)}, v0
    v_lshrrev_b32 v5, 1, v4
    s_mul_i32 s3, s63, 54
    v_add_u32 v5, s3, v5
    v_mul_u32_u24 v5, 1280, v5
    v_and_b32 v4, 1, v4
    v_lshl_add_u32 v5, v4, 7, v5
    s_and_b32 s3, s2, 7
    s_lshl_b32 s3, s3, 8
    v_add_u32 v{TD}, s3, v5
    v_or_b32 v8, 32, v1
    v_lshlrev_b32 v8, 2, v8
    s_lshl_b32 s3, {sGR}, 10
    s_add_u32 s35, s3, {ST_OFF}""")
    srd(a, 44, P_WO, 819200)
    a(f"""s_lshr_b32 s3, {sLO}, 1
    s_mul_i32 s41, s3, {80*1280}
    s_mul_i32 s40, s3, 10240
    s_and_b32 s3, {sW}, 1
    s_mul_i32 s3, s3, 1280
    s_add_u32 s40, s40, s3""")
    def wo_early(k):
        z, h, y = (k >> 1) & 3, k & 1, k >> 3
        return f"""s_add_u32 m0, s40, {WOL + 640*h + 2560*z + 20480*y}
        s_add_u32 s42, s41, {8*1280*h + 20*1280*z + 160*1280*y}
        {M40}
        buffer_load_dwordx4 v{bWO0}, s[44:47], s42 offen lds
        {MALL}"""
    WE = OPT.get("we", 1); WES = OPT.get("wes", 17)
    wo_touch = f"""s_mov_b32 exec_hi, 0x3ffff
        global_load_dword v252, v{vTO}, s[{P_WO}:{P_WO+1}]
        {MALL}"""
    def clr_check(L, sl=None):
        a(f"v_cmp_gt_u32 vcc, 8, v9\n s_cbranch_vccz {L}_OK")
        spin_head(a, L)
        a(f"""global_load_dword v9, v8, s[{P_DBG}:{P_DBG+1}] sc1
        s_waitcnt vmcnt(0)
        v_cmp_gt_u32 vcc, 8, v9""")
        spin_tail(a, L, sl)
    a.stamp(2, 1)
    a(f"s_cmp_eq_u32 {sCT}, 15\n s_cbranch_scc1 L_HELP")
    a(f"s_cmp_lg_u32 {sHI}, 0\n s_cbranch_scc1 L_LOADER")
    a("s_barrier")
    a.stamp(2); a.stamp(3, 1)
    def FA(b, t): return FR + 32*b + 4*t
    def FB(b, c): return FR + 32*b + 16 + 4*c
    def a1_reads(n):
        c, ks, b = n >> 1, n & 1, n & 1
        sl = c % 5
        base, off = vAS + 6*(sl // 2), (sl % 2) * 32768
        A = [f"ds_read_b128 {q4(FA(b, t))}, v{base+ks} offset:{off + 2048*t}" for t in range(4)]
        B = [f"ds_read_b64_tr_b16 {q2(FB(b, c2)+2*h)}, v{base+2+c2} offset:{off + 8192*ks + 1024*h}" for c2 in range(4) for h in range(2)]
        L = B[0:4] + [A[0], A[1], A[2], A[3]] + B[4:8]
        if n == 18:
            L = L + [f"ds_read_b64_tr_b16 {q2(XB+4*c2+2*h)}, v{base+2+c2} offset:{off + 8192 + 1024*h}" for c2 in range(2) for h in range(2)]
        return L
    def a1_mfmas(n, isv):
        b = n & 1; f = n == 0
        L = [] if n == 19 else [(mm16(CS, ONES, FB(b, 0), f), 1), (mm16(CS+4, ONES, FB(b, 1), f), 3)]
        def mn(t, c):
            d = ACC + 16*t + 4*c
            return mm16(d, FA(b, t), FB(b, c), f) if isv else mm16(d, FB(b, c), FA(b, t), f)
        for t in range(4):
            for c in range(2): L.append((mn(t, c), 4 + t))
        if n == 18: L += [(mm16(CS, ONES, XB, False), 15), (mm16(CS+4, ONES, XB+4, False), 15)]
        if n == 19:
            for t in range(4):
                for c in (2, 3): L.append((mn(t, c), 11))
        else:
            for c in (2, 3):
                for t in range(4): L.append((mn(t, c), 5 + 2*c))
        return L
    def ep_reads(isv):
        if not isv:
            return [f"ds_read_b128 {q4(TMP+4*u)}, v{vCR[u >> 1]} offset:{64*(u & 1)}" for u in range(4)] + \
                   [f"ds_read2_b32 {q2(TMP+16+2*t)}, v{vSR} offset0:{16*t} offset1:{128+16*t}" for t in range(4)]
        L = [f"ds_read_b32 v{TMP+2*u}, v{vCR[u >> 1]} offset:{64*(u & 1)}" for u in range(4)]
        for t in range(4):
            L += [f"ds_read_b128 {q4(TMP+8+8*t)}, v{vSR} offset:{64*t}", f"ds_read_b128 {q4(TMP+12+8*t)}, v{vSR} offset:{512+64*t}"]
        return L
    BP = OPT.get("bp", 2)
    for x in a1_reads(0): a(x)
    a(f"s_cmp_ge_u32 {sCT}, 10\n s_cbranch_scc1 L_A1_1")
    def a1(isv):
        tag = str(int(isv))
        a(f"L_A1_{tag}:")
        for n in range(20):
            c = n >> 1
            Rn = a1_reads(n + 1) if n < 19 else ep_reads(isv)
            nr = len(a1_reads(n))
            M = a1_mfmas(n, isv)
            issued = 0; done = -1
            bp = (OPT.get('bp15', 6) if n == 15 else 0 if n == 17 else BP) if (n & 1) else 0
            for k, (m, need) in enumerate(M):
                if (n & 1) and k == (OPT.get('bp15', 6) if n == 15 else bp) and n != 17:
                    if n == 19: a("s_waitcnt lgkmcnt(0)"); done = 99
                    a("s_barrier")
                    if c in (0, 1, 2, 3, 4, 5, 6, 8): a.stamp({0:4, 1:5, 2:6, 3:7, 4:8, 5:9, 6:10, 8:11}[c], 1)
                if need > done:
                    ex = 2 if n == 19 else 0
                    a(f"s_waitcnt lgkmcnt({min(15, nr - 1 - need + issued + ex)})"); done = need
                a(m)
                if k >= bp and Rn: a(Rn.pop(0)); issued += 1
            for x in Rn: a(x)
            if n == 0: signal(0, "C" + tag)
            if n == 18:
                a(f"""s_mov_b64 exec, 0xffff
                ds_write_b32 v{vCW}, v{CS}
                ds_write_b32 v{vCW}, v{CS+4} offset:64
                {MALL}""")
        a.stamp(3); a.stamp(1, 2); a.stamp(6, 5)
        if not isv:
            for t in range(4):
                a(f"s_waitcnt lgkmcnt({3-t})\n v_mul_f32 v{TMP+24+2*t}, s36, v{TMP+17+2*t}")
                for pr in range(2):
                    o = PK + 8*t + 4*pr
                    E = [ACC + 16*t + 8*pr + e for e in range(0, 8, 2)]
                    for i, d in enumerate(E):
                        a(f"v_pk_fma_f32 {q2(d)}, {q2(TMP+8*pr+2*i)}, {q2(TMP+16+2*t)}, {q2(d)} op_sel_hi:[1,0,1] neg_lo:[1,0,0] neg_hi:[1,0,0]")
                    for d in E: a(f"v_pk_mul_f32 {q2(d)}, {q2(d)}, {q2(TMP+24+2*t)} op_sel_hi:[1,0]")
                    for i, d in enumerate(E): a(f"v_cvt_pk_bf16_f32 v{o+i}, v{d}, v{d+1}")
                    a(f"""v_permlane16_swap_b32 v{o}, v{o+2}
                    v_permlane16_swap_b32 v{o+1}, v{o+3}
                    buffer_store_dwordx4 {q4(o)}, v{vST+pr}, {WSR}, s37 offen offset:{(t >> 1)*T32 + (t & 1)*256} sc1""")
        else:
            for p in range(2):
                a(f"s_waitcnt lgkmcnt({4-4*p})")
                for c in range(4):
                    o = PK + 16*p + 4*c
                    ds = [(ACC + 16*(2*p+tt) + 4*c + e, 2*p + tt, e, tt) for tt in range(2) for e in (0, 2)]
                    for d, t, e, tt in ds:
                        a(f"v_pk_fma_f32 {q2(d)}, {q2(TMP+8+8*t+e)}, {q2(TMP+2*c)}, {q2(d)} op_sel_hi:[1,0,1] neg_lo:[1,0,0] neg_hi:[1,0,0]")
                    for d, t, e, tt in ds: a(f"v_pk_mul_f32 {q2(d)}, {q2(d)}, {q2(TMP+12+8*t+e)}")
                    for d, t, e, tt in ds: a(f"v_cvt_pk_bf16_f32 v{o+2*tt+e//2}, v{d}, v{d+1}")
                    a(f"""v_permlane16_swap_b32 v{o}, v{o+2}
                    v_permlane16_swap_b32 v{o+1}, v{o+3}
                    buffer_store_dwordx4 {q4(o)}, v{vST+c}, {WSR}, s37 offen offset:{p*T32} sc1""")
        a("s_branch L_HOP")
    a1(False); a1(True)
    def wo_defs():
        srd(a, 8, P_WO, 819200)
        a(f"""s_and_b32 s31, {sW}, 1
    s_mul_i32 s31, s31, 1280
    s_mov_b32 s101, s59""")
    def dma_wo(p):
        if OPT.get("nowo"): return
        kh, q = p // 5, p % 5
        if q < 4: v, so, hs = bWO0, (4*kh + q) * 80 * 1280, 8 * 1280
        else:     v, so, hs = bWO1, kh * 320 * 1280, 40 * 1280
        zs = 20 * 1280 if q < 4 else 80 * 1280
        for z in range(4):
            for h in range(2):
                a(f"""s_add_u32 m0, s31, {WOL + p*10240 + 640*h + 2560*z}
                s_mov_b32 s3, {so + hs*h + zs*z}
                buffer_load_dwordx4 v{v}, s[8:11], s3 offen lds""")
    a(f"L_LOADER:\n v_lshlrev_b32 v7, 4, v1\n s_lshl_b32 s3, {sGR}, 2\n v_mov_b32 v24, s3\n v_mov_b32 v25, 0")
    vq = ["c0"]*8 + ["c1"]*8
    nis = [0]
    def vwait(tag):
        nonlocal vq
        idx = [i for i, t in enumerate(vq) if t == tag]
        if not idx: return
        a(f"s_waitcnt vmcnt({min(63, len(vq) - 1 - idx[-1])})")
        vq = vq[idx[-1] + 1:]
    W8 = 16; WTC = OPT.get("wtc", 11); D4 = OPT.get("d4", 99); W6 = OPT.get("w6", 0)
    vwait("c0"); a("s_barrier")
    dmaA(2); vq += ["c2"]*8
    nxt = 3
    for c in range(8):
        vwait(f"c{c+1}" if c < 7 else "c9")
        a("s_barrier")
        lim = c + 4 if c >= D4 else c + 3
        while nxt <= min(lim, 9):
            dmaA(nxt); vq += [f"c{nxt}"]*8; nxt += 1
        if c == WTC: a(wo_touch); vq.append("x")
        if c == OPT.get("ckh", 6):
            a(f"s_mov_b64 exec, 1\n global_load_dword v25, v24, s[{P_DBG}:{P_DBG+1}] sc1\n {MALL}"); vq.append("k")
        if c == 6:
            for k in range(W6): a(wo_early(k)); vq.append("x")
    vwait("k")
    a(f"s_cmp_lg_u32 {sW}, 7\n s_cbranch_scc1 L_ST")
    a("s_mov_b64 exec, 1\n v_cmp_ne_u32 vcc, 1, v25\n s_cbranch_vccz L_HF_OK")
    spin_head(a, "L_HF")
    a(f"global_load_dword v25, v24, s[{P_DBG}:{P_DBG+1}] sc1\n s_waitcnt vmcnt(0)\n v_cmp_ne_u32 vcc, 1, v25")
    spin_tail(a, "L_HF")
    a(MALL)
    if OPT.get("ssl", 0): a(f"s_sleep {OPT['ssl']}")
    a(f"buffer_load_dwordx4 {q4(STV)}, v7, {WSR}, s35 offen sc1\n L_ST:")
    NE = OPT.get("ne", 0)
    if WTC == 8: a(wo_touch)
    for k in range(W6, NE): a(wo_early(k))
    nis[0] = NE - W6 + (WTC == 8); st = 0
    WX = OPT.get("wx", 0)
    def wx_part():
        wo_defs()
        a(f"{M40}\n s_cmp_ge_u32 {sW}, 6\n s_cbranch_scc1 L_WX")
        dma_wo(4)
        a("s_branch L_WXD\n L_WX:")
        dma_wo(5)
        a(f"L_WXD:\n {MALL}")
    def st_check(): a(f"v_max3_u32 v4, v{STV}, v{STV+1}, v{STV+2}\n v_max_u32 v4, v4, v{STV+3}\n v_cmp_eq_u32 vcc, -1, v4")
    a(f"s_cmp_lg_u32 {sW}, 7\n s_cbranch_scc1 L_SW")
    a.stamp(3, 5)
    a(f"s_waitcnt vmcnt({nis[0] - st})")
    a.stamp(4, 5)
    st_check()
    a("s_cbranch_vccz L_SP_OK")
    spin_head(a, "L_SP")
    a(f"buffer_load_dwordx4 {q4(STV)}, v7, {WSR}, s35 offen sc1\n s_waitcnt vmcnt(0)")
    st_check()
    spin_tail(a, "L_SP")
    a.stamp(5, 5)
    a(f"""v_add_u32 v7, {SCR}, v7
    ds_write_b128 v7, {q4(STV)}
    s_waitcnt lgkmcnt(0)
    L_SW:""")
    a("s_barrier")
    if WTC == 9:
        a.stamp(8, 5)
        a(wo_touch)
        if PROF and OPT.get("pg") == 5:
            a("s_waitcnt vmcnt(0)"); a.stamp(9, 5)
    a(f"s_cmp_lg_u32 {sW}, 7\n s_cbranch_scc1 L_LTAIL\n v_mov_b32 v9, 0")
    clr_check("L_CLR")
    a("L_LTAIL:")
    WL = 0
    if WX: wx_part()
    a("s_branch L_HOP")
    a("L_HELP:")
    a(f"s_cmp_eq_u32 {sHI}, 0\n s_cbranch_scc1 L_HOP\n v_mov_b32 v9, 0")
    clr_check("L_CLRS", 20)
    if WTC < 10: a(("s_sleep 40\n" if WTC == 9 else "") + wo_touch)
    for k in range(NE): a(wo_early(k))
    a("s_branch L_LTAIL")

    a("L_HOP:")
    a.stamp(4); a.stamp(3, 2)
    RPD = 56
    wo_defs()
    WO2 = 10
    def gu_loads(L, vg):
        if OPT.get("nogu"): return
        a(f"""s_cmp_lg_u32 {sHI}, {OPT.get("guh", 1)}
        s_cbranch_scc1 {L}
        s_cmp_ge_u32 {sROLE}, 32
        s_cbranch_scc1 {L}
        s_cmp_ge_u32 {sLO}, 2
        s_cselect_b32 s4, s{P_U}, s{P_G}
        s_cselect_b32 s5, s{P_U+1}, s{P_G+1}
        s_and_b32 s3, {sLO}, 1
        s_mul_i32 s3, s3, {40*3456}
        v_add_u32 v4, s3, v{vg}""")
        for i in range(5):
            a(f"global_load_dwordx4 {q4(RPD+4*i)}, v4, s[4:5] nt")
            if i < 4: a(f"v_add_u32 v4, {8*3456}, v4")
        a(f"{L}:")
    Q0, Q1 = 16, 20
    POOL = 24
    MK = 88; O = 96
    a(f"""v_and_b32 v2, 31, v0
    v_lshrrev_b32 v3, 5, v1
    s_mul_i32 s3, {sHP}, {64*T32}
    s_lshl_b32 s4, {sRB}, 2
    s_add_u32 s5, s4, {sLO}
    s_mul_i32 s5, s5, {T32}
    s_add_u32 s5, s5, s3
    v_lshl_add_u32 v4, v2, 4, s5
    s_mul_i32 s5, {sHI}, 1536
    v_lshl_add_u32 v5, v3, 9, v4
    v_add_u32 v80, s5, v5
    s_lshl_b32 s5, {sHI}, 3
    v_add_u32 v81, s5, v4
    v_mov_b32 v{Q1}, 0
    v_mov_b32 v{Q1+1}, 0
    s_sub_u32 s4, s4, 8
    s_mul_i32 s4, s4, {T32}
    s_mul_i32 s5, s71, 10240
    s_add_u32 s4, s4, s5
    v_lshl_add_u32 v82, v1, 4, s4
    s_mul_i32 s6, s70, 30720
    s_add_u32 s71, s5, s6
    s_add_u32 s71, s71, {KL}
    s_mul_i32 s6, s70, {V_OFF - K_OFF}
    s_add_u32 s3, s3, s6
    s_add_u32 s3, s3, {K_OFF}
    s_add_u32 s4, s{P_WS}, s3
    s_addc_u32 s5, s{P_WS+1}, 0""")
    srd(a, 12, 4, 64*T32)
    kappa(a, 4, 2, 5)
    a(f"""s_mul_i32 s3, {sLO}, {T32}
    s_add_u32 s3, s3, {KL}
    s_mul_i32 s4, {sHI}, 1536
    s_add_u32 s4, s4, s3
    v_lshlrev_b32 v5, 4, v4
    v_lshl_add_u32 v{vK0}, v3, 9, v5
    v_add_u32 v{vK0}, s4, v{vK0}
    s_lshl_b32 s4, {sHI}, 3
    s_add_u32 s4, s4, s3
    s_add_u32 s4, s4, 1024
    v_add_u32 v{vK1}, s4, v5
    v_cmp_gt_u32 vcc, 20, v2
    v_cndmask_b32 v5, 0, v5, vcc
    v_mul_u32_u24 v6, 640, v3
    s_mul_i32 s4, {sHI}, 320
    s_add_u32 s4, s4, s3
    s_add_u32 s4, s4, 30720
    v_add3_u32 v{vV}, v5, v6, s4
    v_lshlrev_b32 v4, 3, v3
    v_sub_u32 v4, v2, v4
    v_mov_b32 v5, 0xffff
    v_mov_b32 v6, 0xffff0000""")
    MS = 32
    for r in range(16): a(f"v_cmp_gt_i32 s[{MS+2*r}:{MS+1+2*r}], {(r&7) + 16*(r>>3)}, v4")
    for i in range(8):
        a(f"""v_cndmask_b32 v7, 0, v5, s[{MS+4*i}:{MS+1+4*i}]
        v_cndmask_b32 v8, 0, v6, s[{MS+2+4*i}:{MS+3+4*i}]
        v_or_b32 v{MK+i}, v7, v8""")
    FS = [128, 144, 160]
    FK = [176, 182, 188]
    FV = [POOL, POOL+8, POOL+16]; FV0 = POOL + 24
    FP = [200, 208]
    if OPT.get("z1", 1):
        a(f"v_mov_b32 v{POOL}, 0\n s_mov_b32 exec_lo, 0x11000000\n s_mov_b32 exec_hi, 0x11000000\n v_mov_b32 v{POOL}, 0x3f803f80\n {MALL}")
        for r in range(1, 32): a(f"v_mov_b32 v{POOL+r}, v{POOL}")
    else:
        for r in range(32): a(f"v_mov_b32 v{POOL+r}, 0x3f803f80")
    a(f"""s_lshl_b32 s3, {sRB}, 2
    s_add_u32 s3, s3, {sLO}
    s_sub_i32 s30, 8, s3              ; n_invalid
    s_mov_b32 s28, 0xfffff
    s_mov_b32 s29, 0xfffff""")
    XR, WR, WRS, F2V = 224, 234, 224, 244
    FH = OPT.get('fh', 0)
    LW = 3 if FH else 7
    vXA_, vROW = 84, 85
    def early_loads(L, who=3):
        a(f"""v_and_b32 v4, 15, v0
        v_bfe_u32 v5, v0, 4, 2
        s_lshl_b32 s3, {sRB2}, 6
        s_lshl_b32 s4, {sLO}, 4
        s_add_u32 s3, s3, s4
        v_add_u32 v4, s3, v4
        v_mul_u32_u24 v4, 1280, v4
        v_mul_u32_u24 v5, 40, v5
        s_mul_i32 s3, {sCS}, 160
        v_add_u32 v5, s3, v5
        v_add_u32 v4, v5, v4
        s_cmp_lg_u32 {sHI}, {FH}
        s_cbranch_scc1 {L}_H""")
        if who & 1: a(f"""global_load_dwordx4 {q4(XR)}, v4, s[{P_X}:{P_X+1}]
        global_load_dwordx4 {q4(XR+4)}, v4, s[{P_X}:{P_X+1}] offset:16
        global_load_dwordx2 {q2(XR+8)}, v4, s[{P_X}:{P_X+1}] offset:32
        global_load_dwordx4 {q4(WR)}, v5, s[{P_WR}:{P_WR+1}]
        global_load_dwordx4 {q4(WR+4)}, v5, s[{P_WR}:{P_WR+1}] offset:16
        global_load_dwordx2 {q2(WR+8)}, v5, s[{P_WR}:{P_WR+1}] offset:32""")
        a(f"""s_branch {L}_D
        {L}_H:
        v_lshlrev_b32 v4, 2, v1""")
        for i in range(5 if who & 2 else 0): a(f"global_load_dword v{WRS+i}, v4, s[{P_WR}:{P_WR+1}] offset:{256*i}")
        a(f"{L}_D:")
    PLAN = OPT.get("plan", 37)
    pre, post, inb = [
        ([[4], [5], [6], [7]], [[], [], [], [8, 9]], []),
        ([[], [], [4], [5]], [[], [], [], [6, 7]], [8, 9]),
        ([[], [], [], [4]], [[], [], [], [5, 6, 7]], [8, 9]),
        ([[], [], [4], [5]], [[], [], [], [6, 7, 8, 9]], []),
        ([[], [], [], [4]], [[], [], [], [5]], [6, 7, 8, 9]),
        ([[4], [5], [6], [7]], [[], [], [], []], [8, 9]),
        ([[], [], [], [4]], [[7], [8], [9], [5, 6]], []),
        ([[], [], [], []], [[7], [8], [9], [4, 5, 6]], []),
        ([[], [], [], [4, 5]], [[7], [8], [9], [6]], []),
        ([[4], [5], [], []], [[7], [8], [9], [6]], []),
        ([[4], [], [], []], [[7], [8], [9], [5, 6]], []),
        ([[4], [5], [], []], [[], [], [9], [6, 7, 8]], []),
        ([[], [], [], []], [[7], [8], [9], [6]], []),
        ([[], [], [7], [8]], [[], [], [9], [6]], []),
        ([[], [], [], [7]], [[8], [9], [], [6]], []),
        ([[], [], [7], [8]], [[], [], [], [6, 9]], []),
        ([[], [], [0], [1]], [[2], [3], [4], [5]], [6, 7, 8, 9]),
        ([[], [], [0], [1]], [[], [], [2], [3]], [4, 5, 6, 7, 8, 9]),
        ([[], [], [0, 2], [1, 3]], [[4], [5], [6], [7]], [8, 9]),
        ([[], [], [], []], [[0], [1], [2], [3]], [4, 5, 6, 7, 8, 9]),
        ([[], [], [0, 2], [1, 3]], [[], [], [4], [5]], [6, 7, 8, 9]),
    ][PLAN] if PLAN < 30 else [
        ([[], [], [], []], [[0], [1], [2], [3]], [4, 5, 6, 7, 8, 9]),
        ([[], [], [], []], [[], [], [], [0, 1]], [2, 3, 4, 5, 6, 7, 8, 9]),
        ([[], [], [], [4]], [[0], [1], [2], [3, 5]], [6, 7, 8, 9]),
        ([[], [], [], []], [[], [], [], []], [0, 1, 2, 3, 4, 5, 6, 7, 8, 9]),
        ([[], [], [], []], [[], [], [], [4, 5]], [6, 7, 8, 9]),
        ([[], [], [], []], [[4], [5], [6], [7]], [8, 9]),
        ([[], [], [], []], [[], [], [], []], [4, 5, 6, 7, 8, 9]),
        ([[], [], [4], [5]], [[0], [1], [2], [3]], [6, 7, 8, 9]),
        ([[], [], [0], [1]], [[], [], [2], [3]], [4, 5, 6, 7, 8, 9]),
        ([[], [], [0], [1]], [[], [], [], []], [2, 3, 4, 5, 6, 7, 8, 9]),
        ([[], [], [], []], [[0], [1], [], [2, 3]], [4, 5, 6, 7, 8, 9]),
        ([[], [], [4, 7], [5, 8]], [[0], [1], [2], [3]], [6, 9]),
        ([[], [], [4, 7], [5, 8]], [[0], [1], [], []], [2, 3, 6, 9]),
        ([[], [], [4], [5, 7]], [[0], [1], [2], [3, 8]], [6, 9]),
        ([[], [], [4], [5]], [[0], [1], [2], [3, 7, 8]], [6, 9]),
        ([[], [], [4, 7], [5, 8]], [[], [], [0], [1]], [2, 3, 6, 9]),
    ][PLAN - 30]
    a.stamp(6, 2)
    if W8 + WL < 16 and PLAN < 16:
        assert (W8 + WL) % 8 == 0
        y0 = (W8 + WL) // 8
        pre = [list(p) for p in pre]
        for y in range(y0, 2):
            pre[2].insert(0, 2*y); pre[3].insert(0, 2*y + 1)
    a(f"s_lshr_b32 s4, {sW}, 1\n v_mov_b32 v6, s101\n v_mov_b32 v7, 1")
    for pr in range(4):
        if pr < 3: a(f"s_cmp_lg_u32 s4, {pr}\n s_cbranch_scc1 L_PR{pr}")
        if pre[pr]: a(M40)
        for p in pre[pr]: dma_wo(p)
        a(f"{MALL}\n s_waitcnt vmcnt({8*len(pre[pr]) if pr < 2 else 63})")
        if pr < 3: a(f"s_branch L_PRD\n L_PR{pr}:")
    a("L_PRD:")
    a.stamp(4, 2)
    a(f"""s_barrier
    s_cmp_lg_u32 {sW}, 7
    s_cbranch_scc1 L_NOF1
    s_mov_b64 exec, 1
    buffer_store_dword v7, v6, {WSR}, 0 offen sc1
    {MALL}
    L_NOF1:""")
    a.stamp(5, 2)
    if WTC == 10: a(f"s_cmp_eq_u32 {sHI}, 0\n s_cbranch_scc1 L_NT10\n {wo_touch}\n L_NT10:")
    for pr in range(4):
        if post[pr]:
            a(f"s_cmp_lg_u32 s4, {pr}\n s_cbranch_scc1 L_PO{pr}\n {M40}")
            for p in post[pr]: dma_wo(p)
            a(f"{MALL}\n L_PO{pr}:")
    a.stamp(7, 2)
    PSL = OPT.get("psl", 4)
    a(f"""s_cmp_ge_u32 {sW}, 6
    s_cbranch_scc1 L_WOH
    s_mov_b64 exec, 15""")
    if OPT.get("fsl", 0): a(f"s_sleep {OPT['fsl']}")
    spin_head(a, "L_F1POLL")
    a(f"""buffer_load_dword v4, v{vF1A}, {WSR}, 0 offen sc1
    s_waitcnt vmcnt(0)
    v_cmp_ne_u32 s[6:7], 1, v4
    s_and_b64 vcc, s[6:7], 3""")
    spin_tail(a, "L_F1POLL", PSL)
    a(MALL)
    a.stamp(5); a.stamp(8, 2)
    for i in range(10):
        if i % 4 == 0:
            a(f"s_add_u32 m0, s71, {1024*i}\n v_add_u32 v4, {1024*i}, v82")
        a(f"buffer_load_dwordx4 v4, s[12:15], 0 offen offset:{1024*(i % 4)} sc1 lds")
    a(f"s_cmp_eq_u32 s6, 0\n s_cbranch_scc1 L_QPOLL_OK")
    a(f"""L_WOH:
    s_mov_b64 exec, 12""")
    spin_head(a, "L_QPOLL")
    a(f"""buffer_load_dword v4, v{vF1A}, {WSR}, 0 offen sc1
    s_waitcnt vmcnt(0)
    v_cmp_ne_u32 vcc, 1, v4""")
    spin_tail(a, "L_QPOLL", PSL)
    a(f"""{MALL}
    buffer_load_dwordx4 {q4(Q0)}, v80, {WSR}, 0 offen sc1
    s_mov_b32 exec_hi, 0
    buffer_load_dwordx2 {q2(Q1)}, v81, {WSR}, 0 offen offset:1024 sc1
    {MALL}""")
    a.stamp(6); a.stamp(9, 2)
    early_loads("L_EL0", 3 - OPT.get("elb", 1))
    a("s_waitcnt vmcnt(0)\n s_barrier")
    a.stamp(7); a.stamp(1, 4); a.stamp(10, 2)
    if OPT.get("bpr", 0): a(f"s_cmp_lg_u32 {sHI}, {OPT['bpr'] - 1}\n s_cbranch_scc1 L_NBP\n s_setprio 1\n L_NBP:")
    def kread(r, t): return f"ds_read_b128 {q4(r)}, v{vK0} offset:{T32*t}\n ds_read_b64 {q2(r+4)}, v{vK1} offset:{T32*t}"
    def vread(r, t, chk=True):
        m = f"s_cmp_gt_i32 s30, {t}\n s_cselect_b64 exec, -1, s[28:29]" if chk else "s_mov_b64 exec, s[28:29]"
        return f"""{m}
        ds_read_b128 {q4(r)}, v{vV} offset:{T32*t}
        ds_read_b128 {q4(r+4)}, v{vV} offset:{T32*t+1280}
        {MALL}"""
    def s1(s, k): return f"v_mfma_f32_32x32x16_bf16 {r16(s)}, {q4(k)}, {q4(Q0)}, 0"
    def s2(s, k): return f"v_mfma_f32_32x32x8_bf16 {r16(s)}, {q2(k+4)}, {q2(Q1)}, {r16(s)}"
    def pvm(v, p, first=False): return f"v_mfma_f32_32x32x16_bf16 {r16(O)}, {q4(v)}, {q4(p)}, {'0' if first else r16(O)}"
    seq = [8, 0, 7, 6, 5, 4, 3, 2, 1]
    vseq = [8, 7, 6, 5, 4, 3, 2, 1]
    def vbuf(t): return FV0 if t == 0 else FV[vseq.index(t) % 3]
    for n in range(3): a(kread(FK[n], seq[n]))
    def down_touch(vt):
        if OPT.get("notd"): return
        a(f"""s_and_b32 s3, s2, 7
        s_cmp_lt_u32 s3, 5
        s_cselect_b32 s3, 108, 0
        v_subrev_u32 v4, {128 + 256*OPT.get('guh', 1)}, v0
        v_cmp_gt_u32 vcc, s3, v4""")
        masked_load(a, 9, vt, P_D, "L_TD")
    LATEW = OPT.get('latew', 0)
    ENDW = OPT.get('endw', 1)
    def wo_slot(k):
        if ENDW: return
        if LATEW: return
        if 2*k < len(inb):
            a(f"s_lshr_b32 s4, {sW}, 1")
            for pr in range(2):
                a(f"s_cmp_lg_u32 s4, {pr}\n s_cbranch_scc1 L_WS{k}_{pr}\n {M40}"); dma_wo(inb[2*k + pr]); a(f"{MALL}\n L_WS{k}_{pr}:")
    a(vread(vbuf(8), 8, False)); a(vread(FV0, 0)); a(vread(vbuf(7), 7))
    a(f"s_waitcnt lgkmcnt(10)\n {s1(FS[0], FK[0])}\n {s2(FS[0], FK[0])}")
    a(f"s_waitcnt lgkmcnt(8)\n {s1(FS[1], FK[1])}\n {s2(FS[1], FK[1])}")
    a(kread(FK[0], seq[3]))
    if OPT.get('elb', 1): early_loads('L_EL', OPT.get('elb', 1))
    wo_slot(0); wo_slot(1)
    GUN = OPT.get('gun', 0)
    if WTC == 12: a(f"s_cmp_eq_u32 {sHI}, 0\n s_cbranch_scc1 L_NT12\n {wo_touch.replace('v252', 'v9')}\n L_NT12:")
    if GUN == 0: gu_loads('L_GUB', bGU); down_touch(TD)
    a(f"s_waitcnt lgkmcnt(8)\n {s1(FS[2], FK[2])}\n {s2(FS[2], FK[2])}")
    a(kread(FK[1], seq[4]))
    for r in range(16): a(f"v_cndmask_b32 v{FS[1]+r}, v{FS[0]+r}, v{FS[1]+r}, s[{MS+2*r}:{MS+1+2*r}]")
    def tile_body(s, p, extra, mid=None):
        for gq in range(4):
            for r in range(4*gq, 4*gq + 4):
                a(f"v_exp_f32{'_e64' if OPT.get('e64') else ''} v{s+r}, v{s+r}")
                if mid and r == 4*gq + 1 and gq < len(mid) and mid[gq]: a(mid[gq])
            if gq < len(extra) and extra[gq]: a(extra[gq])
            if gq > 0:
                for k in (2*gq - 2, 2*gq - 1): a(f"v_cvt_pk_bf16_f32 v{p+k}, v{s+2*k}, v{s+2*k+1}")
        for k in (6, 7): a(f"v_cvt_pk_bf16_f32 v{p+k}, v{s+2*k}, v{s+2*k+1}")
    tile_body(FS[1], FP[0], [f"s_waitcnt lgkmcnt(2)\n {s1(FS[0], FK[0])}", s2(FS[0], FK[0]), kread(FK[2], seq[5]) + "\n" + vread(vbuf(6), 6), None])
    for k in range(8): a(f"v_and_b32 v{216+k}, v{MK+k}, v{FP[0]+k}")
    for k in range(8): a(f"v_xor_b32 v{FP[0]+k}, v{216+k}, v{FP[0]+k}")
    a(pvm(FV0, 216, True)); wo_slot(2); a(pvm(FV0+4, 220))
    def repack(vm):
        if OPT.get("nogu") or OPT.get("norp"): return
        a(f"""s_cmp_ge_u32 {sROLE}, 32
        s_cbranch_scc1 L_NORP
        s_cmp_lg_u32 {sHI}, {OPT.get("guh", 1)}
        s_cbranch_scc1 L_NORP
        s_mul_i32 s3, {sROLE}, {8*20480}
        s_mul_i32 s4, {sCS}, 1280
        s_add_u32 s3, s3, s4
        s_lshr_b32 s4, {sLO}, 1
        s_mul_i32 s4, s4, 10240
        s_add_u32 s3, s3, s4
        s_and_b32 s4, {sLO}, 1
        s_mul_i32 s4, s4, 640
        s_add_u32 s3, s3, s4
        s_add_u32 s3, s3, {RP_OFF}
        v_lshrrev_b32 v8, 3, v1
        v_mul_u32_u24 v8, {20480 - 128}, v8
        v_lshl_add_u32 v8, v1, 4, v8
        v_and_b32 v4, 7, v1
        v_lshrrev_b32 v5, 3, v1
        v_lshl_add_u32 v4, v4, 3, v5
        v_lshlrev_b32 v4, 2, v4
        s_waitcnt vmcnt({vm}) lgkmcnt(0)""")
        for r in range(20):
            a(f"ds_bpermute_b32 v{RPD+r}, v4, v{RPD+r}")
        a("s_waitcnt lgkmcnt(0)")
        for i in range(5): a(f"buffer_store_dwordx4 {q4(RPD+4*i)}, v8, {WSR}, s3 offen offset:{128*i} sc1")
        a("L_NORP:")

    prevP, prevT = FP[0], 8
    for n in range(2, 9):
        t = seq[n]; p = FP[(n - 1) % 2]
        ex = [None]*4
        ex[0] = f"s_waitcnt lgkmcnt(0)\n {pvm(vbuf(prevT), prevP)}"
        ex[1] = pvm(vbuf(prevT) + 4, prevP + 4)
        if n + 2 <= 8:
            nb = (n + 2) % 3
            ex[2] = s1(FS[nb], FK[nb])
            ex[3] = s2(FS[nb], FK[nb])
        post = []
        if n + 4 <= 8: post.append(kread(FK[(n + 4) % 3], seq[n + 4]))
        if t - 2 >= 1: post.append(vread(vbuf(t - 2), t - 2))
        if OPT.get("bmid"):
            mid = [None, None, None, None]
            if n + 4 <= 8: mid[1] = post[0]
            if t - 2 >= 1: mid[3] = post[-1]
            tile_body(FS[n % 3], p, ex, mid)
        else:
            tile_body(FS[n % 3], p, ex)
            for x in post: a(x)
        wo_slot(n + 1)
        if n == GUN: gu_loads('L_GUB', bGU); down_touch(TD)
        if n == OPT.get("rpn", 10): repack(0)
        prevP, prevT = p, t
    a(f"s_waitcnt lgkmcnt(0)\n {pvm(vbuf(prevT), prevP)}\n {pvm(vbuf(prevT)+4, prevP+4)}")
    a(f"""v_max3_f32 v4, abs(v{O}), abs(v{O+1}), abs(v{O+2})
    v_max3_f32 v5, abs(v{O+3}), abs(v{O+4}), abs(v{O+5})
    v_max3_f32 v4, abs(v{O+6}), abs(v{O+7}), v4
    v_max3_f32 v5, abs(v{O+8}), abs(v{O+9}), v5
    v_max3_f32 v4, abs(v{O+10}), abs(v{O+11}), v4
    v_max_f32 v4, v4, v5
    v_cmp_nlt_f32 vcc, {f2u(2.0**-60):#x}, v{O+12}
    s_mov_b64 s[4:5], vcc
    v_cmp_ngt_f32 vcc, {f2u(2.0**60):#x}, v{O+12}
    s_or_b64 s[4:5], s[4:5], vcc
    v_cmp_ngt_f32 vcc, {f2u(2.0**120):#x}, v4
    s_or_b64 vcc, s[4:5], vcc""")
    if OPT.get("forcefb"): a("s_branch L_FALLBACK")
    a(f"""s_cbranch_vccnz L_FALLBACK
    L_BDONE:
    v_rcp_f32 v4, v{O+12}""")
    for r in range(0, 12, 2): a(f"v_pk_mul_f32 {q2(O+r)}, {q2(O+r)}, v[4:5] op_sel_hi:[1,0]")
    for k in range(6): a(f"v_cvt_pk_bf16_f32 v{24+k}, v{O+2*k}, v{O+2*k+1}")
    a(f"""buffer_store_dwordx4 v[24:27], v{vO0}, {WSR}, 0 offen sc1
    s_mov_b32 exec_hi, 0
    buffer_store_dwordx2 v[28:29], v{vO1}, {WSR}, 0 offen sc1
    {MALL}""")
    if OPT.get("bpr", 0): a("s_setprio 0")
    a.stamp(8)
    if OPT.get("rpn", 10) == 9: repack(2)
    a.stamp(2, 4)

    if ENDW:
        a(f"s_lshr_b32 s4, {sW}, 1\n {M40}")
        for pr in range(2):
            a(f"s_cmp_lg_u32 s4, {pr}\n s_cbranch_scc1 L_EW{pr}")
            for p in inb[pr::2]: dma_wo(p)
            a(f"L_EW{pr}:")
        a(MALL)
    XU, WU = 176, 196
    OF, CAC, CWF = 32, 72, 92
    NB = 4
    HP = 216
    OUTP = 228
    KSH = OPT.get('ksh', 7)
    OFL = ['', 'nt', 'sc1', 'sc0'][OPT.get('ofl', 0)]
    a(f"""v_mov_b32 v19, v{bF2A}
    v_and_b32 v2, 15, v0
    v_lshrrev_b32 v3, 4, v1
    s_lshl_b32 s3, {sRB2}, 6
    s_lshl_b32 s4, {sLO}, 4
    s_add_u32 s3, s3, s4
    v_add_u32 v20, s3, v2             ; row
    v_mul_u32_u24 v4, 1280, v20
    v_mul_u32_u24 v17, 40, v3
    s_mul_i32 s3, {sCS}, 160
    v_add3_u32 v16, v17, v4, s3""")
    rho(a, 21, 5)
    a(f"""v_mul_u32_u24 v4, 160, v21
    v_and_b32 v5, 3, v1
    v_lshlrev_b32 v21, 5, v21
    v_lshl_add_u32 v21, v5, 3, v21
    v_mul_u32_u24 v5, 40, v5
    s_mul_i32 s3, {sHI}, 51200
    v_add3_u32 v18, v4, v5, s3
    s_lshl_b32 s3, {sRB2}, 1
    s_lshr_b32 s4, {sLO}, 1
    s_add_u32 s3, s3, s4
    s_mul_i32 s3, s3, 40960
    s_add_u32 s3, s3, {O_OFF}
    s_lshl_b32 s4, {sHI}, 14
    s_add_u32 s29, s3, s4
    s_lshl_b32 s4, {sHI}, 12
    s_add_u32 s33, s3, s4
    s_add_u32 s33, s33, 32768
    s_and_b32 s4, {sLO}, 1
    s_lshl_b32 s4, s4, 4
    v_add_u32 v4, s4, v2
    v_lshlrev_b32 v5, 9, v3
    v_lshl_add_u32 v15, v4, 4, v5
    v_lshl_add_u32 v14, v4, 3, v5
    s_lshl_b32 s30, {sROLE}, 3
    s_add_u32 s30, s30, {sCS}
    s_lshl_b32 s32, {sW}, 10
    s_mul_i32 s3, {sLO}, 5120
    s_add_u32 s34, s3, {RED}
    v_lshl_add_u32 v13, v1, 4, s34
    s_lshl_b32 s3, {sRB2}, 13
    s_lshl_b32 s4, {sLO}, 8
    s_add_u32 s3, s3, s4
    s_add_u32 s37, s3, {PART_OFF}
    v_lshlrev_b32 v10, 4, v2""")
    ROT = OPT.get("crot", 1)
    for ks in range(8):
        a(f"""s_add_u32 s3, {sCS}, {ks}
        s_and_b32 s3, s3, 7""" if ROT else f"s_mov_b32 s3, {ks}")
        a(f"""s_lshl_b32 s4, s3, 11
        s_add_u32 s{40+ks}, s29, s4
        s_mul_i32 s4, s3, 5120
        v_add_u32 v{246+ks}, s4, v18""")
    a(f"s_waitcnt vmcnt({min(63, 2 + 4*len(inb)) if ENDW else 2})")
    LATE = OPT.get("rpn", 10) == 10
    if LATE: assert OPT.get("guh", 1) == 1
    for i in range(4 if LATE else 0, 20): a(f"v_mov_b32 v{CAC+i}, 0")
    a(f"s_cmp_lg_u32 {sHI}, {FH}\n s_cbranch_scc1 L_CB")
    for i in range(10):
        a(f"""v_lshlrev_b32 v{CAC+2*i}, 16, v{XR+i}
        v_and_b32 v{CAC+2*i+1}, 0xffff0000, v{XR+i}
        v_lshlrev_b32 v{WU+2*i}, 16, v{WR+i}
        v_and_b32 v{WU+2*i+1}, 0xffff0000, v{WR+i}""")
    B2 = OPT.get("b2", 1) and ENDW
    if B2: a(f"s_waitcnt vmcnt({4*len(inb)})\n s_branch L_CB2")
    a(f"""L_CB:
    s_waitcnt vmcnt(0)
    L_CB2:
    v_mov_b32 v4, s101
    v_mov_b32 v5, 1""")
    a.stamp(3, 4)
    a(f"""s_barrier
    s_cmp_lg_u32 {sW}, 7
    s_cbranch_scc1 L_NOF2
    s_mov_b64 exec, 1
    buffer_store_dword v5, v4, {WSR}, 0 offen offset:32 sc1
    {MALL}
    L_NOF2:""")
    if LATEW:
        a(f"s_lshr_b32 s4, {sW}, 1\n {M40}")
        nper = len(inb) // 4 if len(inb) >= 4 else 1
        for pr in range(4):
            mine = inb[pr::4]
            if not mine: continue
            a(f"s_cmp_lg_u32 s4, {pr}\n s_cbranch_scc1 L_LW{pr}")
            for p in mine: dma_wo(p)
            a(f"L_LW{pr}:")
        a(MALL)
    a("v_mov_b32 v22, v19")
    if LATE:
        repack(63)
        a(f"s_cmp_eq_u32 {sHI}, {FH}\n s_cbranch_scc1 L_NZ")
        for i in range(4): a(f"v_mov_b32 v{CAC+i}, 0")
        if B2: a("s_branch L_NZ2")
        a("L_NZ:")
        if B2: a("s_waitcnt vmcnt(0)\n L_NZ2:\n s_barrier")
    WD1 = OPT.get("wd1", 3)
    def wd_lds(j): return [GW, GW + 8192, 153600][j] if j < WD1 else WOL + 8192*j
    def wd_dma(js, L, both=False):
        a(f"""s_sub_u32 s3, s30, 256
        s_lshl_b32 s3, s3, 5
        v_lshrrev_b32 v5, 1, v1""")
        kappa(a, 6, 5, 4)
        a(f"""v_mul_u32_u24 v6, 1280, v6
        v_and_b32 v4, 1, v1
        v_lshl_add_u32 v6, v4, 4, v6
        v_add_u32 v6, s3, v6
        s_mul_i32 s4, {sW}, {32*1280}""")
        srd(a, 12, P_D, 2211840)
        for j in js:
            a(f"""s_add_u32 m0, s32, {wd_lds(j)}
            s_add_u32 s3, s4, {8*32*1280*j}
            buffer_load_dwordx4 v6, s[12:15], s3 offen lds""")
            if both:
                d = 4 if FH == 0 else -4
                a(f"""s_add_u32 m0, s32, {wd_lds(j) + 1024*d}
                s_add_u32 s3, s4, {8*32*1280*j + 32*1280*d}
                buffer_load_dwordx4 v6, s[12:15], s3 offen lds""")
    a(f"s_cmp_lt_u32 {sROLE}, 32\n s_cbranch_scc1 L_NWD1")
    wd_dma(range(WD1), "1")
    a("L_NWD1:")
    def c_rd(ks):
        b = ks % NB
        ad, off = (246 + ks, 0) if ks < 8 else (18, ks * 5120)
        return [f"ds_read_b64_tr_b16 {q2(CWF+20*b+4*t+2*h)}, v{ad} offset:{off + h*1280 + 8*t}" for t in range(5) for h in range(2)]
    a.stamp(9); a.stamp(4, 4)
    PRE = OPT.get("cpre", 2)
    def o_load(ks):
        if ks < 8: return f"buffer_load_dwordx4 {q4(OF+4*ks)}, v15, {WSR}, s{40+ks} offen sc1"
        return "\n".join(f"buffer_load_dwordx2 {q2(OF+4*ks+2*hh)}, v14, {WSR}, s33 offen offset:{(ks-8)*2048 + hh*256} sc1" for hh in range(2))
    def rp_dma(L, cond):
        a(f"""s_cmp_ge_u32 {sROLE}, 32
        s_cbranch_scc1 {L}
        s_cmp_eq_u32 s56, 0
        s_cbranch_{cond} {L}
        s_mul_i32 s3, s30, 20480
        s_mul_i32 s4, {sLO}, 5120
        s_add_u32 s3, s3, s4
        s_add_u32 s3, s3, {RP_OFF}
        s_add_u32 m0, s4, {GW}
        v_lshlrev_b32 v7, 4, v1""")
        for j in range(4): a(f"buffer_load_dwordx4 v7, {WSR}, s3 offen offset:{1024*j} sc1 lds")
        a(f"""s_add_u32 m0, s4, {GW + 4096}
        s_add_u32 s3, s3, 4096
        buffer_load_dwordx4 v7, {WSR}, s3 offen sc1 lds
        {L}:""")
    RPE = OPT.get("rpe", 0)
    if not LATEW:
        for ks in range(NB):
            for r in c_rd(ks): a(r)
    if OPT.get("cprio", 0): a(f"s_cmp_eq_u32 {sHI}, {FH}\n s_cbranch_scc1 L_NPR\n s_setprio 2\n L_NPR:")
    if RPE: a(f"s_cmp_eq_u32 {sHI}, {FH}\n s_mov_b32 s3, 0xff\n s_cselect_b32 exec_lo, 0xffff, s3\n s_mov_b32 exec_hi, 0")
    else: a("s_mov_b64 exec, 0xff")
    if OPT.get("fsl2", 0): a(f"s_sleep {OPT['fsl2']}")
    spin_head(a, "L_F2POLL")
    a(f"""buffer_load_dword v4, v22, {WSR}, 0 offen sc1
    s_waitcnt vmcnt(0)
    v_cmp_ne_u32 s[56:57], 1, v4
    s_and_b64 vcc, s[56:57], 0xff""")
    DYN = OPT.get("dyn", 0)
    if DYN:
        a(f"""s_cbranch_vccz L_F2POLL_OK
        s_bcnt1_i32_b32 s4, vcc_lo
        s_cmp_le_u32 s4, {OPT.get("dynm", 5)}
        s_cbranch_scc1 L_DYN""")
    spin_tail(a, "L_F2POLL", OPT.get("psl2", 4))
    a(MALL)
    a.stamp(8, 4)
    if not RPE: a("s_mov_b32 s56, 1")
    for ks in range(10): a(o_load(ks))
    if LATEW:
        a("s_barrier")
        for ks in range(NB):
            for r in c_rd(ks): a(r)
    for ks in range(10):
        lg = 0 if ks in (0, 9) else 10
        if LATEW and ks == 0: lg = 15
        a(f"s_waitcnt vmcnt({11-ks if ks < 8 else 2*(9-ks)}) lgkmcnt({lg})")
        if ks == 9 and RPE == 2:
            a(f"s_cmp_lg_u32 {sHI}, {FH}\n s_cbranch_scc1 L_RP0")
            rp_dma("L_RP0", "scc0")
        R = c_rd(ks - 1 + NB) if (ks >= 1 and ks - 1 + NB < 10) else []
        for t in range(5):
            for x in R[2*t:2*t+2]: a(x)
            a(mm16(CAC+4*t, CWF+20*(ks % NB)+4*t, OF+4*ks, False))
    a("L_CDONE2:")
    def emit_dyn():
        def wrd(ks, b):
            ad, off = (246 + ks, 0) if ks < 8 else (18, ks * 5120)
            for t in range(5):
                for h in range(2): a(f"ds_read_b64_tr_b16 {q2(CWF+20*b+4*t+2*h)}, v{ad} offset:{off + h*1280 + 8*t}")
        a(f"""L_DYN:
        {MALL}
        s_mov_b32 s50, 0
        s_mov_b32 s51, 0
        s_waitcnt lgkmcnt(0)""")
        wrd(8, 2); wrd(9, 3)
        a(f"""L_DYNL:
        s_not_b32 s4, s56
        s_and_b32 s4, s4, 0xff
        s_lshl_b32 s5, s4, 8
        s_or_b32 s4, s4, s5
        s_lshr_b32 s4, s4, {sCS if ROT else 0}
        s_and_b32 s52, s4, 0xff
        s_andn2_b32 s53, s52, s50         ; new
        s_andn2_b32 s54, s50, s51         ; todo""")
        for ks in range(8):
            a(f"s_bitcmp1_b32 s53, {ks}\n s_cbranch_scc0 L_DN{ks}\n {o_load(ks)}\n L_DN{ks}:")
        a(f"s_cmp_lg_u32 s52, 0xff\n s_cbranch_scc1 L_DYNC\n {o_load(8)}\n {o_load(9)}\n L_DYNC:")
        for ks in range(8):
            a(f"s_bitcmp1_b32 s54, {ks}\n s_cbranch_scc0 L_DC{ks}")
            wrd(ks, ks & 1)
            a("s_cmp_eq_u32 s50, 0xff\n s_cbranch_scc0 L_DW" + str(ks) + "\n s_waitcnt vmcnt(4)\n L_DW" + str(ks) + ":")
            for t in range(5):
                a(f"s_waitcnt lgkmcnt({8 - 2*t})")
                a(mm16(CAC+4*t, CWF+20*(ks & 1)+4*t, OF+4*ks, False))
            a(f"L_DC{ks}:")
        a(f"""s_mov_b32 s51, s50
        s_cmp_eq_u32 s50, 0xff
        s_cbranch_scc1 L_DYNQ
        s_mov_b32 s50, s52
        s_mov_b32 s54, s53
        s_cmp_eq_u32 s52, 0xff
        s_cbranch_scc1 L_DYNC
        s_add_u32 s3, s3, 1
        s_cmp_gt_u32 s3, {SPIN_MAX}
        s_cbranch_scc1 L_END
        s_sleep {OPT.get("psl4", 1)}
        s_mov_b64 exec, 0xff
        buffer_load_dword v4, v22, {WSR}, 0 offen sc1
        s_waitcnt vmcnt(0)
        v_cmp_ne_u32 s[56:57], 1, v4
        {MALL}
        s_branch L_DYNL
        L_DYNQ:
        s_waitcnt vmcnt(0) lgkmcnt(0)""")
        for ks in (8, 9):
            for t in range(5): a(mm16(CAC+4*t, CWF+20*(ks - 6)+4*t, OF+4*ks, False))
        a("s_mov_b32 s56, 1\n s_branch L_CDONE2")
    a.stamp(5, 4)
    if PROF and OPT.get("pg") == 4: a("s_mov_b32 s99, s3")
    a(f"s_cmp_lg_u32 {sHI}, {FH}\n s_cbranch_scc0 L_CLO")
    XD = 77824
    def sel_setup():
        a(f"""v_and_b32 v150, 7, v1
        v_lshlrev_b32 v150, 2, v150
        v_add_u32 v150, {SB+SELL}, v150       ; sel[j&7]
        v_lshrrev_b32 v4, 3, v1
        v_lshlrev_b32 v153, 8, v4
        v_lshlrev_b32 v4, 2, v4
        v_add_u32 v151, {SB+SELL}, v4         ; sel[l>>3]
        v_bfe_u32 v4, v1, 1, 3
        v_lshlrev_b32 v154, 8, v4
        v_lshlrev_b32 v4, 2, v4
        v_add_u32 v152, {SB+SELL}, v4         ; sel[(l>>1)&7]
        v_bfe_u32 v4, v1, 4, 1
        v_mul_u32_u24 v6, 2560, v4
        v_lshlrev_b32 v7, 4, v2
        v_sub_u32 v160, {RED + 2560}, v6
        v_add_u32 v160, v160, v7
        s_lshl_b32 s3, {sCS}, 11
        s_lshl_b32 s4, {sW}, 8
        s_add_u32 s3, s3, s4
        s_add_u32 s3, s3, {XS_OFF}
        v_lshl_add_u32 v161, v4, 14, v7
        v_add_u32 v161, s3, v161
        s_lshl_b32 s3, {sW}, 11
        s_sub_u32 s3, s3, s4
        s_add_u32 s3, s3, {XS_OFF - EP_OFF}
        v_add_u32 v153, s3, v153
        v_add_u32 v154, s3, v154
        s_add_u32 s58, s4, {EP_OFF}
        v_and_b32 v4, 7, v1
        v_lshlrev_b32 v155, 4, v4
        v_and_b32 v4, 1, v1
        v_lshlrev_b32 v156, 4, v4
        v_add_u32 v156, 128, v156
        v_mov_b32 v157, {SB+SELL}
        s_mul_i32 s59, {sW}, 1280
        s_add_u32 s5, s59, {GW}
        s_add_u32 s59, s59, {XD}
        v_and_b32 v4, 7, v2
        v_lshlrev_b32 v6, 4, v3
        v_lshl_add_u32 v158, v4, 7, v6
        v_add_u32 v158, s59, v158
        v_and_b32 v6, 16, v6
        v_lshl_add_u32 v159, v4, 5, v6
        v_add_u32 v159, s59, v159
        v_bfe_u32 v4, v1, 2, 2
        v_lshl_add_u32 v4, v3, 3, v4
        v_lshlrev_b32 v4, 4, v4
        v_and_b32 v6, 1, v1
        v_lshl_add_u32 v4, v6, 3, v4
        v_bfe_u32 v6, v1, 1, 1
        v_mul_u32_u24 v6, 10240, v6
        v_add3_u32 v162, v4, v6, s5
        s_add_u32 s3, s32, {DRED}
        v_lshl_add_u32 v163, v1, 4, s3""")
        srd(a, 8, P_OUT, 2621440)
    for t in range(5): a(f"ds_write_b128 v13, {q4(CAC+4*t)} offset:{1024*t}")
    a(f"""v_mov_b32 v24, 0
    v_mov_b32 v25, 0
    v_mov_b32 v26, 0
    v_mov_b32 v27, 0
    s_waitcnt lgkmcnt(0)
    s_barrier
    s_setprio 0
    v_and_b32 v12, 255, v0
    v_lshlrev_b32 v12, 4, v12
    v_add_u32 v14, {SB}, v12
    ds_write_b128 v14, v[24:27] offset:{SURV}
    ds_write_b128 v14, v[24:27] offset:{SURV+4096}
    v_lshl_add_u32 v11, v3, 10, v10
    s_add_u32 s38, s37, 4096
    s_add_u32 s39, s37, {PARTB}
    s_add_u32 s35, s37, {PARTB + 4096}
    v_mov_b32 v8, 0""")
    for i in range(5):
        a(f"""v_lshlrev_b32 v5, 16, v{WRS+i}
        v_and_b32 v6, 0xffff0000, v{WRS+i}
        v_add_f32 v8, v8, v5
        v_add_f32 v8, v8, v6""")
    dpp_reduce(a, "v_add_f32", [8])
    a(f"""v_readlane_b32 s36, v8, 63
    v_sub_u32 v23, 2047, v20
    v_lshlrev_b32 v23, 2, v23
    s_lshl_b32 s3, {sRB2}, 2
    s_add_u32 s3, s3, {sLO}
    s_lshl_b32 s3, s3, {KSH}
    s_add_u32 s4, s3, {KEY_OFF}
    s_lshl_b32 s3, {sLO}, 8
    s_add_u32 s3, s3, {SB+LMR}
    v_lshl_add_u32 v9, v2, 4, s3
    s_mov_b32 s6, 0xffffe000
    v_lshlrev_b32 v12, {KSH}, v1
    s_barrier""")
    a.stamp(1, 3)
    spin_head(a, "L_PPOLL")
    a(f"""buffer_load_dwordx4 v[64:67], v11, {WSR}, s37 offen sc1
    buffer_load_dwordx4 v[68:71], v11, {WSR}, s38 offen sc1
    s_waitcnt vmcnt(0)
    v_max3_u32 v5, v64, v65, v66
    v_max3_u32 v6, v68, v69, v70
    v_max_u32 v5, v5, v6
    v_cmp_eq_u32 vcc, -1, v5
    s_cbranch_vccz L_PPOLL_OK
    s_and_b32 s28, s3, {OPT.get('pbm', 15)}
    s_cmp_lg_u32 s28, 0
    s_cbranch_scc1 L_PPOLL
    buffer_load_dwordx4 v[64:67], v11, {WSR}, s39 offen sc1
    buffer_load_dwordx4 v[68:71], v11, {WSR}, s35 offen sc1
    s_waitcnt vmcnt(0)
    v_max3_u32 v5, v64, v65, v66
    v_max3_u32 v6, v68, v69, v70
    v_max_u32 v5, v5, v6
    v_cmp_eq_u32 vcc, -1, v5
    s_cbranch_vccnz L_PPOLL
    L_PPOLL_OK:""")
    a.stamp(2, 3)
    a("v_add_f32 v40, v64, v68\n v_add_f32 v41, v65, v69\n v_add_f32 v42, v66, v70")
    xg_sum(a, [40, 41, 42], [44, 45, 46])
    ln_scalars(a, 40, 41)
    a(f"""v_fma_f32 v42, -v40, s36, v42
    v_mul_f32 v42, v42, v41
    v_ashrrev_i32 v4, 31, v42
    v_or_b32 v4, 0x80000000, v4
    v_xor_b32 v4, v4, v42
    v_and_or_b32 v4, v4, s6, v23
    v_min_u32 v42, -2, v42
    v_mov_b32 v5, v4
    v_mov_b32 v7, 0
    v_mov_b32_dpp v5, v4 row_ror:4 row_mask:0x2 bank_mask:0xf
    v_mov_b32_dpp v5, v4 row_ror:8 row_mask:0x4 bank_mask:0xf
    v_mov_b32_dpp v5, v4 row_ror:12 row_mask:0x8 bank_mask:0xf
    v_mov_b32_dpp v44, v5 row_ror:1 row_mask:0xf bank_mask:0xf
    v_mov_b32_dpp v45, v5 row_ror:2 row_mask:0xf bank_mask:0xf
    v_mov_b32_dpp v46, v5 row_ror:3 row_mask:0xf bank_mask:0xf
    v_cmp_gt_u32 s[40:41], v5, v4
    v_cmp_gt_u32 s[42:43], v44, v4
    v_cmp_gt_u32 s[44:45], v45, v4
    v_cmp_gt_u32 s[46:47], v46, v4
    v_addc_co_u32 v7, vcc, 0, v7, s[40:41]
    v_addc_co_u32 v7, vcc, 0, v7, s[42:43]
    v_addc_co_u32 v7, vcc, 0, v7, s[44:45]
    v_addc_co_u32 v7, vcc, 0, v7, s[46:47]
    v_mov_b32 v6, v7
    v_permlane16_swap_b32 v7, v6
    v_add_u32 v7, v7, v6
    v_mov_b32 v6, v7
    v_permlane32_swap_b32 v7, v6
    v_add_u32 v7, v7, v6
    v_min_u32 v6, 2, v7
    v_or_b32 v43, v4, v6
    v_lshlrev_b32 v7, 2, v7
    s_mov_b64 exec, 0xffff
    s_cmp_lg_u32 {sCS}, 0
    s_cbranch_scc1 L_NOKEY
    buffer_store_dword v43, v7, {WSR}, s4 offen sc1
    L_NOKEY:
    ds_write_b128 v9, v[40:43]
    {MALL}
    s_waitcnt lgkmcnt(0)
    s_barrier
    s_cmp_lg_u32 {sW}, {LW}
    s_cbranch_scc1 L_SELW""")
    sel_setup()
    a(f"""s_mov_b32 s4, {KEY_OFF}
    s_mov_b32 s5, {KEY_OFF + (64 << KSH)}
    s_mov_b32 s28, {SB+SURV}
    s_mov_b32 s29, 0
    v_and_b32 v13, 31, v1
    v_lshlrev_b32 v13, 2, v13
    v_add_u32 v13, {SB+SURV}, v13
    v_lshrrev_b32 v8, 5, v1
    v_lshlrev_b32 v8, 6, v8
    v_add_u32 v11, {SB+SURV}, v8""")
    if OPT.get("ksleep", 0): a(f"s_sleep {OPT.get('ksleep', 0)}")
    a.stamp(3, 3)
    a("L_KQ:")
    spin_head(a, "L_KPOLL")
    a(f"""buffer_load_dwordx4 v[40:43], v12, {WSR}, s4 offen sc1
    buffer_load_dwordx4 v[44:47], v12, {WSR}, s5 offen sc1
    s_waitcnt vmcnt(0)
    v_max3_u32 v4, v41, v42, v43
    v_max3_u32 v5, v45, v46, v47
    v_max_u32 v6, v40, v44
    v_max3_u32 v4, v4, v5, v6
    v_cmp_eq_u32 vcc, -1, v4""")
    spin_tail(a, "L_KPOLL", OPT.get("psl3", 1))
    a.stamp(4, 3)
    a(f"""s_cmp_lg_u32 s29, 0
    s_cbranch_scc1 L_HAVET
    v_mov_b32 v7, v6
    v_max_u32_dpp v6, v6, v6 quad_perm:[1,0,3,2] row_mask:0xf bank_mask:0xf
    v_max_u32_dpp v7, v7, v7 row_ror:8 row_mask:0xf bank_mask:0xf
    v_max_u32_dpp v6, v6, v6 quad_perm:[2,3,0,1] row_mask:0xf bank_mask:0xf
    v_mov_b32 v8, v7
    v_max_u32_dpp v6, v6, v6 row_half_mirror row_mask:0xf bank_mask:0xf
    v_permlane16_swap_b32 v7, v8
    v_min_u32_dpp v6, v6, v6 row_ror:8 row_mask:0xf bank_mask:0xf
    v_max_u32 v7, v7, v8
    v_mov_b32 v5, v6
    v_mov_b32 v8, v7
    v_permlane16_swap_b32 v6, v5
    v_permlane32_swap_b32 v7, v8
    v_min_u32 v6, v6, v5
    v_max_u32 v7, v7, v8
    v_mov_b32 v5, v6
    v_min_u32_dpp v7, v7, v7 quad_perm:[1,0,3,2] row_mask:0xf bank_mask:0xf
    v_permlane32_swap_b32 v6, v5
    v_min_u32_dpp v7, v7, v7 quad_perm:[2,3,0,1] row_mask:0xf bank_mask:0xf
    v_min_u32 v6, v6, v5
    v_min_u32_dpp v7, v7, v7 row_half_mirror row_mask:0xf bank_mask:0xf
    v_max_u32 v48, v6, v7
    L_HAVET:""")
    a.stamp(5, 3)
    ordr = [0, 4, 1, 5, 2, 6, 3, 7]
    for i in ordr: a(f"v_cmp_ge_u32 s[{40+2*i}:{41+2*i}], v{40+i}, v48")
    for i in ordr: a(f"v_mbcnt_lo_u32_b32 v{50+i}, s{40+2*i}, 0")
    for i in ordr: a(f"v_mbcnt_hi_u32_b32 v{50+i}, s{41+2*i}, v{50+i}")
    for n, i in enumerate(ordr):
        if n in (2, 4):
            a(f"s_or_b64 s[6:7], s[{40+2*i}:{41+2*i}], s[{48+2*i}:{49+2*i}]\n s_cbranch_scc0 L_CDONE")
        a(f"""v_lshl_add_u32 v{50+i}, v{50+i}, 2, s28
        s_bcnt1_i32_b64 s3, s[{40+2*i}:{41+2*i}]
        s_mov_b64 exec, s[{40+2*i}:{41+2*i}]
        ds_write_b32 v{50+i}, v{40+i}
        {MALL}
        s_lshl_b32 s3, s3, 2
        s_add_u32 s28, s28, s3""")
    a(f"""s_or_b64 s[6:7], s[46:47], s[54:55]
    s_cbranch_scc0 L_CDONE
    s_add_u32 s29, s29, 1
    s_add_u32 s4, s4, 16
    s_add_u32 s5, s5, 16
    s_cmp_lt_u32 s29, 4
    s_cbranch_scc1 L_KQ
    L_CDONE:
    s_sub_u32 s4, s28, {SB+SURV}
    s_mov_b32 s5, 0
    s_mov_b32 s28, {SB+SELL}""")
    a.stamp(6, 3)
    a(f"""L_OUTER:
    ds_read_b32 v6, v13
    v_mov_b32 v7, 0
    v_mov_b32 v8, v11
    s_mov_b32 s6, 0
    L_INNER:""")
    for k in range(4): a(f"ds_read_b128 {q4(44+4*k)}, v8 offset:{16*k}")
    a("""v_add_u32 v8, 128, v8
    s_add_u32 s6, s6, 128
    v_mov_b32 v9, 0
    s_waitcnt lgkmcnt(2)""")
    for h in range(2):
        if h: a("s_waitcnt lgkmcnt(0)")
        for i in range(8): a(f"v_cmp_gt_u32 s[{40+2*i}:{41+2*i}], v{44+8*h+i}, v6")
        for i in range(8): a(f"v_addc_co_u32 v{7+2*(i&1)}, vcc, 0, v{7+2*(i&1)}, s[{40+2*i}:{41+2*i}]")
    a(f"""v_add_u32 v7, v7, v9
    s_cmp_lt_u32 s6, s4
    s_cbranch_scc1 L_INNER
    v_mov_b32 v8, v7
    v_not_b32 v6, v6
    v_and_b32 v6, 0x1fff, v6
    v_permlane32_swap_b32 v7, v8
    v_add_u32 v7, v7, v8
    v_cmp_gt_u32 vcc, 8, v7
    v_lshl_add_u32 v7, v7, 2, s28
    s_and_saveexec_b64 s[6:7], vcc
    ds_write_b32 v7, v6
    {MALL}
    v_add_u32 v13, 128, v13
    s_add_u32 s5, s5, 128
    s_cmp_lt_u32 s5, s4
    s_cbranch_scc1 L_OUTER
    s_branch L_SELB""")
    a("L_CLO:")
    if RPE == 1: rp_dma("L_RP1", "scc0")
    a(f"""s_lshl_b32 s4, {sCS}, 10
    s_add_u32 s35, s4, s37
    s_add_u32 s38, s35, {PARTB}
    v_mul_u32_u24 v5, 160, v2
    v_add3_u32 v12, v5, v17, s34
    v_lshlrev_b32 v7, 4, v1
    v_mov_b32 v47, 0
    s_barrier""")
    a.stamp(6, 4)
    for t in range(5): a(f"ds_read_b128 {q4(CWF+4*t)}, v13 offset:{1024*t}")
    E = range(0, 20, 2)
    for e in E:
        if e % 4 == 0: a(f"s_waitcnt lgkmcnt({4 - e//4})")
        a(f"v_pk_add_f32 {q2(CAC+e)}, {q2(CAC+e)}, {q2(CWF+e)}")
    for e in E:
        c = 6 * ((e >> 1) & 1)
        if e < 4:
            a(f"v_pk_add_f32 {q2(50+c)}, {q2(CAC+e)}, {q2(CAC+e+4)}\n v_pk_mul_f32 {q2(52+c)}, {q2(CAC+e)}, {q2(CAC+e)}\n v_pk_mul_f32 {q2(54+c)}, {q2(CAC+e)}, {q2(WU+e)}")
        else:
            if e >= 8: a(f"v_pk_add_f32 {q2(50+c)}, {q2(50+c)}, {q2(CAC+e)}")
            a(f"v_pk_fma_f32 {q2(52+c)}, {q2(CAC+e)}, {q2(CAC+e)}, {q2(52+c)}\n v_pk_fma_f32 {q2(54+c)}, {q2(CAC+e)}, {q2(WU+e)}, {q2(54+c)}")
    for k in range(3): a(f"v_pk_add_f32 {q2(50+2*k)}, {q2(50+2*k)}, {q2(56+2*k)}")
    for k in range(3): a(f"v_add_f32 v{44+k}, v{50+2*k}, v{51+2*k}")
    xg_sum(a, [44, 45, 46], [40, 41, 42])
    a(f"""v_min_u32 v44, -2, v44
    v_min_u32 v45, -2, v45
    v_min_u32 v46, -2, v46
    s_mov_b64 exec, 0xffff
    buffer_store_dwordx4 v[44:47], v10, {WSR}, s35 offen
    buffer_store_dwordx4 v[44:47], v10, {WSR}, s38 offen sc1
    {MALL}
    s_barrier""")
    a.stamp(10); a.stamp(7, 4)
    if RPE == 3: rp_dma("L_RP1", "scc0")
    for e in E: a(f"v_cvt_pk_bf16_f32 v{HP+e//2}, v{CAC+e}, v{CAC+e+1}")
    for e in E: a(f"v_min_u32 v{HP+e//2}, -2, v{HP+e//2}")
    for e in E: a(f"v_lshlrev_b32 v{CAC+e}, 16, v{HP+e//2}\n v_and_b32 v{CAC+e+1}, 0xffff0000, v{HP+e//2}")
    for k in range(5): a(f"ds_write_b64 v12, {q2(HP+2*k)} offset:{8*k}")
    a(f"""s_lshl_b32 s3, {sLO}, 8
    s_add_u32 s3, s3, {SB+LMR}
    v_lshl_add_u32 v9, v2, 4, s3
    s_lshl_b32 s3, {sRB2}, 2
    s_add_u32 s3, s3, {sLO}
    s_lshl_b32 s3, s3, 12
    s_lshl_b32 s4, {sCS}, 8
    s_add_u32 s3, s3, s4
    s_add_u32 s28, s3, {EP_OFF}
    v_lshl_add_u32 v11, v3, 11, v10
    s_barrier
    ds_read_b64 v[40:41], v9
    ds_read_b32 v22, v9 offset:12
    s_waitcnt lgkmcnt(0)""")
    for e in E: a(f"v_pk_add_f32 {q2(XU+e)}, {q2(CAC+e)}, v[40:41] op_sel_hi:[1,0] neg_lo:[0,1] neg_hi:[0,1]")
    for e in E: a(f"v_cvt_pk_bf16_f32 v{OUTP+e//2}, v{XU+e}, v{XU+e+1}")
    for e in E: a(f"v_lshlrev_b32 v{XU+e}, 16, v{OUTP+e//2}\n v_and_b32 v{XU+e+1}, 0xffff0000, v{OUTP+e//2}")
    a("v_mov_b32 v42, v41")
    for e in E: a(f"v_pk_mul_f32 {q2(XU+e)}, {q2(XU+e)}, v[42:43] op_sel_hi:[1,0]")
    for e in E: a(f"v_cvt_pk_bf16_f32 v{OUTP+e//2}, v{XU+e}, v{XU+e+1}")
    for e in E: a(f"v_min_u32 v{OUTP+e//2}, -2, v{OUTP+e//2}")
    for k in range(5): a(f"ds_write_b64 v12, {q2(OUTP+2*k)} offset:{2560 + 8*k}")
    a(f"""v_and_b32 v4, 3, v22
    v_cmp_eq_u32 s[4:5], 0, v4
    v_cmp_eq_u32 s[6:7], 1, v4
    s_ff1_i32_b32 s4, s4
    s_ff1_i32_b32 s6, s6
    s_mul_i32 s4, s4, 160
    s_mul_i32 s6, s6, 160
    v_mov_b32 v4, s4
    v_mov_b32 v5, s6
    v_cmp_eq_u32 vcc, 1, v3
    v_cndmask_b32 v4, v4, v5, vcc
    v_add3_u32 v4, v4, v10, s34
    s_mov_b64 exec, 0x03ff03ff
    ds_read_b128 v[52:55], v4 offset:2560
    s_waitcnt lgkmcnt(0)
    buffer_store_dwordx4 v[52:55], v11, {WSR}, s28 offen sc1
    {MALL}
    """)
    rp_dma("L_RP2", "scc1")
    WDE = OPT.get("wde", 1)
    if WDE:
        a(f"s_cmp_lt_u32 {sROLE}, 32\n s_cbranch_scc1 L_NWD2")
        wd_dma(range(WD1, 7 - OPT.get("wdl", 0)), "2", True)
        a("L_NWD2:")
    for e in E: a(f"v_lshlrev_b32 v{XU+e}, 16, v{OUTP+e//2}\n v_and_b32 v{XU+e+1}, 0xffff0000, v{OUTP+e//2}")
    for e in E: a(f"v_pk_add_f32 {q2(XU+e)}, {q2(XU+e)}, {q2(CAC+e)}")
    for e in E: a(f"v_cvt_pk_bf16_f32 v{OUTP+e//2}, v{XU+e}, v{XU+e+1}")
    a("v_not_b32 v22, v22\n v_and_b32 v22, 0x1fff, v22\n s_waitcnt vmcnt(0)")
    a("L_SELW:")
    sel_setup()
    a(f"""L_SELB:
    s_waitcnt lgkmcnt(0)
    s_barrier
    ds_read_b32 v24, v151
    ds_read_b32 v25, v152
    ds_read_b32 v23, v150
    ds_read_b128 v[44:47], v157
    ds_read_b128 v[48:51], v157 offset:16""")
    a.stamp(11); a.stamp(7, 3)
    def publish(L):
        a(f"""s_waitcnt lgkmcnt(2)
        v_readlane_b32 s4, v23, {sW}
        s_lshr_b32 s5, s4, 8
        s_cmp_lg_u32 s5, {sRB2}
        s_cbranch_scc1 {L}
        s_bfe_u32 s5, s4, 0x20006
        s_mul_i32 s5, s5, 5120
        s_bfe_u32 s6, s4, 0x40002
        s_mul_i32 s6, s6, 160
        s_add_u32 s5, s5, s6
        v_add_u32 v4, s5, v160
        s_bfe_u32 s4, s4, 0x60002
        s_lshl_b32 s4, s4, 4
        s_add_u32 s4, s4, {SB+LMR}
        v_mov_b32 v5, s4
        v_cmp_eq_u32 vcc, 26, v1
        v_cndmask_b32 v4, v4, v5, vcc
        s_mov_b64 exec, 0x07ff03ff
        ds_read_b128 v[52:55], v4
        s_waitcnt lgkmcnt(0)
        buffer_store_dwordx4 v[52:55], v161, {WSR}, 0 offen sc1
        {MALL}
        {L}:""")
    def out_store(L):
        a(f"s_cmp_lg_u32 {sHI}, {FH}\n s_cbranch_scc1 {L}\n s_waitcnt lgkmcnt(0)")
        for i in range(8): a(f"v_cmp_ne_u32 vcc, v{44+i}, v22\n s_and_b64 exec, exec, vcc")
        a(f"""s_cbranch_execz {L}
        buffer_store_dwordx4 {q4(OUTP)}, v16, s[8:11], 0 offen {OFL}
        buffer_store_dwordx4 {q4(OUTP+4)}, v16, s[8:11], 0 offen offset:16 {OFL}
        buffer_store_dwordx2 {q2(OUTP+8)}, v16, s[8:11], 0 offen offset:32 {OFL}""")
        a(f"{L}:\n {MALL}")
    a(f"s_cmp_ge_u32 {sROLE}, 32\n s_cbranch_scc1 L_E")
    HF, DW, MRV = 64, 80, 24
    a("s_waitcnt lgkmcnt(3)")
    for i in range(2): a(f"v_not_b32 v{26+i}, v{24+i}\n v_lshrrev_b32 v{24+i}, 6, v{24+i}")
    for i in range(2): a(f"v_and_b32 v{26+i}, 3, v{26+i}\n v_lshlrev_b32 v{24+i}, 12, v{24+i}")
    for i in range(2): a(f"v_cmp_gt_u32 s[{4+2*i}:{5+2*i}], 2, v{26+i}\n v_lshl_add_u32 v{24+i}, v{26+i}, 11, v{24+i}")
    for i in range(2): a(f"v_cndmask_b32 v{24+i}, v{153+i}, v{24+i}, s[{4+2*i}:{5+2*i}]")
    for i in range(2): a(f"v_add_u32 v{24+i}, v{24+i}, v{155+i}")
    def d_loads():
        a(f"""s_mov_b32 m0, s59
        s_nop 0
        buffer_load_dwordx4 v24, {WSR}, s58 offen sc1 lds
        s_add_u32 m0, s59, 1024
        s_mov_b64 exec, 0xffff
        buffer_load_dwordx4 v25, {WSR}, s58 offen sc1 lds
        {MALL}""")
    def d_check():
        a(f"""s_waitcnt vmcnt(0)
        ds_read_b128 {q4(HF)}, v158
        ds_read_b128 {q4(HF+4)}, v158 offset:64
        ds_read_b128 {q4(HF+8)}, v159 offset:1024""")
        for ks in range(3):
            a(f"s_waitcnt lgkmcnt({2-ks})")
            a(mm16(28, DW+4*ks, HF+4*ks, ks == 0))
        a(f"""v_max3_u32 v5, v{HF}, v{HF+1}, v{HF+2}
        v_max3_u32 v6, v{HF+3}, v{HF+4}, v{HF+5}
        v_max3_u32 v5, v5, v{HF+6}, v{HF+7}
        v_max3_u32 v6, v6, v{HF+8}, v{HF+9}
        v_max3_u32 v5, v5, v{HF+10}, v{HF+11}
        v_max_u32 v5, v5, v6
        v_cmp_eq_u32 vcc, -1, v5""")
    d_loads()
    publish("L_NOPUB")
    for ks in range(3):
        for h in range(2): a(f"ds_read_b64_tr_b16 {q2(DW+4*ks+2*h)}, v162 offset:{ks*512 + h*64}")
    a("v_cmp_gt_u32 s[6:7], 32, v1\n v_mov_b32 v10, v163\n s_waitcnt lgkmcnt(0)")
    for r in range(4): a(f"v_cndmask_b32 v{DW+8+r}, 0, v{DW+8+r}, s[6:7]")
    d_check()
    a("s_cbranch_vccz L_RPOLL_OK")
    spin_head(a, "L_RPOLL")
    d_loads(); d_check()
    spin_tail(a, "L_RPOLL", 1)
    a.stamp(8, 3)
    a(f"""ds_write_b128 v10, v[28:31]
    s_waitcnt lgkmcnt(0)
    s_barrier""")
    a.stamp(9, 3)
    a(f"""s_cmp_lg_u32 {sW}, {LW}
    s_cbranch_scc1 L_DOTH
    v_subrev_u32 v10, {LW*1024}, v10""")
    oth = [w for w in range(8) if w != LW]
    for n, w in enumerate(oth): a(f"ds_read_b128 {q4(64+4*n)}, v10 offset:{1024*w}")
    for n in range(7):
        a(f"s_waitcnt lgkmcnt({6-n})")
        for r in (0, 2): a(f"v_pk_add_f32 {q2(28+r)}, {q2(28+r)}, {q2(64+4*n+r)}")
    a("""v_cvt_pk_bf16_f32 v32, v28, v29
    v_cvt_pk_bf16_f32 v33, v30, v31
    v_mov_b32 v34, v32
    v_mov_b32 v35, v33
    v_permlane32_swap_b32 v32, v34
    v_permlane32_swap_b32 v33, v35""")
    a.stamp(10, 3)
    for k in range(2):
        a(f"""v_lshlrev_b32 v{40+2*k}, 16, v{32+k}
        v_and_b32 v{41+2*k}, 0xffff0000, v{32+k}
        v_lshlrev_b32 v{44+2*k}, 16, v{34+k}
        v_and_b32 v{45+2*k}, 0xffff0000, v{34+k}""")
    for r in range(4): a(f"v_mul_f32 v{48+r}, 0xbfb8aa3b, v{40+r}")
    for r in range(4): a(f"v_exp_f32 v{48+r}, v{48+r}")
    for r in range(4): a(f"v_add_f32 v{48+r}, 1.0, v{48+r}")
    for r in range(4): a(f"v_rcp_f32 v{48+r}, v{48+r}")
    for r in range(4): a(f"v_mul_f32 v{40+r}, v{40+r}, v{48+r}")
    a("v_cvt_pk_bf16_f32 v32, v40, v41\n v_cvt_pk_bf16_f32 v33, v42, v43")
    for k in range(2):
        a(f"v_lshlrev_b32 v{40+2*k}, 16, v{32+k}\n v_and_b32 v{41+2*k}, 0xffff0000, v{32+k}")
    for r in (0, 2): a(f"v_pk_mul_f32 {q2(40+r)}, {q2(40+r)}, {q2(44+r)}")
    a(f"""v_cvt_pk_bf16_f32 v32, v40, v41
    v_cvt_pk_bf16_f32 v33, v42, v43
    v_min_u32 v32, -2, v32
    v_min_u32 v33, -2, v33
    v_mov_b32 v34, v32
    v_mov_b32 v35, v33
    v_lshlrev_b32 v4, 4, v2
    v_permlane16_swap_b32 v32, v34
    v_permlane16_swap_b32 v33, v35
    s_lshl_b32 s3, s30, 7
    s_add_u32 s3, s3, {ACT_OFF}
    s_mov_b64 exec, 0xff
    buffer_store_dwordx4 v[32:35], v4, {WSR}, s3 offen sc1""")
    a.stamp(4, 6)
    a(f"""s_barrier
    s_branch L_END
    L_DOTH:
    s_barrier
    L_DOTH2:""")
    if OPT.get("osl", 0): a(f"s_sleep {OPT['osl']}")
    out_store("L_OUTD")
    a("s_branch L_END")
    AF, EW = 64, 96
    HM = OPT.get("hm", 1)
    def h_loads():
        a(f"""buffer_load_dwordx2 v[136:137], v19, {WSR}, s33 offen sc1
        buffer_load_dwordx2 v[130:131], v19, {WSR}, s34 offen sc1
        buffer_load_dword v134, v17, {WSR}, s35 offen offset:8 sc1""")
    def h_part(first):
        if not first:
            a("v_max3_u32 v5, v130, v131, v134\n v_max3_u32 v5, v5, v136, v137\n v_cmp_eq_u32 vcc, -1, v5\n s_cbranch_vccz L_HPOLL_OK")
        spin_head(a, "L_HPOLL")
        a(f"""buffer_load_dwordx2 v[136:137], v19, {WSR}, s33 offen sc1
        buffer_load_dwordx2 v[130:131], v19, {WSR}, s34 offen sc1
        buffer_load_dword v134, v17, {WSR}, s35 offen offset:8 sc1
        s_waitcnt vmcnt(0)
        v_max3_u32 v5, v130, v131, v134
        v_max3_u32 v5, v5, v136, v137
        v_cmp_eq_u32 vcc, -1, v5""")
        spin_tail(a, "L_HPOLL")
        rb16(a, 134)
        a("v_mul_f32 v15, 0xbfb8aa3b, v134\n v_exp_f32 v15, v15\n v_add_f32 v15, 1.0, v15\n v_rcp_f32 v15, v15")
        rb16(a, 15)
        a("v_mov_b32 v16, v15")
        for k in range(2):
            a(f"""v_lshlrev_b32 v{140+2*k}, 16, v{136+k}
            v_and_b32 v{141+2*k}, 0xffff0000, v{136+k}
            v_lshlrev_b32 v{144+2*k}, 16, v{130+k}
            v_and_b32 v{145+2*k}, 0xffff0000, v{130+k}""")
    a("L_E:")
    a.stamp(1, 6)
    publish("L_NOPUBE")
    a("v_lshrrev_b32 v23, 2, v23")
    if not WDE: wd_dma(range(WD1, 7), "2")
    elif OPT.get("wdl", 0): wd_dma(range(7 - OPT.get("wdl", 0), 7), "3")
    a(f"""s_sub_u32 s30, s30, 256
    s_mul_i32 s4, s30, 52
    s_lshr_b32 s4, s4, 8              ; cg/5
    s_lshl_b32 s5, s4, 11
    s_add_u32 s35, s5, {XS_OFF + 16384 + 160}
    s_mul_i32 s4, s4, {2048 - 160}
    s_lshl_b32 s30, s30, 5
    s_add_u32 s4, s4, s30
    s_add_u32 s33, s4, {XS_OFF}
    s_add_u32 s34, s33, 16384
    v_and_b32 v17, 7, v2
    v_lshlrev_b32 v17, 8, v17
    v_lshl_add_u32 v19, v3, 3, v17
    v_add_u32 v11, s32, v21
    v_add_u32 v14, {GW}, v11
    s_waitcnt lgkmcnt(0)""")
    EO = OPT.get("eo", 0)
    if EO == 0: out_store("L_OUTE")
    srd(a, 12, P_WS, ACT_OFF + 27648)
    a(f"""v_and_b32 v4, 7, v2
    v_lshlrev_b32 v12, 4, v4
    v_lshl_add_u32 v12, v3, 7, v12
    s_lshl_b32 s4, {sW}, 9
    s_add_u32 s4, s4, {ACT_OFF}
    v_mul_u32_u24 v13, 1280, v23
    v_lshl_add_u32 v13, v3, 3, v13
    v_add_u32 v13, s30, v13
    s_add_u32 s3, s32, {DRED}
    v_lshl_add_u32 v10, v1, 4, s3
    s_cmp_lg_u32 {sW}, {LW}
    s_cbranch_scc1 L_ENOH""")
    if not HM: h_part(True)
    a("L_ENOH:\n s_waitcnt vmcnt(0)")
    for j in range(7):
        b, o = (14, wd_lds(j) - GW) if j < WD1 else (11, wd_lds(j))
        for h in range(2): a(f"ds_read_b64_tr_b16 {q2(EW+4*j+2*h)}, v{b} offset:{o + h*256}")
    if OPT.get('hint', 0):
        spin_head(a, "L_AHINT")
        a(f"""buffer_load_dwordx4 {q4(AF)}, v12, s[12:15], s4 offen sc1
    s_waitcnt vmcnt(0)
    v_cmp_eq_u32 vcc, -1, v{AF}""")
        spin_tail(a, "L_AHINT")
    AM = OPT.get("am", 1)
    if AM:
        for r in range(28): a(f"v_mov_b32 v{AF+r}, 0")
    if OPT.get('abar', 1): a("s_barrier")
    if OPT.get('asleep', 0): a(f"s_sleep {OPT['asleep']}")
    a.stamp(2, 6)
    spin_head(a, "L_APOLL")
    if AM: a("s_mov_b32 exec_lo, 0x00ff00ff\n s_mov_b32 exec_hi, 0x00ff00ff")
    for j in range(7): a(f"s_add_u32 s5, s4, {4096*j}\n buffer_load_dwordx4 {q4(AF+4*j)}, v12, s[12:15], s5 offen sc1")
    if AM: a(MALL)
    if HM:
        a(f"s_cmp_lg_u32 {sW}, {LW}\n s_cbranch_scc1 L_NH")
        h_loads()
        a("L_NH:")
    a(f"s_waitcnt vmcnt(0) lgkmcnt(0)")
    for j in range(7):
        a(mm16(24, EW+4*j, AF+4*j, j == 0))
        if j == 0: a(f"v_max_u32 v5, v{AF}, v{AF+1}\n v_max3_u32 v5, v5, v{AF+2}, v{AF+3}")
        else: a(f"v_max3_u32 v5, v5, v{AF+4*j}, v{AF+4*j+1}\n v_max3_u32 v5, v5, v{AF+4*j+2}, v{AF+4*j+3}")
    a("v_cmp_eq_u32 vcc, -1, v5")
    spin_tail(a, "L_APOLL", 1)
    a.stamp(11, 3); a.stamp(3, 6)
    if PROF and OPT.get("pg") == 6: a("s_mov_b32 s99, s3")
    a("ds_write_b128 v10, v[24:27]")
    if HM:
        a(f"s_cmp_lg_u32 {sW}, {LW}\n s_cbranch_scc1 L_NH2")
        h_part(False)
        a("L_NH2:")
    a(f"""s_waitcnt lgkmcnt(0)
    s_barrier
    s_cmp_lg_u32 {sW}, {LW}
    s_cbranch_scc1 {"L_DOTH2" if EO else "L_END"}
    v_subrev_u32 v10, {LW*1024}, v10""")
    for n, w in enumerate(oth): a(f"ds_read_b128 {q4(32+4*n)}, v10 offset:{1024*w}")
    for w in range(7):
        a(f"s_waitcnt lgkmcnt({6-w})")
        for r in (0, 2): a(f"v_pk_add_f32 {q2(24+r)}, {q2(24+r)}, {q2(32+4*w+r)}")
    a("v_cvt_pk_bf16_f32 v28, v24, v25\n v_cvt_pk_bf16_f32 v29, v26, v27")
    for k in range(2):
        a(f"v_lshlrev_b32 v{24+2*k}, 16, v{28+k}\n v_and_b32 v{25+2*k}, 0xffff0000, v{28+k}")
    def rnd():
        a("v_cvt_pk_bf16_f32 v28, v24, v25\n v_cvt_pk_bf16_f32 v29, v26, v27")
        for k in range(2): a(f"v_lshlrev_b32 v{24+2*k}, 16, v{28+k}\n v_and_b32 v{25+2*k}, 0xffff0000, v{28+k}")
    for r in (0, 2): a(f"v_pk_mul_f32 {q2(24+r)}, {q2(24+r)}, v[16:17] op_sel_hi:[1,0]")
    rnd()
    for r in (0, 2): a(f"v_pk_add_f32 {q2(24+r)}, {q2(24+r)}, {q2(140+r)}")
    rnd()
    for r in (0, 2): a(f"v_pk_add_f32 {q2(24+r)}, {q2(24+r)}, {q2(144+r)}")
    a("v_cvt_pk_bf16_f32 v24, v24, v25\n v_cvt_pk_bf16_f32 v25, v26, v27")
    a("""s_mov_b32 exec_lo, 0x00ff00ff
    s_mov_b32 exec_hi, 0x00ff00ff
    buffer_store_dwordx2 v[24:25], v13, s[8:11], 0 offen
    L_END:""")
    if PROF:
        a(f"{MALL}\n s_waitcnt vmcnt(0)")
        a.stamp(12)
        for i in range(16): a(f"v_mov_b32 v{8+i}, s{88+i}" if i < 13 else f"v_mov_b32 v{8+i}, 0")
        a(f"""s_lshl_b32 s3, s2, 9
        s_add_u32 s3, s3, {PROF_OFF}
        s_lshl_b32 s4, {sW}, 6
        s_add_u32 s3, s3, s4
        v_mov_b32 v4, s3
        s_mov_b64 exec, 1""")
        for i in range(4): a(f"global_store_dwordx4 v4, {q4(8+4*i)}, s[{P_WS}:{P_WS+1}] offset:{16*i}")
        if "ampj" in OPT:
            i, j = OPT["ampi"], OPT["ampj"]
            a(f"""s_sub_u32 s4, s{88+j}, s{88+i}
            s_mul_i32 s4, s4, 10
            s_min_u32 s4, s4, 100000
            s_cmp_lg_u32 {sW}, 0
            s_cbranch_scc1 L_EXIT
            L_AMP:
            s_memrealtime s[6:7]
            s_waitcnt lgkmcnt(0)
            s_sub_u32 s5, s6, s100
            s_cmp_lt_u32 s5, s4
            s_cbranch_scc1 L_AMP""")
    a("L_EXIT:\n s_endpgm")

    if DYN: emit_dyn()
    a("L_FALLBACK:\n s_waitcnt vmcnt(0)\n s_nop 7\n s_nop 7")
    S0 = 112
    def S(i): return S0 + 16*i
    KF = 24
    for n in range(9):
        a(kread(KF + 6*n, n))
        if n % 4 == 3: a("s_waitcnt lgkmcnt(0)")
    a("s_waitcnt lgkmcnt(0)")
    for n in range(9): a(f"{s1(S(n), KF+6*n)}\n {s2(S(n), KF+6*n)}")
    for r in range(8): a(f"v_mov_b32 v{78+r}, 0x3f803f80")
    a("s_nop 7\n s_nop 7")
    for i in range(8):
        a(f"s_cmp_gt_i32 s30, {i}\n s_cbranch_scc0 L_VALID")
        for r in range(16): a(f"v_mov_b32 v{S(i)+r}, 0xff800000")
    a("L_VALID:")
    for r in range(16): a(f"v_cndmask_b32 v{S(0)+r}, v{S(8)+r}, v{S(0)+r}, s[{MS+2*r}:{MS+1+2*r}]")
    a(f"v_max_f32 v4, v{S(0)}, v{S(0)+1}")
    for k in range(1, 64): a(f"v_max3_f32 v4, v{S0+2*k}, v{S0+2*k+1}, v4")
    a("""v_mov_b32 v5, v4
    v_permlane32_swap_b32 v4, v5
    v_max_f32 v4, v4, v5""")
    for i in range(8):
        s = S(i)
        for r in range(16): a(f"v_sub_f32 v{s+r}, v{s+r}, v4")
        for r in range(16): a(f"v_exp_f32 v{s+r}, v{s+r}")
        for k in range(8): a(f"v_cvt_pk_bf16_f32 v{s+k}, v{s+2*k}, v{s+2*k+1}")
    s = S(0)
    for k in range(8): a(f"v_and_b32 v{s+8+k}, v{MK+k}, v{s+k}")
    for k in range(8): a(f"v_xor_b32 v{S(8)+k}, v{s+8+k}, v{s+k}")
    for t in range(9):
        p = s + 8 if t == 0 else S(t)
        a(vread(78, t, False))
        a(f"s_waitcnt lgkmcnt(0)\n {pvm(78, p, t == 0)}\n {pvm(82, p + 4)}\n s_nop 7")
    a("s_nop 7")
    early_loads("L_EL2")
    if OPT.get("rpn", 10) >= 9: gu_loads("L_GU2", bGU)
    a("s_branch L_BDONE")

HEADER = """; Fused persistent kernel, 256 workgroups x 512 threads, one per CU (generated by a script of the author).
;   itself (the clears are confirmed through counters in d_debug before anything is trusted); all spins are bounded."""
def build():
    a = PAsm()
    kernel(a)
    name = NAME + "_kernel"
    L = ["; @launch grid=(256,1,1) block=(512,1,1) lds=163840", HEADER,
         '.amdgcn_target "amdgcn-amd-amdhsa--gfx950"', ".text", f".globl {name}", ".p2align 8",
         f".type {name},@function", f"{name}:", a.render(), "CODE_END:", "s_endpgm",
         '.section .rodata,"a"', ".p2align 6", f".amdhsa_kernel {name}", "  .amdhsa_next_free_vgpr 256",
         "  .amdhsa_next_free_sgpr 102", "  .amdhsa_accum_offset 256", "  .amdhsa_group_segment_fixed_size 0",
         "  .amdhsa_kernarg_size 88", "  .amdhsa_user_sgpr_count 2", "  .amdhsa_user_sgpr_kernarg_segment_ptr 1",
         "  .amdhsa_system_sgpr_workgroup_id_x 1", ".end_amdhsa_kernel"]
    return "\n".join(L) + "\n"

def check_ws(w, im, cmp, tof):
    import numpy as np
    qkv = im["qkv"]
    q = tof(w[Q_OFF:Q_OFF + 16*64*T32].view(np.uint16)).reshape(16, 64, 5, 32, 8).transpose(1, 3, 0, 2, 4).reshape(2048, 640)
    cmp("q", q, qkv[:, :640] * (20 ** -0.5) * 1.4426950408889634)
    k = tof(w[K_OFF:K_OFF + 16*64*T32].view(np.uint16)).reshape(16, 64, 5, 32, 8).transpose(1, 3, 0, 2, 4).reshape(2048, 640)
    cmp("k", k, qkv[:, 640:1280])
    v = tof(w[V_OFF:V_OFF + 16*64*T32].view(np.uint16)).reshape(16, 256, 40, 8).transpose(1, 3, 0, 2).reshape(2048, 640)
    cmp("v", v, qkv[:, 1280:])
    ob = w[O_OFF:O_OFF + 64*40960].reshape(64, 40960)
    om = tof(np.ascontiguousarray(ob[:, :32768]).view(np.uint16)).reshape(64, 32, 2, 32, 8).transpose(0, 3, 1, 2, 4).reshape(2048, 32, 16)
    oq = tof(np.ascontiguousarray(ob[:, 32768:]).view(np.uint16)).reshape(64, 32, 32, 4).transpose(0, 2, 1, 3).reshape(2048, 32, 4)
    o = np.concatenate([om, oq], axis=2).reshape(2048, 640)
    cmp("o", o, im["o"])

if __name__ == "__main__":
    PROF = "prof" in sys.argv
    if "cyc" in sys.argv: TIMER = "s_memtime"
    for x in sys.argv[2:]:
        if "=" in x:
            k, v = x.split("="); OPT[k] = int(v)
    out = sys.argv[1] if len(sys.argv) > 1 else f"cdna_kernels/{NAME}.s"
    txt = build()
    if OPT.get("nbig"):
        ls = txt.split("\n"); n = 0
        for i, l in enumerate(ls):
            if "buffer_store_dwordx4 v[76:79], v6" in l and n < 4: ls[i] = "    s_nop 0"; n += 1
        txt = "\n".join(ls)
    import re
    if OPT.get("sys") == 1: txt = txt.replace(" sc1", " sc0 sc1").replace("global_atomic_add v4, v5, s[82:83] sc0 sc1", "global_atomic_add v4, v5, s[82:83] sc1")
    if OPT.get("sys") == 2: txt = re.sub(r"(buffer_store[^\n]*) sc1", r"\1 sc0 sc1", txt)
    if OPT.get("sys") == 3: txt = re.sub(r"(buffer_load[^\n]*) sc1", r"\1 sc0 sc1", txt)
    if OPT.get("sys") == 4: txt = re.sub(r"(buffer_load[^\n]*) sc1 lds", r"\1 lds", txt)
    open(out, "w").write(txt)
    print("wrote", out, len(txt))
```

```python
import sys, struct
from asmlib import Asm

NAME = "sequential_preLN__sliding_block__moe_arch_mod__prompt"
Q_OFF = 0; K_OFF = 0x280000; V_OFF = 0x500000; O_OFF = 0x780000; CSP_OFF = 0xA00000; RSP_OFF = 0xA20000
PART_OFF = 0xC00000; EP_OFF = 0xC80000; PARTB = 0x40000; F1_OFF = 0xD00000; XS_OFF = 0xD08000; KEY_OFF = 0xD10000; ACT_OFF = 0xD14000
ST_OFF = 0xD1C000
RP_OFF = 0xD20000
WS_SIZE = RP_OFF + 27*8*20480
PROF_OFF = 0x1200000
T32 = 2560
PROF = False
TIMER = "s_memrealtime"
SPIN_MAX = 1 << 21
SLEEP = 2
OPT = {}

def f2u(x): return struct.unpack("<I", struct.pack("<f", x))[0]
QSCALE = f2u((20 ** -0.5) * 1.4426950408889634)
EPS = f2u(1e-5); INV640 = f2u(1.0 / 640)
P_X, P_WQKV, P_WO, P_WR, P_G, P_U, P_D, P_OUT, P_DBG, P_WS = 64, 66, 68, 72, 74, 76, 78, 80, 82, 84
WSR = "s[16:19]"
sW, sRB, sHP, sRB2, sCS, sROLE, sLO, sHI = "s20", "s21", "s22", "s23", "s24", "s25", "s26", "s27"

SCR = 61440
KL = 102400; VL = 133120; WOL = 0
GW = KL; SB = 122880; RED = VL
SURV = 0; WMAX = 8320; CNT = 8352; SELL = 8384; LMR = 8704
DRED = 65536

class PAsm(Asm):
    def stamp(self, i, grp=0):
        if i not in (0, 12) and grp != OPT.get("pg", 0): return
        if PROF:
            assert i < 13
            self(f"{TIMER} s[86:87]\n s_waitcnt lgkmcnt(0)\n s_mov_b32 s{88+i}, s86")

def srd(a, d, lo, size):
    a(f"""s_mov_b32 s{d}, s{lo}
    s_and_b32 s{d+1}, s{lo+1}, 0xffff
    s_mov_b32 s{d+2}, {size}
    s_mov_b32 s{d+3}, 0x00020000""")
def rb16(a, v): a(f"v_cvt_pk_bf16_f32 v{v}, v{v}, v{v}\n v_lshlrev_b32 v{v}, 16, v{v}")
def ln_scalars(a, s1, s2):
    a(f"""v_mul_f32 v{s1}, {INV640:#x}, v{s1}
    v_mul_f32 v{s2}, {INV640:#x}, v{s2}
    v_fma_f32 v{s2}, -v{s1}, v{s1}, v{s2}
    v_max_f32 v{s2}, 0, v{s2}
    v_cvt_pk_bf16_f32 v{s2}, v{s1}, v{s2}
    v_lshlrev_b32 v{s1}, 16, v{s2}
    v_and_b32 v{s2}, 0xffff0000, v{s2}
    v_add_f32 v{s2}, {EPS:#x}, v{s2}""")
    rb16(a, s2)
    a(f"v_sqrt_f32 v{s2}, v{s2}")
    rb16(a, s2)
    a(f"v_rcp_f32 v{s2}, v{s2}")
def dpp_reduce(a, op, regs):
    for sh in (1, 2, 4, 8):
        for v in regs: a(f"{op}_dpp v{v}, v{v}, v{v} row_shr:{sh} row_mask:0xf bank_mask:0xf")
    for v in regs: a(f"{op}_dpp v{v}, v{v}, v{v} row_bcast:15 row_mask:0xa bank_mask:0xf")
    for v in regs: a(f"{op}_dpp v{v}, v{v}, v{v} row_bcast:31 row_mask:0xc bank_mask:0xf")
def xg_sum(a, regs, tmps):
    for x, t in zip(regs, tmps): a(f"v_mov_b32 v{t}, v{x}")
    for x, t in zip(regs, tmps): a(f"v_permlane16_swap_b32 v{x}, v{t}")
    for x, t in zip(regs, tmps): a(f"v_add_f32 v{x}, v{x}, v{t}")
    for x, t in zip(regs, tmps): a(f"v_mov_b32 v{t}, v{x}")
    for x, t in zip(regs, tmps): a(f"v_permlane32_swap_b32 v{x}, v{t}")
    for x, t in zip(regs, tmps): a(f"v_add_f32 v{x}, v{x}, v{t}")
def norm_pair(a, d, x, m, rs, t0, t1):
    a(f"""v_lshlrev_b32 v{t0}, 16, v{x}
    v_and_b32 v{t1}, 0xffff0000, v{x}
    v_subrev_f32 v{t0}, {m}, v{t0}
    v_subrev_f32 v{t1}, {m}, v{t1}
    v_cvt_pk_bf16_f32 v{d}, v{t0}, v{t1}
    v_lshlrev_b32 v{t0}, 16, v{d}
    v_and_b32 v{t1}, 0xffff0000, v{d}
    v_mul_f32 v{t0}, {rs}, v{t0}
    v_mul_f32 v{t1}, {rs}, v{t1}
    v_cvt_pk_bf16_f32 v{d}, v{t0}, v{t1}""")
def add_pairs(a, d, x, y, t0, t1, t2):
    a(f"""v_lshlrev_b32 v{t0}, 16, v{x}
    v_lshlrev_b32 v{t1}, 16, v{y}
    v_add_f32 v{t0}, v{t0}, v{t1}
    v_and_b32 v{t1}, 0xffff0000, v{x}
    v_and_b32 v{t2}, 0xffff0000, v{y}
    v_add_f32 v{t1}, v{t1}, v{t2}
    v_cvt_pk_bf16_f32 v{d}, v{t0}, v{t1}""")
def q2(r): return f"v[{r}:{r+1}]"
def q4(r): return f"v[{r}:{r+3}]"
def r16(x): return f"v[{x}:{x+15}]"
M40 = "s_mov_b32 exec_hi, 0xff"
MALL = "s_mov_b64 exec, -1"
def spin_head(a, L):
    a(f"s_mov_b32 s3, 0\n {L}:\n s_add_u32 s3, s3, 1\n s_cmp_gt_u32 s3, {SPIN_MAX}\n s_cbranch_scc1 L_END")
def spin_tail(a, L, sl=None):
    a(f"s_cbranch_vccz {L}_OK\n s_sleep {SLEEP if sl is None else sl}\n s_branch {L}\n {L}_OK:")
def div_lane(a, q, r, src, d):
    magic = (65536 + d - 1) // d
    a(f"""v_mul_u32_u24 v{q}, {magic}, v{src}
    v_lshrrev_b32 v{q}, 16, v{q}
    v_mul_u32_u24 v{r}, {d}, v{q}
    v_sub_u32 v{r}, v{src}, v{r}""")
def kappa(a, d, s, t):
    a(f"""v_and_b32 v{d}, 0x13, v{s}
    v_and_b32 v{t}, 4, v{s}
    v_lshl_or_b32 v{d}, v{t}, 1, v{d}
    v_and_b32 v{t}, 8, v{s}
    v_lshrrev_b32 v{t}, 1, v{t}
    v_or_b32 v{d}, v{d}, v{t}""")
def rho(a, d, t):
    a(f"""v_bfe_u32 v{d}, v1, 2, 2
    v_and_b32 v{t}, 1, v3
    v_lshl_or_b32 v{d}, v{t}, 2, v{d}
    v_lshrrev_b32 v{t}, 1, v3
    v_lshl_or_b32 v{d}, v{t}, 4, v{d}""")
def masked_load(a, dst, voff, ptr, L, fl=""):
    a(f"""s_and_saveexec_b64 s[6:7], vcc
    s_cbranch_execz {L}
    global_load_dword v{dst}, v{voff}, s[{ptr}:{ptr+1}] {fl}
    {L}:
    {MALL}""")
def mm16(d, x, y, first): return f"v_mfma_f32_16x16x32_bf16 {q4(d)}, {q4(x)}, {q4(y)}, {'0' if first else q4(d)}"

def kernel(a):
    vXD, vWD = 112, 113
    vAS = 88
    NEG = 76; ONES = 116
    FR = 128; ACC = 192; CS = 120; PK = 128
    TMP = 24; XB = 64
    vST = 106; vCW = 110; vCR = [111, 114]; vSR = 115
    STV = 244
    TD, vK0, vK1, vV, vO0, vO1 = 10, 11, 12, 13, 14, 15
    bWO0, bWO1, bGU, bF2A, vF1A, vHC, vTO = 22, 23, 86, 87, 85, 84, 83
    sGR, sCT = "s60", "s61"
    ROTX = f"""s_and_b32 s5, s2, 1
    s_mul_i32 s5, s5, {OPT.get('ro', 0)}
    s_add_u32 s4, s4, s5
    {["s_add_u32 s4, s4, " + sCT, "s_and_b32 s5, " + sCT + ", 6" + chr(10) + "s_add_u32 s4, s4, s5", "s_and_b32 s5, " + sCT + ", 3" + chr(10) + "s_mul_i32 s5, s5, 5" + chr(10) + "s_lshr_b32 s5, s5, 1" + chr(10) + "s_add_u32 s4, s4, s5"][OPT.get("rc", 0)]}
    s_and_b32 s5, {sGR}, {OPT.get("rg", 0)}
    s_add_u32 s4, s4, s5
    s_cmp_ge_u32 s4, 10
    s_cselect_b32 s5, 10, 0
    s_sub_u32 s4, s4, s5"""
    def slot(c): return (c % 5) * 32768
    if PROF:
        for i in range(13): a(f"s_mov_b32 s{88+i}, 0")
    a.stamp(0)
    a(f"""s_load_dwordx16 s[64:79], s[0:1], 0
    s_load_dwordx4 s[80:83], s[0:1], 64
    s_load_dwordx2 s[84:85], s[0:1], 80
    s_getpc_b64 s[4:5]
    CODE_START:
    s_cmp_ge_u32 s2, 256
    s_cbranch_scc1 L_EXIT
    s_lshr_b32 s63, s2, 3             ; idx
    s_lshl_b32 s3, s63, 7
    v_lshl_add_u32 v4, v0, 12, s3
    v_cmp_gt_u32 vcc, CODE_END-CODE_START, v4""")
    masked_load(a, 250, 4, 4, "L_NOPF")
    a(f"""v_and_b32 v1, 63, v0
    v_lshrrev_b32 v4, 6, v0
    v_and_b32 v2, 15, v0
    v_readfirstlane_b32 {sW}, v4
    v_lshrrev_b32 v3, 4, v1
    s_and_b32 s3, s63, 3
    s_lshr_b32 {sCT}, s63, 2
    s_bfe_u32 {sGR}, s2, 0x20001
    s_mul_i32 s4, s3, 5
    s_lshr_b32 s4, s4, 1
    {ROTX}
    s_cmp_ge_u32 s4, 10
    s_cselect_b32 s5, 10, 0
    s_sub_u32 s4, s4, s5              ; rot
    s_lshl_b32 {sGR}, {sGR}, 2
    s_add_u32 {sGR}, {sGR}, s3
    s_and_b32 s3, s2, 1
    s_lshl_b32 s3, s3, 3
    s_add_u32 {sCT}, {sCT}, s3
    s_lshl_b32 s28, s4, 7
    s_mul_i32 s29, s4, 245760
    s_and_b32 {sLO}, {sW}, 3
    s_lshr_b32 {sHI}, {sW}, 2
    s_lshl_b32 s3, {sGR}, 7
    s_lshl_b32 s4, {sLO}, 3
    s_add_u32 s3, s3, s4
    v_lshrrev_b32 v4, 3, v1
    v_add_u32 v4, s3, v4
    v_mul_u32_u24 v4, 1280, v4
    s_and_b32 s3, {sLO}, 1
    s_lshl_b32 s3, s3, 2
    v_or_b32 v5, s3, v3
    v_and_b32 v6, 7, v1
    v_xor_b32 v5, v5, v6
    v_lshl_add_u32 v{vXD}, v5, 4, v4
    s_lshl_b32 s3, {sLO}, 2
    v_add_u32 v4, s3, v3
    v_mul_u32_u24 v4, 3840, v4
    s_lshl_b32 s3, {sLO}, 1
    s_and_b32 s3, s3, 4
    v_or_b32 v5, s3, v3
    v_lshlrev_b32 v5, 1, v5
    v_xor_b32 v5, v5, v2
    v_lshl_add_u32 v4, v5, 4, v4
    s_lshl_b32 s3, {sCT}, 8
    v_add_u32 v{vWD}, s3, v4
    s_lshl_b32 s30, {sLO}, 10
    s_waitcnt lgkmcnt(0)""")
    a.stamp(1)
    srd(a, 8, P_X, 2621440)
    srd(a, 12, P_WQKV, 2457600)
    def ids_code():
        a(f"""s_and_b32 s3, s2, 7
    s_lshl_b32 {sHP}, s3, 1
    s_lshr_b32 s4, s63, 4
    s_add_u32 {sHP}, {sHP}, s4
    s_and_b32 {sRB}, s63, 15
    s_lshl_b32 {sRB2}, s3, 2
    s_lshr_b32 s5, s63, 3
    s_add_u32 {sRB2}, {sRB2}, s5
    s_and_b32 {sCS}, s63, 7
    s_min_u32 s4, s3, 5
    s_sub_u32 {sROLE}, {sRB2}, s4
    s_cmp_eq_u32 s5, 3
    s_cselect_b32 s4, s3, 7
    s_add_u32 s3, s3, 32
    s_cmp_lt_u32 s4, 5
    s_cselect_b32 {sROLE}, s3, {sROLE}""")
    def late_code():
        div_lane(a, 8, 9, 1, 10)
        a(f"""s_and_b32 s3, {sW}, 1
    s_lshl_b32 s3, s3, 2
    v_add_u32 v4, s3, v8
    v_mul_u32_u24 v4, 1280, v4
    s_mul_i32 s3, s3, 5
    s_add_u32 s3, s3, 16
    v_add_u32 v5, s3, v8
    v_mul_u32_u24 v5, 1280, v5
    s_mul_i32 s3, {sCS}, 160
    v_lshl_add_u32 v6, v9, 4, s3
    v_add_u32 v{bWO0}, v4, v6
    v_add_u32 v{bWO1}, v5, v6
    s_lshl_b32 s3, {sRB}, 2
    s_add_u32 s3, s3, {sLO}
    s_mul_i32 s3, s3, 40960
    s_add_u32 s3, s3, {O_OFF}
    s_lshl_b32 s4, {sHP}, 1
    s_add_u32 s4, s4, {sHI}
    s_lshl_b32 s5, s4, 10
    s_add_u32 s5, s5, s3
    v_lshl_add_u32 v{vO0}, v1, 4, s5
    s_lshl_b32 s5, s4, 8
    s_add_u32 s5, s5, s3
    s_add_u32 s5, s5, 32768
    v_lshl_add_u32 v{vO1}, v1, 3, s5
    s_mul_i32 s3, {sCS}, 80
    v_lshrrev_b32 v4, 3, v1
    v_add_u32 v4, s3, v4
    v_mul_u32_u24 v4, 3456, v4
    v_and_b32 v5, 7, v1
    v_lshl_add_u32 v4, v5, 4, v4
    s_lshl_b32 s3, {sROLE}, 7
    v_add_u32 v{bGU}, s3, v4
    s_cmp_ge_u32 {sW}, 3
    s_cselect_b32 s4, 1, 0            ; kv
    s_mul_i32 s5, s4, 3
    s_sub_u32 s5, {sW}, s5
    s_mov_b32 s70, s4
    s_mov_b32 s71, s5
    s_add_u32 s5, s5, {sRB}
    s_sub_u32 s5, s5, 2
    s_max_i32 s5, s5, 0
    s_min_i32 s5, s5, 15
    s_mul_i32 s4, s4, 80
    s_add_u32 s4, s4, 80
    s_add_u32 s4, s4, s5
    v_mov_b32 v4, s4
    v_mov_b32 v5, {sRB}
    v_cmp_gt_u32 vcc, 2, v1
    v_cndmask_b32 v4, v5, v4, vcc
    s_mul_i32 s3, {sHP}, 40
    v_and_b32 v7, 1, v1
    v_mul_u32_u24 v7, 39, v7
    v_add_u32 v7, s3, v7
    v_lshrrev_b32 v7, 7, v7
    v_lshl_add_u32 v4, v7, 4, v4
    v_lshlrev_b32 v4, 7, v4
    v_add_u32 v{vF1A}, {F1_OFF}, v4
    v_bfe_u32 v4, v1, 2, 1
    v_lshlrev_b32 v4, 9, v4
    v_and_b32 v5, 3, v1
    v_lshl_add_u32 v4, v5, 13, v4
    s_lshr_b32 s3, {sRB2}, 1
    s_and_b32 s4, s3, 3
    s_lshl_b32 s4, s4, 7
    s_lshr_b32 s3, s3, 2
    s_lshl_b32 s3, s3, 11
    s_add_u32 s3, s3, s4
    s_lshl_b32 s4, {sHI}, 10
    s_add_u32 s3, s3, s4
    s_add_u32 s3, s3, {F1_OFF + 32}
    v_add_u32 v{bF2A}, s3, v4
    v_bfe_u32 v4, v1, 2, 1
    v_lshlrev_b32 v4, 11, v4
    v_lshl_add_u32 v4, v5, 7, v4
    s_and_b32 s3, {sCT}, 14
    s_lshl_b32 s3, s3, 11
    s_and_b32 s4, {sGR}, 12
    s_lshl_b32 s4, s4, 7
    s_add_u32 s3, s3, s4
    s_add_u32 s3, s3, {F1_OFF + 32}
    v_add_u32 v4, s3, v4
    v_cmp_le_u32 vcc, 8, v1
    v_cndmask_b32 v{bF2A}, v{bF2A}, v4, vcc
    s_mul_i32 s3, s63, 200
    s_mul_i32 s4, {sLO}, 50
    s_add_u32 s3, s3, s4
    v_add_u32 v4, s3, v1
    v_lshlrev_b32 v{vTO}, 7, v4
    v_subrev_u32 v4, {128 + 256*OPT.get('guh', 1)}, v0
    v_lshrrev_b32 v5, 1, v4
    s_mul_i32 s3, s63, 54
    v_add_u32 v5, s3, v5
    v_mul_u32_u24 v5, 1280, v5
    v_and_b32 v4, 1, v4
    v_lshl_add_u32 v5, v4, 7, v5
    s_and_b32 s3, s2, 7
    s_lshl_b32 s3, s3, 8
    v_add_u32 v{TD}, s3, v5
    v_or_b32 v8, 32, v1
    v_lshlrev_b32 v8, 2, v8
    s_lshl_b32 s3, {sGR}, 10
    s_add_u32 s35, s3, {ST_OFF}""")
        srd(a, 44, P_WO, 819200)
        a(f"""s_lshr_b32 s3, {sLO}, 1
    s_mul_i32 s41, s3, {80*1280}
    s_mul_i32 s40, s3, 10240
    s_and_b32 s3, {sW}, 1
    s_mul_i32 s3, s3, 1280
    s_add_u32 s40, s40, s3""")
    def dmaA(c, fill=None):
        b = slot(c)
        for k in range(4):
            a(f"""s_add_u32 m0, s30, {b + 4096*k}
            s_add_u32 s31, s28, {40960*k}
            buffer_load_dwordx4 v{vXD}, s[8:11], s31 offen lds""")
            if fill: a(fill[2*k])
            a(f"""s_add_u32 m0, s30, {b + 16384 + 4096*k}
            s_add_u32 s31, s29, {61440*k}
            buffer_load_dwordx4 v{vWD}, s[12:15], s31 offen lds""")
            if fill: a(fill[2*k + 1])
        a(f"""s_add_u32 s28, s28, 128
        s_add_u32 s29, s29, 245760
        s_cmp_ge_u32 s28, 1280
        s_cselect_b32 s28, 0, s28
        s_cselect_b32 s29, 0, s29""")
    a(f"""s_cmp_eq_u32 {sCT}, 15
    s_cbranch_scc1 L_ND0
    s_cmp_lg_u32 {sHI}, 0
    s_cbranch_scc1 L_LOADER
    L_ND0:""")
    def signal(vm, sfx):
        a(f"""s_cmp_lg_u32 {sW}, 0
        s_cbranch_scc1 L_NOSIG{sfx}
        s_and_b32 s3, s2, 31
        s_lshl_b32 s3, s3, 2
        s_add_u32 s3, s3, 128
        v_mov_b32 v4, s3
        v_mov_b32 v5, 1
        s_lshl_b32 s3, {sGR}, 2
        v_mov_b32 v6, s3
        s_waitcnt vmcnt({vm})
        s_mov_b64 exec, 1
        {f"global_store_dword v6, v5, s[{P_DBG}:{P_DBG+1}] sc1" if sfx == "H" else ""}
        global_atomic_add v4, v5, s[{P_DBG}:{P_DBG+1}] sc1
        {MALL}
        L_NOSIG{sfx}:""")
    srd(a, 16, P_WS, WS_SIZE)
    a(f"""s_lshl_b32 s4, {sCT}, 4
    s_add_u32 s4, s4, {sGR}
    s_lshl_b32 s4, s4, 7
    s_add_u32 s59, s4, {F1_OFF}
    v_mov_b32 v{NEG}, -1
    v_mov_b32 v{NEG+1}, -1
    v_mov_b32 v{NEG+2}, -1
    v_mov_b32 v{NEG+3}, -1
    s_cmp_lg_u32 {sW}, 0
    s_cbranch_scc1 L_NOCLR
    s_lshl_b32 s3, s2, 10
    s_add_u32 s3, s3, {PART_OFF}
    v_lshl_add_u32 v6, v1, 4, s3
    buffer_store_dwordx4 {q4(NEG)}, v6, {WSR}, 0 offen sc1
    s_mov_b32 s3, {PARTB}
    buffer_store_dwordx4 {q4(NEG)}, v6, {WSR}, s3 offen sc1
    s_mov_b32 s3, {EP_OFF - PART_OFF}
    buffer_store_dwordx4 {q4(NEG)}, v6, {WSR}, s3 offen sc1
    s_mov_b32 s3, {EP_OFF - PART_OFF + 0x40000}
    buffer_store_dwordx4 {q4(NEG)}, v6, {WSR}, s3 offen sc1
    s_lshl_b32 s6, s2, 7
    s_add_u32 s5, s6, {XS_OFF - 256}
    s_add_u32 s6, s6, {ACT_OFF - 128}
    s_lshl_b32 s7, s2, 6
    s_add_u32 s7, s7, {KEY_OFF - 384}
    v_mov_b32 v6, s59
    v_mov_b32 v7, s6
    v_cmp_le_u32 vcc, 8, v1
    v_cndmask_b32 v6, v6, v7, vcc
    v_mov_b32 v7, s5
    v_cmp_le_u32 vcc, 16, v1
    v_cndmask_b32 v6, v6, v7, vcc
    v_mov_b32 v7, s7
    v_cmp_le_u32 vcc, 24, v1
    v_cndmask_b32 v6, v6, v7, vcc
    v_lshl_add_u32 v6, v1, 4, v6
    s_mov_b64 exec, 0xfffffff
    buffer_store_dwordx4 {q4(NEG)}, v6, {WSR}, 0 offen sc1
    {MALL}
    s_cmp_lg_u32 {sCT}, 15
    s_cbranch_scc1 L_NOCLR
    s_lshl_b32 s3, {sGR}, 10
    s_add_u32 s3, s3, {ST_OFF}
    v_lshl_add_u32 v6, v1, 4, s3
    buffer_store_dwordx4 {q4(NEG)}, v6, {WSR}, 0 offen sc1
    L_NOCLR:
    s_cmp_lg_u32 {sCT}, 15
    s_cbranch_scc1 L_PRE""")
    HX = 136
    a(f"""s_lshl_b32 s3, {sGR}, 7
    s_lshl_b32 s4, {sW}, 4
    s_add_u32 s3, s3, s4
    v_lshrrev_b32 v4, 3, v1
    v_add_u32 v4, s3, v4
    v_mul_u32_u24 v4, 1280, v4
    v_and_b32 v5, 7, v1
    v_lshl_add_u32 v{vXD}, v5, 4, v4
    s_mov_b32 s5, 10240""")
    for i in range(20): a(f"buffer_load_dwordx4 {q4(HX+4*i)}, v{vXD}, s[8:11], {'s5' if i & 1 else '0'} offen offset:{128*(i >> 1)}")
    a("v_mov_b32 v8, 0x3f803f80")
    for r in range(8): a(f"v_mov_b32 v{24+r}, 0")
    for i in range(20):
        a(f"s_waitcnt vmcnt({19-i})")
        if i == 0: signal(63, "H")
        for r in range(4):
            x = HX + 4*i + r; d = 24 + 4*(i & 1) + 2*(r & 1)
            a(f"v_dot2_f32_bf16 v{d}, v{x}, v8, v{d}\n v_dot2_f32_bf16 v{d+1}, v{x}, v{x}, v{d+1}")
    a("""s_nop 3
    v_add_f32 v24, v24, v26
    v_add_f32 v25, v25, v27
    v_add_f32 v26, v28, v30
    v_add_f32 v27, v29, v31""")
    for pat in ("quad_perm:[1,0,3,2]", "quad_perm:[2,3,0,1]", "row_half_mirror"):
        for v in range(24, 28): a(f"v_add_f32_dpp v{v}, v{v}, v{v} {pat} row_mask:0xf bank_mask:0xf")
    a("""v_and_b32 v6, 1, v1
    v_cmp_eq_u32 s[6:7], 1, v6
    v_cndmask_b32 v24, v24, v26, s[6:7]
    v_cndmask_b32 v25, v25, v27, s[6:7]""")
    ln_scalars(a, 24, 25)
    a(f"""v_min_u32 v24, -2, v24
    v_min_u32 v25, -2, v25
    v_lshrrev_b32 v4, 3, v1
    v_lshl_add_u32 v4, v6, 3, v4
    s_lshl_b32 s3, {sW}, 6
    v_lshl_add_u32 v4, v4, 2, s3
    ds_write2st64_b32 v4, v24, v25 offset0:0 offset1:2
    s_waitcnt lgkmcnt(0)
    s_barrier
    s_cmp_lg_u32 {sW}, 0
    s_cbranch_scc1 L_HB2
    v_lshlrev_b32 v4, 4, v1
    ds_read_b128 v[24:27], v4
    s_lshl_b32 s3, {sGR}, 10
    s_add_u32 s3, s3, {ST_OFF}
    s_waitcnt lgkmcnt(0)
    buffer_store_dwordx4 v[24:27], v4, {WSR}, s3 offen sc1
    L_HB2:""")
    if OPT.get("hw", 1):
        a(f"""s_mul_i32 s3, {sGR}, 51200
        v_lshl_add_u32 v4, v0, 7, s3
        v_cmp_gt_u32 vcc, 400, v0""")
        masked_load(a, 251, 4, P_WO, "L_HWT")
    if OPT.get("hr", 1):
        a("v_subrev_u32 v4, 448, v0\n v_cmp_gt_u32 vcc, 10, v4\n v_lshlrev_b32 v4, 7, v4")
        masked_load(a, 251, 4, P_WR, "L_HWR")
    if OPT.get("hd", 0):
        n = OPT["hd"]
        a(f"""s_mul_i32 s3, {sGR}, {n*128}
        v_lshl_add_u32 v4, v0, 7, s3
        v_cmp_gt_u32 vcc, {n}, v0""")
        masked_load(a, 251, 4, P_D, "L_HWD")
    a("s_barrier")
    a.stamp(7, 5)
    a("L_PRE:")
    a.stamp(1, 1)
    ids_code()
    a(f"""    ; fragment read addresses
    v_lshrrev_b32 v4, 1, v2
    v_xor_b32 v4, v4, v3
    v_lshlrev_b32 v4, 4, v4
    v_lshl_add_u32 v4, v2, 7, v4
    s_lshr_b32 s33, {sLO}, 1          ; wr
    s_lshl_b32 s3, s33, 13
    v_add_u32 v{vAS}, s3, v4
    v_xor_b32 v{vAS+1}, 64, v{vAS}
    v_bfe_u32 v4, v1, 2, 2
    v_and_b32 v5, 1, v3
    v_lshl_or_b32 v5, v5, 2, v4
    v_lshl_add_u32 v4, v3, 3, v4
    v_lshlrev_b32 v4, 8, v4
    v_and_b32 v6, 3, v1
    v_lshl_add_u32 v4, v6, 3, v4
    v_add_u32 v4, 16384, v4
    s_and_b32 s32, {sLO}, 1
    s_lshl_b32 s32, s32, 2
    s_lshl_b32 s3, s33, 1
    s_add_u32 s32, s32, s3
    v_xor_b32 v6, s32, v5
    v_lshl_add_u32 v{vAS+2}, v6, 5, v4
    v_xor_b32 v{vAS+3}, 32, v{vAS+2}
    v_xor_b32 v{vAS+4}, 64, v{vAS+2}
    v_xor_b32 v{vAS+5}, 0x60, v{vAS+2}""")
    for q in (1, 2):
        for i in range(6): a(f"v_add_u32 v{vAS+6*q+i}, {65536*q}, v{vAS+i}")
    for i in range(4): a(f"v_mov_b32 v{ONES+i}, 0x3f803f80")
    if OPT.get("z2", 1):
        a(f"""s_cmp_eq_u32 {sCT}, 15
        s_cbranch_scc1 L_KEEP1
        s_mov_b32 exec_lo, 0xfffefffe
        s_mov_b32 exec_hi, 0xfffefffe""")
        for i in range(4): a(f"v_mov_b32 v{ONES+i}, 0")
        a(f"{MALL}\n L_KEEP1:")
    a(f"""    ; epilogue addresses
    s_cmp_ge_u32 {sCT}, 10
    s_cselect_b64 s[56:57], -1, 0
    v_lshlrev_b32 v6, 4, v3
    v_lshlrev_b32 v7, 2, v2
    v_cndmask_b32 v8, v6, v7, s[56:57]
    v_cndmask_b32 v9, v7, v6, s[56:57]
    s_lshl_b32 s3, s32, 6
    s_add_u32 s3, s3, {SCR+1024}
    v_add_u32 v{vCW}, s3, v7
    v_add_u32 v{vCR[0]}, s3, v8
    v_xor_b32 v{vCR[1]}, 0x80, v{vCR[0]}
    s_lshl_b32 s3, s33, 8
    s_add_u32 s3, s3, {SCR}
    v_add_u32 v{vSR}, s3, v9
    s_mul_i32 s3, {sCT}, 52
    s_lshr_b32 s3, s3, 8              ; section
    s_mul_i32 s4, s3, 5
    s_sub_u32 s34, {sCT}, s4          ; ct % 5
    s_mul_i32 s37, s3, {K_OFF}
    s_lshl_b32 s4, {sGR}, 2
    s_lshl_b32 s5, s33, 1
    s_add_u32 s4, s4, s5
    s_mul_i32 s4, s4, {T32}
    s_add_u32 s37, s37, s4
    s_cmp_eq_u32 s3, 0
    s_cselect_b32 s36, {QSCALE:#x}, 1.0
    v_lshrrev_b32 v5, 1, v3
    v_and_b32 v4, 1, v3
    v_lshl_add_u32 v8, v4, 1, v5      ; 2(g&1) + (g>>1)
    v_mul_u32_u24 v7, 640, v8""")
    for u in range(4):
        a(f"""s_xor_b32 s4, s32, {2*u if u < 2 else 0}
        s_lshl_b32 s4, s4, 1
        s_lshl_b32 s3, s34, 4
        s_add_u32 s3, s3, s4
        v_add_u32 v4, s3, v8
        v_mul_u32_u24 v6, 13108, v4
        v_lshrrev_b32 v6, 16, v6
        v_mul_u32_u24 v6, {64*T32 - 5*512}, v6
        v_lshl_add_u32 v6, v4, 9, v6
        v_lshl_add_u32 v9, v2, 4, v6""" if u < 2 else "")
        a(f"""s_xor_b32 s4, s32, {u}
        s_lshl_b32 s4, s4, 4
        s_lshl_b32 s3, s34, 7
        s_add_u32 s3, s3, s4
        v_add_u32 v4, s3, v2
        v_mul_u32_u24 v6, 1639, v4
        v_lshrrev_b32 v6, 16, v6
        v_mul_u32_u24 v6, {64*T32 - 640}, v6
        v_lshl_add_u32 v6, v4, 4, v6
        v_add_u32 v6, v6, v7
        v_cndmask_b32 v{vST+u}, v9, v6, s[56:57]""")
    late_code()
    def wo_early(k):
        z, h, y = (k >> 1) & 3, k & 1, k >> 3
        return f"""s_add_u32 m0, s40, {WOL + 640*h + 2560*z + 20480*y}
        s_add_u32 s42, s41, {8*1280*h + 20*1280*z + 160*1280*y}
        {M40}
        buffer_load_dwordx4 v{bWO0}, s[44:47], s42 offen lds
        {MALL}"""
    WE = OPT.get("we", 1); WES = OPT.get("wes", 17)
    wo_touch = f"""s_mov_b32 exec_hi, 0x3ffff
        global_load_dword v252, v{vTO}, s[{P_WO}:{P_WO+1}]
        {MALL}"""
    def clr_check(L, sl=None):
        a(f"v_cmp_gt_u32 vcc, 8, v9\n s_cbranch_vccz {L}_OK")
        spin_head(a, L)
        a(f"""global_load_dword v9, v8, s[{P_DBG}:{P_DBG+1}] sc1
        s_waitcnt vmcnt(0)
        v_cmp_gt_u32 vcc, 8, v9""")
        spin_tail(a, L, sl)
    a.stamp(2, 1)
    a(f"s_cmp_eq_u32 {sCT}, 15\n s_cbranch_scc1 L_HELP")
    a("s_barrier")
    a.stamp(2); a.stamp(3, 1)
    def FA(b, t): return FR + 32*b + 4*t
    def FB(b, c): return FR + 32*b + 16 + 4*c
    def a1_reads(n):
        c, ks, b = n >> 1, n & 1, n & 1
        sl = c % 5
        base, off = vAS + 6*(sl // 2), (sl % 2) * 32768
        A = [f"ds_read_b128 {q4(FA(b, t))}, v{base+ks} offset:{off + 2048*t}" for t in range(4)]
        B = [f"ds_read_b64_tr_b16 {q2(FB(b, c2)+2*h)}, v{base+2+c2} offset:{off + 8192*ks + 1024*h}" for c2 in range(4) for h in range(2)]
        L = B[0:4] + [A[0], A[1], A[2], A[3]] + B[4:8]
        if n == 18:
            L = L + [f"ds_read_b64_tr_b16 {q2(XB+4*c2+2*h)}, v{base+2+c2} offset:{off + 8192 + 1024*h}" for c2 in range(2) for h in range(2)]
        return L
    def a1_mfmas(n, isv):
        b = n & 1; f = n == 0
        L = [] if n == 19 else [(mm16(CS, ONES, FB(b, 0), f), 1), (mm16(CS+4, ONES, FB(b, 1), f), 3)]
        def mn(t, c):
            d = ACC + 16*t + 4*c
            return mm16(d, FA(b, t), FB(b, c), f) if isv else mm16(d, FB(b, c), FA(b, t), f)
        for t in range(4):
            for c in range(2): L.append((mn(t, c), 4 + t))
        if n == 18: L += [(mm16(CS, ONES, XB, False), 15), (mm16(CS+4, ONES, XB+4, False), 15)]
        if n == 19:
            for t in range(4):
                for c in (2, 3): L.append((mn(t, c), 11))
        else:
            for c in (2, 3):
                for t in range(4): L.append((mn(t, c), 5 + 2*c))
        return L
    def ep_reads(isv):
        if not isv:
            return [f"ds_read_b128 {q4(TMP+4*u)}, v{vCR[u >> 1]} offset:{64*(u & 1)}" for u in range(4)] + \
                   [f"ds_read2_b32 {q2(TMP+16+2*t)}, v{vSR} offset0:{16*t} offset1:{128+16*t}" for t in range(4)]
        L = [f"ds_read_b32 v{TMP+2*u}, v{vCR[u >> 1]} offset:{64*(u & 1)}" for u in range(4)]
        for t in range(4):
            L += [f"ds_read_b128 {q4(TMP+8+8*t)}, v{vSR} offset:{64*t}", f"ds_read_b128 {q4(TMP+12+8*t)}, v{vSR} offset:{512+64*t}"]
        return L
    BP = OPT.get("bp", 2)
    for x in a1_reads(0): a(x)
    a(f"s_cmp_ge_u32 {sCT}, 10\n s_cbranch_scc1 L_A1_1")
    def a1(isv):
        tag = str(int(isv))
        a(f"L_A1_{tag}:")
        for n in range(20):
            c = n >> 1
            Rn = a1_reads(n + 1) if n < 19 else ep_reads(isv)
            nr = len(a1_reads(n))
            M = a1_mfmas(n, isv)
            issued = 0; done = -1
            bp = (OPT.get('bp15', 6) if n == 15 else 0 if n == 17 else BP) if (n & 1) else 0
            for k, (m, need) in enumerate(M):
                if (n & 1) and k == (OPT.get('bp15', 6) if n == 15 else bp) and n != 17:
                    if n == 19: a("s_waitcnt lgkmcnt(0)"); done = 99
                    a("s_barrier")
                    if c in (0, 1, 2, 3, 4, 5, 6, 8): a.stamp({0:4, 1:5, 2:6, 3:7, 4:8, 5:9, 6:10, 8:11}[c], 1)
                if need > done:
                    ex = 2 if n == 19 else 0
                    a(f"s_waitcnt lgkmcnt({min(15, nr - 1 - need + issued + ex)})"); done = need
                a(m)
                if k >= bp and Rn: a(Rn.pop(0)); issued += 1
            for x in Rn: a(x)
            if n == 0: signal(0, "C" + tag)
            if n == 18:
                a(f"""s_mov_b64 exec, 0xffff
                ds_write_b32 v{vCW}, v{CS}
                ds_write_b32 v{vCW}, v{CS+4} offset:64
                {MALL}""")
        a.stamp(3); a.stamp(1, 2); a.stamp(6, 5)
        if not isv:
            for t in range(4):
                a(f"s_waitcnt lgkmcnt({3-t})\n v_mul_f32 v{TMP+24+2*t}, s36, v{TMP+17+2*t}")
                for pr in range(2):
                    o = PK + 8*t + 4*pr
                    E = [ACC + 16*t + 8*pr + e for e in range(0, 8, 2)]
                    for i, d in enumerate(E):
                        a(f"v_pk_fma_f32 {q2(d)}, {q2(TMP+8*pr+2*i)}, {q2(TMP+16+2*t)}, {q2(d)} op_sel_hi:[1,0,1] neg_lo:[1,0,0] neg_hi:[1,0,0]")
                    for d in E: a(f"v_pk_mul_f32 {q2(d)}, {q2(d)}, {q2(TMP+24+2*t)} op_sel_hi:[1,0]")
                    for i, d in enumerate(E): a(f"v_cvt_pk_bf16_f32 v{o+i}, v{d}, v{d+1}")
                    a(f"""v_permlane16_swap_b32 v{o}, v{o+2}
                    v_permlane16_swap_b32 v{o+1}, v{o+3}
                    buffer_store_dwordx4 {q4(o)}, v{vST+pr}, {WSR}, s37 offen offset:{(t >> 1)*T32 + (t & 1)*256} sc1""")
        else:
            for p in range(2):
                a(f"s_waitcnt lgkmcnt({4-4*p})")
                for c in range(4):
                    o = PK + 16*p + 4*c
                    ds = [(ACC + 16*(2*p+tt) + 4*c + e, 2*p + tt, e, tt) for tt in range(2) for e in (0, 2)]
                    for d, t, e, tt in ds:
                        a(f"v_pk_fma_f32 {q2(d)}, {q2(TMP+8+8*t+e)}, {q2(TMP+2*c)}, {q2(d)} op_sel_hi:[1,0,1] neg_lo:[1,0,0] neg_hi:[1,0,0]")
                    for d, t, e, tt in ds: a(f"v_pk_mul_f32 {q2(d)}, {q2(d)}, {q2(TMP+12+8*t+e)}")
                    for d, t, e, tt in ds: a(f"v_cvt_pk_bf16_f32 v{o+2*tt+e//2}, v{d}, v{d+1}")
                    a(f"""v_permlane16_swap_b32 v{o}, v{o+2}
                    v_permlane16_swap_b32 v{o+1}, v{o+3}
                    buffer_store_dwordx4 {q4(o)}, v{vST+c}, {WSR}, s37 offen offset:{p*T32} sc1""")
        a("s_branch L_HOP")
    a1(False); a1(True)
    def wo_defs():
        srd(a, 8, P_WO, 819200)
        a(f"""s_and_b32 s31, {sW}, 1
    s_mul_i32 s31, s31, 1280
    s_mov_b32 s101, s59""")
    def dma_wo(p):
        if OPT.get("nowo"): return
        kh, q = p // 5, p % 5
        if q < 4: v, so, hs = bWO0, (4*kh + q) * 80 * 1280, 8 * 1280
        else:     v, so, hs = bWO1, kh * 320 * 1280, 40 * 1280
        zs = 20 * 1280 if q < 4 else 80 * 1280
        for z in range(4):
            for h in range(2):
                a(f"""s_add_u32 m0, s31, {WOL + p*10240 + 640*h + 2560*z}
                s_mov_b32 s3, {so + hs*h + zs*z}
                buffer_load_dwordx4 v{v}, s[8:11], s3 offen lds""")
    a("L_LOADER:")
    dmaA(0); dmaA(1)
    srd(a, 16, P_WS, WS_SIZE)
    a(f"""s_lshl_b32 s4, {sCT}, 4
    s_add_u32 s4, s4, {sGR}
    s_lshl_b32 s4, s4, 7
    s_add_u32 s59, s4, {F1_OFF}
    s_lshl_b32 s3, {sGR}, 10
    s_add_u32 s35, s3, {ST_OFF}""")
    a(f"v_lshlrev_b32 v26, 4, v1\n v_lshlrev_b32 v7, 4, v1\n s_lshl_b32 s3, {sGR}, 2\n v_mov_b32 v24, s3\n v_mov_b32 v25, 0")
    vq = ["c0"]*8 + ["c1"]*8
    nis = [0]
    def vwait(tag):
        nonlocal vq
        idx = [i for i, t in enumerate(vq) if t == tag]
        if not idx: return
        a(f"s_waitcnt vmcnt({min(63, len(vq) - 1 - idx[-1])})")
        vq = vq[idx[-1] + 1:]
    W8 = 16; WTC = OPT.get("wtc", 11); D4 = OPT.get("d4", 99); W6 = OPT.get("w6", 0)
    vwait("c0"); a("s_barrier")
    dmaA(2); vq += ["c2"]*8
    nxt = 3
    for c in range(8):
        vwait(f"c{c+1}" if c < 7 else "c9")
        a("s_barrier")
        lim = c + 4 if c >= D4 else c + 3
        while nxt <= min(lim, 9):
            dmaA(nxt); vq += [f"c{nxt}"]*8; nxt += 1
        if c == WTC: a(wo_touch); vq.append("x")
        if c == OPT.get("ckh", 6):
            a(f"s_mov_b64 exec, 1\n global_load_dword v25, v24, s[{P_DBG}:{P_DBG+1}] sc1\n {MALL}"); vq.append("k")
        if c == 6:
            for k in range(W6): a(wo_early(k)); vq.append("x")
    vwait("k")
    a(f"s_cmp_lg_u32 {sW}, 7\n s_cbranch_scc1 L_ST")
    a("s_mov_b64 exec, 1\n v_cmp_ne_u32 vcc, 1, v25\n s_cbranch_vccz L_HF_OK")
    spin_head(a, "L_HF")
    a(f"global_load_dword v25, v24, s[{P_DBG}:{P_DBG+1}] sc1\n s_waitcnt vmcnt(0)\n v_cmp_ne_u32 vcc, 1, v25")
    spin_tail(a, "L_HF")
    a(MALL)
    if OPT.get("ssl", 0): a(f"s_sleep {OPT['ssl']}")
    a(f"buffer_load_dwordx4 {q4(STV)}, v26, {WSR}, s35 offen sc1\n L_ST:")
    NE = OPT.get("ne", 0)
    LP = OPT.get("lp", 0)
    if LP == 0: ids_code(); late_code()
    if WTC == 8: a(wo_touch)
    for k in range(W6, NE): a(wo_early(k))
    nis[0] = NE - W6 + (WTC == 8); st = 0
    WX = OPT.get("wx", 0)
    def wx_part():
        wo_defs()
        a(f"{M40}\n s_cmp_ge_u32 {sW}, 6\n s_cbranch_scc1 L_WX")
        dma_wo(4)
        a("s_branch L_WXD\n L_WX:")
        dma_wo(5)
        a(f"L_WXD:\n {MALL}")
    def st_check(): a(f"v_max3_u32 v4, v{STV}, v{STV+1}, v{STV+2}\n v_max_u32 v4, v4, v{STV+3}\n v_cmp_eq_u32 vcc, -1, v4")
    a(f"s_cmp_lg_u32 {sW}, 7\n s_cbranch_scc1 L_SW")
    a.stamp(3, 5)
    a(f"s_waitcnt vmcnt({nis[0] - st})")
    a.stamp(4, 5)
    st_check()
    a("s_cbranch_vccz L_SP_OK")
    spin_head(a, "L_SP")
    a(f"buffer_load_dwordx4 {q4(STV)}, v26, {WSR}, s35 offen sc1\n s_waitcnt vmcnt(0)")
    st_check()
    spin_tail(a, "L_SP")
    a.stamp(5, 5)
    a(f"""v_add_u32 v7, {SCR}, v26
    ds_write_b128 v7, {q4(STV)}
    s_waitcnt lgkmcnt(0)
    L_SW:""")
    a("s_barrier")
    if LP == 1: ids_code(); late_code()
    if WTC == 9:
        a.stamp(8, 5)
        a(wo_touch)
        if PROF and OPT.get("pg") == 5:
            a("s_waitcnt vmcnt(0)"); a.stamp(9, 5)
    a(f"s_cmp_lg_u32 {sW}, 7\n s_cbranch_scc1 L_LTAIL\n v_mov_b32 v9, 0")
    clr_check("L_CLR")
    a("L_LTAIL:")
    WL = 0
    if WX: wx_part()
    a("s_branch L_HOP")
    a("L_HELP:")
    a(f"s_cmp_eq_u32 {sHI}, 0\n s_cbranch_scc1 L_HOP\n v_mov_b32 v9, 0")
    clr_check("L_CLRS", 20)
    if WTC < 10: a(("s_sleep 40\n" if WTC == 9 else "") + wo_touch)
    for k in range(NE): a(wo_early(k))
    a("s_branch L_LTAIL")

    a("L_HOP:")
    a.stamp(4); a.stamp(3, 2)
    RPD = 56
    wo_defs()
    WO2 = 10
    def gu_loads(L, vg):
        if OPT.get("nogu"): return
        a(f"""s_cmp_lg_u32 {sHI}, {OPT.get("guh", 1)}
        s_cbranch_scc1 {L}
        s_cmp_ge_u32 {sROLE}, 32
        s_cbranch_scc1 {L}
        s_cmp_ge_u32 {sLO}, 2
        s_cselect_b32 s4, s{P_U}, s{P_G}
        s_cselect_b32 s5, s{P_U+1}, s{P_G+1}
        s_and_b32 s3, {sLO}, 1
        s_mul_i32 s3, s3, {40*3456}
        v_add_u32 v4, s3, v{vg}""")
        for i in range(5):
            a(f"global_load_dwordx4 {q4(RPD+4*i)}, v4, s[4:5] nt")
            if i < 4: a(f"v_add_u32 v4, {8*3456}, v4")
        a(f"{L}:")
    Q0, Q1 = 16, 20
    POOL = 24
    MK = 88; O = 96
    a(f"""v_and_b32 v2, 31, v0
    v_lshrrev_b32 v3, 5, v1
    s_mul_i32 s3, {sHP}, {64*T32}
    s_lshl_b32 s4, {sRB}, 2
    s_add_u32 s5, s4, {sLO}
    s_mul_i32 s5, s5, {T32}
    s_add_u32 s5, s5, s3
    v_lshl_add_u32 v4, v2, 4, s5
    s_mul_i32 s5, {sHI}, 1536
    v_lshl_add_u32 v5, v3, 9, v4
    v_add_u32 v80, s5, v5
    s_lshl_b32 s5, {sHI}, 3
    v_add_u32 v81, s5, v4
    v_mov_b32 v{Q1}, 0
    v_mov_b32 v{Q1+1}, 0
    s_sub_u32 s4, s4, 8
    s_mul_i32 s4, s4, {T32}
    s_mul_i32 s5, s71, 10240
    s_add_u32 s4, s4, s5
    v_lshl_add_u32 v82, v1, 4, s4
    s_mul_i32 s6, s70, 30720
    s_add_u32 s71, s5, s6
    s_add_u32 s71, s71, {KL}
    s_mul_i32 s6, s70, {V_OFF - K_OFF}
    s_add_u32 s3, s3, s6
    s_add_u32 s3, s3, {K_OFF}
    s_add_u32 s4, s{P_WS}, s3
    s_addc_u32 s5, s{P_WS+1}, 0""")
    srd(a, 12, 4, 64*T32)
    kappa(a, 4, 2, 5)
    a(f"""s_mul_i32 s3, {sLO}, {T32}
    s_add_u32 s3, s3, {KL}
    s_mul_i32 s4, {sHI}, 1536
    s_add_u32 s4, s4, s3
    v_lshlrev_b32 v5, 4, v4
    v_lshl_add_u32 v{vK0}, v3, 9, v5
    v_add_u32 v{vK0}, s4, v{vK0}
    s_lshl_b32 s4, {sHI}, 3
    s_add_u32 s4, s4, s3
    s_add_u32 s4, s4, 1024
    v_add_u32 v{vK1}, s4, v5
    v_cmp_gt_u32 vcc, 20, v2
    v_cndmask_b32 v5, 0, v5, vcc
    v_mul_u32_u24 v6, 640, v3
    s_mul_i32 s4, {sHI}, 320
    s_add_u32 s4, s4, s3
    s_add_u32 s4, s4, 30720
    v_add3_u32 v{vV}, v5, v6, s4
    v_lshlrev_b32 v4, 3, v3
    v_sub_u32 v4, v2, v4
    v_mov_b32 v5, 0xffff
    v_mov_b32 v6, 0xffff0000""")
    MS = 32
    for r in range(16): a(f"v_cmp_gt_i32 s[{MS+2*r}:{MS+1+2*r}], {(r&7) + 16*(r>>3)}, v4")
    for i in range(8):
        a(f"""v_cndmask_b32 v7, 0, v5, s[{MS+4*i}:{MS+1+4*i}]
        v_cndmask_b32 v8, 0, v6, s[{MS+2+4*i}:{MS+3+4*i}]
        v_or_b32 v{MK+i}, v7, v8""")
    FS = [128, 144, 160]
    FK = [176, 182, 188]
    FV = [POOL, POOL+8, POOL+16]; FV0 = POOL + 24
    FP = [200, 208]
    if OPT.get("z1", 1):
        a(f"v_mov_b32 v{POOL}, 0\n s_mov_b32 exec_lo, 0x11000000\n s_mov_b32 exec_hi, 0x11000000\n v_mov_b32 v{POOL}, 0x3f803f80\n {MALL}")
        for r in range(1, 32): a(f"v_mov_b32 v{POOL+r}, v{POOL}")
    else:
        for r in range(32): a(f"v_mov_b32 v{POOL+r}, 0x3f803f80")
    a(f"""s_lshl_b32 s3, {sRB}, 2
    s_add_u32 s3, s3, {sLO}
    s_sub_i32 s30, 8, s3              ; n_invalid
    s_mov_b32 s28, 0xfffff
    s_mov_b32 s29, 0xfffff""")
    XR, WR, WRS, F2V = 224, 234, 224, 244
    FH = OPT.get('fh', 0)
    LW = 3 if FH else 7
    vXA_, vROW = 84, 85
    def early_loads(L, who=3):
        a(f"""v_and_b32 v4, 15, v0
        v_bfe_u32 v5, v0, 4, 2
        s_lshl_b32 s3, {sRB2}, 6
        s_lshl_b32 s4, {sLO}, 4
        s_add_u32 s3, s3, s4
        v_add_u32 v4, s3, v4
        v_mul_u32_u24 v4, 1280, v4
        v_mul_u32_u24 v5, 40, v5
        s_mul_i32 s3, {sCS}, 160
        v_add_u32 v5, s3, v5
        v_add_u32 v4, v5, v4
        s_cmp_lg_u32 {sHI}, {FH}
        s_cbranch_scc1 {L}_H""")
        if who & 1: a(f"""global_load_dwordx4 {q4(XR)}, v4, s[{P_X}:{P_X+1}]
        global_load_dwordx4 {q4(XR+4)}, v4, s[{P_X}:{P_X+1}] offset:16
        global_load_dwordx2 {q2(XR+8)}, v4, s[{P_X}:{P_X+1}] offset:32
        global_load_dwordx4 {q4(WR)}, v5, s[{P_WR}:{P_WR+1}]
        global_load_dwordx4 {q4(WR+4)}, v5, s[{P_WR}:{P_WR+1}] offset:16
        global_load_dwordx2 {q2(WR+8)}, v5, s[{P_WR}:{P_WR+1}] offset:32""")
        a(f"""s_branch {L}_D
        {L}_H:
        v_lshlrev_b32 v4, 2, v1""")
        for i in range(5 if who & 2 else 0): a(f"global_load_dword v{WRS+i}, v4, s[{P_WR}:{P_WR+1}] offset:{256*i}")
        a(f"{L}_D:")
    PLAN = OPT.get("plan", 37)
    pre, post, inb = [
        ([[4], [5], [6], [7]], [[], [], [], [8, 9]], []),
        ([[], [], [4], [5]], [[], [], [], [6, 7]], [8, 9]),
        ([[], [], [], [4]], [[], [], [], [5, 6, 7]], [8, 9]),
        ([[], [], [4], [5]], [[], [], [], [6, 7, 8, 9]], []),
        ([[], [], [], [4]], [[], [], [], [5]], [6, 7, 8, 9]),
        ([[4], [5], [6], [7]], [[], [], [], []], [8, 9]),
        ([[], [], [], [4]], [[7], [8], [9], [5, 6]], []),
        ([[], [], [], []], [[7], [8], [9], [4, 5, 6]], []),
        ([[], [], [], [4, 5]], [[7], [8], [9], [6]], []),
        ([[4], [5], [], []], [[7], [8], [9], [6]], []),
        ([[4], [], [], []], [[7], [8], [9], [5, 6]], []),
        ([[4], [5], [], []], [[], [], [9], [6, 7, 8]], []),
        ([[], [], [], []], [[7], [8], [9], [6]], []),
        ([[], [], [7], [8]], [[], [], [9], [6]], []),
        ([[], [], [], [7]], [[8], [9], [], [6]], []),
        ([[], [], [7], [8]], [[], [], [], [6, 9]], []),
        ([[], [], [0], [1]], [[2], [3], [4], [5]], [6, 7, 8, 9]),
        ([[], [], [0], [1]], [[], [], [2], [3]], [4, 5, 6, 7, 8, 9]),
        ([[], [], [0, 2], [1, 3]], [[4], [5], [6], [7]], [8, 9]),
        ([[], [], [], []], [[0], [1], [2], [3]], [4, 5, 6, 7, 8, 9]),
        ([[], [], [0, 2], [1, 3]], [[], [], [4], [5]], [6, 7, 8, 9]),
    ][PLAN] if PLAN < 30 else [
        ([[], [], [], []], [[0], [1], [2], [3]], [4, 5, 6, 7, 8, 9]),
        ([[], [], [], []], [[], [], [], [0, 1]], [2, 3, 4, 5, 6, 7, 8, 9]),
        ([[], [], [], [4]], [[0], [1], [2], [3, 5]], [6, 7, 8, 9]),
        ([[], [], [], []], [[], [], [], []], [0, 1, 2, 3, 4, 5, 6, 7, 8, 9]),
        ([[], [], [], []], [[], [], [], [4, 5]], [6, 7, 8, 9]),
        ([[], [], [], []], [[4], [5], [6], [7]], [8, 9]),
        ([[], [], [], []], [[], [], [], []], [4, 5, 6, 7, 8, 9]),
        ([[], [], [4], [5]], [[0], [1], [2], [3]], [6, 7, 8, 9]),
        ([[], [], [0], [1]], [[], [], [2], [3]], [4, 5, 6, 7, 8, 9]),
        ([[], [], [0], [1]], [[], [], [], []], [2, 3, 4, 5, 6, 7, 8, 9]),
        ([[], [], [], []], [[0], [1], [], [2, 3]], [4, 5, 6, 7, 8, 9]),
        ([[], [], [4, 7], [5, 8]], [[0], [1], [2], [3]], [6, 9]),
        ([[], [], [4, 7], [5, 8]], [[0], [1], [], []], [2, 3, 6, 9]),
        ([[], [], [4], [5, 7]], [[0], [1], [2], [3, 8]], [6, 9]),
        ([[], [], [4], [5]], [[0], [1], [2], [3, 7, 8]], [6, 9]),
        ([[], [], [4, 7], [5, 8]], [[], [], [0], [1]], [2, 3, 6, 9]),
    ][PLAN - 30]
    a.stamp(6, 2)
    if W8 + WL < 16 and PLAN < 16:
        assert (W8 + WL) % 8 == 0
        y0 = (W8 + WL) // 8
        pre = [list(p) for p in pre]
        for y in range(y0, 2):
            pre[2].insert(0, 2*y); pre[3].insert(0, 2*y + 1)
    a(f"s_lshr_b32 s4, {sW}, 1\n v_mov_b32 v6, s101\n v_mov_b32 v7, 1")
    for pr in range(4):
        if pr < 3: a(f"s_cmp_lg_u32 s4, {pr}\n s_cbranch_scc1 L_PR{pr}")
        if pre[pr]: a(M40)
        for p in pre[pr]: dma_wo(p)
        a(f"{MALL}\n s_waitcnt vmcnt({8*len(pre[pr]) if pr < 2 else 63})")
        if pr < 3: a(f"s_branch L_PRD\n L_PR{pr}:")
    a("L_PRD:")
    a.stamp(4, 2)
    a(f"""s_barrier
    s_cmp_lg_u32 {sW}, 7
    s_cbranch_scc1 L_NOF1
    s_mov_b64 exec, 1
    buffer_store_dword v7, v6, {WSR}, 0 offen sc1
    {MALL}
    L_NOF1:""")
    a.stamp(5, 2)
    if WTC == 10: a(f"s_cmp_eq_u32 {sHI}, 0\n s_cbranch_scc1 L_NT10\n {wo_touch}\n L_NT10:")
    for pr in range(4):
        if post[pr]:
            a(f"s_cmp_lg_u32 s4, {pr}\n s_cbranch_scc1 L_PO{pr}\n {M40}")
            for p in post[pr]: dma_wo(p)
            a(f"{MALL}\n L_PO{pr}:")
    a.stamp(7, 2)
    PSL = OPT.get("psl", 4)
    a(f"""s_cmp_ge_u32 {sW}, 6
    s_cbranch_scc1 L_WOH
    s_mov_b64 exec, 15""")
    if OPT.get("fsl", 0): a(f"s_sleep {OPT['fsl']}")
    spin_head(a, "L_F1POLL")
    a(f"""buffer_load_dword v4, v{vF1A}, {WSR}, 0 offen sc1
    s_waitcnt vmcnt(0)
    v_cmp_ne_u32 s[6:7], 1, v4
    s_and_b64 vcc, s[6:7], 3""")
    spin_tail(a, "L_F1POLL", PSL)
    a(MALL)
    a.stamp(5); a.stamp(8, 2)
    for i in range(10):
        if i % 4 == 0:
            a(f"s_add_u32 m0, s71, {1024*i}\n v_add_u32 v4, {1024*i}, v82")
        a(f"buffer_load_dwordx4 v4, s[12:15], 0 offen offset:{1024*(i % 4)} sc1 lds")
    a(f"s_cmp_eq_u32 s6, 0\n s_cbranch_scc1 L_QPOLL_OK")
    a(f"""L_WOH:
    s_mov_b64 exec, 12""")
    spin_head(a, "L_QPOLL")
    a(f"""buffer_load_dword v4, v{vF1A}, {WSR}, 0 offen sc1
    s_waitcnt vmcnt(0)
    v_cmp_ne_u32 vcc, 1, v4""")
    spin_tail(a, "L_QPOLL", PSL)
    a(f"""{MALL}
    buffer_load_dwordx4 {q4(Q0)}, v80, {WSR}, 0 offen sc1
    s_mov_b32 exec_hi, 0
    buffer_load_dwordx2 {q2(Q1)}, v81, {WSR}, 0 offen offset:1024 sc1
    {MALL}""")
    a.stamp(6); a.stamp(9, 2)
    early_loads("L_EL0", 3 - OPT.get("elb", 1))
    a("s_waitcnt vmcnt(0)\n s_barrier")
    a.stamp(7); a.stamp(1, 4); a.stamp(10, 2)
    if OPT.get("bpr", 0): a(f"s_cmp_lg_u32 {sHI}, {OPT['bpr'] - 1}\n s_cbranch_scc1 L_NBP\n s_setprio 1\n L_NBP:")
    def kread(r, t): return f"ds_read_b128 {q4(r)}, v{vK0} offset:{T32*t}\n ds_read_b64 {q2(r+4)}, v{vK1} offset:{T32*t}"
    def vread(r, t, chk=True):
        m = f"s_cmp_gt_i32 s30, {t}\n s_cselect_b64 exec, -1, s[28:29]" if chk else "s_mov_b64 exec, s[28:29]"
        return f"""{m}
        ds_read_b128 {q4(r)}, v{vV} offset:{T32*t}
        ds_read_b128 {q4(r+4)}, v{vV} offset:{T32*t+1280}
        {MALL}"""
    def s1(s, k): return f"v_mfma_f32_32x32x16_bf16 {r16(s)}, {q4(k)}, {q4(Q0)}, 0"
    def s2(s, k): return f"v_mfma_f32_32x32x8_bf16 {r16(s)}, {q2(k+4)}, {q2(Q1)}, {r16(s)}"
    def pvm(v, p, first=False): return f"v_mfma_f32_32x32x16_bf16 {r16(O)}, {q4(v)}, {q4(p)}, {'0' if first else r16(O)}"
    seq = [8, 0, 7, 6, 5, 4, 3, 2, 1]
    vseq = [8, 7, 6, 5, 4, 3, 2, 1]
    def vbuf(t): return FV0 if t == 0 else FV[vseq.index(t) % 3]
    for n in range(3): a(kread(FK[n], seq[n]))
    def down_touch(vt):
        if OPT.get("notd"): return
        a(f"""s_and_b32 s3, s2, 7
        s_cmp_lt_u32 s3, 5
        s_cselect_b32 s3, 108, 0
        v_subrev_u32 v4, {128 + 256*OPT.get('guh', 1)}, v0
        v_cmp_gt_u32 vcc, s3, v4""")
        masked_load(a, 9, vt, P_D, "L_TD")
    LATEW = OPT.get('latew', 0)
    ENDW = OPT.get('endw', 1)
    def wo_slot(k):
        if ENDW: return
        if LATEW: return
        if 2*k < len(inb):
            a(f"s_lshr_b32 s4, {sW}, 1")
            for pr in range(2):
                a(f"s_cmp_lg_u32 s4, {pr}\n s_cbranch_scc1 L_WS{k}_{pr}\n {M40}"); dma_wo(inb[2*k + pr]); a(f"{MALL}\n L_WS{k}_{pr}:")
    a(vread(vbuf(8), 8, False)); a(vread(FV0, 0)); a(vread(vbuf(7), 7))
    a(f"s_waitcnt lgkmcnt(10)\n {s1(FS[0], FK[0])}\n {s2(FS[0], FK[0])}")
    a(f"s_waitcnt lgkmcnt(8)\n {s1(FS[1], FK[1])}\n {s2(FS[1], FK[1])}")
    a(kread(FK[0], seq[3]))
    if OPT.get('elb', 1): early_loads('L_EL', OPT.get('elb', 1))
    wo_slot(0); wo_slot(1)
    GUN = OPT.get('gun', 0)
    if WTC == 12: a(f"s_cmp_eq_u32 {sHI}, 0\n s_cbranch_scc1 L_NT12\n {wo_touch.replace('v252', 'v9')}\n L_NT12:")
    if GUN == 0: gu_loads('L_GUB', bGU); down_touch(TD)
    a(f"s_waitcnt lgkmcnt(8)\n {s1(FS[2], FK[2])}\n {s2(FS[2], FK[2])}")
    a(kread(FK[1], seq[4]))
    for r in range(16): a(f"v_cndmask_b32 v{FS[1]+r}, v{FS[0]+r}, v{FS[1]+r}, s[{MS+2*r}:{MS+1+2*r}]")
    def tile_body(s, p, extra, mid=None):
        for gq in range(4):
            for r in range(4*gq, 4*gq + 4):
                a(f"v_exp_f32{'_e64' if OPT.get('e64') else ''} v{s+r}, v{s+r}")
                if mid and r == 4*gq + 1 and gq < len(mid) and mid[gq]: a(mid[gq])
            if gq < len(extra) and extra[gq]: a(extra[gq])
            if gq > 0:
                for k in (2*gq - 2, 2*gq - 1): a(f"v_cvt_pk_bf16_f32 v{p+k}, v{s+2*k}, v{s+2*k+1}")
        for k in (6, 7): a(f"v_cvt_pk_bf16_f32 v{p+k}, v{s+2*k}, v{s+2*k+1}")
    tile_body(FS[1], FP[0], [f"s_waitcnt lgkmcnt(2)\n {s1(FS[0], FK[0])}", s2(FS[0], FK[0]), kread(FK[2], seq[5]) + "\n" + vread(vbuf(6), 6), None])
    for k in range(8): a(f"v_and_b32 v{216+k}, v{MK+k}, v{FP[0]+k}")
    for k in range(8): a(f"v_xor_b32 v{FP[0]+k}, v{216+k}, v{FP[0]+k}")
    a(pvm(FV0, 216, True)); wo_slot(2); a(pvm(FV0+4, 220))
    def repack(vm):
        if OPT.get("nogu") or OPT.get("norp"): return
        a(f"""s_cmp_ge_u32 {sROLE}, 32
        s_cbranch_scc1 L_NORP
        s_cmp_lg_u32 {sHI}, {OPT.get("guh", 1)}
        s_cbranch_scc1 L_NORP
        s_mul_i32 s3, {sROLE}, {8*20480}
        s_mul_i32 s4, {sCS}, 1280
        s_add_u32 s3, s3, s4
        s_lshr_b32 s4, {sLO}, 1
        s_mul_i32 s4, s4, 10240
        s_add_u32 s3, s3, s4
        s_and_b32 s4, {sLO}, 1
        s_mul_i32 s4, s4, 640
        s_add_u32 s3, s3, s4
        s_add_u32 s3, s3, {RP_OFF}
        v_lshrrev_b32 v8, 3, v1
        v_mul_u32_u24 v8, {20480 - 128}, v8
        v_lshl_add_u32 v8, v1, 4, v8
        v_and_b32 v4, 7, v1
        v_lshrrev_b32 v5, 3, v1
        v_lshl_add_u32 v4, v4, 3, v5
        v_lshlrev_b32 v4, 2, v4
        s_waitcnt vmcnt({vm}) lgkmcnt(0)""")
        for r in range(20):
            a(f"ds_bpermute_b32 v{RPD+r}, v4, v{RPD+r}")
        a("s_waitcnt lgkmcnt(0)")
        for i in range(5): a(f"buffer_store_dwordx4 {q4(RPD+4*i)}, v8, {WSR}, s3 offen offset:{128*i} sc1")
        a("L_NORP:")

    prevP, prevT = FP[0], 8
    for n in range(2, 9):
        t = seq[n]; p = FP[(n - 1) % 2]
        ex = [None]*4
        ex[0] = f"s_waitcnt lgkmcnt(0)\n {pvm(vbuf(prevT), prevP)}"
        ex[1] = pvm(vbuf(prevT) + 4, prevP + 4)
        if n + 2 <= 8:
            nb = (n + 2) % 3
            ex[2] = s1(FS[nb], FK[nb])
            ex[3] = s2(FS[nb], FK[nb])
        post = []
        if n + 4 <= 8: post.append(kread(FK[(n + 4) % 3], seq[n + 4]))
        if t - 2 >= 1: post.append(vread(vbuf(t - 2), t - 2))
        if OPT.get("bmid"):
            mid = [None, None, None, None]
            if n + 4 <= 8: mid[1] = post[0]
            if t - 2 >= 1: mid[3] = post[-1]
            tile_body(FS[n % 3], p, ex, mid)
        else:
            tile_body(FS[n % 3], p, ex)
            for x in post: a(x)
        wo_slot(n + 1)
        if n == GUN: gu_loads('L_GUB', bGU); down_touch(TD)
        if n == OPT.get("rpn", 10): repack(0)
        prevP, prevT = p, t
    a(f"s_waitcnt lgkmcnt(0)\n {pvm(vbuf(prevT), prevP)}\n {pvm(vbuf(prevT)+4, prevP+4)}")
    a(f"""v_max3_f32 v4, abs(v{O}), abs(v{O+1}), abs(v{O+2})
    v_max3_f32 v5, abs(v{O+3}), abs(v{O+4}), abs(v{O+5})
    v_max3_f32 v4, abs(v{O+6}), abs(v{O+7}), v4
    v_max3_f32 v5, abs(v{O+8}), abs(v{O+9}), v5
    v_max3_f32 v4, abs(v{O+10}), abs(v{O+11}), v4
    v_max_f32 v4, v4, v5
    v_cmp_nlt_f32 vcc, {f2u(2.0**-60):#x}, v{O+12}
    s_mov_b64 s[4:5], vcc
    v_cmp_ngt_f32 vcc, {f2u(2.0**60):#x}, v{O+12}
    s_or_b64 s[4:5], s[4:5], vcc
    v_cmp_ngt_f32 vcc, {f2u(2.0**120):#x}, v4
    s_or_b64 vcc, s[4:5], vcc""")
    if OPT.get("forcefb"): a("s_branch L_FALLBACK")
    a(f"""s_cbranch_vccnz L_FALLBACK
    L_BDONE:
    v_rcp_f32 v4, v{O+12}""")
    for r in range(0, 12, 2): a(f"v_pk_mul_f32 {q2(O+r)}, {q2(O+r)}, v[4:5] op_sel_hi:[1,0]")
    for k in range(6): a(f"v_cvt_pk_bf16_f32 v{24+k}, v{O+2*k}, v{O+2*k+1}")
    a(f"""buffer_store_dwordx4 v[24:27], v{vO0}, {WSR}, 0 offen sc1
    s_mov_b32 exec_hi, 0
    buffer_store_dwordx2 v[28:29], v{vO1}, {WSR}, 0 offen sc1
    {MALL}""")
    if OPT.get("bpr", 0): a("s_setprio 0")
    a.stamp(8)
    if OPT.get("rpn", 10) == 9: repack(2)
    a.stamp(2, 4)

    if ENDW:
        a(f"s_lshr_b32 s4, {sW}, 1\n {M40}")
        for pr in range(2):
            a(f"s_cmp_lg_u32 s4, {pr}\n s_cbranch_scc1 L_EW{pr}")
            for p in inb[pr::2]: dma_wo(p)
            a(f"L_EW{pr}:")
        a(MALL)
    XU, WU = 176, 196
    OF, CAC, CWF = 32, 72, 92
    NB = 4
    HP = 216
    OUTP = 228
    KSH = OPT.get('ksh', 7)
    OFL = ['', 'nt', 'sc1', 'sc0'][OPT.get('ofl', 0)]
    a(f"""v_mov_b32 v19, v{bF2A}
    v_and_b32 v2, 15, v0
    v_lshrrev_b32 v3, 4, v1
    s_lshl_b32 s3, {sRB2}, 6
    s_lshl_b32 s4, {sLO}, 4
    s_add_u32 s3, s3, s4
    v_add_u32 v20, s3, v2             ; row
    v_mul_u32_u24 v4, 1280, v20
    v_mul_u32_u24 v17, 40, v3
    s_mul_i32 s3, {sCS}, 160
    v_add3_u32 v16, v17, v4, s3""")
    rho(a, 21, 5)
    a(f"""v_mul_u32_u24 v4, 160, v21
    v_and_b32 v5, 3, v1
    v_lshlrev_b32 v21, 5, v21
    v_lshl_add_u32 v21, v5, 3, v21
    v_mul_u32_u24 v5, 40, v5
    s_mul_i32 s3, {sHI}, 51200
    v_add3_u32 v18, v4, v5, s3
    s_lshl_b32 s3, {sRB2}, 1
    s_lshr_b32 s4, {sLO}, 1
    s_add_u32 s3, s3, s4
    s_mul_i32 s3, s3, 40960
    s_add_u32 s3, s3, {O_OFF}
    s_lshl_b32 s4, {sHI}, 14
    s_add_u32 s29, s3, s4
    s_lshl_b32 s4, {sHI}, 12
    s_add_u32 s33, s3, s4
    s_add_u32 s33, s33, 32768
    s_and_b32 s4, {sLO}, 1
    s_lshl_b32 s4, s4, 4
    v_add_u32 v4, s4, v2
    v_lshlrev_b32 v5, 9, v3
    v_lshl_add_u32 v15, v4, 4, v5
    v_lshl_add_u32 v14, v4, 3, v5
    s_lshl_b32 s30, {sROLE}, 3
    s_add_u32 s30, s30, {sCS}
    s_lshl_b32 s32, {sW}, 10
    s_mul_i32 s3, {sLO}, 5120
    s_add_u32 s34, s3, {RED}
    v_lshl_add_u32 v13, v1, 4, s34
    s_lshl_b32 s3, {sRB2}, 13
    s_lshl_b32 s4, {sLO}, 8
    s_add_u32 s3, s3, s4
    s_add_u32 s37, s3, {PART_OFF}
    v_lshlrev_b32 v10, 4, v2""")
    ROT = OPT.get("crot", 1)
    for ks in range(8):
        a(f"""s_add_u32 s3, {sCS}, {ks}
        s_and_b32 s3, s3, 7""" if ROT else f"s_mov_b32 s3, {ks}")
        a(f"""s_lshl_b32 s4, s3, 11
        s_add_u32 s{40+ks}, s29, s4
        s_mul_i32 s4, s3, 5120
        v_add_u32 v{246+ks}, s4, v18""")
    a(f"s_waitcnt vmcnt({min(63, 2 + 4*len(inb)) if ENDW else 2})")
    LATE = OPT.get("rpn", 10) == 10
    if LATE: assert OPT.get("guh", 1) == 1
    for i in range(4 if LATE else 0, 20): a(f"v_mov_b32 v{CAC+i}, 0")
    a(f"s_cmp_lg_u32 {sHI}, {FH}\n s_cbranch_scc1 L_CB")
    for i in range(10):
        a(f"""v_lshlrev_b32 v{CAC+2*i}, 16, v{XR+i}
        v_and_b32 v{CAC+2*i+1}, 0xffff0000, v{XR+i}
        v_lshlrev_b32 v{WU+2*i}, 16, v{WR+i}
        v_and_b32 v{WU+2*i+1}, 0xffff0000, v{WR+i}""")
    B2 = OPT.get("b2", 1) and ENDW
    if B2: a(f"s_waitcnt vmcnt({4*len(inb)})\n s_branch L_CB2")
    a(f"""L_CB:
    s_waitcnt vmcnt(0)
    L_CB2:
    v_mov_b32 v4, s101
    v_mov_b32 v5, 1""")
    a.stamp(3, 4)
    a(f"""s_barrier
    s_cmp_lg_u32 {sW}, 7
    s_cbranch_scc1 L_NOF2
    s_mov_b64 exec, 1
    buffer_store_dword v5, v4, {WSR}, 0 offen offset:32 sc1
    {MALL}
    L_NOF2:""")
    if LATEW:
        a(f"s_lshr_b32 s4, {sW}, 1\n {M40}")
        nper = len(inb) // 4 if len(inb) >= 4 else 1
        for pr in range(4):
            mine = inb[pr::4]
            if not mine: continue
            a(f"s_cmp_lg_u32 s4, {pr}\n s_cbranch_scc1 L_LW{pr}")
            for p in mine: dma_wo(p)
            a(f"L_LW{pr}:")
        a(MALL)
    a("v_mov_b32 v22, v19")
    if LATE:
        repack(63)
        a(f"s_cmp_eq_u32 {sHI}, {FH}\n s_cbranch_scc1 L_NZ")
        for i in range(4): a(f"v_mov_b32 v{CAC+i}, 0")
        if B2: a("s_branch L_NZ2")
        a("L_NZ:")
        if B2: a("s_waitcnt vmcnt(0)\n L_NZ2:\n s_barrier")
    WD1 = OPT.get("wd1", 3)
    def wd_lds(j): return [GW, GW + 8192, 153600][j] if j < WD1 else WOL + 8192*j
    def wd_dma(js, L, both=False):
        a(f"""s_sub_u32 s3, s30, 256
        s_lshl_b32 s3, s3, 5
        v_lshrrev_b32 v5, 1, v1""")
        kappa(a, 6, 5, 4)
        a(f"""v_mul_u32_u24 v6, 1280, v6
        v_and_b32 v4, 1, v1
        v_lshl_add_u32 v6, v4, 4, v6
        v_add_u32 v6, s3, v6
        s_mul_i32 s4, {sW}, {32*1280}""")
        srd(a, 12, P_D, 2211840)
        for j in js:
            a(f"""s_add_u32 m0, s32, {wd_lds(j)}
            s_add_u32 s3, s4, {8*32*1280*j}
            buffer_load_dwordx4 v6, s[12:15], s3 offen lds""")
            if both:
                d = 4 if FH == 0 else -4
                a(f"""s_add_u32 m0, s32, {wd_lds(j) + 1024*d}
                s_add_u32 s3, s4, {8*32*1280*j + 32*1280*d}
                buffer_load_dwordx4 v6, s[12:15], s3 offen lds""")
    a(f"s_cmp_lt_u32 {sROLE}, 32\n s_cbranch_scc1 L_NWD1")
    wd_dma(range(WD1), "1")
    a("L_NWD1:")
    def c_rd(ks):
        b = ks % NB
        ad, off = (246 + ks, 0) if ks < 8 else (18, ks * 5120)
        return [f"ds_read_b64_tr_b16 {q2(CWF+20*b+4*t+2*h)}, v{ad} offset:{off + h*1280 + 8*t}" for t in range(5) for h in range(2)]
    a.stamp(9); a.stamp(4, 4)
    PRE = OPT.get("cpre", 2)
    def o_load(ks):
        if ks < 8: return f"buffer_load_dwordx4 {q4(OF+4*ks)}, v15, {WSR}, s{40+ks} offen sc1"
        return "\n".join(f"buffer_load_dwordx2 {q2(OF+4*ks+2*hh)}, v14, {WSR}, s33 offen offset:{(ks-8)*2048 + hh*256} sc1" for hh in range(2))
    def rp_dma(L, cond):
        a(f"""s_cmp_ge_u32 {sROLE}, 32
        s_cbranch_scc1 {L}
        s_cmp_eq_u32 s56, 0
        s_cbranch_{cond} {L}
        s_mul_i32 s3, s30, 20480
        s_mul_i32 s4, {sLO}, 5120
        s_add_u32 s3, s3, s4
        s_add_u32 s3, s3, {RP_OFF}
        s_add_u32 m0, s4, {GW}
        v_lshlrev_b32 v7, 4, v1""")
        for j in range(4): a(f"buffer_load_dwordx4 v7, {WSR}, s3 offen offset:{1024*j} sc1 lds")
        a(f"""s_add_u32 m0, s4, {GW + 4096}
        s_add_u32 s3, s3, 4096
        buffer_load_dwordx4 v7, {WSR}, s3 offen sc1 lds
        {L}:""")
    RPE = OPT.get("rpe", 0)
    if not LATEW:
        for ks in range(NB):
            for r in c_rd(ks): a(r)
    if OPT.get("cprio", 0): a(f"s_cmp_eq_u32 {sHI}, {FH}\n s_cbranch_scc1 L_NPR\n s_setprio 2\n L_NPR:")
    if RPE: a(f"s_cmp_eq_u32 {sHI}, {FH}\n s_mov_b32 s3, 0xff\n s_cselect_b32 exec_lo, 0xffff, s3\n s_mov_b32 exec_hi, 0")
    else: a("s_mov_b64 exec, 0xff")
    if OPT.get("fsl2", 0): a(f"s_sleep {OPT['fsl2']}")
    spin_head(a, "L_F2POLL")
    a(f"""buffer_load_dword v4, v22, {WSR}, 0 offen sc1
    s_waitcnt vmcnt(0)
    v_cmp_ne_u32 s[56:57], 1, v4
    s_and_b64 vcc, s[56:57], 0xff""")
    DYN = OPT.get("dyn", 0)
    if DYN:
        a(f"""s_cbranch_vccz L_F2POLL_OK
        s_bcnt1_i32_b32 s4, vcc_lo
        s_cmp_le_u32 s4, {OPT.get("dynm", 5)}
        s_cbranch_scc1 L_DYN""")
    spin_tail(a, "L_F2POLL", OPT.get("psl2", 4))
    a(MALL)
    a.stamp(8, 4)
    if not RPE: a("s_mov_b32 s56, 1")
    for ks in range(10): a(o_load(ks))
    if LATEW:
        a("s_barrier")
        for ks in range(NB):
            for r in c_rd(ks): a(r)
    for ks in range(10):
        lg = 0 if ks in (0, 9) else 10
        if LATEW and ks == 0: lg = 15
        a(f"s_waitcnt vmcnt({11-ks if ks < 8 else 2*(9-ks)}) lgkmcnt({lg})")
        if ks == 9 and RPE == 2:
            a(f"s_cmp_lg_u32 {sHI}, {FH}\n s_cbranch_scc1 L_RP0")
            rp_dma("L_RP0", "scc0")
        R = c_rd(ks - 1 + NB) if (ks >= 1 and ks - 1 + NB < 10) else []
        for t in range(5):
            for x in R[2*t:2*t+2]: a(x)
            a(mm16(CAC+4*t, CWF+20*(ks % NB)+4*t, OF+4*ks, False))
    a("L_CDONE2:")
    def emit_dyn():
        def wrd(ks, b):
            ad, off = (246 + ks, 0) if ks < 8 else (18, ks * 5120)
            for t in range(5):
                for h in range(2): a(f"ds_read_b64_tr_b16 {q2(CWF+20*b+4*t+2*h)}, v{ad} offset:{off + h*1280 + 8*t}")
        a(f"""L_DYN:
        {MALL}
        s_mov_b32 s50, 0
        s_mov_b32 s51, 0
        s_waitcnt lgkmcnt(0)""")
        wrd(8, 2); wrd(9, 3)
        a(f"""L_DYNL:
        s_not_b32 s4, s56
        s_and_b32 s4, s4, 0xff
        s_lshl_b32 s5, s4, 8
        s_or_b32 s4, s4, s5
        s_lshr_b32 s4, s4, {sCS if ROT else 0}
        s_and_b32 s52, s4, 0xff
        s_andn2_b32 s53, s52, s50         ; new
        s_andn2_b32 s54, s50, s51         ; todo""")
        for ks in range(8):
            a(f"s_bitcmp1_b32 s53, {ks}\n s_cbranch_scc0 L_DN{ks}\n {o_load(ks)}\n L_DN{ks}:")
        a(f"s_cmp_lg_u32 s52, 0xff\n s_cbranch_scc1 L_DYNC\n {o_load(8)}\n {o_load(9)}\n L_DYNC:")
        for ks in range(8):
            a(f"s_bitcmp1_b32 s54, {ks}\n s_cbranch_scc0 L_DC{ks}")
            wrd(ks, ks & 1)
            a("s_cmp_eq_u32 s50, 0xff\n s_cbranch_scc0 L_DW" + str(ks) + "\n s_waitcnt vmcnt(4)\n L_DW" + str(ks) + ":")
            for t in range(5):
                a(f"s_waitcnt lgkmcnt({8 - 2*t})")
                a(mm16(CAC+4*t, CWF+20*(ks & 1)+4*t, OF+4*ks, False))
            a(f"L_DC{ks}:")
        a(f"""s_mov_b32 s51, s50
        s_cmp_eq_u32 s50, 0xff
        s_cbranch_scc1 L_DYNQ
        s_mov_b32 s50, s52
        s_mov_b32 s54, s53
        s_cmp_eq_u32 s52, 0xff
        s_cbranch_scc1 L_DYNC
        s_add_u32 s3, s3, 1
        s_cmp_gt_u32 s3, {SPIN_MAX}
        s_cbranch_scc1 L_END
        s_sleep {OPT.get("psl4", 1)}
        s_mov_b64 exec, 0xff
        buffer_load_dword v4, v22, {WSR}, 0 offen sc1
        s_waitcnt vmcnt(0)
        v_cmp_ne_u32 s[56:57], 1, v4
        {MALL}
        s_branch L_DYNL
        L_DYNQ:
        s_waitcnt vmcnt(0) lgkmcnt(0)""")
        for ks in (8, 9):
            for t in range(5): a(mm16(CAC+4*t, CWF+20*(ks - 6)+4*t, OF+4*ks, False))
        a("s_mov_b32 s56, 1\n s_branch L_CDONE2")
    a.stamp(5, 4)
    if PROF and OPT.get("pg") == 4: a("s_mov_b32 s99, s3")
    a(f"s_cmp_lg_u32 {sHI}, {FH}\n s_cbranch_scc0 L_CLO")
    XD = 77824
    def sel_setup():
        a(f"""v_and_b32 v150, 7, v1
        v_lshlrev_b32 v150, 2, v150
        v_add_u32 v150, {SB+SELL}, v150       ; sel[j&7]
        v_lshrrev_b32 v4, 3, v1
        v_lshlrev_b32 v153, 8, v4
        v_lshlrev_b32 v4, 2, v4
        v_add_u32 v151, {SB+SELL}, v4         ; sel[l>>3]
        v_bfe_u32 v4, v1, 1, 3
        v_lshlrev_b32 v154, 8, v4
        v_lshlrev_b32 v4, 2, v4
        v_add_u32 v152, {SB+SELL}, v4         ; sel[(l>>1)&7]
        v_bfe_u32 v4, v1, 4, 1
        v_mul_u32_u24 v6, 2560, v4
        v_lshlrev_b32 v7, 4, v2
        v_sub_u32 v160, {RED + 2560}, v6
        v_add_u32 v160, v160, v7
        s_lshl_b32 s3, {sCS}, 11
        s_lshl_b32 s4, {sW}, 8
        s_add_u32 s3, s3, s4
        s_add_u32 s3, s3, {XS_OFF}
        v_lshl_add_u32 v161, v4, 14, v7
        v_add_u32 v161, s3, v161
        s_lshl_b32 s3, {sW}, 11
        s_sub_u32 s3, s3, s4
        s_add_u32 s3, s3, {XS_OFF - EP_OFF}
        v_add_u32 v153, s3, v153
        v_add_u32 v154, s3, v154
        s_add_u32 s58, s4, {EP_OFF}
        v_and_b32 v4, 7, v1
        v_lshlrev_b32 v155, 4, v4
        v_and_b32 v4, 1, v1
        v_lshlrev_b32 v156, 4, v4
        v_add_u32 v156, 128, v156
        v_mov_b32 v157, {SB+SELL}
        s_mul_i32 s59, {sW}, 1280
        s_add_u32 s5, s59, {GW}
        s_add_u32 s59, s59, {XD}
        v_and_b32 v4, 7, v2
        v_lshlrev_b32 v6, 4, v3
        v_lshl_add_u32 v158, v4, 7, v6
        v_add_u32 v158, s59, v158
        v_and_b32 v6, 16, v6
        v_lshl_add_u32 v159, v4, 5, v6
        v_add_u32 v159, s59, v159
        v_bfe_u32 v4, v1, 2, 2
        v_lshl_add_u32 v4, v3, 3, v4
        v_lshlrev_b32 v4, 4, v4
        v_and_b32 v6, 1, v1
        v_lshl_add_u32 v4, v6, 3, v4
        v_bfe_u32 v6, v1, 1, 1
        v_mul_u32_u24 v6, 10240, v6
        v_add3_u32 v162, v4, v6, s5
        s_add_u32 s3, s32, {DRED}
        v_lshl_add_u32 v163, v1, 4, s3""")
        srd(a, 8, P_OUT, 2621440)
    for t in range(5): a(f"ds_write_b128 v13, {q4(CAC+4*t)} offset:{1024*t}")
    a(f"""v_mov_b32 v24, 0
    v_mov_b32 v25, 0
    v_mov_b32 v26, 0
    v_mov_b32 v27, 0
    s_waitcnt lgkmcnt(0)
    s_barrier
    s_setprio 0
    v_and_b32 v12, 255, v0
    v_lshlrev_b32 v12, 4, v12
    v_add_u32 v14, {SB}, v12
    ds_write_b128 v14, v[24:27] offset:{SURV}
    ds_write_b128 v14, v[24:27] offset:{SURV+4096}
    v_lshl_add_u32 v11, v3, 10, v10
    s_add_u32 s38, s37, 4096
    s_add_u32 s39, s37, {PARTB}
    s_add_u32 s35, s37, {PARTB + 4096}
    v_mov_b32 v8, 0""")
    for i in range(5):
        a(f"""v_lshlrev_b32 v5, 16, v{WRS+i}
        v_and_b32 v6, 0xffff0000, v{WRS+i}
        v_add_f32 v8, v8, v5
        v_add_f32 v8, v8, v6""")
    dpp_reduce(a, "v_add_f32", [8])
    a(f"""v_readlane_b32 s36, v8, 63
    v_sub_u32 v23, 2047, v20
    v_lshlrev_b32 v23, 2, v23
    s_lshl_b32 s3, {sRB2}, 2
    s_add_u32 s3, s3, {sLO}
    s_lshl_b32 s3, s3, {KSH}
    s_add_u32 s4, s3, {KEY_OFF}
    s_lshl_b32 s3, {sLO}, 8
    s_add_u32 s3, s3, {SB+LMR}
    v_lshl_add_u32 v9, v2, 4, s3
    s_mov_b32 s6, 0xffffe000
    v_lshlrev_b32 v12, {KSH}, v1
    s_barrier""")
    a.stamp(1, 3)
    spin_head(a, "L_PPOLL")
    a(f"""buffer_load_dwordx4 v[64:67], v11, {WSR}, s37 offen sc1
    buffer_load_dwordx4 v[68:71], v11, {WSR}, s38 offen sc1
    s_waitcnt vmcnt(0)
    v_max3_u32 v5, v64, v65, v66
    v_max3_u32 v6, v68, v69, v70
    v_max_u32 v5, v5, v6
    v_cmp_eq_u32 vcc, -1, v5
    s_cbranch_vccz L_PPOLL_OK
    s_and_b32 s28, s3, {OPT.get('pbm', 15)}
    s_cmp_lg_u32 s28, 0
    s_cbranch_scc1 L_PPOLL
    buffer_load_dwordx4 v[64:67], v11, {WSR}, s39 offen sc1
    buffer_load_dwordx4 v[68:71], v11, {WSR}, s35 offen sc1
    s_waitcnt vmcnt(0)
    v_max3_u32 v5, v64, v65, v66
    v_max3_u32 v6, v68, v69, v70
    v_max_u32 v5, v5, v6
    v_cmp_eq_u32 vcc, -1, v5
    s_cbranch_vccnz L_PPOLL
    L_PPOLL_OK:""")
    a.stamp(2, 3)
    a("v_add_f32 v40, v64, v68\n v_add_f32 v41, v65, v69\n v_add_f32 v42, v66, v70")
    xg_sum(a, [40, 41, 42], [44, 45, 46])
    ln_scalars(a, 40, 41)
    a(f"""v_fma_f32 v42, -v40, s36, v42
    v_mul_f32 v42, v42, v41
    v_ashrrev_i32 v4, 31, v42
    v_or_b32 v4, 0x80000000, v4
    v_xor_b32 v4, v4, v42
    v_and_or_b32 v4, v4, s6, v23
    v_min_u32 v42, -2, v42
    v_mov_b32 v5, v4
    v_mov_b32 v7, 0
    v_mov_b32_dpp v5, v4 row_ror:4 row_mask:0x2 bank_mask:0xf
    v_mov_b32_dpp v5, v4 row_ror:8 row_mask:0x4 bank_mask:0xf
    v_mov_b32_dpp v5, v4 row_ror:12 row_mask:0x8 bank_mask:0xf
    v_mov_b32_dpp v44, v5 row_ror:1 row_mask:0xf bank_mask:0xf
    v_mov_b32_dpp v45, v5 row_ror:2 row_mask:0xf bank_mask:0xf
    v_mov_b32_dpp v46, v5 row_ror:3 row_mask:0xf bank_mask:0xf
    v_cmp_gt_u32 s[40:41], v5, v4
    v_cmp_gt_u32 s[42:43], v44, v4
    v_cmp_gt_u32 s[44:45], v45, v4
    v_cmp_gt_u32 s[46:47], v46, v4
    v_addc_co_u32 v7, vcc, 0, v7, s[40:41]
    v_addc_co_u32 v7, vcc, 0, v7, s[42:43]
    v_addc_co_u32 v7, vcc, 0, v7, s[44:45]
    v_addc_co_u32 v7, vcc, 0, v7, s[46:47]
    v_mov_b32 v6, v7
    v_permlane16_swap_b32 v7, v6
    v_add_u32 v7, v7, v6
    v_mov_b32 v6, v7
    v_permlane32_swap_b32 v7, v6
    v_add_u32 v7, v7, v6
    v_min_u32 v6, 2, v7
    v_or_b32 v43, v4, v6
    v_lshlrev_b32 v7, 2, v7
    s_mov_b64 exec, 0xffff
    s_cmp_lg_u32 {sCS}, 0
    s_cbranch_scc1 L_NOKEY
    buffer_store_dword v43, v7, {WSR}, s4 offen sc1
    L_NOKEY:
    ds_write_b128 v9, v[40:43]
    {MALL}
    s_waitcnt lgkmcnt(0)
    s_barrier
    s_cmp_lg_u32 {sW}, {LW}
    s_cbranch_scc1 L_SELW""")
    sel_setup()
    a(f"""s_mov_b32 s4, {KEY_OFF}
    s_mov_b32 s5, {KEY_OFF + (64 << KSH)}
    s_mov_b32 s28, {SB+SURV}
    s_mov_b32 s29, 0
    v_and_b32 v13, 31, v1
    v_lshlrev_b32 v13, 2, v13
    v_add_u32 v13, {SB+SURV}, v13
    v_lshrrev_b32 v8, 5, v1
    v_lshlrev_b32 v8, 6, v8
    v_add_u32 v11, {SB+SURV}, v8""")
    if OPT.get("ksleep", 0): a(f"s_sleep {OPT.get('ksleep', 0)}")
    a.stamp(3, 3)
    a("L_KQ:")
    spin_head(a, "L_KPOLL")
    a(f"""buffer_load_dwordx4 v[40:43], v12, {WSR}, s4 offen sc1
    buffer_load_dwordx4 v[44:47], v12, {WSR}, s5 offen sc1
    s_waitcnt vmcnt(0)
    v_max3_u32 v4, v41, v42, v43
    v_max3_u32 v5, v45, v46, v47
    v_max_u32 v6, v40, v44
    v_max3_u32 v4, v4, v5, v6
    v_cmp_eq_u32 vcc, -1, v4""")
    spin_tail(a, "L_KPOLL", OPT.get("psl3", 1))
    a.stamp(4, 3)
    a(f"""s_cmp_lg_u32 s29, 0
    s_cbranch_scc1 L_HAVET
    v_mov_b32 v7, v6
    v_max_u32_dpp v6, v6, v6 quad_perm:[1,0,3,2] row_mask:0xf bank_mask:0xf
    v_max_u32_dpp v7, v7, v7 row_ror:8 row_mask:0xf bank_mask:0xf
    v_max_u32_dpp v6, v6, v6 quad_perm:[2,3,0,1] row_mask:0xf bank_mask:0xf
    v_mov_b32 v8, v7
    v_max_u32_dpp v6, v6, v6 row_half_mirror row_mask:0xf bank_mask:0xf
    v_permlane16_swap_b32 v7, v8
    v_min_u32_dpp v6, v6, v6 row_ror:8 row_mask:0xf bank_mask:0xf
    v_max_u32 v7, v7, v8
    v_mov_b32 v5, v6
    v_mov_b32 v8, v7
    v_permlane16_swap_b32 v6, v5
    v_permlane32_swap_b32 v7, v8
    v_min_u32 v6, v6, v5
    v_max_u32 v7, v7, v8
    v_mov_b32 v5, v6
    v_min_u32_dpp v7, v7, v7 quad_perm:[1,0,3,2] row_mask:0xf bank_mask:0xf
    v_permlane32_swap_b32 v6, v5
    v_min_u32_dpp v7, v7, v7 quad_perm:[2,3,0,1] row_mask:0xf bank_mask:0xf
    v_min_u32 v6, v6, v5
    v_min_u32_dpp v7, v7, v7 row_half_mirror row_mask:0xf bank_mask:0xf
    v_max_u32 v48, v6, v7
    L_HAVET:""")
    a.stamp(5, 3)
    ordr = [0, 4, 1, 5, 2, 6, 3, 7]
    for i in ordr: a(f"v_cmp_ge_u32 s[{40+2*i}:{41+2*i}], v{40+i}, v48")
    for i in ordr: a(f"v_mbcnt_lo_u32_b32 v{50+i}, s{40+2*i}, 0")
    for i in ordr: a(f"v_mbcnt_hi_u32_b32 v{50+i}, s{41+2*i}, v{50+i}")
    for n, i in enumerate(ordr):
        if n in (2, 4):
            a(f"s_or_b64 s[6:7], s[{40+2*i}:{41+2*i}], s[{48+2*i}:{49+2*i}]\n s_cbranch_scc0 L_CDONE")
        a(f"""v_lshl_add_u32 v{50+i}, v{50+i}, 2, s28
        s_bcnt1_i32_b64 s3, s[{40+2*i}:{41+2*i}]
        s_mov_b64 exec, s[{40+2*i}:{41+2*i}]
        ds_write_b32 v{50+i}, v{40+i}
        {MALL}
        s_lshl_b32 s3, s3, 2
        s_add_u32 s28, s28, s3""")
    a(f"""s_or_b64 s[6:7], s[46:47], s[54:55]
    s_cbranch_scc0 L_CDONE
    s_add_u32 s29, s29, 1
    s_add_u32 s4, s4, 16
    s_add_u32 s5, s5, 16
    s_cmp_lt_u32 s29, 4
    s_cbranch_scc1 L_KQ
    L_CDONE:
    s_sub_u32 s4, s28, {SB+SURV}
    s_mov_b32 s5, 0
    s_mov_b32 s28, {SB+SELL}""")
    a.stamp(6, 3)
    a(f"""L_OUTER:
    ds_read_b32 v6, v13
    v_mov_b32 v7, 0
    v_mov_b32 v8, v11
    s_mov_b32 s6, 0
    L_INNER:""")
    for k in range(4): a(f"ds_read_b128 {q4(44+4*k)}, v8 offset:{16*k}")
    a("""v_add_u32 v8, 128, v8
    s_add_u32 s6, s6, 128
    v_mov_b32 v9, 0
    s_waitcnt lgkmcnt(2)""")
    for h in range(2):
        if h: a("s_waitcnt lgkmcnt(0)")
        for i in range(8): a(f"v_cmp_gt_u32 s[{40+2*i}:{41+2*i}], v{44+8*h+i}, v6")
        for i in range(8): a(f"v_addc_co_u32 v{7+2*(i&1)}, vcc, 0, v{7+2*(i&1)}, s[{40+2*i}:{41+2*i}]")
    a(f"""v_add_u32 v7, v7, v9
    s_cmp_lt_u32 s6, s4
    s_cbranch_scc1 L_INNER
    v_mov_b32 v8, v7
    v_not_b32 v6, v6
    v_and_b32 v6, 0x1fff, v6
    v_permlane32_swap_b32 v7, v8
    v_add_u32 v7, v7, v8
    v_cmp_gt_u32 vcc, 8, v7
    v_lshl_add_u32 v7, v7, 2, s28
    s_and_saveexec_b64 s[6:7], vcc
    ds_write_b32 v7, v6
    {MALL}
    v_add_u32 v13, 128, v13
    s_add_u32 s5, s5, 128
    s_cmp_lt_u32 s5, s4
    s_cbranch_scc1 L_OUTER
    s_branch L_SELB""")
    a("L_CLO:")
    if RPE == 1: rp_dma("L_RP1", "scc0")
    a(f"""s_lshl_b32 s4, {sCS}, 10
    s_add_u32 s35, s4, s37
    s_add_u32 s38, s35, {PARTB}
    v_mul_u32_u24 v5, 160, v2
    v_add3_u32 v12, v5, v17, s34
    v_lshlrev_b32 v7, 4, v1
    v_mov_b32 v47, 0
    s_barrier""")
    a.stamp(6, 4)
    for t in range(5): a(f"ds_read_b128 {q4(CWF+4*t)}, v13 offset:{1024*t}")
    E = range(0, 20, 2)
    for e in E:
        if e % 4 == 0: a(f"s_waitcnt lgkmcnt({4 - e//4})")
        a(f"v_pk_add_f32 {q2(CAC+e)}, {q2(CAC+e)}, {q2(CWF+e)}")
    for e in E:
        c = 6 * ((e >> 1) & 1)
        if e < 4:
            a(f"v_pk_add_f32 {q2(50+c)}, {q2(CAC+e)}, {q2(CAC+e+4)}\n v_pk_mul_f32 {q2(52+c)}, {q2(CAC+e)}, {q2(CAC+e)}\n v_pk_mul_f32 {q2(54+c)}, {q2(CAC+e)}, {q2(WU+e)}")
        else:
            if e >= 8: a(f"v_pk_add_f32 {q2(50+c)}, {q2(50+c)}, {q2(CAC+e)}")
            a(f"v_pk_fma_f32 {q2(52+c)}, {q2(CAC+e)}, {q2(CAC+e)}, {q2(52+c)}\n v_pk_fma_f32 {q2(54+c)}, {q2(CAC+e)}, {q2(WU+e)}, {q2(54+c)}")
    for k in range(3): a(f"v_pk_add_f32 {q2(50+2*k)}, {q2(50+2*k)}, {q2(56+2*k)}")
    for k in range(3): a(f"v_add_f32 v{44+k}, v{50+2*k}, v{51+2*k}")
    xg_sum(a, [44, 45, 46], [40, 41, 42])
    a(f"""v_min_u32 v44, -2, v44
    v_min_u32 v45, -2, v45
    v_min_u32 v46, -2, v46
    s_mov_b64 exec, 0xffff
    buffer_store_dwordx4 v[44:47], v10, {WSR}, s35 offen
    buffer_store_dwordx4 v[44:47], v10, {WSR}, s38 offen sc1
    {MALL}
    s_barrier""")
    a.stamp(10); a.stamp(7, 4)
    if RPE == 3: rp_dma("L_RP1", "scc0")
    for e in E: a(f"v_cvt_pk_bf16_f32 v{HP+e//2}, v{CAC+e}, v{CAC+e+1}")
    for e in E: a(f"v_min_u32 v{HP+e//2}, -2, v{HP+e//2}")
    for e in E: a(f"v_lshlrev_b32 v{CAC+e}, 16, v{HP+e//2}\n v_and_b32 v{CAC+e+1}, 0xffff0000, v{HP+e//2}")
    for k in range(5): a(f"ds_write_b64 v12, {q2(HP+2*k)} offset:{8*k}")
    a(f"""s_lshl_b32 s3, {sLO}, 8
    s_add_u32 s3, s3, {SB+LMR}
    v_lshl_add_u32 v9, v2, 4, s3
    s_lshl_b32 s3, {sRB2}, 2
    s_add_u32 s3, s3, {sLO}
    s_lshl_b32 s3, s3, 12
    s_lshl_b32 s4, {sCS}, 8
    s_add_u32 s3, s3, s4
    s_add_u32 s28, s3, {EP_OFF}
    v_lshl_add_u32 v11, v3, 11, v10
    s_barrier
    ds_read_b64 v[40:41], v9
    ds_read_b32 v22, v9 offset:12
    s_waitcnt lgkmcnt(0)""")
    for e in E: a(f"v_pk_add_f32 {q2(XU+e)}, {q2(CAC+e)}, v[40:41] op_sel_hi:[1,0] neg_lo:[0,1] neg_hi:[0,1]")
    for e in E: a(f"v_cvt_pk_bf16_f32 v{OUTP+e//2}, v{XU+e}, v{XU+e+1}")
    for e in E: a(f"v_lshlrev_b32 v{XU+e}, 16, v{OUTP+e//2}\n v_and_b32 v{XU+e+1}, 0xffff0000, v{OUTP+e//2}")
    a("v_mov_b32 v42, v41")
    for e in E: a(f"v_pk_mul_f32 {q2(XU+e)}, {q2(XU+e)}, v[42:43] op_sel_hi:[1,0]")
    for e in E: a(f"v_cvt_pk_bf16_f32 v{OUTP+e//2}, v{XU+e}, v{XU+e+1}")
    for e in E: a(f"v_min_u32 v{OUTP+e//2}, -2, v{OUTP+e//2}")
    for k in range(5): a(f"ds_write_b64 v12, {q2(OUTP+2*k)} offset:{2560 + 8*k}")
    a(f"""v_and_b32 v4, 3, v22
    v_cmp_eq_u32 s[4:5], 0, v4
    v_cmp_eq_u32 s[6:7], 1, v4
    s_ff1_i32_b32 s4, s4
    s_ff1_i32_b32 s6, s6
    s_mul_i32 s4, s4, 160
    s_mul_i32 s6, s6, 160
    v_mov_b32 v4, s4
    v_mov_b32 v5, s6
    v_cmp_eq_u32 vcc, 1, v3
    v_cndmask_b32 v4, v4, v5, vcc
    v_add3_u32 v4, v4, v10, s34
    s_mov_b64 exec, 0x03ff03ff
    ds_read_b128 v[52:55], v4 offset:2560
    s_waitcnt lgkmcnt(0)
    buffer_store_dwordx4 v[52:55], v11, {WSR}, s28 offen sc1
    {MALL}
    """)
    rp_dma("L_RP2", "scc1")
    WDE = OPT.get("wde", 1)
    if WDE:
        a(f"s_cmp_lt_u32 {sROLE}, 32\n s_cbranch_scc1 L_NWD2")
        wd_dma(range(WD1, 7 - OPT.get("wdl", 0)), "2", True)
        a("L_NWD2:")
    for e in E: a(f"v_lshlrev_b32 v{XU+e}, 16, v{OUTP+e//2}\n v_and_b32 v{XU+e+1}, 0xffff0000, v{OUTP+e//2}")
    for e in E: a(f"v_pk_add_f32 {q2(XU+e)}, {q2(XU+e)}, {q2(CAC+e)}")
    for e in E: a(f"v_cvt_pk_bf16_f32 v{OUTP+e//2}, v{XU+e}, v{XU+e+1}")
    a("v_not_b32 v22, v22\n v_and_b32 v22, 0x1fff, v22\n s_waitcnt vmcnt(0)")
    a("L_SELW:")
    sel_setup()
    a(f"""L_SELB:
    s_waitcnt lgkmcnt(0)
    s_barrier
    ds_read_b32 v24, v151
    ds_read_b32 v25, v152
    ds_read_b32 v23, v150
    ds_read_b128 v[44:47], v157
    ds_read_b128 v[48:51], v157 offset:16""")
    a.stamp(11); a.stamp(7, 3)
    def publish(L):
        a(f"""s_waitcnt lgkmcnt(2)
        v_readlane_b32 s4, v23, {sW}
        s_lshr_b32 s5, s4, 8
        s_cmp_lg_u32 s5, {sRB2}
        s_cbranch_scc1 {L}
        s_bfe_u32 s5, s4, 0x20006
        s_mul_i32 s5, s5, 5120
        s_bfe_u32 s6, s4, 0x40002
        s_mul_i32 s6, s6, 160
        s_add_u32 s5, s5, s6
        v_add_u32 v4, s5, v160
        s_bfe_u32 s4, s4, 0x60002
        s_lshl_b32 s4, s4, 4
        s_add_u32 s4, s4, {SB+LMR}
        v_mov_b32 v5, s4
        v_cmp_eq_u32 vcc, 26, v1
        v_cndmask_b32 v4, v4, v5, vcc
        s_mov_b64 exec, 0x07ff03ff
        ds_read_b128 v[52:55], v4
        s_waitcnt lgkmcnt(0)
        buffer_store_dwordx4 v[52:55], v161, {WSR}, 0 offen sc1
        {MALL}
        {L}:""")
    def out_store(L):
        a(f"s_cmp_lg_u32 {sHI}, {FH}\n s_cbranch_scc1 {L}\n s_waitcnt lgkmcnt(0)")
        for i in range(8): a(f"v_cmp_ne_u32 vcc, v{44+i}, v22\n s_and_b64 exec, exec, vcc")
        a(f"""s_cbranch_execz {L}
        buffer_store_dwordx4 {q4(OUTP)}, v16, s[8:11], 0 offen {OFL}
        buffer_store_dwordx4 {q4(OUTP+4)}, v16, s[8:11], 0 offen offset:16 {OFL}
        buffer_store_dwordx2 {q2(OUTP+8)}, v16, s[8:11], 0 offen offset:32 {OFL}""")
        a(f"{L}:\n {MALL}")
    a(f"s_cmp_ge_u32 {sROLE}, 32\n s_cbranch_scc1 L_E")
    HF, DW, MRV = 64, 80, 24
    a("s_waitcnt lgkmcnt(3)")
    for i in range(2): a(f"v_not_b32 v{26+i}, v{24+i}\n v_lshrrev_b32 v{24+i}, 6, v{24+i}")
    for i in range(2): a(f"v_and_b32 v{26+i}, 3, v{26+i}\n v_lshlrev_b32 v{24+i}, 12, v{24+i}")
    for i in range(2): a(f"v_cmp_gt_u32 s[{4+2*i}:{5+2*i}], 2, v{26+i}\n v_lshl_add_u32 v{24+i}, v{26+i}, 11, v{24+i}")
    for i in range(2): a(f"v_cndmask_b32 v{24+i}, v{153+i}, v{24+i}, s[{4+2*i}:{5+2*i}]")
    for i in range(2): a(f"v_add_u32 v{24+i}, v{24+i}, v{155+i}")
    def d_loads():
        a(f"""s_mov_b32 m0, s59
        s_nop 0
        buffer_load_dwordx4 v24, {WSR}, s58 offen sc1 lds
        s_add_u32 m0, s59, 1024
        s_mov_b64 exec, 0xffff
        buffer_load_dwordx4 v25, {WSR}, s58 offen sc1 lds
        {MALL}""")
    def d_check():
        a(f"""s_waitcnt vmcnt(0)
        ds_read_b128 {q4(HF)}, v158
        ds_read_b128 {q4(HF+4)}, v158 offset:64
        ds_read_b128 {q4(HF+8)}, v159 offset:1024""")
        for ks in range(3):
            a(f"s_waitcnt lgkmcnt({2-ks})")
            a(mm16(28, DW+4*ks, HF+4*ks, ks == 0))
        a(f"""v_max3_u32 v5, v{HF}, v{HF+1}, v{HF+2}
        v_max3_u32 v6, v{HF+3}, v{HF+4}, v{HF+5}
        v_max3_u32 v5, v5, v{HF+6}, v{HF+7}
        v_max3_u32 v6, v6, v{HF+8}, v{HF+9}
        v_max3_u32 v5, v5, v{HF+10}, v{HF+11}
        v_max_u32 v5, v5, v6
        v_cmp_eq_u32 vcc, -1, v5""")
    d_loads()
    publish("L_NOPUB")
    for ks in range(3):
        for h in range(2): a(f"ds_read_b64_tr_b16 {q2(DW+4*ks+2*h)}, v162 offset:{ks*512 + h*64}")
    a("v_cmp_gt_u32 s[6:7], 32, v1\n v_mov_b32 v10, v163\n s_waitcnt lgkmcnt(0)")
    for r in range(4): a(f"v_cndmask_b32 v{DW+8+r}, 0, v{DW+8+r}, s[6:7]")
    d_check()
    a("s_cbranch_vccz L_RPOLL_OK")
    spin_head(a, "L_RPOLL")
    d_loads(); d_check()
    spin_tail(a, "L_RPOLL", 1)
    a.stamp(8, 3)
    a(f"""ds_write_b128 v10, v[28:31]
    s_waitcnt lgkmcnt(0)
    s_barrier""")
    a.stamp(9, 3)
    a(f"""s_cmp_lg_u32 {sW}, {LW}
    s_cbranch_scc1 L_DOTH
    v_subrev_u32 v10, {LW*1024}, v10""")
    oth = [w for w in range(8) if w != LW]
    for n, w in enumerate(oth): a(f"ds_read_b128 {q4(64+4*n)}, v10 offset:{1024*w}")
    for n in range(7):
        a(f"s_waitcnt lgkmcnt({6-n})")
        for r in (0, 2): a(f"v_pk_add_f32 {q2(28+r)}, {q2(28+r)}, {q2(64+4*n+r)}")
    a("""v_cvt_pk_bf16_f32 v32, v28, v29
    v_cvt_pk_bf16_f32 v33, v30, v31
    v_mov_b32 v34, v32
    v_mov_b32 v35, v33
    v_permlane32_swap_b32 v32, v34
    v_permlane32_swap_b32 v33, v35""")
    a.stamp(10, 3)
    for k in range(2):
        a(f"""v_lshlrev_b32 v{40+2*k}, 16, v{32+k}
        v_and_b32 v{41+2*k}, 0xffff0000, v{32+k}
        v_lshlrev_b32 v{44+2*k}, 16, v{34+k}
        v_and_b32 v{45+2*k}, 0xffff0000, v{34+k}""")
    for r in range(4): a(f"v_mul_f32 v{48+r}, 0xbfb8aa3b, v{40+r}")
    for r in range(4): a(f"v_exp_f32 v{48+r}, v{48+r}")
    for r in range(4): a(f"v_add_f32 v{48+r}, 1.0, v{48+r}")
    for r in range(4): a(f"v_rcp_f32 v{48+r}, v{48+r}")
    for r in range(4): a(f"v_mul_f32 v{40+r}, v{40+r}, v{48+r}")
    a("v_cvt_pk_bf16_f32 v32, v40, v41\n v_cvt_pk_bf16_f32 v33, v42, v43")
    for k in range(2):
        a(f"v_lshlrev_b32 v{40+2*k}, 16, v{32+k}\n v_and_b32 v{41+2*k}, 0xffff0000, v{32+k}")
    for r in (0, 2): a(f"v_pk_mul_f32 {q2(40+r)}, {q2(40+r)}, {q2(44+r)}")
    a(f"""v_cvt_pk_bf16_f32 v32, v40, v41
    v_cvt_pk_bf16_f32 v33, v42, v43
    v_min_u32 v32, -2, v32
    v_min_u32 v33, -2, v33
    v_mov_b32 v34, v32
    v_mov_b32 v35, v33
    v_lshlrev_b32 v4, 4, v2
    v_permlane16_swap_b32 v32, v34
    v_permlane16_swap_b32 v33, v35
    s_lshl_b32 s3, s30, 7
    s_add_u32 s3, s3, {ACT_OFF}
    s_mov_b64 exec, 0xff
    buffer_store_dwordx4 v[32:35], v4, {WSR}, s3 offen sc1""")
    a.stamp(4, 6)
    a(f"""s_barrier
    s_branch L_END
    L_DOTH:
    s_barrier
    L_DOTH2:""")
    if OPT.get("osl", 0): a(f"s_sleep {OPT['osl']}")
    out_store("L_OUTD")
    a("s_branch L_END")
    AF, EW = 64, 96
    HM = OPT.get("hm", 1)
    def h_loads():
        a(f"""buffer_load_dwordx2 v[136:137], v19, {WSR}, s33 offen sc1
        buffer_load_dwordx2 v[130:131], v19, {WSR}, s34 offen sc1
        buffer_load_dword v134, v17, {WSR}, s35 offen offset:8 sc1""")
    def h_part(first):
        if not first:
            a("v_max3_u32 v5, v130, v131, v134\n v_max3_u32 v5, v5, v136, v137\n v_cmp_eq_u32 vcc, -1, v5\n s_cbranch_vccz L_HPOLL_OK")
        spin_head(a, "L_HPOLL")
        a(f"""buffer_load_dwordx2 v[136:137], v19, {WSR}, s33 offen sc1
        buffer_load_dwordx2 v[130:131], v19, {WSR}, s34 offen sc1
        buffer_load_dword v134, v17, {WSR}, s35 offen offset:8 sc1
        s_waitcnt vmcnt(0)
        v_max3_u32 v5, v130, v131, v134
        v_max3_u32 v5, v5, v136, v137
        v_cmp_eq_u32 vcc, -1, v5""")
        spin_tail(a, "L_HPOLL")
        rb16(a, 134)
        a("v_mul_f32 v15, 0xbfb8aa3b, v134\n v_exp_f32 v15, v15\n v_add_f32 v15, 1.0, v15\n v_rcp_f32 v15, v15")
        rb16(a, 15)
        a("v_mov_b32 v16, v15")
        for k in range(2):
            a(f"""v_lshlrev_b32 v{140+2*k}, 16, v{136+k}
            v_and_b32 v{141+2*k}, 0xffff0000, v{136+k}
            v_lshlrev_b32 v{144+2*k}, 16, v{130+k}
            v_and_b32 v{145+2*k}, 0xffff0000, v{130+k}""")
    a("L_E:")
    a.stamp(1, 6)
    publish("L_NOPUBE")
    a("v_lshrrev_b32 v23, 2, v23")
    if not WDE: wd_dma(range(WD1, 7), "2")
    elif OPT.get("wdl", 0): wd_dma(range(7 - OPT.get("wdl", 0), 7), "3")
    a(f"""s_sub_u32 s30, s30, 256
    s_mul_i32 s4, s30, 52
    s_lshr_b32 s4, s4, 8              ; cg/5
    s_lshl_b32 s5, s4, 11
    s_add_u32 s35, s5, {XS_OFF + 16384 + 160}
    s_mul_i32 s4, s4, {2048 - 160}
    s_lshl_b32 s30, s30, 5
    s_add_u32 s4, s4, s30
    s_add_u32 s33, s4, {XS_OFF}
    s_add_u32 s34, s33, 16384
    v_and_b32 v17, 7, v2
    v_lshlrev_b32 v17, 8, v17
    v_lshl_add_u32 v19, v3, 3, v17
    v_add_u32 v11, s32, v21
    v_add_u32 v14, {GW}, v11
    s_waitcnt lgkmcnt(0)""")
    EO = OPT.get("eo", 0)
    if EO == 0: out_store("L_OUTE")
    srd(a, 12, P_WS, ACT_OFF + 27648)
    a(f"""v_and_b32 v4, 7, v2
    v_lshlrev_b32 v12, 4, v4
    v_lshl_add_u32 v12, v3, 7, v12
    s_lshl_b32 s4, {sW}, 9
    s_add_u32 s4, s4, {ACT_OFF}
    v_mul_u32_u24 v13, 1280, v23
    v_lshl_add_u32 v13, v3, 3, v13
    v_add_u32 v13, s30, v13
    s_add_u32 s3, s32, {DRED}
    v_lshl_add_u32 v10, v1, 4, s3
    s_cmp_lg_u32 {sW}, {LW}
    s_cbranch_scc1 L_ENOH""")
    if not HM: h_part(True)
    a("L_ENOH:\n s_waitcnt vmcnt(0)")
    for j in range(7):
        b, o = (14, wd_lds(j) - GW) if j < WD1 else (11, wd_lds(j))
        for h in range(2): a(f"ds_read_b64_tr_b16 {q2(EW+4*j+2*h)}, v{b} offset:{o + h*256}")
    if OPT.get('hint', 0):
        spin_head(a, "L_AHINT")
        a(f"""buffer_load_dwordx4 {q4(AF)}, v12, s[12:15], s4 offen sc1
    s_waitcnt vmcnt(0)
    v_cmp_eq_u32 vcc, -1, v{AF}""")
        spin_tail(a, "L_AHINT")
    AM = OPT.get("am", 1)
    if AM:
        for r in range(28): a(f"v_mov_b32 v{AF+r}, 0")
    if OPT.get('abar', 1): a("s_barrier")
    if OPT.get('asleep', 0): a(f"s_sleep {OPT['asleep']}")
    a.stamp(2, 6)
    spin_head(a, "L_APOLL")
    if AM: a("s_mov_b32 exec_lo, 0x00ff00ff\n s_mov_b32 exec_hi, 0x00ff00ff")
    for j in range(7): a(f"s_add_u32 s5, s4, {4096*j}\n buffer_load_dwordx4 {q4(AF+4*j)}, v12, s[12:15], s5 offen sc1")
    if AM: a(MALL)
    if HM:
        a(f"s_cmp_lg_u32 {sW}, {LW}\n s_cbranch_scc1 L_NH")
        h_loads()
        a("L_NH:")
    a(f"s_waitcnt vmcnt(0) lgkmcnt(0)")
    for j in range(7):
        a(mm16(24, EW+4*j, AF+4*j, j == 0))
        if j == 0: a(f"v_max_u32 v5, v{AF}, v{AF+1}\n v_max3_u32 v5, v5, v{AF+2}, v{AF+3}")
        else: a(f"v_max3_u32 v5, v5, v{AF+4*j}, v{AF+4*j+1}\n v_max3_u32 v5, v5, v{AF+4*j+2}, v{AF+4*j+3}")
    a("v_cmp_eq_u32 vcc, -1, v5")
    spin_tail(a, "L_APOLL", 1)
    a.stamp(11, 3); a.stamp(3, 6)
    if PROF and OPT.get("pg") == 6: a("s_mov_b32 s99, s3")
    a("ds_write_b128 v10, v[24:27]")
    if HM:
        a(f"s_cmp_lg_u32 {sW}, {LW}\n s_cbranch_scc1 L_NH2")
        h_part(False)
        a("L_NH2:")
    a(f"""s_waitcnt lgkmcnt(0)
    s_barrier
    s_cmp_lg_u32 {sW}, {LW}
    s_cbranch_scc1 {"L_DOTH2" if EO else "L_END"}
    v_subrev_u32 v10, {LW*1024}, v10""")
    for n, w in enumerate(oth): a(f"ds_read_b128 {q4(32+4*n)}, v10 offset:{1024*w}")
    for w in range(7):
        a(f"s_waitcnt lgkmcnt({6-w})")
        for r in (0, 2): a(f"v_pk_add_f32 {q2(24+r)}, {q2(24+r)}, {q2(32+4*w+r)}")
    a("v_cvt_pk_bf16_f32 v28, v24, v25\n v_cvt_pk_bf16_f32 v29, v26, v27")
    for k in range(2):
        a(f"v_lshlrev_b32 v{24+2*k}, 16, v{28+k}\n v_and_b32 v{25+2*k}, 0xffff0000, v{28+k}")
    def rnd():
        a("v_cvt_pk_bf16_f32 v28, v24, v25\n v_cvt_pk_bf16_f32 v29, v26, v27")
        for k in range(2): a(f"v_lshlrev_b32 v{24+2*k}, 16, v{28+k}\n v_and_b32 v{25+2*k}, 0xffff0000, v{28+k}")
    for r in (0, 2): a(f"v_pk_mul_f32 {q2(24+r)}, {q2(24+r)}, v[16:17] op_sel_hi:[1,0]")
    rnd()
    for r in (0, 2): a(f"v_pk_add_f32 {q2(24+r)}, {q2(24+r)}, {q2(140+r)}")
    rnd()
    for r in (0, 2): a(f"v_pk_add_f32 {q2(24+r)}, {q2(24+r)}, {q2(144+r)}")
    a("v_cvt_pk_bf16_f32 v24, v24, v25\n v_cvt_pk_bf16_f32 v25, v26, v27")
    a("""s_mov_b32 exec_lo, 0x00ff00ff
    s_mov_b32 exec_hi, 0x00ff00ff
    buffer_store_dwordx2 v[24:25], v13, s[8:11], 0 offen
    L_END:""")
    if PROF:
        a(f"{MALL}\n s_waitcnt vmcnt(0)")
        a.stamp(12)
        for i in range(16): a(f"v_mov_b32 v{8+i}, s{88+i}" if i < 13 else f"v_mov_b32 v{8+i}, 0")
        a(f"""s_lshl_b32 s3, s2, 9
        s_add_u32 s3, s3, {PROF_OFF}
        s_lshl_b32 s4, {sW}, 6
        s_add_u32 s3, s3, s4
        v_mov_b32 v4, s3
        s_mov_b64 exec, 1""")
        for i in range(4): a(f"global_store_dwordx4 v4, {q4(8+4*i)}, s[{P_WS}:{P_WS+1}] offset:{16*i}")
        if "ampj" in OPT:
            i, j = OPT["ampi"], OPT["ampj"]
            a(f"""s_sub_u32 s4, s{88+j}, s{88+i}
            s_mul_i32 s4, s4, 10
            s_min_u32 s4, s4, 100000
            s_cmp_lg_u32 {sW}, 0
            s_cbranch_scc1 L_EXIT
            L_AMP:
            s_memrealtime s[6:7]
            s_waitcnt lgkmcnt(0)
            s_sub_u32 s5, s6, s100
            s_cmp_lt_u32 s5, s4
            s_cbranch_scc1 L_AMP""")
    a("L_EXIT:\n s_endpgm")

    if DYN: emit_dyn()
    a("L_FALLBACK:\n s_waitcnt vmcnt(0)\n s_nop 7\n s_nop 7")
    S0 = 112
    def S(i): return S0 + 16*i
    KF = 24
    for n in range(9):
        a(kread(KF + 6*n, n))
        if n % 4 == 3: a("s_waitcnt lgkmcnt(0)")
    a("s_waitcnt lgkmcnt(0)")
    for n in range(9): a(f"{s1(S(n), KF+6*n)}\n {s2(S(n), KF+6*n)}")
    for r in range(8): a(f"v_mov_b32 v{78+r}, 0x3f803f80")
    a("s_nop 7\n s_nop 7")
    for i in range(8):
        a(f"s_cmp_gt_i32 s30, {i}\n s_cbranch_scc0 L_VALID")
        for r in range(16): a(f"v_mov_b32 v{S(i)+r}, 0xff800000")
    a("L_VALID:")
    for r in range(16): a(f"v_cndmask_b32 v{S(0)+r}, v{S(8)+r}, v{S(0)+r}, s[{MS+2*r}:{MS+1+2*r}]")
    a(f"v_max_f32 v4, v{S(0)}, v{S(0)+1}")
    for k in range(1, 64): a(f"v_max3_f32 v4, v{S0+2*k}, v{S0+2*k+1}, v4")
    a("""v_mov_b32 v5, v4
    v_permlane32_swap_b32 v4, v5
    v_max_f32 v4, v4, v5""")
    for i in range(8):
        s = S(i)
        for r in range(16): a(f"v_sub_f32 v{s+r}, v{s+r}, v4")
        for r in range(16): a(f"v_exp_f32 v{s+r}, v{s+r}")
        for k in range(8): a(f"v_cvt_pk_bf16_f32 v{s+k}, v{s+2*k}, v{s+2*k+1}")
    s = S(0)
    for k in range(8): a(f"v_and_b32 v{s+8+k}, v{MK+k}, v{s+k}")
    for k in range(8): a(f"v_xor_b32 v{S(8)+k}, v{s+8+k}, v{s+k}")
    for t in range(9):
        p = s + 8 if t == 0 else S(t)
        a(vread(78, t, False))
        a(f"s_waitcnt lgkmcnt(0)\n {pvm(78, p, t == 0)}\n {pvm(82, p + 4)}\n s_nop 7")
    a("s_nop 7")
    early_loads("L_EL2")
    if OPT.get("rpn", 10) >= 9: gu_loads("L_GU2", bGU)
    a("s_branch L_BDONE")

HEADER = """; Fused persistent kernel, 256 workgroups x 512 threads, one per CU (generated by a script of the author).
;   itself (the clears are confirmed through counters in d_debug before anything is trusted); all spins are bounded."""
def build():
    a = PAsm()
    kernel(a)
    name = NAME + "_kernel"
    L = ["; @launch grid=(256,1,1) block=(512,1,1) lds=163840", HEADER,
         '.amdgcn_target "amdgcn-amd-amdhsa--gfx950"', ".text", f".globl {name}", ".p2align 8",
         f".type {name},@function", f"{name}:", a.render(), "CODE_END:", "s_endpgm",
         '.section .rodata,"a"', ".p2align 6", f".amdhsa_kernel {name}", "  .amdhsa_next_free_vgpr 256",
         "  .amdhsa_next_free_sgpr 102", "  .amdhsa_accum_offset 256", "  .amdhsa_group_segment_fixed_size 0",
         "  .amdhsa_kernarg_size 88", "  .amdhsa_user_sgpr_count 2", "  .amdhsa_user_sgpr_kernarg_segment_ptr 1",
         "  .amdhsa_system_sgpr_workgroup_id_x 1", ".end_amdhsa_kernel"]
    return "\n".join(L) + "\n"

def check_ws(w, im, cmp, tof):
    import numpy as np
    qkv = im["qkv"]
    q = tof(w[Q_OFF:Q_OFF + 16*64*T32].view(np.uint16)).reshape(16, 64, 5, 32, 8).transpose(1, 3, 0, 2, 4).reshape(2048, 640)
    cmp("q", q, qkv[:, :640] * (20 ** -0.5) * 1.4426950408889634)
    k = tof(w[K_OFF:K_OFF + 16*64*T32].view(np.uint16)).reshape(16, 64, 5, 32, 8).transpose(1, 3, 0, 2, 4).reshape(2048, 640)
    cmp("k", k, qkv[:, 640:1280])
    v = tof(w[V_OFF:V_OFF + 16*64*T32].view(np.uint16)).reshape(16, 256, 40, 8).transpose(1, 3, 0, 2).reshape(2048, 640)
    cmp("v", v, qkv[:, 1280:])
    ob = w[O_OFF:O_OFF + 64*40960].reshape(64, 40960)
    om = tof(np.ascontiguousarray(ob[:, :32768]).view(np.uint16)).reshape(64, 32, 2, 32, 8).transpose(0, 3, 1, 2, 4).reshape(2048, 32, 16)
    oq = tof(np.ascontiguousarray(ob[:, 32768:]).view(np.uint16)).reshape(64, 32, 32, 4).transpose(0, 2, 1, 3).reshape(2048, 32, 4)
    o = np.concatenate([om, oq], axis=2).reshape(2048, 640)
    cmp("o", o, im["o"])

if __name__ == "__main__":
    PROF = "prof" in sys.argv
    if "cyc" in sys.argv: TIMER = "s_memtime"
    for x in sys.argv[2:]:
        if "=" in x:
            k, v = x.split("="); OPT[k] = int(v)
    out = sys.argv[1] if len(sys.argv) > 1 else f"cdna_kernels/{NAME}.s"
    txt = build()
    if OPT.get("nbig"):
        ls = txt.split("\n"); n = 0
        for i, l in enumerate(ls):
            if "buffer_store_dwordx4 v[76:79], v6" in l and n < 4: ls[i] = "    s_nop 0"; n += 1
        txt = "\n".join(ls)
    import re
    if OPT.get("sys") == 1: txt = txt.replace(" sc1", " sc0 sc1").replace("global_atomic_add v4, v5, s[82:83] sc0 sc1", "global_atomic_add v4, v5, s[82:83] sc1")
    if OPT.get("sys") == 2: txt = re.sub(r"(buffer_store[^\n]*) sc1", r"\1 sc0 sc1", txt)
    if OPT.get("sys") == 3: txt = re.sub(r"(buffer_load[^\n]*) sc1", r"\1 sc0 sc1", txt)
    if OPT.get("sys") == 4: txt = re.sub(r"(buffer_load[^\n]*) sc1 lds", r"\1 lds", txt)
    open(out, "w").write(txt)
    print("wrote", out, len(txt))
```
